```python
import torch

def _softmax(x, axis=-1):
    return torch.softmax(x, dim=axis)

def _gelu(x):
    return torch.nn.functional.gelu(x, approximate='tanh')

def _silu(x):
    return torch.nn.functional.silu(x)

def _sigmoid(x):
    return torch.sigmoid(x)

def _layernorm(x, axis=-1, eps=1e-05):
    m = x.mean(dim=axis, keepdim=True)
    v = x.var(dim=axis, keepdim=True, unbiased=False)
    return (x - m) / torch.sqrt(v + eps)

def _scatter_add(tgt, idx, src, axis=0):
    return tgt.clone().index_add_(axis, idx, src)

def _segment_sum(src, seg, n):
    out = torch.zeros((n,) + src.shape[1:], dtype=src.dtype)
    return out.index_add_(0, seg, src)

def _pad(x, pw):
    flat = tuple((v for pair in reversed(pw) for v in pair))
    return torch.nn.functional.pad(x, flat)
kernel_name = 'adaLN_cond__gqa_block_cached__moe_arch_mod__prompt'

def setup_inputs():

    _w = lambda a: (lambda t: t.to(torch.bfloat16) if t.is_floating_point() else t)(torch.as_tensor(a))

    def _A_setup():
        B, Sq, D = (1, 2048, 576)
        Hq, Hkv, Sk, Dh = (32, 16, 2048, 128)
        assert Hq % Hkv == 0, (Hq, Hkv)
        return {'x': _w((lambda *s: torch.randn(*s, dtype=torch.bfloat16) * 0.1)(B, Sq, D)), 'k_cache': _w((lambda *s: torch.randn(*s, dtype=torch.bfloat16) * 0.8)(B, Hkv, Sk, Dh)), 'v_cache': _w((lambda *s: torch.randn(*s, dtype=torch.bfloat16) * 0.8)(B, Hkv, Sk, Dh)), 'wq': _w((lambda *s: torch.randn(*s, dtype=torch.bfloat16) * 0.8)(D, Hq * Dh) * D ** (-0.5)), 'wo': _w((lambda *s: torch.randn(*s, dtype=torch.bfloat16) * 0.8)(Hq * Dh, D) * (Hq * Dh) ** (-0.5))}
    _A_in = _A_setup()

    def _B_setup():
        B, S, D, F, C = (1, 2048, 576, 4608, 2)
        return {'x': _w((lambda *s: torch.randn(*s, dtype=torch.bfloat16) * 0.1)(B, S, D)), 'w_r': _w((lambda *s: torch.randn(*s, dtype=torch.bfloat16) * 3.2)(D)), 'w_gate': _w((lambda *s: torch.randn(*s, dtype=torch.bfloat16) * 0.2)(D, F)), 'w_up': _w((lambda *s: torch.randn(*s, dtype=torch.bfloat16) * 0.2)(D, F)), 'w_down': _w((lambda *s: torch.randn(*s, dtype=torch.bfloat16) * 0.2)(F, D))}
    _B_in = _B_setup()
    return {'A_x': _A_in['x'], 'A_k_cache': _A_in['k_cache'], 'A_v_cache': _A_in['v_cache'], 'A_wq': _A_in['wq'], 'A_wo': _A_in['wo'], 'B_x': _B_in['x'], 'B_w_r': _B_in['w_r'], 'B_w_gate': _B_in['w_gate'], 'B_w_up': _B_in['w_up'], 'B_w_down': _B_in['w_down'], 'c': _w((lambda *s: torch.randn(*s, dtype=torch.bfloat16) * 0.4)(1, 576) * 8.0), 'w_mod': _w((lambda *s: torch.randn(*s, dtype=torch.bfloat16) * 0.4)(576, 6 * 576) * 576 ** (-0.5) * 8.0)}

def reference(A_x, A_k_cache, A_v_cache, A_wq, A_wo, B_x, B_w_r, B_w_gate, B_w_up, B_w_down, c, w_mod):

    def _A_ref(x, k_cache, v_cache, wq, wo):
        B, Sq, D = x.shape
        Hq, Dh = (32, 128)
        Hkv = k_cache.shape[1]
        rep = Hq // Hkv
        q = (lambda x, *d: x.permute(*d))((x @ wq).reshape(B, Sq, Hq, Dh), 0, 2, 1, 3)
        k = (lambda x, n, axis: torch.repeat_interleave(x, n, dim=axis))(k_cache, rep, axis=1)
        v = (lambda x, n, axis: torch.repeat_interleave(x, n, dim=axis))(v_cache, rep, axis=1)
        scores = torch.einsum('bhqd,bhkd->bhqk', q, k) * Dh ** (-0.5)
        p = _softmax(scores, axis=-1)
        o = torch.einsum('bhqk,bhkd->bhqd', p, v)
        return (lambda x, *d: x.permute(*d))(o, 0, 2, 1, 3).reshape(B, Sq, Hq * Dh) @ wo

    def _B_ref(x, w_r, w_gate, w_up, w_down):
        B, S, D = x.shape
        C = 2
        r = x @ w_r
        idx = torch.argsort(-r, axis=-1)[:, :C]
        idx_e = (lambda x, n, axis: torch.repeat_interleave(x, n, dim=axis))(idx.reshape(B, C, 1), D, axis=2)
        x_sel = (lambda x, i, axis: torch.take_along_dim(x, i, dim=axis))(x, idx_e, axis=1)
        g = _silu(x_sel @ w_gate)
        u = x_sel @ w_up
        y = g * u @ w_down
        r_sel = _sigmoid((lambda x, i, axis: torch.take_along_dim(x, i, dim=axis))(r, idx, axis=1))
        y = y * r_sel.reshape(B, C, 1)
        b_off = (torch.arange(B) * S).reshape(B, 1)
        flat_idx = (idx + b_off).reshape(B * C)
        zero = (x * 0.0).reshape(B * S, D)
        upd = _scatter_add(zero, flat_idx, y.reshape(B * C, D), axis=0)
        return x + upd.reshape(B, S, D)
    x = A_x
    mod = (_silu(c) @ w_mod).reshape(c.shape[0], 6, 1, -1)
    sa, ca, ga, sb, cb, gb = (mod[:, 0].clone(), mod[:, 1].clone(), mod[:, 2].clone(), mod[:, 3].clone(), mod[:, 4].clone(), mod[:, 5].clone())
    h = _layernorm(x, axis=-1) * (1 + ca) + sa
    x = x + ga * _A_ref(h, A_k_cache, A_v_cache, A_wq, A_wo)
    h = _layernorm(x, axis=-1) * (1 + cb) + sb
    x = x + gb * _B_ref(h, B_w_r, B_w_gate, B_w_up, B_w_down)
    return x
```

```python
import re, struct

def f2u(x): return struct.unpack("<I", struct.pack("<f", x))[0]
def v(i, n=1): return f"v{i}" if n == 1 else f"v[{i}:{i+n-1}]"
def a(i, n=1): return f"a{i}" if n == 1 else f"a[{i}:{i+n-1}]"
def s(i, n=1): return f"s{i}" if n == 1 else f"s[{i}:{i+n-1}]"

class Asm:
    def __init__(self):
        self.L = []; self.vm = []; self.lg = []
    def e(self, txt):
        for l in txt.split("\n"):
            l = l.strip()
            if l: self.L.append(l)
    def label(self, n): self.L.append(n + ":")
    def vmem(self, txt, tag=None): self.e(txt); self.vm.append(tag)
    def lds(self, txt, tag=None): self.e(txt); self.lg.append(tag)
    def _need(self, q, tag):
        idx = -1
        for i, t in enumerate(q):
            if t == tag: idx = i
        return idx
    def wait(self, vm=None, lg=None):
        parts = []
        for q, tags, name, mx in ((self.vm, vm, "vmcnt", 63), (self.lg, lg, "lgkmcnt", 15)):
            if tags is None: continue
            if not isinstance(tags, list): tags = [tags]
            idx = max(self._need(q, t) for t in tags)
            if idx < 0: continue
            n = min(len(q) - 1 - idx, mx)
            parts.append(f"{name}({n})")
            del q[:len(q) - n]
        if parts: self.e("s_waitcnt " + " ".join(parts))
    def wait_all(self, vm=True, lg=True):
        parts = []
        if vm: parts.append("vmcnt(0)"); self.vm = []
        if lg: parts.append("lgkmcnt(0)"); self.lg = []
        self.e("s_waitcnt " + " ".join(parts))
    def item(self, it):
        if isinstance(it, str): self.e(it)
        elif callable(it): it()
        elif it[0] == "vm": self.vmem(it[1], it[2])
        elif it[0] == "lds": self.lds(it[1], it[2])
        elif it[0] == "wait": self.wait(it[1], it[2])
        else: raise ValueError(it)
    def items(self, its):
        for it in its: self.item(it)
    def srd(self, d, base, size, off=None):
        if off is None:
            self.e(f"s_mov_b32 s{d}, s{base}\ns_mov_b32 s{d+1}, s{base+1}")
        else:
            self.e(f"s_add_u32 s{d}, s{base}, {off}\ns_addc_u32 s{d+1}, s{base+1}, 0")
        self.e(f"s_mov_b32 s{d+2}, {size}\ns_mov_b32 s{d+3}, 0x20000")
    def text(self): return "\n".join(("" if l.endswith(":") or l.startswith(".") else "    ") + l for l in self.L) + "\n"

class Sched:
    def __init__(self):
        self.mf = []; self.sh = []; self.mem = []; self.va = []
    def mfma(self, txt):
        self.mf.append(txt); self.sh.append([]); self.mem.append([]); self.va.append([]); return len(self.mf) - 1
    def emit(self, A, lo=0, hi=None):
        for i in range(lo, len(self.mf) if hi is None else hi):
            if self.mf[i]: A.e(self.mf[i])
            A.items(self.sh[i]); A.items(self.mem[i]); A.items(self.va[i])

_REG = re.compile(r"\b([vas])(\d+)\b|\b([vas])\[(\d+):(\d+)\]|\b(vcc|exec|m0)\b")
def regs(tok):
    out = set()
    for m in _REG.finditer(tok):
        if m.group(1): out.add(m.group(1) + m.group(2))
        elif m.group(3): out |= {m.group(3) + str(i) for i in range(int(m.group(4)), int(m.group(5)) + 1)}
        else: out.add(m.group(6))
    return out
TRANS = ("v_exp_", "v_log_", "v_rcp_", "v_rsq_", "v_sqrt_", "v_sin_", "v_cos_")
class I:
    def __init__(self, line, n):
        self.line = line; self.n = n
        p = line.split(None, 1); self.op = op = p[0]
        ops = [x.strip() for x in (p[1].split(",") if len(p) > 1 else [])]
        self.ops = ops
        self.mfma = op.startswith(("v_mfma", "v_smfmac"))
        self.valu = op.startswith("v_") and not self.mfma
        self.vmem = op.startswith(("buffer_", "global_"))
        self.ds = op.startswith("ds_")
        self.salu = op.startswith("s_")
        self.ws = int(ops[0]) + 1 if op == "s_nop" else 1
        R = [regs(o) for o in ops]
        allr = set().union(*R) if R else set()
        self.W = set(); self.R = set(); self.C = set(); self.data = set()
        if self.mfma:
            self.W = R[0]; self.AB = R[1] | R[2]
            if op.startswith("v_smfmac"): self.C = R[0]; self.AB |= R[3]
            else: self.C = R[3]
            self.R = self.AB | self.C
            self.passes = 8 if "32x32" in op else 4
        elif self.valu:
            self.W = set(R[0]); self.R = set().union(*R[1:]) if len(R) > 1 else set()
            if "swap" in op: self.W = R[0] | R[1]; self.R = R[0] | R[1]
            if op.startswith(("v_fmac", "v_dot2c", "v_writelane")): self.R |= R[0]
            if "dpp" in op or "row_" in line or "quad_perm" in line: self.R |= R[0]
            if op.startswith(("v_add_co", "v_addc_co", "v_sub_co")): self.W |= R[1]
            if op.startswith("v_cmpx"): self.W.add("exec")
        elif self.vmem:
            lds = bool(re.search(r"\blds\b", line)) or "_lds_" in op
            if "load" in op and not lds: self.W = R[0]; self.R = set().union(*R[1:])
            elif "atomic" in op and "sc0" in line: self.W = R[0]; self.R = allr
            else: self.R = set(allr)
            if lds: self.R.add("m0")
            if "store" in op and ("x4" in op or "x3" in op): self.data = R[0] if op.startswith("buffer") else R[1]
        elif self.ds:
            if "read" in op or "permute" in op or "swizzle" in op or "_rtn" in op: self.W = R[0]; self.R = set().union(*R[1:])
            else: self.R = allr
        elif self.salu:
            if op.startswith(("s_cmp", "s_cbranch", "s_branch", "s_wait", "s_nop", "s_barrier", "s_endpgm", "s_sleep", "s_setprio", "s_bitcmp")): self.R = allr
            else:
                self.W = set(R[0]) if R else set(); self.R = set().union(*R[1:]) if len(R) > 1 else set()
                if "saveexec" in op: self.W.add("exec")

def need(p, c):
    n = 0
    def up(cond, k):
        nonlocal n
        if cond: n = max(n, k)
    isv = lambda S: {r for r in S if r[0] in "va" and r != "vcc"}
    iss = lambda S: {r for r in S if r[0] == "s" or r == "vcc"}
    if p.valu:
        wv, wsg = isv(p.W), iss(p.W)
        up(c.mfma and wv & c.R, 2)
        up(p.op.startswith(TRANS) and c.valu and wv & c.R, 1)
        up(p.op.startswith(TRANS) and (c.vmem or c.ds) and wv & c.R, 1)
        up(c.valu and "permlane" in c.op and wv & c.R, 2)
        up(c.valu and ("dpp" in c.op or "row_" in c.line or "quad_perm" in c.line) and wv & c.R, 2)
        up(c.op.startswith(("v_readfirstlane", "v_readlane")) and wv & c.R, 1)
        up(c.vmem and wsg & c.R, 5)
        up(c.valu and wsg & c.R, 2)
        up(c.op.startswith(("v_readlane", "v_writelane")) and wsg & c.R, 4)
        up(c.salu and wsg & c.R, 1)
        up("exec" in p.W and (c.mfma or "permlane" in c.op or c.op.startswith(("v_readfirstlane", "v_readlane"))), 4)
        up("exec" in p.W and ("dpp" in c.op or "row_" in c.line), 5)
        up(("sdwa" in p.op or ("op_sel:" in p.line and "mixhi" in p.op)) and c.valu and wv & c.R, 1)
        up(p.op.startswith("v_dot") and (c.valu or c.mfma or c.vmem or c.ds) and wv & (c.R | c.W) and not (c.op == p.op and not (wv & regs(",".join(c.ops[1:3])))), 3)
    if p.mfma:
        big = {4: 8, 8: 12}[p.passes]
        if c.mfma:
            up(p.W & c.AB, big)
            up(p.W & c.C and not (p.W == c.C and p.passes == c.passes), big - 2)
            up(p.W & c.W and not (p.W & c.C), big - 2)
        else:
            up(p.W & (c.R | c.W), big)
            up(c.valu and p.C & c.W, p.passes - 1)
    if p.salu: up("m0" in p.W and c.vmem and "m0" in c.R, 1)
    if p.data: up(p.data & c.W, 2)
    return n

def lint(lines, name=""):
    ins = [I(l, i) for i, l in enumerate(lines) if not (l.endswith(":") or l.startswith((".", ";")))]
    bad = 0
    for j, c in enumerate(ins):
        d = 0
        for i in range(j - 1, max(-1, j - 14), -1):
            p = ins[i]
            k = need(p, c)
            if k > d:
                print(f"HAZARD[{name}] need {k} have {d}: [{p.n}] {p.line}  ->  [{c.n}] {c.line}"); bad += 1
            d += p.ws
            if d >= 12: break
    return bad
```

```python
from asmlib import *
from layout import *

RING = 8192; SLOT = 33792; HALF = 16896; PIECE = 1056
FLAG = RING + 4 * SLOT
LDS_BYTES = FLAG + 64
BIAS = 32.0
vK, vV, vT, vT2, vKV, vWq, vWo, vX, vAS, vPt, vIdx = 1, 2, 3, 4, 5, 6, 7, 8, 9, 10, 11
vTmp = 12
S0 = 16; P0 = 32; NM = 48; Q0 = 64; O0 = 128
AS0 = 16; T0 = 32; X0 = 48
def O(j, dt): return O0 + (j * 8 + dt) * 4
def Q(j, t): return Q0 + (j * 4 + t) * 4
def X(c, n, kl): return X0 + ((c + 2) % 5) * 16 + (n * 2 + kl) * 4
aL = 0; aOne = 16; aK = 64; aV = 128
def KF(kt, t): return aK + (kt * 4 + t) * 4
def VF(buf, dt, u): return aV + buf * 64 + (dt * 2 + u) * 4
sK, sV, sWq, sWo, sXn, sAS, sPt = 16, 20, 24, 28, 32, 36, 40
sW4, sOff, sT, sBase, sDel, sCnt, sPass, sW, sG, sTb, sOff2 = 44, 45, 46, 47, 48, 49, 50, 51, 52, 53, 54
MF = "v_mfma_f32_16x16x32_bf16"

def trd(dst, slot, off):
    base = vT if slot < 2 else vT2
    return f"ds_read_b64_tr_b16 {a(dst,2)}, v{base} offset:{(slot % 2) * SLOT + off}"

def dma_wq(c):
    slot = (c + 1) % 4; out = []
    for kl in range(2):
        for r in range(4):
            out.append(([f"s_add_u32 m0, s{sW4}, {slot*SLOT + kl*HALF + r*PIECE}", f"s_mov_b32 s{sOff}, {(64*c + 32*kl + r) * 8192}"],
                        ("vm", f"buffer_load_dwordx4 v{vWq}, {s(sWq,4)}, s{sOff} offen lds", ("L", c))))
    return out
def dma_kv_static(i, halves=(0, 1), slot=None):
    slot = (i + 2) % 4 if slot is None else slot; out = []
    for h in halves:
        for j in range(4):
            pre = [f"s_add_u32 m0, s{sW4}, {slot*SLOT + h*HALF + 32*j}"]
            if i is not None and j == 0 and h == halves[0]: pre.append(f"s_mov_b32 s{sT}, {i*16384}")
            out.append((pre, ("vm", f"buffer_load_dwordx4 v{vKV}, {s(sV if h else sK,4)}, s{sT} offen offset:{1024*j} lds", ("L", 9 + (i or 0)))))
    return out
def dma_kv_dyn(i, odd):
    out = []
    for h in range(2):
        for j in range(4):
            pre = [f"s_add_u32 m0, s{sBase}, {odd*SLOT + h*HALF + 32*j}"]
            out.append((pre, ("vm", f"buffer_load_dwordx4 v{vKV}, {s(sV if h else sK,4)}, s{sT} offen offset:{1024*j} lds", ("L", 9 + i))))
    return out
def dma_wo(c):
    slot = (c + 2) % 4; out = []
    for hi in range(2):
        for r in range(4):
            pre = [f"s_add_u32 m0, s{sW4}, {slot*SLOT + hi*HALF - 96*r}"]
            if r == 0: pre.append(f"s_mov_b32 s{sOff}, {c*128 + hi*128*1152}")
            out.append((pre, ("vm", f"buffer_load_dwordx4 v{vWo}, {s(sWo,4)}, s{sOff} offen offset:{1152*r} lds", ("L", 41 + c))))
    return out
def dmaL(n):
    return dma_wq(n) if n < 9 else (dma_kv_static(n - 9) if n < 41 else dma_wo(n - 41))
def emit_dma(A, lst):
    for pre, ld in lst:
        A.items(pre)
        if len(pre) == 1: A.e("s_nop 0")
        A.item(ld)
def xload(c):
    return [([f"s_mov_b32 s{sOff2}, {n*18432 + (2*c+kl)*1024}"],
             ("vm", f"buffer_load_dwordx4 {v(X(c,n,kl),4)}, v{vX}, {s(sXn,4)}, s{sOff2} offen", ("X", c))) for n in range(2) for kl in range(2)]
def place_vm(Sc, g, item):
    pre, ld = item
    for k, p in enumerate(pre): Sc.sh[g - 1 - k].append(p)
    Sc.mem[g].append(ld)

def as_reads(c, q):
    kl, hf = q // 2, q % 2; d = AS0 + (q % 2) * 8; off = (2 * c + kl) * 256 + hf * 16
    return [("lds", f"ds_read_b128 {v(d,4)}, v{vAS} offset:{off}", ("AS", c, q)), ("lds", f"ds_read_b128 {v(d+4,4)}, v{vAS} offset:{off+32}", ("AS", c, q))]
def modulate(c, q):
    kl, hf = q // 2, q % 2; d = AS0 + (q % 2) * 8; out = []
    for n in range(2):
        x = X(c, n, kl) + 2 * hf; t = T0 + 4 * n
        for i in range(4):
            out.append(f"v_fma_mix_f32 v{t+i}, v{x+i//2}, v{d+i}, v{d+4+i} op_sel:[{i%2},0,0] op_sel_hi:[1,0,0]")
        out += [f"v_cvt_pk_bf16_f32 v{x}, v{t}, v{t+1}", f"v_cvt_pk_bf16_f32 v{x+1}, v{t+2}, v{t+3}"]
    return out

def kreads(off, tag): return [("lds", f"ds_read_b128 {a(KF(kt,t),4)}, v{vK} offset:{off + kt*256 + t*64}", (tag, kt)) for kt in range(4) for t in range(4)]
def vreads(buf, off, tag): return [("lds", f"ds_read_b64_tr_b16 {a(VF(buf,dt,u)+2*b,2)}, v{vV} offset:{off + (2*u+b)*256 + dt*32}", tag) for dt in range(8) for u in range(2) for b in range(2)]

QD = 3
def AF(grp, kl): return aV + 64 + (grp % 8) * 8 + kl * 4
def qreads(G):
    c, mt = divmod(G, 16); slot = (c + 1) % 4
    return [("lds", trd(AF(G, kl) + 2 * b, slot, kl * HALF + b * 512 + mt * 32), ("A", G)) for kl in range(2) for b in range(2)]

def gen_qproj(A):
    Sc = Sched()
    for c in range(9):
        for mt in range(16):
            G = c * 16 + mt
            for n in range(2):
                d = O(2 * (mt // 8) + n, mt % 8)
                for kl in range(2):
                    cc = "0" if c == 0 and kl == 0 else v(d, 4)
                    Sc.mfma(f"{MF} {v(d,4)}, {a(AF(G,kl),4)}, {v(X(c,n,kl),4)}, {cc}")
    N = len(Sc.mf); vmg = set()
    leftover = []
    for c in range(9):
        gb = 64 * (c + 1) - 4 * QD - 1
        Sc.sh[gb] += [("wait", ("L", c + 1), None), "s_barrier"]
        if c >= 1:
            for k, it in enumerate(dmaL(c + 3)):
                g = gb + 4 + 8 * k
                if g < N: place_vm(Sc, g, it); vmg.add(g)
                else: leftover.append(it)
    for c in range(4):
        for k, it in enumerate(xload(c + 5)):
            g = 64 * (c + 1) + 3 + 16 * k
            assert g not in vmg
            place_vm(Sc, g, it); vmg.add(g)
    for G in range(144):
        if G > 0: Sc.sh[4 * G - 1].append(("wait", None, ("A", G)))
        if G + QD < 144:
            rd = qreads(G + QD); gs = [g for g in range(4 * G, 4 * G + 4) if g not in vmg]
            if len(gs) == 3: gs = [gs[0], gs[1], gs[1], gs[2]]
            for g, r in zip(gs, rd): Sc.mem[g].append(r)
    for c in range(8):
        Sc.sh[64 * c].append(("wait", ("X", c + 1), None))
        for q in range(4):
            w0 = 64 * c + 16 * q
            nxt = as_reads(c + 1, q + 1) if q < 3 else (as_reads(c + 2, 0) if c < 7 else [])
            items = modulate(c + 1, q)
            Sc.sh[w0].append(("wait", None, ("AS", c + 1, q)))
            free = [g for g in range(w0, w0 + 16) if g not in vmg and len(Sc.mem[g]) < 2]
            for r in nxt:
                g = free.pop(0); Sc.mem[g].append(r)
            over = len(items) - len(free)
            odd = [g for g in range(w0 + 1, w0 + 16, 2) if g not in vmg]
            slots = sorted(free + odd[-over:] if over > 0 else free)
            for g, it in zip(slots, items): Sc.va[g].append(it)
    return Sc, leftover, vmg

def qconvert(j, t):
    o = O(j, 2 * t); q = Q(j, t)
    return [f"v_cvt_pk_bf16_f32 v{q+i}, v{o+2*i}, v{o+2*i+1}" for i in range(4)], [f"v_permlane32_swap_b32 v{q}, v{q+2}", f"v_permlane32_swap_b32 v{q+1}, v{q+3}"]

def xmax_to_negm(A, src, bias):
    t = vTmp
    for op in ("v_permlane16_swap_b32", "v_permlane32_swap_b32"):
        for j in range(4): A.e(f"v_mov_b32 v{t+j}, v{src[j]}")
        for j in range(4): A.e(f"{op} v{t+j}, v{src[j]}")
        for j in range(4): A.e(f"v_max_f32 v{src[j]}, v{src[j]}, v{t+j}")
    for j in range(4):
        for i in range(4): A.e(f"v_sub_f32 v{NM+4*j+i}, {hex(f2u(-bias))}, v{src[j]}")

def gen_stage(i, kind, dma, opt):
    par = i % 2; Sc = Sched(); first = kind == "first"; last = kind == "last"
    nun = 5 if last else 4
    for j in range(nun):
        for kt in range(4):
            for t in range(4):
                d = S0 + 4 * kt
                Sc.mfma(None if j == 4 else f"{MF} {v(d,4)}, {a(KF(kt,t),4)}, {v(Q(j,t),4)}, {v(NM+4*j,4) if t == 0 else v(d,4)}")
        jp = (j - 1) % 4; vb = par if j > 0 else 1 - par; p = P0 + 8 * (jp % 2)
        skip = first and j == 0
        for dt in range(8):
            for u in range(2):
                d = O(jp, dt); cc = "0" if first and u == 0 else v(d, 4)
                Sc.mfma(None if skip else f"{MF} {v(d,4)}, {a(VF(vb,dt,u),4)}, {v(p+4*u,4)}, {cc}")
        Sc.mfma(None if skip else f"v_smfmac_f32_16x16x64_bf16 {a(aL+4*jp,4)}, {a(aOne,4)}, {v(p,8)}, v{vIdx}")
        b = 33 * j
        for x in range(16):
            prev = x < 4
            if (prev and skip) or (j == 4 and not prev): continue
            e = (x - 4) % 16
            Sc.va[b + 2 * x].append(f"v_exp_f32 v{S0+e}, v{S0+e}")
        for k in range(8):
            prev = k < 3; pr = (k + 5) % 8
            if (prev and skip) or (j == 4 and not prev): continue
            pb = P0 + 8 * ((j - 1 if prev else j) % 2)
            Sc.va[b + 4 * k + 1].append(f"v_cvt_pk_bf16_f32 v{pb+pr}, v{S0+2*pr}, v{S0+2*pr+1}")
    if first:
        for g in range(16, 33):
            if g % 2 == 0: Sc.va[g].append("s_nop 0")
        Sc.sh[16].append("s_nop 3")
    if last:
        for g in range(33 * 4, 33 * 4 + 8, 2): Sc.va[g].append("s_nop 0")
        Sc.va[33 * 4 + 15].append("s_nop 1")
    for kt in range(1, 4): Sc.sh[4 * kt - 1].append(("wait", None, (("K", i), kt)))
    step = opt.get("dma_step", 4)
    cand = [33 * j + r for j in range(3) for r in range(3, 32, 4)]
    gs = cand[::step // 4] if not last else cand
    vmg = set()
    for g, it in zip(gs, dma): place_vm(Sc, g, it); vmg.add(g)
    assert len(vmg) == len(dma)
    if kind == "A":
        Sc.va[1].append(f"v_add_u32 v{vK}, s{sDel}, v{vK}"); Sc.va[5].append(f"v_add_u32 v{vV}, s{sDel}, v{vV}")
        Sc.sh[0].append(f"s_sub_u32 s{sBase}, s{sBase}, s{sDel}")
        Sc.sh[8].append(f"s_sub_u32 s{sDel}, 0, s{sDel}")
    if not last:
        Sc.sh[100].append(f"s_add_u32 s{sT}, s{sT}, 16384"); Sc.sh[101].append(f"s_min_u32 s{sT}, s{sT}, {31*16384}")
        off = 0 if kind == "A" else SLOT
        free = [33 * j + r for j in range(3) for r in list(range(1, 32, 2)) + [32] if 33 * j + r >= 17 and 33 * j + r not in vmg]
        vr = vreads(1 - par, off, ("V", i + 1)); assert len(free) >= 32
        for n, r in enumerate(vr):
            assert free[n] >= 16 + n // 2
            Sc.mem[free[n]].append(r)
        for n, r in enumerate(kreads(off, ("K", i + 1))): Sc.mem[99 + 2 * n + 1].append(r)
        Sc.sh[131] += [("wait", ("L", 9 + i + 2), (("K", i + 1), 0)), "s_barrier"]
    return Sc

OA = 16; OR = 48
def OB(n, u): return O(2 * (u // 4) + n, 2 * (u % 4))
def WF(grp, u): return aK + (grp % 2) * 32 + u * 4
def oreads(G):
    c, ntl = divmod(G, 4); slot = (c + 2) % 4
    return [("lds", trd(WF(G, u) + 2 * b, slot, (u // 4) * HALF + (2 * (u % 4) + b) * 128 + ntl * 32), ("W", G, u // 2)) for u in range(8) for b in range(2)]
def oacc(G, n): return OA + ((G % 4) * 2 + n) * 4
def oepi(pair, n):
    r = OR + 4 * n; x, y = oacc(2 * pair, n), oacc(2 * pair + 1, n); c, aa = divmod(pair, 2)
    cv = [f"v_cvt_pk_bf16_f32 v{r}, v{x}, v{x+1}", f"v_cvt_pk_bf16_f32 v{r+1}, v{x+2}, v{x+3}", f"v_cvt_pk_bf16_f32 v{r+2}, v{y}, v{y+1}", f"v_cvt_pk_bf16_f32 v{r+3}, v{y+2}, v{y+3}"]
    sw = [f"v_permlane32_swap_b32 v{r}, v{r+2}", f"v_permlane32_swap_b32 v{r+1}, v{r+3}"]
    st = ([f"s_mov_b32 s{sOff2}, {n*294912 + c*1024}"], ("vm", f"buffer_store_dwordx4 {v(r,4)}, v{vPt}, {s(sPt,4)}, s{sOff2} offen offset:{aa*512}", "st"))
    return cv, sw, st

def gen_oproj(A):
    Sc = Sched()
    for G in range(36):
        for n in range(2):
            for u in range(8):
                d = oacc(G, n)
                Sc.mfma(f"{MF} {v(d,4)}, {a(WF(G,u),4)}, {v(OB(n,u),4)}, {'0' if u == 0 else v(d,4)}")
    N = len(Sc.mf); vmg = set()
    for k, it in enumerate(dma_wo(3)):
        g = 7 + 8 * k; place_vm(Sc, g, it); vmg.add(g)
    for c in range(8):
        gb = 64 * c + 47
        Sc.sh[gb] += [("wait", ("L", 41 + c + 1), None), "s_barrier"]
        if 1 <= c and c + 3 <= 8:
            for k, it in enumerate(dma_wo(c + 3)):
                g = gb + 8 + 8 * k; place_vm(Sc, g, it); vmg.add(g)
    swg = set()
    for p in range(17):
        for n in range(2):
            b = 16 * (2 * p + 2) + 8 * n
            cv, sw, st = oepi(p, n)
            for k, x in enumerate(cv): Sc.va[b + k].append(x)
            Sc.va[b + 5].append(sw[0]); Sc.va[b + 6].append(sw[1]); swg |= {b + 5, b + 6}
            Sc.sh[b + 4].append(st[0][0]); Sc.va[b + 7].append(st[1])
    for G in range(36):
        for h in range(4):
            g = 16 * G + 2 * h - 1
            if g >= 0: Sc.sh[g].append(("wait", None, ("W", G, h)))
        if G + 1 < 36:
            gs = [g for g in range(16 * G, 16 * G + 16) if g not in vmg and g not in swg]
            two = [g for g in gs if not Sc.va[g]]
            extra = 16 - len(gs)
            if extra > len(two): two = two + [g for g in range(16 * G + 7, 16 * G + 16, 8)] * 4
            gs = sorted(gs + two[:extra])
            for g, r in zip(gs, oreads(G + 1)): Sc.mem[g].append(r)
    return Sc

def gen_k2(opt={}):
    A = Asm()
    A.e("s_cmp_ge_u32 s2, 256\ns_cbranch_scc1 L2_end")
    A.e("s_load_dwordx8 s[4:11], s[0:1], 8\ns_load_dwordx2 s[12:13], s[0:1], 112")
    A.e(f"v_lshrrev_b32 v12, 6, v0\nv_and_b32 v0, 63, v0\nv_readfirstlane_b32 s{sW}, v12")
    hp = opt.get("heads_per_xcd", 4); lg = hp.bit_length() - 1; ng = 16 // hp
    A.e(f"s_and_b32 s3, s2, 7\ns_lshr_b32 s14, s2, 3")
    A.e(f"s_and_b32 s{sG}, s3, {ng-1}\ns_lshl_b32 s{sG}, s{sG}, {lg}\ns_and_b32 s15, s14, {hp-1}\ns_add_u32 s{sG}, s{sG}, s15")
    A.e(f"s_lshr_b32 s{sTb}, s3, {ng.bit_length()-1}\ns_mul_i32 s{sTb}, s{sTb}, {32//hp}\ns_lshr_b32 s15, s14, {lg}\ns_add_u32 s{sTb}, s{sTb}, s15")
    A.e(f"s_mul_i32 s{sW4}, s{sW}, {4*PIECE}\ns_add_u32 s{sW4}, s{sW4}, {RING}")
    A.e(f"v_lshlrev_b32 v{vX}, 4, v0\nv_lshl_add_u32 v{vKV}, v12, 12, v{vX}")
    A.e(f"v_lshrrev_b32 v13, 5, v0\nv_lshl_add_u32 v13, v12, 1, v13\nv_lshlrev_b32 v13, 15, v13\nv_and_b32 v14, 31, v0\nv_lshl_add_u32 v{vWq}, v14, 4, v13")
    A.e("s_waitcnt lgkmcnt(0)")
    A.e(f"s_lshl_b32 s3, s{sG}, 9"); A.srd(sWq, 8, 0, "s3"); A.e(f"s_sub_u32 s{sWq+2}, {576*8192}, s3")
    A.srd(sAS, 12, 8192)
    A.e(f"s_lshl_b32 s3, s{sTb}, 2\ns_add_u32 s3, s3, s{sW}\ns_mul_i32 s14, s3, 36864\ns_add_u32 s14, s14, {WS_XN}"); A.srd(sXn, 12, 36864, "s14")
    A.e(f"s_lshl_b32 m0, s{sW}, 10\ns_lshl_b32 s{sOff}, s{sW}, 10")
    A.vmem(f"buffer_load_dwordx4 v{vX}, {s(sAS,4)}, s{sOff} offen lds", "AS")
    A.e(f"s_add_u32 m0, m0, 4096\ns_add_u32 s{sOff}, s{sOff}, 4096")
    A.vmem(f"buffer_load_dwordx4 v{vX}, {s(sAS,4)}, s{sOff} offen lds", "AS")
    for c in range(5):
        for pre, ld in xload(c): A.items(pre + [ld])
        if c < 4: emit_dma(A, dmaL(c))
    A.e(f"s_mul_i32 s14, s3, {4*147456}\ns_mul_i32 s15, s{sG}, 9216\ns_add_u32 s14, s14, s15\ns_add_u32 s14, s14, {WS_PART}"); A.srd(sPt, 12, 0, "s14"); A.e(f"s_sub_u32 s{sPt+2}, {4*147456}, s15")
    A.e(f"s_lshl_b32 s3, s{sG}, 19"); A.srd(sK, 4, 524288, "s3"); A.srd(sV, 6, 524288, "s3")
    A.e(f"s_mul_i32 s3, s{sG}, 294912"); A.srd(sWo, 10, 294912, "s3")
    A.e(f"s_mov_b32 s{sPass}, 0")
    A.e(f"v_lshrrev_b32 v13, 4, v0\nv_lshlrev_b32 v{vAS}, 6, v13")
    A.e(f"v_lshrrev_b32 v14, 2, v0\nv_mul_u32_u24 v14, {PIECE}, v14\nv_add_u32 v14, {RING}, v14")
    A.e(f"v_and_b32 v15, 1, v0\nv_lshlrev_b32 v15, 4, v15\nv_add_u32 v{vT}, v14, v15\nv_and_b32 v15, 2, v0\nv_lshl_add_u32 v{vT}, v15, 2, v{vT}\nv_add_u32 v{vT2}, {2*SLOT}, v{vT}")
    A.e(f"v_lshrrev_b32 v14, 3, v0\nv_lshlrev_b32 v14, 2, v14\nv_add_u32 v14, v14, v12\nv_mul_u32_u24 v14, {4*1152}, v14\nv_and_b32 v15, 7, v0\nv_lshl_add_u32 v{vWo}, v15, 4, v14")
    A.e(f"v_lshlrev_b32 v{vPt}, 4, v15\nv_lshl_add_u32 v{vPt}, v13, 7, v{vPt}\nv_bfe_u32 v14, v0, 3, 1\nv_mul_u32_u24 v14, 147456, v14\nv_add_u32 v{vPt}, v{vPt}, v14")
    def init_kv_addr():
        A.e(f"v_lshrrev_b32 v14, 2, v0\nv_mul_u32_u24 v14, {PIECE}, v14\nv_and_b32 v15, 3, v0\nv_lshl_add_u32 v14, v15, 3, v14\nv_add_u32 v{vV}, {RING + 2*SLOT + HALF}, v14")
        A.e(f"v_and_b32 v14, 15, v0\nv_mul_u32_u24 v14, {PIECE}, v14\nv_lshrrev_b32 v15, 4, v0\nv_lshl_add_u32 v14, v15, 4, v14\nv_add_u32 v{vK}, {RING + 2*SLOT}, v14")
    init_kv_addr()
    A.e(f"v_and_b32 v14, 1, v0\nv_cmp_eq_u32 vcc, 0, v14\nv_mov_b32 v{vIdx}, 0xeeeeeeee\nv_mov_b32 v15, 0x44444444\nv_cndmask_b32 v{vIdx}, v{vIdx}, v15, vcc")
    A.e(f"v_and_b32 v14, 2, v0\nv_cmp_eq_u32 vcc, 0, v14\nv_mov_b32 v15, 0x3f803f80\ns_nop 0\nv_cndmask_b32 v15, 0, v15, vcc")
    for i in range(4): A.e(f"v_accvgpr_write_b32 a{aOne+i}, v15")
    A.wait(vm=("X", 0)); A.e("s_barrier")
    A.items(as_reads(0, 0) + as_reads(0, 1))
    for q in range(4):
        A.wait(lg=("AS", 0, q)); A.items(modulate(0, q))
        if q < 3: A.items(as_reads(0, q + 2) if q < 2 else as_reads(1, 0))
    A.wait(vm=("L", 0)); A.e("s_barrier")
    for G in range(QD): A.items(qreads(G))
    A.wait(lg=("A", 0))
    Sc, leftover, vmg = gen_qproj(A)
    N = len(Sc.mf)
    kv0 = kreads(0, ("K", 0)) + vreads(0, 0, ("V", 0))
    for g in range(N - 4 * QD, N):
        if g not in vmg: Sc.mem[g].append(kv0.pop(0))
    conv = []
    for t2 in range(8):
        for n in range(2):
            cv, sw = qconvert(2 * (t2 // 4) + n, t2 % 4)
            conv.append((512 + 8 * t2 + 7 + 5, cv, sw))
    pend = []
    for ready, cv, sw in conv: pend += [(ready, x) for x in cv]
    for g in range(512, N):
        if g not in vmg and len(Sc.mem[g]) < 2 and pend and pend[0][0] <= g: Sc.va[g].append(pend.pop(0)[1])
    Sc.emit(A)
    emit_dma(A, leftover)
    A.items(kv0)
    A.items([x for _, x in pend]); A.e("s_nop 0")
    for _, cv, sw in conv: A.items(sw)
    A.wait(lg=(("K", 0), 0))
    for j in range(4):
        for t in range(4):
            d = S0 + 4 * j
            A.e(f"{MF} {v(d,4)}, {a(KF(0,t),4)}, {v(Q(j,t),4)}, {'0' if t == 0 else v(d,4)}")
    A.e("s_nop 1")
    for j in range(4):
        d = S0 + 4 * j
        A.e(f"v_max3_f32 v{d}, v{d}, v{d+1}, v{d+2}\nv_max_f32 v{d}, v{d}, v{d+3}")
    xmax_to_negm(A, [S0 + 4 * j for j in range(4)], BIAS)
    A.label("L2_entry")
    for i in range(16): A.e(f"v_accvgpr_write_b32 a{aL+i}, 0")
    for i in range(32): A.e(f"v_mov_b32 v{O(3,0)+i}, 0")
    A.e(f"s_mov_b32 s{sBase}, s{sW4}\ns_mov_b32 s{sDel}, {-2*SLOT}\ns_mov_b32 s{sCnt}, 15\ns_mov_b32 s{sT}, {3*16384}")
    A.wait(vm=("L", 10), lg=("V", 0)); A.e("s_barrier")
    gen_stage(0, "first", dma_kv_dyn(3, 1), opt).emit(A)
    def body(i):
        gen_stage(i, "A", dma_kv_dyn(i + 3, 0), opt).emit(A)
        Sb = gen_stage(i + 1, "B", dma_kv_dyn(i + 4, 1), opt)
        Sb.sh[128].append(f"s_sub_u32 s{sCnt}, s{sCnt}, 1"); Sb.sh[129].append(f"s_cmp_lg_u32 s{sCnt}, 0")
        Sb.emit(A)
    if opt.get("align_loop", 1): A.e(".p2align 5")
    A.label("L2_loop")
    n0 = len(A.L); body(1); n1 = len(A.L); body(3)
    assert A.L[n0:n1] == A.L[n1:], "loop body not in steady state"
    assert lint(A.L[n0:], "loop2x") == 0
    del A.L[n1:]
    def shift(t, d):
        if isinstance(t, tuple) and t[0] in ("L", "V"): return (t[0], t[1] + d)
        if isinstance(t, tuple) and isinstance(t[0], tuple): return ((t[0][0], t[0][1] + d), t[1])
        return t
    A.vm = [shift(t, 26) for t in A.vm]; A.lg = [shift(t, 26) for t in A.lg]
    A.vm = [("X", t[1]) if t[1] >= 41 else t for t in A.vm]
    A.e("s_cbranch_scc1 L2_loop")
    gen_stage(31, "last", dma_wo(0) + dma_wo(1) + dma_wo(2), opt).emit(A)
    A.e("s_nop 7")
    for j in range(4): A.e(f"v_accvgpr_read_b32 v{vTmp+j}, a{aL+4*j}\nv_accvgpr_read_b32 v{S0+j}, a{aL+4*j+1}")
    for j in range(4): A.e(f"v_add_f32 v{vTmp+j}, v{vTmp+j}, v{S0+j}")
    A.e(f"s_mov_b32 s3, {hex(f2u(2.0**60))}")
    for j in range(4): A.e(f"v_cmp_nlt_f32 {s(56+2*j,2)}, v{vTmp+j}, s3")
    A.e("s_or_b64 s[56:57], s[56:57], s[58:59]\ns_or_b64 s[60:61], s[60:61], s[62:63]\ns_or_b64 s[56:57], s[56:57], s[60:61]\ns_cselect_b32 s3, 1, 0")
    A.e(f"s_lshl_b32 s14, s{sW}, 2\ns_add_u32 s14, s14, {FLAG}\nv_mov_b32 v{S0}, s3\nv_mov_b32 v{S0+1}, s14\nv_mov_b32 v{S0+2}, {FLAG}")
    A.lds(f"ds_write_b32 v{S0+1}, v{S0}", "fw")
    for j in range(4): A.e(f"v_rcp_f32 v{vTmp+j}, v{vTmp+j}")
    A.wait(vm=("L", 41), lg="fw"); A.e("s_barrier")
    A.lds(f"ds_read_b128 {v(S0+4,4)}, v{S0+2}", "fr")
    A.items(oreads(0))
    for u in range(8):
        for n in range(2):
            o = OB(n, u); j = 2 * (u // 4) + n
            for i in range(8): A.e(f"v_mul_f32 v{o+i}, v{o+i}, v{vTmp+j}")
            for i in range(4): A.e(f"v_cvt_pk_bf16_f32 v{o+i}, v{o+2*i}, v{o+2*i+1}")
    A.wait(lg=("W", 0, 0))
    A.e(f"v_or3_b32 v{S0+4}, v{S0+4}, v{S0+5}, v{S0+6}\nv_or_b32 v{S0+4}, v{S0+4}, v{S0+7}\ns_nop 0\nv_readfirstlane_b32 s3, v{S0+4}\ns_nop 0")
    if opt.get("force_fallback"): A.e("s_mov_b32 s3, 1")
    A.e(f"s_andn2_b32 s3, s3, s{sPass}\ns_cbranch_scc1 L2_fallback")
    gen_oproj(A).emit(A)
    A.e("s_nop 7")
    for n in range(2):
        cv, sw, st = oepi(17, n)
        A.items(cv + ["s_nop 1"] + sw + st[0] + [st[1]])
    A.label("L2_end")
    A.e("s_endpgm")
    A.label("L2_fallback")
    A.wait_all(); A.e("s_barrier")
    init_kv_addr()
    for j in range(4): A.e(f"v_mov_b32 v{P0+j}, 0xff800000")
    A.e(f"s_mov_b32 s{sPass}, 1\ns_mov_b32 s{sT}, 0")
    A.label("L2_fb_loop")
    emit_dma(A, dma_kv_static(None, (0,), 2))
    A.wait_all(); A.e("s_barrier")
    A.items(kreads(0, "fk")); A.wait_all(); A.e("s_barrier")
    for j in range(4):
        for kt in range(4):
            for t in range(4):
                d = S0 + 4 * kt
                A.e(f"{MF} {v(d,4)}, {a(KF(kt,t),4)}, {v(Q(j,t),4)}, {'0' if t == 0 else v(d,4)}")
        A.e("s_nop 7")
        for i in range(8): A.e(f"v_max3_f32 v{P0+j}, v{P0+j}, v{S0+2*i}, v{S0+2*i+1}")
    A.e(f"s_add_u32 s{sT}, s{sT}, 16384\ns_cmp_lt_u32 s{sT}, {32*16384}\ns_cbranch_scc1 L2_fb_loop")
    xmax_to_negm(A, [P0 + j for j in range(4)], 0.0)
    for i in range(3): emit_dma(A, dma_kv_static(i))
    A.wait_all(); A.e("s_barrier")
    A.items(kreads(0, "fk") + vreads(0, 0, "fv")); A.wait_all()
    A.e("s_branch L2_entry")
    return A, dict(name="attn_kernel", grid=256, block=256, lds=LDS_BYTES, vgpr=512, acc=256)
```

```python
from asmlib import *
from layout import *

def xsum_G(A, x, t):
    A.e(f"v_mov_b32 v{t}, v{x}\ns_nop 1\nv_permlane16_swap_b32 v{t}, v{x}\nv_add_f32 v{x}, v{x}, v{t}")
    A.e(f"v_mov_b32 v{t}, v{x}\ns_nop 1\nv_permlane32_swap_b32 v{t}, v{x}\nv_add_f32 v{x}, v{x}, v{t}")

def gen_k1():
    A = Asm()
    A.e("s_cmp_ge_u32 s2, 236\ns_cbranch_scc1 L1_end")
    A.e("s_load_dwordx2 s[4:5], s[0:1], 0\ns_load_dwordx4 s[8:11], s[0:1], 80\ns_load_dwordx2 s[6:7], s[0:1], 112")
    A.e("s_waitcnt lgkmcnt(0)")
    A.srd(12, 4, 2359296); A.srd(16, 8, 1152); A.srd(20, 10, 576 * 6912); A.srd(24, 6, WS_XN + 2359296)
    A.e("s_cmp_ge_u32 s2, 108\ns_cbranch_scc1 L1_ln")
    A.e("v_and_b32 v1, 3, v0\nv_lshrrev_b32 v2, 2, v0\nv_mul_u32_u24 v3, 6912, v2\nv_lshl_add_u32 v3, v1, 4, v3\nv_lshlrev_b32 v4, 1, v2")
    A.e("s_lshl_b32 s3, s2, 6")
    for i in range(6): A.vmem(f"buffer_load_ushort v{8+i}, v4, s[16:19], 0 offen offset:{192*i}", "c")
    for i in range(6):
        A.vmem(f"buffer_load_dwordx4 v[{16+4*i}:{19+4*i}], v3, s[20:23], s3 offen", ("w", i))
        if i < 5: A.e(f"s_add_u32 s3, s3, {96*6912}")
    A.e(f"s_mul_i32 s28, s2, 3641\ns_lshr_b32 s28, s28, 16")
    A.e("s_mul_i32 s29, s28, 18\ns_sub_u32 s29, s2, s29")
    A.e(f"s_mov_b32 s30, 1.0\ns_mov_b32 s31, 0\ns_cmp_lt_u32 s28, 2\ns_cselect_b32 s30, {hex(f2u(C0))}, s30")
    A.e(f"s_cmp_eq_u32 s28, 1\ns_cselect_b32 s31, {hex(f2u(C0))}, s31\ns_cmp_eq_u32 s28, 4\ns_cselect_b32 s31, 1.0, s31")
    A.wait(vm="c")
    for i in range(6): A.e(f"v_lshlrev_b32 v{8+i}, 16, v{8+i}")
    for i in range(6): A.e(f"v_mul_f32 v{40+i}, {hex(f2u(-LOG2E))}, v{8+i}")
    for i in range(6): A.e(f"v_exp_f32 v{40+i}, v{40+i}")
    for i in range(6): A.e(f"v_add_f32 v{40+i}, 1.0, v{40+i}")
    for i in range(6): A.e(f"v_rcp_f32 v{40+i}, v{40+i}")
    for i in range(6): A.e(f"v_mul_f32 v{8+i}, v{8+i}, v{40+i}")
    for i in range(6):
        A.wait(vm=("w", i))
        for q in range(4):
            A.e(f"v_lshlrev_b32 v40, 16, v{16+4*i+q}\nv_and_b32 v41, 0xffff0000, v{16+4*i+q}")
            op = "v_mul_f32" if i == 0 else "v_fmac_f32"
            A.e(f"{op} v{48+2*q}, v40, v{8+i}\n{op} v{49+2*q}, v41, v{8+i}")
    for sh in (4, 8):
        A.e("s_nop 1")
        for q in range(8): A.e(f"v_add_f32_dpp v{48+q}, v{48+q}, v{48+q} row_ror:{sh} row_mask:0xf bank_mask:0xf")
    A.e("v_lshrrev_b32 v5, 4, v0\nv_lshlrev_b32 v5, 7, v5\nv_lshl_add_u32 v5, v1, 5, v5\nv_and_b32 v6, 15, v0")
    A.e("v_cmp_gt_u32 vcc, 4, v6\ns_nop 0\ns_and_saveexec_b64 s[32:33], vcc")
    A.e("ds_write_b128 v5, v[48:51]\nds_write_b128 v5, v[52:55] offset:16\ns_mov_b64 exec, s[32:33]")
    A.e("s_waitcnt lgkmcnt(0)\ns_barrier")
    A.e("v_readfirstlane_b32 s34, v0\ns_nop 0\ns_cmp_ge_u32 s34, 64\ns_cbranch_scc1 L1_end")
    A.e("v_and_b32 v6, 31, v0\nv_lshrrev_b32 v7, 5, v0\nv_mul_u32_u24 v7, 1536, v7\nv_lshl_add_u32 v7, v6, 2, v7")
    for i in range(12): A.e(f"ds_read_b32 v{16+i}, v7 offset:{128*i}")
    A.e("s_lshl_b32 s29, s29, 5\nv_add_u32 v6, s29, v6")
    A.e("v_lshrrev_b32 v8, 3, v6\nv_lshlrev_b32 v8, 6, v8\nv_and_b32 v9, 7, v6\nv_lshl_add_u32 v8, v9, 2, v8\nv_lshlrev_b32 v9, 2, v6")
    A.e(f"s_mul_i32 s35, s28, 2304\ns_add_u32 s35, s35, {WS_MOD - 2*2304}\ns_cmp_eq_u32 s28, 0\ns_cselect_b32 s35, 32, s35\ns_cmp_eq_u32 s28, 1\ns_cselect_b32 s35, 0, s35")
    A.e("s_cmp_lt_u32 s28, 2\ns_cselect_b64 vcc, -1, 0\nv_cndmask_b32 v8, v9, v8, vcc")
    A.e("s_waitcnt lgkmcnt(0)")
    for i in range(6): A.e(f"v_add_f32 v{16+i}, v{16+i}, v{22+i}")
    for i in range(3): A.e(f"v_add_f32 v{16+i}, v{16+i}, v{19+i}")
    A.e("v_add_f32 v16, v16, v17\nv_add_f32 v16, v16, v18")
    A.e("v_mov_b32 v17, v16\ns_nop 1\nv_permlane32_swap_b32 v17, v16\nv_add_f32 v16, v16, v17")
    A.e("v_mov_b32 v17, s31\nv_fma_f32 v16, v16, s30, v17")
    A.e("s_mov_b64 exec, 0xffffffff\nbuffer_store_dword v16, v8, s[24:27], s35 offen\ns_endpgm")
    A.label("L1_ln")
    A.vm = []
    A.e("s_sub_u32 s3, s2, 108\nv_lshrrev_b32 v1, 6, v0\nv_and_b32 v2, 15, v0\nv_bfe_u32 v3, v0, 4, 2")
    A.e("v_mul_u32_u24 v4, 1152, v2\nv_lshl_add_u32 v4, v3, 4, v4\nv_mul_u32_u24 v5, 192, v1\nv_add_u32 v4, v4, v5\ns_mul_i32 s28, s3, 18432")
    for i in range(3): A.vmem(f"buffer_load_dwordx4 v[{8+4*i}:{11+4*i}], v4, s[12:15], s28 offen offset:{64*i}", ("x", i))
    A.e("v_lshlrev_b32 v6, 5, v2\nv_lshl_add_u32 v7, v1, 2, v6")
    A.e(f"v_and_b32 v5, 63, v0\nv_lshlrev_b32 v5, 4, v5\nv_mul_u32_u24 v1, 3072, v1\nv_add_u32 v5, v5, v1\ns_add_u32 s28, s28, {WS_XN}")
    for i in range(3):
        A.wait(vm=("x", i))
        for q in range(4):
            A.e(f"v_lshlrev_b32 v{24+8*i+2*q}, 16, v{8+4*i+q}\nv_and_b32 v{25+8*i+2*q}, 0xffff0000, v{8+4*i+q}")
    def reduce(x, off):
        xsum_G(A, x, 21)
        A.e(f"ds_write_b32 v7, v{x} offset:{off}\ns_waitcnt lgkmcnt(0)\ns_barrier")
        A.e(f"ds_read_b128 v[8:11], v6 offset:{off}\nds_read_b64 v[12:13], v6 offset:{off+16}\ns_waitcnt lgkmcnt(0)")
        A.e(f"v_add_f32 v8, v8, v9\nv_add_f32 v10, v10, v11\nv_add_f32 v12, v12, v13\nv_add_f32 v8, v8, v10\nv_add_f32 v{x}, v8, v12")
    A.e("v_add_f32 v20, v24, v25\nv_add_f32 v22, v26, v27")
    for i in range(4, 24, 2): A.e(f"v_add_f32 v20, v20, v{24+i}\nv_add_f32 v22, v22, v{25+i}")
    A.e("v_add_f32 v20, v20, v22")
    reduce(20, 0)
    A.e(f"v_mul_f32 v20, {hex(f2u(1/576))}, v20")
    for i in range(24): A.e(f"v_sub_f32 v{24+i}, v{24+i}, v20")
    A.e("v_mul_f32 v20, v24, v24\nv_mul_f32 v22, v25, v25")
    for i in range(2, 24, 2): A.e(f"v_fmac_f32 v20, v{24+i}, v{24+i}\nv_fmac_f32 v22, v{25+i}, v{25+i}")
    A.e("v_add_f32 v20, v20, v22")
    reduce(20, 512)
    A.e(f"v_mov_b32 v21, {hex(f2u(1e-5))}\nv_fmac_f32 v21, {hex(f2u(1/576))}, v20\nv_rsq_f32 v21, v21\ns_nop 0")
    for i in range(24): A.e(f"v_mul_f32 v{24+i}, v{24+i}, v21")
    for i in range(3):
        for q in range(4): A.e(f"v_cvt_pk_f16_f32 v{8+4*i+q}, v{24+8*i+2*q}, v{25+8*i+2*q}")
        A.e(f"buffer_store_dwordx4 v[{8+4*i}:{11+4*i}], v5, s[24:27], s28 offen offset:{1024*i}")
    A.label("L1_end")
    A.e("s_endpgm")
    return A, dict(name="front_kernel", grid=236, block=384, lds=3072, vgpr=64, acc=64)
```

```python
from asmlib import *
from layout import *
MF = "v_mfma_f32_16x16x32_bf16"

def gen_k3():
    A = Asm()
    A.e("s_cmp_ge_u32 s2, 256\ns_cbranch_scc1 L3_end")
    A.e("s_load_dwordx2 s[4:5], s[0:1], 0\ns_load_dwordx2 s[6:7], s[0:1], 48\ns_load_dwordx2 s[8:9], s[0:1], 96\ns_load_dwordx2 s[10:11], s[0:1], 112")
    A.e(f"v_lshlrev_b32 v1, 4, v0\ns_mul_i32 s3, s2, 147456\ns_add_u32 s3, s3, {WS_PART}")
    A.e("v_lshrrev_b32 v2, 3, v0\nv_and_b32 v3, 7, v0\nv_mul_u32_u24 v4, 1152, v3\nv_lshl_add_u32 v4, v2, 4, v4")
    A.e("v_lshlrev_b32 v5, 5, v2\nv_lshlrev_b32 v6, 4, v2\ns_mul_i32 s32, s2, 9216")
    A.e("s_waitcnt lgkmcnt(0)")
    A.srd(12, 10, 147456, "s3"); A.srd(16, 4, 2359296); A.srd(20, 6, 1152); A.srd(24, 8, 2359296); A.srd(28, 10, WS_H2 + 2359296)
    A.e("s_mov_b32 s3, 0")
    for g in range(16):
        A.vmem(f"buffer_load_dwordx4 {v(64+4*g,4)}, v1, s[12:15], s3 offen", ("p", g))
        if g < 15: A.e("s_add_u32 s3, s3, 9216")
    A.vmem(f"buffer_load_dwordx4 v[8:11], v4, s[16:19], s32 offen", "x")
    for m in range(4):
        A.e(f"s_mov_b32 s3, {WS_MOD + 2304*m}")
        for h in range(2): A.vmem(f"buffer_load_dwordx4 {v(24+8*m+4*h,4)}, v5, s[28:31], s3 offen offset:{16*h}", ("m", m))
    A.vmem(f"buffer_load_dwordx4 v[12:15], v6, s[20:23], 0 offen", "wr")
    GA, SB, CB, GB = 24, 32, 40, 48
    A.e("v_lshrrev_b32 v7, 6, v0\nv_lshlrev_b32 v3, 6, v3\nv_lshl_add_u32 v7, v7, 2, v3")
    for g in range(16):
        A.wait(vm=("p", g))
        for q in range(4):
            x = 64 + 4 * g + q
            if g == 0: A.e(f"v_lshlrev_b32 v{16+2*q}, 16, v{x}\nv_and_b32 v{17+2*q}, 0xffff0000, v{x}")
            else: A.e(f"v_lshlrev_b32 v56, 16, v{x}\nv_and_b32 v57, 0xffff0000, v{x}\nv_add_f32 v{16+2*q}, v{16+2*q}, v56\nv_add_f32 v{17+2*q}, v{17+2*q}, v57")
    A.wait(vm=("m", 0))
    for q in range(4):
        A.e(f"v_lshlrev_b32 v56, 16, v{8+q}\nv_and_b32 v57, 0xffff0000, v{8+q}")
        A.e(f"v_fma_f32 v{16+2*q}, v{16+2*q}, v{GA+2*q}, v56\nv_fma_f32 v{17+2*q}, v{17+2*q}, v{GA+2*q+1}, v57")
    def reduce(x, off):
        A.e(f"s_nop 1\nv_add_f32_dpp v{x}, v{x}, v{x} row_ror:8 row_mask:0xf bank_mask:0xf")
        for op in ("v_permlane16_swap_b32", "v_permlane32_swap_b32"):
            A.e(f"v_mov_b32 v57, v{x}\ns_nop 1\n{op} v57, v{x}\nv_add_f32 v{x}, v{x}, v57")
        A.e(f"ds_write_b32 v7, v{x} offset:{off}\ns_waitcnt lgkmcnt(0)\ns_barrier")
        A.e(f"ds_read_b128 v[64:67], v3 offset:{off}\nds_read_b128 v[68:71], v3 offset:{off+16}\nds_read_b32 v{x}, v3 offset:{off+32}\ns_waitcnt lgkmcnt(0)")
        for i in range(4): A.e(f"v_add_f32 v{64+i}, v{64+i}, v{68+i}")
        A.e(f"v_add_f32 v64, v64, v65\nv_add_f32 v66, v66, v67\nv_add_f32 v{x}, v{x}, v64\nv_add_f32 v{x}, v{x}, v66")
    A.e("v_add_f32 v56, v16, v17\nv_add_f32 v58, v18, v19\nv_add_f32 v59, v20, v21\nv_add_f32 v60, v22, v23\nv_add_f32 v56, v56, v58\nv_add_f32 v59, v59, v60\nv_add_f32 v56, v56, v59")
    reduce(56, 0)
    A.e(f"v_mul_f32 v56, {hex(f2u(1/576))}, v56")
    for i in range(8): A.e(f"v_sub_f32 v{72+i}, v{16+i}, v56")
    A.e("v_mul_f32 v56, v72, v72\nv_mul_f32 v58, v73, v73")
    for i in range(2, 8, 2): A.e(f"v_fmac_f32 v56, v{72+i}, v{72+i}\nv_fmac_f32 v58, v{73+i}, v{73+i}")
    A.e("v_add_f32 v56, v56, v58")
    reduce(56, 512)
    A.e(f"v_mov_b32 v57, {hex(f2u(1e-5))}\nv_fmac_f32 v57, {hex(f2u(1/576))}, v56\nv_rsq_f32 v57, v57")
    A.wait(vm="wr")
    for i in range(8): A.e(f"v_mul_f32 v{72+i}, v{72+i}, v57")
    for i in range(8): A.e(f"v_fma_f32 v{72+i}, v{72+i}, v{CB+i}, v{SB+i}")
    for i in range(8): A.e(f"v_fmac_f32 v{16+i}, v{72+i}, v{GB+i}")
    for q in range(4): A.e(f"v_cvt_pk_bf16_f32 v{8+q}, v{16+2*q}, v{17+2*q}")
    for q in range(4): A.e(f"v_cvt_pk_bf16_f32 v{80+q}, v{72+2*q}, v{73+2*q}")
    A.e(f"buffer_store_dwordx4 v[8:11], v4, s[24:27], s32 offen\ns_add_u32 s33, s32, {WS_H2}\nbuffer_store_dwordx4 v[80:83], v4, s[28:31], s33 offen")
    for q in range(4):
        A.e(f"v_lshlrev_b32 v58, 16, v{12+q}\nv_and_b32 v59, 0xffff0000, v{12+q}")
        op = "v_mul_f32" if q == 0 else "v_fmac_f32"
        A.e(f"{op} v56, v58, v{72+2*q}\n{op} v60, v59, v{73+2*q}")
    A.e("v_add_f32 v56, v56, v60")
    reduce(56, 1024)
    A.e("s_lshl_b32 s3, s2, 3\nv_add_u32 v58, s3, v0\nv_sub_u32 v59, 2047, v58\nv_lshlrev_b32 v58, 2, v58")
    A.e("v_ashrrev_i32 v60, 31, v56\nv_or_b32 v60, 0x80000000, v60\nv_xor_b32 v60, v60, v56\nv_and_b32 v60, 0xfffff800, v60\nv_or_b32 v60, v60, v59")
    A.e("v_cmp_gt_u32 vcc, 8, v0\ns_nop 0\ns_and_saveexec_b64 s[34:35], vcc\ns_cbranch_execz L3_end")
    A.e(f"s_mov_b32 s3, {WS_R}\nbuffer_store_dword v56, v58, s[28:31], s3 offen\ns_mov_b32 s3, {WS_KEY}\nbuffer_store_dword v60, v58, s[28:31], s3 offen")
    A.label("L3_end"); A.e("s_endpgm")
    return A, dict(name="mid_kernel", grid=256, block=576, lds=2048, vgpr=128, acc=128)

def top2_wave(A, m1, m2, t1, t2):
    def merge():
        A.e(f"v_max_u32 v{m2}, v{m2}, v{t2}\nv_med3_u32 v{m2}, v{m1}, v{t1}, v{m2}\nv_max_u32 v{m1}, v{m1}, v{t1}")
    for sh in (1, 2, 4, 8):
        A.e(f"s_nop 1\nv_mov_b32_dpp v{t1}, v{m1} row_ror:{sh} row_mask:0xf bank_mask:0xf\nv_mov_b32_dpp v{t2}, v{m2} row_ror:{sh} row_mask:0xf bank_mask:0xf")
        merge()
    for op in ("v_permlane16_swap_b32", "v_permlane32_swap_b32"):
        A.e(f"v_mov_b32 v{t1}, v{m1}\nv_mov_b32 v{t2}, v{m2}\ns_nop 0\n{op} v{t1}, v{m1}\n{op} v{t2}, v{m2}")
        merge()

def gen_k4():
    A = Asm()
    LG, LU, LD, LX = 0, 36864, 73728, 110592
    A.e("s_cmp_ge_u32 s2, 144\ns_cbranch_scc1 L4_end")
    A.e("s_load_dwordx4 s[4:7], s[0:1], 56\ns_load_dwordx2 s[8:9], s[0:1], 72\ns_load_dwordx2 s[10:11], s[0:1], 112")
    A.e("v_lshrrev_b32 v12, 6, v0\nv_and_b32 v0, 63, v0\nv_readfirstlane_b32 s33, v12")
    A.e("v_lshlrev_b32 v1, 4, v0\nv_lshrrev_b32 v2, 2, v0\nv_mul_u32_u24 v2, 9216, v2\nv_and_b32 v3, 3, v0\nv_lshl_add_u32 v2, v3, 4, v2")
    A.e("s_waitcnt lgkmcnt(0)")
    A.srd(12, 4, 576 * 9216); A.srd(16, 6, 576 * 9216); A.srd(20, 8, 4608 * 1152); A.srd(24, 10, WS_H2 + 2359296)
    A.e(f"s_mov_b32 s3, {WS_KEY}")
    for i in range(8):
        A.vmem(f"buffer_load_dwordx4 {v(16+4*i,4)}, v1, s[24:27], s3 offen offset:{1024*(i%4)}", ("k", i))
        if i == 3: A.e("s_add_u32 s3, s3, 4096")
    A.e(f"s_mul_i32 s34, s33, 9216\ns_mul_i32 s35, s33, {9*16*9216}\ns_lshl_b32 s3, s2, 6\ns_add_u32 s35, s35, s3\ns_mul_i32 s36, s2, 36864\ns_add_u32 s36, s36, s34")
    for i in range(9):
        A.e(f"s_add_u32 m0, s34, {LG + 1024*i}\ns_nop 0"); A.vmem("buffer_load_dwordx4 v2, s[12:15], s35 offen lds", "gu")
        A.e(f"s_add_u32 m0, s34, {LU + 1024*i}\ns_nop 0"); A.vmem("buffer_load_dwordx4 v2, s[16:19], s35 offen lds", "gu")
        A.e(f"s_add_u32 s35, s35, {16*9216}")
    for i in range(9):
        A.e(f"s_add_u32 m0, s34, {LD + 1024*i}\ns_nop 0"); A.vmem("buffer_load_dwordx4 v1, s[20:23], s36 offen lds", "dn")
        A.e("s_add_u32 s36, s36, 1024")
    A.e("v_mov_b32 v4, 0\nv_mov_b32 v5, 0")
    for i in range(8):
        A.wait(vm=("k", i))
        for q in range(4): A.e(f"v_med3_u32 v5, v4, v5, v{16+4*i+q}\nv_max_u32 v4, v4, v{16+4*i+q}")
    top2_wave(A, 4, 5, 6, 7)
    A.e("v_and_b32 v6, 1, v0\nv_cmp_eq_u32 vcc, 0, v6\ns_nop 1\nv_cndmask_b32 v4, v5, v4, vcc\nv_and_b32 v4, 0x7ff, v4\nv_sub_u32 v4, 2047, v4")
    A.e(f"v_lshrrev_b32 v7, 4, v0\nv_mul_u32_u24 v5, 1152, v4\nv_lshl_add_u32 v5, v7, 4, v5\ns_mov_b32 s3, {WS_H2}")
    for kk in range(18): A.vmem(f"buffer_load_dwordx4 {v(16+4*kk,4)}, v5, s[24:27], s3 offen offset:{64*kk}", ("h", kk))
    A.e(f"s_or_b32 s37, s2, s33\ns_cmp_eq_u32 s37, 0\ns_cselect_b32 s37, 2, 0\nv_cmp_gt_u32 vcc, s37, v0\nv_lshlrev_b32 v8, 2, v0\nv_add_u32 v8, {WS_IDX}, v8\nv_cndmask_b32 v8, -1, v8, vcc")
    A.vmem("buffer_store_dword v4, v8, s[24:27], 0 offen", "i")
    A.e("v_bfe_u32 v8, v0, 2, 2\nv_lshl_add_u32 v8, v7, 3, v8\nv_lshlrev_b32 v9, 6, v8\nv_lshl_add_u32 v9, v3, 3, v9")
    A.e(f"s_lshr_b32 s37, s33, 1\ns_mul_i32 s37, s37, {LU}\ns_and_b32 s38, s33, 1\ns_lshl_b32 s38, s38, 5\ns_add_u32 s37, s37, s38\nv_add_u32 v9, s37, v9")
    A.e(f"v_mul_u32_u24 v10, 1152, v8\nv_lshl_add_u32 v10, v3, 3, v10\ns_mul_i32 s37, s33, 288\ns_add_u32 s37, s37, {LD}\nv_add_u32 v10, s37, v10")
    A.wait(vm="dn"); A.e("s_barrier")
    for kk in range(18):
        for b in range(2): A.lds(f"ds_read_b64_tr_b16 {a(4*kk+2*b,2)}, v9 offset:{2048*kk + 256*b}", ("a", kk))
    for nt in range(9):
        for b in range(2): A.lds(f"ds_read_b64_tr_b16 {a(72+4*nt+2*b,2)}, v10 offset:{32*nt + 4608*b}", "d")
    for kk in range(18):
        A.wait(vm=("h", kk), lg=("a", kk))
        A.e(f"{MF} v[88:91], {a(4*kk,4)}, {v(16+4*kk,4)}, {'0' if kk == 0 else 'v[88:91]'}")
    A.e(f"v_lshlrev_b32 v11, 7, v6\nv_lshl_add_u32 v13, v7, 5, v11\nv_add_u32 v13, {LX}, v13")
    A.e(f"v_lshl_add_u32 v11, v7, 4, v11\ns_lshr_b32 s37, s33, 1\ns_lshl_b32 s37, s37, 8\ns_lshl_b32 s38, s38, 1\ns_add_u32 s37, s37, s38\ns_add_u32 s37, s37, {LX}\nv_add_u32 v11, s37, v11")
    A.lds("ds_write_b128 v11, v[88:91]", "x"); A.wait(lg="x"); A.e("s_barrier")
    for i in range(4): A.lds(f"ds_read_b128 {v(16+4*i,4)}, v13 offset:{(i//2)*256 + (i%2)*16}", "y")
    A.wait(lg="y")
    for i in range(8): A.e(f"v_mul_f32 v{32+i}, {hex(f2u(-LOG2E))}, v{16+i}")
    for i in range(8): A.e(f"v_exp_f32 v{32+i}, v{32+i}")
    for i in range(8): A.e(f"v_add_f32 v{32+i}, 1.0, v{32+i}")
    for i in range(8): A.e(f"v_rcp_f32 v{32+i}, v{32+i}")
    for i in range(8): A.e(f"v_mul_f32 v{16+i}, v{16+i}, v{32+i}")
    for i in range(8): A.e(f"v_mul_f32 v{16+i}, v{16+i}, v{24+i}")
    for q in range(4): A.e(f"v_cvt_pk_bf16_f32 v{40+q}, v{16+2*q}, v{17+2*q}")
    A.e("v_mul_u32_u24 v8, 2304, v6\nv_lshl_add_u32 v8, v7, 4, v8\nv_and_b32 v9, 15, v0\nv_cmp_gt_u32 vcc, 2, v9")
    A.e(f"s_mul_i32 s3, s2, 4608\ns_mul_i32 s37, s33, 576\ns_add_u32 s3, s3, s37\ns_add_u32 s3, s3, {WS_YP}")
    for nt in range(9): A.e(f"{MF} {v(48+4*nt,4)}, {a(72+4*nt,4)}, v[40:43], 0")
    A.e("s_and_saveexec_b64 s[40:41], vcc")
    for nt in range(9):
        if nt == 1: A.e("s_nop 7")
        A.e(f"buffer_store_dwordx4 {v(48+4*nt,4)}, v8, s[24:27], s3 offen offset:{64*nt}")
    A.label("L4_end"); A.e("s_endpgm")
    return A, dict(name="ffn_kernel", grid=144, block=256, lds=LX + 512, vgpr=256, acc=128)

def gen_k5():
    A = Asm()
    A.e("s_cmp_ge_u32 s2, 36\ns_cbranch_scc1 L5_end")
    A.e("s_load_dwordx2 s[8:9], s[0:1], 96\ns_load_dwordx2 s[10:11], s[0:1], 112")
    A.e("v_and_b32 v1, 31, v0\nv_lshrrev_b32 v2, 5, v0\nv_mul_u32_u24 v3, 82944, v2\nv_lshl_add_u32 v3, v1, 2, v3")
    A.e(f"s_lshl_b32 s3, s2, 7\ns_add_u32 s3, s3, {WS_YP}\ns_cmp_ge_u32 s2, 18\ns_cselect_b32 s28, 1, 0\ns_mul_i32 s29, s28, 18\ns_sub_u32 s29, s2, s29")
    A.e("s_waitcnt lgkmcnt(0)")
    A.srd(12, 8, 2359296); A.srd(16, 10, WS_XN)
    A.e(f"s_lshl_b32 s28, s28, 2\ns_add_u32 s28, s28, {WS_IDX}\nv_mov_b32 v4, s28")
    A.vmem("buffer_load_dword v5, v4, s[16:19], 0 offen", "i")
    for i in range(18):
        A.vmem(f"buffer_load_dword v{16+i}, v3, s[16:19], s3 offen", "p")
        A.e("s_add_u32 s3, s3, 4608")
    A.e(f"s_lshl_b32 s29, s29, 5\nv_add_u32 v6, s29, v1\nv_lshlrev_b32 v7, 2, v6\ns_mov_b32 s30, {WS_MOD + 3*2304}")
    A.vmem("buffer_load_dword v8, v7, s[16:19], s30 offen", "gb")
    A.wait(vm="i")
    A.e(f"v_and_b32 v5, 0x7ff, v5\nv_lshlrev_b32 v9, 2, v5\nv_mul_u32_u24 v10, 1152, v5\nv_lshl_add_u32 v10, v6, 1, v10\ns_mov_b32 s30, {WS_R}")
    A.vmem("buffer_load_dword v11, v9, s[16:19], s30 offen", "r")
    A.vmem("buffer_load_ushort v12, v10, s[12:15], 0 offen", "o")
    A.wait(vm="p")
    for i in range(9): A.e(f"v_add_f32 v{16+i}, v{16+i}, v{25+i}")
    for i in range(4): A.e(f"v_add_f32 v{16+i}, v{16+i}, v{20+i}")
    A.e("v_add_f32 v16, v16, v17\nv_add_f32 v18, v18, v19\nv_add_f32 v16, v16, v24\nv_add_f32 v16, v16, v18")
    A.e("v_lshlrev_b32 v13, 5, v1\nv_lshl_add_u32 v14, v2, 2, v13\nds_write_b32 v14, v16\ns_waitcnt lgkmcnt(0)\ns_barrier")
    A.e("ds_read_b128 v[16:19], v13\nds_read_b128 v[20:23], v13 offset:16")
    A.wait(vm="o")
    A.e(f"v_mul_f32 v11, {hex(f2u(-LOG2E))}, v11\nv_exp_f32 v11, v11\nv_lshlrev_b32 v12, 16, v12\nv_add_f32 v11, 1.0, v11\nv_rcp_f32 v11, v11\ns_waitcnt lgkmcnt(0)")
    for i in range(4): A.e(f"v_add_f32 v{16+i}, v{16+i}, v{20+i}")
    A.e("v_add_f32 v16, v16, v17\nv_add_f32 v18, v18, v19\nv_add_f32 v16, v16, v18\nv_mul_f32 v16, v16, v11\nv_fmac_f32 v12, v16, v8\nv_cvt_pk_bf16_f32 v12, v12, v12")
    A.e("v_cmp_gt_u32 vcc, 32, v0\ns_nop 0\ns_and_saveexec_b64 s[34:35], vcc\ns_cbranch_execz L5_end")
    A.e("buffer_store_short v12, v10, s[12:15], 0 offen")
    A.label("L5_end"); A.e("s_endpgm")
    return A, dict(name="fin_kernel", grid=36, block=256, lds=1024, vgpr=64, acc=64)
```

```python
import math
LOG2E = 1.4426950408889634
C0 = LOG2E / math.sqrt(128.0)
WS_AS = 0
WS_MOD = 8192
WS_R = 32768
WS_KEY = 40960
WS_IDX = 49152
WS_YP = 65536
WS_XN = 1 << 20
WS_H2 = 4 << 20
WS_PART = 8 << 20
PART_BYTES = 2048 * 576 * 2 * 16
```

```python
import sys, os
sys.path.insert(0, os.path.dirname(os.path.abspath(__file__)))
from asmlib import *
import k_front, k_main

def build(opt):
    Asm.stamping = bool(opt.get('stamp'))
    ks = [k_front.gen_k1(opt), k_main.gen_k2(opt)]
    ref = open(os.path.join(os.path.dirname(os.path.abspath(__file__)), "..", "adaLN_cond__gqa_block_cached__moe_arch_mod__prompt.s.ref")).read().split("\n")
    out = [l for l in ref if l.startswith(";") and ("offset" in l or "Kernarg" in l)]
    for A, m in ks: out.append(f"; @launch kernel={m['name']} grid=({m['grid']},1,1) block=({m['block']},1,1) lds={m['lds']}")
    out.append('.amdgcn_target "amdgcn-amd-amdhsa--gfx950"\n.text')
    bad = 0
    for A, m in ks:
        bad += lint(A.L, m["name"])
        out.append(f".globl {m['name']}\n.p2align 8\n.type {m['name']},@function\n{m['name']}:")
        out.append(A.text())
    assert bad == 0
    out.append('.section .rodata,"a"')
    for A, m in ks:
        out.append(f""".p2align 6
.amdhsa_kernel {m['name']}
  .amdhsa_next_free_vgpr {m['vgpr']}
  .amdhsa_next_free_sgpr 102
  .amdhsa_accum_offset {m['acc']}
  .amdhsa_group_segment_fixed_size 0
  .amdhsa_kernarg_size 120
  .amdhsa_user_sgpr_count 2
  .amdhsa_user_sgpr_kernarg_segment_ptr 1
  .amdhsa_system_sgpr_workgroup_id_x 1
  .amdhsa_float_denorm_mode_32 3
.end_amdhsa_kernel""")
    return "\n".join(out) + "\n"

if __name__ == "__main__":
    opt = {}
    for kv in sys.argv[2:]:
        k, x = kv.split("="); opt[k] = eval(x)
    open(sys.argv[1], "w").write(build(opt))
```

```python
import re, struct

def f2u(x): return struct.unpack("<I", struct.pack("<f", x))[0]
def v(i, n=1): return f"v{i}" if n == 1 else f"v[{i}:{i+n-1}]"
def a(i, n=1): return f"a{i}" if n == 1 else f"a[{i}:{i+n-1}]"
def s(i, n=1): return f"s{i}" if n == 1 else f"s[{i}:{i+n-1}]"

class Asm:
    def __init__(self):
        self.L = []; self.vm = []; self.lg = []
    def e(self, txt):
        for l in txt.split("\n"):
            l = l.strip()
            if l: self.L.append(l)
    def label(self, n): self.L.append(n + ":")
    def vmem(self, txt, tag=None): self.e(txt); self.vm.append(tag)
    def lds(self, txt, tag=None): self.e(txt); self.lg.append(tag)
    def _need(self, q, tag):
        idx = -1
        for i, t in enumerate(q):
            if t == tag: idx = i
        return idx
    def wait(self, vm=None, lg=None):
        parts = []
        for q, tags, name, mx in ((self.vm, vm, "vmcnt", 63), (self.lg, lg, "lgkmcnt", 15)):
            if tags is None: continue
            if not isinstance(tags, list): tags = [tags]
            idx = max(self._need(q, t) for t in tags)
            if idx < 0: continue
            n = min(len(q) - 1 - idx, mx)
            parts.append(f"{name}({n})")
            del q[:len(q) - n]
        if parts: self.e("s_waitcnt " + " ".join(parts))
    def wait_all(self, vm=True, lg=True):
        parts = []
        if vm: parts.append("vmcnt(0)"); self.vm = []
        if lg: parts.append("lgkmcnt(0)"); self.lg = []
        self.e("s_waitcnt " + " ".join(parts))
    def item(self, it):
        if isinstance(it, str): self.e(it)
        elif callable(it): it()
        elif it[0] == "vm": self.vmem(it[1], it[2])
        elif it[0] == "lds": self.lds(it[1], it[2])
        elif it[0] == "wait": self.wait(it[1], it[2])
        else: raise ValueError(it)
    def items(self, its):
        for it in its: self.item(it)
    def srd(self, d, base, size, off=None):
        if off is None:
            self.e(f"s_mov_b32 s{d}, s{base}\ns_mov_b32 s{d+1}, s{base+1}")
        else:
            self.e(f"s_add_u32 s{d}, s{base}, {off}\ns_addc_u32 s{d+1}, s{base+1}, 0")
        self.e(f"s_mov_b32 s{d+2}, {size}\ns_mov_b32 s{d+3}, 0x20000")
    stamping = False
    def stamp(self):
        if not self.stamping: return
        n = getattr(self, "nst", 0); self.nst = n + 1; assert n < 14
        self.e(f"s_memtime s[92:93]\ns_memrealtime s[94:95]\ns_waitcnt lgkmcnt(0)\ns_mov_b32 s{64+2*n}, s92\ns_mov_b32 s{65+2*n}, s94"); self.lg = []
    def stamp_flush(self, kid, off):
        if not self.stamping: return
        self.e("s_mov_b64 exec, -1\ns_load_dwordx2 s[60:61], s[0:1], 112\ns_waitcnt lgkmcnt(0)")
        self.e(f"s_mov_b32 s62, 0x10000000\ns_mov_b32 s63, 0x20000\ns_lshl_b32 s59, s2, 7\ns_add_u32 s59, s59, {off + kid * 65536}\nv_mov_b32 v0, 0")
        for i in range(2 * self.nst): self.e(f"v_mov_b32 v1, s{64+i}\nbuffer_store_dword v1, v0, s[60:63], s59 offen offset:{4*i}")
    def text(self): return "\n".join(("" if l.endswith(":") or l.startswith(".") else "    ") + l for l in self.L) + "\n"

class Sched:
    def __init__(self):
        self.mf = []; self.sh = []; self.mem = []; self.va = []
    def mfma(self, txt):
        self.mf.append(txt); self.sh.append([]); self.mem.append([]); self.va.append([]); return len(self.mf) - 1
    def emit(self, A, lo=0, hi=None):
        for i in range(lo, len(self.mf) if hi is None else hi):
            if self.mf[i]: A.e(self.mf[i])
            A.items(self.sh[i]); A.items(self.mem[i]); A.items(self.va[i])

_REG = re.compile(r"\b([vas])(\d+)\b|\b([vas])\[(\d+):(\d+)\]|\b(vcc|exec|m0)\b")
def regs(tok):
    out = set()
    for m in _REG.finditer(tok):
        if m.group(1): out.add(m.group(1) + m.group(2))
        elif m.group(3): out |= {m.group(3) + str(i) for i in range(int(m.group(4)), int(m.group(5)) + 1)}
        else: out.add(m.group(6))
    return out
TRANS = ("v_exp_", "v_log_", "v_rcp_", "v_rsq_", "v_sqrt_", "v_sin_", "v_cos_")
class I:
    def __init__(self, line, n):
        self.line = line; self.n = n
        p = line.split(None, 1); self.op = op = p[0]
        ops = [x.strip() for x in (p[1].split(",") if len(p) > 1 else [])]
        self.ops = ops
        self.mfma = op.startswith(("v_mfma", "v_smfmac"))
        self.valu = op.startswith("v_") and not self.mfma
        self.vmem = op.startswith(("buffer_", "global_"))
        self.ds = op.startswith("ds_")
        self.salu = op.startswith("s_")
        self.ws = int(ops[0]) + 1 if op == "s_nop" else 1
        R = [regs(o) for o in ops]
        allr = set().union(*R) if R else set()
        self.W = set(); self.R = set(); self.C = set(); self.data = set()
        if self.mfma:
            self.W = R[0]; self.AB = R[1] | R[2]
            if op.startswith("v_smfmac"): self.C = R[0]; self.AB |= R[3]
            else: self.C = R[3]
            self.R = self.AB | self.C
            self.passes = 8 if "32x32" in op else 4
        elif self.valu:
            self.W = set(R[0]); self.R = set().union(*R[1:]) if len(R) > 1 else set()
            if "swap" in op: self.W = R[0] | R[1]; self.R = R[0] | R[1]
            if op.startswith(("v_fmac", "v_dot2c", "v_writelane")): self.R |= R[0]
            if "dpp" in op or "row_" in line or "quad_perm" in line: self.R |= R[0]
            if op.startswith(("v_add_co", "v_addc_co", "v_sub_co")): self.W |= R[1]
            if op.startswith("v_cmpx"): self.W.add("exec")
        elif self.vmem:
            lds = bool(re.search(r"\blds\b", line)) or "_lds_" in op
            if "load" in op and not lds: self.W = R[0]; self.R = set().union(*R[1:])
            elif "atomic" in op and "sc0" in line: self.W = R[0]; self.R = allr
            else: self.R = set(allr)
            if lds: self.R.add("m0")
            if "store" in op and ("x4" in op or "x3" in op): self.data = R[0] if op.startswith("buffer") else R[1]
        elif self.ds:
            if "read" in op or "permute" in op or "swizzle" in op or "_rtn" in op: self.W = R[0]; self.R = set().union(*R[1:])
            else: self.R = allr
        elif self.salu:
            if op.startswith(("s_cmp", "s_cbranch", "s_branch", "s_wait", "s_nop", "s_barrier", "s_endpgm", "s_sleep", "s_setprio", "s_bitcmp")): self.R = allr
            else:
                self.W = set(R[0]) if R else set(); self.R = set().union(*R[1:]) if len(R) > 1 else set()
                if "saveexec" in op: self.W.add("exec")

def need(p, c):
    n = 0
    def up(cond, k):
        nonlocal n
        if cond: n = max(n, k)
    isv = lambda S: {r for r in S if r[0] in "va" and r != "vcc"}
    iss = lambda S: {r for r in S if r[0] == "s" or r == "vcc"}
    if p.valu:
        wv, wsg = isv(p.W), iss(p.W)
        up(c.mfma and wv & c.R, 2)
        up(p.op.startswith(TRANS) and c.valu and wv & c.R, 1)
        up(p.op.startswith(TRANS) and (c.vmem or c.ds) and wv & c.R, 1)
        up(c.valu and "permlane" in c.op and wv & c.R, 2)
        up(c.valu and ("dpp" in c.op or "row_" in c.line or "quad_perm" in c.line) and wv & c.R, 2)
        up(c.op.startswith(("v_readfirstlane", "v_readlane")) and wv & c.R, 1)
        up(c.vmem and wsg & c.R, 5)
        up(c.valu and wsg & c.R, 2)
        up(c.op.startswith(("v_readlane", "v_writelane")) and wsg & c.R, 4)
        up(c.salu and wsg & c.R, 1)
        up("exec" in p.W and (c.mfma or "permlane" in c.op or c.op.startswith(("v_readfirstlane", "v_readlane"))), 4)
        up("exec" in p.W and ("dpp" in c.op or "row_" in c.line), 5)
        up(("sdwa" in p.op or ("op_sel:" in p.line and "mixhi" in p.op)) and c.valu and wv & c.R, 1)
        up(p.op.startswith("v_dot") and (c.valu or c.mfma or c.vmem or c.ds) and wv & (c.R | c.W) and not (c.op == p.op and not (wv & regs(",".join(c.ops[1:3])))), 3)
    if p.mfma:
        big = {4: 8, 8: 12}[p.passes]
        if c.mfma:
            up(p.W & c.AB, big)
            up(p.W & c.C and not (p.W == c.C and p.passes == c.passes), big - 2)
            up(p.W & c.W and not (p.W & c.C), big - 2)
        else:
            up(p.W & (c.R | c.W), big)
            up(c.valu and p.C & c.W, p.passes - 1)
    if p.salu: up("m0" in p.W and c.vmem and "m0" in c.R, 1)
    if p.data: up(p.data & c.W, 2)
    return n

def lint(lines, name=""):
    ins = [I(l, i) for i, l in enumerate(lines) if not (l.endswith(":") or l.startswith((".", ";")))]
    bad = 0
    for j, c in enumerate(ins):
        d = 0
        for i in range(j - 1, max(-1, j - 14), -1):
            p = ins[i]
            k = need(p, c)
            if k > d:
                print(f"HAZARD[{name}] need {k} have {d}: [{p.n}] {p.line}  ->  [{c.n}] {c.line}"); bad += 1
            d += p.ws
            if d >= 12: break
    return bad
```

```python
from asmlib import *
from layout import *

RING = 8192; SLOT = 33792; HALF = 16896; PIECE = 1056
FLAG = RING + 4 * SLOT
LDS_BYTES = FLAG + 64
BIAS = 32.0
vK, vV, vT, vT2, vKV, vWq, vWo, vX, vAS, vPt, vIdx = 1, 2, 3, 4, 5, 6, 7, 8, 9, 10, 11
vTmp = 12
S0 = 16; P0 = 32; NM = 48; Q0 = 64; O0 = 128
AS0 = 16; T0 = 32; X0 = 48
def O(j, dt): return O0 + (j * 8 + dt) * 4
def Q(j, t): return Q0 + (j * 4 + t) * 4
def X(c, n, kl): return X0 + ((c + 2) % 5) * 16 + (n * 2 + kl) * 4
aL = 0; aOne = 16; aK = 64; aV = 128
def KF(kt, t): return aK + (kt * 4 + t) * 4
def VF(buf, dt, u): return aV + buf * 64 + (dt * 2 + u) * 4
sK, sV, sWq, sWo, sXn, sAS, sPt = 16, 20, 24, 28, 32, 36, 40
sW4, sOff, sT, sBase, sDel, sCnt, sPass, sW, sG, sTb, sOff2 = 44, 45, 46, 47, 48, 49, 50, 51, 52, 53, 54
MF = "v_mfma_f32_16x16x32_bf16"

def trd(dst, slot, off):
    base = vT if slot < 2 else vT2
    return f"ds_read_b64_tr_b16 {a(dst,2)}, v{base} offset:{(slot % 2) * SLOT + off}"

def dma_wq(c):
    slot = (c + 1) % 4; out = []
    for kl in range(2):
        for r in range(4):
            out.append(([f"s_add_u32 m0, s{sW4}, {slot*SLOT + kl*HALF + r*PIECE}", f"s_mov_b32 s{sOff}, {(64*c + 32*kl + r) * 8192}"],
                        ("vm", f"buffer_load_dwordx4 v{vWq}, {s(sWq,4)}, s{sOff} offen lds", ("L", c))))
    return out
def dma_kv_static(i, halves=(0, 1), slot=None):
    slot = (i + 2) % 4 if slot is None else slot; out = []
    for h in halves:
        for j in range(4):
            pre = [f"s_add_u32 m0, s{sW4}, {slot*SLOT + h*HALF + 32*j}"]
            if i is not None and j == 0 and h == halves[0]: pre.append(f"s_mov_b32 s{sT}, {i*16384}")
            out.append((pre, ("vm", f"buffer_load_dwordx4 v{vKV}, {s(sV if h else sK,4)}, s{sT} offen offset:{1024*j} lds", ("L", 9 + (i or 0)))))
    return out
def dma_kv_dyn(i, odd):
    out = []
    for h in range(2):
        for j in range(4):
            pre = [f"s_add_u32 m0, s{sBase}, {odd*SLOT + h*HALF + 32*j}"]
            out.append((pre, ("vm", f"buffer_load_dwordx4 v{vKV}, {s(sV if h else sK,4)}, s{sT} offen offset:{1024*j} lds", ("L", 9 + i))))
    return out
def dma_wo(c):
    slot = (c + 2) % 4; out = []
    for hi in range(2):
        for r in range(4):
            pre = [f"s_add_u32 m0, s{sW4}, {slot*SLOT + hi*HALF - 96*r}"]
            if r == 0: pre.append(f"s_mov_b32 s{sOff}, {c*128 + hi*128*1152}")
            out.append((pre, ("vm", f"buffer_load_dwordx4 v{vWo}, {s(sWo,4)}, s{sOff} offen offset:{1152*r} lds", ("L", 41 + c))))
    return out
def dmaL(n):
    return dma_wq(n) if n < 9 else (dma_kv_static(n - 9) if n < 41 else dma_wo(n - 41))
def emit_dma(A, lst):
    for pre, ld in lst:
        A.items(pre)
        if len(pre) == 1: A.e("s_nop 0")
        A.item(ld)
def xload(c):
    return [([f"s_mov_b32 s{sOff2}, {n*18432 + (2*c+kl)*1024}"],
             ("vm", f"buffer_load_dwordx4 {v(X(c,n,kl),4)}, v{vX}, {s(sXn,4)}, s{sOff2} offen", ("X", c))) for n in range(2) for kl in range(2)]
def place_vm(Sc, g, item):
    pre, ld = item
    for k, p in enumerate(pre): Sc.sh[g - 1 - k].append(p)
    Sc.mem[g].append(ld)

def as_reads(c, q):
    kl, hf = q // 2, q % 2; d = AS0 + (q % 2) * 8; off = (2 * c + kl) * 256 + hf * 16
    return [("lds", f"ds_read_b128 {v(d,4)}, v{vAS} offset:{off}", ("AS", c, q)), ("lds", f"ds_read_b128 {v(d+4,4)}, v{vAS} offset:{off+32}", ("AS", c, q))]
def modulate(c, q):
    kl, hf = q // 2, q % 2; d = AS0 + (q % 2) * 8; out = []
    for n in range(2):
        x = X(c, n, kl) + 2 * hf; t = T0 + 4 * n
        for i in range(4):
            out.append(f"v_fma_mix_f32 v{t+i}, v{x+i//2}, v{d+i}, v{d+4+i} op_sel:[{i%2},0,0] op_sel_hi:[1,0,0]")
        out += [f"v_cvt_pk_bf16_f32 v{x}, v{t}, v{t+1}", f"v_cvt_pk_bf16_f32 v{x+1}, v{t+2}, v{t+3}"]
    return out

def kreads(off, tag): return [("lds", f"ds_read_b128 {a(KF(kt,t),4)}, v{vK} offset:{off + kt*256 + t*64}", (tag, kt)) for kt in range(4) for t in range(4)]
def vreads(buf, off, tag): return [("lds", f"ds_read_b64_tr_b16 {a(VF(buf,dt,u)+2*b,2)}, v{vV} offset:{off + (2*u+b)*256 + dt*32}", tag) for dt in range(8) for u in range(2) for b in range(2)]

QD = 3
def AF(grp, kl): return aV + 64 + (grp % 8) * 8 + kl * 4
def qreads(G):
    c, mt = divmod(G, 16); slot = (c + 1) % 4
    return [("lds", trd(AF(G, kl) + 2 * b, slot, kl * HALF + b * 512 + mt * 32), ("A", G)) for kl in range(2) for b in range(2)]

def gen_qproj(A):
    Sc = Sched()
    for c in range(9):
        for mt in range(16):
            G = c * 16 + mt
            for n in range(2):
                d = O(2 * (mt // 8) + n, mt % 8)
                for kl in range(2):
                    cc = "0" if c == 0 and kl == 0 else v(d, 4)
                    Sc.mfma(f"{MF} {v(d,4)}, {a(AF(G,kl),4)}, {v(X(c,n,kl),4)}, {cc}")
    N = len(Sc.mf); vmg = set()
    leftover = []
    for c in range(9):
        gb = 64 * (c + 1) - 4 * QD - 1
        Sc.sh[gb] += [("wait", ("L", c + 1), None), "s_barrier"]
        if c >= 1:
            for k, it in enumerate(dmaL(c + 3)):
                g = gb + 4 + 8 * k
                if g < N: place_vm(Sc, g, it); vmg.add(g)
                else: leftover.append(it)
    for c in range(4):
        for k, it in enumerate(xload(c + 5)):
            g = 64 * (c + 1) + 3 + 16 * k
            assert g not in vmg
            place_vm(Sc, g, it); vmg.add(g)
    for G in range(144):
        if G > 0: Sc.sh[4 * G - 1].append(("wait", None, ("A", G)))
        if G + QD < 144:
            rd = qreads(G + QD); gs = [g for g in range(4 * G, 4 * G + 4) if g not in vmg]
            if len(gs) == 3: gs = [gs[0], gs[1], gs[1], gs[2]]
            for g, r in zip(gs, rd): Sc.mem[g].append(r)
    for c in range(8):
        Sc.sh[64 * c].append(("wait", ("X", c + 1), None))
        for q in range(4):
            w0 = 64 * c + 16 * q
            nxt = as_reads(c + 1, q + 1) if q < 3 else (as_reads(c + 2, 0) if c < 7 else [])
            items = modulate(c + 1, q)
            Sc.sh[w0].append(("wait", None, ("AS", c + 1, q)))
            free = [g for g in range(w0, w0 + 16) if g not in vmg and len(Sc.mem[g]) < 2]
            for r in nxt:
                g = free.pop(0); Sc.mem[g].append(r)
            over = len(items) - len(free)
            odd = [g for g in range(w0 + 1, w0 + 16, 2) if g not in vmg]
            slots = sorted(free + odd[-over:] if over > 0 else free)
            for g, it in zip(slots, items): Sc.va[g].append(it)
    return Sc, leftover, vmg

def qconvert(j, t):
    o = O(j, 2 * t); q = Q(j, t)
    return [f"v_cvt_pk_bf16_f32 v{q+i}, v{o+2*i}, v{o+2*i+1}" for i in range(4)], [f"v_permlane32_swap_b32 v{q}, v{q+2}", f"v_permlane32_swap_b32 v{q+1}, v{q+3}"]

def xmax_to_negm(A, src, bias):
    t = vTmp
    for op in ("v_permlane16_swap_b32", "v_permlane32_swap_b32"):
        for j in range(4): A.e(f"v_mov_b32 v{t+j}, v{src[j]}")
        for j in range(4): A.e(f"{op} v{t+j}, v{src[j]}")
        for j in range(4): A.e(f"v_max_f32 v{src[j]}, v{src[j]}, v{t+j}")
    for j in range(4):
        for i in range(4): A.e(f"v_sub_f32 v{NM+4*j+i}, {hex(f2u(-bias))}, v{src[j]}")

def gen_stage(i, kind, dma, opt):
    par = i % 2; Sc = Sched(); first = kind == "first"; last = kind == "last"
    nun = 5 if last else 4
    for j in range(nun):
        for kt in range(4):
            for t in range(4):
                d = S0 + 4 * kt
                Sc.mfma(None if j == 4 else f"{MF} {v(d,4)}, {a(KF(kt,t),4)}, {v(Q(j,t),4)}, {v(NM+4*j,4) if t == 0 else v(d,4)}")
        jp = (j - 1) % 4; vb = par if j > 0 else 1 - par; p = P0 + 8 * (jp % 2)
        skip = first and j == 0
        for dt in range(8):
            for u in range(2):
                d = O(jp, dt); cc = "0" if first and u == 0 else v(d, 4)
                Sc.mfma(None if skip else f"{MF} {v(d,4)}, {a(VF(vb,dt,u),4)}, {v(p+4*u,4)}, {cc}")
        Sc.mfma(None if skip else f"v_smfmac_f32_16x16x64_bf16 {a(aL+4*jp,4)}, {a(aOne,4)}, {v(p,8)}, v{vIdx}")
        b = 33 * j
        for x in range(16):
            prev = x < 4
            if (prev and skip) or (j == 4 and not prev): continue
            e = (x - 4) % 16
            Sc.va[b + 2 * x].append(f"v_exp_f32 v{S0+e}, v{S0+e}")
        for k in range(8):
            prev = k < 3; pr = (k + 5) % 8
            if (prev and skip) or (j == 4 and not prev): continue
            pb = P0 + 8 * ((j - 1 if prev else j) % 2)
            Sc.va[b + 4 * k + 1].append(f"v_cvt_pk_bf16_f32 v{pb+pr}, v{S0+2*pr}, v{S0+2*pr+1}")
    if first:
        for g in range(16, 33):
            if g % 2 == 0: Sc.va[g].append("s_nop 0")
        Sc.sh[16].append("s_nop 3")
    if last:
        for g in range(33 * 4, 33 * 4 + 8, 2): Sc.va[g].append("s_nop 0")
        Sc.va[33 * 4 + 15].append("s_nop 1")
    for kt in range(1, 4): Sc.sh[4 * kt - 1].append(("wait", None, (("K", i), kt)))
    step = opt.get("dma_step", 4)
    cand = [33 * j + r for j in range(3) for r in range(3, 32, 4)]
    gs = cand[::step // 4] if not last else cand
    vmg = set()
    for g, it in zip(gs, dma): place_vm(Sc, g, it); vmg.add(g)
    assert len(vmg) == len(dma)
    if kind == "A":
        Sc.va[1].append(f"v_add_u32 v{vK}, s{sDel}, v{vK}"); Sc.va[5].append(f"v_add_u32 v{vV}, s{sDel}, v{vV}")
        Sc.sh[0].append(f"s_sub_u32 s{sBase}, s{sBase}, s{sDel}")
        Sc.sh[8].append(f"s_sub_u32 s{sDel}, 0, s{sDel}")
    if not last:
        Sc.sh[100].append(f"s_add_u32 s{sT}, s{sT}, 16384"); Sc.sh[101].append(f"s_min_u32 s{sT}, s{sT}, {31*16384}")
        off = 0 if kind == "A" else SLOT
        free = [33 * j + r for j in range(3) for r in list(range(1, 32, 2)) + [32] if 33 * j + r >= 17 and 33 * j + r not in vmg]
        vr = vreads(1 - par, off, ("V", i + 1)); assert len(free) >= 32
        for n, r in enumerate(vr):
            assert free[n] >= 16 + n // 2
            Sc.mem[free[n]].append(r)
        for n, r in enumerate(kreads(off, ("K", i + 1))): Sc.mem[99 + 2 * n + 1].append(r)
        Sc.sh[131] += [("wait", ("L", 9 + i + 2), (("K", i + 1), 0)), "s_barrier"]
    return Sc

OA = 16; OR = 48
def OB(n, u): return O(2 * (u // 4) + n, 2 * (u % 4))
def WF(grp, u): return aK + (grp % 2) * 32 + u * 4
def oreads(G):
    c, ntl = divmod(G, 4); slot = (c + 2) % 4
    return [("lds", trd(WF(G, u) + 2 * b, slot, (u // 4) * HALF + (2 * (u % 4) + b) * 128 + ntl * 32), ("W", G, u // 2)) for u in range(8) for b in range(2)]
def oacc(G, n): return OA + ((G % 4) * 2 + n) * 4
def oepi(pair, n):
    r = OR + 4 * n; x, y = oacc(2 * pair, n), oacc(2 * pair + 1, n); c, aa = divmod(pair, 2)
    cv = [f"v_cvt_pk_bf16_f32 v{r}, v{x}, v{x+1}", f"v_cvt_pk_bf16_f32 v{r+1}, v{x+2}, v{x+3}", f"v_cvt_pk_bf16_f32 v{r+2}, v{y}, v{y+1}", f"v_cvt_pk_bf16_f32 v{r+3}, v{y+2}, v{y+3}"]
    sw = [f"v_permlane32_swap_b32 v{r}, v{r+2}", f"v_permlane32_swap_b32 v{r+1}, v{r+3}"]
    st = ([f"s_mov_b32 s{sOff2}, {n*294912 + c*1024}"], ("vm", f"buffer_store_dwordx4 {v(r,4)}, v{vPt}, {s(sPt,4)}, s{sOff2} offen offset:{aa*512}{OPT.get('st_flags', '')}", "st"))
    return cv, sw, st

def gen_oproj(A):
    Sc = Sched()
    for G in range(36):
        for n in range(2):
            for u in range(8):
                d = oacc(G, n)
                Sc.mfma(f"{MF} {v(d,4)}, {a(WF(G,u),4)}, {v(OB(n,u),4)}, {'0' if u == 0 else v(d,4)}")
    N = len(Sc.mf); vmg = set()
    for k, it in enumerate(dma_wo(3)):
        g = 7 + 8 * k; place_vm(Sc, g, it); vmg.add(g)
    for c in range(8):
        gb = 64 * c + 47
        Sc.sh[gb] += [("wait", ("L", 41 + c + 1), None), "s_barrier"]
        if 1 <= c and c + 3 <= 8:
            for k, it in enumerate(dma_wo(c + 3)):
                g = gb + 8 + 8 * k; place_vm(Sc, g, it); vmg.add(g)
    swg = set()
    for p in range(17):
        for n in range(2):
            b = 16 * (2 * p + 2) + 8 * n
            cv, sw, st = oepi(p, n)
            for k, x in enumerate(cv): Sc.va[b + k].append(x)
            Sc.va[b + 5].append(sw[0]); Sc.va[b + 6].append(sw[1]); swg |= {b + 5, b + 6}
            Sc.sh[b + 4].append(st[0][0]); Sc.va[b + 7].append(st[1])
    for G in range(36):
        for h in range(4):
            g = 16 * G + 2 * h - 1
            if g >= 0: Sc.sh[g].append(("wait", None, ("W", G, h)))
        if G + 1 < 36:
            gs = [g for g in range(16 * G, 16 * G + 16) if g not in vmg and g not in swg]
            two = [g for g in gs if not Sc.va[g]]
            extra = 16 - len(gs)
            if extra > len(two): two = two + [g for g in range(16 * G + 7, 16 * G + 16, 8)] * 4
            gs = sorted(gs + two[:extra])
            for g, r in zip(gs, oreads(G + 1)): Sc.mem[g].append(r)
    return Sc

OPT = {}
def gen_k2(opt={}):
    OPT.clear(); OPT.update(opt)
    A = Asm()
    A.e("s_cmp_ge_u32 s2, 256\ns_cbranch_scc1 L2_end")
    A.stamp()
    A.e("s_load_dwordx8 s[4:11], s[0:1], 8\ns_load_dwordx2 s[12:13], s[0:1], 112")
    A.e(f"v_lshrrev_b32 v12, 6, v0\nv_and_b32 v0, 63, v0\nv_readfirstlane_b32 s{sW}, v12")
    hp = opt.get("heads_per_xcd", 4); lg = hp.bit_length() - 1; ng = 16 // hp
    A.e(f"s_and_b32 s3, s2, 7\ns_lshr_b32 s14, s2, 3")
    A.e(f"s_and_b32 s{sG}, s3, {ng-1}\ns_lshl_b32 s{sG}, s{sG}, {lg}\ns_and_b32 s15, s14, {hp-1}\ns_add_u32 s{sG}, s{sG}, s15")
    A.e(f"s_lshr_b32 s{sTb}, s3, {ng.bit_length()-1}\ns_mul_i32 s{sTb}, s{sTb}, {32//hp}\ns_lshr_b32 s15, s14, {lg}\ns_add_u32 s{sTb}, s{sTb}, s15")
    A.e(f"s_mul_i32 s{sW4}, s{sW}, {4*PIECE}\ns_add_u32 s{sW4}, s{sW4}, {RING}")
    A.e(f"v_lshlrev_b32 v{vX}, 4, v0\nv_lshl_add_u32 v{vKV}, v12, 12, v{vX}")
    A.e(f"v_lshrrev_b32 v13, 5, v0\nv_lshl_add_u32 v13, v12, 1, v13\nv_lshlrev_b32 v13, 15, v13\nv_and_b32 v14, 31, v0\nv_lshl_add_u32 v{vWq}, v14, 4, v13")
    A.e("s_waitcnt lgkmcnt(0)")
    A.e(f"s_lshl_b32 s3, s{sG}, 9"); A.srd(sWq, 8, 0, "s3"); A.e(f"s_sub_u32 s{sWq+2}, {576*8192}, s3")
    A.srd(sAS, 12, 8192)
    A.e(f"s_lshl_b32 s3, s{sTb}, 2\ns_add_u32 s3, s3, s{sW}\ns_mul_i32 s14, s3, 36864\ns_add_u32 s14, s14, {WS_XN}"); A.srd(sXn, 12, 36864, "s14")
    A.e(f"s_lshl_b32 m0, s{sW}, 10\ns_lshl_b32 s{sOff}, s{sW}, 10")
    A.vmem(f"buffer_load_dwordx4 v{vX}, {s(sAS,4)}, s{sOff} offen lds", "AS")
    A.e(f"s_add_u32 m0, m0, 4096\ns_add_u32 s{sOff}, s{sOff}, 4096")
    A.vmem(f"buffer_load_dwordx4 v{vX}, {s(sAS,4)}, s{sOff} offen lds", "AS")
    for c in range(5):
        for pre, ld in xload(c): A.items(pre + [ld])
        if c < 4: emit_dma(A, dmaL(c))
    A.e(f"s_mul_i32 s14, s3, {4*147456}\ns_mul_i32 s15, s{sG}, 9216\ns_add_u32 s14, s14, s15\ns_add_u32 s14, s14, {WS_PART}"); A.srd(sPt, 12, 0, "s14"); A.e(f"s_sub_u32 s{sPt+2}, {4*147456}, s15")
    A.e(f"s_lshl_b32 s3, s{sG}, 19"); A.srd(sK, 4, 524288, "s3"); A.srd(sV, 6, 524288, "s3")
    A.e(f"s_mul_i32 s3, s{sG}, 294912"); A.srd(sWo, 10, 294912, "s3")
    A.e(f"s_mov_b32 s{sPass}, 0")
    A.e(f"v_lshrrev_b32 v13, 4, v0\nv_lshlrev_b32 v{vAS}, 6, v13")
    A.e(f"v_lshrrev_b32 v14, 2, v0\nv_mul_u32_u24 v14, {PIECE}, v14\nv_add_u32 v14, {RING}, v14")
    A.e(f"v_and_b32 v15, 1, v0\nv_lshlrev_b32 v15, 4, v15\nv_add_u32 v{vT}, v14, v15\nv_and_b32 v15, 2, v0\nv_lshl_add_u32 v{vT}, v15, 2, v{vT}\nv_add_u32 v{vT2}, {2*SLOT}, v{vT}")
    A.e(f"v_lshrrev_b32 v14, 3, v0\nv_lshlrev_b32 v14, 2, v14\nv_add_u32 v14, v14, v12\nv_mul_u32_u24 v14, {4*1152}, v14\nv_and_b32 v15, 7, v0\nv_lshl_add_u32 v{vWo}, v15, 4, v14")
    A.e(f"v_lshlrev_b32 v{vPt}, 4, v15\nv_lshl_add_u32 v{vPt}, v13, 7, v{vPt}\nv_bfe_u32 v14, v0, 3, 1\nv_mul_u32_u24 v14, 147456, v14\nv_add_u32 v{vPt}, v{vPt}, v14")
    def init_kv_addr():
        A.e(f"v_lshrrev_b32 v14, 2, v0\nv_mul_u32_u24 v14, {PIECE}, v14\nv_and_b32 v15, 3, v0\nv_lshl_add_u32 v14, v15, 3, v14\nv_add_u32 v{vV}, {RING + 2*SLOT + HALF}, v14")
        A.e(f"v_and_b32 v14, 15, v0\nv_mul_u32_u24 v14, {PIECE}, v14\nv_lshrrev_b32 v15, 4, v0\nv_lshl_add_u32 v14, v15, 4, v14\nv_add_u32 v{vK}, {RING + 2*SLOT}, v14")
    init_kv_addr()
    A.e(f"v_and_b32 v14, 1, v0\nv_cmp_eq_u32 vcc, 0, v14\nv_mov_b32 v{vIdx}, 0xeeeeeeee\nv_mov_b32 v15, 0x44444444\nv_cndmask_b32 v{vIdx}, v{vIdx}, v15, vcc")
    A.e(f"v_and_b32 v14, 2, v0\nv_cmp_eq_u32 vcc, 0, v14\nv_mov_b32 v15, 0x3f803f80\ns_nop 0\nv_cndmask_b32 v15, 0, v15, vcc")
    for i in range(4): A.e(f"v_accvgpr_write_b32 a{aOne+i}, v15")
    A.stamp()
    A.wait(vm=("X", 0)); A.e("s_barrier"); A.stamp()
    A.items(as_reads(0, 0) + as_reads(0, 1))
    for q in range(4):
        A.wait(lg=("AS", 0, q)); A.items(modulate(0, q))
        if q < 3: A.items(as_reads(0, q + 2) if q < 2 else as_reads(1, 0))
    A.wait(vm=("L", 0)); A.e("s_barrier"); A.stamp()
    for G in range(QD): A.items(qreads(G))
    A.wait(lg=("A", 0))
    Sc, leftover, vmg = gen_qproj(A)
    N = len(Sc.mf)
    kv0 = kreads(0, ("K", 0)) + vreads(0, 0, ("V", 0))
    for g in range(N - 4 * QD, N):
        if g not in vmg: Sc.mem[g].append(kv0.pop(0))
    conv = []
    for t2 in range(8):
        for n in range(2):
            cv, sw = qconvert(2 * (t2 // 4) + n, t2 % 4)
            conv.append((512 + 8 * t2 + 7 + 5, cv, sw))
    pend = []
    for ready, cv, sw in conv: pend += [(ready, x) for x in cv]
    for g in range(512, N):
        if g not in vmg and len(Sc.mem[g]) < 2 and pend and pend[0][0] <= g: Sc.va[g].append(pend.pop(0)[1])
    Sc.emit(A, 0, 256); A.stamp(); Sc.emit(A, 256); A.stamp()
    emit_dma(A, leftover)
    A.items(kv0)
    A.items([x for _, x in pend]); A.e("s_nop 0")
    for _, cv, sw in conv: A.items(sw)
    A.wait(lg=(("K", 0), 0))
    for j in range(4):
        for t in range(4):
            d = S0 + 4 * j
            A.e(f"{MF} {v(d,4)}, {a(KF(0,t),4)}, {v(Q(j,t),4)}, {'0' if t == 0 else v(d,4)}")
    A.e("s_nop 1")
    for j in range(4):
        d = S0 + 4 * j
        A.e(f"v_max3_f32 v{d}, v{d}, v{d+1}, v{d+2}\nv_max_f32 v{d}, v{d}, v{d+3}")
    xmax_to_negm(A, [S0 + 4 * j for j in range(4)], BIAS)
    A.label("L2_entry")
    for i in range(16): A.e(f"v_accvgpr_write_b32 a{aL+i}, 0")
    for i in range(32): A.e(f"v_mov_b32 v{O(3,0)+i}, 0")
    A.e(f"s_mov_b32 s{sBase}, s{sW4}\ns_mov_b32 s{sDel}, {-2*SLOT}\ns_mov_b32 s{sCnt}, 15\ns_mov_b32 s{sT}, {3*16384}")
    A.wait(vm=("L", 10), lg=("V", 0)); A.e("s_barrier")
    A.stamp()
    gen_stage(0, "first", dma_kv_dyn(3, 1), opt).emit(A)
    def body(i):
        gen_stage(i, "A", dma_kv_dyn(i + 3, 0), opt).emit(A)
        Sb = gen_stage(i + 1, "B", dma_kv_dyn(i + 4, 1), opt)
        Sb.sh[128].append(f"s_sub_u32 s{sCnt}, s{sCnt}, 1"); Sb.sh[129].append(f"s_cmp_lg_u32 s{sCnt}, 0")
        Sb.emit(A)
    if opt.get("align_loop", 1): A.e(".p2align 5")
    A.label("L2_loop")
    n0 = len(A.L); body(1); n1 = len(A.L); body(3)
    assert A.L[n0:n1] == A.L[n1:], "loop body not in steady state"
    assert lint(A.L[n0:], "loop2x") == 0
    del A.L[n1:]
    def shift(t, d):
        if isinstance(t, tuple) and t[0] in ("L", "V"): return (t[0], t[1] + d)
        if isinstance(t, tuple) and isinstance(t[0], tuple): return ((t[0][0], t[0][1] + d), t[1])
        return t
    A.vm = [shift(t, 26) for t in A.vm]; A.lg = [shift(t, 26) for t in A.lg]
    A.vm = [("X", t[1]) if t[1] >= 41 else t for t in A.vm]
    A.e("s_cbranch_scc1 L2_loop")
    gen_stage(31, "last", dma_wo(0) + dma_wo(1) + dma_wo(2), opt).emit(A)
    A.stamp()
    A.e("s_nop 7")
    for j in range(4): A.e(f"v_accvgpr_read_b32 v{vTmp+j}, a{aL+4*j}\nv_accvgpr_read_b32 v{S0+j}, a{aL+4*j+1}")
    for j in range(4): A.e(f"v_add_f32 v{vTmp+j}, v{vTmp+j}, v{S0+j}")
    A.e(f"s_mov_b32 s3, {hex(f2u(2.0**60))}")
    for j in range(4): A.e(f"v_cmp_nlt_f32 {s(56+2*j,2)}, v{vTmp+j}, s3")
    A.e("s_or_b64 s[56:57], s[56:57], s[58:59]\ns_or_b64 s[60:61], s[60:61], s[62:63]\ns_or_b64 s[56:57], s[56:57], s[60:61]\ns_cselect_b32 s3, 1, 0")
    A.e(f"s_lshl_b32 s14, s{sW}, 2\ns_add_u32 s14, s14, {FLAG}\nv_mov_b32 v{S0}, s3\nv_mov_b32 v{S0+1}, s14\nv_mov_b32 v{S0+2}, {FLAG}")
    A.lds(f"ds_write_b32 v{S0+1}, v{S0}", "fw")
    for j in range(4): A.e(f"v_rcp_f32 v{vTmp+j}, v{vTmp+j}")
    A.wait(vm=("L", 41), lg="fw"); A.e("s_barrier")
    A.lds(f"ds_read_b128 {v(S0+4,4)}, v{S0+2}", "fr")
    A.items(oreads(0))
    for u in range(8):
        for n in range(2):
            o = OB(n, u); j = 2 * (u // 4) + n
            for i in range(8): A.e(f"v_mul_f32 v{o+i}, v{o+i}, v{vTmp+j}")
            for i in range(4): A.e(f"v_cvt_pk_bf16_f32 v{o+i}, v{o+2*i}, v{o+2*i+1}")
    A.wait(lg=("W", 0, 0))
    A.e(f"v_or3_b32 v{S0+4}, v{S0+4}, v{S0+5}, v{S0+6}\nv_or_b32 v{S0+4}, v{S0+4}, v{S0+7}\ns_nop 0\nv_readfirstlane_b32 s3, v{S0+4}\ns_nop 0")
    if opt.get("force_fallback"): A.e("s_mov_b32 s3, 1")
    A.e(f"s_andn2_b32 s3, s3, s{sPass}\ns_cbranch_scc1 L2_fallback")
    A.stamp()
    gen_oproj(A).emit(A)
    A.e("s_nop 7")
    for n in range(2):
        cv, sw, st = oepi(17, n)
        A.items(cv + ["s_nop 1"] + sw + st[0] + [st[1]])
    A.stamp()
    if A.stamping: A.e("s_waitcnt vmcnt(0)")
    A.stamp(); A.stamp_flush(1, WS_STAMP)
    A.label("L2_end")
    A.e("s_endpgm")
    A.label("L2_fallback")
    A.wait_all(); A.e("s_barrier")
    init_kv_addr()
    for j in range(4): A.e(f"v_mov_b32 v{P0+j}, 0xff800000")
    A.e(f"s_mov_b32 s{sPass}, 1\ns_mov_b32 s{sT}, 0")
    A.label("L2_fb_loop")
    emit_dma(A, dma_kv_static(None, (0,), 2))
    A.wait_all(); A.e("s_barrier")
    A.items(kreads(0, "fk")); A.wait_all(); A.e("s_barrier")
    for j in range(4):
        for kt in range(4):
            for t in range(4):
                d = S0 + 4 * kt
                A.e(f"{MF} {v(d,4)}, {a(KF(kt,t),4)}, {v(Q(j,t),4)}, {'0' if t == 0 else v(d,4)}")
        A.e("s_nop 7")
        for i in range(8): A.e(f"v_max3_f32 v{P0+j}, v{P0+j}, v{S0+2*i}, v{S0+2*i+1}")
    A.e(f"s_add_u32 s{sT}, s{sT}, 16384\ns_cmp_lt_u32 s{sT}, {32*16384}\ns_cbranch_scc1 L2_fb_loop")
    xmax_to_negm(A, [P0 + j for j in range(4)], 0.0)
    for i in range(3): emit_dma(A, dma_kv_static(i))
    A.wait_all(); A.e("s_barrier")
    A.items(kreads(0, "fk") + vreads(0, 0, "fv")); A.wait_all()
    A.e("s_branch L2_entry")
    return A, dict(name="attn_kernel", grid=256, block=256, lds=LDS_BYTES, vgpr=512, acc=256)
```

```python
from asmlib import *
from layout import *

def xsum_G(A, x, t):
    A.e(f"v_mov_b32 v{t}, v{x}\ns_nop 1\nv_permlane16_swap_b32 v{t}, v{x}\nv_add_f32 v{x}, v{x}, v{t}")
    A.e(f"v_mov_b32 v{t}, v{x}\ns_nop 1\nv_permlane32_swap_b32 v{t}, v{x}\nv_add_f32 v{x}, v{x}, v{t}")

def gen_k1():
    A = Asm()
    A.e("s_cmp_ge_u32 s2, 236\ns_cbranch_scc1 L1_end")
    A.stamp()
    A.e("s_load_dwordx2 s[4:5], s[0:1], 0\ns_load_dwordx4 s[8:11], s[0:1], 80\ns_load_dwordx2 s[6:7], s[0:1], 112")
    A.e("s_waitcnt lgkmcnt(0)")
    A.srd(12, 4, 2359296); A.srd(16, 8, 1152); A.srd(20, 10, 576 * 6912); A.srd(24, 6, WS_XN + 2359296)
    A.e("s_cmp_ge_u32 s2, 108\ns_cbranch_scc1 L1_ln")
    A.e("v_and_b32 v1, 3, v0\nv_lshrrev_b32 v2, 2, v0\nv_mul_u32_u24 v3, 6912, v2\nv_lshl_add_u32 v3, v1, 4, v3\nv_lshlrev_b32 v4, 1, v2")
    A.e("s_lshl_b32 s3, s2, 6")
    for i in range(6): A.vmem(f"buffer_load_ushort v{8+i}, v4, s[16:19], 0 offen offset:{192*i}", "c")
    for i in range(6):
        A.vmem(f"buffer_load_dwordx4 v[{16+4*i}:{19+4*i}], v3, s[20:23], s3 offen", ("w", i))
        if i < 5: A.e(f"s_add_u32 s3, s3, {96*6912}")
    A.e(f"s_mul_i32 s28, s2, 3641\ns_lshr_b32 s28, s28, 16")
    A.e("s_mul_i32 s29, s28, 18\ns_sub_u32 s29, s2, s29")
    A.e(f"s_mov_b32 s30, 1.0\ns_mov_b32 s31, 0\ns_cmp_lt_u32 s28, 2\ns_cselect_b32 s30, {hex(f2u(C0))}, s30")
    A.e(f"s_cmp_eq_u32 s28, 1\ns_cselect_b32 s31, {hex(f2u(C0))}, s31\ns_cmp_eq_u32 s28, 4\ns_cselect_b32 s31, 1.0, s31")
    A.wait(vm="c")
    for i in range(6): A.e(f"v_lshlrev_b32 v{8+i}, 16, v{8+i}")
    for i in range(6): A.e(f"v_mul_f32 v{40+i}, {hex(f2u(-LOG2E))}, v{8+i}")
    for i in range(6): A.e(f"v_exp_f32 v{40+i}, v{40+i}")
    for i in range(6): A.e(f"v_add_f32 v{40+i}, 1.0, v{40+i}")
    for i in range(6): A.e(f"v_rcp_f32 v{40+i}, v{40+i}")
    for i in range(6): A.e(f"v_mul_f32 v{8+i}, v{8+i}, v{40+i}")
    for i in range(6):
        A.wait(vm=("w", i))
        for q in range(4):
            A.e(f"v_lshlrev_b32 v40, 16, v{16+4*i+q}\nv_and_b32 v41, 0xffff0000, v{16+4*i+q}")
            op = "v_mul_f32" if i == 0 else "v_fmac_f32"
            A.e(f"{op} v{48+2*q}, v40, v{8+i}\n{op} v{49+2*q}, v41, v{8+i}")
    for sh in (4, 8):
        A.e("s_nop 1")
        for q in range(8): A.e(f"v_add_f32_dpp v{48+q}, v{48+q}, v{48+q} row_ror:{sh} row_mask:0xf bank_mask:0xf")
    A.e("v_lshrrev_b32 v5, 4, v0\nv_lshlrev_b32 v5, 7, v5\nv_lshl_add_u32 v5, v1, 5, v5\nv_and_b32 v6, 15, v0")
    A.e("v_cmp_gt_u32 vcc, 4, v6\ns_nop 0\ns_and_saveexec_b64 s[32:33], vcc")
    A.e("ds_write_b128 v5, v[48:51]\nds_write_b128 v5, v[52:55] offset:16\ns_mov_b64 exec, s[32:33]")
    A.e("s_waitcnt lgkmcnt(0)\ns_barrier")
    A.e("v_readfirstlane_b32 s34, v0\ns_nop 0\ns_cmp_ge_u32 s34, 64\ns_cbranch_scc1 L1_end")
    A.e("v_and_b32 v6, 31, v0\nv_lshrrev_b32 v7, 5, v0\nv_mul_u32_u24 v7, 1536, v7\nv_lshl_add_u32 v7, v6, 2, v7")
    for i in range(12): A.e(f"ds_read_b32 v{16+i}, v7 offset:{128*i}")
    A.e("s_lshl_b32 s29, s29, 5\nv_add_u32 v6, s29, v6")
    A.e("v_lshrrev_b32 v8, 3, v6\nv_lshlrev_b32 v8, 6, v8\nv_and_b32 v9, 7, v6\nv_lshl_add_u32 v8, v9, 2, v8\nv_lshlrev_b32 v9, 2, v6")
    A.e(f"s_mul_i32 s35, s28, 2304\ns_add_u32 s35, s35, {WS_MOD - 2*2304}\ns_cmp_eq_u32 s28, 0\ns_cselect_b32 s35, 32, s35\ns_cmp_eq_u32 s28, 1\ns_cselect_b32 s35, 0, s35")
    A.e("s_cmp_lt_u32 s28, 2\ns_cselect_b64 vcc, -1, 0\nv_cndmask_b32 v8, v9, v8, vcc")
    A.e("s_waitcnt lgkmcnt(0)")
    for i in range(6): A.e(f"v_add_f32 v{16+i}, v{16+i}, v{22+i}")
    for i in range(3): A.e(f"v_add_f32 v{16+i}, v{16+i}, v{19+i}")
    A.e("v_add_f32 v16, v16, v17\nv_add_f32 v16, v16, v18")
    A.e("v_mov_b32 v17, v16\ns_nop 1\nv_permlane32_swap_b32 v17, v16\nv_add_f32 v16, v16, v17")
    A.e("v_mov_b32 v17, s31\nv_fma_f32 v16, v16, s30, v17")
    A.e("s_mov_b64 exec, 0xffffffff\nbuffer_store_dword v16, v8, s[24:27], s35 offen")
    A.stamp(); A.stamp_flush(0, WS_STAMP); A.nst = 1
    A.e("s_endpgm")
    A.label("L1_ln")
    A.vm = []
    A.e("s_sub_u32 s3, s2, 108\nv_lshrrev_b32 v1, 6, v0\nv_and_b32 v2, 15, v0\nv_bfe_u32 v3, v0, 4, 2")
    A.e("v_mul_u32_u24 v4, 1152, v2\nv_lshl_add_u32 v4, v3, 4, v4\nv_mul_u32_u24 v5, 192, v1\nv_add_u32 v4, v4, v5\ns_mul_i32 s28, s3, 18432")
    for i in range(3): A.vmem(f"buffer_load_dwordx4 v[{8+4*i}:{11+4*i}], v4, s[12:15], s28 offen offset:{64*i}", ("x", i))
    A.e("v_lshlrev_b32 v6, 5, v2\nv_lshl_add_u32 v7, v1, 2, v6")
    A.e(f"v_and_b32 v5, 63, v0\nv_lshlrev_b32 v5, 4, v5\nv_mul_u32_u24 v1, 3072, v1\nv_add_u32 v5, v5, v1\ns_add_u32 s28, s28, {WS_XN}")
    for i in range(3):
        A.wait(vm=("x", i))
        for q in range(4):
            A.e(f"v_lshlrev_b32 v{24+8*i+2*q}, 16, v{8+4*i+q}\nv_and_b32 v{25+8*i+2*q}, 0xffff0000, v{8+4*i+q}")
    def reduce(x, off):
        xsum_G(A, x, 21)
        A.e(f"ds_write_b32 v7, v{x} offset:{off}\ns_waitcnt lgkmcnt(0)\ns_barrier")
        A.e(f"ds_read_b128 v[8:11], v6 offset:{off}\nds_read_b64 v[12:13], v6 offset:{off+16}\ns_waitcnt lgkmcnt(0)")
        A.e(f"v_add_f32 v8, v8, v9\nv_add_f32 v10, v10, v11\nv_add_f32 v12, v12, v13\nv_add_f32 v8, v8, v10\nv_add_f32 v{x}, v8, v12")
    A.e("v_add_f32 v20, v24, v25\nv_add_f32 v22, v26, v27")
    for i in range(4, 24, 2): A.e(f"v_add_f32 v20, v20, v{24+i}\nv_add_f32 v22, v22, v{25+i}")
    A.e("v_add_f32 v20, v20, v22")
    reduce(20, 0)
    A.e(f"v_mul_f32 v20, {hex(f2u(1/576))}, v20")
    for i in range(24): A.e(f"v_sub_f32 v{24+i}, v{24+i}, v20")
    A.e("v_mul_f32 v20, v24, v24\nv_mul_f32 v22, v25, v25")
    for i in range(2, 24, 2): A.e(f"v_fmac_f32 v20, v{24+i}, v{24+i}\nv_fmac_f32 v22, v{25+i}, v{25+i}")
    A.e("v_add_f32 v20, v20, v22")
    reduce(20, 512)
    A.e(f"v_mov_b32 v21, {hex(f2u(1e-5))}\nv_fmac_f32 v21, {hex(f2u(1/576))}, v20\nv_rsq_f32 v21, v21\ns_nop 0")
    for i in range(24): A.e(f"v_mul_f32 v{24+i}, v{24+i}, v21")
    for i in range(3):
        for q in range(4): A.e(f"v_cvt_pk_f16_f32 v{8+4*i+q}, v{24+8*i+2*q}, v{25+8*i+2*q}")
        A.e(f"buffer_store_dwordx4 v[{8+4*i}:{11+4*i}], v5, s[24:27], s28 offen offset:{1024*i}")
    A.stamp(); A.stamp_flush(0, WS_STAMP)
    A.label("L1_end")
    A.e("s_endpgm")
    return A, dict(name="front_kernel", grid=236, block=384, lds=3072, vgpr=64, acc=64)
```

```python
from asmlib import *
from layout import *
MF = "v_mfma_f32_16x16x32_bf16"

def gen_k3():
    A = Asm()
    A.e("s_cmp_ge_u32 s2, 256\ns_cbranch_scc1 L3_end")
    A.stamp()
    A.e("s_load_dwordx2 s[4:5], s[0:1], 0\ns_load_dwordx2 s[6:7], s[0:1], 48\ns_load_dwordx2 s[8:9], s[0:1], 96\ns_load_dwordx2 s[10:11], s[0:1], 112")
    A.e(f"v_lshlrev_b32 v1, 4, v0\ns_mul_i32 s3, s2, 147456\ns_add_u32 s3, s3, {WS_PART}")
    A.e("v_lshrrev_b32 v2, 3, v0\nv_and_b32 v3, 7, v0\nv_mul_u32_u24 v4, 1152, v3\nv_lshl_add_u32 v4, v2, 4, v4")
    A.e("v_lshlrev_b32 v5, 5, v2\nv_lshlrev_b32 v6, 4, v2\ns_mul_i32 s32, s2, 9216")
    A.e("s_waitcnt lgkmcnt(0)")
    A.srd(12, 10, 147456, "s3"); A.srd(16, 4, 2359296); A.srd(20, 6, 1152); A.srd(24, 8, 2359296); A.srd(28, 10, WS_H2 + 2359296)
    A.e("s_mov_b32 s3, 0")
    for g in range(16):
        A.vmem(f"buffer_load_dwordx4 {v(64+4*g,4)}, v1, s[12:15], s3 offen", ("p", g))
        if g < 15: A.e("s_add_u32 s3, s3, 9216")
    A.vmem(f"buffer_load_dwordx4 v[8:11], v4, s[16:19], s32 offen", "x")
    for m in range(4):
        A.e(f"s_mov_b32 s3, {WS_MOD + 2304*m}")
        for h in range(2): A.vmem(f"buffer_load_dwordx4 {v(24+8*m+4*h,4)}, v5, s[28:31], s3 offen offset:{16*h}", ("m", m))
    A.vmem(f"buffer_load_dwordx4 v[12:15], v6, s[20:23], 0 offen", "wr")
    GA, SB, CB, GB = 24, 32, 40, 48
    A.e("v_lshrrev_b32 v7, 6, v0\nv_lshlrev_b32 v3, 6, v3\nv_lshl_add_u32 v7, v7, 2, v3")
    for g in range(16):
        A.wait(vm=("p", g))
        for q in range(4):
            x = 64 + 4 * g + q
            if g == 0: A.e(f"v_lshlrev_b32 v{16+2*q}, 16, v{x}\nv_and_b32 v{17+2*q}, 0xffff0000, v{x}")
            else: A.e(f"v_lshlrev_b32 v56, 16, v{x}\nv_and_b32 v57, 0xffff0000, v{x}\nv_add_f32 v{16+2*q}, v{16+2*q}, v56\nv_add_f32 v{17+2*q}, v{17+2*q}, v57")
    A.stamp()
    A.wait(vm=("m", 0))
    for q in range(4):
        A.e(f"v_lshlrev_b32 v56, 16, v{8+q}\nv_and_b32 v57, 0xffff0000, v{8+q}")
        A.e(f"v_fma_f32 v{16+2*q}, v{16+2*q}, v{GA+2*q}, v56\nv_fma_f32 v{17+2*q}, v{17+2*q}, v{GA+2*q+1}, v57")
    def reduce(x, off):
        A.e(f"s_nop 1\nv_add_f32_dpp v{x}, v{x}, v{x} row_ror:8 row_mask:0xf bank_mask:0xf")
        for op in ("v_permlane16_swap_b32", "v_permlane32_swap_b32"):
            A.e(f"v_mov_b32 v57, v{x}\ns_nop 1\n{op} v57, v{x}\nv_add_f32 v{x}, v{x}, v57")
        A.e(f"ds_write_b32 v7, v{x} offset:{off}\ns_waitcnt lgkmcnt(0)\ns_barrier")
        A.e(f"ds_read_b128 v[64:67], v3 offset:{off}\nds_read_b128 v[68:71], v3 offset:{off+16}\nds_read_b32 v{x}, v3 offset:{off+32}\ns_waitcnt lgkmcnt(0)")
        for i in range(4): A.e(f"v_add_f32 v{64+i}, v{64+i}, v{68+i}")
        A.e(f"v_add_f32 v64, v64, v65\nv_add_f32 v66, v66, v67\nv_add_f32 v{x}, v{x}, v64\nv_add_f32 v{x}, v{x}, v66")
    A.e("v_add_f32 v56, v16, v17\nv_add_f32 v58, v18, v19\nv_add_f32 v59, v20, v21\nv_add_f32 v60, v22, v23\nv_add_f32 v56, v56, v58\nv_add_f32 v59, v59, v60\nv_add_f32 v56, v56, v59")
    reduce(56, 0)
    A.e(f"v_mul_f32 v56, {hex(f2u(1/576))}, v56")
    for i in range(8): A.e(f"v_sub_f32 v{72+i}, v{16+i}, v56")
    A.e("v_mul_f32 v56, v72, v72\nv_mul_f32 v58, v73, v73")
    for i in range(2, 8, 2): A.e(f"v_fmac_f32 v56, v{72+i}, v{72+i}\nv_fmac_f32 v58, v{73+i}, v{73+i}")
    A.e("v_add_f32 v56, v56, v58")
    reduce(56, 512)
    A.e(f"v_mov_b32 v57, {hex(f2u(1e-5))}\nv_fmac_f32 v57, {hex(f2u(1/576))}, v56\nv_rsq_f32 v57, v57")
    A.wait(vm="wr")
    for i in range(8): A.e(f"v_mul_f32 v{72+i}, v{72+i}, v57")
    for i in range(8): A.e(f"v_fma_f32 v{72+i}, v{72+i}, v{CB+i}, v{SB+i}")
    for i in range(8): A.e(f"v_fmac_f32 v{16+i}, v{72+i}, v{GB+i}")
    for q in range(4): A.e(f"v_cvt_pk_bf16_f32 v{8+q}, v{16+2*q}, v{17+2*q}")
    for q in range(4): A.e(f"v_cvt_pk_bf16_f32 v{80+q}, v{72+2*q}, v{73+2*q}")
    A.e(f"buffer_store_dwordx4 v[8:11], v4, s[24:27], s32 offen\ns_add_u32 s33, s32, {WS_H2}\nbuffer_store_dwordx4 v[80:83], v4, s[28:31], s33 offen")
    for q in range(4):
        A.e(f"v_lshlrev_b32 v58, 16, v{12+q}\nv_and_b32 v59, 0xffff0000, v{12+q}")
        op = "v_mul_f32" if q == 0 else "v_fmac_f32"
        A.e(f"{op} v56, v58, v{72+2*q}\n{op} v60, v59, v{73+2*q}")
    A.e("v_add_f32 v56, v56, v60")
    reduce(56, 1024)
    A.e("s_lshl_b32 s3, s2, 3\nv_add_u32 v58, s3, v0\nv_sub_u32 v59, 2047, v58\nv_lshlrev_b32 v58, 2, v58")
    A.e("v_ashrrev_i32 v60, 31, v56\nv_or_b32 v60, 0x80000000, v60\nv_xor_b32 v60, v60, v56\nv_and_b32 v60, 0xfffff800, v60\nv_or_b32 v60, v60, v59")
    A.e("v_cmp_gt_u32 vcc, 8, v0\ns_nop 0\ns_and_saveexec_b64 s[34:35], vcc\ns_cbranch_execz L3_end")
    A.e(f"s_mov_b32 s3, {WS_R}\nbuffer_store_dword v56, v58, s[28:31], s3 offen\ns_mov_b32 s3, {WS_KEY}\nbuffer_store_dword v60, v58, s[28:31], s3 offen")
    A.stamp(); A.stamp_flush(2, WS_STAMP)
    A.label("L3_end"); A.e("s_endpgm")
    return A, dict(name="mid_kernel", grid=256, block=576, lds=2048, vgpr=128, acc=128)

def top2_wave(A, m1, m2, t1, t2):
    def merge():
        A.e(f"v_max_u32 v{m2}, v{m2}, v{t2}\nv_med3_u32 v{m2}, v{m1}, v{t1}, v{m2}\nv_max_u32 v{m1}, v{m1}, v{t1}")
    for sh in (1, 2, 4, 8):
        A.e(f"s_nop 1\nv_mov_b32_dpp v{t1}, v{m1} row_ror:{sh} row_mask:0xf bank_mask:0xf\nv_mov_b32_dpp v{t2}, v{m2} row_ror:{sh} row_mask:0xf bank_mask:0xf")
        merge()
    for op in ("v_permlane16_swap_b32", "v_permlane32_swap_b32"):
        A.e(f"v_mov_b32 v{t1}, v{m1}\nv_mov_b32 v{t2}, v{m2}\ns_nop 0\n{op} v{t1}, v{m1}\n{op} v{t2}, v{m2}")
        merge()

def gen_k4():
    A = Asm()
    LG, LU, LD, LX = 0, 36864, 73728, 110592
    A.e("s_cmp_ge_u32 s2, 144\ns_cbranch_scc1 L4_end")
    A.stamp()
    A.e("s_load_dwordx4 s[4:7], s[0:1], 56\ns_load_dwordx2 s[8:9], s[0:1], 72\ns_load_dwordx2 s[10:11], s[0:1], 112")
    A.e("v_lshrrev_b32 v12, 6, v0\nv_and_b32 v0, 63, v0\nv_readfirstlane_b32 s33, v12")
    A.e("v_lshlrev_b32 v1, 4, v0\nv_lshrrev_b32 v2, 2, v0\nv_mul_u32_u24 v2, 9216, v2\nv_and_b32 v3, 3, v0\nv_lshl_add_u32 v2, v3, 4, v2")
    A.e("s_waitcnt lgkmcnt(0)")
    A.srd(12, 4, 576 * 9216); A.srd(16, 6, 576 * 9216); A.srd(20, 8, 4608 * 1152); A.srd(24, 10, WS_H2 + 2359296)
    A.e(f"s_mov_b32 s3, {WS_KEY}")
    for i in range(8):
        A.vmem(f"buffer_load_dwordx4 {v(16+4*i,4)}, v1, s[24:27], s3 offen offset:{1024*(i%4)}", ("k", i))
        if i == 3: A.e("s_add_u32 s3, s3, 4096")
    A.e(f"s_mul_i32 s34, s33, 9216\ns_mul_i32 s35, s33, {9*16*9216}\ns_lshl_b32 s3, s2, 6\ns_add_u32 s35, s35, s3\ns_mul_i32 s36, s2, 36864\ns_add_u32 s36, s36, s34")
    for i in range(9):
        A.e(f"s_add_u32 m0, s34, {LG + 1024*i}\ns_nop 0"); A.vmem("buffer_load_dwordx4 v2, s[12:15], s35 offen lds", "gu")
        A.e(f"s_add_u32 m0, s34, {LU + 1024*i}\ns_nop 0"); A.vmem("buffer_load_dwordx4 v2, s[16:19], s35 offen lds", "gu")
        A.e(f"s_add_u32 s35, s35, {16*9216}")
    for i in range(9):
        A.e(f"s_add_u32 m0, s34, {LD + 1024*i}\ns_nop 0"); A.vmem("buffer_load_dwordx4 v1, s[20:23], s36 offen lds", "dn")
        A.e("s_add_u32 s36, s36, 1024")
    A.e("v_mov_b32 v4, 0\nv_mov_b32 v5, 0")
    for i in range(8):
        A.wait(vm=("k", i))
        for q in range(4): A.e(f"v_med3_u32 v5, v4, v5, v{16+4*i+q}\nv_max_u32 v4, v4, v{16+4*i+q}")
    A.stamp()
    top2_wave(A, 4, 5, 6, 7)
    A.e("v_and_b32 v6, 1, v0\nv_cmp_eq_u32 vcc, 0, v6\ns_nop 1\nv_cndmask_b32 v4, v5, v4, vcc\nv_and_b32 v4, 0x7ff, v4\nv_sub_u32 v4, 2047, v4")
    A.e(f"v_lshrrev_b32 v7, 4, v0\nv_mul_u32_u24 v5, 1152, v4\nv_lshl_add_u32 v5, v7, 4, v5\ns_mov_b32 s3, {WS_H2}")
    for kk in range(18): A.vmem(f"buffer_load_dwordx4 {v(16+4*kk,4)}, v5, s[24:27], s3 offen offset:{64*kk}", ("h", kk))
    A.e(f"s_or_b32 s37, s2, s33\ns_cmp_eq_u32 s37, 0\ns_cselect_b32 s37, 2, 0\nv_cmp_gt_u32 vcc, s37, v0\nv_lshlrev_b32 v8, 2, v0\nv_add_u32 v8, {WS_IDX}, v8\nv_cndmask_b32 v8, -1, v8, vcc")
    A.vmem("buffer_store_dword v4, v8, s[24:27], 0 offen", "i")
    A.e("v_bfe_u32 v8, v0, 2, 2\nv_lshl_add_u32 v8, v7, 3, v8\nv_lshlrev_b32 v9, 6, v8\nv_lshl_add_u32 v9, v3, 3, v9")
    A.e(f"s_lshr_b32 s37, s33, 1\ns_mul_i32 s37, s37, {LU}\ns_and_b32 s38, s33, 1\ns_lshl_b32 s38, s38, 5\ns_add_u32 s37, s37, s38\nv_add_u32 v9, s37, v9")
    A.e(f"v_mul_u32_u24 v10, 1152, v8\nv_lshl_add_u32 v10, v3, 3, v10\ns_mul_i32 s37, s33, 288\ns_add_u32 s37, s37, {LD}\nv_add_u32 v10, s37, v10")
    A.stamp()
    A.wait(vm="dn"); A.e("s_barrier"); A.stamp()
    for kk in range(18):
        for b in range(2): A.lds(f"ds_read_b64_tr_b16 {a(4*kk+2*b,2)}, v9 offset:{2048*kk + 256*b}", ("a", kk))
    for nt in range(9):
        for b in range(2): A.lds(f"ds_read_b64_tr_b16 {a(72+4*nt+2*b,2)}, v10 offset:{32*nt + 4608*b}", "d")
    for kk in range(18):
        A.wait(vm=("h", kk), lg=("a", kk))
        A.e(f"{MF} v[88:91], {a(4*kk,4)}, {v(16+4*kk,4)}, {'0' if kk == 0 else 'v[88:91]'}")
    A.stamp()
    A.e(f"v_lshlrev_b32 v11, 7, v6\nv_lshl_add_u32 v13, v7, 5, v11\nv_add_u32 v13, {LX}, v13")
    A.e(f"v_lshl_add_u32 v11, v7, 4, v11\ns_lshr_b32 s37, s33, 1\ns_lshl_b32 s37, s37, 8\ns_lshl_b32 s38, s38, 1\ns_add_u32 s37, s37, s38\ns_add_u32 s37, s37, {LX}\nv_add_u32 v11, s37, v11")
    A.lds("ds_write_b128 v11, v[88:91]", "x"); A.wait(lg="x"); A.e("s_barrier")
    for i in range(4): A.lds(f"ds_read_b128 {v(16+4*i,4)}, v13 offset:{(i//2)*256 + (i%2)*16}", "y")
    A.wait(lg="y")
    for i in range(8): A.e(f"v_mul_f32 v{32+i}, {hex(f2u(-LOG2E))}, v{16+i}")
    for i in range(8): A.e(f"v_exp_f32 v{32+i}, v{32+i}")
    for i in range(8): A.e(f"v_add_f32 v{32+i}, 1.0, v{32+i}")
    for i in range(8): A.e(f"v_rcp_f32 v{32+i}, v{32+i}")
    for i in range(8): A.e(f"v_mul_f32 v{16+i}, v{16+i}, v{32+i}")
    for i in range(8): A.e(f"v_mul_f32 v{16+i}, v{16+i}, v{24+i}")
    for q in range(4): A.e(f"v_cvt_pk_bf16_f32 v{40+q}, v{16+2*q}, v{17+2*q}")
    A.e("v_mul_u32_u24 v8, 2304, v6\nv_lshl_add_u32 v8, v7, 4, v8\nv_and_b32 v9, 15, v0\nv_cmp_gt_u32 vcc, 2, v9")
    A.e(f"s_mul_i32 s3, s2, 4608\ns_mul_i32 s37, s33, 576\ns_add_u32 s3, s3, s37\ns_add_u32 s3, s3, {WS_YP}")
    for nt in range(9): A.e(f"{MF} {v(48+4*nt,4)}, {a(72+4*nt,4)}, v[40:43], 0")
    A.e("s_and_saveexec_b64 s[40:41], vcc")
    for nt in range(9):
        if nt == 1: A.e("s_nop 7")
        A.e(f"buffer_store_dwordx4 {v(48+4*nt,4)}, v8, s[24:27], s3 offen offset:{64*nt}")
    A.stamp(); A.stamp_flush(3, WS_STAMP)
    A.label("L4_end"); A.e("s_endpgm")
    return A, dict(name="ffn_kernel", grid=144, block=256, lds=LX + 512, vgpr=256, acc=128)

def gen_k5():
    A = Asm()
    A.e("s_cmp_ge_u32 s2, 36\ns_cbranch_scc1 L5_end")
    A.stamp()
    A.e("s_load_dwordx2 s[8:9], s[0:1], 96\ns_load_dwordx2 s[10:11], s[0:1], 112")
    A.e("v_and_b32 v1, 31, v0\nv_lshrrev_b32 v2, 5, v0\nv_mul_u32_u24 v3, 82944, v2\nv_lshl_add_u32 v3, v1, 2, v3")
    A.e(f"s_lshl_b32 s3, s2, 7\ns_add_u32 s3, s3, {WS_YP}\ns_cmp_ge_u32 s2, 18\ns_cselect_b32 s28, 1, 0\ns_mul_i32 s29, s28, 18\ns_sub_u32 s29, s2, s29")
    A.e("s_waitcnt lgkmcnt(0)")
    A.srd(12, 8, 2359296); A.srd(16, 10, WS_XN)
    A.e(f"s_lshl_b32 s28, s28, 2\ns_add_u32 s28, s28, {WS_IDX}\nv_mov_b32 v4, s28")
    A.vmem("buffer_load_dword v5, v4, s[16:19], 0 offen", "i")
    for i in range(18):
        A.vmem(f"buffer_load_dword v{16+i}, v3, s[16:19], s3 offen", "p")
        A.e("s_add_u32 s3, s3, 4608")
    A.e(f"s_lshl_b32 s29, s29, 5\nv_add_u32 v6, s29, v1\nv_lshlrev_b32 v7, 2, v6\ns_mov_b32 s30, {WS_MOD + 3*2304}")
    A.vmem("buffer_load_dword v8, v7, s[16:19], s30 offen", "gb")
    A.wait(vm="i")
    A.e(f"v_and_b32 v5, 0x7ff, v5\nv_lshlrev_b32 v9, 2, v5\nv_mul_u32_u24 v10, 1152, v5\nv_lshl_add_u32 v10, v6, 1, v10\ns_mov_b32 s30, {WS_R}")
    A.vmem("buffer_load_dword v11, v9, s[16:19], s30 offen", "r")
    A.vmem("buffer_load_ushort v12, v10, s[12:15], 0 offen", "o")
    A.wait(vm="p"); A.stamp()
    for i in range(9): A.e(f"v_add_f32 v{16+i}, v{16+i}, v{25+i}")
    for i in range(4): A.e(f"v_add_f32 v{16+i}, v{16+i}, v{20+i}")
    A.e("v_add_f32 v16, v16, v17\nv_add_f32 v18, v18, v19\nv_add_f32 v16, v16, v24\nv_add_f32 v16, v16, v18")
    A.e("v_lshlrev_b32 v13, 5, v1\nv_lshl_add_u32 v14, v2, 2, v13\nds_write_b32 v14, v16\ns_waitcnt lgkmcnt(0)\ns_barrier")
    A.e("ds_read_b128 v[16:19], v13\nds_read_b128 v[20:23], v13 offset:16")
    A.wait(vm="o")
    A.e(f"v_mul_f32 v11, {hex(f2u(-LOG2E))}, v11\nv_exp_f32 v11, v11\nv_lshlrev_b32 v12, 16, v12\nv_add_f32 v11, 1.0, v11\nv_rcp_f32 v11, v11\ns_waitcnt lgkmcnt(0)")
    for i in range(4): A.e(f"v_add_f32 v{16+i}, v{16+i}, v{20+i}")
    A.e("v_add_f32 v16, v16, v17\nv_add_f32 v18, v18, v19\nv_add_f32 v16, v16, v18\nv_mul_f32 v16, v16, v11\nv_fmac_f32 v12, v16, v8\nv_cvt_pk_bf16_f32 v12, v12, v12")
    A.e("v_cmp_gt_u32 vcc, 32, v0\ns_nop 0\ns_and_saveexec_b64 s[34:35], vcc\ns_cbranch_execz L5_end")
    A.e("buffer_store_short v12, v10, s[12:15], 0 offen")
    A.stamp(); A.stamp_flush(4, WS_STAMP)
    A.label("L5_end"); A.e("s_endpgm")
    return A, dict(name="fin_kernel", grid=36, block=256, lds=1024, vgpr=64, acc=64)
```

```python
import math
LOG2E = 1.4426950408889634
C0 = LOG2E / math.sqrt(128.0)
WS_AS = 0
WS_MOD = 8192
WS_R = 32768
WS_KEY = 40960
WS_IDX = 49152
WS_YP = 65536
WS_XN = 1 << 20
WS_H2 = 4 << 20
import os
WS_PART = int(os.environ.get('WS_PART_MB', 8)) << 20
PART_BYTES = 2048 * 576 * 2 * 16
WS_STAMP = 64 << 20
```

```python
from asmlib import *
from layout import *

RING = 8192; SLOT = 33792; HALF = 16896; PIECE = 1056
FLAG = RING + 4 * SLOT
LDS_BYTES = FLAG + 64
BIAS = 32.0
vK, vV, vT, vT2, vKV, vWq, vWo, vX, vAS, vPt, vIdx = 1, 2, 3, 4, 5, 6, 7, 8, 9, 10, 11
vTmp = 12
S0 = 16; P0 = 32; NM = 48; Q0 = 64; O0 = 128
AS0 = 16; T0 = 32; X0 = 48
def O(j, dt): return O0 + (j * 8 + dt) * 4
def Q(j, t): return Q0 + (j * 4 + t) * 4
def X(c, n, kl): return X0 + ((c + 2) % 5) * 16 + (n * 2 + kl) * 4
aL = 0; aOne = 16; aK = 64; aV = 128
def KF(kt, t): return aK + (kt * 4 + t) * 4
def VF(buf, dt, u): return aV + buf * 64 + (dt * 2 + u) * 4
sK, sV, sWq, sWo, sXn, sAS, sPt = 16, 20, 24, 28, 32, 36, 40
sW4, sOff, sT, sBase, sDel, sCnt, sPass, sW, sG, sTb, sOff2 = 44, 45, 46, 47, 48, 49, 50, 51, 52, 53, 54
MF = "v_mfma_f32_16x16x32_bf16"

def trd(dst, slot, off):
    base = vT if slot < 2 else vT2
    return f"ds_read_b64_tr_b16 {a(dst,2)}, v{base} offset:{(slot % 2) * SLOT + off}"

def dma_wq(c):
    slot = (c + 1) % 4; out = []
    for kl in range(2):
        for r in range(4):
            out.append(([f"s_add_u32 m0, s{sW4}, {slot*SLOT + kl*HALF + r*PIECE}", f"s_mov_b32 s{sOff}, {(64*c + 32*kl + r) * 8192}"],
                        ("vm", f"buffer_load_dwordx4 v{vWq}, {s(sWq,4)}, s{sOff} offen{OPT.get('wq_nt','')} lds", ("L", c))))
    return out
def dma_kv_static(i, halves=(0, 1), slot=None):
    slot = (i + 2) % 4 if slot is None else slot; out = []
    for h in halves:
        for j in range(4):
            pre = [f"s_add_u32 m0, s{sW4}, {slot*SLOT + h*HALF + 32*j}"]
            if i is not None and j == 0 and h == halves[0]: pre.append(f"s_mov_b32 s{sT}, {i*16384}")
            out.append((pre, ("vm", f"buffer_load_dwordx4 v{vKV}, {s(sV if h else sK,4)}, s{sT} offen offset:{1024*j}{OPT.get('kv_nt','')} lds", ("L", 9 + (i or 0)))))
    return out
def dma_kv_dyn(i, odd):
    out = []
    for h in range(2):
        for j in range(4):
            pre = [f"s_add_u32 m0, s{sBase}, {odd*SLOT + h*HALF + 32*j}"]
            out.append((pre, ("vm", f"buffer_load_dwordx4 v{vKV}, {s(sV if h else sK,4)}, s{sT} offen offset:{1024*j}{OPT.get('kv_nt','')} lds", ("L", 9 + i))))
    return out
def dma_wo(c):
    slot = (c + 2) % 4; out = []
    for hi in range(2):
        for r in range(4):
            pre = [f"s_add_u32 m0, s{sW4}, {slot*SLOT + hi*HALF - 96*r}"]
            if r == 0: pre.append(f"s_mov_b32 s{sOff}, {c*128 + hi*128*1152}")
            out.append((pre, ("vm", f"buffer_load_dwordx4 v{vWo}, {s(sWo,4)}, s{sOff} offen offset:{1152*r}{OPT.get('wo_nt','')} lds", ("L", 41 + c))))
    return out
def dmaL(n):
    return dma_wq(n) if n < 9 else (dma_kv_static(n - 9) if n < 41 else dma_wo(n - 41))
def emit_dma(A, lst):
    for pre, ld in lst:
        A.items(pre)
        if len(pre) == 1: A.e("s_nop 0")
        A.item(ld)
def xload(c):
    return [([f"s_mov_b32 s{sOff2}, {n*18432 + (2*c+kl)*1024}"],
             ("vm", f"buffer_load_dwordx4 {v(X(c,n,kl),4)}, v{vX}, {s(sXn,4)}, s{sOff2} offen", ("X", c))) for n in range(2) for kl in range(2)]
def place_vm(Sc, g, item):
    pre, ld = item
    for k, p in enumerate(pre): Sc.sh[g - 1 - k].append(p)
    Sc.mem[g].append(ld)

def as_reads(c, q):
    kl, hf = q // 2, q % 2; d = AS0 + (q % 2) * 8; off = (2 * c + kl) * 256 + hf * 16
    return [("lds", f"ds_read_b128 {v(d,4)}, v{vAS} offset:{off}", ("AS", c, q)), ("lds", f"ds_read_b128 {v(d+4,4)}, v{vAS} offset:{off+32}", ("AS", c, q))]
def modulate(c, q):
    kl, hf = q // 2, q % 2; d = AS0 + (q % 2) * 8; out = []
    for n in range(2):
        x = X(c, n, kl) + 2 * hf; t = T0 + 4 * n
        for i in range(4):
            out.append(f"v_fma_mix_f32 v{t+i}, v{x+i//2}, v{d+i}, v{d+4+i} op_sel:[{i%2},0,0] op_sel_hi:[1,0,0]")
        out += [f"v_cvt_pk_bf16_f32 v{x}, v{t}, v{t+1}", f"v_cvt_pk_bf16_f32 v{x+1}, v{t+2}, v{t+3}"]
    return out

def kreads(off, tag): return [("lds", f"ds_read_b128 {a(KF(kt,t),4)}, v{vK} offset:{off + kt*256 + t*64}", (tag, kt)) for kt in range(4) for t in range(4)]
def vreads(buf, off, tag): return [("lds", f"ds_read_b64_tr_b16 {a(VF(buf,dt,u)+2*b,2)}, v{vV} offset:{off + (2*u+b)*256 + dt*32}", tag) for dt in range(8) for u in range(2) for b in range(2)]

QD = 3
def AF(grp, kl): return aV + 64 + (grp % 8) * 8 + kl * 4
def qreads(G):
    c, mt = divmod(G, 16); slot = (c + 1) % 4
    return [("lds", trd(AF(G, kl) + 2 * b, slot, kl * HALF + b * 512 + mt * 32), ("A", G)) for kl in range(2) for b in range(2)]

def gen_qproj(A):
    Sc = Sched()
    for c in range(9):
        for mt in range(16):
            G = c * 16 + mt
            for n in range(2):
                d = O(2 * (mt // 8) + n, mt % 8)
                for kl in range(2):
                    cc = "0" if c == 0 and kl == 0 else v(d, 4)
                    Sc.mfma(f"{MF} {v(d,4)}, {a(AF(G,kl),4)}, {v(X(c,n,kl),4)}, {cc}")
    N = len(Sc.mf); vmg = set()
    leftover = []
    for c in range(9):
        gb = 64 * (c + 1) - 4 * QD - 1
        Sc.sh[gb] += [("wait", ("L", c + 1), None), "s_barrier"]
        if c >= 1:
            for k, it in enumerate(dmaL(c + 3)):
                g = gb + 4 + 8 * k
                if g < N: place_vm(Sc, g, it); vmg.add(g)
                else: leftover.append(it)
    for c in range(4):
        for k, it in enumerate(xload(c + 5)):
            g = 64 * (c + 1) + 3 + 16 * k
            assert g not in vmg
            place_vm(Sc, g, it); vmg.add(g)
    for G in range(144):
        if G > 0: Sc.sh[4 * G - 1].append(("wait", None, ("A", G)))
        if G + QD < 144:
            rd = qreads(G + QD); gs = [g for g in range(4 * G, 4 * G + 4) if g not in vmg]
            if len(gs) == 3: gs = [gs[0], gs[1], gs[1], gs[2]]
            for g, r in zip(gs, rd): Sc.mem[g].append(r)
    for c in range(8):
        Sc.sh[64 * c].append(("wait", ("X", c + 1), None))
        for q in range(4):
            w0 = 64 * c + 16 * q
            nxt = as_reads(c + 1, q + 1) if q < 3 else (as_reads(c + 2, 0) if c < 7 else [])
            items = modulate(c + 1, q)
            Sc.sh[w0].append(("wait", None, ("AS", c + 1, q)))
            free = [g for g in range(w0, w0 + 16) if g not in vmg and len(Sc.mem[g]) < 2]
            for r in nxt:
                g = free.pop(0); Sc.mem[g].append(r)
            over = len(items) - len(free)
            odd = [g for g in range(w0 + 1, w0 + 16, 2) if g not in vmg]
            slots = sorted(free + odd[-over:] if over > 0 else free)
            for g, it in zip(slots, items): Sc.va[g].append(it)
    return Sc, leftover, vmg

def qconvert(j, t):
    o = O(j, 2 * t); q = Q(j, t)
    return [f"v_cvt_pk_bf16_f32 v{q+i}, v{o+2*i}, v{o+2*i+1}" for i in range(4)], [f"v_permlane32_swap_b32 v{q}, v{q+2}", f"v_permlane32_swap_b32 v{q+1}, v{q+3}"]

def xmax_to_negm(A, src, bias):
    t = vTmp
    for op in ("v_permlane16_swap_b32", "v_permlane32_swap_b32"):
        for j in range(4): A.e(f"v_mov_b32 v{t+j}, v{src[j]}")
        for j in range(4): A.e(f"{op} v{t+j}, v{src[j]}")
        for j in range(4): A.e(f"v_max_f32 v{src[j]}, v{src[j]}, v{t+j}")
    for j in range(4):
        for i in range(4): A.e(f"v_sub_f32 v{NM+4*j+i}, {hex(f2u(-bias))}, v{src[j]}")

def gen_stage(i, kind, dma, opt):
    par = i % 2; Sc = Sched(); first = kind == "first"; last = kind == "last"
    nun = 5 if last else 4
    for j in range(nun):
        for kt in range(4):
            for t in range(4):
                d = S0 + 4 * kt
                Sc.mfma(None if j == 4 else f"{MF} {v(d,4)}, {a(KF(kt,t),4)}, {v(Q(j,t),4)}, {v(NM+4*j,4) if t == 0 else v(d,4)}")
        jp = (j - 1) % 4; vb = par if j > 0 else 1 - par; p = P0 + 8 * (jp % 2)
        skip = first and j == 0
        for dt in range(8):
            for u in range(2):
                d = O(jp, dt); cc = "0" if first and u == 0 else v(d, 4)
                Sc.mfma(None if skip else f"{MF} {v(d,4)}, {a(VF(vb,dt,u),4)}, {v(p+4*u,4)}, {cc}")
        Sc.mfma(None if skip else f"v_smfmac_f32_16x16x64_bf16 {a(aL+4*jp,4)}, {a(aOne,4)}, {v(p,8)}, v{vIdx}")
        b = 33 * j
        for x in range(16):
            prev = x < 4
            if (prev and skip) or (j == 4 and not prev): continue
            e = (x - 4) % 16
            Sc.va[b + 2 * x].append(f"v_exp_f32 v{S0+e}, v{S0+e}")
        for k in range(8):
            prev = k < 3; pr = (k + 5) % 8
            if (prev and skip) or (j == 4 and not prev): continue
            pb = P0 + 8 * ((j - 1 if prev else j) % 2)
            Sc.va[b + 4 * k + 1].append(f"v_cvt_pk_bf16_f32 v{pb+pr}, v{S0+2*pr}, v{S0+2*pr+1}")
    if first:
        for g in range(16, 33):
            if g % 2 == 0: Sc.va[g].append("s_nop 0")
        Sc.sh[16].append("s_nop 3")
    if last:
        for g in range(33 * 4, 33 * 4 + 8, 2): Sc.va[g].append("s_nop 0")
        Sc.va[33 * 4 + 15].append("s_nop 1")
    for kt in range(1, 4): Sc.sh[4 * kt - 1].append(("wait", None, (("K", i), kt)))
    step = opt.get("dma_step", 4)
    cand = [33 * j + r for j in range(3) for r in range(3, 32, 4)]
    gs = cand[::step // 4] if not last else cand
    vmg = set()
    for g, it in zip(gs, dma): place_vm(Sc, g, it); vmg.add(g)
    assert len(vmg) == len(dma)
    if kind == "A":
        Sc.va[1].append(f"v_add_u32 v{vK}, s{sDel}, v{vK}"); Sc.va[5].append(f"v_add_u32 v{vV}, s{sDel}, v{vV}")
        Sc.sh[0].append(f"s_sub_u32 s{sBase}, s{sBase}, s{sDel}")
        Sc.sh[8].append(f"s_sub_u32 s{sDel}, 0, s{sDel}")
    if not last:
        Sc.sh[100].append(f"s_add_u32 s{sT}, s{sT}, 16384"); Sc.sh[101].append(f"s_min_u32 s{sT}, s{sT}, {31*16384}")
        off = 0 if kind == "A" else SLOT
        free = [33 * j + r for j in range(3) for r in list(range(1, 32, 2)) + [32] if 33 * j + r >= 17 and 33 * j + r not in vmg]
        vr = vreads(1 - par, off, ("V", i + 1)); assert len(free) >= 32
        for n, r in enumerate(vr):
            assert free[n] >= 16 + n // 2
            Sc.mem[free[n]].append(r)
        for n, r in enumerate(kreads(off, ("K", i + 1))): Sc.mem[99 + 2 * n + 1].append(r)
        Sc.sh[131] += [("wait", ("L", 9 + i + 2), (("K", i + 1), 0)), "s_barrier"]
    return Sc

OA = 16; OR = 48
def OB(n, u): return O(2 * (u // 4) + n, 2 * (u % 4))
def WF(grp, u): return aK + (grp % 2) * 32 + u * 4
def oreads(G):
    c, ntl = divmod(G, 4); slot = (c + 2) % 4
    return [("lds", trd(WF(G, u) + 2 * b, slot, (u // 4) * HALF + (2 * (u % 4) + b) * 128 + ntl * 32), ("W", G, u // 2)) for u in range(8) for b in range(2)]
def oacc(G, n): return OA + ((G % 4) * 2 + n) * 4
def oepi(pair, n):
    r = OR + 4 * n; x, y = oacc(2 * pair, n), oacc(2 * pair + 1, n); c, aa = divmod(pair, 2)
    cv = [f"v_cvt_pk_bf16_f32 v{r}, v{x}, v{x+1}", f"v_cvt_pk_bf16_f32 v{r+1}, v{x+2}, v{x+3}", f"v_cvt_pk_bf16_f32 v{r+2}, v{y}, v{y+1}", f"v_cvt_pk_bf16_f32 v{r+3}, v{y+2}, v{y+3}"]
    sw = [f"v_permlane32_swap_b32 v{r}, v{r+2}", f"v_permlane32_swap_b32 v{r+1}, v{r+3}"]
    st = ([f"s_mov_b32 s{sOff2}, {n*294912 + c*1024}"], ("vm", f"buffer_store_dwordx4 {v(r,4)}, v{vPt}, {s(sPt,4)}, s{sOff2} offen offset:{aa*512}{OPT.get('st_flags', '')}", "st"))
    return cv, sw, st

def gen_oproj(A):
    Sc = Sched()
    for G in range(36):
        for n in range(2):
            for u in range(8):
                d = oacc(G, n)
                Sc.mfma(f"{MF} {v(d,4)}, {a(WF(G,u),4)}, {v(OB(n,u),4)}, {'0' if u == 0 else v(d,4)}")
    N = len(Sc.mf); vmg = set()
    for k, it in enumerate(dma_wo(3)):
        g = 7 + 8 * k; place_vm(Sc, g, it); vmg.add(g)
    for c in range(8):
        gb = 64 * c + 47
        Sc.sh[gb] += [("wait", ("L", 41 + c + 1), None), "s_barrier"]
        if 1 <= c and c + 3 <= 8:
            for k, it in enumerate(dma_wo(c + 3)):
                g = gb + 8 + 8 * k; place_vm(Sc, g, it); vmg.add(g)
    swg = set()
    for p in range(17):
        for n in range(2):
            b = 16 * (2 * p + 2) + 8 * n
            cv, sw, st = oepi(p, n)
            for k, x in enumerate(cv): Sc.va[b + k].append(x)
            Sc.va[b + 5].append(sw[0]); Sc.va[b + 6].append(sw[1]); swg |= {b + 5, b + 6}
            Sc.sh[b + 4].append(st[0][0]); Sc.va[b + 7].append(st[1])
    for G in range(36):
        for h in range(4):
            g = 16 * G + 2 * h - 1
            if g >= 0: Sc.sh[g].append(("wait", None, ("W", G, h)))
        if G + 1 < 36:
            gs = [g for g in range(16 * G, 16 * G + 16) if g not in vmg and g not in swg]
            two = [g for g in gs if not Sc.va[g]]
            extra = 16 - len(gs)
            if extra > len(two): two = two + [g for g in range(16 * G + 7, 16 * G + 16, 8)] * 4
            gs = sorted(gs + two[:extra])
            for g, r in zip(gs, oreads(G + 1)): Sc.mem[g].append(r)
    return Sc

OPT = {}
def gen_k2(opt={}):
    OPT.clear(); OPT.update(opt)
    A = Asm()
    A.e("s_cmp_ge_u32 s2, 256\ns_cbranch_scc1 L2_end")
    A.stamp()
    A.e("s_load_dwordx8 s[4:11], s[0:1], 8\ns_load_dwordx2 s[12:13], s[0:1], 112")
    A.e(f"v_lshrrev_b32 v12, 6, v0\nv_and_b32 v0, 63, v0\nv_readfirstlane_b32 s{sW}, v12")
    hp = opt.get("heads_per_xcd", 4); lg = hp.bit_length() - 1; ng = 16 // hp
    A.e(f"s_and_b32 s3, s2, 7\ns_lshr_b32 s14, s2, 3")
    A.e(f"s_and_b32 s{sG}, s3, {ng-1}\ns_lshl_b32 s{sG}, s{sG}, {lg}\ns_and_b32 s15, s14, {hp-1}\ns_add_u32 s{sG}, s{sG}, s15")
    A.e(f"s_lshr_b32 s{sTb}, s3, {ng.bit_length()-1}\ns_mul_i32 s{sTb}, s{sTb}, {32//hp}\ns_lshr_b32 s15, s14, {lg}\ns_add_u32 s{sTb}, s{sTb}, s15")
    A.e(f"s_mul_i32 s{sW4}, s{sW}, {4*PIECE}\ns_add_u32 s{sW4}, s{sW4}, {RING}")
    A.e(f"v_lshlrev_b32 v{vX}, 4, v0\nv_lshl_add_u32 v{vKV}, v12, 12, v{vX}")
    A.e(f"v_lshrrev_b32 v13, 5, v0\nv_lshl_add_u32 v13, v12, 1, v13\nv_lshlrev_b32 v13, 15, v13\nv_and_b32 v14, 31, v0\nv_lshl_add_u32 v{vWq}, v14, 4, v13")
    A.e("s_waitcnt lgkmcnt(0)")
    A.e(f"s_lshl_b32 s3, s{sG}, 9"); A.srd(sWq, 8, 0, "s3"); A.e(f"s_sub_u32 s{sWq+2}, {576*8192}, s3")
    A.srd(sAS, 12, 8192)
    A.e(f"s_lshl_b32 s3, s{sTb}, 2\ns_add_u32 s3, s3, s{sW}\ns_mul_i32 s14, s3, 36864\ns_add_u32 s14, s14, {WS_XN}"); A.srd(sXn, 12, 36864, "s14")
    A.e(f"s_lshl_b32 m0, s{sW}, 10\ns_lshl_b32 s{sOff}, s{sW}, 10")
    A.vmem(f"buffer_load_dwordx4 v{vX}, {s(sAS,4)}, s{sOff} offen lds", "AS")
    A.e(f"s_add_u32 m0, m0, 4096\ns_add_u32 s{sOff}, s{sOff}, 4096")
    A.vmem(f"buffer_load_dwordx4 v{vX}, {s(sAS,4)}, s{sOff} offen lds", "AS")
    for c in range(5):
        for pre, ld in xload(c): A.items(pre + [ld])
        if c < 4: emit_dma(A, dmaL(c))
    A.e(f"s_mul_i32 s14, s3, {4*147456}\ns_mul_i32 s15, s{sG}, 9216\ns_add_u32 s14, s14, s15\ns_add_u32 s14, s14, {WS_PART}"); A.srd(sPt, 12, 0, "s14"); A.e(f"s_sub_u32 s{sPt+2}, {4*147456}, s15")
    A.e(f"s_lshl_b32 s3, s{sG}, 19"); A.srd(sK, 4, 524288, "s3"); A.srd(sV, 6, 524288, "s3")
    A.e(f"s_mul_i32 s3, s{sG}, 294912"); A.srd(sWo, 10, 294912, "s3")
    A.e(f"s_mov_b32 s{sPass}, 0")
    A.e(f"v_lshrrev_b32 v13, 4, v0\nv_lshlrev_b32 v{vAS}, 6, v13")
    A.e(f"v_lshrrev_b32 v14, 2, v0\nv_mul_u32_u24 v14, {PIECE}, v14\nv_add_u32 v14, {RING}, v14")
    A.e(f"v_and_b32 v15, 1, v0\nv_lshlrev_b32 v15, 4, v15\nv_add_u32 v{vT}, v14, v15\nv_and_b32 v15, 2, v0\nv_lshl_add_u32 v{vT}, v15, 2, v{vT}\nv_add_u32 v{vT2}, {2*SLOT}, v{vT}")
    A.e(f"v_lshrrev_b32 v14, 3, v0\nv_lshlrev_b32 v14, 2, v14\nv_add_u32 v14, v14, v12\nv_mul_u32_u24 v14, {4*1152}, v14\nv_and_b32 v15, 7, v0\nv_lshl_add_u32 v{vWo}, v15, 4, v14")
    A.e(f"v_lshlrev_b32 v{vPt}, 4, v15\nv_lshl_add_u32 v{vPt}, v13, 7, v{vPt}\nv_bfe_u32 v14, v0, 3, 1\nv_mul_u32_u24 v14, 147456, v14\nv_add_u32 v{vPt}, v{vPt}, v14")
    def init_kv_addr():
        A.e(f"v_lshrrev_b32 v14, 2, v0\nv_mul_u32_u24 v14, {PIECE}, v14\nv_and_b32 v15, 3, v0\nv_lshl_add_u32 v14, v15, 3, v14\nv_add_u32 v{vV}, {RING + 2*SLOT + HALF}, v14")
        A.e(f"v_and_b32 v14, 15, v0\nv_mul_u32_u24 v14, {PIECE}, v14\nv_lshrrev_b32 v15, 4, v0\nv_lshl_add_u32 v14, v15, 4, v14\nv_add_u32 v{vK}, {RING + 2*SLOT}, v14")
    init_kv_addr()
    A.e(f"v_and_b32 v14, 1, v0\nv_cmp_eq_u32 vcc, 0, v14\nv_mov_b32 v{vIdx}, 0xeeeeeeee\nv_mov_b32 v15, 0x44444444\nv_cndmask_b32 v{vIdx}, v{vIdx}, v15, vcc")
    A.e(f"v_and_b32 v14, 2, v0\nv_cmp_eq_u32 vcc, 0, v14\nv_mov_b32 v15, 0x3f803f80\ns_nop 0\nv_cndmask_b32 v15, 0, v15, vcc")
    for i in range(4): A.e(f"v_accvgpr_write_b32 a{aOne+i}, v15")
    A.stamp()
    A.wait(vm=("X", 0)); A.e("s_barrier"); A.stamp()
    A.items(as_reads(0, 0) + as_reads(0, 1))
    for q in range(4):
        A.wait(lg=("AS", 0, q)); A.items(modulate(0, q))
        if q < 3: A.items(as_reads(0, q + 2) if q < 2 else as_reads(1, 0))
    A.wait(vm=("L", 0)); A.e("s_barrier"); A.stamp()
    for G in range(QD): A.items(qreads(G))
    A.wait(lg=("A", 0))
    Sc, leftover, vmg = gen_qproj(A)
    N = len(Sc.mf)
    kv0 = kreads(0, ("K", 0)) + vreads(0, 0, ("V", 0))
    for g in range(N - 4 * QD, N):
        if g not in vmg: Sc.mem[g].append(kv0.pop(0))
    conv = []
    for t2 in range(8):
        for n in range(2):
            cv, sw = qconvert(2 * (t2 // 4) + n, t2 % 4)
            conv.append((512 + 8 * t2 + 7 + 5, cv, sw))
    pend = []
    for ready, cv, sw in conv: pend += [(ready, x) for x in cv]
    for g in range(512, N):
        if g not in vmg and len(Sc.mem[g]) < 2 and pend and pend[0][0] <= g: Sc.va[g].append(pend.pop(0)[1])
    Sc.emit(A, 0, 256); A.stamp(); Sc.emit(A, 256); A.stamp()
    emit_dma(A, leftover)
    A.items(kv0)
    A.items([x for _, x in pend]); A.e("s_nop 0")
    for _, cv, sw in conv: A.items(sw)
    A.wait(lg=(("K", 0), 0))
    for j in range(4):
        for t in range(4):
            d = S0 + 4 * j
            A.e(f"{MF} {v(d,4)}, {a(KF(0,t),4)}, {v(Q(j,t),4)}, {'0' if t == 0 else v(d,4)}")
    A.e("s_nop 1")
    for j in range(4):
        d = S0 + 4 * j
        A.e(f"v_max3_f32 v{d}, v{d}, v{d+1}, v{d+2}\nv_max_f32 v{d}, v{d}, v{d+3}")
    xmax_to_negm(A, [S0 + 4 * j for j in range(4)], BIAS)
    A.label("L2_entry")
    for i in range(16): A.e(f"v_accvgpr_write_b32 a{aL+i}, 0")
    for i in range(32): A.e(f"v_mov_b32 v{O(3,0)+i}, 0")
    A.e(f"s_mov_b32 s{sBase}, s{sW4}\ns_mov_b32 s{sDel}, {-2*SLOT}\ns_mov_b32 s{sCnt}, 15\ns_mov_b32 s{sT}, {3*16384}")
    A.wait(vm=("L", 10), lg=("V", 0)); A.e("s_barrier")
    A.stamp()
    gen_stage(0, "first", dma_kv_dyn(3, 1), opt).emit(A)
    def body(i):
        gen_stage(i, "A", dma_kv_dyn(i + 3, 0), opt).emit(A)
        Sb = gen_stage(i + 1, "B", dma_kv_dyn(i + 4, 1), opt)
        Sb.sh[128].append(f"s_sub_u32 s{sCnt}, s{sCnt}, 1"); Sb.sh[129].append(f"s_cmp_lg_u32 s{sCnt}, 0")
        Sb.emit(A)
    if opt.get("align_loop", 1): A.e(".p2align 5")
    A.label("L2_loop")
    n0 = len(A.L); body(1); n1 = len(A.L); body(3)
    assert A.L[n0:n1] == A.L[n1:], "loop body not in steady state"
    assert lint(A.L[n0:], "loop2x") == 0
    del A.L[n1:]
    def shift(t, d):
        if isinstance(t, tuple) and t[0] in ("L", "V"): return (t[0], t[1] + d)
        if isinstance(t, tuple) and isinstance(t[0], tuple): return ((t[0][0], t[0][1] + d), t[1])
        return t
    A.vm = [shift(t, 26) for t in A.vm]; A.lg = [shift(t, 26) for t in A.lg]
    A.vm = [("X", t[1]) if t[1] >= 41 else t for t in A.vm]
    A.e("s_cbranch_scc1 L2_loop")
    gen_stage(31, "last", dma_wo(0) + dma_wo(1) + dma_wo(2), opt).emit(A)
    A.stamp()
    A.e("s_nop 7")
    for j in range(4): A.e(f"v_accvgpr_read_b32 v{vTmp+j}, a{aL+4*j}\nv_accvgpr_read_b32 v{S0+j}, a{aL+4*j+1}")
    for j in range(4): A.e(f"v_add_f32 v{vTmp+j}, v{vTmp+j}, v{S0+j}")
    A.e(f"s_mov_b32 s3, {hex(f2u(2.0**60))}")
    for j in range(4): A.e(f"v_cmp_nlt_f32 {s(56+2*j,2)}, v{vTmp+j}, s3")
    A.e("s_or_b64 s[56:57], s[56:57], s[58:59]\ns_or_b64 s[60:61], s[60:61], s[62:63]\ns_or_b64 s[56:57], s[56:57], s[60:61]\ns_cselect_b32 s3, 1, 0")
    A.e(f"s_lshl_b32 s14, s{sW}, 2\ns_add_u32 s14, s14, {FLAG}\nv_mov_b32 v{S0}, s3\nv_mov_b32 v{S0+1}, s14\nv_mov_b32 v{S0+2}, {FLAG}")
    A.lds(f"ds_write_b32 v{S0+1}, v{S0}", "fw")
    for j in range(4): A.e(f"v_rcp_f32 v{vTmp+j}, v{vTmp+j}")
    A.wait(vm=("L", 41), lg="fw"); A.e("s_barrier")
    A.lds(f"ds_read_b128 {v(S0+4,4)}, v{S0+2}", "fr")
    A.items(oreads(0))
    for u in range(8):
        for n in range(2):
            o = OB(n, u); j = 2 * (u // 4) + n
            for i in range(8): A.e(f"v_mul_f32 v{o+i}, v{o+i}, v{vTmp+j}")
            for i in range(4): A.e(f"v_cvt_pk_bf16_f32 v{o+i}, v{o+2*i}, v{o+2*i+1}")
    A.wait(lg=("W", 0, 0))
    A.e(f"v_or3_b32 v{S0+4}, v{S0+4}, v{S0+5}, v{S0+6}\nv_or_b32 v{S0+4}, v{S0+4}, v{S0+7}\ns_nop 0\nv_readfirstlane_b32 s3, v{S0+4}\ns_nop 0")
    if opt.get("force_fallback"): A.e("s_mov_b32 s3, 1")
    A.e(f"s_andn2_b32 s3, s3, s{sPass}\ns_cbranch_scc1 L2_fallback")
    A.stamp()
    gen_oproj(A).emit(A)
    A.e("s_nop 7")
    for n in range(2):
        cv, sw, st = oepi(17, n)
        A.items(cv + ["s_nop 1"] + sw + st[0] + [st[1]])
    A.stamp()
    if A.stamping: A.e("s_waitcnt vmcnt(0)")
    A.stamp(); A.stamp_flush(1, WS_STAMP)
    A.label("L2_end")
    A.e("s_endpgm")
    A.label("L2_fallback")
    A.wait_all(); A.e("s_barrier")
    init_kv_addr()
    for j in range(4): A.e(f"v_mov_b32 v{P0+j}, 0xff800000")
    A.e(f"s_mov_b32 s{sPass}, 1\ns_mov_b32 s{sT}, 0")
    A.label("L2_fb_loop")
    emit_dma(A, dma_kv_static(None, (0,), 2))
    A.wait_all(); A.e("s_barrier")
    A.items(kreads(0, "fk")); A.wait_all(); A.e("s_barrier")
    for j in range(4):
        for kt in range(4):
            for t in range(4):
                d = S0 + 4 * kt
                A.e(f"{MF} {v(d,4)}, {a(KF(kt,t),4)}, {v(Q(j,t),4)}, {'0' if t == 0 else v(d,4)}")
        A.e("s_nop 7")
        for i in range(8): A.e(f"v_max3_f32 v{P0+j}, v{P0+j}, v{S0+2*i}, v{S0+2*i+1}")
    A.e(f"s_add_u32 s{sT}, s{sT}, 16384\ns_cmp_lt_u32 s{sT}, {32*16384}\ns_cbranch_scc1 L2_fb_loop")
    xmax_to_negm(A, [P0 + j for j in range(4)], 0.0)
    for i in range(3): emit_dma(A, dma_kv_static(i))
    A.wait_all(); A.e("s_barrier")
    A.items(kreads(0, "fk") + vreads(0, 0, "fv")); A.wait_all()
    A.e("s_branch L2_entry")
    return A, dict(name="attn_kernel", grid=256, block=256, lds=LDS_BYTES, vgpr=512, acc=256)
```

```python
from asmlib import *
from layout import *

def xsum_G(A, x, t):
    A.e(f"v_mov_b32 v{t}, v{x}\ns_nop 1\nv_permlane16_swap_b32 v{t}, v{x}\nv_add_f32 v{x}, v{x}, v{t}")
    A.e(f"v_mov_b32 v{t}, v{x}\ns_nop 1\nv_permlane32_swap_b32 v{t}, v{x}\nv_add_f32 v{x}, v{x}, v{t}")

def gen_k1(opt={}):
    A = Asm()
    nt = opt.get("k1_nt", "")
    A.e("s_cmp_ge_u32 s2, 236\ns_cbranch_scc1 L1_end")
    A.stamp()
    A.e("s_load_dwordx2 s[4:5], s[0:1], 0\ns_load_dwordx4 s[8:11], s[0:1], 80\ns_load_dwordx2 s[6:7], s[0:1], 112")
    A.e("s_waitcnt lgkmcnt(0)"); A.stamp()
    A.srd(12, 4, 2359296); A.srd(16, 8, 1152); A.srd(20, 10, 576 * 6912); A.srd(24, 6, WS_XN + 2359296)
    A.e("s_cmp_ge_u32 s2, 108\ns_cbranch_scc1 L1_ln")
    A.e("v_and_b32 v1, 3, v0\nv_lshrrev_b32 v2, 2, v0\nv_mul_u32_u24 v3, 6912, v2\nv_lshl_add_u32 v3, v1, 4, v3\nv_lshlrev_b32 v4, 1, v2")
    A.e("s_lshl_b32 s3, s2, 6")
    for i in range(6): A.vmem(f"buffer_load_ushort v{8+i}, v4, s[16:19], 0 offen offset:{192*i}", "c")
    for i in range(6):
        A.vmem(f"buffer_load_dwordx4 v[{16+4*i}:{19+4*i}], v3, s[20:23], s3 offen{nt}", ("w", i))
        if i < 5: A.e(f"s_add_u32 s3, s3, {96*6912}")
    A.e(f"s_mul_i32 s28, s2, 3641\ns_lshr_b32 s28, s28, 16")
    A.e("s_mul_i32 s29, s28, 18\ns_sub_u32 s29, s2, s29")
    A.e(f"s_mov_b32 s30, 1.0\ns_mov_b32 s31, 0\ns_cmp_lt_u32 s28, 2\ns_cselect_b32 s30, {hex(f2u(C0))}, s30")
    A.e(f"s_cmp_eq_u32 s28, 1\ns_cselect_b32 s31, {hex(f2u(C0))}, s31\ns_cmp_eq_u32 s28, 4\ns_cselect_b32 s31, 1.0, s31")
    A.wait(vm="c"); A.stamp()
    for i in range(6): A.e(f"v_lshlrev_b32 v{8+i}, 16, v{8+i}")
    for i in range(6): A.e(f"v_mul_f32 v{40+i}, {hex(f2u(-LOG2E))}, v{8+i}")
    for i in range(6): A.e(f"v_exp_f32 v{40+i}, v{40+i}")
    for i in range(6): A.e(f"v_add_f32 v{40+i}, 1.0, v{40+i}")
    for i in range(6): A.e(f"v_rcp_f32 v{40+i}, v{40+i}")
    for i in range(6): A.e(f"v_mul_f32 v{8+i}, v{8+i}, v{40+i}")
    for i in range(6):
        A.wait(vm=("w", i))
        for q in range(4):
            A.e(f"v_lshlrev_b32 v40, 16, v{16+4*i+q}\nv_and_b32 v41, 0xffff0000, v{16+4*i+q}")
            op = "v_mul_f32" if i == 0 else "v_fmac_f32"
            A.e(f"{op} v{48+2*q}, v40, v{8+i}\n{op} v{49+2*q}, v41, v{8+i}")
    A.stamp()
    for sh in (4, 8):
        A.e("s_nop 1")
        for q in range(8): A.e(f"v_add_f32_dpp v{48+q}, v{48+q}, v{48+q} row_ror:{sh} row_mask:0xf bank_mask:0xf")
    A.e("v_lshrrev_b32 v5, 4, v0\nv_lshlrev_b32 v5, 7, v5\nv_lshl_add_u32 v5, v1, 5, v5\nv_and_b32 v6, 15, v0")
    A.e("v_cmp_gt_u32 vcc, 4, v6\ns_nop 0\ns_and_saveexec_b64 s[32:33], vcc")
    A.e("ds_write_b128 v5, v[48:51]\nds_write_b128 v5, v[52:55] offset:16\ns_mov_b64 exec, s[32:33]")
    A.e("s_waitcnt lgkmcnt(0)\ns_barrier")
    A.e("v_readfirstlane_b32 s34, v0\ns_nop 0\ns_cmp_ge_u32 s34, 64\ns_cbranch_scc1 L1_end")
    A.e("v_and_b32 v6, 31, v0\nv_lshrrev_b32 v7, 5, v0\nv_mul_u32_u24 v7, 1536, v7\nv_lshl_add_u32 v7, v6, 2, v7")
    for i in range(12): A.e(f"ds_read_b32 v{16+i}, v7 offset:{128*i}")
    A.e("s_lshl_b32 s29, s29, 5\nv_add_u32 v6, s29, v6")
    A.e("v_lshrrev_b32 v8, 3, v6\nv_lshlrev_b32 v8, 6, v8\nv_and_b32 v9, 7, v6\nv_lshl_add_u32 v8, v9, 2, v8\nv_lshlrev_b32 v9, 2, v6")
    A.e(f"s_mul_i32 s35, s28, 2304\ns_add_u32 s35, s35, {WS_MOD - 2*2304}\ns_cmp_eq_u32 s28, 0\ns_cselect_b32 s35, 32, s35\ns_cmp_eq_u32 s28, 1\ns_cselect_b32 s35, 0, s35")
    A.e("s_cmp_lt_u32 s28, 2\ns_cselect_b64 vcc, -1, 0\nv_cndmask_b32 v8, v9, v8, vcc")
    A.e("s_waitcnt lgkmcnt(0)")
    for i in range(6): A.e(f"v_add_f32 v{16+i}, v{16+i}, v{22+i}")
    for i in range(3): A.e(f"v_add_f32 v{16+i}, v{16+i}, v{19+i}")
    A.e("v_add_f32 v16, v16, v17\nv_add_f32 v16, v16, v18")
    A.e("v_mov_b32 v17, v16\ns_nop 1\nv_permlane32_swap_b32 v17, v16\nv_add_f32 v16, v16, v17")
    A.e("v_mov_b32 v17, s31\nv_fma_f32 v16, v16, s30, v17")
    A.e("s_mov_b64 exec, 0xffffffff\nbuffer_store_dword v16, v8, s[24:27], s35 offen")
    A.stamp(); A.stamp_flush(0, WS_STAMP); A.nst = 2
    A.e("s_endpgm")
    A.label("L1_ln")
    A.vm = []
    A.e("s_sub_u32 s3, s2, 108\nv_lshrrev_b32 v1, 6, v0\nv_and_b32 v2, 15, v0\nv_bfe_u32 v3, v0, 4, 2")
    A.e("v_mul_u32_u24 v4, 1152, v2\nv_lshl_add_u32 v4, v3, 4, v4\nv_mul_u32_u24 v5, 192, v1\nv_add_u32 v4, v4, v5\ns_mul_i32 s28, s3, 18432")
    for i in range(3): A.vmem(f"buffer_load_dwordx4 v[{8+4*i}:{11+4*i}], v4, s[12:15], s28 offen offset:{64*i}{nt}", ("x", i))
    A.e("v_lshlrev_b32 v6, 5, v2\nv_lshl_add_u32 v7, v1, 2, v6")
    A.e(f"v_and_b32 v5, 63, v0\nv_lshlrev_b32 v5, 4, v5\nv_mul_u32_u24 v1, 3072, v1\nv_add_u32 v5, v5, v1\ns_add_u32 s28, s28, {WS_XN}")
    for i in range(3):
        A.wait(vm=("x", i))
        for q in range(4):
            A.e(f"v_lshlrev_b32 v{24+8*i+2*q}, 16, v{8+4*i+q}\nv_and_b32 v{25+8*i+2*q}, 0xffff0000, v{8+4*i+q}")
    A.stamp(); A.stamp()
    def reduce(x, off):
        xsum_G(A, x, 21)
        A.e(f"ds_write_b32 v7, v{x} offset:{off}\ns_waitcnt lgkmcnt(0)\ns_barrier")
        A.e(f"ds_read_b128 v[8:11], v6 offset:{off}\nds_read_b64 v[12:13], v6 offset:{off+16}\ns_waitcnt lgkmcnt(0)")
        A.e(f"v_add_f32 v8, v8, v9\nv_add_f32 v10, v10, v11\nv_add_f32 v12, v12, v13\nv_add_f32 v8, v8, v10\nv_add_f32 v{x}, v8, v12")
    A.e("v_add_f32 v20, v24, v25\nv_add_f32 v22, v26, v27")
    for i in range(4, 24, 2): A.e(f"v_add_f32 v20, v20, v{24+i}\nv_add_f32 v22, v22, v{25+i}")
    A.e("v_add_f32 v20, v20, v22")
    reduce(20, 0)
    A.e(f"v_mul_f32 v20, {hex(f2u(1/576))}, v20")
    for i in range(24): A.e(f"v_sub_f32 v{24+i}, v{24+i}, v20")
    A.e("v_mul_f32 v20, v24, v24\nv_mul_f32 v22, v25, v25")
    for i in range(2, 24, 2): A.e(f"v_fmac_f32 v20, v{24+i}, v{24+i}\nv_fmac_f32 v22, v{25+i}, v{25+i}")
    A.e("v_add_f32 v20, v20, v22")
    reduce(20, 512)
    A.e(f"v_mov_b32 v21, {hex(f2u(1e-5))}\nv_fmac_f32 v21, {hex(f2u(1/576))}, v20\nv_rsq_f32 v21, v21\ns_nop 0")
    for i in range(24): A.e(f"v_mul_f32 v{24+i}, v{24+i}, v21")
    for i in range(3):
        for q in range(4): A.e(f"v_cvt_pk_f16_f32 v{8+4*i+q}, v{24+8*i+2*q}, v{25+8*i+2*q}")
        A.e(f"buffer_store_dwordx4 v[{8+4*i}:{11+4*i}], v5, s[24:27], s28 offen offset:{1024*i}")
    A.stamp(); A.stamp_flush(0, WS_STAMP)
    A.label("L1_end")
    A.e("s_endpgm")
    return A, dict(name="front_kernel", grid=236, block=384, lds=3072, vgpr=64, acc=64)
```

```python
from asmlib import *
from layout import *
MF = "v_mfma_f32_16x16x32_bf16"

def gen_k3():
    A = Asm()
    A.e("s_cmp_ge_u32 s2, 256\ns_cbranch_scc1 L3_end")
    A.stamp()
    A.e("s_load_dwordx2 s[4:5], s[0:1], 0\ns_load_dwordx2 s[6:7], s[0:1], 48\ns_load_dwordx2 s[8:9], s[0:1], 96\ns_load_dwordx2 s[10:11], s[0:1], 112")
    A.e(f"v_lshlrev_b32 v1, 4, v0\ns_mul_i32 s3, s2, 147456\ns_add_u32 s3, s3, {WS_PART}")
    A.e("v_lshrrev_b32 v2, 3, v0\nv_and_b32 v3, 7, v0\nv_mul_u32_u24 v4, 1152, v3\nv_lshl_add_u32 v4, v2, 4, v4")
    A.e("v_lshlrev_b32 v5, 5, v2\nv_lshlrev_b32 v6, 4, v2\ns_mul_i32 s32, s2, 9216")
    A.e("s_waitcnt lgkmcnt(0)")
    A.srd(12, 10, 147456, "s3"); A.srd(16, 4, 2359296); A.srd(20, 6, 1152); A.srd(24, 8, 2359296); A.srd(28, 10, WS_H2 + 2359296)
    A.e("s_mov_b32 s3, 0")
    for g in range(16):
        A.vmem(f"buffer_load_dwordx4 {v(64+4*g,4)}, v1, s[12:15], s3 offen", ("p", g))
        if g < 15: A.e("s_add_u32 s3, s3, 9216")
    A.vmem(f"buffer_load_dwordx4 v[8:11], v4, s[16:19], s32 offen", "x")
    for m in range(4):
        A.e(f"s_mov_b32 s3, {WS_MOD + 2304*m}")
        for h in range(2): A.vmem(f"buffer_load_dwordx4 {v(24+8*m+4*h,4)}, v5, s[28:31], s3 offen offset:{16*h}", ("m", m))
    A.vmem(f"buffer_load_dwordx4 v[12:15], v6, s[20:23], 0 offen", "wr")
    GA, SB, CB, GB = 24, 32, 40, 48
    A.e("v_lshrrev_b32 v7, 6, v0\nv_lshlrev_b32 v3, 6, v3\nv_lshl_add_u32 v7, v7, 2, v3")
    for g in range(16):
        A.wait(vm=("p", g))
        for q in range(4):
            x = 64 + 4 * g + q
            if g == 0: A.e(f"v_lshlrev_b32 v{16+2*q}, 16, v{x}\nv_and_b32 v{17+2*q}, 0xffff0000, v{x}")
            else: A.e(f"v_lshlrev_b32 v56, 16, v{x}\nv_and_b32 v57, 0xffff0000, v{x}\nv_add_f32 v{16+2*q}, v{16+2*q}, v56\nv_add_f32 v{17+2*q}, v{17+2*q}, v57")
    A.stamp()
    A.wait(vm=("m", 0))
    for q in range(4):
        A.e(f"v_lshlrev_b32 v56, 16, v{8+q}\nv_and_b32 v57, 0xffff0000, v{8+q}")
        A.e(f"v_fma_f32 v{16+2*q}, v{16+2*q}, v{GA+2*q}, v56\nv_fma_f32 v{17+2*q}, v{17+2*q}, v{GA+2*q+1}, v57")
    def reduce(x, off):
        A.e(f"s_nop 1\nv_add_f32_dpp v{x}, v{x}, v{x} row_ror:8 row_mask:0xf bank_mask:0xf")
        for op in ("v_permlane16_swap_b32", "v_permlane32_swap_b32"):
            A.e(f"v_mov_b32 v57, v{x}\ns_nop 1\n{op} v57, v{x}\nv_add_f32 v{x}, v{x}, v57")
        A.e(f"ds_write_b32 v7, v{x} offset:{off}\ns_waitcnt lgkmcnt(0)\ns_barrier")
        A.e(f"ds_read_b128 v[64:67], v3 offset:{off}\nds_read_b128 v[68:71], v3 offset:{off+16}\nds_read_b32 v{x}, v3 offset:{off+32}\ns_waitcnt lgkmcnt(0)")
        for i in range(4): A.e(f"v_add_f32 v{64+i}, v{64+i}, v{68+i}")
        A.e(f"v_add_f32 v64, v64, v65\nv_add_f32 v66, v66, v67\nv_add_f32 v{x}, v{x}, v64\nv_add_f32 v{x}, v{x}, v66")
    A.e("v_add_f32 v56, v16, v17\nv_add_f32 v58, v18, v19\nv_add_f32 v59, v20, v21\nv_add_f32 v60, v22, v23\nv_add_f32 v56, v56, v58\nv_add_f32 v59, v59, v60\nv_add_f32 v56, v56, v59")
    reduce(56, 0)
    A.e(f"v_mul_f32 v56, {hex(f2u(1/576))}, v56")
    for i in range(8): A.e(f"v_sub_f32 v{72+i}, v{16+i}, v56")
    A.e("v_mul_f32 v56, v72, v72\nv_mul_f32 v58, v73, v73")
    for i in range(2, 8, 2): A.e(f"v_fmac_f32 v56, v{72+i}, v{72+i}\nv_fmac_f32 v58, v{73+i}, v{73+i}")
    A.e("v_add_f32 v56, v56, v58")
    reduce(56, 512)
    A.e(f"v_mov_b32 v57, {hex(f2u(1e-5))}\nv_fmac_f32 v57, {hex(f2u(1/576))}, v56\nv_rsq_f32 v57, v57")
    A.wait(vm="wr")
    for i in range(8): A.e(f"v_mul_f32 v{72+i}, v{72+i}, v57")
    for i in range(8): A.e(f"v_fma_f32 v{72+i}, v{72+i}, v{CB+i}, v{SB+i}")
    for i in range(8): A.e(f"v_fmac_f32 v{16+i}, v{72+i}, v{GB+i}")
    for q in range(4): A.e(f"v_cvt_pk_bf16_f32 v{8+q}, v{16+2*q}, v{17+2*q}")
    for q in range(4): A.e(f"v_cvt_pk_bf16_f32 v{80+q}, v{72+2*q}, v{73+2*q}")
    A.e(f"buffer_store_dwordx4 v[8:11], v4, s[24:27], s32 offen\ns_add_u32 s33, s32, {WS_H2}\nbuffer_store_dwordx4 v[80:83], v4, s[28:31], s33 offen")
    for q in range(4):
        A.e(f"v_lshlrev_b32 v58, 16, v{12+q}\nv_and_b32 v59, 0xffff0000, v{12+q}")
        op = "v_mul_f32" if q == 0 else "v_fmac_f32"
        A.e(f"{op} v56, v58, v{72+2*q}\n{op} v60, v59, v{73+2*q}")
    A.e("v_add_f32 v56, v56, v60")
    reduce(56, 1024)
    A.e("s_lshl_b32 s3, s2, 3\nv_add_u32 v58, s3, v0\nv_sub_u32 v59, 2047, v58\nv_lshlrev_b32 v58, 2, v58")
    A.e("v_ashrrev_i32 v60, 31, v56\nv_or_b32 v60, 0x80000000, v60\nv_xor_b32 v60, v60, v56\nv_and_b32 v60, 0xfffff800, v60\nv_or_b32 v60, v60, v59")
    A.e("v_cmp_gt_u32 vcc, 8, v0\ns_nop 0\ns_and_saveexec_b64 s[34:35], vcc\ns_cbranch_execz L3_end")
    A.e(f"s_mov_b32 s3, {WS_R}\nbuffer_store_dword v56, v58, s[28:31], s3 offen\ns_mov_b32 s3, {WS_KEY}\nbuffer_store_dword v60, v58, s[28:31], s3 offen")
    A.stamp(); A.stamp_flush(2, WS_STAMP)
    A.label("L3_end"); A.e("s_endpgm")
    return A, dict(name="mid_kernel", grid=256, block=576, lds=2048, vgpr=128, acc=128)

def top2_wave(A, m1, m2, t1, t2):
    def merge():
        A.e(f"v_max_u32 v{m2}, v{m2}, v{t2}\nv_med3_u32 v{m2}, v{m1}, v{t1}, v{m2}\nv_max_u32 v{m1}, v{m1}, v{t1}")
    for sh in (1, 2, 4, 8):
        A.e(f"s_nop 1\nv_mov_b32_dpp v{t1}, v{m1} row_ror:{sh} row_mask:0xf bank_mask:0xf\nv_mov_b32_dpp v{t2}, v{m2} row_ror:{sh} row_mask:0xf bank_mask:0xf")
        merge()
    for op in ("v_permlane16_swap_b32", "v_permlane32_swap_b32"):
        A.e(f"v_mov_b32 v{t1}, v{m1}\nv_mov_b32 v{t2}, v{m2}\ns_nop 0\n{op} v{t1}, v{m1}\n{op} v{t2}, v{m2}")
        merge()

def gen_k4(opt={}):
    A = Asm()
    nt = opt.get("k4_nt", "")
    LG, LU, LD, LX = 0, 36864, 73728, 110592
    A.e("s_cmp_ge_u32 s2, 144\ns_cbranch_scc1 L4_end")
    A.stamp()
    A.e("s_load_dwordx4 s[4:7], s[0:1], 56\ns_load_dwordx2 s[8:9], s[0:1], 72\ns_load_dwordx2 s[10:11], s[0:1], 112")
    A.e("v_lshrrev_b32 v12, 6, v0\nv_and_b32 v0, 63, v0\nv_readfirstlane_b32 s33, v12")
    A.e("v_lshlrev_b32 v1, 4, v0\nv_lshrrev_b32 v2, 2, v0\nv_mul_u32_u24 v2, 9216, v2\nv_and_b32 v3, 3, v0\nv_lshl_add_u32 v2, v3, 4, v2")
    A.e("s_waitcnt lgkmcnt(0)")
    A.srd(12, 4, 576 * 9216); A.srd(16, 6, 576 * 9216); A.srd(20, 8, 4608 * 1152); A.srd(24, 10, WS_H2 + 2359296)
    A.e(f"s_mov_b32 s3, {WS_KEY}")
    for i in range(8):
        A.vmem(f"buffer_load_dwordx4 {v(16+4*i,4)}, v1, s[24:27], s3 offen offset:{1024*(i%4)}", ("k", i))
        if i == 3: A.e("s_add_u32 s3, s3, 4096")
    A.e(f"s_mul_i32 s34, s33, 9216\ns_mul_i32 s35, s33, {9*16*9216}\ns_lshl_b32 s3, s2, 6\ns_add_u32 s35, s35, s3\ns_mul_i32 s36, s2, 36864\ns_add_u32 s36, s36, s34")
    for i in range(9):
        A.e(f"s_add_u32 m0, s34, {LG + 1024*i}\ns_nop 0"); A.vmem(f"buffer_load_dwordx4 v2, s[12:15], s35 offen{nt} lds", "gu")
        A.e(f"s_add_u32 m0, s34, {LU + 1024*i}\ns_nop 0"); A.vmem(f"buffer_load_dwordx4 v2, s[16:19], s35 offen{nt} lds", "gu")
        A.e(f"s_add_u32 s35, s35, {16*9216}")
    for i in range(9):
        A.e(f"s_add_u32 m0, s34, {LD + 1024*i}\ns_nop 0"); A.vmem(f"buffer_load_dwordx4 v1, s[20:23], s36 offen{nt} lds", "dn")
        A.e("s_add_u32 s36, s36, 1024")
    A.e("v_mov_b32 v4, 0\nv_mov_b32 v5, 0")
    for i in range(8):
        A.wait(vm=("k", i))
        for q in range(4): A.e(f"v_med3_u32 v5, v4, v5, v{16+4*i+q}\nv_max_u32 v4, v4, v{16+4*i+q}")
    A.stamp()
    top2_wave(A, 4, 5, 6, 7)
    A.e("v_and_b32 v6, 1, v0\nv_cmp_eq_u32 vcc, 0, v6\ns_nop 1\nv_cndmask_b32 v4, v5, v4, vcc\nv_and_b32 v4, 0x7ff, v4\nv_sub_u32 v4, 2047, v4")
    A.e(f"v_lshrrev_b32 v7, 4, v0\nv_mul_u32_u24 v5, 1152, v4\nv_lshl_add_u32 v5, v7, 4, v5\ns_mov_b32 s3, {WS_H2}")
    for kk in range(18): A.vmem(f"buffer_load_dwordx4 {v(16+4*kk,4)}, v5, s[24:27], s3 offen offset:{64*kk}", ("h", kk))
    A.e(f"s_or_b32 s37, s2, s33\ns_cmp_eq_u32 s37, 0\ns_cselect_b32 s37, 2, 0\nv_cmp_gt_u32 vcc, s37, v0\nv_lshlrev_b32 v8, 2, v0\nv_add_u32 v8, {WS_IDX}, v8\nv_cndmask_b32 v8, -1, v8, vcc")
    A.vmem("buffer_store_dword v4, v8, s[24:27], 0 offen", "i")
    A.e("v_bfe_u32 v8, v0, 2, 2\nv_lshl_add_u32 v8, v7, 3, v8\nv_lshlrev_b32 v9, 6, v8\nv_lshl_add_u32 v9, v3, 3, v9")
    A.e(f"s_lshr_b32 s37, s33, 1\ns_mul_i32 s37, s37, {LU}\ns_and_b32 s38, s33, 1\ns_lshl_b32 s38, s38, 5\ns_add_u32 s37, s37, s38\nv_add_u32 v9, s37, v9")
    A.e(f"v_mul_u32_u24 v10, 1152, v8\nv_lshl_add_u32 v10, v3, 3, v10\ns_mul_i32 s37, s33, 288\ns_add_u32 s37, s37, {LD}\nv_add_u32 v10, s37, v10")
    A.stamp()
    A.wait(vm="dn"); A.e("s_barrier"); A.stamp()
    for kk in range(18):
        for b in range(2): A.lds(f"ds_read_b64_tr_b16 {a(4*kk+2*b,2)}, v9 offset:{2048*kk + 256*b}", ("a", kk))
    for nt in range(9):
        for b in range(2): A.lds(f"ds_read_b64_tr_b16 {a(72+4*nt+2*b,2)}, v10 offset:{32*nt + 4608*b}", "d")
    for kk in range(18):
        A.wait(vm=("h", kk), lg=("a", kk))
        A.e(f"{MF} v[88:91], {a(4*kk,4)}, {v(16+4*kk,4)}, {'0' if kk == 0 else 'v[88:91]'}")
    A.stamp()
    A.e(f"v_lshlrev_b32 v11, 7, v6\nv_lshl_add_u32 v13, v7, 5, v11\nv_add_u32 v13, {LX}, v13")
    A.e(f"v_lshl_add_u32 v11, v7, 4, v11\ns_lshr_b32 s37, s33, 1\ns_lshl_b32 s37, s37, 8\ns_lshl_b32 s38, s38, 1\ns_add_u32 s37, s37, s38\ns_add_u32 s37, s37, {LX}\nv_add_u32 v11, s37, v11")
    A.lds("ds_write_b128 v11, v[88:91]", "x"); A.wait(lg="x"); A.e("s_barrier")
    for i in range(4): A.lds(f"ds_read_b128 {v(16+4*i,4)}, v13 offset:{(i//2)*256 + (i%2)*16}", "y")
    A.wait(lg="y")
    for i in range(8): A.e(f"v_mul_f32 v{32+i}, {hex(f2u(-LOG2E))}, v{16+i}")
    for i in range(8): A.e(f"v_exp_f32 v{32+i}, v{32+i}")
    for i in range(8): A.e(f"v_add_f32 v{32+i}, 1.0, v{32+i}")
    for i in range(8): A.e(f"v_rcp_f32 v{32+i}, v{32+i}")
    for i in range(8): A.e(f"v_mul_f32 v{16+i}, v{16+i}, v{32+i}")
    for i in range(8): A.e(f"v_mul_f32 v{16+i}, v{16+i}, v{24+i}")
    for q in range(4): A.e(f"v_cvt_pk_bf16_f32 v{40+q}, v{16+2*q}, v{17+2*q}")
    A.e("v_mul_u32_u24 v8, 2304, v6\nv_lshl_add_u32 v8, v7, 4, v8\nv_and_b32 v9, 15, v0\nv_cmp_gt_u32 vcc, 2, v9")
    A.e(f"s_mul_i32 s3, s2, 4608\ns_mul_i32 s37, s33, 576\ns_add_u32 s3, s3, s37\ns_add_u32 s3, s3, {WS_YP}")
    for nt in range(9): A.e(f"{MF} {v(48+4*nt,4)}, {a(72+4*nt,4)}, v[40:43], 0")
    A.e("s_and_saveexec_b64 s[40:41], vcc")
    for nt in range(9):
        if nt == 1: A.e("s_nop 7")
        A.e(f"buffer_store_dwordx4 {v(48+4*nt,4)}, v8, s[24:27], s3 offen offset:{64*nt}")
    A.stamp(); A.stamp_flush(3, WS_STAMP)
    A.label("L4_end"); A.e("s_endpgm")
    return A, dict(name="ffn_kernel", grid=144, block=256, lds=LX + 512, vgpr=256, acc=128)

def gen_k5():
    A = Asm()
    A.e("s_cmp_ge_u32 s2, 36\ns_cbranch_scc1 L5_end")
    A.stamp()
    A.e("s_load_dwordx2 s[8:9], s[0:1], 96\ns_load_dwordx2 s[10:11], s[0:1], 112")
    A.e("v_and_b32 v1, 31, v0\nv_lshrrev_b32 v2, 5, v0\nv_mul_u32_u24 v3, 82944, v2\nv_lshl_add_u32 v3, v1, 2, v3")
    A.e(f"s_lshl_b32 s3, s2, 7\ns_add_u32 s3, s3, {WS_YP}\ns_cmp_ge_u32 s2, 18\ns_cselect_b32 s28, 1, 0\ns_mul_i32 s29, s28, 18\ns_sub_u32 s29, s2, s29")
    A.e("s_waitcnt lgkmcnt(0)")
    A.srd(12, 8, 2359296); A.srd(16, 10, WS_XN)
    A.e(f"s_lshl_b32 s28, s28, 2\ns_add_u32 s28, s28, {WS_IDX}\nv_mov_b32 v4, s28")
    A.vmem("buffer_load_dword v5, v4, s[16:19], 0 offen", "i")
    for i in range(18):
        A.vmem(f"buffer_load_dword v{16+i}, v3, s[16:19], s3 offen", "p")
        A.e("s_add_u32 s3, s3, 4608")
    A.e(f"s_lshl_b32 s29, s29, 5\nv_add_u32 v6, s29, v1\nv_lshlrev_b32 v7, 2, v6\ns_mov_b32 s30, {WS_MOD + 3*2304}")
    A.vmem("buffer_load_dword v8, v7, s[16:19], s30 offen", "gb")
    A.wait(vm="i")
    A.e(f"v_and_b32 v5, 0x7ff, v5\nv_lshlrev_b32 v9, 2, v5\nv_mul_u32_u24 v10, 1152, v5\nv_lshl_add_u32 v10, v6, 1, v10\ns_mov_b32 s30, {WS_R}")
    A.vmem("buffer_load_dword v11, v9, s[16:19], s30 offen", "r")
    A.vmem("buffer_load_ushort v12, v10, s[12:15], 0 offen", "o")
    A.wait(vm="p"); A.stamp()
    for i in range(9): A.e(f"v_add_f32 v{16+i}, v{16+i}, v{25+i}")
    for i in range(4): A.e(f"v_add_f32 v{16+i}, v{16+i}, v{20+i}")
    A.e("v_add_f32 v16, v16, v17\nv_add_f32 v18, v18, v19\nv_add_f32 v16, v16, v24\nv_add_f32 v16, v16, v18")
    A.e("v_lshlrev_b32 v13, 5, v1\nv_lshl_add_u32 v14, v2, 2, v13\nds_write_b32 v14, v16\ns_waitcnt lgkmcnt(0)\ns_barrier")
    A.e("ds_read_b128 v[16:19], v13\nds_read_b128 v[20:23], v13 offset:16")
    A.wait(vm="o")
    A.e(f"v_mul_f32 v11, {hex(f2u(-LOG2E))}, v11\nv_exp_f32 v11, v11\nv_lshlrev_b32 v12, 16, v12\nv_add_f32 v11, 1.0, v11\nv_rcp_f32 v11, v11\ns_waitcnt lgkmcnt(0)")
    for i in range(4): A.e(f"v_add_f32 v{16+i}, v{16+i}, v{20+i}")
    A.e("v_add_f32 v16, v16, v17\nv_add_f32 v18, v18, v19\nv_add_f32 v16, v16, v18\nv_mul_f32 v16, v16, v11\nv_fmac_f32 v12, v16, v8\nv_cvt_pk_bf16_f32 v12, v12, v12")
    A.e("v_cmp_gt_u32 vcc, 32, v0\ns_nop 0\ns_and_saveexec_b64 s[34:35], vcc\ns_cbranch_execz L5_end")
    A.e("buffer_store_short v12, v10, s[12:15], 0 offen")
    A.stamp(); A.stamp_flush(4, WS_STAMP)
    A.label("L5_end"); A.e("s_endpgm")
    return A, dict(name="fin_kernel", grid=36, block=256, lds=1024, vgpr=64, acc=64)
```

```python
import re, struct

def f2u(x): return struct.unpack("<I", struct.pack("<f", x))[0]
def v(i, n=1): return f"v{i}" if n == 1 else f"v[{i}:{i+n-1}]"
def a(i, n=1): return f"a{i}" if n == 1 else f"a[{i}:{i+n-1}]"
def s(i, n=1): return f"s{i}" if n == 1 else f"s[{i}:{i+n-1}]"

class Asm:
    def __init__(self):
        self.L = []; self.vm = []; self.lg = []
    def e(self, txt):
        for l in txt.split("\n"):
            l = l.strip()
            if l: self.L.append(l)
    def label(self, n): self.L.append(n + ":")
    def vmem(self, txt, tag=None): self.e(txt); self.vm.append(tag)
    def lds(self, txt, tag=None): self.e(txt); self.lg.append(tag)
    def _need(self, q, tag):
        idx = -1
        for i, t in enumerate(q):
            if t == tag: idx = i
        return idx
    def wait(self, vm=None, lg=None):
        parts = []
        for q, tags, name, mx in ((self.vm, vm, "vmcnt", 63), (self.lg, lg, "lgkmcnt", 15)):
            if tags is None: continue
            if not isinstance(tags, list): tags = [tags]
            idx = max(self._need(q, t) for t in tags)
            if idx < 0: continue
            n = min(len(q) - 1 - idx, mx)
            parts.append(f"{name}({n})")
            del q[:len(q) - n]
        if parts: self.e("s_waitcnt " + " ".join(parts))
    def wait_all(self, vm=True, lg=True):
        parts = []
        if vm: parts.append("vmcnt(0)"); self.vm = []
        if lg: parts.append("lgkmcnt(0)"); self.lg = []
        self.e("s_waitcnt " + " ".join(parts))
    def item(self, it):
        if isinstance(it, str): self.e(it)
        elif callable(it): it()
        elif it[0] == "vm": self.vmem(it[1], it[2])
        elif it[0] == "lds": self.lds(it[1], it[2])
        elif it[0] == "wait": self.wait(it[1], it[2])
        else: raise ValueError(it)
    def items(self, its):
        for it in its: self.item(it)
    def srd(self, d, base, size, off=None):
        if off is None:
            self.e(f"s_mov_b32 s{d}, s{base}\ns_mov_b32 s{d+1}, s{base+1}")
        else:
            self.e(f"s_add_u32 s{d}, s{base}, {off}\ns_addc_u32 s{d+1}, s{base+1}, 0")
        self.e(f"s_mov_b32 s{d+2}, {size}\ns_mov_b32 s{d+3}, 0x20000")
    stamping = False
    stamp_agpr = None
    def fstamp(self):
        if self.stamping == 2: self.stamp()
    def stamp(self):
        if not self.stamping: return
        if self.stamping == 2 and getattr(self, "nst", 0) >= 20: return
        n = getattr(self, "nst", 0); self.nst = n + 1
        self.e("s_memtime s[92:93]\ns_memrealtime s[94:95]\ns_waitcnt lgkmcnt(0)"); self.lg = []
        if self.stamp_agpr is None:
            assert n < 14; self.e(f"s_mov_b32 s{64+2*n}, s92\ns_mov_b32 s{65+2*n}, s94")
        else:
            assert n < 21; self.e(f"v_accvgpr_write_b32 a{self.stamp_agpr+2*n}, s92\nv_accvgpr_write_b32 a{self.stamp_agpr+2*n+1}, s94")
    def stamp_flush(self, kid, off, sw=None):
        if not self.stamping: return
        self.e("s_mov_b64 exec, 1\ns_load_dwordx2 s[60:61], s[0:1], 112\ns_waitcnt lgkmcnt(0)")
        self.e(f"s_mov_b32 s62, 0x10000000\ns_mov_b32 s63, 0x20000\ns_lshl_b32 s59, s2, 10\ns_add_u32 s59, s59, {off + kid * 524288}\nv_mov_b32 v0, 0")
        if sw is not None: self.e(f"s_lshl_b32 s58, s{sw}, 8\ns_add_u32 s59, s59, s58")
        for i in range(2 * self.nst):
            self.e(f"v_mov_b32 v1, s{64+i}" if self.stamp_agpr is None else f"v_accvgpr_read_b32 v1, a{self.stamp_agpr+i}")
            self.e(f"buffer_store_dword v1, v0, s[60:63], s59 offen offset:{4*i}")
    def text(self): return "\n".join(("" if l.endswith(":") or l.startswith(".") else "    ") + l for l in self.L) + "\n"

class Sched:
    def __init__(self):
        self.mf = []; self.sh = []; self.mem = []; self.va = []
    def mfma(self, txt):
        self.mf.append(txt); self.sh.append([]); self.mem.append([]); self.va.append([]); return len(self.mf) - 1
    def emit(self, A, lo=0, hi=None):
        for i in range(lo, len(self.mf) if hi is None else hi):
            if self.mf[i]: A.e(self.mf[i])
            A.items(self.sh[i]); A.items(self.mem[i]); A.items(self.va[i])

_REG = re.compile(r"\b([vas])(\d+)\b|\b([vas])\[(\d+):(\d+)\]|\b(vcc|exec|m0)\b")
def regs(tok):
    out = set()
    for m in _REG.finditer(tok):
        if m.group(1): out.add(m.group(1) + m.group(2))
        elif m.group(3): out |= {m.group(3) + str(i) for i in range(int(m.group(4)), int(m.group(5)) + 1)}
        else: out.add(m.group(6))
    return out
TRANS = ("v_exp_", "v_log_", "v_rcp_", "v_rsq_", "v_sqrt_", "v_sin_", "v_cos_")
class I:
    def __init__(self, line, n):
        self.line = line; self.n = n
        p = line.split(None, 1); self.op = op = p[0]
        ops = [x.strip() for x in (p[1].split(",") if len(p) > 1 else [])]
        self.ops = ops
        self.mfma = op.startswith(("v_mfma", "v_smfmac"))
        self.valu = op.startswith("v_") and not self.mfma
        self.vmem = op.startswith(("buffer_", "global_"))
        self.ds = op.startswith("ds_")
        self.salu = op.startswith("s_")
        self.ws = int(ops[0]) + 1 if op == "s_nop" else 1
        R = [regs(o) for o in ops]
        allr = set().union(*R) if R else set()
        self.W = set(); self.R = set(); self.C = set(); self.data = set()
        if self.mfma:
            self.W = R[0]; self.AB = R[1] | R[2]
            if op.startswith("v_smfmac"): self.C = R[0]; self.AB |= R[3]
            else: self.C = R[3]
            self.R = self.AB | self.C
            self.passes = 8 if "32x32" in op else 4
        elif self.valu:
            self.W = set(R[0]); self.R = set().union(*R[1:]) if len(R) > 1 else set()
            if "swap" in op: self.W = R[0] | R[1]; self.R = R[0] | R[1]
            if op.startswith(("v_fmac", "v_dot2c", "v_writelane")): self.R |= R[0]
            if "dpp" in op or "row_" in line or "quad_perm" in line: self.R |= R[0]
            if op.startswith(("v_add_co", "v_addc_co", "v_sub_co")): self.W |= R[1]
            if op.startswith("v_cmpx"): self.W.add("exec")
        elif self.vmem:
            lds = bool(re.search(r"\blds\b", line)) or "_lds_" in op
            if "load" in op and not lds: self.W = R[0]; self.R = set().union(*R[1:])
            elif "atomic" in op and "sc0" in line: self.W = R[0]; self.R = allr
            else: self.R = set(allr)
            if lds: self.R.add("m0")
            if "store" in op and ("x4" in op or "x3" in op): self.data = R[0] if op.startswith("buffer") else R[1]
        elif self.ds:
            if "read" in op or "permute" in op or "swizzle" in op or "_rtn" in op: self.W = R[0]; self.R = set().union(*R[1:])
            else: self.R = allr
        elif self.salu:
            if op.startswith(("s_cmp", "s_cbranch", "s_branch", "s_wait", "s_nop", "s_barrier", "s_endpgm", "s_sleep", "s_setprio", "s_bitcmp")): self.R = allr
            else:
                self.W = set(R[0]) if R else set(); self.R = set().union(*R[1:]) if len(R) > 1 else set()
                if "saveexec" in op: self.W.add("exec")

def need(p, c):
    n = 0
    def up(cond, k):
        nonlocal n
        if cond: n = max(n, k)
    isv = lambda S: {r for r in S if r[0] in "va" and r != "vcc"}
    iss = lambda S: {r for r in S if r[0] == "s" or r == "vcc"}
    if p.valu:
        wv, wsg = isv(p.W), iss(p.W)
        up(c.mfma and wv & c.R, 2)
        up(p.op.startswith(TRANS) and c.valu and wv & c.R, 1)
        up(p.op.startswith(TRANS) and (c.vmem or c.ds) and wv & c.R, 1)
        up(c.valu and "permlane" in c.op and wv & c.R, 2)
        up(c.valu and ("dpp" in c.op or "row_" in c.line or "quad_perm" in c.line) and wv & c.R, 2)
        up(c.op.startswith(("v_readfirstlane", "v_readlane")) and wv & c.R, 1)
        up(c.vmem and wsg & c.R, 5)
        up(c.valu and wsg & c.R, 2)
        up(c.op.startswith(("v_readlane", "v_writelane")) and wsg & c.R, 4)
        up(c.salu and wsg & c.R, 1)
        up("exec" in p.W and (c.mfma or "permlane" in c.op or c.op.startswith(("v_readfirstlane", "v_readlane"))), 4)
        up("exec" in p.W and ("dpp" in c.op or "row_" in c.line), 5)
        up(("sdwa" in p.op or ("op_sel:" in p.line and "mixhi" in p.op)) and c.valu and wv & c.R, 1)
        up(p.op.startswith("v_dot") and (c.valu or c.mfma or c.vmem or c.ds) and wv & (c.R | c.W) and not (c.op == p.op and not (wv & regs(",".join(c.ops[1:3])))), 3)
    if p.mfma:
        big = {4: 8, 8: 12}[p.passes]
        if c.mfma:
            up(p.W & c.AB, big)
            up(p.W & c.C and not (p.W == c.C and p.passes == c.passes), big - 2)
            up(p.W & c.W and not (p.W & c.C), big - 2)
        else:
            up(p.W & (c.R | c.W), big)
            up(c.valu and p.C & c.W, p.passes - 1)
    if p.salu: up("m0" in p.W and c.vmem and "m0" in c.R, 1)
    if p.data: up(p.data & c.W, 2)
    return n

def lint(lines, name=""):
    ins = [I(l, i) for i, l in enumerate(lines) if not (l.endswith(":") or l.startswith((".", ";")))]
    bad = 0
    for j, c in enumerate(ins):
        d = 0
        for i in range(j - 1, max(-1, j - 14), -1):
            p = ins[i]
            k = need(p, c)
            if k > d:
                print(f"HAZARD[{name}] need {k} have {d}: [{p.n}] {p.line}  ->  [{c.n}] {c.line}"); bad += 1
            d += p.ws
            if d >= 12: break
    return bad

def estimate(lines):
    t = 0; mf_ready = 0; vec_free = 0; n = 0; broken = 0; prevD = None; last_issue = -99
    for l in lines:
        if l.endswith(":") or l.startswith("."): continue
        i = I(l, 0); op = i.op
        if i.mfma:
            t = max(t, mf_ready, vec_free)
            if prevD is not None and prevD == i.C and t != last_issue + 16: broken += 1
            last_issue = t; prevD = i.W
            mf_ready = t + 16; vec_free = t + 8; t += 4; n += 1
        elif i.salu:
            t += 4 * i.ws
        else:
            c = 8 if (op.startswith(TRANS) or "swap" in op) else 4
            if i.vmem: c = 20 if "store" in op else 8
            if op.startswith("v_pk_"): t = max(t, mf_ready)
            t = max(t, vec_free); vec_free = t + c; t += 4
    return max(t, vec_free, mf_ready), n, broken
```

```python
from asmlib import *
from layout import *

def xsum_G(A, x, t):
    A.e(f"v_mov_b32 v{t}, v{x}\ns_nop 1\nv_permlane16_swap_b32 v{t}, v{x}\nv_add_f32 v{x}, v{x}, v{t}")
    A.e(f"v_mov_b32 v{t}, v{x}\ns_nop 1\nv_permlane32_swap_b32 v{t}, v{x}\nv_add_f32 v{x}, v{x}, v{t}")

def gen_k1(opt={}):
    A = Asm()
    nt = opt.get("k1_nt", "")
    A.e("s_cmp_ge_u32 s2, 256\ns_cbranch_scc1 L1_end")
    A.stamp()
    A.e("s_load_dwordx2 s[4:5], s[0:1], 0\ns_load_dwordx4 s[8:11], s[0:1], 80\ns_load_dwordx2 s[6:7], s[0:1], 112\ns_load_dwordx2 s[36:37], s[0:1], 48")
    A.e("s_waitcnt lgkmcnt(0)"); A.stamp()
    A.srd(12, 4, 2359296); A.srd(16, 8, 1152); A.srd(20, 10, 576 * 6912); A.srd(24, 6, WS_XN + 2359296)
    A.srd(40, 36, 1152)
    A.e("s_cmp_ge_u32 s2, 236\ns_cbranch_scc1 L1_clr")
    A.e("s_cmp_ge_u32 s2, 108\ns_cbranch_scc1 L1_ln")
    A.e("v_and_b32 v1, 3, v0\nv_lshrrev_b32 v2, 2, v0\nv_mul_u32_u24 v3, 6912, v2\nv_lshl_add_u32 v3, v1, 4, v3\nv_lshlrev_b32 v4, 1, v2")
    A.e("s_lshl_b32 s3, s2, 6")
    for i in range(6): A.vmem(f"buffer_load_ushort v{8+i}, v4, s[16:19], 0 offen offset:{192*i}", "c")
    for i in range(6):
        A.vmem(f"buffer_load_dwordx4 v[{16+4*i}:{19+4*i}], v3, s[20:23], s3 offen{nt}", ("w", i))
        if i < 5: A.e(f"s_add_u32 s3, s3, {96*6912}")
    A.e(f"s_mul_i32 s28, s2, 3641\ns_lshr_b32 s28, s28, 16")
    A.e("s_mul_i32 s29, s28, 18\ns_sub_u32 s29, s2, s29")
    A.e(f"s_mov_b32 s30, 1.0\ns_mov_b32 s31, 0\ns_cmp_lt_u32 s28, 2\ns_cselect_b32 s30, {hex(f2u(C0))}, s30")
    A.e(f"s_cmp_eq_u32 s28, 1\ns_cselect_b32 s31, {hex(f2u(C0))}, s31\ns_cmp_eq_u32 s28, 4\ns_cselect_b32 s31, 1.0, s31")
    A.wait(vm="c"); A.stamp()
    for i in range(6): A.e(f"v_lshlrev_b32 v{8+i}, 16, v{8+i}")
    for i in range(6): A.e(f"v_mul_f32 v{40+i}, {hex(f2u(-LOG2E))}, v{8+i}")
    for i in range(6): A.e(f"v_exp_f32 v{40+i}, v{40+i}")
    for i in range(6): A.e(f"v_add_f32 v{40+i}, 1.0, v{40+i}")
    for i in range(6): A.e(f"v_rcp_f32 v{40+i}, v{40+i}")
    for i in range(6): A.e(f"v_mul_f32 v{8+i}, v{8+i}, v{40+i}")
    for i in range(6):
        A.wait(vm=("w", i))
        for q in range(4):
            A.e(f"v_lshlrev_b32 v40, 16, v{16+4*i+q}\nv_and_b32 v41, 0xffff0000, v{16+4*i+q}")
            op = "v_mul_f32" if i == 0 else "v_fmac_f32"
            A.e(f"{op} v{48+2*q}, v40, v{8+i}\n{op} v{49+2*q}, v41, v{8+i}")
    A.stamp()
    for sh in (4, 8):
        A.e("s_nop 1")
        for q in range(8): A.e(f"v_add_f32_dpp v{48+q}, v{48+q}, v{48+q} row_ror:{sh} row_mask:0xf bank_mask:0xf")
    A.e("v_lshrrev_b32 v5, 4, v0\nv_lshlrev_b32 v5, 7, v5\nv_lshl_add_u32 v5, v1, 5, v5\nv_and_b32 v6, 15, v0")
    A.e("v_cmp_gt_u32 vcc, 4, v6\ns_nop 0\ns_and_saveexec_b64 s[32:33], vcc")
    A.e("ds_write_b128 v5, v[48:51]\nds_write_b128 v5, v[52:55] offset:16\ns_mov_b64 exec, s[32:33]")
    A.e("s_waitcnt lgkmcnt(0)\ns_barrier")
    A.e("v_readfirstlane_b32 s34, v0\ns_nop 0\ns_cmp_ge_u32 s34, 64\ns_cbranch_scc1 L1_end")
    A.e("v_and_b32 v6, 31, v0\nv_lshrrev_b32 v7, 5, v0\nv_mul_u32_u24 v7, 1536, v7\nv_lshl_add_u32 v7, v6, 2, v7")
    for i in range(12): A.e(f"ds_read_b32 v{16+i}, v7 offset:{128*i}")
    A.e("s_lshl_b32 s29, s29, 5\nv_add_u32 v6, s29, v6")
    A.e("v_lshrrev_b32 v8, 3, v6\nv_lshlrev_b32 v8, 6, v8\nv_and_b32 v9, 7, v6\nv_lshl_add_u32 v8, v9, 2, v8\nv_lshlrev_b32 v9, 2, v6")
    A.e(f"s_mul_i32 s35, s28, 2304\ns_add_u32 s35, s35, {WS_MOD - 2*2304}\ns_cmp_eq_u32 s28, 0\ns_cselect_b32 s35, 32, s35\ns_cmp_eq_u32 s28, 1\ns_cselect_b32 s35, 0, s35")
    A.e("s_cmp_lt_u32 s28, 2\ns_cselect_b64 vcc, -1, 0\nv_cndmask_b32 v8, v9, v8, vcc")
    A.e("s_waitcnt lgkmcnt(0)")
    for i in range(6): A.e(f"v_add_f32 v{16+i}, v{16+i}, v{22+i}")
    for i in range(3): A.e(f"v_add_f32 v{16+i}, v{16+i}, v{19+i}")
    A.e("v_add_f32 v16, v16, v17\nv_add_f32 v16, v16, v18")
    A.e("v_mov_b32 v17, v16\ns_nop 1\nv_permlane32_swap_b32 v17, v16\nv_add_f32 v16, v16, v17")
    A.e("v_mov_b32 v17, s31\nv_fma_f32 v16, v16, s30, v17")
    A.e("s_mov_b64 exec, 0xffffffff\nbuffer_store_dword v16, v8, s[24:27], s35 offen")
    A.stamp(); A.stamp_flush(0, WS_STAMP); A.nst = 2
    A.e("s_endpgm")
    A.label("L1_clr")
    A.e("s_sub_u32 s3, s2, 236\nv_lshlrev_b32 v1, 4, v0\ns_cmp_ge_u32 s3, 18\ns_cbranch_scc1 L1_clr2")
    A.e(f"s_mul_i32 s3, s3, 36864\ns_add_u32 s3, s3, {WS_YP}")
    for i in range(4): A.e(f"v_mov_b32 v{4+i}, -1")
    for i in range(6): A.e(f"buffer_store_dwordx4 v[4:7], v1, s[24:27], s3 offen\ns_add_u32 s3, s3, 6144")
    A.e("s_endpgm")
    A.label("L1_clr2")
    A.e("v_lshlrev_b32 v2, 2, v0\nbuffer_load_dword v3, v2, s[40:43], 0 offen")
    for i in range(4): A.e(f"v_mov_b32 v{4+i}, 0")
    A.e(f"s_sub_u32 s3, s3, 18\ns_mul_i32 s3, s3, {640*128}\ns_add_u32 s3, s3, {WS_F1}\nv_lshlrev_b32 v1, 7, v0")
    A.e("buffer_store_dwordx2 v[4:5], v1, s[24:27], s3 offen")
    A.e(f"s_add_u32 s3, s3, {256*128}\nv_lshlrev_b32 v2, 3, v0\nv_mov_b32 v10, 0x40000000")
    A.e("buffer_store_dwordx2 v[4:5], v1, s[24:27], s3 offen")
    A.e(f"v_cmp_gt_u32 vcc, 288, v0\ns_mov_b32 s3, {WS_MOD + 4*2304}\ns_waitcnt vmcnt(2)\nv_cndmask_b32 v2, v10, v2, vcc")
    A.e("v_lshlrev_b32 v8, 16, v3\nv_and_b32 v9, 0xffff0000, v3\nbuffer_store_dwordx2 v[8:9], v2, s[24:27], s3 offen\ns_endpgm")
    A.label("L1_ln")
    A.vm = []
    A.e("s_sub_u32 s3, s2, 108\nv_lshrrev_b32 v1, 6, v0\nv_and_b32 v2, 15, v0\nv_bfe_u32 v3, v0, 4, 2")
    A.e("v_mul_u32_u24 v4, 1152, v2\nv_lshl_add_u32 v4, v3, 4, v4\nv_mul_u32_u24 v5, 192, v1\nv_add_u32 v4, v4, v5\ns_mul_i32 s28, s3, 18432")
    for i in range(3): A.vmem(f"buffer_load_dwordx4 v[{8+4*i}:{11+4*i}], v4, s[12:15], s28 offen offset:{64*i}{nt}", ("x", i))
    A.e("v_lshlrev_b32 v6, 5, v2\nv_lshl_add_u32 v7, v1, 2, v6")
    A.e(f"v_and_b32 v5, 63, v0\nv_lshlrev_b32 v5, 4, v5\nv_mul_u32_u24 v1, 3072, v1\nv_add_u32 v5, v5, v1\ns_add_u32 s28, s28, {WS_XN}")
    for i in range(3):
        A.wait(vm=("x", i))
        for q in range(4):
            A.e(f"v_lshlrev_b32 v{24+8*i+2*q}, 16, v{8+4*i+q}\nv_and_b32 v{25+8*i+2*q}, 0xffff0000, v{8+4*i+q}")
    A.stamp(); A.stamp()
    def reduce(x, off):
        xsum_G(A, x, 21)
        A.e(f"ds_write_b32 v7, v{x} offset:{off}\ns_waitcnt lgkmcnt(0)\ns_barrier")
        A.e(f"ds_read_b128 v[8:11], v6 offset:{off}\nds_read_b64 v[12:13], v6 offset:{off+16}\ns_waitcnt lgkmcnt(0)")
        A.e(f"v_add_f32 v8, v8, v9\nv_add_f32 v10, v10, v11\nv_add_f32 v12, v12, v13\nv_add_f32 v8, v8, v10\nv_add_f32 v{x}, v8, v12")
    A.e("v_add_f32 v20, v24, v25\nv_add_f32 v22, v26, v27")
    for i in range(4, 24, 2): A.e(f"v_add_f32 v20, v20, v{24+i}\nv_add_f32 v22, v22, v{25+i}")
    A.e("v_add_f32 v20, v20, v22")
    reduce(20, 0)
    A.e(f"v_mul_f32 v20, {hex(f2u(1/576))}, v20")
    for i in range(24): A.e(f"v_sub_f32 v{24+i}, v{24+i}, v20")
    A.e("v_mul_f32 v20, v24, v24\nv_mul_f32 v22, v25, v25")
    for i in range(2, 24, 2): A.e(f"v_fmac_f32 v20, v{24+i}, v{24+i}\nv_fmac_f32 v22, v{25+i}, v{25+i}")
    A.e("v_add_f32 v20, v20, v22")
    reduce(20, 512)
    A.e(f"v_mov_b32 v21, {hex(f2u(1e-5))}\nv_fmac_f32 v21, {hex(f2u(1/576))}, v20\nv_rsq_f32 v21, v21\ns_nop 0")
    for i in range(24): A.e(f"v_mul_f32 v{24+i}, v{24+i}, v21")
    for i in range(3):
        for q in range(4): A.e(f"v_cvt_pk_f16_f32 v{8+4*i+q}, v{24+8*i+2*q}, v{25+8*i+2*q}")
        A.e(f"buffer_store_dwordx4 v[{8+4*i}:{11+4*i}], v5, s[24:27], s28 offen offset:{1024*i}")
    A.stamp(); A.stamp_flush(0, WS_STAMP)
    A.label("L1_end")
    A.e("s_endpgm")
    return A, dict(name="front_kernel", grid=256, block=384, lds=3072, vgpr=64, acc=64)
```

```python
from asmlib import *
from layout import *

RING = 16384; SLOT = 36864; HALF = 16896; PIECE = 1056
SCR = 12288
FLAG = SCR
LDS_BYTES = RING + 4 * SLOT
BIAS = 32.0
vK, vV, vT, vT2, vKV, vWq, vWo, vX, vAS, vPt, vIdx = 1, 2, 3, 4, 5, 6, 7, 8, 9, 10, 11
vTmp = 12
S0 = 16; P0 = 32; NM = 48; Q0 = 64; O0 = 128
AS0 = 16; T0 = 32; X0 = 48
def O(j, dt): return O0 + (j * 8 + dt) * 4
def Q(j, t): return Q0 + (j * 4 + t) * 4
def X(c, n, kl): return X0 + ((c + 2) % 5) * 16 + (n * 2 + kl) * 4
aL = 0; aOne = 16; aK = 64; aV = 128
def KF(kt, t): return aK + (kt * 4 + t) * 4
def VF(buf, dt, u): return aV + buf * 64 + (dt * 2 + u) * 4
sK, sV, sWq, sWo, sXn, sAS, sPt = 16, 20, 24, 28, 32, 36, 40
sW4, sOff, sT, sBase, sDel, sCnt, sPass, sW, sG, sTb, sOff2 = 44, 45, 46, 47, 48, 49, 50, 51, 52, 53, 54
sWg, sWu, sWd, sXi, sOut, sWs, sPr = 64, 68, 72, 76, 80, 84, 88
sW9, sT8, sCap = 55, 96, 97
sSt = 24; sYp = 32
vFg = vWq
aDum = 63
MF = "v_mfma_f32_16x16x32_bf16"

def trd(dst, slot, off):
    base = vT if slot < 2 else vT2
    return f"ds_read_b64_tr_b16 {a(dst,2)}, v{base} offset:{(slot % 2) * SLOT + off}"

def dma_wq(c):
    slot = (c + 1) % 4; out = []
    for kl in range(2):
        for r in range(4):
            out.append(([f"s_add_u32 m0, s{sW4}, {slot*SLOT + kl*HALF + r*PIECE}", f"s_mov_b32 s{sOff}, {(64*c + 32*kl + r) * 8192}"],
                        ("vm", f"buffer_load_dwordx4 v{vWq}, {s(sWq,4)}, s{sOff} offen{OPT.get('wq_nt','')} lds", ("L", c))))
    return out
def dma_kv_static(i, halves=(0, 1), slot=None):
    slot = (i + 2) % 4 if slot is None else slot; out = []
    for h in halves:
        for j in range(4):
            pre = [f"s_add_u32 m0, s{sW4}, {slot*SLOT + h*HALF + 32*j}"]
            if i is not None and j == 0 and h == halves[0]: pre.append(f"s_mov_b32 s{sT}, {i*16384}")
            out.append((pre, ("vm", f"buffer_load_dwordx4 v{vKV}, {s(sV if h else sK,4)}, s{sT} offen offset:{1024*j}{OPT.get('kv_nt','')} lds", ("L", 9 + (i or 0)))))
    return out
def dma_kv_dyn(i, odd):
    out = []
    for h in range(2):
        for j in range(4):
            pre = [f"s_add_u32 m0, s{sBase}, {odd*SLOT + h*HALF + 32*j}"]
            out.append((pre, ("vm", f"buffer_load_dwordx4 v{vKV}, {s(sV if h else sK,4)}, s{sT} offen offset:{1024*j}{OPT.get('kv_nt','')} lds", ("L", 9 + i))))
    return out
def dma_wo(c):
    slot = (c + 2) % 4; out = []
    for hi in range(2):
        for r in range(4):
            pre = [f"s_add_u32 m0, s{sW4}, {slot*SLOT + hi*HALF - 96*r}"]
            if r == 0: pre.append(f"s_mov_b32 s{sOff}, {c*128 + hi*128*1152}")
            out.append((pre, ("vm", f"buffer_load_dwordx4 v{vWo}, {s(sWo,4)}, s{sOff} offen offset:{1152*r}{OPT.get('wo_nt','')} lds", ("L", 41 + c))))
    return out
def FW(k): return aV + 4 * k
def ld_ffn():
    out = []
    for m in range(3):
        for i in range(9):
            d = a(FW(9 * m + i), 4)
            if m < 2: out.append(([f"s_mov_b32 s{sOff2}, {i*16*9216}"], ("vm", f"buffer_load_dwordx4 {d}, v{vFg}, {s(sWu if m else sWg,4)}, s{sOff2} offen", "fw")))
            else: out.append(([f"s_add_u32 s{sOff2}, s{sW9}, {1024*i}"], ("vm", f"buffer_load_dwordx4 {d}, v{vX}, {s(sWd,4)}, s{sOff2} offen", "fw")))
    return out
def touch(vaddr, srd, off):
    return ([f"s_mov_b32 s{sOff2}, {off}"], f"buffer_load_dword a{aDum}, v{vaddr}, {s(srd,4)}, s{sOff2} offen")
def dmaL(n):
    return dma_wq(n) if n < 9 else (dma_kv_static(n - 9) if n < 41 else dma_wo(n - 41))
def emit_dma(A, lst):
    for pre, ld in lst:
        A.items(pre)
        if len(pre) == 1: A.e("s_nop 0")
        A.item(ld)
def xload(c):
    return [([f"s_mov_b32 s{sOff2}, {n*18432 + (2*c+kl)*1024}"],
             ("vm", f"buffer_load_dwordx4 {v(X(c,n,kl),4)}, v{vX}, {s(sXn,4)}, s{sOff2} offen", ("X", c))) for n in range(2) for kl in range(2)]
def place_vm(Sc, g, item):
    pre, ld = item
    for k, p in enumerate(pre): Sc.sh[g - 1 + k].append(p)
    Sc.mem[g].append(ld)

def as_reads(c, q):
    kl, hf = q // 2, q % 2; d = AS0 + (q % 2) * 8; off = (2 * c + kl) * 256 + hf * 16
    return [("lds", f"ds_read_b128 {v(d,4)}, v{vAS} offset:{off}", ("AS", c, q)), ("lds", f"ds_read_b128 {v(d+4,4)}, v{vAS} offset:{off+32}", ("AS", c, q))]
def modulate(c, q):
    kl, hf = q // 2, q % 2; d = AS0 + (q % 2) * 8; out = []
    for n in range(2):
        x = X(c, n, kl) + 2 * hf; t = T0 + 4 * n
        for i in range(4):
            out.append(f"v_fma_mix_f32 v{t+i}, v{x+i//2}, v{d+i}, v{d+4+i} op_sel:[{i%2},0,0] op_sel_hi:[1,0,0]")
        out += [f"v_cvt_pk_bf16_f32 v{x}, v{t}, v{t+1}", f"v_cvt_pk_bf16_f32 v{x+1}, v{t+2}, v{t+3}"]
    return out

def kreads(off, tag): return [("lds", f"ds_read_b128 {a(KF(kt,t),4)}, v{vK} offset:{off + kt*256 + t*64}", (tag, kt)) for kt in range(4) for t in range(4)]
def vreads(buf, off, tag): return [("lds", f"ds_read_b64_tr_b16 {a(VF(buf,dt,u)+2*b,2)}, v{vV} offset:{off + (2*u+b)*256 + dt*32}", tag) for dt in range(8) for u in range(2) for b in range(2)]

QD = 3
def AF(grp, kl): return aV + 64 + (grp % 8) * 8 + kl * 4
def qreads(G):
    c, mt = divmod(G, 16); slot = (c + 1) % 4
    return [("lds", trd(AF(G, kl) + 2 * b, slot, kl * HALF + b * 512 + mt * 32), ("A", G)) for kl in range(2) for b in range(2)]

def gen_qproj(A):
    Sc = Sched()
    for c in range(9):
        for mt in range(16):
            G = c * 16 + mt
            for n in range(2):
                d = O(2 * (mt // 8) + n, mt % 8)
                for kl in range(2):
                    cc = "0" if c == 0 and kl == 0 else v(d, 4)
                    Sc.mfma(f"{MF} {v(d,4)}, {a(AF(G,kl),4)}, {v(X(c,n,kl),4)}, {cc}")
    N = len(Sc.mf); vmg = set()
    leftover = []
    for k, it in enumerate(dmaL(2)):
        g = 3 + 4 * k; place_vm(Sc, g, it); vmg.add(g)
    for c in range(9):
        gb = 64 * (c + 1) - 4 * QD - 1
        Sc.sh[gb] += [("wait", ("L", c + 1), None), "s_barrier"]
        for k, it in enumerate(dmaL(c + 3)):
            g = gb + 4 + 4 * k
            if g < N: place_vm(Sc, g, it); vmg.add(g)
            else: leftover.append(it)
    for c in range(6):
        for k, it in enumerate(xload(c + 3)):
            g = 64 * c + 35 + 4 * k
            assert g not in vmg
            place_vm(Sc, g, it); vmg.add(g)
    for G in range(144):
        if G > 0: Sc.sh[4 * G - 1].append(("wait", None, ("A", G)))
        if G + QD < 144:
            rd = qreads(G + QD); gs = [g for g in range(4 * G, 4 * G + 4) if g not in vmg]
            if len(gs) == 3: gs = [gs[0], gs[1], gs[1], gs[2]]
            for g, r in zip(gs, rd): Sc.mem[g].append(r)
    for c in range(8):
        Sc.sh[64 * c].append(("wait", ("X", c + 1), None))
        for q in range(4):
            w0 = 64 * c + 16 * q
            nxt = as_reads(c + 1, q + 1) if q < 3 else (as_reads(c + 2, 0) if c < 7 else [])
            items = modulate(c + 1, q)
            Sc.sh[w0].append(("wait", None, ("AS", c + 1, q)))
            free = [g for g in range(w0, w0 + 16) if g not in vmg and len(Sc.mem[g]) < 2]
            for r in nxt:
                g = free.pop(0); Sc.mem[g].append(r)
            over = len(items) - len(free)
            odd = sorted(range(w0 + 1, w0 + 16, 2), key=lambda g: (g in vmg, -g))
            slots = sorted(free + odd[:over] if over > 0 else free); assert len(slots) >= len(items)
            for g, it in zip(slots, items): Sc.va[g].append(it)
    return Sc, leftover, vmg

def qconvert(j, t):
    o = O(j, 2 * t); q = Q(j, t)
    return [f"v_cvt_pk_bf16_f32 v{q+i}, v{o+2*i}, v{o+2*i+1}" for i in range(4)], [f"v_permlane32_swap_b32 v{q}, v{q+2}", f"v_permlane32_swap_b32 v{q+1}, v{q+3}"]

def xmax_to_negm(A, src, bias):
    t = vTmp
    for op in ("v_permlane16_swap_b32", "v_permlane32_swap_b32"):
        for j in range(4): A.e(f"v_mov_b32 v{t+j}, v{src[j]}")
        for j in range(4): A.e(f"{op} v{t+j}, v{src[j]}")
        for j in range(4): A.e(f"v_max_f32 v{src[j]}, v{src[j]}, v{t+j}")
    for j in range(4):
        for i in range(4): A.e(f"v_sub_f32 v{NM+4*j+i}, {hex(f2u(-bias))}, v{src[j]}")

def gen_stage(i, kind, dma, opt):
    par = i % 2; Sc = Sched(); first = kind == "first"; last = kind == "last"
    nun = 5 if last else 4
    for j in range(nun):
        for kt in range(4):
            for t in range(4):
                d = S0 + 4 * kt
                Sc.mfma(None if j == 4 else f"{MF} {v(d,4)}, {a(KF(kt,t),4)}, {v(Q(j,t),4)}, {v(NM+4*j,4) if t == 0 else v(d,4)}")
        jp = (j - 1) % 4; vb = par if j > 0 else 1 - par; p = P0 + 8 * (jp % 2)
        skip = first and j == 0
        for dt in range(8):
            for u in range(2):
                d = O(jp, dt); cc = "0" if first and u == 0 else v(d, 4)
                Sc.mfma(None if skip else f"{MF} {v(d,4)}, {a(VF(vb,dt,u),4)}, {v(p+4*u,4)}, {cc}")
        Sc.mfma(None if skip else f"v_smfmac_f32_16x16x64_bf16 {a(aL+4*jp,4)}, {a(aOne,4)}, {v(p,8)}, v{vIdx}")
        b = 33 * j
        for x in range(16):
            prev = x < 4
            if (prev and skip) or (j == 4 and not prev): continue
            e = (x - 4) % 16
            Sc.va[b + 2 * x].append(f"v_exp_f32 v{S0+e}, v{S0+e}")
        for k in range(8):
            prev = k < 3; pr = (k + 5) % 8
            if (prev and skip) or (j == 4 and not prev): continue
            pb = P0 + 8 * ((j - 1 if prev else j) % 2)
            Sc.va[b + 4 * k + 1].append(f"v_cvt_pk_bf16_f32 v{pb+pr}, v{S0+2*pr}, v{S0+2*pr+1}")
    if first:
        for g in range(16, 33):
            if g % 2 == 0: Sc.va[g].append("s_nop 0")
        Sc.sh[16].append("s_nop 3"); Sc.sh[8].append("s_nop 1")
    if last:
        for g in range(33 * 4, 33 * 4 + 8, 2): Sc.va[g].append("s_nop 0")
        Sc.va[33 * 4 + 15].append("s_nop 1")
    for kt in range(1, 4): Sc.sh[4 * kt - 1].append(("wait", None, (("K", i), kt)))
    step = opt.get("dma_step", 4)
    cand = [33 * j + r for j in range(3) for r in range(3, 32, 4)]
    gs = cand[::step // 4] if not (last or first) else cand + [99 + r for r in range(3, 32, 4)] + [132 + r for r in range(17, 32, 2)]
    vmg = set()
    for g, it in zip(gs, dma): place_vm(Sc, g, it); vmg.add(g)
    assert len(vmg) == len(dma)
    if kind == "A":
        Sc.va[1].append(f"v_add_u32 v{vK}, s{sDel}, v{vK}"); Sc.va[5].append(f"v_add_u32 v{vV}, s{sDel}, v{vV}")
        Sc.sh[0].append(f"s_sub_u32 s{sBase}, s{sBase}, s{sDel}")
        Sc.sh[8].append(f"s_sub_u32 s{sDel}, 0, s{sDel}")
    if not last:
        Sc.sh[100].append(f"s_add_u32 s{sT}, s{sT}, 16384"); Sc.sh[101].append(f"s_min_u32 s{sT}, s{sT}, {31*16384}")
        off = 0 if kind == "A" else SLOT
        free = [33 * j + r for j in range(3) for r in list(range(1, 32, 2)) + [32] if 33 * j + r >= 17 and 33 * j + r not in vmg]
        vr = vreads(1 - par, off, ("V", i + 1))
        if len(free) < 32: free = sorted(free + free[len(free) - (32 - len(free)):])
        for n, r in enumerate(vr):
            assert free[n] >= 16 + n // 2
            Sc.mem[free[n]].append(r)
        for n, r in enumerate(kreads(off, ("K", i + 1))): Sc.mem[99 + 2 * n + 1].append(r)
        Sc.sh[131] += [("wait", ("L", 9 + i + 2), (("K", i + 1), 0)), "s_barrier"]
    return Sc

OA = 16; OR = 48
def OB(n, u): return O(2 * (u // 4) + n, 2 * (u % 4))
def WF(grp, u): return aK + (grp % 2) * 32 + u * 4
def oreads(G):
    c, ntl = divmod(G, 4); slot = (c + 2) % 4
    return [("lds", trd(WF(G, u) + 2 * b, slot, (u // 4) * HALF + (2 * (u % 4) + b) * 128 + ntl * 32), ("W", G, u // 2)) for u in range(8) for b in range(2)]
def oacc(G, n): return OA + ((G % 4) * 2 + n) * 4
def oepi(pair, n):
    r = OR + 4 * n; x, y = oacc(2 * pair, n), oacc(2 * pair + 1, n); c, aa = divmod(pair, 2)
    cv = [f"v_cvt_pk_bf16_f32 v{r}, v{x}, v{x+1}", f"v_cvt_pk_bf16_f32 v{r+1}, v{x+2}, v{x+3}", f"v_cvt_pk_bf16_f32 v{r+2}, v{y}, v{y+1}", f"v_cvt_pk_bf16_f32 v{r+3}, v{y+2}, v{y+3}"]
    sw = [f"v_permlane32_swap_b32 v{r}, v{r+2}", f"v_permlane32_swap_b32 v{r+1}, v{r+3}"]
    st = ([f"s_mov_b32 s{sOff2}, {n*294912 + c*1024}"], ("vm", f"buffer_store_dwordx4 {v(r,4)}, v{vPt}, {s(sPt,4)}, s{sOff2} offen offset:{aa*512}{OPT.get('st_flags', ' sc1')}", "st"))
    return cv, sw, st

vXA, vXC = vK, vV
XR = 64
def xi_loads():
    return [([], ("vm", f"buffer_load_dwordx4 {v(XR+4*i,4)}, v{vXC if i == 2 else vXA}, {s(sXi,4)}, 0 offen offset:{128 if i == 1 else 0}", "xi")) for i in range(3)]

def gen_oproj(A):
    Sc = Sched()
    for G in range(36):
        for n in range(2):
            for u in range(8):
                d = oacc(G, n)
                Sc.mfma(f"{MF} {v(d,4)}, {a(WF(G,u),4)}, {v(OB(n,u),4)}, {'0' if u == 0 else v(d,4)}")
    N = len(Sc.mf); vmg = set(); leftover = []
    st = OPT.get("o_step", 2)
    for k, it in enumerate(dma_wo(3) + xi_loads()):
        g = 3 + st * k; place_vm(Sc, g, it); vmg.add(g)
    for c in range(8):
        gb = 64 * c + 47
        Sc.sh[gb] += [("wait", ("L", 41 + c + 1), None)] * (not OPT.get("x_nowait")) + ["s_barrier"] * (not OPT.get("x_nobar"))
        if c >= 1 and c + 3 <= 8:
            for k, it in enumerate(dma_wo(c + 3)):
                g = gb + 2 + st * k
                if g < N: place_vm(Sc, g, it); vmg.add(g)
                else: leftover.append(it)
    swg = set()
    for p in range(17):
        for n in range(2):
            b = 16 * (2 * p + 2) + 8 * n
            cv, sw, st = oepi(p, n)
            for k, x in enumerate(cv): Sc.va[b + k].append(x)
            Sc.va[b + 5].append(sw[0]); Sc.va[b + 6].append(sw[1]); swg |= {b + 5, b + 6}
            Sc.sh[b + 4].append(st[0][0]); Sc.va[b + 7].append(st[1])
    for G in range(36):
        for h in range(4):
            g = 16 * G + 2 * h - 1
            if g >= 0: Sc.sh[g].append(("wait", None, ("W", G, h)))
        if G + 1 < 36:
            gs = [g for g in range(16 * G, 16 * G + 16) if g not in vmg and g not in swg]
            two = [g for g in gs if not Sc.va[g]]
            extra = 16 - len(gs)
            if extra > len(two): two = two + [g for g in range(16 * G + 7, 16 * G + 16, 8)] * 4
            gs = sorted(gs + two[:extra]); assert len(gs) == 16
            for g, r in zip(gs, oreads(G + 1)): Sc.mem[g].append(r)
    return Sc, leftover

def xsum8(A, regs, tmp):
    A.e("s_nop 1")
    for x in regs: A.e(f"v_add_f32_dpp v{x}, v{x}, v{x} row_ror:8 row_mask:0xf bank_mask:0xf")
    xsumG(A, regs, tmp)
def xsumG(A, regs, tmp):
    for op in ("v_permlane16_swap_b32", "v_permlane32_swap_b32"):
        for k, x in enumerate(regs): A.e(f"v_mov_b32 v{tmp+k}, v{x}")
        if len(regs) < 3: A.e(f"s_nop {2 - len(regs)}")
        for k, x in enumerate(regs): A.e(f"{op} v{tmp+k}, v{x}")
        for k, x in enumerate(regs): A.e(f"v_add_f32 v{x}, v{x}, v{tmp+k}")
def merge2(A, m1, m2, t1, t2):
    A.e(f"v_max_u32 v{m2}, v{m2}, v{t2}\nv_med3_u32 v{m2}, v{m1}, v{t1}, v{m2}\nv_max_u32 v{m1}, v{m1}, v{t1}")
def top2_lanes(A, m1, m2, t1, t2, rors, swaps):
    for sh in rors:
        A.e(f"s_nop 1\nv_mov_b32_dpp v{t1}, v{m1} row_ror:{sh} row_mask:0xf bank_mask:0xf\nv_mov_b32_dpp v{t2}, v{m2} row_ror:{sh} row_mask:0xf bank_mask:0xf")
        merge2(A, m1, m2, t1, t2)
    for op in swaps:
        A.e(f"v_mov_b32 v{t1}, v{m1}\nv_mov_b32 v{t2}, v{m2}\ns_nop 0\n{op} v{t1}, v{m1}\n{op} v{t2}, v{m2}")
        merge2(A, m1, m2, t1, t2)
def dot24(A, d, t, x, y):
    for acc, lo, hi in ((d, 0, 16), (t, 16, 24)):
        for i in range(lo, hi):
            if y is None:
                if i == lo: continue
                A.e(f"v_add_f32 v{acc}, v{x+lo if i == lo+1 else acc}, v{x+i}")
            else: A.e(f"{'v_mul_f32' if i == lo else 'v_fmac_f32'} v{acc}, v{x+i}, v{y+i}")
    A.e(f"v_fmac_f32 v{d}, 0x3e800000, v{t}")
def poll(A, name, loads, test, sleep=1, shrink=0):
    A.e(f"s_mov_b32 s{sCap}, 0x20000")
    A.label(name)
    A.e(loads); A.wait_all(lg=False); A.e(test)
    A.e(f"s_sub_u32 s{sCap}, s{sCap}, 1\ns_cselect_b64 vcc, 0, vcc\ns_cmp_eq_u64 vcc, 0\ns_cbranch_scc1 {name}_ok")
    if shrink: A.e("s_mov_b64 exec, vcc")
    if sleep: A.e(f"s_sleep {sleep}")
    A.e(f"s_branch {name}")
    A.label(name + "_ok")
    if shrink: A.e("s_mov_b64 exec, -1")

def gen_tail(A, opt):
    ACC, GA, U, TM, PL = 16, 40, 76, 100, 112
    vMA, vMC, vPA, vPC, vTr = 3, 4, 5, 7, 9
    TB = RING + 2 * SLOT
    ST = SCR + 256
    aF = 64
    A.e(f"v_lshlrev_b32 v12, 7, v0\nv_mov_b32 v13, 1\ns_lshl_b32 s15, s{sTb}, 13\ns_add_u32 s15, s15, {WS_F1}\ns_lshl_b32 s3, s{sW}, 4\ns_add_u32 s3, s3, s{sG}\ns_lshl_b32 s3, s3, 7\ns_add_u32 s3, s3, s15")
    A.e(f"s_and_b32 s14, s{sG}, 12\ns_lshl_b32 s14, s14, 9\ns_add_u32 s15, s15, s14")
    A.e(f"s_mul_i32 s14, s{sW}, 2304\nv_add_u32 v{vPA}, s14, v{vX}")
    A.e(f"v_lshrrev_b32 v14, 4, v0\nv_mul_u32_u24 v14, {9216-256}, v14\nv_add_u32 v{vPC}, v{vPA}, v14")
    A.wait_all(lg=False)
    A.e(f"s_mov_b64 exec, 1\nbuffer_store_dword v13, v12, {s(sWs,4)}, s3 offen sc1\ns_mov_b64 exec, 0xffff")
    A.stamp()
    poll(A, "L2_p1", f"buffer_load_dword v13, v12, {s(sWs,4)}, s15 offen sc1", "v_cmp_eq_u32 vcc, 0, v13", opt.get("sl1", 1))
    A.e("s_mov_b64 exec, -1")
    A.stamp()
    pend = []
    for q in range(4): pend.append([f"s_mov_b32 s{sOff}, {q*36864}", ("vm", f"buffer_load_dwordx4 {v(PL+4*q,4)}, v{vPC}, {s(sPr,4)}, s{sOff} offen offset:2048 sc1", ("c", q))])
    for g in range(16):
        for h in range(2): pend.append([f"s_mov_b32 s{sOff}, {g*9216}"] * (h == 0) + [("vm", f"buffer_load_dwordx4 {v(PL+16+8*g+4*h,4)}, v{vPA}, {s(sPr,4)}, s{sOff} offen offset:{1024*h} sc1", ("p", g, h))])
    win = opt.get("win", 8)
    def more(n=1):
        for _ in range(n):
            if pend: A.items(pend.pop(0))
    def pace():
        if pend:
            if len(A.vm) >= win: A.wait(vm=A.vm[len(A.vm) - win])
            more()
        if fww: A.item(fww.pop(0))
    more(win)
    vF0, vF1 = TM + 5, TM + 6
    A.e(f"s_barrier\ns_add_u32 s14, s{sW9}, {RING}\nv_add_u32 v{vF0}, s14, v{vX}\nv_add_u32 v{vF1}, {2*SLOT}, v{vF0}")
    fww = [("lds", f"ds_write_b128 v{vF0 + ((3 + k//9) % 4)//2}, {a(FW(k),4)} offset:{((3 + k//9) % 2)*SLOT + 1024*(k%9)}", "fww") for k in range(27)]
    A.e(f"s_mul_i32 s14, s{sW}, 576\nv_lshrrev_b32 v14, 3, v0\nv_lshlrev_b32 v{vMA}, 5, v14\nv_add_u32 v{vMA}, s14, v{vMA}")
    A.e(f"v_and_b32 v14, 1, v14\nv_lshlrev_b32 v{vMC}, 5, v14\nv_add_u32 v{vMC}, s14, v{vMC}")
    def vec(m, d, tag):
        for i in range(3):
            for h in range(2): A.lds(f"ds_read_b128 {v(d+8*i+4*h,4)}, v{vMC if i == 2 else vMA} offset:{m*2304 + 256*i + 16*h}", tag)
    vec(4, ACC, "wr"); vec(2, U, "cb"); vec(1, GA, "sb")
    A.wait(lg="cb")
    for i in range(24): A.e(f"v_mul_f32 v{U+i}, v{U+i}, v{ACC+i}")
    A.wait(lg="sb")
    dot24(A, TM, TM + 2, U, None); dot24(A, TM + 1, TM + 2, GA, ACC)
    vec(0, GA, "ga")
    pace(); pace()
    pace(); pace()
    xsum8(A, [TM, TM + 1], TM + 2)
    A.e(f"v_and_b32 v14, 7, v0\nv_lshlrev_b32 v11, 4, v14\nv_add_u32 v11, {ST}, v11\ns_lshl_b32 s3, s{sW}, 2\nv_add_u32 v10, s3, v11")
    A.lds(f"ds_write_b32 v10, v{TM} offset:384", "ut"); A.lds(f"ds_write_b32 v10, v{TM+1} offset:512", "ut")
    A.e(f"v_lshl_add_u32 v{vXA}, v14, 4, v{vXA}\nv_lshl_add_u32 v{vXC}, v14, 4, v{vXC}\nv_add_u32 v{vXA}, {TB}, v{vXA}\nv_add_u32 v{vXC}, {TB}, v{vXC}")
    A.e(f"s_and_b32 s3, s{sW}, 1\ns_mul_i32 s3, s3, 288\nv_add_u32 v14, s3, v0\nv_lshlrev_b32 v{vTr}, 4, v14\ns_lshr_b32 s14, s{sW}, 1\ns_mul_i32 s14, s14, 9344\ns_add_u32 s14, s14, {TB}")
    for r in range(5):
        A.e(f"v_add_u32 v15, {64*r}, v14\nv_mul_u32_u24 v12, 911, v15\nv_lshrrev_b32 v12, 16, v12\nv_add_u32 v15, v15, v12\nv_lshl_add_u32 v{TM+7+r}, v15, 4, s14")
    A.e(f"s_mul_i32 s3, s{sT8}, 9216\ns_add_u32 s14, s3, {WS_H2}\ns_cmp_lt_u32 s{sW}, 2\ns_cselect_b32 s3, s3, s14\ns_cselect_b64 {s(sSt,2)}, {s(sOut,2)}, {s(sWs,2)}")
    A.srd(sSt, sSt, 9216, "s3")
    def acc(dst, src, first):
        for q in range(4):
            if first: A.e(f"v_lshlrev_b32 v{dst+2*q}, 16, v{src+q}\nv_and_b32 v{dst+2*q+1}, 0xffff0000, v{src+q}")
            else:
                t = 12 + 2 * (q % 2)
                A.e(f"v_lshlrev_b32 v{t}, 16, v{src+q}\nv_and_b32 v{t+1}, 0xffff0000, v{src+q}\nv_pk_add_f32 {v(dst+2*q,2)}, {v(dst+2*q,2)}, {v(t,2)}")
    for q in range(4): A.wait(vm=("c", q)); pace(); acc(ACC + 16, PL + 4 * q, q == 0)
    xsumG(A, list(range(ACC + 16, ACC + 24)), PL)
    CB, SB, GB, D = PL, PL + 24, PL + 48, PL + 72
    for g in range(16):
        for h in range(2): A.wait(vm=("p", g, h)); pace(); acc(ACC + 8 * h, PL + 16 + 8 * g + 4 * h, g == 0)
        if g == 8: vec(2, CB, "m"); vec(1, SB, "m"); vec(3, GB, "m")
    A.stamp()
    A.wait(lg="ga")
    for q in range(12):
        A.e(f"v_lshlrev_b32 v12, 16, v{XR+q}\nv_and_b32 v13, 0xffff0000, v{XR+q}\nv_pk_fma_f32 {v(ACC+2*q,2)}, {v(ACC+2*q,2)}, {v(GA+2*q,2)}, v[12:13]")
    MU, M2, DD = TM, TM + 1, TM + 2
    dot24(A, MU, TM + 3, ACC, None); xsum8(A, [MU], TM + 3)
    A.e(f"v_mul_f32 v{MU}, {hex(f2u(1/144))}, v{MU}")
    for i in range(24): A.e(f"v_sub_f32 v{D+i}, v{ACC+i}, v{MU}")
    dot24(A, M2, TM + 3, D, D); dot24(A, DD, TM + 3, D, U); xsum8(A, [M2, DD], TM + 3)
    for k in range(3): A.lds(f"ds_write_b32 v10, v{TM+k} offset:{128*k}", "sw")
    A.wait(lg="sw"); A.e("s_barrier")
    R = GA
    for k in range(5): A.lds(f"ds_read_b128 {v(R+4*k,4)}, v11 offset:{128*k}", ("sr", k))
    A.wait(lg=("sr", 0))
    A.e(f"v_add_f32 v12, v{R}, v{R+1}\nv_add_f32 v13, v{R+2}, v{R+3}\nv_add_f32 v12, v12, v13\nv_mul_f32 v12, 0x3e800000, v12")
    for k in range(4): A.e(f"v_sub_f32 v{R+k}, v{R+k}, v12")
    A.e(f"v_sub_f32 v{MU}, v{MU}, v12\nv_mul_f32 v13, v{R}, v{R}")
    for k in range(1, 4): A.e(f"v_fmac_f32 v13, v{R+k}, v{R+k}")
    A.wait(lg=("sr", 1))
    A.e(f"v_add_f32 v14, v{R+4}, v{R+5}\nv_add_f32 v15, v{R+6}, v{R+7}\nv_add_f32 v14, v14, v15\nv_fmac_f32 v14, {hex(f2u(144.0))}, v13")
    A.e(f"v_mov_b32 v13, {hex(f2u(1e-5))}\nv_fmac_f32 v13, {hex(f2u(1/576))}, v14\nv_rsq_f32 v13, v13")
    A.wait(lg=("sr", 4))
    A.e(f"v_mul_f32 v{MU}, v{MU}, v13")
    for i in range(24): A.e(f"v_fma_f32 v{D+i}, v{D+i}, v13, v{MU}")
    for i in range(0, 24, 2): A.e(f"v_pk_fma_f32 {v(D+i,2)}, {v(D+i,2)}, {v(CB+i,2)}, {v(SB+i,2)}")
    for i in range(0, 24, 2): A.e(f"v_pk_fma_f32 {v(ACC+i,2)}, {v(D+i,2)}, {v(GB+i,2)}, {v(ACC+i,2)}")
    for m, src in enumerate((ACC, D)):
        for i in range(3):
            d = CB + 12 * m + 4 * i
            for q in range(4): A.e(f"v_cvt_pk_bf16_f32 v{d+q}, v{src+8*i+2*q}, v{src+8*i+2*q+1}")
            A.lds(f"ds_write_b128 v{vXC if i == 2 else vXA}, {v(d,4)} offset:{9344*m + (128 if i == 1 else 0)}", "tw")
    for k in range(4): A.e(f"v_fmac_f32 v{R+8+k}, v{R+k}, v{R+12+k}")
    A.e(f"v_add_f32 v14, v{R+8}, v{R+9}\nv_add_f32 v15, v{R+10}, v{R+11}\nv_add_f32 v14, v14, v15")
    A.e(f"v_add_f32 v15, v{R+16}, v{R+17}\nv_add_f32 v12, v{R+18}, v{R+19}\nv_add_f32 v15, v15, v12\nv_fmac_f32 v15, v14, v13")
    A.wait(lg="tw"); A.e("s_barrier")
    for r in range(5): A.lds(f"ds_read_b128 {v(GB+4*r,4)}, v{TM+7+r}", ("tr", r))
    K1, K2 = TM, TM + 1
    A.e(f"s_lshl_b32 s3, s{sT8}, 3\ns_sub_u32 s3, 0xfff, s3\nv_and_b32 v14, 7, v0\nv_sub_u32 v14, s3, v14")
    A.e(f"v_ashrrev_i32 v12, 31, v15\nv_or_b32 v12, 0x80000000, v12\nv_xor_b32 v12, v12, v15\nv_and_b32 v12, 0xfffff000, v12\nv_or_b32 v{K1}, v12, v14\nv_mov_b32 v{K2}, 0")
    for r in range(5):
        A.wait(lg=("tr", r))
        if r == 4: A.e(f"s_mov_b32 exec_hi, 0\ns_mov_b32 s3, 4096")
        A.vmem(f"buffer_store_dwordx4 {v(GB+4*r,4)}, v{vTr}, {s(sSt,4)}, {'s3' if r == 4 else 0} offen offset:{1024*(r%4)} sc1", "os")
    A.e("s_mov_b64 exec, -1")
    top2_lanes(A, K1, K2, 12, 13, (1, 2, 4), ())
    A.e(f"s_lshl_b32 s3, s{sT8}, 7\ns_add_u32 s3, s3, {WS_KEY}\nv_lshlrev_b32 v14, 7, v0")
    A.e(f"s_lshl_b32 s15, s{sW}, 13\ns_add_u32 s15, s15, {WS_KEY}")
    A.stamp()
    A.wait_all(lg=False)
    A.e(f"s_barrier\ns_cmp_lg_u32 s{sW}, 0\ns_cbranch_scc1 L2_nokey")
    A.e(f"s_mov_b64 exec, 1\nbuffer_store_dwordx2 {v(K1,2)}, v14, {s(sWs,4)}, s3 offen sc1\ns_mov_b64 exec, -1")
    A.label("L2_nokey")
    A.stamp()
    A.e("s_cmp_ge_u32 s2, 180\ns_cbranch_scc1 L2_fin")
    A.e("s_cmp_ge_u32 s2, 144\ns_cbranch_scc1 L2_gather")
    A.e(f"v_lshrrev_b32 v21, 4, v0\nv_bfe_u32 v20, v0, 2, 2\nv_lshl_add_u32 v20, v21, 3, v20\nv_and_b32 v21, 3, v0\nv_lshlrev_b32 v22, 6, v20\nv_lshl_add_u32 v22, v21, 3, v22")
    A.e(f"s_cmp_lt_u32 s{sW}, 2\ns_cselect_b32 s3, {RING + 3*SLOT}, {RING & 0}\ns_cselect_b32 s14, 0, {RING}\ns_add_u32 s3, s3, s14\ns_and_b32 s14, s{sW}, 1\ns_lshl_b32 s14, s14, 5\ns_add_u32 s3, s3, s14\nv_add_u32 v22, s3, v22")
    A.e(f"v_mul_u32_u24 v23, 1152, v20\nv_lshl_add_u32 v23, v21, 3, v23\ns_mul_i32 s3, s{sW}, 288\ns_add_u32 s3, s3, {RING + SLOT}\nv_add_u32 v23, s3, v23")
    for kk in range(18):
        for b in range(2): A.lds(f"ds_read_b64_tr_b16 {a(aF+4*kk+2*b,2)}, v22 offset:{2048*kk + 256*b}", "fa")
    for nt in range(9):
        for b in range(2): A.lds(f"ds_read_b64_tr_b16 {a(aF+72+4*nt+2*b,2)}, v23 offset:{32*nt + 4608*b}", "fa")
    A.label("L2_gather")
    poll(A, "L2_p2", f"buffer_load_dwordx2 v[16:17], v14, {s(sWs,4)}, s15 offen sc1", "v_min_u32 v12, v16, v17\nv_cmp_eq_u32 vcc, 0, v12", opt.get("sl2", 1), opt.get("shrink", 1))
    top2_lanes(A, 16, 17, 12, 13, (1, 2, 4, 8), ("v_permlane16_swap_b32", "v_permlane32_swap_b32"))
    A.e(f"s_lshl_b32 s3, s{sW}, 3\ns_add_u32 s3, s3, {SCR + 1792}\nv_mov_b32 v12, s3\nv_mov_b32 v13, {SCR + 1792}")
    A.lds("ds_write_b64 v12, v[16:17]", "kw"); A.wait(lg="kw"); A.e("s_barrier")
    A.lds("ds_read_b128 v[16:19], v13", "kr"); A.lds("ds_read_b128 v[20:23], v13 offset:16", "kr")
    A.e("v_and_b32 v6, 1, v0\nv_lshrrev_b32 v7, 4, v0")
    A.wait(lg="kr")
    merge2(A, 16, 17, 18, 19); merge2(A, 20, 21, 22, 23); merge2(A, 16, 17, 20, 21)
    A.stamp()
    A.e("s_cmp_ge_u32 s2, 144\ns_cbranch_scc1 L2_red")
    A.e("v_cmp_eq_u32 vcc, 0, v6\ns_nop 1\nv_cndmask_b32 v4, v17, v16, vcc\nv_and_b32 v4, 0x7ff, v4\nv_sub_u32 v4, 2047, v4")
    A.e(f"v_mul_u32_u24 v5, 1152, v4\nv_lshl_add_u32 v5, v7, 4, v5\ns_mov_b32 s3, {WS_H2}")
    H = 128
    if opt.get("hmask", 1): A.e("s_mov_b32 exec_lo, 0x30003\ns_mov_b32 exec_hi, 0x30003")
    for kk in range(18): A.vmem(f"buffer_load_dwordx4 {v(H+4*kk,4)}, v5, {s(sWs,4)}, s3 offen offset:{64*kk} sc1", ("h", kk))
    A.e("s_mov_b64 exec, -1")
    LX = SCR + 1024; LY = TB + 20480
    A.e(f"v_lshlrev_b32 v11, 7, v6\nv_lshl_add_u32 v13, v7, 5, v11\nv_add_u32 v13, {LX}, v13\nv_lshl_add_u32 v11, v7, 4, v11")
    A.e(f"s_lshr_b32 s3, s{sW}, 1\ns_lshl_b32 s3, s3, 8\ns_and_b32 s14, s{sW}, 1\ns_lshl_b32 s14, s14, 6\ns_add_u32 s3, s3, s14\ns_add_u32 s3, s3, {LX}\nv_add_u32 v11, s3, v11")
    A.e(f"s_mul_i32 s14, s{sW}, 1152\ns_add_u32 s3, s14, {LY}\nv_mul_u32_u24 v9, 576, v6\nv_lshl_add_u32 v9, v7, 4, v9\nv_add_u32 v9, s3, v9\nv_add_u32 v10, s3, v{vX}")
    A.e(f"s_mul_i32 s15, s2, 4608\ns_add_u32 s15, s15, s14\ns_add_u32 s15, s15, {WS_YP}")
    for kk in range(18):
        A.wait(vm=("h", kk))
        A.e(f"{MF} v[88:91], {a(aF+4*kk,4)}, {v(H+4*kk,4)}, {'0' if kk == 0 else 'v[88:91]'}")
    A.e("s_nop 5\ns_mov_b32 exec_lo, 0x30003\ns_mov_b32 exec_hi, 0x30003")
    A.lds("ds_write_b128 v11, v[88:91]", "x"); A.e("s_mov_b64 exec, -1"); A.wait(lg="x"); A.e("s_barrier")
    for i in range(4): A.lds(f"ds_read_b128 {v(16+4*i,4)}, v13 offset:{(i//2)*256 + (i%2)*16}", ("y", i // 2))
    A.wait(lg=("y", 0))
    for i in range(8): A.e(f"v_mul_f32 v{32+i}, {hex(f2u(-LOG2E))}, v{16+i}")
    for i in range(8): A.e(f"v_exp_f32 v{32+i}, v{32+i}")
    for i in range(8): A.e(f"v_add_f32 v{32+i}, 1.0, v{32+i}")
    for i in range(8): A.e(f"v_rcp_f32 v{32+i}, v{32+i}")
    A.wait(lg=("y", 1))
    for i in range(8): A.e(f"v_mul_f32 v{16+i}, v{16+i}, v{32+i}")
    for i in range(8): A.e(f"v_mul_f32 v{16+i}, v{16+i}, v{24+i}")
    for q in range(4): A.e(f"v_cvt_pk_bf16_f32 v{40+q}, v{16+2*q}, v{17+2*q}")
    A.e("s_nop 1")
    for nt in range(9): A.e(f"{MF} {v(48+4*nt,4)}, {a(aF+72+4*nt,4)}, v[40:43], 0")
    A.e("s_mov_b32 exec_lo, 0x30003\ns_mov_b32 exec_hi, 0x30003")
    for nt in range(9): A.lds(f"ds_write_b128 v9, {v(48+4*nt,4)} offset:{64*nt}", "yw")
    A.e("s_mov_b64 exec, -1")
    A.lds("ds_read_b128 v[16:19], v10", "yr"); A.lds("ds_read_b128 v[20:23], v10 offset:1024", "yr"); A.wait(lg="yr")
    for i in range(8): A.e(f"v_min_u32 v{16+i}, -2, v{16+i}")
    A.e(f"buffer_store_dwordx4 v[16:19], v{vX}, {s(sWs,4)}, s15 offen sc1\ns_mov_b64 exec, 0xff\nbuffer_store_dwordx4 v[20:23], v{vX}, {s(sWs,4)}, s15 offen offset:1024 sc1")
    A.e("s_branch L2_fin")
    A.label("L2_red")
    A.vm = []; A.lg = []
    A.e(f"s_mov_b32 s3, {WS_YP}"); A.srd(sYp, sWs, YP_BYTES, "s3")
    A.e("s_sub_u32 s3, s2, 144\ns_mul_i32 s14, s3, 7282\ns_lshr_b32 s14, s14, 16\ns_mul_i32 s15, s14, 9\ns_sub_u32 s15, s3, s15\ns_lshl_b32 s15, s15, 5\ns_mul_i32 s14, s14, 144")
    A.e("v_and_b32 v6, 7, v0\nv_lshl_add_u32 v7, v6, 2, s15\nv_cmp_gt_u32 vcc, 144, v7\nv_subrev_u32 v9, 144, v7\nv_lshrrev_b32 v10, 3, v0\nv_cndmask_b32 v7, v9, v7, vcc\nv_cndmask_b32 v16, v17, v16, vcc")
    A.e("v_add_u32 v7, s14, v7\nv_and_b32 v9, 0x7ff, v16\nv_sub_u32 v9, 2047, v9\nv_mul_u32_u24 v9, 1152, v9\nv_lshl_add_u32 v9, v7, 1, v9\nv_lshlrev_b32 v7, 2, v7")
    A.e(f"buffer_load_dwordx2 v[18:19], v9, {s(sOut,4)}, 0 offen sc1\nds_read_b128 v[20:23], v7 offset:{3*2304}")
    A.e(f"s_lshl_b32 s14, s{sW}, 3\nv_add_u32 v10, s14, v10\nv_mul_u32_u24 v10, 4608, v10\nv_lshl_add_u32 v10, v6, 4, v10\ns_lshl_b32 s3, s3, 7\nv_add_u32 v24, s3, v10")
    for r in range(1, 5): A.e(f"v_add_u32 v{24+r}, {147456*r}, v24")
    A.e("v_and_b32 v16, 0xfffff800, v16\nv_not_b32 v12, v16\nv_ashrrev_i32 v12, 31, v12\nv_or_b32 v12, 0x80000000, v12\nv_xor_b32 v16, v16, v12")
    A.e(f"v_mul_f32 v16, {hex(f2u(-LOG2E))}, v16\nv_exp_f32 v16, v16\ns_nop 0\nv_add_f32 v16, 1.0, v16\nv_rcp_f32 v16, v16\ns_waitcnt lgkmcnt(0)")
    for i in range(4): A.e(f"v_mul_f32 v{20+i}, v{20+i}, v16")
    A.e(f"v_lshlrev_b32 v11, 4, v6\nv_add_u32 v11, {SCR + 2048}, v11\ns_lshl_b32 s14, s{sW}, 7\nv_add_u32 v10, s14, v11")
    tree = "v_max3_u32 v12, v32, v33, v34\n" + "\n".join(f"v_max3_u32 v12, v12, v{35+2*i}, v{36+2*i}" for i in range(8)) + "\nv_max_u32 v12, v12, v51\nv_cmp_eq_u32 vcc, -1, v12"
    poll(A, "L2_p3", "\n".join(f"buffer_load_dwordx4 {v(32+4*r,4)}, v{24+r}, {s(sYp,4)}, 0 offen sc1" for r in range(5)), tree, opt.get("sl3", 1))
    for i in range(0, 4, 2):
        A.e(f"v_pk_add_f32 {v(32+i,2)}, {v(32+i,2)}, {v(36+i,2)}\nv_pk_add_f32 {v(40+i,2)}, {v(40+i,2)}, {v(44+i,2)}\nv_pk_add_f32 {v(32+i,2)}, {v(32+i,2)}, {v(48+i,2)}\nv_pk_add_f32 {v(32+i,2)}, {v(32+i,2)}, {v(40+i,2)}")
    xsum8(A, [32, 33, 34, 35], 12)
    A.e("ds_write_b128 v10, v[32:35]\ns_waitcnt lgkmcnt(0)\ns_barrier")
    for k in range(4): A.e(f"ds_read_b128 {v(32+4*k,4)}, v11 offset:{128*k}")
    A.e("v_lshlrev_b32 v12, 16, v18\nv_and_b32 v13, 0xffff0000, v18\nv_lshlrev_b32 v14, 16, v19\nv_and_b32 v15, 0xffff0000, v19\ns_waitcnt lgkmcnt(0)")
    for i in range(0, 4, 2):
        A.e(f"v_pk_add_f32 {v(32+i,2)}, {v(32+i,2)}, {v(36+i,2)}\nv_pk_add_f32 {v(40+i,2)}, {v(40+i,2)}, {v(44+i,2)}\nv_pk_add_f32 {v(32+i,2)}, {v(32+i,2)}, {v(40+i,2)}")
        A.e(f"v_pk_fma_f32 {v(12+i,2)}, {v(32+i,2)}, {v(20+i,2)}, {v(12+i,2)}")
    A.e("v_cvt_pk_bf16_f32 v12, v12, v13\nv_cvt_pk_bf16_f32 v13, v14, v15")
    A.e(f"s_cmp_lg_u32 s{sW}, 0\ns_cbranch_scc1 L2_fin\ns_mov_b64 exec, 0xff\nbuffer_store_dwordx2 v[12:13], v9, {s(sOut,4)}, 0 offen sc1")
    A.label("L2_fin")
    if A.stamping: A.e("s_mov_b64 exec, -1")
    A.stamp()
    if opt.get("enc"):
        ea, eb, clk = opt["enc"]; o = 0 if clk else 1
        A.e("s_cmp_lg_u32 s2, 150\ns_cbranch_scc1 L2_noenc")
        if ea < 0:
            A.e(f"s_load_dwordx2 s[60:61], s[0:1], 112\ns_waitcnt lgkmcnt(0)\ns_mov_b32 s62, 0x10000000\ns_mov_b32 s63, 0x20000\nv_mov_b32 v2, {WS_STAMP + 150*1024 + 4}\nbuffer_load_dword v1, v2, s[60:63], 0 offen\ns_waitcnt vmcnt(0)")
        else: A.e(f"v_accvgpr_read_b32 v1, a{20+2*ea+o}")
        A.e(f"v_accvgpr_read_b32 v2, a{20+2*eb+o}\nv_sub_u32 v1, v2, v1\ns_nop 0\nv_readfirstlane_b32 s56, v1\ns_nop 0")
        A.e("s_lshr_b32 s56, s56, 3" if clk else "s_lshl_b32 s56, s56, 2")
        A.e("s_min_u32 s56, s56, 100000\ns_mov_b32 s57, s94")
        A.label("L2_enc")
        A.e("s_memrealtime s[94:95]\ns_waitcnt lgkmcnt(0)\ns_sub_u32 s58, s94, s57\ns_cmp_lt_u32 s58, s56\ns_cbranch_scc1 L2_enc")
        A.label("L2_noenc")
    else: A.stamp_flush(1, WS_STAMP, sW)

OPT = {}
def gen_k2(opt={}):
    OPT.clear(); OPT.update(opt)
    A = Asm(); A.stamp_agpr = 20
    A.label("L2_begin")
    A.e("s_getpc_b64 s[98:99]")
    A.e("s_cmp_ge_u32 s2, 256\ns_cbranch_scc1 L2_end")
    A.stamp()
    A.e("s_load_dwordx8 s[4:11], s[0:1], 8\ns_load_dwordx2 s[12:13], s[0:1], 112")
    for d, off in ((sWg, 56), (sWu, 64), (sWd, 72), (sXi, 0), (sOut, 96)): A.e(f"s_load_dwordx2 {s(d,2)}, s[0:1], {off}")
    A.e(f"v_lshrrev_b32 v12, 6, v0\nv_and_b32 v0, 63, v0\nv_readfirstlane_b32 s{sW}, v12")
    hp = opt.get("heads_per_xcd", 4); lg = hp.bit_length() - 1; ng = 16 // hp
    A.e(f"s_and_b32 s3, s2, 7\ns_lshr_b32 s14, s2, 3")
    A.e(f"s_and_b32 s{sG}, s3, {ng-1}\ns_lshl_b32 s{sG}, s{sG}, {lg}\ns_and_b32 s15, s14, {hp-1}\ns_add_u32 s{sG}, s{sG}, s15")
    A.e(f"s_lshr_b32 s{sTb}, s3, {ng.bit_length()-1}\ns_mul_i32 s{sTb}, s{sTb}, {32//hp}\ns_lshr_b32 s15, s14, {lg}\ns_add_u32 s{sTb}, s{sTb}, s15")
    A.e(f"s_mul_i32 s{sW4}, s{sW}, {4*PIECE}\ns_add_u32 s{sW4}, s{sW4}, {RING}")
    A.e(f"v_lshlrev_b32 v{vX}, 4, v0\nv_lshl_add_u32 v{vKV}, v12, 12, v{vX}")
    A.e(f"v_lshrrev_b32 v13, 5, v0\nv_lshl_add_u32 v13, v12, 1, v13\nv_lshlrev_b32 v13, 15, v13\nv_and_b32 v14, 31, v0\nv_lshl_add_u32 v{vWq}, v14, 4, v13")
    A.e("s_waitcnt lgkmcnt(0)")
    A.e(f"s_lshl_b32 s3, s{sG}, 9"); A.srd(sWq, 8, 0, "s3"); A.e(f"s_sub_u32 s{sWq+2}, {576*8192}, s3")
    A.srd(sAS, 12, 4608)
    A.e(f"s_lshl_b32 s3, s{sTb}, 2\ns_add_u32 s3, s3, s{sW}\ns_mul_i32 s14, s3, 36864\ns_add_u32 s14, s14, {WS_XN}"); A.srd(sXn, 12, 36864, "s14")
    A.e(f"s_lshl_b32 m0, s{sW}, 10\ns_lshl_b32 s{sOff}, s{sW}, 10")
    A.vmem(f"buffer_load_dwordx4 v{vX}, {s(sAS,4)}, s{sOff} offen lds", "AS")
    A.e(f"s_add_u32 m0, m0, 4096\ns_add_u32 s{sOff}, s{sOff}, 4096")
    A.vmem(f"buffer_load_dwordx4 v{vX}, {s(sAS,4)}, s{sOff} offen lds", "AS")
    for c in range(3):
        for pre, ld in xload(c): A.items(pre + [ld])
        if c < 2: emit_dma(A, dmaL(c))
    tch = opt.get("touch", "c")
    if "c" in tch:
        A.e(f"v_lshl_add_u32 v13, v12, 7, v0\nv_lshlrev_b32 v13, 7, v13\nv_min_u32 v14, L2_codeend-L2_begin-8, v13")
        A.e(f"global_load_dword a{aDum}, v14, s[98:99]\nv_add_u32 v13, 8192, v13\nv_min_u32 v14, L2_codeend-L2_begin-8, v13\nglobal_load_dword a{aDum}, v14, s[98:99]")
    if "q" in tch:
        A.e(f"s_and_b32 s14, s{sTb}, 7\ns_lshl_b32 s14, s14, 2\ns_add_u32 s14, s14, s{sW}\ns_add_u32 s14, s14, 128\nv_lshrrev_b32 v13, 2, v0\nv_lshl_add_u32 v13, v13, 5, s14\nv_lshlrev_b32 v13, 13, v13\nv_and_b32 v14, 3, v0\nv_lshl_add_u32 v13, v14, 7, v13")
        A.e(f"buffer_load_dword a{aDum}, v13, {s(sWq,4)}, 0 offen")
        A.e(f"s_and_b32 s14, s{sG}, 3\ns_lshl_b32 s14, s14, 6\ns_add_u32 s14, s14, 32\nv_add_u32 v13, s14, v0\nv_lshlrev_b32 v13, 7, v13")
        A.e(f"buffer_load_dword a{aDum}, v13, {s(sXn,4)}, 0 offen")
    A.e(f"s_mul_i32 s14, s3, {4*147456}\ns_mul_i32 s15, s{sG}, 9216\ns_add_u32 s14, s14, s15\ns_add_u32 s14, s14, {WS_PART}"); A.srd(sPt, 12, 0, "s14"); A.e(f"s_sub_u32 s{sPt+2}, {4*147456}, s15")
    if opt.get("x_nostore"): A.e(f"s_mov_b32 s{sPt+2}, 0")
    A.e(f"s_lshl_b32 s3, s{sG}, 19"); A.srd(sK, 4, 524288, "s3"); A.srd(sV, 6, 524288, "s3")
    A.e(f"s_mul_i32 s3, s{sG}, 294912"); A.srd(sWo, 10, 294912, "s3")
    A.e(f"s_mov_b64 s[4:5], {s(sWg,2)}\ns_mov_b64 s[6:7], {s(sWu,2)}\ns_mov_b64 s[8:9], {s(sWd,2)}")
    A.e(f"s_mov_b32 s{sPass}, 0\ns_mul_i32 s{sW9}, s{sW}, 9216\ns_lshl_b32 s{sT8}, s{sTb}, 4\ns_add_u32 s{sT8}, s{sT8}, s{sG}")
    A.e("s_min_u32 s15, s2, 143\ns_and_b32 s3, s15, 7\ns_mul_i32 s3, s3, 18\ns_lshr_b32 s15, s15, 3\ns_add_u32 s15, s15, s3\ns_lshl_b32 s3, s15, 6")
    A.srd(sWg, sWg, 0, "s3"); A.srd(sWu, sWu, 0, "s3")
    A.e(f"s_sub_u32 s14, {576*9216}, s3\ns_mul_i32 s3, s15, 36864"); A.srd(sWd, sWd, 0, "s3")
    A.e(f"s_cmp_lt_u32 s2, 144\ns_cselect_b32 s{sWg+2}, s14, 0\ns_cselect_b32 s{sWu+2}, s14, 0\ns_cselect_b32 s{sWd+2}, 36864, 0")
    A.e(f"s_mul_i32 s3, s{sT8}, 9216"); A.srd(sXi, sXi, 9216, "s3")
    A.e(f"s_mov_b32 s{sOut+2}, 2359296\ns_mov_b32 s{sOut+3}, 0x20000"); A.srd(sWs, 12, WS_H2 + 2359296)
    A.e(f"s_mul_i32 s3, s{sT8}, 147456\ns_add_u32 s3, s3, {WS_PART}"); A.srd(sPr, 12, 147456, "s3")
    A.e(f"v_lshrrev_b32 v13, 4, v0\nv_lshlrev_b32 v{vAS}, 6, v13")
    A.e(f"v_lshrrev_b32 v14, 2, v0\nv_mul_u32_u24 v14, {PIECE}, v14\nv_add_u32 v14, {RING}, v14")
    A.e(f"v_and_b32 v15, 1, v0\nv_lshlrev_b32 v15, 4, v15\nv_add_u32 v{vT}, v14, v15\nv_and_b32 v15, 2, v0\nv_lshl_add_u32 v{vT}, v15, 2, v{vT}\nv_add_u32 v{vT2}, {2*SLOT}, v{vT}")
    A.e(f"v_lshrrev_b32 v14, 3, v0\nv_lshlrev_b32 v14, 2, v14\nv_add_u32 v14, v14, v12\nv_mul_u32_u24 v14, {4*1152}, v14\nv_and_b32 v15, 7, v0\nv_lshl_add_u32 v{vWo}, v15, 4, v14")
    A.e(f"v_lshlrev_b32 v{vPt}, 4, v15\nv_lshl_add_u32 v{vPt}, v13, 7, v{vPt}\nv_bfe_u32 v14, v0, 3, 1\nv_mul_u32_u24 v14, 147456, v14\nv_add_u32 v{vPt}, v{vPt}, v14")
    def init_kv_addr():
        A.e(f"v_lshrrev_b32 v14, 2, v0\nv_mul_u32_u24 v14, {PIECE}, v14\nv_and_b32 v15, 3, v0\nv_lshl_add_u32 v14, v15, 3, v14\nv_add_u32 v{vV}, {RING + 2*SLOT + HALF}, v14")
        A.e(f"v_and_b32 v14, 15, v0\nv_mul_u32_u24 v14, {PIECE}, v14\nv_lshrrev_b32 v15, 4, v0\nv_lshl_add_u32 v14, v15, 4, v14\nv_add_u32 v{vK}, {RING + 2*SLOT}, v14")
    init_kv_addr()
    A.e(f"v_and_b32 v14, 1, v0\nv_cmp_eq_u32 vcc, 0, v14\nv_mov_b32 v{vIdx}, 0xeeeeeeee\nv_mov_b32 v15, 0x44444444\nv_cndmask_b32 v{vIdx}, v{vIdx}, v15, vcc")
    A.e(f"v_and_b32 v14, 2, v0\nv_cmp_eq_u32 vcc, 0, v14\nv_mov_b32 v15, 0x3f803f80\ns_nop 0\nv_cndmask_b32 v15, 0, v15, vcc")
    for i in range(4): A.e(f"v_accvgpr_write_b32 a{aOne+i}, v15")
    A.stamp()
    A.wait(vm=("X", 0)); A.e("s_barrier"); A.stamp()
    A.items(as_reads(0, 0) + as_reads(0, 1))
    for q in range(4):
        A.wait(lg=("AS", 0, q)); A.items(modulate(0, q))
        if q < 3: A.items(as_reads(0, q + 2) if q < 2 else as_reads(1, 0))
    A.wait(vm=("L", 0)); A.e("s_barrier"); A.stamp()
    for G in range(QD): A.items(qreads(G))
    A.wait(lg=("A", 0))
    Sc, leftover, vmg = gen_qproj(A)
    N = len(Sc.mf)
    kv0 = kreads(0, ("K", 0)) + vreads(0, 0, ("V", 0))
    for g in range(N - 4 * QD, N):
        if g not in vmg: Sc.mem[g].append(kv0.pop(0))
    conv = []
    for t2 in range(8):
        for n in range(2):
            cv, sw = qconvert(2 * (t2 // 4) + n, t2 % 4)
            conv.append((512 + 8 * t2 + 7 + 5, cv, sw))
    pend = []
    for ready, cv, sw in conv: pend += [(ready, x) for x in cv]
    for g in range(512, N):
        if g not in vmg and len(Sc.mem[g]) < 2 and pend and pend[0][0] <= g: Sc.va[g].append(pend.pop(0)[1])
    Sc.emit(A, 0, 256); A.stamp(); Sc.emit(A, 256); A.stamp()
    emit_dma(A, leftover)
    A.items(kv0)
    A.items([x for _, x in pend]); A.e("s_nop 0")
    for _, cv, sw in conv: A.items(sw)
    A.wait(lg=(("K", 0), 0))
    for j in range(4):
        for t in range(4):
            d = S0 + 4 * j
            A.e(f"{MF} {v(d,4)}, {a(KF(0,t),4)}, {v(Q(j,t),4)}, {'0' if t == 0 else v(d,4)}")
    A.e("s_nop 1")
    for j in range(4):
        d = S0 + 4 * j
        A.e(f"v_max3_f32 v{d}, v{d}, v{d+1}, v{d+2}\nv_max_f32 v{d}, v{d}, v{d+3}")
    xmax_to_negm(A, [S0 + 4 * j for j in range(4)], BIAS)
    A.label("L2_entry")
    for i in range(16): A.e(f"v_accvgpr_write_b32 a{aL+i}, 0")
    for i in range(32): A.e(f"v_mov_b32 v{O(3,0)+i}, 0")
    A.e(f"s_mov_b32 s{sBase}, s{sW4}\ns_mov_b32 s{sDel}, {-2*SLOT}\ns_mov_b32 s{sCnt}, 15\ns_mov_b32 s{sT}, {3*16384}")
    A.e(f"v_lshrrev_b32 v14, 2, v0\ns_mul_i32 s3, s{sW}, 144\nv_add_u32 v14, s3, v14\nv_mul_u32_u24 v14, 9216, v14\nv_and_b32 v15, 3, v0\nv_lshl_add_u32 v{vFg}, v15, 4, v14")
    extra0 = [([f"s_mul_i32 m0, s{sW}, 3072" if i == 0 else "s_add_u32 m0, m0, 1024", f"s_add_u32 s{sOff2}, m0, {WS_MOD}"], f"buffer_load_dwordx4 v{vX}, {s(sWs,4)}, s{sOff2} offen lds") for i in range(3)]
    extra31 = []
    A.e(f"s_lshr_b32 s3, s2, 3\ns_lshl_b32 s3, s3, 2\ns_add_u32 s3, s3, s{sW}\ns_and_b32 s15, s2, 7")
    A.e(f"s_mul_i32 s14, s3, 9\ns_lshr_b32 s14, s14, 1\nv_min_u32 v15, 44, v0\nv_mul_u32_u24 v12, 7282, v15\nv_lshrrev_b32 v12, 16, v12\nv_mul_u32_u24 v13, 63, v12\nv_add_u32 v12, v15, v13")
    A.e(f"s_mul_i32 s14, s14, 72\ns_mul_i32 s56, s15, 9\ns_add_u32 s14, s14, s56\nv_add_u32 v12, s14, v12\nv_lshlrev_b32 v12, 7, v12")
    A.e(f"s_mul_i32 s14, s3, 81\ns_lshr_b32 s14, s14, 1\ns_mul_i32 s56, s15, 5184\ns_add_u32 s14, s14, s56\nv_min_u32 v13, 40, v0\nv_add_u32 v13, s14, v13\nv_lshlrev_b32 v13, 7, v13")
    A.e(f"s_mul_i32 s14, s3, 72\ns_andn2_b32 s56, s{sG}, 3\ns_mul_i32 s56, s56, 2304\ns_add_u32 s14, s14, s56\nv_min_u32 v14, 35, v0\nv_add_u32 v14, s14, v14\nv_lshlrev_b32 v14, 7, v14\nv_add_u32 v15, 4608, v14")
    A.wait(vm=("L", 10), lg=("V", 0)); A.e("s_barrier")
    A.stamp()
    gen_stage(0, "first", dma_kv_dyn(3, 1) + extra0, opt).emit(A)
    pf = opt.get("pf", {5: "g", 4: "u", 3: "d", 2: "a", 1: "b"})
    def body(i):
        Sa = gen_stage(i, "A", dma_kv_dyn(i + 3, 0), opt)
        if pf:
            Sa.sh[35].append(f"s_cmp_le_u32 s{sCnt}, {max(pf)}"); Sa.sh[36] += ["s_cbranch_scc1 L2_pf", "L2_pfret:"]
        Sa.emit(A)
        Sb = gen_stage(i + 1, "B", dma_kv_dyn(i + 4, 1), opt)
        Sb.sh[128].append(f"s_sub_u32 s{sCnt}, s{sCnt}, 1"); Sb.sh[129].append(f"s_cmp_lg_u32 s{sCnt}, 0")
        Sb.emit(A)
    if pf:
        A.e("s_branch L2_loop"); A.label("L2_pf")
        for cnt in sorted(pf, reverse=True):
            A.e(f"s_cmp_lg_u32 s{sCnt}, {cnt}\ns_cbranch_scc1 L2_pf{cnt}")
            for ch in pf[cnt]:
                vr, sp = dict(g=(12, 4), u=(12, 6), d=(13, 8), a=(14, 10), b=(15, 10))[ch]
                A.e(f"global_load_dword a{aDum}, v{vr}, {s(sp,2)}")
            A.e("s_branch L2_pfret"); A.label(f"L2_pf{cnt}")
        A.e("s_branch L2_pfret")
    if opt.get("align_loop", 1): A.e(".p2align 5")
    A.label("L2_loop")
    n0 = len(A.L); body(1); n1 = len(A.L); body(3)
    assert A.L[n0:n1] == A.L[n1:], "loop body not in steady state"
    assert lint(A.L[n0:], "loop2x") == 0
    del A.L[n1:]
    def shift(t, d):
        if isinstance(t, tuple) and t[0] in ("L", "V"): return (t[0], t[1] + d)
        if isinstance(t, tuple) and isinstance(t[0], tuple): return ((t[0][0], t[0][1] + d), t[1])
        return t
    A.vm = [shift(t, 26) for t in A.vm]; A.lg = [shift(t, 26) for t in A.lg]
    A.vm = [("X", t[1]) if t[1] >= 41 else t for t in A.vm]
    A.e("s_cbranch_scc1 L2_loop")
    gen_stage(31, "last", dma_wo(0) + dma_wo(1) + dma_wo(2) + ld_ffn()[:16], opt).emit(A)
    A.stamp()
    A.e("s_nop 7")
    for j in range(4): A.e(f"v_accvgpr_read_b32 v{vTmp+j}, a{aL+4*j}\nv_accvgpr_read_b32 v{S0+j}, a{aL+4*j+1}")
    for j in range(4): A.e(f"v_add_f32 v{vTmp+j}, v{vTmp+j}, v{S0+j}")
    A.e(f"s_mov_b32 s3, {hex(f2u(2.0**60))}")
    for j in range(4): A.e(f"v_cmp_nlt_f32 {s(56+2*j,2)}, v{vTmp+j}, s3")
    A.e("s_or_b64 s[56:57], s[56:57], s[58:59]\ns_or_b64 s[60:61], s[60:61], s[62:63]\ns_or_b64 s[56:57], s[56:57], s[60:61]\ns_cselect_b32 s3, 1, 0")
    A.e(f"s_lshl_b32 s14, s{sW}, 2\ns_add_u32 s14, s14, {FLAG}\nv_mov_b32 v{S0}, s3\nv_mov_b32 v{S0+1}, s14\nv_mov_b32 v{S0+2}, {FLAG}")
    A.lds(f"ds_write_b32 v{S0+1}, v{S0}", "fw")
    for j in range(4): A.e(f"v_rcp_f32 v{vTmp+j}, v{vTmp+j}")
    A.wait(vm=("L", 41), lg="fw"); A.e("s_barrier")
    A.lds(f"ds_read_b128 {v(S0+4,4)}, v{S0+2}", "fr")
    A.items(oreads(0))
    for u in range(8):
        for n in range(2):
            o = OB(n, u); j = 2 * (u // 4) + n
            for i in range(8): A.e(f"v_mul_f32 v{o+i}, v{o+i}, v{vTmp+j}")
            for i in range(4): A.e(f"v_cvt_pk_bf16_f32 v{o+i}, v{o+2*i}, v{o+2*i+1}")
            if 16 + 2 * u + n < 27:
                pre, ld = ld_ffn()[16 + 2 * u + n]; A.items(pre + [ld])
    A.wait(lg=("W", 0, 0))
    A.e(f"v_or3_b32 v{S0+4}, v{S0+4}, v{S0+5}, v{S0+6}\nv_or_b32 v{S0+4}, v{S0+4}, v{S0+7}\ns_nop 0\nv_readfirstlane_b32 s3, v{S0+4}\ns_nop 0")
    if opt.get("force_fallback"): A.e("s_mov_b32 s3, 1")
    A.e(f"s_andn2_b32 s3, s3, s{sPass}\ns_cbranch_scc1 L2_fallback")
    A.stamp()
    A.e(f"s_mul_i32 s3, s{sW}, 288\nv_and_b32 v14, 7, v0\nv_mul_u32_u24 v14, 1152, v14\nv_add_u32 v14, s3, v14\nv_lshrrev_b32 v15, 3, v0\nv_lshl_add_u32 v{vXA}, v15, 4, v14")
    A.e(f"v_and_b32 v15, 1, v15\nv_lshl_add_u32 v{vXC}, v15, 4, v14\nv_add_u32 v{vXC}, 256, v{vXC}")
    if "t" in tch:
        A.e(f"s_mul_i32 s3, s{sT8}, 9216\ns_add_u32 s14, s3, {WS_H2}\ns_mov_b64 exec, 1")
        A.e(f"buffer_load_dword a{aDum}, v{vX}, {s(sOut,4)}, s3 offen\nbuffer_load_dword a{aDum}, v{vX}, {s(sWs,4)}, s14 offen\ns_mov_b64 exec, -1")
    So, leftover = gen_oproj(A)
    So.emit(A); emit_dma(A, leftover)
    A.e("s_nop 7")
    for n in range(2):
        cv, sw, st = oepi(17, n)
        A.items(cv + ["s_nop 1"] + sw + st[0] + [st[1]])
    A.stamp()
    gen_tail(A, opt)
    A.label("L2_end")
    A.e("s_endpgm")
    A.label("L2_fallback")
    A.wait_all(); A.e("s_barrier")
    init_kv_addr()
    for j in range(4): A.e(f"v_mov_b32 v{P0+j}, 0xff800000")
    A.e(f"s_mov_b32 s{sPass}, 1\ns_mov_b32 s{sT}, 0")
    A.label("L2_fb_loop")
    emit_dma(A, dma_kv_static(None, (0,), 2))
    A.wait_all(); A.e("s_barrier")
    A.items(kreads(0, "fk")); A.wait_all(); A.e("s_barrier")
    for j in range(4):
        for kt in range(4):
            for t in range(4):
                d = S0 + 4 * kt
                A.e(f"{MF} {v(d,4)}, {a(KF(kt,t),4)}, {v(Q(j,t),4)}, {'0' if t == 0 else v(d,4)}")
        A.e("s_nop 7")
        for i in range(8): A.e(f"v_max3_f32 v{P0+j}, v{P0+j}, v{S0+2*i}, v{S0+2*i+1}")
    A.e(f"s_add_u32 s{sT}, s{sT}, 16384\ns_cmp_lt_u32 s{sT}, {32*16384}\ns_cbranch_scc1 L2_fb_loop")
    xmax_to_negm(A, [P0 + j for j in range(4)], 0.0)
    for i in range(3): emit_dma(A, dma_kv_static(i))
    A.wait_all(); A.e("s_barrier")
    A.items(kreads(0, "fk") + vreads(0, 0, "fv")); A.wait_all()
    A.e("s_branch L2_entry")
    A.label("L2_codeend")
    return A, dict(name="main_kernel", grid=256, block=256, lds=LDS_BYTES, vgpr=512, acc=256)
```

```python
import math, os
LOG2E = 1.4426950408889634
C0 = LOG2E / math.sqrt(128.0)
WS_AS = 0
WS_MOD = 8192
WS_F1 = 786432
WS_KEY = WS_F1 + 131072
WS_YP = 98304
YP_BYTES = 144 * 4608
WS_XN = 1 << 20
WS_H2 = 4 << 20
WS_PART = 8 << 20
PART_BYTES = 2048 * 576 * 2 * 16
WS_STAMP = 64 << 20
```

```python
from asmlib import *
from layout import *

RING = 16384; SLOT = 36864; HALF = 16896; PIECE = 1056
ASB = 9216
SCR = 13824
FLAG = SCR
LDS_BYTES = RING + 4 * SLOT
BIAS = 32.0
vK, vV, vT, vT2, vKV, vWq, vWo, vX, vAS, vPt, vIdx = 1, 2, 3, 4, 5, 6, 7, 8, 9, 10, 11
vTmp = 12
S0 = 16; P0 = 32; NM = 48; Q0 = 64; O0 = 128
AS0 = 16; T0 = 32; X0 = 48
def O(j, dt): return O0 + (j * 8 + dt) * 4
def Q(j, t): return Q0 + (j * 4 + t) * 4
def X(c, n, kl): return X0 + ((c + 2) % 5) * 16 + (n * 2 + kl) * 4
aL = 0; aOne = 16; aK = 64; aV = 128
def KF(kt, t): return aK + (kt * 4 + t) * 4
def VF(buf, dt, u): return aV + buf * 64 + (dt * 2 + u) * 4
sK, sV, sWq, sWo, sXn, sWr, sPt = 16, 20, 24, 28, 32, 36, 40
sC, sWm, sDb = 16, 88, 60
sW4, sOff, sT, sBase, sDel, sCnt, sPass, sW, sG, sTb, sOff2 = 44, 45, 46, 47, 48, 49, 50, 51, 52, 53, 54
sWg, sWu, sWd, sXi, sOut, sWs, sPr = 64, 68, 72, 76, 80, 84, 88
sW9, sT8, sCap = 55, 96, 97
sSt = 24; sYp = 32
vFg = vWq
aDum = 63
MF = "v_mfma_f32_16x16x32_bf16"

def trd(dst, slot, off):
    base = vT if slot < 2 else vT2
    return f"ds_read_b64_tr_b16 {a(dst,2)}, v{base} offset:{(slot % 2) * SLOT + off}"

def dma_wq(c):
    slot = (c + 1) % 4; out = []
    for kl in range(2):
        for r in range(4):
            out.append(([f"s_add_u32 m0, s{sW4}, {slot*SLOT + kl*HALF + r*PIECE}", f"s_mov_b32 s{sOff}, {(64*c + 32*kl + r) * 8192}"],
                        ("vm", f"buffer_load_dwordx4 v{vWq}, {s(sWq,4)}, s{sOff} offen{OPT.get('wq_nt','')} lds", ("L", c))))
    return out
def dma_kv_static(i, halves=(0, 1), slot=None):
    slot = (i + 2) % 4 if slot is None else slot; out = []
    for h in halves:
        for j in range(4):
            pre = [f"s_add_u32 m0, s{sW4}, {slot*SLOT + h*HALF + 32*j}"]
            if i is not None and j == 0 and h == halves[0]: pre.append(f"s_mov_b32 s{sT}, {i*16384}")
            out.append((pre, ("vm", f"buffer_load_dwordx4 v{vKV}, {s(sV if h else sK,4)}, s{sT} offen offset:{1024*j}{OPT.get('kv_nt','')} lds", ("L", 9 + (i or 0)))))
    return out
def dma_kv_dyn(i, odd):
    out = []
    for h in range(2):
        for j in range(4):
            pre = [f"s_add_u32 m0, s{sBase}, {odd*SLOT + h*HALF + 32*j}"]
            out.append((pre, ("vm", f"buffer_load_dwordx4 v{vKV}, {s(sV if h else sK,4)}, s{sT} offen offset:{1024*j}{OPT.get('kv_nt','')} lds", ("L", 9 + i))))
    return out
def dma_wo(c):
    slot = (c + 2) % 4; out = []
    for hi in range(2):
        for r in range(4):
            pre = [f"s_add_u32 m0, s{sW4}, {slot*SLOT + hi*HALF - 96*r}"]
            if r == 0: pre.append(f"s_mov_b32 s{sOff}, {c*128 + hi*128*1152}")
            out.append((pre, ("vm", f"buffer_load_dwordx4 v{vWo}, {s(sWo,4)}, s{sOff} offen offset:{1152*r}{OPT.get('wo_nt','')} lds", ("L", 41 + c))))
    return out
def FW(k): return aV + 4 * k
def ld_ffn():
    out = []
    for m in range(3):
        for i in range(9):
            d = a(FW(9 * m + i), 4)
            if m < 2: out.append(([f"s_mov_b32 s{sOff2}, {i*16*9216}"], ("vm", f"buffer_load_dwordx4 {d}, v{vFg}, {s(sWu if m else sWg,4)}, s{sOff2} offen", "fw")))
            else: out.append(([f"s_add_u32 s{sOff2}, s{sW9}, {1024*i}"], ("vm", f"buffer_load_dwordx4 {d}, v{vX}, {s(sWd,4)}, s{sOff2} offen", "fw")))
    return out
def touch(vaddr, srd, off):
    return ([f"s_mov_b32 s{sOff2}, {off}"], f"buffer_load_dword a{aDum}, v{vaddr}, {s(srd,4)}, s{sOff2} offen")
def dmaL(n):
    return dma_wq(n) if n < 9 else (dma_kv_static(n - 9) if n < 41 else dma_wo(n - 41))
def emit_dma(A, lst):
    for pre, ld in lst:
        A.items(pre)
        if len(pre) == 1: A.e("s_nop 0")
        A.item(ld)
def xload(c):
    return [([f"s_mov_b32 s{sOff2}, {n*18432 + (2*c+kl)*1024}"],
             ("vm", f"buffer_load_dwordx4 {v(X(c,n,kl),4)}, v{vX}, {s(sXn,4)}, s{sOff2} offen sc1", ("X", c))) for n in range(2) for kl in range(2)]
def place_vm(Sc, g, item):
    pre, ld = item
    for k, p in enumerate(pre): Sc.sh[g - 1 + k].append(p)
    Sc.mem[g].append(ld)

def as_reads(c, q):
    kl, hf = q // 2, q % 2; d = AS0 + (q % 2) * 8; off = ASB + (2 * c + kl) * 256 + hf * 16
    return [("lds", f"ds_read_b128 {v(d,4)}, v{vAS} offset:{off}", ("AS", c, q)), ("lds", f"ds_read_b128 {v(d+4,4)}, v{vAS} offset:{off+32}", ("AS", c, q))]
def modulate(c, q):
    kl, hf = q // 2, q % 2; d = AS0 + (q % 2) * 8; out = []
    for n in range(2):
        x = X(c, n, kl) + 2 * hf; t = T0 + 4 * n
        for i in range(4):
            out.append(f"v_fma_mix_f32 v{t+i}, v{x+i//2}, v{d+i}, v{d+4+i} op_sel:[{i%2},0,0] op_sel_hi:[1,0,0]")
        out += [f"v_cvt_pk_bf16_f32 v{x}, v{t}, v{t+1}", f"v_cvt_pk_bf16_f32 v{x+1}, v{t+2}, v{t+3}"]
    return out

def kreads(off, tag): return [("lds", f"ds_read_b128 {a(KF(kt,t),4)}, v{vK} offset:{off + kt*256 + t*64}", (tag, kt)) for kt in range(4) for t in range(4)]
def vreads(buf, off, tag): return [("lds", f"ds_read_b64_tr_b16 {a(VF(buf,dt,u)+2*b,2)}, v{vV} offset:{off + (2*u+b)*256 + dt*32}", tag) for dt in range(8) for u in range(2) for b in range(2)]

QD = 3
def AF(grp, kl): return aV + 64 + (grp % 8) * 8 + kl * 4
def qreads(G):
    c, mt = divmod(G, 16); slot = (c + 1) % 4
    return [("lds", trd(AF(G, kl) + 2 * b, slot, kl * HALF + b * 512 + mt * 32), ("A", G)) for kl in range(2) for b in range(2)]

def gen_qproj(A):
    Sc = Sched()
    for c in range(9):
        for mt in range(16):
            G = c * 16 + mt
            for n in range(2):
                d = O(2 * (mt // 8) + n, mt % 8)
                for kl in range(2):
                    cc = "0" if c == 0 and kl == 0 else v(d, 4)
                    Sc.mfma(f"{MF} {v(d,4)}, {a(AF(G,kl),4)}, {v(X(c,n,kl),4)}, {cc}")
    N = len(Sc.mf); vmg = set()
    leftover = []
    for k, it in enumerate(dmaL(2)):
        g = 3 + 4 * k; place_vm(Sc, g, it); vmg.add(g)
    for c in range(9):
        gb = 64 * (c + 1) - 4 * QD - 1
        Sc.sh[gb] += [("wait", ("L", c + 1), None), "s_barrier"]
        for k, it in enumerate(dmaL(c + 3)):
            g = gb + 4 + 4 * k
            if g < N: place_vm(Sc, g, it); vmg.add(g)
            else: leftover.append(it)
    for c in range(6):
        for k, it in enumerate(xload(c + 3)):
            g = 64 * c + 35 + 4 * k
            assert g not in vmg
            place_vm(Sc, g, it); vmg.add(g)
    for G in range(144):
        if G > 0: Sc.sh[4 * G - 1].append(("wait", None, ("A", G)))
        if G + QD < 144:
            rd = qreads(G + QD); gs = [g for g in range(4 * G, 4 * G + 4) if g not in vmg]
            if len(gs) == 3: gs = [gs[0], gs[1], gs[1], gs[2]]
            for g, r in zip(gs, rd): Sc.mem[g].append(r)
    for c in range(8):
        Sc.sh[64 * c].append(("wait", ("X", c + 1), None))
        for q in range(4):
            w0 = 64 * c + 16 * q
            nxt = as_reads(c + 1, q + 1) if q < 3 else (as_reads(c + 2, 0) if c < 7 else [])
            items = modulate(c + 1, q)
            Sc.sh[w0].append(("wait", None, ("AS", c + 1, q)))
            free = [g for g in range(w0, w0 + 16) if g not in vmg and len(Sc.mem[g]) < 2]
            for r in nxt:
                g = free.pop(0); Sc.mem[g].append(r)
            over = len(items) - len(free)
            odd = sorted(range(w0 + 1, w0 + 16, 2), key=lambda g: (g in vmg, -g))
            slots = sorted(free + odd[:over] if over > 0 else free); assert len(slots) >= len(items)
            for g, it in zip(slots, items): Sc.va[g].append(it)
    return Sc, leftover, vmg

def qconvert(j, t):
    o = O(j, 2 * t); q = Q(j, t)
    return [f"v_cvt_pk_bf16_f32 v{q+i}, v{o+2*i}, v{o+2*i+1}" for i in range(4)], [f"v_permlane32_swap_b32 v{q}, v{q+2}", f"v_permlane32_swap_b32 v{q+1}, v{q+3}"]

def xmax_to_negm(A, src, bias):
    t = vTmp
    for op in ("v_permlane16_swap_b32", "v_permlane32_swap_b32"):
        for j in range(4): A.e(f"v_mov_b32 v{t+j}, v{src[j]}")
        for j in range(4): A.e(f"{op} v{t+j}, v{src[j]}")
        for j in range(4): A.e(f"v_max_f32 v{src[j]}, v{src[j]}, v{t+j}")
    for j in range(4):
        for i in range(4): A.e(f"v_sub_f32 v{NM+4*j+i}, {hex(f2u(-bias))}, v{src[j]}")

def gen_stage(i, kind, dma, opt):
    par = i % 2; Sc = Sched(); first = kind == "first"; last = kind == "last"
    nun = 5 if last else 4
    for j in range(nun):
        for kt in range(4):
            for t in range(4):
                d = S0 + 4 * kt
                Sc.mfma(None if j == 4 else f"{MF} {v(d,4)}, {a(KF(kt,t),4)}, {v(Q(j,t),4)}, {v(NM+4*j,4) if t == 0 else v(d,4)}")
        jp = (j - 1) % 4; vb = par if j > 0 else 1 - par; p = P0 + 8 * (jp % 2)
        skip = first and j == 0
        for dt in range(8):
            for u in range(2):
                d = O(jp, dt); cc = "0" if first and u == 0 else v(d, 4)
                Sc.mfma(None if skip else f"{MF} {v(d,4)}, {a(VF(vb,dt,u),4)}, {v(p+4*u,4)}, {cc}")
        Sc.mfma(None if skip else f"v_smfmac_f32_16x16x64_bf16 {a(aL+4*jp,4)}, {a(aOne,4)}, {v(p,8)}, v{vIdx}")
        b = 33 * j
        for x in range(16):
            prev = x < 4
            if (prev and skip) or (j == 4 and not prev): continue
            e = (x - 4) % 16
            Sc.va[b + 2 * x].append(f"v_exp_f32 v{S0+e}, v{S0+e}")
        for k in range(8):
            prev = k < 3; pr = (k + 5) % 8
            if (prev and skip) or (j == 4 and not prev): continue
            pb = P0 + 8 * ((j - 1 if prev else j) % 2)
            Sc.va[b + 4 * k + 1].append(f"v_cvt_pk_bf16_f32 v{pb+pr}, v{S0+2*pr}, v{S0+2*pr+1}")
    if first:
        for g in range(16, 33):
            if g % 2 == 0: Sc.va[g].append("s_nop 0")
        Sc.sh[16].append("s_nop 3"); Sc.sh[8].append("s_nop 1")
    if last:
        for g in range(33 * 4, 33 * 4 + 8, 2): Sc.va[g].append("s_nop 0")
        Sc.va[33 * 4 + 15].append("s_nop 1")
    for kt in range(1, 4): Sc.sh[4 * kt - 1].append(("wait", None, (("K", i), kt)))
    step = opt.get("dma_step", 4)
    cand = [33 * j + r for j in range(3) for r in range(3, 32, 4)]
    gs = cand[::step // 4] if not (last or first) else cand + [99 + r for r in range(3, 32, 4)] + [132 + r for r in range(17, 32, 2)]
    vmg = set()
    for g, it in zip(gs, dma): place_vm(Sc, g, it); vmg.add(g)
    assert len(vmg) == len(dma)
    if kind == "A":
        Sc.va[1].append(f"v_add_u32 v{vK}, s{sDel}, v{vK}"); Sc.va[5].append(f"v_add_u32 v{vV}, s{sDel}, v{vV}")
        Sc.sh[0].append(f"s_sub_u32 s{sBase}, s{sBase}, s{sDel}")
        Sc.sh[8].append(f"s_sub_u32 s{sDel}, 0, s{sDel}")
    if not last:
        Sc.sh[100].append(f"s_add_u32 s{sT}, s{sT}, 16384"); Sc.sh[101].append(f"s_min_u32 s{sT}, s{sT}, {31*16384}")
        off = 0 if kind == "A" else SLOT
        free = [33 * j + r for j in range(3) for r in list(range(1, 32, 2)) + [32] if 33 * j + r >= 17 and 33 * j + r not in vmg]
        vr = vreads(1 - par, off, ("V", i + 1))
        if len(free) < 32: free = sorted(free + free[len(free) - (32 - len(free)):])
        for n, r in enumerate(vr):
            assert free[n] >= 16 + n // 2
            Sc.mem[free[n]].append(r)
        for n, r in enumerate(kreads(off, ("K", i + 1))): Sc.mem[99 + 2 * n + 1].append(r)
        Sc.sh[131] += [("wait", ("L", 9 + i + 2), (("K", i + 1), 0)), "s_barrier"]
    return Sc

OA = 16; OR = 48
def OB(n, u): return O(2 * (u // 4) + n, 2 * (u % 4))
def WF(grp, u): return aK + (grp % 2) * 32 + u * 4
def oreads(G):
    c, ntl = divmod(G, 4); slot = (c + 2) % 4
    return [("lds", trd(WF(G, u) + 2 * b, slot, (u // 4) * HALF + (2 * (u % 4) + b) * 128 + ntl * 32), ("W", G, u // 2)) for u in range(8) for b in range(2)]
def oacc(G, n): return OA + ((G % 4) * 2 + n) * 4
def oepi(pair, n):
    r = OR + 4 * n; x, y = oacc(2 * pair, n), oacc(2 * pair + 1, n); c, aa = divmod(pair, 2)
    cv = [f"v_cvt_pk_bf16_f32 v{r}, v{x}, v{x+1}", f"v_cvt_pk_bf16_f32 v{r+1}, v{x+2}, v{x+3}", f"v_cvt_pk_bf16_f32 v{r+2}, v{y}, v{y+1}", f"v_cvt_pk_bf16_f32 v{r+3}, v{y+2}, v{y+3}"]
    sw = [f"v_permlane32_swap_b32 v{r}, v{r+2}", f"v_permlane32_swap_b32 v{r+1}, v{r+3}"]
    st = ([f"s_mov_b32 s{sOff2}, {n*294912 + c*1024}"], ("vm", f"buffer_store_dwordx4 {v(r,4)}, v{vPt}, {s(sPt,4)}, s{sOff2} offen offset:{aa*512}{OPT.get('st_flags', ' sc1')}", "st"))
    return cv, sw, st

vXA, vXC = vK, vV
XR = 64
def xi_loads():
    return [([], ("vm", f"buffer_load_dwordx4 {v(XR+4*i,4)}, v{vXC if i == 2 else vXA}, {s(sXi,4)}, 0 offen offset:{128 if i == 1 else 0}", "xi")) for i in range(3)]
WR = 112
def wr_loads():
    return [([], ("vm", f"buffer_load_dwordx4 {v(WR+4*i,4)}, v{13 if i == 2 else 12}, {s(sWr,4)}, 0 offen offset:{128*i}", "xi")) for i in range(3)]
def item_addr(A):
    A.e(f"s_mul_i32 s3, s{sW}, 288\nv_lshrrev_b32 v15, 3, v0\nv_lshl_add_u32 v12, v15, 4, s3\nv_and_b32 v15, 1, v15\nv_lshl_add_u32 v13, v15, 4, s3")
    A.e(f"v_and_b32 v14, 7, v0\nv_mul_u32_u24 v14, 1152, v14\nv_add_u32 v{vXA}, v14, v12\nv_add_u32 v{vXC}, v14, v13\nv_add_u32 v{vXC}, 256, v{vXC}")

def gen_oproj(A):
    Sc = Sched()
    for G in range(36):
        for n in range(2):
            for u in range(8):
                d = oacc(G, n)
                Sc.mfma(f"{MF} {v(d,4)}, {a(WF(G,u),4)}, {v(OB(n,u),4)}, {'0' if u == 0 else v(d,4)}")
    N = len(Sc.mf); vmg = set(); leftover = []
    st = OPT.get("o_step", 2)
    for k, it in enumerate(dma_wo(3) + xi_loads() + wr_loads()):
        g = 3 + st * k; place_vm(Sc, g, it); vmg.add(g)
    for c in range(8):
        gb = 64 * c + 47
        Sc.sh[gb] += [("wait", ("L", 41 + c + 1), None)] * (not OPT.get("x_nowait")) + ["s_barrier"] * (not OPT.get("x_nobar"))
        if c >= 1 and c + 3 <= 8:
            for k, it in enumerate(dma_wo(c + 3)):
                g = gb + 2 + st * k
                if g < N: place_vm(Sc, g, it); vmg.add(g)
                else: leftover.append(it)
    swg = set()
    for p in range(17):
        for n in range(2):
            b = 16 * (2 * p + 2) + 8 * n
            cv, sw, st = oepi(p, n)
            for k, x in enumerate(cv): Sc.va[b + k].append(x)
            Sc.va[b + 5].append(sw[0]); Sc.va[b + 6].append(sw[1]); swg |= {b + 5, b + 6}
            Sc.sh[b + 4].append(st[0][0]); Sc.va[b + 7].append(st[1])
    for G in range(36):
        for h in range(4):
            g = 16 * G + 2 * h - 1
            if g >= 0: Sc.sh[g].append(("wait", None, ("W", G, h)))
        if G + 1 < 36:
            gs = [g for g in range(16 * G, 16 * G + 16) if g not in vmg and g not in swg]
            two = [g for g in gs if not Sc.va[g]]
            extra = 16 - len(gs)
            if extra > len(two): two = two + [g for g in range(16 * G + 7, 16 * G + 16, 8)] * 4
            gs = sorted(gs + two[:extra]); assert len(gs) == 16
            for g, r in zip(gs, oreads(G + 1)): Sc.mem[g].append(r)
    return Sc, leftover

def xsum8(A, regs, tmp):
    A.e("s_nop 1")
    for x in regs: A.e(f"v_add_f32_dpp v{x}, v{x}, v{x} row_ror:8 row_mask:0xf bank_mask:0xf")
    xsumG(A, regs, tmp)
def xsumG(A, regs, tmp):
    for op in ("v_permlane16_swap_b32", "v_permlane32_swap_b32"):
        for k, x in enumerate(regs): A.e(f"v_mov_b32 v{tmp+k}, v{x}")
        if len(regs) < 3: A.e(f"s_nop {2 - len(regs)}")
        for k, x in enumerate(regs): A.e(f"{op} v{tmp+k}, v{x}")
        for k, x in enumerate(regs): A.e(f"v_add_f32 v{x}, v{x}, v{tmp+k}")
def merge2(A, m1, m2, t1, t2):
    A.e(f"v_max_u32 v{m2}, v{m2}, v{t2}\nv_med3_u32 v{m2}, v{m1}, v{t1}, v{m2}\nv_max_u32 v{m1}, v{m1}, v{t1}")
def top2_lanes(A, m1, m2, t1, t2, rors, swaps):
    for sh in rors:
        A.e(f"s_nop 1\nv_mov_b32_dpp v{t1}, v{m1} row_ror:{sh} row_mask:0xf bank_mask:0xf\nv_mov_b32_dpp v{t2}, v{m2} row_ror:{sh} row_mask:0xf bank_mask:0xf")
        merge2(A, m1, m2, t1, t2)
    for op in swaps:
        A.e(f"v_mov_b32 v{t1}, v{m1}\nv_mov_b32 v{t2}, v{m2}\ns_nop 0\n{op} v{t1}, v{m1}\n{op} v{t2}, v{m2}")
        merge2(A, m1, m2, t1, t2)
def dot24(A, d, t, x, y):
    for acc, lo, hi in ((d, 0, 16), (t, 16, 24)):
        for i in range(lo, hi):
            if y is None:
                if i == lo: continue
                A.e(f"v_add_f32 v{acc}, v{x+lo if i == lo+1 else acc}, v{x+i}")
            else: A.e(f"{'v_mul_f32' if i == lo else 'v_fmac_f32'} v{acc}, v{x+i}, v{y+i}")
    A.e(f"v_fmac_f32 v{d}, 0x3e800000, v{t}")
def poll(A, name, loads, test, sleep=1, shrink=0):
    A.e(f"s_mov_b32 s{sCap}, 0x20000")
    A.label(name)
    A.e(loads); A.wait_all(lg=False); A.e(test)
    A.e(f"s_sub_u32 s{sCap}, s{sCap}, 1\ns_cselect_b64 vcc, 0, vcc\ns_cmp_eq_u64 vcc, 0\ns_cbranch_scc1 {name}_ok")
    if shrink: A.e("s_mov_b64 exec, vcc")
    if sleep: A.e(f"s_sleep {sleep}")
    A.e(f"s_branch {name}")
    A.label(name + "_ok")
    if shrink: A.e("s_mov_b64 exec, -1")

def gen_tail(A, opt):
    ACC, GA, U, TM, PL = 16, 40, 76, 100, 112
    vMA, vMC, vPA, vPC, vTr = 3, 4, 5, 7, 9
    TB = RING + 2 * SLOT
    ST = SCR + 256
    aF = 64
    A.e(f"v_lshlrev_b32 v12, 7, v0\nv_mov_b32 v13, 1\ns_lshl_b32 s15, s{sTb}, 13\ns_add_u32 s15, s15, {WS_F1}\ns_lshl_b32 s3, s{sW}, 4\ns_add_u32 s3, s3, s{sG}\ns_lshl_b32 s3, s3, 7\ns_add_u32 s3, s3, s15")
    A.e(f"s_and_b32 s14, s{sG}, 12\ns_lshl_b32 s14, s14, 9\ns_add_u32 s15, s15, s14")
    A.e(f"s_mul_i32 s14, s{sW}, 2304\nv_add_u32 v{vPA}, s14, v{vX}")
    A.e(f"v_lshrrev_b32 v14, 4, v0\nv_mul_u32_u24 v14, {9216-256}, v14\nv_add_u32 v{vPC}, v{vPA}, v14")
    A.wait(vm="xi")
    for q in range(12): A.e(f"v_lshlrev_b32 v{ACC+2*q}, 16, v{WR+q}\nv_and_b32 v{ACC+2*q+1}, 0xffff0000, v{WR+q}")
    A.wait_all(lg=False)
    A.e(f"s_mov_b64 exec, 1\nbuffer_store_dword v13, v12, {s(sWs,4)}, s3 offen sc1\ns_mov_b64 exec, 0xffff")
    A.stamp()
    poll(A, "L2_p1", f"buffer_load_dword v13, v12, {s(sWs,4)}, s15 offen sc1", "v_cmp_eq_u32 vcc, 0, v13", opt.get("sl1", 1))
    A.e("s_mov_b64 exec, -1")
    A.stamp()
    pend = []
    for q in range(4): pend.append([f"s_mov_b32 s{sOff}, {q*36864}", ("vm", f"buffer_load_dwordx4 {v(PL+4*q,4)}, v{vPC}, {s(sPr,4)}, s{sOff} offen offset:2048 sc1", ("c", q))])
    for g in range(16):
        for h in range(2): pend.append([f"s_mov_b32 s{sOff}, {g*9216}"] * (h == 0) + [("vm", f"buffer_load_dwordx4 {v(PL+16+8*g+4*h,4)}, v{vPA}, {s(sPr,4)}, s{sOff} offen offset:{1024*h} sc1", ("p", g, h))])
    win = opt.get("win", 8)
    def more(n=1):
        for _ in range(n):
            if pend: A.items(pend.pop(0))
    def pace():
        if pend:
            if len(A.vm) >= win: A.wait(vm=A.vm[len(A.vm) - win])
            more()
        if fww: A.item(fww.pop(0))
    more(win)
    vF0, vF1 = TM + 5, TM + 6
    A.e(f"s_barrier\ns_add_u32 s14, s{sW9}, {RING}\nv_add_u32 v{vF0}, s14, v{vX}\nv_add_u32 v{vF1}, {2*SLOT}, v{vF0}")
    fww = [("lds", f"ds_write_b128 v{vF0 + ((3 + k//9) % 4)//2}, {a(FW(k),4)} offset:{((3 + k//9) % 2)*SLOT + 1024*(k%9)}", "fww") for k in range(27)]
    A.e(f"s_mul_i32 s14, s{sW}, 576\nv_lshrrev_b32 v14, 3, v0\nv_lshlrev_b32 v{vMA}, 5, v14\nv_add_u32 v{vMA}, s14, v{vMA}")
    A.e(f"v_and_b32 v14, 1, v14\nv_lshlrev_b32 v{vMC}, 5, v14\nv_add_u32 v{vMC}, s14, v{vMC}")
    def vec(m, d, tag):
        for i in range(3):
            for h in range(2): A.lds(f"ds_read_b128 {v(d+8*i+4*h,4)}, v{vMC if i == 2 else vMA} offset:{m*2304 + 256*i + 16*h}", tag)
    vec(2, U, "cb"); vec(1, GA, "sb")
    A.wait(lg="cb")
    for i in range(24): A.e(f"v_mul_f32 v{U+i}, v{U+i}, v{ACC+i}")
    A.wait(lg="sb")
    dot24(A, TM, TM + 2, U, None); dot24(A, TM + 1, TM + 2, GA, ACC)
    vec(0, GA, "ga")
    pace(); pace()
    pace(); pace()
    xsum8(A, [TM, TM + 1], TM + 2)
    A.e(f"v_and_b32 v14, 7, v0\nv_lshlrev_b32 v11, 4, v14\nv_add_u32 v11, {ST}, v11\ns_lshl_b32 s3, s{sW}, 2\nv_add_u32 v10, s3, v11")
    A.lds(f"ds_write_b32 v10, v{TM} offset:384", "ut"); A.lds(f"ds_write_b32 v10, v{TM+1} offset:512", "ut")
    A.e(f"v_lshl_add_u32 v{vXA}, v14, 4, v{vXA}\nv_lshl_add_u32 v{vXC}, v14, 4, v{vXC}\nv_add_u32 v{vXA}, {TB}, v{vXA}\nv_add_u32 v{vXC}, {TB}, v{vXC}")
    A.e(f"s_and_b32 s3, s{sW}, 1\ns_mul_i32 s3, s3, 288\nv_add_u32 v14, s3, v0\nv_lshlrev_b32 v{vTr}, 4, v14\ns_lshr_b32 s14, s{sW}, 1\ns_mul_i32 s14, s14, 9344\ns_add_u32 s14, s14, {TB}")
    for r in range(5):
        A.e(f"v_add_u32 v15, {64*r}, v14\nv_mul_u32_u24 v12, 911, v15\nv_lshrrev_b32 v12, 16, v12\nv_add_u32 v15, v15, v12\nv_lshl_add_u32 v{TM+7+r}, v15, 4, s14")
    A.e(f"s_mul_i32 s3, s{sT8}, 9216\ns_add_u32 s14, s3, {WS_H2}\ns_cmp_lt_u32 s{sW}, 2\ns_cselect_b32 s3, s3, s14\ns_cselect_b64 {s(sSt,2)}, {s(sOut,2)}, {s(sWs,2)}")
    A.srd(sSt, sSt, 9216, "s3")
    def acc(dst, src, first):
        for q in range(4):
            if first: A.e(f"v_lshlrev_b32 v{dst+2*q}, 16, v{src+q}\nv_and_b32 v{dst+2*q+1}, 0xffff0000, v{src+q}")
            else:
                t = 12 + 2 * (q % 2)
                A.e(f"v_lshlrev_b32 v{t}, 16, v{src+q}\nv_and_b32 v{t+1}, 0xffff0000, v{src+q}\nv_pk_add_f32 {v(dst+2*q,2)}, {v(dst+2*q,2)}, {v(t,2)}")
    for q in range(4): A.wait(vm=("c", q)); pace(); acc(ACC + 16, PL + 4 * q, q == 0)
    xsumG(A, list(range(ACC + 16, ACC + 24)), PL)
    CB, SB, GB, D = PL, PL + 24, PL + 48, PL + 72
    for g in range(16):
        for h in range(2): A.wait(vm=("p", g, h)); pace(); acc(ACC + 8 * h, PL + 16 + 8 * g + 4 * h, g == 0)
        if g == 8: vec(2, CB, "m"); vec(1, SB, "m"); vec(3, GB, "m")
    A.stamp()
    A.wait(lg="ga")
    for q in range(12):
        A.e(f"v_lshlrev_b32 v12, 16, v{XR+q}\nv_and_b32 v13, 0xffff0000, v{XR+q}\nv_pk_fma_f32 {v(ACC+2*q,2)}, {v(ACC+2*q,2)}, {v(GA+2*q,2)}, v[12:13]")
    MU, M2, DD = TM, TM + 1, TM + 2
    dot24(A, MU, TM + 3, ACC, None); xsum8(A, [MU], TM + 3)
    A.e(f"v_mul_f32 v{MU}, {hex(f2u(1/144))}, v{MU}")
    for i in range(24): A.e(f"v_sub_f32 v{D+i}, v{ACC+i}, v{MU}")
    dot24(A, M2, TM + 3, D, D); dot24(A, DD, TM + 3, D, U); xsum8(A, [M2, DD], TM + 3)
    for k in range(3): A.lds(f"ds_write_b32 v10, v{TM+k} offset:{128*k}", "sw")
    A.wait(lg="sw"); A.e("s_barrier")
    R = GA
    for k in range(5): A.lds(f"ds_read_b128 {v(R+4*k,4)}, v11 offset:{128*k}", ("sr", k))
    A.wait(lg=("sr", 0))
    A.e(f"v_add_f32 v12, v{R}, v{R+1}\nv_add_f32 v13, v{R+2}, v{R+3}\nv_add_f32 v12, v12, v13\nv_mul_f32 v12, 0x3e800000, v12")
    for k in range(4): A.e(f"v_sub_f32 v{R+k}, v{R+k}, v12")
    A.e(f"v_sub_f32 v{MU}, v{MU}, v12\nv_mul_f32 v13, v{R}, v{R}")
    for k in range(1, 4): A.e(f"v_fmac_f32 v13, v{R+k}, v{R+k}")
    A.wait(lg=("sr", 1))
    A.e(f"v_add_f32 v14, v{R+4}, v{R+5}\nv_add_f32 v15, v{R+6}, v{R+7}\nv_add_f32 v14, v14, v15\nv_fmac_f32 v14, {hex(f2u(144.0))}, v13")
    A.e(f"v_mov_b32 v13, {hex(f2u(1e-5))}\nv_fmac_f32 v13, {hex(f2u(1/576))}, v14\nv_rsq_f32 v13, v13")
    A.wait(lg=("sr", 4))
    A.e(f"v_mul_f32 v{MU}, v{MU}, v13")
    for i in range(24): A.e(f"v_fma_f32 v{D+i}, v{D+i}, v13, v{MU}")
    for i in range(0, 24, 2): A.e(f"v_pk_fma_f32 {v(D+i,2)}, {v(D+i,2)}, {v(CB+i,2)}, {v(SB+i,2)}")
    for i in range(0, 24, 2): A.e(f"v_pk_fma_f32 {v(ACC+i,2)}, {v(D+i,2)}, {v(GB+i,2)}, {v(ACC+i,2)}")
    for m, src in enumerate((ACC, D)):
        for i in range(3):
            d = CB + 12 * m + 4 * i
            for q in range(4): A.e(f"v_cvt_pk_bf16_f32 v{d+q}, v{src+8*i+2*q}, v{src+8*i+2*q+1}")
            A.lds(f"ds_write_b128 v{vXC if i == 2 else vXA}, {v(d,4)} offset:{9344*m + (128 if i == 1 else 0)}", "tw")
    for k in range(4): A.e(f"v_fmac_f32 v{R+8+k}, v{R+k}, v{R+12+k}")
    A.e(f"v_add_f32 v14, v{R+8}, v{R+9}\nv_add_f32 v15, v{R+10}, v{R+11}\nv_add_f32 v14, v14, v15")
    A.e(f"v_add_f32 v15, v{R+16}, v{R+17}\nv_add_f32 v12, v{R+18}, v{R+19}\nv_add_f32 v15, v15, v12\nv_fmac_f32 v15, v14, v13")
    A.wait(lg="tw"); A.e("s_barrier")
    for r in range(5): A.lds(f"ds_read_b128 {v(GB+4*r,4)}, v{TM+7+r}", ("tr", r))
    K1, K2 = TM, TM + 1
    A.e(f"s_lshl_b32 s3, s{sT8}, 3\ns_sub_u32 s3, 0xfff, s3\nv_and_b32 v14, 7, v0\nv_sub_u32 v14, s3, v14")
    A.e(f"v_ashrrev_i32 v12, 31, v15\nv_or_b32 v12, 0x80000000, v12\nv_xor_b32 v12, v12, v15\nv_and_b32 v12, 0xfffff000, v12\nv_or_b32 v{K1}, v12, v14\nv_mov_b32 v{K2}, 0")
    for r in range(5):
        A.wait(lg=("tr", r))
        if r == 4: A.e(f"s_mov_b32 exec_hi, 0\ns_mov_b32 s3, 4096")
        A.vmem(f"buffer_store_dwordx4 {v(GB+4*r,4)}, v{vTr}, {s(sSt,4)}, {'s3' if r == 4 else 0} offen offset:{1024*(r%4)} sc1", "os")
    A.e("s_mov_b64 exec, -1")
    top2_lanes(A, K1, K2, 12, 13, (1, 2, 4), ())
    A.e(f"s_lshl_b32 s3, s{sT8}, 7\ns_add_u32 s3, s3, {WS_KEY + 8}\nv_lshlrev_b32 v14, 7, v0")
    A.e(f"s_lshl_b32 s15, s{sW}, 13\ns_add_u32 s15, s15, {WS_KEY + 8}")
    A.stamp()
    A.wait_all(lg=False)
    A.e(f"s_barrier\ns_cmp_lg_u32 s{sW}, 0\ns_cbranch_scc1 L2_nokey")
    A.e(f"s_mov_b64 exec, 1\nbuffer_store_dwordx2 {v(K1,2)}, v14, {s(sWs,4)}, s3 offen sc1\ns_mov_b64 exec, -1")
    A.label("L2_nokey")
    A.stamp()
    A.e("s_cmp_ge_u32 s2, 180\ns_cbranch_scc1 L2_fin")
    A.e("s_cmp_ge_u32 s2, 144\ns_cbranch_scc1 L2_gather")
    A.e(f"v_lshrrev_b32 v21, 4, v0\nv_bfe_u32 v20, v0, 2, 2\nv_lshl_add_u32 v20, v21, 3, v20\nv_and_b32 v21, 3, v0\nv_lshlrev_b32 v22, 6, v20\nv_lshl_add_u32 v22, v21, 3, v22")
    A.e(f"s_cmp_lt_u32 s{sW}, 2\ns_cselect_b32 s3, {RING + 3*SLOT}, {RING & 0}\ns_cselect_b32 s14, 0, {RING}\ns_add_u32 s3, s3, s14\ns_and_b32 s14, s{sW}, 1\ns_lshl_b32 s14, s14, 5\ns_add_u32 s3, s3, s14\nv_add_u32 v22, s3, v22")
    A.e(f"v_mul_u32_u24 v23, 1152, v20\nv_lshl_add_u32 v23, v21, 3, v23\ns_mul_i32 s3, s{sW}, 288\ns_add_u32 s3, s3, {RING + SLOT}\nv_add_u32 v23, s3, v23")
    for kk in range(18):
        for b in range(2): A.lds(f"ds_read_b64_tr_b16 {a(aF+4*kk+2*b,2)}, v22 offset:{2048*kk + 256*b}", "fa")
    for nt in range(9):
        for b in range(2): A.lds(f"ds_read_b64_tr_b16 {a(aF+72+4*nt+2*b,2)}, v23 offset:{32*nt + 4608*b}", "fa")
    A.label("L2_gather")
    poll(A, "L2_p2", f"buffer_load_dwordx2 v[16:17], v14, {s(sWs,4)}, s15 offen sc1", "v_min_u32 v12, v16, v17\nv_cmp_eq_u32 vcc, 0, v12", opt.get("sl2", 1), opt.get("shrink", 1))
    top2_lanes(A, 16, 17, 12, 13, (1, 2, 4, 8), ("v_permlane16_swap_b32", "v_permlane32_swap_b32"))
    A.e(f"s_lshl_b32 s3, s{sW}, 3\ns_add_u32 s3, s3, {SCR + 1792}\nv_mov_b32 v12, s3\nv_mov_b32 v13, {SCR + 1792}")
    A.lds("ds_write_b64 v12, v[16:17]", "kw"); A.wait(lg="kw"); A.e("s_barrier")
    A.lds("ds_read_b128 v[16:19], v13", "kr"); A.lds("ds_read_b128 v[20:23], v13 offset:16", "kr")
    A.e("v_and_b32 v6, 1, v0\nv_lshrrev_b32 v7, 4, v0")
    A.wait(lg="kr")
    merge2(A, 16, 17, 18, 19); merge2(A, 20, 21, 22, 23); merge2(A, 16, 17, 20, 21)
    A.stamp()
    A.e("s_cmp_ge_u32 s2, 144\ns_cbranch_scc1 L2_red")
    A.e("v_cmp_eq_u32 vcc, 0, v6\ns_nop 1\nv_cndmask_b32 v4, v17, v16, vcc\nv_and_b32 v4, 0x7ff, v4\nv_sub_u32 v4, 2047, v4")
    A.e(f"v_mul_u32_u24 v5, 1152, v4\nv_lshl_add_u32 v5, v7, 4, v5\ns_mov_b32 s3, {WS_H2}")
    H = 128
    if opt.get("hmask", 1): A.e("s_mov_b32 exec_lo, 0x30003\ns_mov_b32 exec_hi, 0x30003")
    for kk in range(18): A.vmem(f"buffer_load_dwordx4 {v(H+4*kk,4)}, v5, {s(sWs,4)}, s3 offen offset:{64*kk} sc1", ("h", kk))
    A.e("s_mov_b64 exec, -1")
    LX = SCR + 1024; LY = TB + 20480
    A.e(f"v_lshlrev_b32 v11, 7, v6\nv_lshl_add_u32 v13, v7, 5, v11\nv_add_u32 v13, {LX}, v13\nv_lshl_add_u32 v11, v7, 4, v11")
    A.e(f"s_lshr_b32 s3, s{sW}, 1\ns_lshl_b32 s3, s3, 8\ns_and_b32 s14, s{sW}, 1\ns_lshl_b32 s14, s14, 6\ns_add_u32 s3, s3, s14\ns_add_u32 s3, s3, {LX}\nv_add_u32 v11, s3, v11")
    A.e(f"s_mul_i32 s14, s{sW}, 1152\ns_add_u32 s3, s14, {LY}\nv_mul_u32_u24 v9, 576, v6\nv_lshl_add_u32 v9, v7, 4, v9\nv_add_u32 v9, s3, v9\nv_add_u32 v10, s3, v{vX}")
    A.e(f"s_mul_i32 s15, s2, 4608\ns_add_u32 s15, s15, s14\ns_add_u32 s15, s15, {WS_YP}")
    for kk in range(18):
        A.wait(vm=("h", kk))
        A.e(f"{MF} v[88:91], {a(aF+4*kk,4)}, {v(H+4*kk,4)}, {'0' if kk == 0 else 'v[88:91]'}")
    A.e("s_nop 5\ns_mov_b32 exec_lo, 0x30003\ns_mov_b32 exec_hi, 0x30003")
    A.lds("ds_write_b128 v11, v[88:91]", "x"); A.e("s_mov_b64 exec, -1"); A.wait(lg="x"); A.e("s_barrier")
    for i in range(4): A.lds(f"ds_read_b128 {v(16+4*i,4)}, v13 offset:{(i//2)*256 + (i%2)*16}", ("y", i // 2))
    A.wait(lg=("y", 0))
    for i in range(8): A.e(f"v_mul_f32 v{32+i}, {hex(f2u(-LOG2E))}, v{16+i}")
    for i in range(8): A.e(f"v_exp_f32 v{32+i}, v{32+i}")
    for i in range(8): A.e(f"v_add_f32 v{32+i}, 1.0, v{32+i}")
    for i in range(8): A.e(f"v_rcp_f32 v{32+i}, v{32+i}")
    A.wait(lg=("y", 1))
    for i in range(8): A.e(f"v_mul_f32 v{16+i}, v{16+i}, v{32+i}")
    for i in range(8): A.e(f"v_mul_f32 v{16+i}, v{16+i}, v{24+i}")
    for q in range(4): A.e(f"v_cvt_pk_bf16_f32 v{40+q}, v{16+2*q}, v{17+2*q}")
    A.e("s_nop 1")
    for nt in range(9): A.e(f"{MF} {v(48+4*nt,4)}, {a(aF+72+4*nt,4)}, v[40:43], 0")
    A.e("s_mov_b32 exec_lo, 0x30003\ns_mov_b32 exec_hi, 0x30003")
    for nt in range(9): A.lds(f"ds_write_b128 v9, {v(48+4*nt,4)} offset:{64*nt}", "yw")
    A.e("s_mov_b64 exec, -1")
    A.lds("ds_read_b128 v[16:19], v10", "yr"); A.lds("ds_read_b128 v[20:23], v10 offset:1024", "yr"); A.wait(lg="yr")
    for i in range(8): A.e(f"v_min_u32 v{16+i}, -2, v{16+i}")
    A.e(f"buffer_store_dwordx4 v[16:19], v{vX}, {s(sWs,4)}, s15 offen sc1\ns_mov_b64 exec, 0xff\nbuffer_store_dwordx4 v[20:23], v{vX}, {s(sWs,4)}, s15 offen offset:1024 sc1")
    A.e("s_branch L2_fin")
    A.label("L2_red")
    A.vm = []; A.lg = []
    A.e(f"s_mov_b32 s3, {WS_YP}"); A.srd(sYp, sWs, YP_BYTES, "s3")
    A.e("s_sub_u32 s3, s2, 144\ns_mul_i32 s14, s3, 7282\ns_lshr_b32 s14, s14, 16\ns_mul_i32 s15, s14, 9\ns_sub_u32 s15, s3, s15\ns_lshl_b32 s15, s15, 5\ns_mul_i32 s14, s14, 144")
    A.e("v_and_b32 v6, 7, v0\nv_lshl_add_u32 v7, v6, 2, s15\nv_cmp_gt_u32 vcc, 144, v7\nv_subrev_u32 v9, 144, v7\nv_lshrrev_b32 v10, 3, v0\nv_cndmask_b32 v7, v9, v7, vcc\nv_cndmask_b32 v16, v17, v16, vcc")
    A.e("v_add_u32 v7, s14, v7\nv_and_b32 v9, 0x7ff, v16\nv_sub_u32 v9, 2047, v9\nv_mul_u32_u24 v9, 1152, v9\nv_lshl_add_u32 v9, v7, 1, v9\nv_lshlrev_b32 v7, 2, v7")
    A.e(f"buffer_load_dwordx2 v[18:19], v9, {s(sOut,4)}, 0 offen sc1\nds_read_b128 v[20:23], v7 offset:{3*2304}")
    A.e(f"s_lshl_b32 s14, s{sW}, 3\nv_add_u32 v10, s14, v10\nv_mul_u32_u24 v10, 4608, v10\nv_lshl_add_u32 v10, v6, 4, v10\ns_lshl_b32 s3, s3, 7\nv_add_u32 v24, s3, v10")
    for r in range(1, 5): A.e(f"v_add_u32 v{24+r}, {147456*r}, v24")
    A.e("v_and_b32 v16, 0xfffff800, v16\nv_not_b32 v12, v16\nv_ashrrev_i32 v12, 31, v12\nv_or_b32 v12, 0x80000000, v12\nv_xor_b32 v16, v16, v12")
    A.e(f"v_mul_f32 v16, {hex(f2u(-LOG2E))}, v16\nv_exp_f32 v16, v16\ns_nop 0\nv_add_f32 v16, 1.0, v16\nv_rcp_f32 v16, v16\ns_waitcnt lgkmcnt(0)")
    for i in range(4): A.e(f"v_mul_f32 v{20+i}, v{20+i}, v16")
    A.e(f"v_lshlrev_b32 v11, 4, v6\nv_add_u32 v11, {SCR + 2048}, v11\ns_lshl_b32 s14, s{sW}, 7\nv_add_u32 v10, s14, v11")
    tree = "v_max3_u32 v12, v32, v33, v34\n" + "\n".join(f"v_max3_u32 v12, v12, v{35+2*i}, v{36+2*i}" for i in range(8)) + "\nv_max_u32 v12, v12, v51\nv_cmp_eq_u32 vcc, -1, v12"
    poll(A, "L2_p3", "\n".join(f"buffer_load_dwordx4 {v(32+4*r,4)}, v{24+r}, {s(sYp,4)}, 0 offen sc1" for r in range(5)), tree, opt.get("sl3", 1))
    for i in range(0, 4, 2):
        A.e(f"v_pk_add_f32 {v(32+i,2)}, {v(32+i,2)}, {v(36+i,2)}\nv_pk_add_f32 {v(40+i,2)}, {v(40+i,2)}, {v(44+i,2)}\nv_pk_add_f32 {v(32+i,2)}, {v(32+i,2)}, {v(48+i,2)}\nv_pk_add_f32 {v(32+i,2)}, {v(32+i,2)}, {v(40+i,2)}")
    xsum8(A, [32, 33, 34, 35], 12)
    A.e("ds_write_b128 v10, v[32:35]\ns_waitcnt lgkmcnt(0)\ns_barrier")
    for k in range(4): A.e(f"ds_read_b128 {v(32+4*k,4)}, v11 offset:{128*k}")
    A.e("v_lshlrev_b32 v12, 16, v18\nv_and_b32 v13, 0xffff0000, v18\nv_lshlrev_b32 v14, 16, v19\nv_and_b32 v15, 0xffff0000, v19\ns_waitcnt lgkmcnt(0)")
    for i in range(0, 4, 2):
        A.e(f"v_pk_add_f32 {v(32+i,2)}, {v(32+i,2)}, {v(36+i,2)}\nv_pk_add_f32 {v(40+i,2)}, {v(40+i,2)}, {v(44+i,2)}\nv_pk_add_f32 {v(32+i,2)}, {v(32+i,2)}, {v(40+i,2)}")
        A.e(f"v_pk_fma_f32 {v(12+i,2)}, {v(32+i,2)}, {v(20+i,2)}, {v(12+i,2)}")
    A.e("v_cvt_pk_bf16_f32 v12, v12, v13\nv_cvt_pk_bf16_f32 v13, v14, v15")
    A.e(f"s_cmp_lg_u32 s{sW}, 0\ns_cbranch_scc1 L2_fin\ns_mov_b64 exec, 0xff\nbuffer_store_dwordx2 v[12:13], v9, {s(sOut,4)}, 0 offen sc1")
    A.label("L2_fin")
    if A.stamping: A.e("s_mov_b64 exec, -1")
    A.stamp()
    if opt.get("enc"):
        ea, eb, clk = opt["enc"]; o = 0 if clk else 1
        A.e("s_cmp_lg_u32 s2, 150\ns_cbranch_scc1 L2_noenc")
        if ea < 0:
            A.e(f"s_load_dwordx2 s[60:61], s[0:1], 112\ns_waitcnt lgkmcnt(0)\ns_mov_b32 s62, 0x10000000\ns_mov_b32 s63, 0x20000\nv_mov_b32 v2, {WS_STAMP + 150*1024 + 4}\nbuffer_load_dword v1, v2, s[60:63], 0 offen\ns_waitcnt vmcnt(0)")
        else: A.e(f"v_accvgpr_read_b32 v1, a{20+2*ea+o}")
        A.e(f"v_accvgpr_read_b32 v2, a{20+2*eb+o}\nv_sub_u32 v1, v2, v1\ns_nop 0\nv_readfirstlane_b32 s56, v1\ns_nop 0")
        A.e("s_lshr_b32 s56, s56, 3" if clk else "s_lshl_b32 s56, s56, 2")
        A.e("s_min_u32 s56, s56, 100000\ns_mov_b32 s57, s94")
        A.label("L2_enc")
        A.e("s_memrealtime s[94:95]\ns_waitcnt lgkmcnt(0)\ns_sub_u32 s58, s94, s57\ns_cmp_lt_u32 s58, s56\ns_cbranch_scc1 L2_enc")
        A.label("L2_noenc")
    else: A.stamp_flush(1, WS_STAMP, sW)

OPT = {}
def gen_k2(opt={}):
    OPT.clear(); OPT.update(opt)
    A = Asm(); A.stamp_agpr = 20
    A.label("L2_begin")
    A.e("s_getpc_b64 s[98:99]")
    A.e("s_cmp_ge_u32 s2, 256\ns_cbranch_scc1 L2_end")
    A.stamp()
    for d, off in ((sXi, 0), (sC, 80), (sWm, 88), (12, 112), (sDb, 104)): A.e(f"s_load_dwordx2 {s(d,2)}, s[0:1], {off}")
    vTid = 155
    tch = opt.get("touch", "cq")
    A.e(f"s_and_b32 s3, s2, 7\ns_lshr_b32 s14, s2, 3\nv_mov_b32 v{vTid}, v0\nv_lshrrev_b32 v10, 6, v0\nv_and_b32 v0, 63, v0")
    if "c" in tch:
        A.e(f"s_lshl_b32 s15, s14, 9\nv_lshl_add_u32 v13, v10, 7, s15\nv_lshl_add_u32 v13, v0, 14, v13\nv_min_u32 v13, L2_codeend-L2_begin-8, v13\ns_mov_b64 exec, 15")
        A.vmem(f"global_load_dword a{aDum}, v13, s[98:99]"); A.e("s_mov_b64 exec, -1")
    A.e(f"v_readfirstlane_b32 s{sW}, v10")
    A.e(f"s_and_b32 s{sG}, s3, 3\ns_and_b32 s15, s14, 3\ns_lshl2_add_u32 s{sG}, s{sG}, s15")
    A.e(f"s_lshr_b32 s{sTb}, s3, 2\ns_lshr_b32 s15, s14, 2\ns_lshl3_add_u32 s{sTb}, s{sTb}, s15\ns_lshl4_add_u32 s{sT8}, s{sTb}, s{sG}")
    sP, sSl, sHf = sCnt, sPass, sW9
    A.e(f"s_mul_i32 s{sP}, s3, 27\ns_max_u32 s14, s14, 5\ns_add_u32 s{sP}, s{sP}, s14\ns_sub_u32 s{sP}, s{sP}, 5\ns_lshr_b32 s{sHf}, s3, 2\ns_mul_i32 s15, s{sHf}, 108\ns_sub_u32 s{sSl}, s{sP}, s15")
    item_addr(A)
    vW4, vW1 = 153, 154
    A.e(f"v_and_b32 v4, 0xfc, v{vTid}\nv_and_b32 v7, 3, v0\nv_mul_u32_u24 v3, 6912, v4\nv_lshl_add_u32 v{vW4}, v7, 4, v3")
    A.e(f"s_mul_i32 s3, s{sT8}, 9216\ns_movk_i32 s{sXi+2}, 9216\ns_mov_b32 s{sXi+3}, 0x20000\ns_mov_b32 s{sWm+3}, s{sXi+3}")
    A.e(f"v_lshlrev_b32 v{vX}, 4, v0\ns_mov_b32 s{sWs+2}, {WS_H2 + 2359296}\ns_mov_b32 s{sWs+3}, s{sXi+3}\ns_movk_i32 s{sDb+2}, 256\ns_mov_b32 s{sDb+3}, s{sXi+3}")
    A.e(f"s_lshl_b32 s14, s{sSl}, 6\ns_sub_u32 s{sWm+2}, {288*6912}, s14\ns_cmp_ge_u32 s2, 40\ns_cselect_b32 s{sWm+2}, s{sWm+2}, 0\ns_mul_i32 s15, s{sHf}, {288*6912}\ns_add_u32 s14, s14, s15")
    A.e("s_waitcnt lgkmcnt(0)")
    A.fstamp()
    A.e(f"s_add_u32 s{sXi}, s{sXi}, s3\ns_addc_u32 s{sXi+1}, s{sXi+1}, 0")
    for pre, ld in xi_loads(): A.item(ld)
    A.e(f"s_add_u32 s{sWm}, s{sWm}, s14\ns_addc_u32 s{sWm+1}, s{sWm+1}, 0")
    ncl = opt.get("ncl", 8); nst = 16 // ncl
    A.e(f"s_mov_b64 {s(sWs,2)}, s[12:13]\ns_cmp_ge_u32 s2, {ncl}\ns_cbranch_scc1 L2_noclr")
    A.e(f"s_cmp_lt_u32 s2, {ncl//2}\ns_cselect_b32 s3, -1, 0\nv_mov_b32 v52, s3\nv_mov_b32 v53, s3\nv_mov_b32 v54, s3\nv_mov_b32 v55, s3\ns_lshl2_add_u32 s3, s2, s{sW}\ns_mul_i32 s3, s3, {1024*nst}")
    for i in range(nst): A.e(f"buffer_store_dwordx4 v[52:55], v{vX}, {s(sWs,4)}, s3 offen offset:{1024*i} sc1")
    A.label("L2_noclr")
    nclr = len(A.vm)
    WM, CC = 128, 148
    nw0 = opt.get("nw0", 4)
    def wload(i):
        if 0 < i < 4: A.e(f"s_movk_i32 s3, {6912*i}")
        A.vmem(f"buffer_load_dwordx4 {v(WM+4*i,4)}, v{vW4 if i < 4 else vW1}, {s(sWm,4)}, {'s3' if 0 < i < 4 else 0} offen", ("w", i))
    for i in range(min(nw0, 4)): wload(i)
    A.fstamp()
    A.e(f"v_lshrrev_b32 v3, 2, v3\nv_lshl_add_u32 v3, v7, 4, v3\nv_add_u32 v{vW1}, {256*6912}, v3\nv_lshrrev_b32 v3, 1, v4\nv_lshlrev_b32 v4, 1, v4")
    A.e(f"s_mul_i32 s3, s{sHf}, 576"); A.srd(sC, sC, 576, "s3")
    A.vmem(f"buffer_load_dwordx2 {v(CC,2)}, v4, {s(sC,4)}, 0 offen", "c")
    for i in range(4): A.e(f"v_mov_b32 v{WM+16+i}, 0")
    A.e(f"v_mov_b32 v{CC+2}, 0\ns_cmp_ge_u32 s{sW}, 2\ns_cbranch_scc1 L2_w23")
    A.e(f"buffer_load_dwordx4 {v(WM+16,4)}, v{vW1}, {s(sWm,4)}, 0 offen\nbuffer_load_ushort v{CC+2}, v3, {s(sC,4)}, 0 offen offset:512")
    A.label("L2_w23")
    A.e("s_load_dwordx8 s[4:11], s[0:1], 8")
    for d, off in ((sWg, 56), (sWu, 64), (sWd, 72), (sOut, 96), (sWr, 48)): A.e(f"s_load_dwordx2 {s(d,2)}, s[0:1], {off}")
    B = Asm()
    A.fstamp()
    F = 156
    vL7, vSt, vSw, vXs, vYc, vMw, vL4, vXf, vMs = F, F + 1, F + 2, F + 3, F + 4, F + 5, F + 6, F + 7, F + 8
    SA, SD, SV = F + 10, F + 11, F + 12
    A.e(f"s_cmp_eq_u32 s{sW}, 0\ns_cselect_b32 s3, 0, 0x40000000\nv_mul_u32_u24 v{vL7}, {256//ncl}, v0\nv_or_b32 v{vL7}, s3, v{vL7}\ns_mul_i32 s{sW4}, s{sW}, {4*PIECE}\ns_add_u32 s{sW4}, s{sW4}, {RING}\nv_lshl_add_u32 v{vKV}, v10, 12, v{vX}")
    A.e(f"v_lshrrev_b32 v13, 5, v0\nv_lshl_add_u32 v13, v10, 1, v13\nv_lshlrev_b32 v13, 15, v13\nv_and_b32 v14, 31, v0\nv_lshl_add_u32 v{vWq}, v14, 4, v13")
    for i in range(4): A.e(f"v_mov_b32 v{56+i}, 0\nv_mov_b32 v{60+i}, -1")
    A.e(f"s_and_b32 s14, s{sTb}, 7\ns_lshl2_add_u32 s14, s14, s{sW}\nv_lshrrev_b32 v13, 2, v0\nv_lshl_add_u32 v13, v13, 5, s14\nv_lshlrev_b32 v13, 13, v13\nv_lshl_add_u32 v13, v7, 7, v13")
    A.e("s_waitcnt lgkmcnt(0)")
    A.e(f"s_lshl_b32 s3, s{sG}, 9"); A.srd(sWq, 8, 0, "s3"); A.e(f"s_sub_u32 s{sWq+2}, {576*8192}, s3")
    if True:
        nq = opt.get("nq", 16)
        A.e(f"s_mov_b64 exec, {hex((1 << nq) - 1)}" if nq <= 31 else f"s_mov_b32 exec_hi, {hex((1 << (nq - 32)) - 1)}")
        A.vmem(f"buffer_load_dword a{aDum}, v13, {s(sWq,4)}, 0 offen", "tq"); A.e("s_mov_b64 exec, -1")
    A.e(f"s_mov_b32 s{sWr+2}, 1152\ns_mov_b32 s{sWr+3}, 0x20000")
    A.stamp()
    ST = SCR + 256; MP = RING
    sF1, sYc, sXs, sXf, sMl, sKy, sMul, sAdd = 56, 57, 58, 59, 100, 101, sBase, sDel
    A.e(f"v_and_b32 v14, 7, v0\nv_lshlrev_b32 v{vSt}, 4, v14\nv_add_u32 v{vSt}, {ST}, v{vSt}\nv_lshl_add_u32 v{vSw}, v10, 2, v{vSt}")
    A.e(f"s_mul_i32 s3, s{sW}, {18*256}\nv_lshl_add_u32 v14, v14, 4, s3\nv_lshrrev_b32 v15, 3, v0\nv_lshl_add_u32 v{vXs}, v15, 8, v14")
    A.e(f"s_lshr_b32 s3, s{sT8}, 1\ns_mul_i32 s3, s3, 18432\ns_and_b32 s14, s{sT8}, 1\ns_lshl_b32 s14, s14, 7\ns_add_u32 s3, s3, s14\ns_add_u32 s{sXs}, s3, {WS_XN}")
    A.e(f"s_lshl_b32 s3, s{sTb}, 2\ns_add_u32 s3, s3, s{sW}\ns_lshl_b32 s14, s3, 4\ns_add_u32 s14, s14, s{sG}\ns_lshl_b32 s14, s14, 7\ns_add_u32 s{sF1}, s14, {WS_F1}")
    A.e(f"s_lshl_b32 s14, s3, 9\ns_add_u32 s{sXf}, s14, {WS_KEY}\nv_and_b32 v14, 3, v0\nv_lshlrev_b32 v{vXf}, 7, v14")
    A.e(f"s_mul_i32 s14, s3, 36864\ns_add_u32 s14, s14, {WS_XN}"); A.srd(sXn, 12, 36864, "s14")
    A.e(f"s_mul_i32 s15, s2, 4608\ns_mul_i32 s14, s{sW}, 1152\ns_add_u32 s15, s15, s14\ns_add_u32 s{sYc}, s15, {WS_YP}")
    A.e(f"s_cmp_ge_u32 s2, 144\ns_cselect_b32 s14, 0x40000000, 0\nv_or_b32 v{vYc}, s14, v{vX}")
    A.e(f"v_lshrrev_b32 v12, 4, v{vTid}\nv_lshlrev_b32 v12, 7, v12\nv_lshl_add_u32 v{vMw}, v7, 5, v12\nv_lshlrev_b32 v{vL4}, 2, v0")
    A.e(f"s_mul_i32 s3, s{sSl}, 3641\ns_lshr_b32 s3, s3, 16\ns_mov_b32 s{sMul}, 1.0\ns_mov_b32 s{sAdd}, 0\ns_cmp_lt_u32 s3, 2\ns_cselect_b32 s{sMul}, {hex(f2u(C0))}, s{sMul}")
    A.e(f"s_cmp_eq_u32 s3, 1\ns_cselect_b32 s{sAdd}, {hex(f2u(C0))}, s{sAdd}\ns_cmp_eq_u32 s3, 4\ns_cselect_b32 s{sAdd}, 1.0, s{sAdd}\ns_cmp_eq_u32 s{sHf}, 0\ns_cselect_b32 s{sAdd}, s{sAdd}, 0")
    A.e(f"s_lshl_b32 s{sMl}, s{sP}, 7\ns_lshl_b32 s14, s{sT8}, 7\ns_add_u32 s{sKy}, s14, {WS_KEY}")
    A.e(f"s_mul_i32 s3, s{sW}, 1152\nv_add_u32 v{SA}, s3, v{vX}")
    A.e(f"s_and_b32 s3, s{sW}, 1\ns_mul_i32 s3, s3, {36*64}\ns_cmp_lt_u32 s{sW}, 2\ns_cselect_b32 s14, 32, 0\ns_add_u32 s3, s3, s14\ns_add_u32 s3, s3, {ASB}")
    A.e(f"v_lshrrev_b32 v14, 1, v0\nv_lshl_add_u32 v14, v14, 6, s3\nv_and_b32 v15, 1, v0\nv_lshl_add_u32 v{SD}, v15, 4, v14")
    A.e(f"s_cmp_eq_u32 s{sW}, 1\ns_cselect_b32 s3, 40, 256\ns_cmp_ge_u32 s2, s3\ns_cselect_b32 s3, 0, 0x40000000\nv_or_b32 v{vMs}, s3, v{vL4}")
    for i in range(4): A.e(f"v_mov_b32 v{SV+4+i}, 0\nv_mov_b32 v{SV+12+i}, 0")
    A.e(f"s_lshl_b32 s3, s{sTb}, 2\ns_add_u32 s3, s3, s{sW}\nv_mov_b32 v12, v10")
    A.e(f"s_mul_i32 s14, s3, {4*147456}\ns_mul_i32 s15, s{sG}, 9216\ns_add_u32 s14, s14, s15\ns_add_u32 s14, s14, {WS_PART}"); A.srd(sPt, 12, 0, "s14"); A.e(f"s_sub_u32 s{sPt+2}, {4*147456}, s15")
    if opt.get("x_nostore"): A.e(f"s_mov_b32 s{sPt+2}, 0")
    A.e(f"s_lshl_b32 s3, s{sG}, 19"); A.srd(sK, 4, 524288, "s3"); A.srd(sV, 6, 524288, "s3")
    A.e(f"s_mul_i32 s3, s{sG}, 294912"); A.srd(sWo, 10, 294912, "s3")
    A.e(f"s_mov_b64 s[4:5], {s(sWg,2)}\ns_mov_b64 s[6:7], {s(sWu,2)}\ns_mov_b64 s[8:9], {s(sWd,2)}")
    A.e(f"s_mov_b32 s{sPass}, 0\ns_mul_i32 s{sW9}, s{sW}, 9216")
    A.e("s_min_u32 s15, s2, 143\ns_and_b32 s3, s15, 7\ns_mul_i32 s3, s3, 18\ns_lshr_b32 s15, s15, 3\ns_add_u32 s15, s15, s3\ns_lshl_b32 s3, s15, 6")
    A.srd(sWg, sWg, 0, "s3"); A.srd(sWu, sWu, 0, "s3")
    A.e(f"s_sub_u32 s14, {576*9216}, s3\ns_mul_i32 s3, s15, 36864"); A.srd(sWd, sWd, 0, "s3")
    A.e(f"s_cmp_lt_u32 s2, 144\ns_cselect_b32 s{sWg+2}, s14, 0\ns_cselect_b32 s{sWu+2}, s14, 0\ns_cselect_b32 s{sWd+2}, 36864, 0")
    A.e(f"s_mov_b32 s{sOut+2}, 2359296\ns_mov_b32 s{sOut+3}, 0x20000")

    A.e(f"v_lshrrev_b32 v13, 4, v0\nv_lshlrev_b32 v{vAS}, 6, v13")
    A.e(f"v_lshrrev_b32 v14, 2, v0\nv_mul_u32_u24 v14, {PIECE}, v14\nv_add_u32 v14, {RING}, v14")
    A.e(f"v_and_b32 v15, 1, v0\nv_lshlrev_b32 v15, 4, v15\nv_add_u32 v{vT}, v14, v15\nv_and_b32 v15, 2, v0\nv_lshl_add_u32 v{vT}, v15, 2, v{vT}\nv_add_u32 v{vT2}, {2*SLOT}, v{vT}")
    A.e(f"v_lshrrev_b32 v14, 3, v0\nv_lshlrev_b32 v14, 2, v14\nv_add_u32 v14, v14, v12\nv_mul_u32_u24 v14, {4*1152}, v14\nv_and_b32 v15, 7, v0\nv_lshl_add_u32 v{vWo}, v15, 4, v14")
    A.e(f"v_lshlrev_b32 v{vPt}, 4, v15\nv_lshl_add_u32 v{vPt}, v13, 7, v{vPt}\nv_bfe_u32 v14, v0, 3, 1\nv_mul_u32_u24 v14, 147456, v14\nv_add_u32 v{vPt}, v{vPt}, v14")
    def init_kv_addr():
        A.e(f"v_lshrrev_b32 v14, 2, v0\nv_mul_u32_u24 v14, {PIECE}, v14\nv_and_b32 v15, 3, v0\nv_lshl_add_u32 v14, v15, 3, v14\nv_add_u32 v{vV}, {RING + 2*SLOT + HALF}, v14")
        A.e(f"v_and_b32 v14, 15, v0\nv_mul_u32_u24 v14, {PIECE}, v14\nv_lshrrev_b32 v15, 4, v0\nv_lshl_add_u32 v14, v15, 4, v14\nv_add_u32 v{vK}, {RING + 2*SLOT}, v14")
    init_kv_addr()
    A.e(f"v_and_b32 v14, 1, v0\nv_cmp_eq_u32 vcc, 0, v14\nv_mov_b32 v{vIdx}, 0xeeeeeeee\nv_mov_b32 v15, 0x44444444\nv_cndmask_b32 v{vIdx}, v{vIdx}, v15, vcc")
    A.e(f"v_and_b32 v14, 2, v0\nv_cmp_eq_u32 vcc, 0, v14\nv_mov_b32 v15, 0x3f803f80\ns_nop 0\nv_cndmask_b32 v15, 0, v15, vcc")
    for i in range(4): A.e(f"v_accvgpr_write_b32 a{aOne+i}, v15")
    A.e(f"s_cmp_ge_u32 s2, {ncl}\ns_cbranch_scc1 L2_noclr2")
    A.e(f"s_mul_i32 s14, s2, {256//ncl}\ns_mov_b64 exec, 1\ns_waitcnt vmcnt({len(A.vm) - nclr})\ns_barrier\nbuffer_store_dword v60, v{vL7}, {s(sDb,4)}, s14 offen sc1\ns_mov_b64 exec, -1")
    A.label("L2_noclr2")
    A.stamp()
    XF, MA, TF = 24, 16, 48
    A.wait(vm="xi"); A.fstamp()
    for i in range(nw0, 4): wload(i)
    for q in range(12): A.e(f"v_lshlrev_b32 v{XF+2*q}, 16, v{XR+q}\nv_and_b32 v{XF+2*q+1}, 0xffff0000, v{XR+q}")
    dot24(A, TF, TF + 2, XF, None); xsum8(A, [TF], TF + 2)
    A.e(f"v_mul_f32 v{TF}, {hex(f2u(1/144))}, v{TF}")
    for i in range(0, 24, 2): A.e(f"v_pk_add_f32 {v(XF+i,2)}, {v(XF+i,2)}, {v(TF,2)} op_sel_hi:[1,0] neg_lo:[0,1] neg_hi:[0,1]")
    dot24(A, TF + 1, TF + 2, XF, XF); xsum8(A, [TF + 1], TF + 2)
    A.lds(f"ds_write_b32 v{vSw}, v{TF}", "f"); A.lds(f"ds_write_b32 v{vSw}, v{TF+1} offset:128", "f")
    A.wait(lg="f"); A.e("s_barrier")
    A.lds(f"ds_read_b128 {v(MA,4)}, v{vSt}", "g0"); A.lds(f"ds_read_b128 {v(MA+4,4)}, v{vSt} offset:128", "g1")
    A.e(f"s_add_u32 s14, s{sXs}, 4096")
    A.wait(lg="g0")
    A.e(f"v_add_f32 v12, v{MA}, v{MA+1}\nv_add_f32 v13, v{MA+2}, v{MA+3}\nv_add_f32 v12, v12, v13\nv_mul_f32 v12, 0x3e800000, v12")
    for k in range(4): A.e(f"v_sub_f32 v{MA+k}, v{MA+k}, v12")
    A.e(f"v_sub_f32 v{TF}, v{TF}, v12\nv_mul_f32 v13, v{MA}, v{MA}")
    for k in range(1, 4): A.e(f"v_fmac_f32 v13, v{MA+k}, v{MA+k}")
    A.wait(lg="g1")
    A.e(f"v_add_f32 v14, v{MA+4}, v{MA+5}\nv_add_f32 v15, v{MA+6}, v{MA+7}\nv_add_f32 v14, v14, v15\nv_fmac_f32 v14, {hex(f2u(144.0))}, v13")
    A.e(f"v_mov_b32 v12, {hex(f2u(1e-5))}\nv_fmac_f32 v12, {hex(f2u(1/576))}, v14\nv_rsq_f32 v12, v12\ns_nop 0\nv_mul_f32 v{TF}, v{TF}, v12")
    for i in range(3):
        for q in range(0, 8, 2): A.e(f"v_pk_fma_f32 {v(XF+8*i+q,2)}, {v(XF+8*i+q,2)}, v[12:13], {v(TF,2)} op_sel_hi:[1,0,0]")
        for q in range(4): A.e(f"v_cvt_pk_f16_f32 v{XR+4*i+q}, v{XF+8*i+2*q}, v{XF+8*i+2*q+1}")
        if i == 2: A.e("s_mov_b64 exec, 0xffff")
        A.vmem(f"buffer_store_dwordx4 {v(XR+4*i,4)}, v{vXs}, {s(sWs,4)}, {'s14' if i == 2 else s(sXs)} offen offset:{2048*(i%2)} sc1")
    A.fstamp()
    A.e("s_mov_b64 exec, 0xff")
    A.vmem(f"buffer_store_dwordx4 v[56:59], v{vX}, {s(sWs,4)}, s{sF1} offen sc1")
    A.vmem(f"buffer_store_dwordx4 v[60:63], v{vYc}, {s(sWs,4)}, s{sYc} offen offset:1024 sc1"); A.e("s_mov_b64 exec, -1")
    A.vmem(f"buffer_store_dwordx4 v[60:63], v{vYc}, {s(sWs,4)}, s{sYc} offen sc1"); A.e(f"s_mov_b64 exec, {(1 << ncl) - 1}")
    p0 = f"buffer_load_dword v{TF+3}, v{vL7}, {s(sDb,4)}, 0 offen sc1"
    A.vmem(p0, "p0"); A.e("s_mov_b64 exec, -1")
    A.stamp()
    A.e(f"s_mul_i32 s3, s{sT8}, 147456\ns_add_u32 s3, s3, {WS_PART}"); A.srd(sPr, 12, 147456, "s3")
    A.wait(vm="tq")
    CF = 40
    A.e(f"v_lshlrev_b32 v{CF}, 16, v{CC}\nv_and_b32 v{CF+1}, 0xffff0000, v{CC}\nv_lshlrev_b32 v{CF+2}, 16, v{CC+1}\nv_and_b32 v{CF+3}, 0xffff0000, v{CC+1}\nv_lshlrev_b32 v{CF+4}, 16, v{CC+2}")
    for i in range(5): A.e(f"v_mul_f32 v{MA+i}, {hex(f2u(-LOG2E))}, v{CF+i}")
    for i in range(5): A.e(f"v_exp_f32 v{MA+i}, v{MA+i}")
    for i in range(5): A.e(f"v_add_f32 v{MA+i}, 1.0, v{MA+i}")
    for i in range(5): A.e(f"v_rcp_f32 v{MA+i}, v{MA+i}")
    for i in range(5): A.e(f"v_mul_f32 v{XF+2*i}, v{CF+i}, v{MA+i}")
    for i in range(5):
        A.wait(vm=("w", i))
        for q in range(4):
            t = 12 + 2 * (q % 2)
            A.e(f"v_lshlrev_b32 v{t}, 16, v{WM+4*i+q}\nv_and_b32 v{t+1}, 0xffff0000, v{WM+4*i+q}")
            if i == 0: A.e(f"v_pk_mul_f32 {v(MA+2*q,2)}, {v(t,2)}, {v(XF,2)} op_sel_hi:[1,0]")
            else: A.e(f"v_pk_fma_f32 {v(MA+2*q,2)}, {v(t,2)}, {v(XF+2*i,2)}, {v(MA+2*q,2)} op_sel_hi:[1,0,1]")
    for sh in (4, 8):
        for q in range(8): A.e(f"v_add_f32_dpp v{MA+q}, v{MA+q}, v{MA+q} row_ror:{sh} row_mask:0xf bank_mask:0xf")
    A.e("s_mov_b32 exec_lo, 0xf000f\ns_mov_b32 exec_hi, 0xf000f")
    A.lds(f"ds_write_b128 v{vMw}, {v(MA,4)} offset:{MP}", "f"); A.lds(f"ds_write_b128 v{vMw}, {v(MA+4,4)} offset:{MP+16}", "f")
    A.e(f"s_mov_b64 exec, {(1 << ncl) - 1}")
    A.fstamp(); A.wait(vm="p0"); A.fstamp()
    A.e(f"v_cmp_eq_u32 vcc, s{sW}, v{TF+3}\ns_nop 0\ns_cmp_lg_u64 vcc, 0\ns_cbranch_scc1 L2_p0s"); A.label("L2_p0r")
    B.label("L2_p0s"); poll(B, "L2_p0", p0, f"v_cmp_eq_u32 vcc, 0, v{TF+3}"); B.e("s_branch L2_p0r")
    A.e("s_mov_b64 exec, 1"); A.wait(lg="f"); A.e("s_barrier")
    A.vmem(f"buffer_store_dword v60, v{vL7}, {s(sWs,4)}, s{sKy} offen sc1"); A.e("s_mov_b64 exec, -1")
    for i in range(8): A.lds(f"ds_read_b32 v{XF+i}, v{vL4} offset:{MP + 256*i}", "g2")
    A.wait(lg="g2")
    A.e(f"v_pk_add_f32 {v(XF,2)}, {v(XF,2)}, {v(XF+2,2)}\nv_pk_add_f32 {v(XF+4,2)}, {v(XF+4,2)}, {v(XF+6,2)}\nv_pk_add_f32 {v(XF,2)}, {v(XF,2)}, {v(XF+4,2)}\nv_add_f32 v52, v{XF}, v{XF+1}")
    A.e(f"v_mov_b32 v53, v52\nv_mov_b32 v54, s{sAdd}\ns_nop 0\nv_permlane32_swap_b32 v53, v52\nv_add_f32 v52, v52, v53")
    A.e(f"v_fma_f32 v52, v52, s{sMul}, v54\nv_min_u32 v52, -2, v52\ns_mov_b32 exec_hi, 0")
    A.vmem(f"buffer_store_dword v52, v{vMs}, {s(sWs,4)}, s{sMl} offen sc1"); A.e("s_mov_b64 exec, -1")
    A.fstamp()
    for c in range(opt.get("nl0", 2)): emit_dma(A, dmaL(c))
    A.stamp()
    A.e("s_mov_b64 exec, 15")
    poll(A, "L2_px", f"buffer_load_dword v13, v{vXf}, {s(sWs,4)}, s{sXf} offen sc1", "v_cmp_eq_u32 vcc, 0, v13")
    A.e("s_mov_b64 exec, -1")
    A.stamp()
    A.e("s_movk_i32 s14, 13824")
    sweep = [f"buffer_load_dwordx4 {v(SV+8*h,4)}, v{SA}, {s(sWs,4)}, {'s14' if h else 0} offen sc1" for h in range(2)]
    sweep += [("s_mov_b64 exec, 0xff\n" if h == 0 else "") + f"buffer_load_dwordx4 {v(SV+8*h+4,4)}, v{SA}, {s(sWs,4)}, {'s14' if h else 0} offen offset:1024 sc1" + ("\ns_mov_b64 exec, -1" if h else "") for h in range(2)]
    tree = f"v_max_u32 v13, v{SV}, v{SV+1}\n" + "\n".join(f"v_max3_u32 v13, v13, v{SV+2*k}, v{SV+2*k+1}" for k in range(1, 8)) + "\nv_cmp_eq_u32 vcc, -1, v13"
    for x in sweep: A.vmem(x, "sw")
    for c in range(2):
        for pre, ld in xload(c): A.items(pre + [ld])
    A.fstamp(); A.wait(vm="sw"); A.fstamp()
    A.e(tree + "\ns_nop 0\ns_cmp_lg_u64 vcc, 0\ns_cbranch_scc1 L2_pms"); A.label("L2_pmr")
    B.label("L2_pms"); poll(B, "L2_pm", "\n".join(sweep), tree); B.e("s_branch L2_pmr")
    A.fstamp()
    for k in range(0, 8, 2): A.e(f"v_pk_add_f32 {v(SV+k,2)}, {v(SV+k,2)}, {v(SV+8+k,2)}")
    A.lds(f"ds_write_b128 v{SD}, {v(SV,4)}", "mw"); A.e("s_mov_b64 exec, 0xff"); A.lds(f"ds_write_b128 v{SD}, {v(SV+4,4)} offset:2048", "mw"); A.e("s_mov_b64 exec, -1")
    if opt.get("nl0", 2) < 2: emit_dma(A, dmaL(1))
    for pre, ld in xload(2): A.items(pre + [ld])
    A.wait(lg="mw"); A.e("s_barrier")
    A.items(as_reads(0, 0) + as_reads(0, 1))
    A.wait(vm=("X", 0))
    for q in range(4):
        A.wait(lg=("AS", 0, q)); A.items(modulate(0, q))
        if q < 3: A.items(as_reads(0, q + 2) if q < 2 else as_reads(1, 0))
        if q == 2:
            for G in range(QD): A.items(qreads(G))
    A.stamp()
    A.wait(lg=("A", 0))
    Sc, leftover, vmg = gen_qproj(A)
    N = len(Sc.mf)
    kv0 = kreads(0, ("K", 0)) + vreads(0, 0, ("V", 0))
    for g in range(N - 4 * QD, N):
        if g not in vmg: Sc.mem[g].append(kv0.pop(0))
    conv = []
    for t2 in range(8):
        for n in range(2):
            cv, sw = qconvert(2 * (t2 // 4) + n, t2 % 4)
            conv.append((512 + 8 * t2 + 7 + 5, cv, sw))
    pend = []
    for ready, cv, sw in conv: pend += [(ready, x) for x in cv]
    for g in range(512, N):
        if g not in vmg and len(Sc.mem[g]) < 2 and pend and pend[0][0] <= g: Sc.va[g].append(pend.pop(0)[1])
    Sc.emit(A, 0, 256); A.stamp(); Sc.emit(A, 256); A.stamp()
    NV = P0; NA = vAS
    for i in range(4): A.e(f"v_mov_b32 v{NV+8+i}, 0\nv_mov_b32 v{NV+20+i}, 0")
    A.e(f"s_mul_i32 s15, s{sW}, 2304\nv_add_u32 v{NA}, s15, v{vX}\nv_lshlrev_b32 v14, 7, v0\ns_movk_i32 s3, 4608\ns_movk_i32 s14, {4608 + 13824}")
    sweep2 = [f"buffer_load_dwordx4 {v(NV+12*h+4*r,4)}, v{NA}, {s(sWs,4)}, {'s14' if h else 's3'} offen offset:{1024*r} sc1" for r in range(3) for h in range(2)]
    sweep2[4] = "s_mov_b64 exec, 0xffff\n" + sweep2[4]; sweep2[5] += "\ns_mov_b64 exec, -1"
    for x in sweep2: A.vmem(x, "sw2")
    emit_dma(A, leftover)
    A.vmem(f"buffer_load_dword a{aDum}, v14, {s(sWr,4)}, 0 offen")
    A.items(kv0)
    A.items([x for _, x in pend]); A.e("s_nop 0")
    for _, cv, sw in conv: A.items(sw)
    A.wait(lg=(("K", 0), 0))
    for j in range(4):
        for t in range(4):
            d = S0 + 4 * j
            A.e(f"{MF} {v(d,4)}, {a(KF(0,t),4)}, {v(Q(j,t),4)}, {'0' if t == 0 else v(d,4)}")
    A.wait(vm="sw2")
    tree2 = f"v_max_u32 v13, v{NV}, v{NV+1}\n" + "\n".join(f"v_max3_u32 v13, v13, v{NV+2*k}, v{NV+2*k+1}" for k in range(1, 12)) + "\nv_cmp_eq_u32 vcc, -1, v13"
    A.e(tree2 + "\ns_nop 0\ns_cmp_lg_u64 vcc, 0\ns_cbranch_scc1 L2_pns"); A.label("L2_pnr")
    B.label("L2_pns"); poll(B, "L2_pn", "\n".join(sweep2), tree2); B.e("s_branch L2_pnr")
    for k in range(0, 12, 2): A.e(f"v_pk_add_f32 {v(NV+k,2)}, {v(NV+k,2)}, {v(NV+12+k,2)}")
    for r in range(3):
        if r == 2: A.e("s_mov_b64 exec, 0xffff")
        A.lds(f"ds_write_b128 v{NA}, {v(NV+4*r,4)} offset:{1024*r}", ("V", 0))
    A.e("s_mov_b64 exec, -1")
    for j in range(4):
        d = S0 + 4 * j
        A.e(f"v_max3_f32 v{d}, v{d}, v{d+1}, v{d+2}\nv_max_f32 v{d}, v{d}, v{d+3}")
    xmax_to_negm(A, [S0 + 4 * j for j in range(4)], BIAS)
    A.label("L2_entry")
    for i in range(16): A.e(f"v_accvgpr_write_b32 a{aL+i}, 0")
    for i in range(32): A.e(f"v_mov_b32 v{O(3,0)+i}, 0")
    A.e(f"s_mov_b32 s{sBase}, s{sW4}\ns_mov_b32 s{sDel}, {-2*SLOT}\ns_mov_b32 s{sCnt}, 15\ns_mov_b32 s{sT}, {3*16384}")
    A.e(f"v_lshrrev_b32 v14, 2, v0\ns_mul_i32 s3, s{sW}, 144\nv_add_u32 v14, s3, v14\nv_mul_u32_u24 v14, 9216, v14\nv_and_b32 v15, 3, v0\nv_lshl_add_u32 v{vFg}, v15, 4, v14")
    extra0 = []
    extra31 = []
    A.e(f"s_lshr_b32 s3, s2, 3\ns_lshl_b32 s3, s3, 2\ns_add_u32 s3, s3, s{sW}\ns_and_b32 s15, s2, 7")
    A.e(f"s_mul_i32 s14, s3, 9\ns_lshr_b32 s14, s14, 1\nv_min_u32 v15, 44, v0\nv_mul_u32_u24 v12, 7282, v15\nv_lshrrev_b32 v12, 16, v12\nv_mul_u32_u24 v13, 63, v12\nv_add_u32 v12, v15, v13")
    A.e(f"s_mul_i32 s14, s14, 72\ns_mul_i32 s56, s15, 9\ns_add_u32 s14, s14, s56\nv_add_u32 v12, s14, v12\nv_lshlrev_b32 v12, 7, v12")
    A.e(f"s_mul_i32 s14, s3, 81\ns_lshr_b32 s14, s14, 1\ns_mul_i32 s56, s15, 5184\ns_add_u32 s14, s14, s56\nv_min_u32 v13, 40, v0\nv_add_u32 v13, s14, v13\nv_lshlrev_b32 v13, 7, v13")
    A.e(f"s_mul_i32 s14, s3, 72\ns_andn2_b32 s56, s{sG}, 3\ns_mul_i32 s56, s56, 2304\ns_add_u32 s14, s14, s56\nv_min_u32 v14, 35, v0\nv_add_u32 v14, s14, v14\nv_lshlrev_b32 v14, 7, v14\nv_add_u32 v15, 4608, v14")
    A.wait(vm=("L", 10), lg=("V", 0)); A.e("s_barrier")
    A.stamp()
    gen_stage(0, "first", dma_kv_dyn(3, 1) + extra0, opt).emit(A)
    pf = opt.get("pf", {5: "g", 4: "u", 3: "d", 2: "a", 1: "b"})
    def body(i):
        Sa = gen_stage(i, "A", dma_kv_dyn(i + 3, 0), opt)
        if pf:
            Sa.sh[35].append(f"s_cmp_le_u32 s{sCnt}, {max(pf)}"); Sa.sh[36] += ["s_cbranch_scc1 L2_pf", "L2_pfret:"]
        Sa.emit(A)
        Sb = gen_stage(i + 1, "B", dma_kv_dyn(i + 4, 1), opt)
        Sb.sh[128].append(f"s_sub_u32 s{sCnt}, s{sCnt}, 1"); Sb.sh[129].append(f"s_cmp_lg_u32 s{sCnt}, 0")
        Sb.emit(A)
    if pf:
        A.e("s_branch L2_loop"); A.label("L2_pf")
        for cnt in sorted(pf, reverse=True):
            A.e(f"s_cmp_lg_u32 s{sCnt}, {cnt}\ns_cbranch_scc1 L2_pf{cnt}")
            for ch in pf[cnt]:
                vr, sp = dict(g=(12, 4), u=(12, 6), d=(13, 8), a=(14, 10), b=(15, 10))[ch]
                A.e(f"global_load_dword a{aDum}, v{vr}, {s(sp,2)}")
            A.e("s_branch L2_pfret"); A.label(f"L2_pf{cnt}")
        A.e("s_branch L2_pfret")
    if opt.get("align_loop", 1): A.e(".p2align 5")
    A.label("L2_loop")
    n0 = len(A.L); body(1); n1 = len(A.L); body(3)
    assert A.L[n0:n1] == A.L[n1:], "loop body not in steady state"
    assert lint(A.L[n0:], "loop2x") == 0
    del A.L[n1:]
    def shift(t, d):
        if isinstance(t, tuple) and t[0] in ("L", "V"): return (t[0], t[1] + d)
        if isinstance(t, tuple) and isinstance(t[0], tuple): return ((t[0][0], t[0][1] + d), t[1])
        return t
    A.vm = [shift(t, 26) for t in A.vm]; A.lg = [shift(t, 26) for t in A.lg]
    A.vm = [("X", t[1]) if t[1] >= 41 else t for t in A.vm]
    A.e("s_cbranch_scc1 L2_loop")
    gen_stage(31, "last", dma_wo(0) + dma_wo(1) + dma_wo(2) + ld_ffn()[:16], opt).emit(A)
    A.stamp()
    A.e("s_nop 7")
    for j in range(4): A.e(f"v_accvgpr_read_b32 v{vTmp+j}, a{aL+4*j}\nv_accvgpr_read_b32 v{S0+j}, a{aL+4*j+1}")
    for j in range(4): A.e(f"v_add_f32 v{vTmp+j}, v{vTmp+j}, v{S0+j}")
    A.e(f"s_mov_b32 s3, {hex(f2u(2.0**60))}")
    for j in range(4): A.e(f"v_cmp_nlt_f32 {s(56+2*j,2)}, v{vTmp+j}, s3")
    A.e("s_or_b64 s[56:57], s[56:57], s[58:59]\ns_or_b64 s[60:61], s[60:61], s[62:63]\ns_or_b64 s[56:57], s[56:57], s[60:61]\ns_cselect_b32 s3, 1, 0")
    A.e(f"s_lshl_b32 s14, s{sW}, 2\ns_add_u32 s14, s14, {FLAG}\nv_mov_b32 v{S0}, s3\nv_mov_b32 v{S0+1}, s14\nv_mov_b32 v{S0+2}, {FLAG}")
    A.lds(f"ds_write_b32 v{S0+1}, v{S0}", "fw")
    for j in range(4): A.e(f"v_rcp_f32 v{vTmp+j}, v{vTmp+j}")
    A.wait(vm=("L", 41), lg="fw"); A.e("s_barrier")
    A.lds(f"ds_read_b128 {v(S0+4,4)}, v{S0+2}", "fr")
    A.items(oreads(0))
    for u in range(8):
        for n in range(2):
            o = OB(n, u); j = 2 * (u // 4) + n
            for i in range(8): A.e(f"v_mul_f32 v{o+i}, v{o+i}, v{vTmp+j}")
            for i in range(4): A.e(f"v_cvt_pk_bf16_f32 v{o+i}, v{o+2*i}, v{o+2*i+1}")
            if 16 + 2 * u + n < 27:
                pre, ld = ld_ffn()[16 + 2 * u + n]; A.items(pre + [ld])
    A.wait(lg=("W", 0, 0))
    A.e(f"v_or3_b32 v{S0+4}, v{S0+4}, v{S0+5}, v{S0+6}\nv_or_b32 v{S0+4}, v{S0+4}, v{S0+7}\ns_nop 0\nv_readfirstlane_b32 s3, v{S0+4}\ns_nop 0")
    if opt.get("force_fallback"): A.e("s_mov_b32 s3, 1")
    A.e(f"s_andn2_b32 s3, s3, s{sPass}\ns_cbranch_scc1 L2_fallback")
    A.stamp()
    item_addr(A)
    So, leftover = gen_oproj(A)
    So.emit(A); emit_dma(A, leftover)
    A.e("s_nop 7")
    for n in range(2):
        cv, sw, st = oepi(17, n)
        A.items(cv + ["s_nop 1"] + sw + st[0] + [st[1]])
    A.stamp()
    gen_tail(A, opt)
    A.label("L2_end")
    A.e("s_endpgm")
    A.L += B.L
    A.label("L2_fallback")
    A.wait_all(); A.e("s_barrier")
    init_kv_addr()
    for j in range(4): A.e(f"v_mov_b32 v{P0+j}, 0xff800000")
    A.e(f"s_mov_b32 s{sPass}, 1\ns_mov_b32 s{sT}, 0")
    A.label("L2_fb_loop")
    emit_dma(A, dma_kv_static(None, (0,), 2))
    A.wait_all(); A.e("s_barrier")
    A.items(kreads(0, "fk")); A.wait_all(); A.e("s_barrier")
    for j in range(4):
        for kt in range(4):
            for t in range(4):
                d = S0 + 4 * kt
                A.e(f"{MF} {v(d,4)}, {a(KF(kt,t),4)}, {v(Q(j,t),4)}, {'0' if t == 0 else v(d,4)}")
        A.e("s_nop 7")
        for i in range(8): A.e(f"v_max3_f32 v{P0+j}, v{P0+j}, v{S0+2*i}, v{S0+2*i+1}")
    A.e(f"s_add_u32 s{sT}, s{sT}, 16384\ns_cmp_lt_u32 s{sT}, {32*16384}\ns_cbranch_scc1 L2_fb_loop")
    xmax_to_negm(A, [P0 + j for j in range(4)], 0.0)
    for i in range(3): emit_dma(A, dma_kv_static(i))
    A.wait_all(); A.e("s_barrier")
    A.items(kreads(0, "fk") + vreads(0, 0, "fv")); A.wait_all()
    A.e("s_branch L2_entry")
    A.label("L2_codeend")
    return A, dict(name=KNAME, grid=256, block=256, lds=LDS_BYTES, vgpr=512, acc=256)
```

```python
import math, os
LOG2E = 1.4426950408889634
C0 = LOG2E / math.sqrt(128.0)
WS_ML = 0
WS_KEY = 6656 << 10
KS = int(os.environ.get('KS', 128))
WS_SIZE = 8 << 20
WS_YP = 98304
YP_BYTES = 144 * 4608
WS_F1 = 786432
WS_XN = 1 << 20
WS_H2 = 4 << 20
WS_PART = 8 << 20
GS = int(os.environ.get('GS', 9216))
TS = 16 * GS + int(os.environ.get('TP', 0))
WS_STAMP = 64 << 20
KNAME = "adaLN_cond__gqa_block_cached__moe_arch_mod__prompt_kernel"
```

```python
import sys, os
sys.path.insert(0, os.path.dirname(os.path.abspath(__file__)))
from asmlib import *
import k_main

def build(opt):
    Asm.stamping = opt.get('stamp', 0)
    ks = [k_main.gen_k2(opt)]
    ref = open(os.path.join(os.path.dirname(os.path.abspath(__file__)), "..", "adaLN_cond__gqa_block_cached__moe_arch_mod__prompt.s.ref")).read().split("\n")
    out = [l for l in ref if l.startswith(";") and ("offset" in l or "Kernarg" in l)]
    for A, m in ks: out.append(f"; @launch grid=({m['grid']},1,1) block=({m['block']},1,1) lds={m['lds']}")
    out.append('.amdgcn_target "amdgcn-amd-amdhsa--gfx950"\n.text')
    bad = 0
    for A, m in ks:
        bad += lint(A.L, m["name"])
        out.append(f".globl {m['name']}\n.p2align 8\n.type {m['name']},@function\n{m['name']}:")
        out.append(A.text())
    assert bad == 0
    out.append('.section .rodata,"a"')
    for A, m in ks:
        out.append(f""".p2align 6
.amdhsa_kernel {m['name']}
  .amdhsa_next_free_vgpr {m['vgpr']}
  .amdhsa_next_free_sgpr 102
  .amdhsa_accum_offset {m['acc']}
  .amdhsa_group_segment_fixed_size 0
  .amdhsa_kernarg_size 120
  .amdhsa_user_sgpr_count 2
  .amdhsa_user_sgpr_kernarg_segment_ptr 1
  .amdhsa_system_sgpr_workgroup_id_x 1
  .amdhsa_float_denorm_mode_32 3
.end_amdhsa_kernel""")
    return "\n".join(out) + "\n"

if __name__ == "__main__":
    opt = {}
    for kv in sys.argv[2:]:
        k, x = kv.split("="); opt[k] = eval(x)
    open(sys.argv[1], "w").write(build(opt))
```

```python
import re, struct

def f2u(x): return struct.unpack("<I", struct.pack("<f", x))[0]
def v(i, n=1): return f"v{i}" if n == 1 else f"v[{i}:{i+n-1}]"
def a(i, n=1): return f"a{i}" if n == 1 else f"a[{i}:{i+n-1}]"
def s(i, n=1): return f"s{i}" if n == 1 else f"s[{i}:{i+n-1}]"

TRANS = ("v_exp_", "v_log_", "v_rcp_", "v_rsq_", "v_sqrt_", "v_sin_", "v_cos_")
class Asm:
    def __init__(self):
        self.L = []; self.vm = []; self.lg = []
    def e(self, txt):
        for l in txt.split("\n"):
            l = l.strip()
            if l: self.L.append(l)
    def label(self, n): self.L.append(n + ":")
    def vmem(self, txt, tag=None): self.e(txt); self.vm.append(tag)
    def lds(self, txt, tag=None): self.e(txt); self.lg.append(tag)
    def _need(self, q, tag):
        idx = -1
        for i, t in enumerate(q):
            if t == tag: idx = i
        return idx
    def wait(self, vm=None, lg=None):
        parts = []
        for q, tags, name, mx in ((self.vm, vm, "vmcnt", 63), (self.lg, lg, "lgkmcnt", 15)):
            if tags is None: continue
            if not isinstance(tags, list): tags = [tags]
            idx = max(self._need(q, t) for t in tags)
            if idx < 0: continue
            n = min(len(q) - 1 - idx, mx)
            parts.append(f"{name}({n})")
            del q[:len(q) - n]
        if parts: self.e("s_waitcnt " + " ".join(parts))
    def wait_all(self, vm=True, lg=True):
        parts = []
        if vm: parts.append("vmcnt(0)"); self.vm = []
        if lg: parts.append("lgkmcnt(0)"); self.lg = []
        self.e("s_waitcnt " + " ".join(parts))
    def item(self, it):
        if isinstance(it, str): self.e(it)
        elif callable(it): it()
        elif it[0] == "vm": self.vmem(it[1], it[2])
        elif it[0] == "lds": self.lds(it[1], it[2])
        elif it[0] == "wait": self.wait(it[1], it[2])
        else: raise ValueError(it)
    def items(self, its):
        for it in its: self.item(it)
    def srd(self, d, base, size, off=None):
        if off is None:
            self.e(f"s_mov_b32 s{d}, s{base}\ns_mov_b32 s{d+1}, s{base+1}")
        else:
            self.e(f"s_add_u32 s{d}, s{base}, {off}\ns_addc_u32 s{d+1}, s{base+1}, 0")
        self.e(f"s_mov_b32 s{d+2}, {size}\ns_mov_b32 s{d+3}, 0x20000")
    stamping = False
    stamp_agpr = None
    def fstamp(self):
        if self.stamping == 2: self.stamp()
    def stamp(self):
        if not self.stamping: return
        n = getattr(self, "nst", 0); self.nst = n + 1
        self.e("s_memtime s[92:93]\ns_memrealtime s[94:95]\ns_waitcnt lgkmcnt(0)"); self.lg = []
        assert n < 32; k = self.stamp_agpr
        self.e(f"s_mov_b32 s93, s94\ns_mov_b64 s[94:95], exec\ns_mov_b64 exec, -1\nv_accvgpr_write_b32 a{k}, v15\nv_accvgpr_read_b32 v15, a{k+1}")
        self.e(f"v_writelane_b32 v15, s92, {2*n}\nv_writelane_b32 v15, s93, {2*n+1}\nv_accvgpr_write_b32 a{k+1}, v15\nv_accvgpr_read_b32 v15, a{k}\ns_mov_b64 exec, s[94:95]\ns_nop 0")
    def stamp_flush(self, kid, off, sw=None):
        if not self.stamping: return
        self.e("s_load_dwordx2 s[60:61], s[0:1], 112\ns_waitcnt lgkmcnt(0)")
        self.e(f"s_mov_b32 s62, 0x10000000\ns_mov_b32 s63, 0x20000\ns_lshl_b32 s59, s2, 10\ns_add_u32 s59, s59, {off + kid * 524288}")
        self.e(f"s_lshl_b32 s58, s{sw}, 8\ns_add_u32 s59, s59, s58\nv_accvgpr_read_b32 v1, a{self.stamp_agpr+1}\nv_lshlrev_b32 v2, 2, v0")
        m = (1 << (2 * self.nst)) - 1
        self.e(f"s_mov_b32 exec_lo, {hex(m & 0xffffffff)}\ns_mov_b32 exec_hi, {hex(m >> 32)}\nbuffer_store_dword v1, v2, s[60:63], s59 offen")
    def text(self): return "\n".join(("" if l.endswith(":") or l.startswith(".") else "    ") + l for l in self.L) + "\n"

class Sched:
    def __init__(self):
        self.mf = []; self.sh = []; self.mem = []; self.va = []
    def mfma(self, txt):
        self.mf.append(txt); self.sh.append([]); self.mem.append([]); self.va.append([]); return len(self.mf) - 1
    @staticmethod
    def cost(it):
        t = it if isinstance(it, str) else it[1]
        if "\n" in t: return 2
        if t.startswith("s_"): return 0
        if t.startswith(("buffer_", "global_")): return 2
        return 2 if (t.startswith(TRANS) or "swap" in t) else 1
    def free(self, g):
        if not self.mf[g]: return 0
        return 2 - sum(map(self.cost, self.mem[g] + self.va[g]))
    def fill(self, items, lo, hi):
        items = list(items); g = lo; last = None
        while items and g < hi:
            rdy, it = items[0]; c = self.cost(it)
            isds = not isinstance(it, str) and it[0] == "lds"
            if c == 0:
                if last == g: g += 1
                if g >= hi: break
                if rdy <= g: self.sh[g].append(it); items.pop(0)
                else: g += 1
            elif rdy <= g and self.free(g) >= c and not (isds and last == g and self.va[g]):
                (self.mem if isds else self.va)[g].append(it); items.pop(0); last = g
            else: g += 1
        return items
    def emit(self, A, lo=0, hi=None):
        for i in range(lo, len(self.mf) if hi is None else hi):
            if self.mf[i]: A.e(self.mf[i])
            A.items(self.sh[i]); A.items(self.mem[i]); A.items(self.va[i])

_REG = re.compile(r"\b([vas])(\d+)\b|\b([vas])\[(\d+):(\d+)\]|\b(vcc|exec|m0)\b")
def regs(tok):
    out = set()
    for m in _REG.finditer(tok):
        if m.group(1): out.add(m.group(1) + m.group(2))
        elif m.group(3): out |= {m.group(3) + str(i) for i in range(int(m.group(4)), int(m.group(5)) + 1)}
        else: out.add(m.group(6))
    return out
class I:
    def __init__(self, line, n):
        self.line = line; self.n = n
        p = line.split(None, 1); self.op = op = p[0]
        ops = [x.strip() for x in (p[1].split(",") if len(p) > 1 else [])]
        self.ops = ops
        self.mfma = op.startswith(("v_mfma", "v_smfmac"))
        self.valu = op.startswith("v_") and not self.mfma
        self.vmem = op.startswith(("buffer_", "global_"))
        self.ds = op.startswith("ds_")
        self.salu = op.startswith("s_")
        self.ws = int(ops[0]) + 1 if op == "s_nop" else 1
        R = [regs(o) for o in ops]
        allr = set().union(*R) if R else set()
        self.W = set(); self.R = set(); self.C = set(); self.data = set()
        if self.mfma:
            self.W = R[0]; self.AB = R[1] | R[2]
            if op.startswith("v_smfmac"): self.C = R[0]; self.AB |= R[3]
            else: self.C = R[3]
            self.R = self.AB | self.C
            self.passes = 8 if "32x32" in op else 4
        elif self.valu:
            self.W = set(R[0]); self.R = set().union(*R[1:]) if len(R) > 1 else set()
            if "swap" in op: self.W = R[0] | R[1]; self.R = R[0] | R[1]
            if op.startswith(("v_fmac", "v_dot2c", "v_writelane")): self.R |= R[0]
            if "dpp" in op or "row_" in line or "quad_perm" in line: self.R |= R[0]
            if op.startswith(("v_add_co", "v_addc_co", "v_sub_co")): self.W |= R[1]
            if op.startswith("v_cmpx"): self.W.add("exec")
        elif self.vmem:
            lds = bool(re.search(r"\blds\b", line)) or "_lds_" in op
            if "load" in op and not lds: self.W = R[0]; self.R = set().union(*R[1:])
            elif "atomic" in op and "sc0" in line: self.W = R[0]; self.R = allr
            else: self.R = set(allr)
            if lds: self.R.add("m0")
            if "store" in op and ("x4" in op or "x3" in op): self.data = R[0] if op.startswith("buffer") else R[1]
        elif self.ds:
            if "read" in op or "permute" in op or "swizzle" in op or "_rtn" in op: self.W = R[0]; self.R = set().union(*R[1:])
            else: self.R = allr
        elif self.salu:
            if op.startswith(("s_cmp", "s_cbranch", "s_branch", "s_wait", "s_nop", "s_barrier", "s_endpgm", "s_sleep", "s_setprio", "s_bitcmp")): self.R = allr
            else:
                self.W = set(R[0]) if R else set(); self.R = set().union(*R[1:]) if len(R) > 1 else set()
                if "saveexec" in op: self.W.add("exec")

def need(p, c):
    n = 0
    def up(cond, k):
        nonlocal n
        if cond: n = max(n, k)
    isv = lambda S: {r for r in S if r[0] in "va" and r != "vcc"}
    iss = lambda S: {r for r in S if r[0] == "s" or r == "vcc"}
    if p.valu:
        wv, wsg = isv(p.W), iss(p.W)
        up(c.mfma and wv & c.R, 2)
        up(p.op.startswith(TRANS) and c.valu and wv & c.R, 1)
        up(p.op.startswith(TRANS) and (c.vmem or c.ds) and wv & c.R, 1)
        up(c.valu and "permlane" in c.op and wv & c.R, 2)
        up(c.valu and ("dpp" in c.op or "row_" in c.line or "quad_perm" in c.line) and wv & c.R, 2)
        up(c.op.startswith(("v_readfirstlane", "v_readlane")) and wv & c.R, 1)
        up(c.vmem and wsg & c.R, 5)
        up(c.valu and wsg & c.R, 2)
        up(c.op.startswith(("v_readlane", "v_writelane")) and wsg & c.R, 4)
        up(c.salu and wsg & c.R, 1)
        up("exec" in p.W and (c.mfma or "permlane" in c.op or c.op.startswith(("v_readfirstlane", "v_readlane"))), 4)
        up("exec" in p.W and ("dpp" in c.op or "row_" in c.line), 5)
        up(("sdwa" in p.op or ("op_sel:" in p.line and "mixhi" in p.op)) and c.valu and wv & c.R, 1)
        up(p.op.startswith("v_dot") and (c.valu or c.mfma or c.vmem or c.ds) and wv & (c.R | c.W) and not (c.op == p.op and not (wv & regs(",".join(c.ops[1:3])))), 3)
    if p.mfma:
        big = {4: 8, 8: 12}[p.passes]
        if c.mfma:
            up(p.W & c.AB, big)
            up(p.W & c.C and not (p.W == c.C and p.passes == c.passes), big - 2)
            up(p.W & c.W and not (p.W & c.C), big - 2)
        else:
            up(p.W & (c.R | c.W), big)
            up(c.valu and p.C & c.W, p.passes - 1)
    if p.salu: up("m0" in p.W and c.vmem and "m0" in c.R, 1)
    if p.data: up(p.data & c.W, 2)
    return n

def lint(lines, name=""):
    ins = [I(l, i) for i, l in enumerate(lines) if not (l.endswith(":") or l.startswith((".", ";")))]
    bad = 0
    for j, c in enumerate(ins):
        d = 0
        for i in range(j - 1, max(-1, j - 14), -1):
            p = ins[i]
            k = need(p, c)
            if k > d:
                print(f"HAZARD[{name}] need {k} have {d}: [{p.n}] {p.line}  ->  [{c.n}] {c.line}"); bad += 1
            d += p.ws
            if d >= 12: break
    return bad

def estimate(lines):
    t = 0; mf_ready = 0; vec_free = 0; n = 0; broken = 0; prevD = None; last_issue = -99
    for l in lines:
        if l.endswith(":") or l.startswith("."): continue
        i = I(l, 0); op = i.op
        if i.mfma:
            t = max(t, mf_ready, vec_free)
            if prevD is not None and prevD == i.C and t != last_issue + 16: broken += 1
            last_issue = t; prevD = i.W
            mf_ready = t + 16; vec_free = t + 8; t += 4; n += 1
        elif i.salu:
            t += 4 * i.ws
        else:
            c = 8 if (op.startswith(TRANS) or "swap" in op) else 4
            if i.vmem: c = 20 if "store" in op else 8
            if op.startswith("v_pk_"): t = max(t, mf_ready)
            t = max(t, vec_free); vec_free = t + c; t += 4
    return max(t, vec_free, mf_ready), n, broken


def insn_sizes(lines):
    import subprocess, tempfile, os
    body = [l for l in lines if not l.startswith(".")]
    with tempfile.TemporaryDirectory() as d:
        open(d + "/a.s", "w").write('.amdgcn_target "amdgcn-amd-amdhsa--gfx950"\n.text\n' + "\n".join(body) + "\n")
        subprocess.run(["clang", "-x", "assembler", "-target", "amdgcn-amd-amdhsa", "-mcpu=gfx950", "-c", d + "/a.s", "-o", d + "/a.o"], check=True)
        out = subprocess.run(["llvm-objdump", "-d", "--mcpu=gfx950", d + "/a.o"], capture_output=True, text=True, check=True).stdout
    sz = [4 * len(m.group(1).split()) for m in re.finditer(r"// [0-9A-F]{12}: ([0-9A-F ]+)", out)]
    it = iter(sz); res = [None if (l.startswith(".") or l.endswith(":")) else next(it) for l in lines]
    assert next(it, None) is None
    return res

def insert_pads(lines, start, stop, nchain=4):
    tmp = lines + [f"L2_pad{k}:" for k in range(nchain)]
    sz = insn_sizes(tmp)[:len(lines)]
    i0 = lines.index(start + ":"); i1 = lines.index(stop + ":")
    out = lines[:i0 + 1]; off = 0; page = 1; pads = []
    for i in range(i0 + 1, len(lines)):
        l = lines[i]
        if i < i1 and off >= page * 4096:
            prev = out[-1]
            good = prev.startswith(("v_mfma", "v_smfmac")) and not l.startswith("s_")
            nxt = sz[i] or 0
            if good or off + nxt > page * 4096 + 56:
                pads.append(len(out)); out.append(None); off += 4; page += 1
        out.append(l)
        if l.startswith(".p2align"):
            a_ = 1 << int(l.split()[1]); off = -(-off // a_) * a_
        elif sz[i]: off += sz[i]
    assert len(pads) >= nchain
    res = []; k = 0
    for l in out:
        if l is None:
            res += [f"L2_pad{k}:", f"s_cbranch_execz {f'L2_pad{k+nchain}' if k + nchain < len(pads) else start}"]; k += 1
        else: res.append(l)
    return res
```

```python
from asmlib import *
from layout import *

RING = 16384; SLOT = 36864; HALF = 16896; PIECE = 1056
ASB = 9216
SCR = 13824
FLAG = SCR
LDS_BYTES = RING + 4 * SLOT
BIAS = 32.0
vK, vV, vT, vT2, vKV, vWq, vWo, vX, vAS, vPt, vIdx = 1, 2, 3, 4, 5, 6, 7, 8, 9, 10, 11
vTmp = 12
S0 = 16; P0 = 32; NM = 48; Q0 = 64; O0 = 128
AS0 = 16; T0 = 32; X0 = 48
def O(j, dt): return O0 + (j * 8 + dt) * 4
def Q(j, t): return Q0 + (j * 4 + t) * 4
def X(c, n, kl): return X0 + ((c + 2) % 5) * 16 + (n * 2 + kl) * 4
aL = 0; aOne = 16; aK = 64; aV = 128
def KF(kt, t): return aK + (kt * 4 + t) * 4
def VF(buf, dt, u): return aV + buf * 64 + (dt * 2 + u) * 4
sK, sV, sWq, sWo, sXn, sWr, sPt = 16, 20, 24, 28, 32, 36, 40
sC, sWm, sDb = 16, 88, 60
sW4, sOff, sT, sBase, sDel, sCnt, sPass, sW, sG, sTb, sOff2 = 44, 45, 46, 47, 48, 49, 50, 51, 52, 53, 54
sWg, sWu, sWd, sXi, sOut, sWs, sPr = 64, 68, 72, 76, 80, 84, 88
sW9, sT8, sCap = 55, 96, 97
sH2 = 32
sSt = 24; sYp = 32
vFg = vWq
aDum = 63
MF = "v_mfma_f32_16x16x32_bf16"

def trd(dst, slot, off):
    base = vT if slot < 2 else vT2
    return f"ds_read_b64_tr_b16 {a(dst,2)}, v{base} offset:{(slot % 2) * SLOT + off}"

def dma_wq(c):
    slot = (c + 1) % 4; out = []
    for kl in range(2):
        for r in range(4):
            out.append(([f"s_add_u32 m0, s{sW4}, {slot*SLOT + kl*HALF + r*PIECE}", f"s_mov_b32 s{sOff}, {(64*c + 32*kl + r) * 8192}"],
                        ("vm", f"buffer_load_dwordx4 v{vWq}, {s(sWq,4)}, s{sOff} offen{OPT.get('wq_nt','')} lds", ("L", c))))
    return out
def dma_kv_static(i, halves=(0, 1), slot=None):
    slot = (i + 2) % 4 if slot is None else slot; out = []
    for h in halves:
        for j in range(4):
            pre = [f"s_add_u32 m0, s{sW4}, {slot*SLOT + h*HALF + 32*j}"]
            if i is not None and j == 0 and h == halves[0]: pre.append(f"s_mov_b32 s{sT}, {i*16384}")
            out.append((pre, ("vm", f"buffer_load_dwordx4 v{vKV}, {s(sV if h else sK,4)}, s{sT} offen offset:{1024*j}{OPT.get('kv_nt','')} lds", ("L", 9 + (i or 0)))))
    return out
def dma_kv_dyn(i, odd):
    out = []
    for h in range(2):
        for j in range(4):
            pre = [f"s_add_u32 m0, s{sBase}, {odd*SLOT + h*HALF + 32*j}"]
            out.append((pre, ("vm", f"buffer_load_dwordx4 v{vKV}, {s(sV if h else sK,4)}, s{sT} offen offset:{1024*j}{OPT.get('kv_nt','')} lds", ("L", 9 + i))))
    return out
def dma_wo(c):
    slot = (c + 2) % 4; out = []
    for hi in range(2):
        for r in range(4):
            pre = [f"s_add_u32 m0, s{sW4}, {slot*SLOT + hi*HALF - 96*r}"]
            if r == 0: pre.append(f"s_mov_b32 s{sOff}, {c*128 + hi*128*1152}")
            out.append((pre, ("vm", f"buffer_load_dwordx4 v{vWo}, {s(sWo,4)}, s{sOff} offen offset:{1152*r}{OPT.get('wo_nt','')} lds", ("L", 41 + c))))
    return out
def FW(k): return 20 + 4 * k if k < 9 else aV + 4 * (k - 9)
def ld_ffn():
    out = []
    for m in range(3):
        for i in range(9):
            d = a(FW(9 * m + i), 4)
            if m < 2: out.append(([f"s_mov_b32 s{sOff2}, {i*16*9216}"], ("vm", f"buffer_load_dwordx4 {d}, v{vFg}, {s(sWu if m else sWg,4)}, s{sOff2} offen", "fw")))
            else: out.append(([f"s_add_u32 s{sOff2}, s{sW9}, {1024*i}"], ("vm", f"buffer_load_dwordx4 {d}, v{vX}, {s(sWd,4)}, s{sOff2} offen", "fw")))
    return out
def touch(vaddr, srd, off):
    return ([f"s_mov_b32 s{sOff2}, {off}"], f"buffer_load_dword a{aDum}, v{vaddr}, {s(srd,4)}, s{sOff2} offen")
def dmaL(n):
    return dma_wq(n) if n < 9 else (dma_kv_static(n - 9) if n < 41 else dma_wo(n - 41))
def emit_dma(A, lst):
    for pre, ld in lst:
        A.items(pre)
        if len(pre) == 1: A.e("s_nop 0")
        A.item(ld)
def xload(c):
    return [([f"s_mov_b32 s{sOff2}, {n*18432 + (2*c+kl)*1024}"],
             ("vm", f"buffer_load_dwordx4 {v(X(c,n,kl),4)}, v{vX}, {s(sXn,4)}, s{sOff2} offen sc1", ("X", c))) for n in range(2) for kl in range(2)]
def place_vm(Sc, g, item):
    pre, ld = item
    for k, p in enumerate(pre): Sc.sh[g - 1 + k].append(p)
    Sc.mem[g].append(ld)

def as_reads(c, q):
    kl, hf = q // 2, q % 2; d = AS0 + (q % 2) * 8; off = ASB + (2 * c + kl) * 256 + hf * 16
    return [("lds", f"ds_read_b128 {v(d,4)}, v{vAS} offset:{off}", ("AS", c, q)), ("lds", f"ds_read_b128 {v(d+4,4)}, v{vAS} offset:{off+32}", ("AS", c, q))]
def modulate(c, q):
    kl, hf = q // 2, q % 2; d = AS0 + (q % 2) * 8; out = []
    for n in range(2):
        x = X(c, n, kl) + 2 * hf; t = T0 + 4 * n
        for i in range(4):
            out.append(f"v_fma_mix_f32 v{t+i}, v{x+i//2}, v{d+i}, v{d+4+i} op_sel:[{i%2},0,0] op_sel_hi:[1,0,0]")
        out += [f"v_cvt_pk_bf16_f32 v{x}, v{t}, v{t+1}", f"v_cvt_pk_bf16_f32 v{x+1}, v{t+2}, v{t+3}"]
    return out

def kreads(off, tag): return [("lds", f"ds_read_b128 {a(KF(kt,t),4)}, v{vK} offset:{off + kt*256 + t*64}", (tag, kt)) for kt in range(4) for t in range(4)]
def vreads(buf, off, tag): return [("lds", f"ds_read_b64_tr_b16 {a(VF(buf,dt,u)+2*b,2)}, v{vV} offset:{off + (2*u+b)*256 + dt*32}", tag) for dt in range(8) for u in range(2) for b in range(2)]

QD = 3
def AF(grp, kl): return aV + 64 + (grp % 8) * 8 + kl * 4
def qreads(G):
    c, mt = divmod(G, 16); slot = (c + 1) % 4
    return [("lds", trd(AF(G, kl) + 2 * b, slot, kl * HALF + b * 512 + mt * 32), ("A", G)) for kl in range(2) for b in range(2)]

def gen_qproj(A):
    Sc = Sched()
    for c in range(9):
        for mt in range(16):
            G = c * 16 + mt
            for n in range(2):
                d = O(2 * (mt // 8) + n, mt % 8)
                for kl in range(2):
                    cc = "0" if c == 0 and kl == 0 else v(d, 4)
                    Sc.mfma(f"{MF} {v(d,4)}, {a(AF(G,kl),4)}, {v(X(c,n,kl),4)}, {cc}")
    N = len(Sc.mf); vmg = set()
    leftover = []
    for k, it in enumerate(dmaL(2)):
        g = 3 + 4 * k; place_vm(Sc, g, it); vmg.add(g)
    for c in range(9):
        gb = 64 * (c + 1) - 4 * QD - 1
        Sc.sh[gb] += [("wait", ("L", c + 1), None), "s_barrier"]
        for k, it in enumerate(dmaL(c + 3)):
            g = gb + 4 + 4 * k
            if g < N: place_vm(Sc, g, it); vmg.add(g)
            else: leftover.append(it)
    for c in range(6):
        for k, it in enumerate(xload(c + 3)):
            g = 64 * c + 35 + 4 * k
            assert g not in vmg
            place_vm(Sc, g, it); vmg.add(g)
    for G in range(144):
        if G > 0: Sc.sh[4 * G - 1].append(("wait", None, ("A", G)))
        if G + QD < 144:
            rd = qreads(G + QD); gs = [g for g in range(4 * G, 4 * G + 4) if g not in vmg]
            if len(gs) == 3: gs = [gs[0], gs[1], gs[1], gs[2]]
            for g, r in zip(gs, rd): Sc.mem[g].append(r)
    for c in range(8):
        Sc.sh[64 * c].append(("wait", ("X", c + 1), None))
        for q in range(4):
            w0 = 64 * c + 16 * q
            nxt = as_reads(c + 1, q + 1) if q < 3 else (as_reads(c + 2, 0) if c < 7 else [])
            items = modulate(c + 1, q)
            Sc.sh[w0].append(("wait", None, ("AS", c + 1, q)))
            free = [g for g in range(w0, w0 + 16) if g not in vmg and len(Sc.mem[g]) < 2]
            for r in nxt:
                g = free.pop(0); Sc.mem[g].append(r)
            over = len(items) - len(free)
            odd = sorted(range(w0 + 1, w0 + 16, 2), key=lambda g: (g in vmg, -g))
            slots = sorted(free + odd[:over] if over > 0 else free); assert len(slots) >= len(items)
            for g, it in zip(slots, items): Sc.va[g].append(it)
    return Sc, leftover, vmg

def qconvert(j, t):
    o = O(j, 2 * t); q = Q(j, t)
    return [f"v_cvt_pk_bf16_f32 v{q+i}, v{o+2*i}, v{o+2*i+1}" for i in range(4)], [f"v_permlane32_swap_b32 v{q}, v{q+2}", f"v_permlane32_swap_b32 v{q+1}, v{q+3}"]

def xmax_to_negm(A, src, bias):
    t = vTmp
    for op in ("v_permlane16_swap_b32", "v_permlane32_swap_b32"):
        for j in range(4): A.e(f"v_mov_b32 v{t+j}, v{src[j]}")
        for j in range(4): A.e(f"{op} v{t+j}, v{src[j]}")
        for j in range(4): A.e(f"v_max_f32 v{src[j]}, v{src[j]}, v{t+j}")
    for j in range(4):
        for i in range(4): A.e(f"v_sub_f32 v{NM+4*j+i}, {hex(f2u(-bias))}, v{src[j]}")

def gen_stage(i, kind, dma, opt, extra=(), xstep=2):
    par = i % 2; Sc = Sched(); first = kind == "first"; last = kind == "last"
    nun = 5 if last else 4
    for j in range(nun):
        for kt in range(4):
            for t in range(4):
                d = S0 + 4 * kt
                Sc.mfma(None if j == 4 else f"{MF} {v(d,4)}, {a(KF(kt,t),4)}, {v(Q(j,t),4)}, {v(NM+4*j,4) if t == 0 else v(d,4)}")
        jp = (j - 1) % 4; vb = par if j > 0 else 1 - par; p = P0 + 8 * (jp % 2)
        skip = first and j == 0
        for dt in range(8):
            for u in range(2):
                d = O(jp, dt); cc = "0" if first and u == 0 else v(d, 4)
                Sc.mfma(None if skip else f"{MF} {v(d,4)}, {a(VF(vb,dt,u),4)}, {v(p+4*u,4)}, {cc}")
        Sc.mfma(None if skip else f"v_smfmac_f32_16x16x64_bf16 {a(aL+4*jp,4)}, {a(aOne,4)}, {v(p,8)}, v{vIdx}")
        b = 33 * j
        for x in range(16):
            prev = x < 4
            if (prev and skip) or (j == 4 and not prev): continue
            e = (x - 4) % 16
            Sc.va[b + 2 * x].append(f"v_exp_f32 v{S0+e}, v{S0+e}")
        for k in range(8):
            prev = k < 3; pr = (k + 5) % 8
            if (prev and skip) or (j == 4 and not prev): continue
            pb = P0 + 8 * ((j - 1 if prev else j) % 2)
            Sc.va[b + 4 * k + 1].append(f"v_cvt_pk_bf16_f32 v{pb+pr}, v{S0+2*pr}, v{S0+2*pr+1}")
    if first:
        for g in range(16, 33):
            if g % 2 == 0: Sc.va[g].append("s_nop 0")
        Sc.sh[16].append("s_nop 3"); Sc.sh[8].append("s_nop 1")
    if last:
        for g in range(33 * 4, 33 * 4 + 8, 2): Sc.va[g].append("s_nop 0")
        Sc.va[33 * 4 + 15].append("s_nop 1")
    for kt in range(1, 4): Sc.sh[4 * kt - 1].append(("wait", None, (("K", i), kt)))
    cand = [33 * j + r for j in range(4 if last else 3) for r in range(3, 32, 4)]
    gs = cand[:len(dma)] + cand[len(dma)::xstep]
    dma = list(dma) + list(extra)
    vmg = set()
    for g, it in zip(gs, dma): place_vm(Sc, g, it); vmg.add(g)
    assert len(vmg) == len(dma)
    if kind == "A":
        Sc.va[1].append(f"v_add_u32 v{vK}, s{sDel}, v{vK}"); Sc.va[5].append(f"v_add_u32 v{vV}, s{sDel}, v{vV}")
        Sc.sh[0].append(f"s_sub_u32 s{sBase}, s{sBase}, s{sDel}")
        Sc.sh[8].append(f"s_sub_u32 s{sDel}, 0, s{sDel}")
    if not last:
        Sc.sh[100].append(f"s_add_u32 s{sT}, s{sT}, 16384"); pass
        off = 0 if kind == "A" else SLOT
        free = [33 * j + r for j in range(3) for r in list(range(1, 32, 2)) + [32] if 33 * j + r >= 17 and 33 * j + r not in vmg]
        vr = vreads(1 - par, off, ("V", i + 1))
        if len(free) < 32: free = sorted(free + free[len(free) - (32 - len(free)):])
        for n, r in enumerate(vr):
            assert free[n] >= 16 + n // 2
            Sc.mem[free[n]].append(r)
        for n, r in enumerate(kreads(off, ("K", i + 1))): Sc.mem[99 + 2 * n + 1].append(r)
        Sc.sh[131] += [("wait", ("L", 9 + i + 2), (("K", i + 1), 0)), "s_barrier"]
    return Sc

OA = 16; OR = 48
def OB(n, u): return O(2 * (u // 4) + n, 2 * (u % 4))
def WF(grp, u): return aK + (grp % 2) * 32 + u * 4
def oreads(G):
    c, ntl = divmod(G, 4); slot = (c + 2) % 4
    return [("lds", trd(WF(G, u) + 2 * b, slot, (u // 4) * HALF + (2 * (u % 4) + b) * 128 + ntl * 32), ("W", G, u // 2)) for u in range(8) for b in range(2)]
def oacc(G, n): return OA + ((G % 4) * 2 + n) * 4
def oepi(pair, n):
    r = OR + 4 * n; x, y = oacc(2 * pair, n), oacc(2 * pair + 1, n); c, aa = divmod(pair, 2)
    cv = [f"v_cvt_pk_bf16_f32 v{r}, v{x}, v{x+1}", f"v_cvt_pk_bf16_f32 v{r+1}, v{x+2}, v{x+3}", f"v_cvt_pk_bf16_f32 v{r+2}, v{y}, v{y+1}", f"v_cvt_pk_bf16_f32 v{r+3}, v{y+2}, v{y+3}"]
    sw = [f"v_permlane32_swap_b32 v{r}, v{r+2}", f"v_permlane32_swap_b32 v{r+1}, v{r+3}"]
    st = ([f"s_mov_b32 s{sOff2}, {n*294912 + c*1024}"], ("vm", f"buffer_store_dwordx4 {v(r,4)}, v{vPt}, {s(sPt,4)}, s{sOff2} offen offset:{aa*512}{OPT.get('st_flags', ' sc1')}", "st"))
    return cv, sw, st

vXA, vXC = vK, vV
XR = 64
def HOLE(k): return O0 + 8 * k + 4
def xi_loads(ob):
    return [([], ("vm", f"buffer_load_dwordx4 {v(XR+4*i,4)}, v{vXC if i == 2 else vXA}, {s(sXi,4)}, 0 offen offset:{ob if i == 1 else 0}", "xi")) for i in range(3)]
vWA, vWC, vPA, vPB, vFa, vFl, vOne = 12, 13, 5, 59, 6, 9, 15
sFl, sRem, sQ, sRdyA, sFs, sPa = sBase, sDel, sT, sCnt, 56, 28
def WR(q): return 224 + 8 * (q // 4) + q % 4
def wr_loads():
    return [([], ("vm", f"buffer_load_dwordx4 {v(WR(4*i),4)}, v{vWC if i == 2 else vWA}, {s(sWr,4)}, 0 offen offset:{512*i}", "xi")) for i in range(3)]
def NV(r, h): return 76 + 12 * h + 4 * r
def mv_loads():
    return [([f"s_movk_i32 s{sOff}, {4608 + 13824*h + 4096*r}"], ("vm", f"buffer_load_dwordx4 {v(NV(r,h),4)}, v{vPB if r == 2 else vPA}, {s(sWs,4)}, s{sOff} offen sc1", "xi")) for r in range(3) for h in range(2)]
def item_addr(A, ma, mc, oc, t=14):
    A.e(f"s_mul_i32 s3, s{sW}, {ma}\nv_lshrrev_b32 v{t}, 3, v0\nv_lshl_add_u32 v{vWA}, v{t}, 4, s3\nv_and_b32 v{t}, 1, v{t}")
    if mc != ma: A.e(f"s_mul_i32 s3, s{sW}, {mc}")
    A.e(f"v_lshl_add_u32 v{vWC}, v{t}, 4, s3")
    A.e(f"v_and_b32 v{t}, 7, v0\nv_mul_u32_u24 v{t}, 1152, v{t}\nv_add_u32 v{vXA}, v{t}, v{vWA}\nv_add_u32 v{vXC}, v{t}, v{vWC}\nv_add_u32 v{vXC}, {oc}, v{vXC}")
def ready_mask(d):
    return ["s_lshr_b32 s3, vcc_lo, 1", "s_and_b32 s3, s3, vcc_lo", "s_lshr_b32 s14, s3, 2", f"s_and_b32 s{d}, s3, s14"]

def gen_oproj(A):
    Sc = Sched()
    for G in range(36):
        for n in range(2):
            for u in range(8):
                d = oacc(G, n)
                Sc.mfma(f"{MF} {v(d,4)}, {a(WF(G,u),4)}, {v(OB(n,u),4)}, {'0' if u == 0 else v(d,4)}")
    N = len(Sc.mf); vmg = set(); leftover = []
    st = OPT.get("o_step", 2)
    for c in range(8):
        gb = 64 * c + 47
        Sc.sh[gb] += [("wait", ("L", 41 + c + 1), "fw"), "s_barrier"]
        if c + 3 <= 8:
            for k, it in enumerate(dma_wo(c + 3)):
                g = gb + 2 + st * k; place_vm(Sc, g, it); vmg.add(g)
    misc = ld_ffn()[9 + OPT.get("nup", 16):]
    gl = list(range(3, 32, 4)); assert len(gl) >= len(misc)
    for g, it in zip(gl, misc): place_vm(Sc, g, it); vmg.add(g)
    Sc.sh[440] += [f"s_sub_u32 s{sPa}, s{sPr}, 4096", f"s_subb_u32 s{sPa+1}, s{sPr+1}, 0"]; Sc.sh[441].append(f"s_mov_b32 s{sPa+2}, 147456")
    swg = set()
    for p in range(17):
        for n in range(2):
            b = 16 * (2 * p + 2) + 8 * n
            cv, sw, st = oepi(p, n)
            for k, x in enumerate(cv): Sc.va[b + k].append(x)
            Sc.va[b + 5].append(sw[0]); Sc.va[b + 6].append(sw[1]); swg |= {b + 5, b + 6}
            Sc.sh[b + 4].append(st[0][0]); Sc.va[b + 7].append(st[1])
    for G in range(36):
        for h in range(4):
            g = 16 * G + 2 * h - 1
            if g >= 0: Sc.sh[g].append(("wait", None, ("W", G, h)))
        if G + 1 < 36:
            gs = [g for g in range(16 * G, 16 * G + 16) if g not in vmg and g not in swg]
            two = [g for g in gs if not Sc.va[g]]
            extra = 16 - len(gs)
            if extra > len(two): two = two + [g for g in range(16 * G + 7, 16 * G + 16, 8)] * 4
            gs = sorted(gs + two[:extra]); assert len(gs) == 16
            for g, r in zip(gs, oreads(G + 1)): Sc.mem[g].append(r)
    f = NM + 12
    Sc.mem[47].append(("lds", f"ds_read_b128 {v(f,4)}, v{NM+10}", "fr"))
    Sc.sh[55].append(("wait", None, "fr"))
    Sc.va[55] += [f"v_or3_b32 v{f}, v{f}, v{f+1}, v{f+2}", f"v_or_b32 v{f}, v{f}, v{f+3}"]
    Sc.va[63].append(f"v_readfirstlane_b32 s3, v{f}")
    Sc.sh[65].append("s_cmp_lg_u32 s3, 0"); Sc.sh[66].append("s_cbranch_scc1 L2_fallback")
    T = Asm(); item_addr(T, 128, 32, 1024)
    T.e(f"s_lshl_b32 s14, s{sW}, 10\nv_add_u32 v{vPA}, s14, v{vX}\nv_and_b32 v{vPB}, 0xf0, v{vX}\ns_lshl_b32 s14, s{sW}, 8\nv_add_u32 v{vPB}, s14, v{vPB}")
    T.e(f"v_and_b32 v{vFa}, 15, v0\nv_lshlrev_b32 v{vFa}, 8, v{vFa}\nv_min_u32 v{vOne}, 1, v0\nv_lshlrev_b32 v{vOne}, 30, v{vOne}")
    T.e(f"s_lshl_b32 s15, s{sTb}, 14\ns_add_u32 s15, s15, {WS_F1}\ns_and_b32 s14, s{sG}, 12\ns_lshl_b32 s14, s14, 10\ns_add_u32 s{sFl}, s15, s14")
    T.e(f"s_lshl4_add_u32 s3, s{sW}, s{sG}\ns_lshl_b32 s3, s3, 8\ns_add_u32 s{sFs}, s3, s15")
    rest = Sc.fill([(0, x) for x in T.L], 80, 300); assert not rest
    return Sc, leftover

def xsum8(A, regs, tmp):
    A.e("s_nop 1")
    for x in regs: A.e(f"v_add_f32_dpp v{x}, v{x}, v{x} row_ror:8 row_mask:0xf bank_mask:0xf")
    xsumG(A, regs, tmp)
def xsumG(A, regs, tmp):
    for op in ("v_permlane16_swap_b32", "v_permlane32_swap_b32"):
        for k, x in enumerate(regs): A.e(f"v_mov_b32 v{tmp+k}, v{x}")
        if len(regs) < 3: A.e(f"s_nop {2 - len(regs)}")
        for k, x in enumerate(regs): A.e(f"{op} v{tmp+k}, v{x}")
        for k, x in enumerate(regs): A.e(f"v_add_f32 v{x}, v{x}, v{tmp+k}")
def merge2(A, m1, m2, t1, t2):
    A.e(f"v_max_u32 v{m2}, v{m2}, v{t2}\nv_med3_u32 v{m2}, v{m1}, v{t1}, v{m2}\nv_max_u32 v{m1}, v{m1}, v{t1}")
def top2_lanes(A, m1, m2, t1, t2, rors, swaps):
    for sh in rors:
        A.e(f"s_nop 1\nv_mov_b32_dpp v{t1}, v{m1} row_ror:{sh} row_mask:0xf bank_mask:0xf\nv_mov_b32_dpp v{t2}, v{m2} row_ror:{sh} row_mask:0xf bank_mask:0xf")
        merge2(A, m1, m2, t1, t2)
    for op in swaps:
        A.e(f"v_mov_b32 v{t1}, v{m1}\nv_mov_b32 v{t2}, v{m2}\ns_nop 0\n{op} v{t1}, v{m1}\n{op} v{t2}, v{m2}")
        merge2(A, m1, m2, t1, t2)
def dot24(A, d, t, x, y):
    for acc, lo, hi in ((d, 0, 16), (t, 16, 24)):
        for i in range(lo, hi):
            if y is None:
                if i == lo: continue
                A.e(f"v_add_f32 v{acc}, v{x+lo if i == lo+1 else acc}, v{x+i}")
            else: A.e(f"{'v_mul_f32' if i == lo else 'v_fmac_f32'} v{acc}, v{x+i}, v{y+i}")
    A.e(f"v_fmac_f32 v{d}, 0x3e800000, v{t}")
def dot24p(A, d, t, x, y):
    for acc, lo, hi in ((t, 0, 16), (t + 2, 16, 24)):
        for i in range(lo, hi, 2):
            if y is None:
                if i > lo: A.e(f"v_pk_add_f32 {v(acc,2)}, {v(x+lo if i == lo+2 else acc,2)}, {v(x+i,2)}")
            elif i == lo: A.e(f"v_pk_mul_f32 {v(acc,2)}, {v(x+i,2)}, {v(y+i,2)}")
            else: A.e(f"v_pk_fma_f32 {v(acc,2)}, {v(x+i,2)}, {v(y+i,2)}, {v(acc,2)}")
    A.e(f"v_add_f32 v{d}, v{t}, v{t+1}\nv_add_f32 v{t+2}, v{t+2}, v{t+3}\nv_fmac_f32 v{d}, 0x3e800000, v{t+2}")
def poll(A, name, loads, test, sleep=1, shrink=0):
    A.e(f"s_mov_b32 s{sCap}, 0x20000")
    A.label(name)
    A.e(loads); A.wait_all(lg=False); A.e(test)
    A.e(f"s_sub_u32 s{sCap}, s{sCap}, 1\ns_cselect_b64 vcc, 0, vcc\ns_cmp_eq_u64 vcc, 0\ns_cbranch_scc1 {name}_ok")
    if shrink: A.e("s_mov_b64 exec, vcc")
    if sleep: A.e(f"s_sleep {sleep}")
    A.e(f"s_branch {name}")
    A.label(name + "_ok")
    if shrink: A.e("s_mov_b64 exec, -1")

def gen_tail(A, B, opt):
    ACC, GA, U, TM, PL = 16, 40, 76, 100, 112
    vMA, vMC, vPC = 3, 4, 7
    TB = RING + 2 * SLOT
    ST = SCR + 256
    aF = 64
    def acc(dst, src, first):
        for q in range(4):
            if first: A.e(f"v_lshlrev_b32 v{dst+2*q}, 16, v{src+q}\nv_and_b32 v{dst+2*q+1}, 0xffff0000, v{src+q}")
            else:
                t = TM + 2 * (q % 2)
                A.e(f"v_lshlrev_b32 v{t}, 16, v{src+q}\nv_and_b32 v{t+1}, 0xffff0000, v{src+q}\nv_pk_add_f32 {v(dst+2*q,2)}, {v(dst+2*q,2)}, {v(t,2)}")
    fl = f"buffer_load_dword v{vFl}, v{vFa}, {s(sWs,4)}, s{sFl} offen sc1"
    A.vmem(fl, ("fl", 0))
    for pre, ld in mv_loads() + wr_loads() + xi_loads(512): A.items(pre + [ld])
    A.wait(vm="st")
    A.vmem(f"buffer_store_dword v{vT}, v{vOne}, {s(sWs,4)}, s{sFs} offen sc1")
    A.e(f"s_movk_i32 s{sRem}, 0x1111\nv_lshrrev_b32 v15, 4, v0\nv_mul_u32_u24 v15, 9216, v15\nv_add_u32 v15, 4096, v15\nv_add_u32 v{vPC}, v{vPB}, v15")
    A.stamp()
    ready = f"v_cmp_ne_u32 vcc, 0, v{vFl}\ns_nop 0\n" + "\n".join(ready_mask(3)) + f"\ns_and_b32 s3, s3, s{sRem}"
    def choose(i):
        A.wait(vm=("fl", i))
        A.e(ready + f"\ns_cbranch_scc0 L2_g{i}s"); A.label(f"L2_g{i}r")
        A.e(f"s_ff1_i32_b32 s3, s3\ns_bitset0_b32 s{sRem}, s3\ns_mul_i32 s{sQ}, s3, 9216")
        B.label(f"L2_g{i}s")
        poll(B, f"L2_g{i}", fl, ready + f"\ns_cselect_b64 vcc, 0, -1", opt.get("sl1", 1))
        B.e(f"s_cmp_eq_u32 s3, 0\ns_cselect_b32 s3, s{sRem}, s3\ns_branch L2_g{i}r")
        if i == 0: A.stamp()
        if i < 3: A.vmem(fl, ("fl", i + 1))
    pend = []
    for i in range(4):
        R0 = PL + 36 * i
        pend.append([lambda i=i: choose(i), ("vm", f"buffer_load_dwordx4 {v(R0,4)}, v{vPC}, {s(sPr,4)}, s{sQ} offen{OPT.get('pl', ' sc1')}", ("c", i))])
        for g in range(4):
            pend.append([f"s_add_u32 s{sQ}, s{sQ}, 9216"] * (g > 0) + [("vm", f"buffer_load_dwordx4 {v(R0+4+8*g+4*h,4)}, v{vPA}, {s(sPa if h else sPr,4)}, s{sQ} offen{OPT.get('pl', ' sc1')}", ("p", i, g, h)) for h in range(2)])
    win = opt.get("win", 99)
    def pace(free=False, step=None):
        if step is not None and opt.get("burst", 0):
            while pend and (20 - len(pend)) // 5 * 5 <= step + opt.get("off", 3): A.items(pend.pop(0))
        elif pend and (step is None or 20 - len(pend) <= step + opt.get("off", 3)):
            if len(A.vm) > win and not free:
                A.e(f"s_waitcnt vmcnt({win})"); del A.vm[:len(A.vm) - win]
            A.items(pend.pop(0))
        for _ in range(2):
            if fww: A.item(fww.pop(0))
    fww = []
    for _ in range(5): pace(True)
    A.wait(vm="xi")
    nv = [NV(r, h) + k for r in range(3) for h in range(2) for k in range(4)]
    A.e(f"v_mov_b32 v14, v{vWC}")
    tree2 = f"v_max_u32 v13, v{nv[0]}, v{nv[1]}\n" + "\n".join(f"v_max3_u32 v13, v13, v{nv[2*k]}, v{nv[2*k+1]}" for k in range(1, 12)) + "\nv_cmp_eq_u32 vcc, -1, v13"
    A.e(tree2 + "\ns_nop 0\ns_cmp_lg_u64 vcc, 0\ns_cbranch_scc1 L2_pns"); A.label("L2_pnr")
    B.label("L2_pns"); poll(B, "L2_pn", "\n".join(pre[0] + "\n" + ld[1] for pre, ld in mv_loads()), tree2); B.e("s_branch L2_pnr")
    for r in range(3):
        for k in (0, 2): A.e(f"v_pk_add_f32 {v(U+4*r+k,2)}, {v(NV(r,0)+k,2)}, {v(NV(r,1)+k,2)}")
        A.lds(f"ds_write_b128 v{vPB if r == 2 else vPA}, {v(U+4*r,4)} offset:{4096*r}", "mv")
    A.wait(lg="mv")
    vF0, vF1 = TM + 5, TM + 6
    A.e(f"s_barrier\ns_add_u32 s14, s{sW9}, {RING}\nv_add_u32 v{vF0}, s14, v{vX}\nv_add_u32 v{vF1}, {2*SLOT}, v{vF0}")
    fww += [("lds", f"ds_write_b128 v{vF0 + ((3 + k//9) % 4)//2}, {a(FW(k),4)} offset:{((3 + k//9) % 2)*SLOT + 1024*(k%9)}", "fww") for k in range(27)]
    A.e(f"v_lshlrev_b32 v{vMA}, 1, v{vWA}\nv_lshlrev_b32 v{vMC}, 1, v14")
    def vec(m, d, tag):
        for i in range(3):
            for h in range(2): A.lds(f"ds_read_b128 {v(d+8*i+4*h,4)}, v{vMC if i == 2 else vMA} offset:{m*2304 + 1024*i + 16*h}", tag)
    vec(2, U, "cb"); vec(1, GA, "sb")
    pace()
    A.wait(lg="sb")
    for q in range(12):
        t = 12 + 2 * (q % 2)
        A.e(f"v_lshlrev_b32 v{t}, 16, v{WR(q)}\nv_and_b32 v{t+1}, 0xffff0000, v{WR(q)}\nv_pk_mul_f32 {v(U+2*q,2)}, {v(U+2*q,2)}, {v(t,2)}\nv_pk_mul_f32 {v(GA+2*q,2)}, {v(GA+2*q,2)}, {v(t,2)}")
        if q == 5: pace()
    pace()
    dot24p(A, TM, 12, U, None); dot24p(A, TM + 1, 12, GA, None)
    vec(0, GA, "ga")
    pace()
    xsum8(A, [TM, TM + 1], TM + 2)
    A.e(f"v_and_b32 v14, 7, v0\nv_lshlrev_b32 v11, 4, v14\nv_add_u32 v11, {ST}, v11\ns_lshl_b32 s3, s{sW}, 2\nv_add_u32 v10, s3, v11")
    A.lds(f"ds_write_b32 v10, v{TM} offset:384", "ut"); A.lds(f"ds_write_b32 v10, v{TM+1} offset:512", "ut")
    vR0, vR1, vR2 = TM + 7, TM + 8, TM + 9
    A.e(f"v_lshl_add_u32 v{vXA}, v14, 4, v{vXA}\nv_lshl_add_u32 v{vXC}, v14, 4, v{vXC}\nv_add_u32 v{vXA}, {TB}, v{vXA}\nv_add_u32 v{vXC}, {TB}, v{vXC}")
    A.e(f"s_and_b32 s14, s{sW}, 1\ns_mul_i32 s14, s14, 9344\ns_add_u32 s14, s14, {TB}\nv_add_u32 v{vR0}, s14, v{vX}\nv_lshrrev_b32 v15, 3, v0\nv_mul_u32_u24 v12, {1152-128}, v15\nv_add_u32 v{vR2}, v12, v{vX}")
    A.e(f"v_lshl_add_u32 v12, v15, 4, v12\nv_add_u32 v{vR1}, v12, v{vR0}")
    A.e(f"s_mul_i32 s3, s{sT8}, 9216\ns_cmp_eq_u32 s{sW}, 3\ns_cselect_b32 s3, 0, s3\ns_cselect_b64 {s(sSt,2)}, {s(sH2,2)}, {s(sOut,2)}")
    A.srd(sSt, sSt, 9216, "s3")
    pace()
    A.wait(lg="ut")
    CB, SB, GB, D = PL, PL + 24, PL + 48, PL + 72
    KV, KA = XR, XR + 4
    for i in range(4):
        R0 = PL + 36 * i
        A.wait(vm=("c", i)); pace(step=5 * i); acc(ACC + 16, R0, i == 0)
        if i == 2:
            assert not fww
            A.e(f"v_lshrrev_b32 v12, 4, v0\nv_bfe_u32 v13, v0, 2, 2\nv_lshl_add_u32 v12, v12, 3, v13\nv_and_b32 v13, 3, v0\nv_lshlrev_b32 v14, 6, v12\nv_lshl_add_u32 v14, v13, 3, v14")
            A.e(f"s_cmp_lt_u32 s{sW}, 2\ns_cselect_b32 s3, {3*SLOT}, 0\ns_and_b32 s14, s{sW}, 1\ns_lshl_b32 s14, s14, 5\ns_add_u32 s3, s3, s14\ns_add_u32 s3, s3, {RING}\nv_add_u32 v{vF0}, s3, v14")
            A.e(f"v_mul_u32_u24 v14, 1152, v12\nv_lshl_add_u32 v14, v13, 3, v14\ns_mul_i32 s3, s{sW}, 288\ns_add_u32 s3, s3, {RING + SLOT}\nv_add_u32 v{vF1}, s3, v14")
            if opt.get("far", 1) == 0: A.wait(lg="fww"); A.e("s_barrier")
            vec(2, CB, "m"); vec(1, SB, "m"); vec(3, GB, "m")
            far = [("lds", f"ds_read_b64_tr_b16 {a(aF+4*kk+2*b,2)}, v{vF0} offset:{2048*kk + 256*b}", "fa") for kk in range(18) for b in range(2)]
            far += [("lds", f"ds_read_b64_tr_b16 {a(aF+72+4*nt+2*b,2)}, v{vF1} offset:{32*nt + 4608*b}", "fa") for nt in range(9) for b in range(2)]
            if opt.get("far", 1) == 0: fww += [(lambda c=far[k:k+7]: A.items(c)) for k in range(0, 54, 7)]
        if i == 3:
            A.e(f"s_lshl_b32 s3, s{sT8}, 3\ns_sub_u32 s3, 0xfff, s3\nv_and_b32 v{vFa}, 7, v0\nv_sub_u32 v{vFa}, s3, v{vFa}\ns_mov_b32 s57, 0xfffff000")
            A.e(f"s_mul_i32 s58, s{sT8}, {KS}\ns_add_u32 s58, s58, {WS_KEY}\ns_xor_b32 s3, s{sW}, 2\nv_or_b32 v{vFl}, s3, v0\nv_min_u32 v{vFl}, 1, v{vFl}\nv_lshlrev_b32 v{vFl}, 30, v{vFl}")
            xsumG(A, list(range(ACC + 16, ACC + 24)), D + 24)
            for q in range(12): A.e(f"v_lshlrev_b32 v{D+2*q}, 16, v{XR+q}\nv_and_b32 v{D+2*q+1}, 0xffff0000, v{XR+q}")
            A.e(f"s_cmp_lt_u32 s2, 180\ns_cselect_b32 s3, 2, 0\ns_cmp_lt_u32 s{sW}, s3\ns_cselect_b32 s3, 0, 0x40000000\nv_mul_u32_u24 v{KA}, {KS}, v0\nv_or_b32 v{KA}, s3, v{KA}")
            A.e(f"s_mul_i32 s15, s{sW}, {128*KS}\ns_add_u32 s15, s15, {WS_KEY}\ns_add_u32 s59, s15, {64*KS}\ns_lshl_b32 s3, s{sW}, 7\ns_sub_u32 s3, s{sT8}, s3\nv_cmp_eq_u32 s[60:61], s3, v0\ns_sub_u32 s3, s3, 64\nv_cmp_eq_u32 s[62:63], s3, v0")
        for g in range(4):
            A.wait(vm=("p", i, g, 0)); pace(step=5 * i + 1 + g); acc(ACC + 8, R0 + 4 + 8 * g, i == 0 and g == 0)
            A.wait(vm=("p", i, g, 1)); acc(ACC, R0 + 8 + 8 * g, i == 0 and g == 0)
    assert not pend and not fww
    A.stamp()
    A.wait(lg="ga")
    for q in range(12): A.e(f"v_pk_fma_f32 {v(ACC+2*q,2)}, {v(ACC+2*q,2)}, {v(GA+2*q,2)}, {v(D+2*q,2)}")
    MU, M2, DD = TM, TM + 1, TM + 2
    dot24p(A, MU, 12, ACC, None); xsum8(A, [MU], TM + 3)
    A.e(f"v_mul_f32 v{MU}, {hex(f2u(1/144))}, v{MU}")
    for i in range(0, 24, 2): A.e(f"v_pk_add_f32 {v(D+i,2)}, {v(ACC+i,2)}, {v(MU,2)} op_sel_hi:[1,0] neg_lo:[0,1] neg_hi:[0,1]")
    dot24p(A, M2, 12, D, D); dot24p(A, DD, 12, D, U); xsum8(A, [M2, DD], TM + 3)
    for k in range(3): A.lds(f"ds_write_b32 v10, v{TM+k} offset:{128*k}", "sw")
    A.wait(lg="sw"); A.e("s_barrier")
    R = GA
    for k in range(5): A.lds(f"ds_read_b128 {v(R+4*k,4)}, v11 offset:{128*k}", ("sr", k))
    A.wait(lg=("sr", 0))
    A.e(f"v_add_f32 v12, v{R}, v{R+1}\nv_add_f32 v13, v{R+2}, v{R+3}\nv_add_f32 v12, v12, v13\nv_mul_f32 v12, 0x3e800000, v12")
    for k in range(4): A.e(f"v_sub_f32 v{R+k}, v{R+k}, v12")
    A.e(f"v_sub_f32 v{MU}, v{MU}, v12\nv_mul_f32 v13, v{R}, v{R}")
    for k in range(1, 4): A.e(f"v_fmac_f32 v13, v{R+k}, v{R+k}")
    A.wait(lg=("sr", 1))
    A.e(f"v_add_f32 v14, v{R+4}, v{R+5}\nv_add_f32 v15, v{R+6}, v{R+7}\nv_add_f32 v14, v14, v15\nv_fmac_f32 v14, {hex(f2u(144.0))}, v13")
    A.e(f"v_mov_b32 v13, {hex(f2u(1e-5))}\nv_fmac_f32 v13, {hex(f2u(1/576))}, v14\nv_rsq_f32 v13, v13")
    A.wait(lg=("sr", 4))
    K1, K2 = R + 4, R + 5
    for k in (0, 2): A.e(f"v_pk_fma_f32 {v(R+8+k,2)}, {v(R+k,2)}, {v(R+12+k,2)}, {v(R+8+k,2)}")
    A.e(f"v_pk_add_f32 {v(R+8,2)}, {v(R+8,2)}, {v(R+10,2)}\nv_pk_add_f32 {v(R+16,2)}, {v(R+16,2)}, {v(R+18,2)}\nv_add_f32 v14, v{R+8}, v{R+9}\nv_add_f32 v15, v{R+16}, v{R+17}\nv_fmac_f32 v15, v14, v13")
    A.e(f"v_ashrrev_i32 v12, 31, v15\nv_or_b32 v12, 0x80000000, v12\nv_xor_b32 v12, v12, v15\nv_and_or_b32 v{K1}, v12, s57, v{vFa}\nv_mov_b32 v{K2}, 0")
    top2_lanes(A, K1, K2, 14, 15, (1, 2, 4), ())
    A.e(f"buffer_store_dwordx2 {v(K1,2)}, v{vFl}, {s(sWs,4)}, s58 offen offset:8 sc1")
    kld = [f"buffer_load_dwordx2 {v(KV+2*h,2)}, v{KA}, {s(sWs,4)}, {'s59' if h else 's15'} offen offset:8 sc1" for h in range(2)]
    if opt.get("kearly", 0): A.e("\n".join(kld))
    A.stamp()
    A.e(f"v_mul_f32 v{MU}, v{MU}, v13")
    for i in range(0, 24, 2): A.e(f"v_pk_fma_f32 {v(D+i,2)}, {v(D+i,2)}, v[12:13], {v(MU,2)} op_sel:[0,1,0] op_sel_hi:[1,1,0]")
    for i in range(0, 24, 2): A.e(f"v_pk_fma_f32 {v(D+i,2)}, {v(D+i,2)}, {v(CB+i,2)}, {v(SB+i,2)}")
    for m, src in ((1, D), (0, ACC)):
        if m == 0:
            for i in range(0, 24, 2): A.e(f"v_pk_fma_f32 {v(ACC+i,2)}, {v(D+i,2)}, {v(GB+i,2)}, {v(ACC+i,2)}")
        for i in range(3):
            d = CB + 12 * m + 4 * i
            for q in range(4): A.e(f"v_cvt_pk_bf16_f32 v{d+q}, v{src+8*i+2*q}, v{src+8*i+2*q+1}")
            if m == 1:
                for q in range(4): A.e(f"v_min_u32 v{d+q}, -2, v{d+q}")
            A.lds(f"ds_write_b128 v{vXC if i == 2 else vXA}, {v(d,4)} offset:{9344*m + (512 if i == 1 else 0)}", "tw")
    A.e(f"v_lshrrev_b32 v7, 4, v0\nv_and_b32 v6, 1, v0\nv_bfe_u32 v5, v0, 2, 2\nv_lshlrev_b32 v5, 6, v5\nv_lshl_add_u32 v5, v7, 4, v5\nv_mov_b32 v14, {SCR + 1792}")
    A.wait(lg="tw"); A.e(f"s_barrier\ns_cmp_lt_u32 s{sW}, 2\ns_cbranch_scc1 L2_keys")
    for r in range(9): A.lds(f"ds_read_b128 {v(SB+4*r,4)}, v{vR1 if r == 8 else vR0} offset:{1024 if r == 8 else 1168*r}", ("tr", r))
    for r in range(9):
        if r in (0, 4): A.e(f"s_movk_i32 s3, {1152*r}")
        A.wait(lg=("tr", r))
        A.e(f"buffer_store_dwordx4 {v(SB+4*r,4)}, v{vR2 if r == 8 else vX}, {s(sSt,4)}, {0 if r == 8 else 's3'} offen offset:{1024 if r == 8 else 1152*(r%4)} sc1")
    if opt.get("far", 1) == 1: A.items(far)
    rdy = f"buffer_store_dword v14, v{vFl}, {s(sWs,4)}, s{sFs} offen offset:128 sc1"
    A.e(f"s_cmp_lt_u32 s2, 144\ns_cbranch_scc1 L2_join\ns_waitcnt vmcnt(0)\n{rdy}\ns_cmp_lt_u32 s2, 180\ns_cbranch_scc1 L2_join\ns_branch L2_fin")
    A.label("L2_keys")
    A.e("s_cmp_ge_u32 s2, 180\ns_cbranch_scc1 L2_fin")
    if not opt.get("kearly", 0): A.e("\n".join(kld))
    if opt.get("far", 1) == 1: A.items(far)
    ktest = "\n".join(f"v_cndmask_b32 v{KV+2*h+k}, v{KV+2*h+k}, v{K1+k}, {s(60+2*h,2)}" for h in range(2) for k in range(2))
    ktest += f"\nv_min_u32 v12, v{KV}, v{KV+1}\nv_min_u32 v13, v{KV+2}, v{KV+3}\nv_cmp_eq_u32 s[4:5], 0, v12\nv_cmp_eq_u32 s[6:7], 0, v13\ns_nop 0\ns_or_b64 vcc, s[4:5], s[6:7]"
    A.e(f"s_waitcnt vmcnt(0)\n{ktest}\ns_cbranch_scc0 L2_p2_ok")
    poll(A, "L2_p2", f"s_or_b64 exec, s[4:5], 1\n{kld[0]}\ns_or_b64 exec, s[6:7], 1\n{kld[1]}\ns_mov_b64 exec, -1", ktest, opt.get("sl2", 1))
    merge2(A, KV, KV + 1, KV + 2, KV + 3)
    top2_lanes(A, KV, KV + 1, 12, 13, (1, 2, 4, 8), ("v_permlane16_swap_b32", "v_permlane32_swap_b32"))
    A.e(f"s_lshl3_add_u32 s3, s{sW}, {SCR + 1792}\nv_mov_b32 v12, s3\nds_write_b64 v12, {v(KV,2)}\ns_waitcnt lgkmcnt(0)")
    A.label("L2_join")
    A.stamp()
    A.vm = []; A.lg = []
    A.e("s_barrier\nds_read_b128 v[16:19], v14\nv_cmp_eq_u32 vcc, 0, v6\ns_waitcnt lgkmcnt(0)")
    merge2(A, 16, 17, 18, 19)
    A.e("v_cndmask_b32 v16, v17, v16, vcc\nv_and_b32 v3, 0x7ff, v16\nv_sub_u32 v3, 2047, v3\nv_mul_u32_u24 v4, 1152, v3")
    A.stamp()
    A.e("s_cmp_ge_u32 s2, 144\ns_cbranch_scc1 L2_red")
    A.e(f"v_add_u32 v5, v5, v4\ns_mov_b32 s59, {WS_H2}")
    H = 128
    A.e("v_and_b32 v12, 8, v0\nv_lshlrev_b32 v12, 4, v12\nv_sub_u32 v3, v5, v12")
    hld = [f"buffer_load_dwordx4 {v(H+4*i,4)}, v{3 if i == 4 else 5}, {s(sWs,4)}, s59 offen offset:{256*i} sc1" for i in range(5)]
    for x in hld: A.vmem(x, "h")
    LX = SCR + 1024
    A.e(f"v_lshlrev_b32 v11, 7, v6\nv_lshl_add_u32 v13, v7, 5, v11\nv_add_u32 v13, {LX}, v13\nv_lshl_add_u32 v11, v7, 4, v11")
    A.e(f"s_lshr_b32 s3, s{sW}, 1\ns_lshl_b32 s3, s3, 8\ns_and_b32 s14, s{sW}, 1\ns_lshl_b32 s14, s14, 6\ns_add_u32 s3, s3, s14\ns_add_u32 s3, s3, {LX}\nv_add_u32 v11, s3, v11")
    A.e(f"s_mul_i32 s14, s{sW}, 1152\ns_mul_i32 s15, s2, 4608\ns_add_u32 s15, s15, s14\ns_add_u32 s15, s15, {WS_YP}\nv_lshlrev_b32 v10, 3, v0")
    A.wait(vm="h"); A.e(rdy)
    htree = [f"v_max_u32 v12, v{H}, v{H+1}"] + [f"v_max3_u32 v12, v12, v{H+2*k}, v{H+2*k+1}" for k in range(1, 10)] + ["v_cmp_eq_u32 vcc, -1, v12"]
    A.label("L2_hr")
    for n_, kk in enumerate((0, 1, 2, 3, 4, 5, 6, 7, 8, 9, 10, 11, 14, 15, 12, 13, 17, 16)):
        d = v(88 + 4 * (kk % 4), 4)
        A.e(f"{MF} {d}, {a(aF+4*kk,4)}, {v(H+4*(kk//4),4)}, {'0' if kk < 4 else d}")
        if n_ < len(htree): A.e(htree[n_])
    A.e("s_cmp_lg_u64 vcc, 0\ns_cbranch_scc1 L2_hs\ns_nop 1")
    B.label("L2_hs")
    poll(B, "L2_h", "\n".join(hld), "\n".join(htree))
    for k in range(20): B.e(f"v_min_u32 v{H+k}, -2, v{H+k}")
    B.e("s_nop 1\ns_branch L2_hr")
    for i in range(4): A.e(f"v_add_f32_dpp v{96+i}, v{100+i}, v{96+i} row_shl:4 row_mask:0xf bank_mask:0xf bound_ctrl:1")
    for i in range(4): A.e(f"v_add_f32_dpp v{88+i}, v{92+i}, v{88+i} row_shl:4 row_mask:0xf bank_mask:0xf bound_ctrl:1")
    for i in range(4): A.e(f"v_add_f32_dpp v{88+i}, v{96+i}, v{88+i} row_shl:8 row_mask:0xf bank_mask:0xf bound_ctrl:1")
    A.e("s_mov_b32 exec_lo, 0x30003\ns_mov_b32 exec_hi, 0x30003")
    A.lds("ds_write_b128 v11, v[88:91]", "x"); A.e("s_mov_b64 exec, -1"); A.wait(lg="x"); A.e("s_barrier")
    for i in range(4): A.lds(f"ds_read_b128 {v(16+4*i,4)}, v13 offset:{(i//2)*256 + (i%2)*16}", ("y", i // 2))
    A.e(f"v_mov_b32 v12, {hex(f2u(-LOG2E))}")
    A.wait(lg=("y", 0))
    for i in range(0, 8, 2): A.e(f"v_pk_mul_f32 {v(32+i,2)}, {v(16+i,2)}, v[12:13] op_sel_hi:[1,0]")
    for i in range(8): A.e(f"v_exp_f32 v{32+i}, v{32+i}")
    for i in range(0, 8, 2): A.e(f"v_pk_add_f32 {v(32+i,2)}, {v(32+i,2)}, 1.0 op_sel_hi:[1,0]")
    for i in range(8): A.e(f"v_rcp_f32 v{32+i}, v{32+i}")
    A.wait(lg=("y", 1))
    for i in range(0, 8, 2): A.e(f"v_pk_mul_f32 {v(16+i,2)}, {v(16+i,2)}, {v(32+i,2)}")
    for i in range(0, 8, 2): A.e(f"v_pk_mul_f32 {v(16+i,2)}, {v(16+i,2)}, {v(24+i,2)}")
    for q in range(4): A.e(f"v_cvt_pk_bf16_f32 v{40+q}, v{16+2*q}, v{17+2*q}")
    A.e("s_nop 1")
    for nt in range(9): A.e(f"{MF} {v(48+4*nt,4)}, v[40:43], {a(aF+72+4*nt,4)}, 0")
    A.e("s_nop 0")
    for half in range(2):
        for G_ in range(4):
            for t in range(2):
                if half == 0 and G_ == 0: continue
                A.e(f"v_mov_b32_dpp v{48+2*half+t}, v{48+4*(4*half+G_)+t} quad_perm:[0,1,2,3] row_mask:{hex(1 << G_)} bank_mask:0xf")
            if G_ < 3 and not (half == 0 and G_ == 0): A.e("s_nop 0")
    for r_ in (48, 49, 50, 51, 80, 81): A.e(f"v_min_u32 v{r_}, -2, v{r_}")
    A.e(f"buffer_store_dwordx4 v[48:51], v{vX}, {s(sWs,4)}, s15 offen sc1\ns_mov_b64 exec, 0xffff\nbuffer_store_dwordx2 v[80:81], v10, {s(sWs,4)}, s15 offen offset:1024 sc1")
    A.e("s_branch L2_fin")
    A.label("L2_red")
    A.vm = []; A.lg = []
    A.e(f"s_mov_b32 s3, {WS_YP}"); A.srd(sYp, sWs, YP_BYTES, "s3")
    A.e("s_sub_u32 s3, s2, 144\ns_mul_i32 s14, s3, 7282\ns_lshr_b32 s14, s14, 16\ns_mul_i32 s15, s14, 9\ns_sub_u32 s15, s3, s15\ns_mul_i32 s14, s14, 144")
    A.e("s_cmp_eq_u32 s15, 8\ns_cselect_b32 s56, 1, 64\ns_cselect_b32 s57, 2, 1\ns_cselect_b32 s15, 16, s15\ns_lshl3_add_u32 s14, s15, s14")
    A.e("v_bfe_u32 v7, v0, 2, 3\nv_mul_u32_u24 v7, s57, v7\nv_bfe_u32 v9, v0, 1, 1\nv_mul_u32_u24 v9, s56, v9\nv_add3_u32 v7, v7, v9, s14\nv_lshl_add_u32 v9, v7, 1, v4\nv_lshlrev_b32 v7, 2, v7")
    A.e(f"v_lshrrev_b32 v12, 7, v3\nv_bfe_u32 v13, v3, 3, 4\nv_lshl_add_u32 v13, v12, 6, v13\nv_lshlrev_b32 v13, 8, v13\ns_mov_b32 s59, {WS_F1 + 2*16*256}")
    poll(A, "L2_r", f"buffer_load_dword v12, v13, {s(sWs,4)}, s59 offen offset:128 sc1", "v_cmp_eq_u32 vcc, 0, v12")
    A.e(f"buffer_load_ushort v18, v9, {s(sOut,4)}, 0 offen sc1\nds_read_b32 v20, v7 offset:{3*2304}")
    A.e(f"v_and_b32 v6, 7, v0\nv_lshrrev_b32 v10, 3, v0\ns_lshl_b32 s14, s{sW}, 3\nv_add_u32 v10, s14, v10\nv_mul_u32_u24 v10, 4608, v10\nv_lshl_add_u32 v10, v6, 4, v10\ns_lshl_b32 s3, s3, 7\nv_add_u32 v24, s3, v10")
    for r in range(1, 5): A.e(f"v_add_u32 v{24+r}, {147456*r}, v24")
    A.e("v_and_b32 v16, 0xfffff800, v16\nv_not_b32 v12, v16\nv_ashrrev_i32 v12, 31, v12\nv_or_b32 v12, 0x80000000, v12\nv_xor_b32 v16, v16, v12")
    A.e(f"v_mul_f32 v16, {hex(f2u(-LOG2E))}, v16\nv_exp_f32 v16, v16\ns_nop 0\nv_add_f32 v16, 1.0, v16\nv_rcp_f32 v16, v16\ns_waitcnt lgkmcnt(0)\nv_mul_f32 v20, v20, v16")
    A.e(f"s_lshl_b32 s14, s{sW}, 7\ns_add_u32 s14, s14, {SCR + 2048}\nv_lshl_add_u32 v10, v6, 4, s14\nv_and_b32 v11, 31, v0\nv_lshlrev_b32 v11, 2, v11")
    if opt.get("pre3", 0):
        A.e("s_mov_b64 exec, 1")
        poll(A, "L2_p3a", f"buffer_load_dword v32, v24, {s(sYp,4)}, 0 offen sc1", "v_cmp_eq_u32 vcc, -1, v32", opt.get("sl3", 1))
        A.e("s_mov_b64 exec, -1")
    tree = "v_max3_u32 v12, v32, v33, v34\n" + "\n".join(f"v_max3_u32 v12, v12, v{35+2*i}, v{36+2*i}" for i in range(8)) + "\nv_max_u32 v12, v12, v51\nv_cmp_eq_u32 vcc, -1, v12"
    poll(A, "L2_p3", "\n".join(f"buffer_load_dwordx4 {v(32+4*r,4)}, v{24+r}, {s(sYp,4)}, 0 offen sc1" for r in range(5)), tree, 0)
    for i in range(0, 4, 2):
        A.e(f"v_pk_add_f32 {v(32+i,2)}, {v(32+i,2)}, {v(36+i,2)}\nv_pk_add_f32 {v(40+i,2)}, {v(40+i,2)}, {v(44+i,2)}\nv_pk_add_f32 {v(32+i,2)}, {v(32+i,2)}, {v(48+i,2)}\nv_pk_add_f32 {v(32+i,2)}, {v(32+i,2)}, {v(40+i,2)}")
    xsum8(A, [32, 33, 34, 35], 12)
    A.e("ds_write_b128 v10, v[32:35]\ns_waitcnt lgkmcnt(0)\ns_barrier")
    A.e(f"s_cmp_lg_u32 s{sW}, 0\ns_cbranch_scc1 L2_fin")
    for k in range(4): A.e(f"ds_read_b32 v{32+k}, v11 offset:{SCR + 2048 + 128*k}")
    A.e("v_lshlrev_b32 v12, 16, v18\ns_mov_b32 exec_hi, 0\ns_waitcnt lgkmcnt(0)")
    A.e("v_pk_add_f32 v[32:33], v[32:33], v[34:35]\nv_add_f32 v32, v32, v33\nv_fmac_f32 v12, v32, v20\nv_cvt_pk_bf16_f32 v12, v12, v12")
    A.e(f"buffer_store_short v12, v9, {s(sOut,4)}, 0 offen{opt.get('finf', ' sc1')}")
    A.label("L2_fin")
    if A.stamping: A.e("s_mov_b64 exec, -1")
    A.stamp()
    if opt.get("enc"):
        ea, eb, clk = opt["enc"]; o = 0 if clk else 1
        A.e("s_cmp_lg_u32 s2, 150\ns_cbranch_scc1 L2_noenc")
        if ea < 0:
            A.e(f"s_load_dwordx2 s[60:61], s[0:1], 112\ns_waitcnt lgkmcnt(0)\ns_mov_b32 s62, 0x10000000\ns_mov_b32 s63, 0x20000\nv_mov_b32 v2, {WS_STAMP + 150*1024 + 4}\nbuffer_load_dword v1, v2, s[60:63], 0 offen\ns_waitcnt vmcnt(0)")
        A.e(f"v_accvgpr_read_b32 v1, a61\ns_nop 0\nv_readlane_b32 s56, v1, {2*eb+o}\nv_readlane_b32 s57, v1, {2*ea+o}\ns_nop 0\ns_sub_u32 s56, s56, s57")
        A.e("s_lshr_b32 s56, s56, 3" if clk else "s_lshl_b32 s56, s56, 2")
        A.e("s_min_u32 s56, s56, 100000\ns_mov_b32 s57, s93")
        A.label("L2_enc")
        A.e("s_memrealtime s[94:95]\ns_waitcnt lgkmcnt(0)\ns_sub_u32 s58, s94, s57\ns_cmp_lt_u32 s58, s56\ns_cbranch_scc1 L2_enc")
        A.label("L2_noenc")
    else: A.stamp_flush(1, WS_STAMP, sW)

OPT = {}
def gen_k2(opt={}):
    OPT.clear(); OPT.update(opt)
    A = Asm(); A.stamp_agpr = 60
    A.label("L2_begin")
    A.e("s_getpc_b64 s[98:99]")
    A.e("s_cmp_ge_u32 s2, 256\ns_cbranch_scc1 L2_end")
    A.stamp()
    for d, off in ((sXi, 0), (sC, 80), (sWm, 88), (12, 112), (sDb, 104)): A.e(f"s_load_dwordx2 {s(d,2)}, s[0:1], {off}")
    vTid = 155
    tch = opt.get("touch", "cq")
    A.e(f"s_and_b32 s3, s2, 7\ns_lshr_b32 s14, s2, 3\nv_mov_b32 v{vTid}, v0\nv_lshrrev_b32 v10, 6, v0\nv_and_b32 v0, 63, v0")
    if "c" in tch:
        A.e(f"s_lshl_b32 s15, s14, 9\nv_lshl_add_u32 v13, v10, 7, s15\nv_lshl_add_u32 v13, v0, 14, v13\nv_min_u32 v13, L2_codeend-L2_begin-8, v13\ns_mov_b64 exec, 31")
        A.vmem(f"global_load_dword a{aDum}, v13, s[98:99]"); A.e("s_mov_b64 exec, -1")
    A.e(f"v_readfirstlane_b32 s{sW}, v10")
    A.e(f"s_and_b32 s{sG}, s3, 3\ns_and_b32 s15, s14, 3\ns_lshl2_add_u32 s{sG}, s{sG}, s15")
    A.e(f"s_lshr_b32 s{sTb}, s3, 2\ns_lshr_b32 s15, s14, 2\ns_lshl3_add_u32 s{sTb}, s{sTb}, s15\ns_lshl4_add_u32 s{sT8}, s{sTb}, s{sG}")
    sP, sSl, sHf = sCnt, sPass, sW9
    A.e(f"s_mul_i32 s{sP}, s3, 27\ns_max_u32 s14, s14, 5\ns_add_u32 s{sP}, s{sP}, s14\ns_sub_u32 s{sP}, s{sP}, 5\ns_lshr_b32 s{sHf}, s3, 2\ns_mul_i32 s15, s{sHf}, 108\ns_sub_u32 s{sSl}, s{sP}, s15")
    item_addr(A, 288, 288, 256)
    vW4, vW1 = 153, 154
    A.e(f"v_and_b32 v4, 0xfc, v{vTid}\nv_and_b32 v7, 3, v0\nv_mul_u32_u24 v3, 6912, v4\nv_lshl_add_u32 v{vW4}, v7, 4, v3")
    A.e(f"s_mul_i32 s3, s{sT8}, 9216\ns_movk_i32 s{sXi+2}, 9216\ns_mov_b32 s{sXi+3}, 0x20000\ns_mov_b32 s{sWm+3}, s{sXi+3}")
    A.e(f"v_lshlrev_b32 v{vX}, 4, v0\ns_mov_b32 s{sWs+2}, {WS_SIZE}\ns_mov_b32 s{sWs+3}, s{sXi+3}\ns_movk_i32 s{sDb+2}, 256\ns_mov_b32 s{sDb+3}, s{sXi+3}")
    A.e(f"s_lshl_b32 s14, s{sSl}, 6\ns_sub_u32 s{sWm+2}, {288*6912}, s14\ns_cmp_ge_u32 s2, 40\ns_cselect_b32 s{sWm+2}, s{sWm+2}, 0\ns_mul_i32 s15, s{sHf}, {288*6912}\ns_add_u32 s14, s14, s15")
    A.e("s_waitcnt lgkmcnt(0)")
    A.fstamp()
    A.e(f"s_add_u32 s{sXi}, s{sXi}, s3\ns_addc_u32 s{sXi+1}, s{sXi+1}, 0")
    for pre, ld in xi_loads(128): A.item(ld)
    A.e(f"s_add_u32 s{sWm}, s{sWm}, s14\ns_addc_u32 s{sWm+1}, s{sWm+1}, 0")
    ncl = opt.get("ncl", 8); nst = 16 // ncl
    A.e(f"s_mov_b64 {s(sWs,2)}, s[12:13]\ns_cmp_ge_u32 s2, {ncl}\ns_cbranch_scc1 L2_noclr")
    assert ncl == 8
    for i in range(4): A.e(f"v_mov_b32 v{52+i}, -1\nv_mov_b32 v{56+i}, 0")
    A.e(f"s_lshl2_add_u32 s15, s2, s{sW}\ns_lshl_b32 s3, s15, 10\nbuffer_store_dwordx4 v[52:55], v{vX}, {s(sWs,4)}, s3 offen sc1")
    A.e(f"v_lshrrev_b32 v13, 3, v0\nv_mul_u32_u24 v13, {KS - 128}, v13\nv_add_u32 v13, v13, v{vX}\ns_mul_i32 s3, s15, {8*KS}\ns_add_u32 s3, s3, {WS_KEY}\nbuffer_store_dwordx4 v[56:59], v13, {s(sWs,4)}, s3 offen sc1")
    A.label("L2_noclr")
    nclr = len(A.vm)
    WM, CC = 128, 148
    nw0 = opt.get("nw0", 4)
    def wload(i):
        if 0 < i < 4: A.e(f"s_movk_i32 s3, {6912*i}")
        A.vmem(f"buffer_load_dwordx4 {v(WM+4*i,4)}, v{vW4 if i < 4 else vW1}, {s(sWm,4)}, {'s3' if 0 < i < 4 else 0} offen", ("w", i))
    for i in range(min(nw0, 4)): wload(i)
    A.fstamp()
    A.e(f"v_lshrrev_b32 v3, 2, v3\nv_lshl_add_u32 v3, v7, 4, v3\nv_add_u32 v{vW1}, {256*6912}, v3\nv_lshrrev_b32 v3, 1, v4\nv_lshlrev_b32 v4, 1, v4")
    A.e(f"s_mul_i32 s3, s{sHf}, 576"); A.srd(sC, sC, 576, "s3")
    A.vmem(f"buffer_load_dwordx2 {v(CC,2)}, v4, {s(sC,4)}, 0 offen", "c")
    for i in range(4): A.e(f"v_mov_b32 v{WM+16+i}, 0")
    A.e(f"v_mov_b32 v{CC+2}, 0\ns_cmp_ge_u32 s{sW}, 2\ns_cbranch_scc1 L2_w23")
    A.e(f"buffer_load_dwordx4 {v(WM+16,4)}, v{vW1}, {s(sWm,4)}, 0 offen\nbuffer_load_ushort v{CC+2}, v3, {s(sC,4)}, 0 offen offset:512")
    A.label("L2_w23")
    A.e("s_load_dwordx8 s[4:11], s[0:1], 8")
    for d, off in ((sWg, 56), (sWu, 64), (sWd, 72), (sOut, 96), (sWr, 48)): A.e(f"s_load_dwordx2 {s(d,2)}, s[0:1], {off}")
    B = Asm()
    A.fstamp()
    F = 156
    vL7, vSt, vSw, vXs, vYc, vMw, vL4, vXf, vMs = F, F + 1, F + 2, F + 3, F + 4, F + 5, F + 6, F + 7, F + 8
    SA, SD, SV = F + 10, F + 11, F + 12
    A.e(f"s_cmp_eq_u32 s{sW}, 0\ns_cselect_b32 s3, 0, 0x40000000\nv_mul_u32_u24 v{vL7}, {256//ncl}, v0\nv_or_b32 v{vL7}, s3, v{vL7}\ns_mul_i32 s{sW4}, s{sW}, {4*PIECE}\ns_add_u32 s{sW4}, s{sW4}, {RING}\nv_lshl_add_u32 v{vKV}, v10, 12, v{vX}")
    A.e(f"v_lshrrev_b32 v13, 5, v0\nv_lshl_add_u32 v13, v10, 1, v13\nv_lshlrev_b32 v13, 15, v13\nv_and_b32 v14, 31, v0\nv_lshl_add_u32 v{vWq}, v14, 4, v13")
    for i in range(4): A.e(f"v_mov_b32 v{56+i}, 0\nv_mov_b32 v{60+i}, -1")
    A.e(f"s_and_b32 s14, s{sTb}, 7\ns_lshl2_add_u32 s14, s14, s{sW}\nv_lshrrev_b32 v13, 2, v0\nv_lshl_add_u32 v13, v13, 5, s14\nv_lshlrev_b32 v13, 13, v13\nv_lshl_add_u32 v13, v7, 7, v13")
    A.e("s_waitcnt lgkmcnt(0)")
    A.e(f"s_lshl_b32 s3, s{sG}, 9"); A.srd(sWq, 8, 0, "s3"); A.e(f"s_sub_u32 s{sWq+2}, {576*8192}, s3")
    if True:
        nq = opt.get("nq", 16)
        A.e(f"s_mov_b64 exec, {hex((1 << nq) - 1)}" if nq <= 31 else f"s_mov_b32 exec_hi, {hex((1 << (nq - 32)) - 1)}")
        A.vmem(f"buffer_load_dword a{aDum}, v13, {s(sWq,4)}, 0 offen", "tq"); A.e("s_mov_b64 exec, -1")
    A.e(f"s_mov_b32 s{sWr+2}, 1152\ns_mov_b32 s{sWr+3}, 0x20000")
    A.stamp()
    ST = SCR + 256; MP = RING
    sF1, sYc, sXs, sXf, sMl, sKy, sMul, sAdd = 56, 57, 58, 59, 100, 101, sBase, sDel
    A.e(f"v_and_b32 v14, 7, v0\nv_lshlrev_b32 v{vSt}, 4, v14\nv_add_u32 v{vSt}, {ST}, v{vSt}\nv_lshl_add_u32 v{vSw}, v10, 2, v{vSt}")
    A.e(f"s_mul_i32 s3, s{sW}, {18*256}\nv_lshl_add_u32 v14, v14, 4, s3\nv_lshrrev_b32 v15, 3, v0\nv_lshl_add_u32 v{vXs}, v15, 8, v14")
    A.e(f"s_lshr_b32 s3, s{sT8}, 1\ns_mul_i32 s3, s3, 18432\ns_and_b32 s14, s{sT8}, 1\ns_lshl_b32 s14, s14, 7\ns_add_u32 s3, s3, s14\ns_add_u32 s{sXs}, s3, {WS_XN}")
    A.e(f"s_lshl_b32 s3, s{sTb}, 2\ns_add_u32 s3, s3, s{sW}\ns_lshl_b32 s14, s3, 4\ns_add_u32 s14, s14, s{sG}\ns_lshl_b32 s14, s14, 8\ns_add_u32 s{sF1}, s14, {WS_F1}")
    A.e(f"s_mul_i32 s14, s3, {4*KS}\ns_add_u32 s{sXf}, s14, {WS_KEY}\nv_and_b32 v14, 3, v0\nv_mul_u32_u24 v{vXf}, {KS}, v14")
    A.e(f"s_mul_i32 s14, s3, 36864\ns_add_u32 s14, s14, {WS_XN}"); A.srd(sXn, 12, 36864, "s14")
    A.e(f"s_mul_i32 s15, s2, 4608\ns_mul_i32 s14, s{sW}, 1152\ns_add_u32 s15, s15, s14\ns_add_u32 s{sYc}, s15, {WS_YP}")
    A.e(f"s_cmp_ge_u32 s2, 144\ns_cselect_b32 s14, 0x40000000, 0\nv_or_b32 v{vYc}, s14, v{vX}")
    A.e(f"v_lshrrev_b32 v12, 4, v{vTid}\nv_lshlrev_b32 v12, 7, v12\nv_lshl_add_u32 v{vMw}, v7, 5, v12\nv_lshlrev_b32 v{vL4}, 2, v0")
    A.e(f"s_mul_i32 s3, s{sSl}, 3641\ns_lshr_b32 s3, s3, 16\ns_mov_b32 s{sMul}, 1.0\ns_mov_b32 s{sAdd}, 0\ns_cmp_lt_u32 s3, 2\ns_cselect_b32 s{sMul}, {hex(f2u(C0))}, s{sMul}")
    A.e(f"s_cmp_eq_u32 s3, 1\ns_cselect_b32 s{sAdd}, {hex(f2u(C0))}, s{sAdd}\ns_cmp_eq_u32 s3, 4\ns_cselect_b32 s{sAdd}, 1.0, s{sAdd}\ns_cmp_eq_u32 s{sHf}, 0\ns_cselect_b32 s{sAdd}, s{sAdd}, 0")
    A.e(f"s_lshl_b32 s{sMl}, s{sP}, 7\ns_mul_i32 s14, s{sT8}, {KS}\ns_add_u32 s{sKy}, s14, {WS_KEY}")
    A.e(f"s_mul_i32 s3, s{sW}, 1152\nv_add_u32 v{SA}, s3, v{vX}")
    A.e(f"s_and_b32 s3, s{sW}, 1\ns_mul_i32 s3, s3, {36*64}\ns_cmp_lt_u32 s{sW}, 2\ns_cselect_b32 s14, 32, 0\ns_add_u32 s3, s3, s14\ns_add_u32 s3, s3, {ASB}")
    A.e(f"v_lshrrev_b32 v14, 1, v0\nv_lshl_add_u32 v14, v14, 6, s3\nv_and_b32 v15, 1, v0\nv_lshl_add_u32 v{SD}, v15, 4, v14")
    A.e(f"s_cmp_eq_u32 s{sW}, 1\ns_cselect_b32 s3, 40, 256\ns_cmp_ge_u32 s2, s3\ns_cselect_b32 s3, 0, 0x40000000\nv_or_b32 v{vMs}, s3, v{vL4}")
    for i in range(4): A.e(f"v_mov_b32 v{SV+4+i}, 0\nv_mov_b32 v{SV+12+i}, 0")
    A.e(f"s_lshl_b32 s3, s{sTb}, 2\ns_add_u32 s3, s3, s{sW}\nv_mov_b32 v12, v10")
    A.e(f"s_mul_i32 s14, s3, {4*147456}\ns_mul_i32 s15, s{sG}, 9216\ns_add_u32 s14, s14, s15\ns_add_u32 s14, s14, {WS_PART}"); A.srd(sPt, 12, 0, "s14"); A.e(f"s_sub_u32 s{sPt+2}, {4*147456}, s15")
    if opt.get("x_nostore"): A.e(f"s_mov_b32 s{sPt+2}, 0")
    A.e(f"s_lshl_b32 s3, s{sG}, 19"); A.srd(sK, 4, 524288, "s3"); A.srd(sV, 6, 524288, "s3")
    A.e(f"s_mul_i32 s3, s{sG}, 294912"); A.srd(sWo, 10, 294912, "s3")
    A.e(f"s_mov_b64 s[4:5], {s(sWg,2)}\ns_mov_b64 s[6:7], {s(sWu,2)}\ns_mov_b64 s[8:9], {s(sWd,2)}")
    A.e(f"s_mov_b32 s{sPass}, 0\ns_mul_i32 s{sW9}, s{sW}, 9216")
    A.e("s_min_u32 s15, s2, 143\ns_and_b32 s3, s15, 7\ns_mul_i32 s3, s3, 18\ns_lshr_b32 s15, s15, 3\ns_add_u32 s15, s15, s3\ns_lshl_b32 s3, s15, 6")
    A.srd(sWg, sWg, 0, "s3"); A.srd(sWu, sWu, 0, "s3")
    A.e(f"s_sub_u32 s14, {576*9216}, s3\ns_mul_i32 s3, s15, 36864"); A.srd(sWd, sWd, 0, "s3")
    A.e(f"s_cmp_lt_u32 s2, 144\ns_cselect_b32 s{sWg+2}, s14, 0\ns_cselect_b32 s{sWu+2}, s14, 0\ns_cselect_b32 s{sWd+2}, 36864, 0")
    A.e(f"s_mov_b32 s{sOut+2}, 2359296\ns_mov_b32 s{sOut+3}, 0x20000")

    A.e(f"v_lshrrev_b32 v13, 4, v0\nv_lshlrev_b32 v{vAS}, 6, v13")
    A.e(f"v_lshrrev_b32 v14, 2, v0\nv_mul_u32_u24 v14, {PIECE}, v14\nv_add_u32 v14, {RING}, v14")
    A.e(f"v_and_b32 v15, 1, v0\nv_lshlrev_b32 v15, 4, v15\nv_add_u32 v{vT}, v14, v15\nv_and_b32 v15, 2, v0\nv_lshl_add_u32 v{vT}, v15, 2, v{vT}\nv_add_u32 v{vT2}, {2*SLOT}, v{vT}")
    A.e(f"v_lshrrev_b32 v14, 3, v0\nv_lshlrev_b32 v14, 2, v14\nv_add_u32 v14, v14, v12\nv_mul_u32_u24 v14, {4*1152}, v14\nv_and_b32 v15, 7, v0\nv_lshl_add_u32 v{vWo}, v15, 4, v14")
    A.e(f"v_lshlrev_b32 v{vPt}, 4, v15\nv_lshl_add_u32 v{vPt}, v13, 7, v{vPt}\nv_bfe_u32 v14, v0, 3, 1\nv_mul_u32_u24 v14, 147456, v14\nv_add_u32 v{vPt}, v{vPt}, v14")
    def init_kv_addr():
        A.e(f"v_lshrrev_b32 v14, 2, v0\nv_mul_u32_u24 v14, {PIECE}, v14\nv_and_b32 v15, 3, v0\nv_lshl_add_u32 v14, v15, 3, v14\nv_add_u32 v{vV}, {RING + 2*SLOT + HALF}, v14")
        A.e(f"v_and_b32 v14, 15, v0\nv_mul_u32_u24 v14, {PIECE}, v14\nv_lshrrev_b32 v15, 4, v0\nv_lshl_add_u32 v14, v15, 4, v14\nv_add_u32 v{vK}, {RING + 2*SLOT}, v14")
    init_kv_addr()
    A.e(f"v_and_b32 v14, 1, v0\nv_cmp_eq_u32 vcc, 0, v14\nv_mov_b32 v{vIdx}, 0xeeeeeeee\nv_mov_b32 v15, 0x44444444\nv_cndmask_b32 v{vIdx}, v{vIdx}, v15, vcc")
    A.e(f"v_and_b32 v14, 2, v0\nv_cmp_eq_u32 vcc, 0, v14\nv_mov_b32 v15, 0x3f803f80\ns_nop 0\nv_cndmask_b32 v15, 0, v15, vcc")
    for i in range(4): A.e(f"v_accvgpr_write_b32 a{aOne+i}, v15\nv_accvgpr_write_b32 a{56+i}, -1")
    A.e(f"s_cmp_ge_u32 s2, {ncl}\ns_cbranch_scc1 L2_noclr2")
    A.e(f"s_mul_i32 s14, s2, {256//ncl}\ns_mov_b64 exec, 1\ns_waitcnt vmcnt({len(A.vm) - nclr})\ns_barrier\nbuffer_store_dword v60, v{vL7}, {s(sDb,4)}, s14 offen sc1\ns_mov_b64 exec, -1")
    A.label("L2_noclr2")
    A.stamp()
    XF, MA, TF = 24, 16, 48
    A.wait(vm="xi"); A.fstamp()
    for i in range(nw0, 4): wload(i)
    for q in range(12): A.e(f"v_lshlrev_b32 v{XF+2*q}, 16, v{XR+q}\nv_and_b32 v{XF+2*q+1}, 0xffff0000, v{XR+q}")
    dot24p(A, TF, 12, XF, None); xsum8(A, [TF], TF + 2)
    A.e(f"v_mul_f32 v{TF}, {hex(f2u(1/144))}, v{TF}")
    for i in range(0, 24, 2): A.e(f"v_pk_add_f32 {v(XF+i,2)}, {v(XF+i,2)}, {v(TF,2)} op_sel_hi:[1,0] neg_lo:[0,1] neg_hi:[0,1]")
    dot24p(A, TF + 1, 12, XF, XF); xsum8(A, [TF + 1], TF + 2)
    A.lds(f"ds_write_b32 v{vSw}, v{TF}", "f"); A.lds(f"ds_write_b32 v{vSw}, v{TF+1} offset:128", "f")
    A.wait(lg="f"); A.e("s_barrier")
    A.lds(f"ds_read_b128 {v(MA,4)}, v{vSt}", "g0"); A.lds(f"ds_read_b128 {v(MA+4,4)}, v{vSt} offset:128", "g1")
    A.e(f"s_add_u32 s14, s{sXs}, 4096")
    A.wait(lg="g0")
    A.e(f"v_add_f32 v12, v{MA}, v{MA+1}\nv_add_f32 v13, v{MA+2}, v{MA+3}\nv_add_f32 v12, v12, v13\nv_mul_f32 v12, 0x3e800000, v12")
    for k in range(4): A.e(f"v_sub_f32 v{MA+k}, v{MA+k}, v12")
    A.e(f"v_sub_f32 v{TF}, v{TF}, v12\nv_mul_f32 v13, v{MA}, v{MA}")
    for k in range(1, 4): A.e(f"v_fmac_f32 v13, v{MA+k}, v{MA+k}")
    A.wait(lg="g1")
    A.e(f"v_add_f32 v14, v{MA+4}, v{MA+5}\nv_add_f32 v15, v{MA+6}, v{MA+7}\nv_add_f32 v14, v14, v15\nv_fmac_f32 v14, {hex(f2u(144.0))}, v13")
    A.e(f"v_mov_b32 v12, {hex(f2u(1e-5))}\nv_fmac_f32 v12, {hex(f2u(1/576))}, v14\nv_rsq_f32 v12, v12\ns_nop 0\nv_mul_f32 v{TF}, v{TF}, v12")
    for i in range(3):
        for q in range(0, 8, 2): A.e(f"v_pk_fma_f32 {v(XF+8*i+q,2)}, {v(XF+8*i+q,2)}, v[12:13], {v(TF,2)} op_sel_hi:[1,0,0]")
        for q in range(4): A.e(f"v_cvt_pk_f16_f32 v{XR+4*i+q}, v{XF+8*i+2*q}, v{XF+8*i+2*q+1}")
        if i == 2: A.e("s_mov_b64 exec, 0xffff")
        A.vmem(f"buffer_store_dwordx4 {v(XR+4*i,4)}, v{vXs}, {s(sWs,4)}, {'s14' if i == 2 else s(sXs)} offen offset:{2048*(i%2)} sc1")
    A.fstamp()
    A.vmem(f"buffer_store_dwordx4 v[56:59], v{vX}, {s(sWs,4)}, s{sF1} offen sc1")
    A.e("s_mov_b64 exec, 0xff")
    A.vmem(f"buffer_store_dwordx4 v[60:63], v{vYc}, {s(sWs,4)}, s{sYc} offen offset:1024 sc1"); A.e("s_mov_b64 exec, -1")
    A.vmem(f"buffer_store_dwordx4 v[60:63], v{vYc}, {s(sWs,4)}, s{sYc} offen sc1"); A.e(f"s_mov_b64 exec, {(1 << ncl) - 1}")
    p0 = f"buffer_load_dword v{TF+3}, v{vL7}, {s(sDb,4)}, 0 offen sc1"
    A.vmem(p0, "p0"); A.e("s_mov_b64 exec, -1")
    A.stamp()
    A.e(f"s_mul_i32 s3, s{sT8}, 147456\ns_add_u32 s3, s3, {WS_PART + 4096}"); A.srd(sPr, 12, 147456 - 4096, "s3")
    A.wait(vm="tq")
    CF = 40
    A.e(f"v_lshlrev_b32 v{CF}, 16, v{CC}\nv_and_b32 v{CF+1}, 0xffff0000, v{CC}\nv_lshlrev_b32 v{CF+2}, 16, v{CC+1}\nv_and_b32 v{CF+3}, 0xffff0000, v{CC+1}\nv_lshlrev_b32 v{CF+4}, 16, v{CC+2}")
    for i in range(5): A.e(f"v_mul_f32 v{MA+i}, {hex(f2u(-LOG2E))}, v{CF+i}")
    for i in range(5): A.e(f"v_exp_f32 v{MA+i}, v{MA+i}")
    for i in range(5): A.e(f"v_add_f32 v{MA+i}, 1.0, v{MA+i}")
    for i in range(5): A.e(f"v_rcp_f32 v{MA+i}, v{MA+i}")
    for i in range(5): A.e(f"v_mul_f32 v{XF+2*i}, v{CF+i}, v{MA+i}")
    for i in range(5):
        A.wait(vm=("w", i))
        for q in range(4):
            t = 12 + 2 * (q % 2)
            A.e(f"v_lshlrev_b32 v{t}, 16, v{WM+4*i+q}\nv_and_b32 v{t+1}, 0xffff0000, v{WM+4*i+q}")
            if i == 0: A.e(f"v_pk_mul_f32 {v(MA+2*q,2)}, {v(t,2)}, {v(XF,2)} op_sel_hi:[1,0]")
            else: A.e(f"v_pk_fma_f32 {v(MA+2*q,2)}, {v(t,2)}, {v(XF+2*i,2)}, {v(MA+2*q,2)} op_sel_hi:[1,0,1]")
    for sh in (4, 8):
        for q in range(8): A.e(f"v_add_f32_dpp v{MA+q}, v{MA+q}, v{MA+q} row_ror:{sh} row_mask:0xf bank_mask:0xf")
    A.e("s_mov_b32 exec_lo, 0xf000f\ns_mov_b32 exec_hi, 0xf000f")
    A.lds(f"ds_write_b128 v{vMw}, {v(MA,4)} offset:{MP}", "f"); A.lds(f"ds_write_b128 v{vMw}, {v(MA+4,4)} offset:{MP+16}", "f")
    A.e(f"s_mov_b64 exec, {(1 << ncl) - 1}")
    A.fstamp(); A.wait(vm="p0"); A.fstamp()
    A.e(f"v_cmp_eq_u32 vcc, s{sW}, v{TF+3}\ns_nop 0\ns_cmp_lg_u64 vcc, 0\ns_cbranch_scc1 L2_p0s"); A.label("L2_p0r")
    B.label("L2_p0s"); poll(B, "L2_p0", p0, f"v_cmp_eq_u32 vcc, 0, v{TF+3}"); B.e("s_branch L2_p0r")
    A.e("s_mov_b64 exec, 1"); A.wait(lg="f"); A.e("s_barrier")
    A.vmem(f"buffer_store_dword v60, v{vL7}, {s(sWs,4)}, s{sKy} offen sc1"); A.e("s_mov_b64 exec, -1")
    for i in range(8): A.lds(f"ds_read_b32 v{XF+i}, v{vL4} offset:{MP + 256*i}", "g2")
    A.wait(lg="g2")
    A.e(f"v_pk_add_f32 {v(XF,2)}, {v(XF,2)}, {v(XF+2,2)}\nv_pk_add_f32 {v(XF+4,2)}, {v(XF+4,2)}, {v(XF+6,2)}\nv_pk_add_f32 {v(XF,2)}, {v(XF,2)}, {v(XF+4,2)}\nv_add_f32 v52, v{XF}, v{XF+1}")
    A.e(f"v_mov_b32 v53, v52\nv_mov_b32 v54, s{sAdd}\ns_nop 0\nv_permlane32_swap_b32 v53, v52\nv_add_f32 v52, v52, v53")
    A.e(f"v_fma_f32 v52, v52, s{sMul}, v54\nv_min_u32 v52, -2, v52\ns_mov_b32 exec_hi, 0")
    A.vmem(f"buffer_store_dword v52, v{vMs}, {s(sWs,4)}, s{sMl} offen sc1"); A.e("s_mov_b64 exec, -1")
    A.fstamp()
    for c in range(opt.get("nl0", 2)): emit_dma(A, dmaL(c))
    A.stamp()
    if opt.get("walk", 1):
        A.e(f"s_mov_b64 exec, 0\ns_cmp_eq_u32 s{sW}, 0\ns_cbranch_scc1 L2_pad0\ns_cmp_eq_u32 s{sW}, 1\ns_cbranch_scc1 L2_pad1\ns_cmp_eq_u32 s{sW}, 2\ns_cbranch_scc1 L2_pad2\ns_branch L2_pad3")
        A.e(".p2align 12"); A.label("L2_walkret")
    A.e("s_mov_b64 exec, 15")
    poll(A, "L2_px", f"buffer_load_dword v13, v{vXf}, {s(sWs,4)}, s{sXf} offen sc1", "v_cmp_eq_u32 vcc, 0, v13")
    A.e("s_mov_b64 exec, -1")
    A.stamp()
    A.e("s_movk_i32 s14, 13824")
    sweep = [f"buffer_load_dwordx4 {v(SV+8*h,4)}, v{SA}, {s(sWs,4)}, {'s14' if h else 0} offen sc1" for h in range(2)]
    sweep += [("s_mov_b64 exec, 0xff\n" if h == 0 else "") + f"buffer_load_dwordx4 {v(SV+8*h+4,4)}, v{SA}, {s(sWs,4)}, {'s14' if h else 0} offen offset:1024 sc1" + ("\ns_mov_b64 exec, -1" if h else "") for h in range(2)]
    tree = f"v_max_u32 v13, v{SV}, v{SV+1}\n" + "\n".join(f"v_max3_u32 v13, v13, v{SV+2*k}, v{SV+2*k+1}" for k in range(1, 8)) + "\nv_cmp_eq_u32 vcc, -1, v13"
    for x in sweep: A.vmem(x, "sw")
    for c in range(2):
        for pre, ld in xload(c): A.items(pre + [ld])
    A.fstamp(); A.wait(vm="sw"); A.fstamp()
    A.e(tree + "\ns_nop 0\ns_cmp_lg_u64 vcc, 0\ns_cbranch_scc1 L2_pms"); A.label("L2_pmr")
    B.label("L2_pms"); poll(B, "L2_pm", "\n".join(sweep), tree); B.e("s_branch L2_pmr")
    A.fstamp()
    for k in range(0, 8, 2): A.e(f"v_pk_add_f32 {v(SV+k,2)}, {v(SV+k,2)}, {v(SV+8+k,2)}")
    A.lds(f"ds_write_b128 v{SD}, {v(SV,4)}", "mw"); A.e("s_mov_b64 exec, 0xff"); A.lds(f"ds_write_b128 v{SD}, {v(SV+4,4)} offset:2048", "mw"); A.e("s_mov_b64 exec, -1")
    if opt.get("nl0", 2) < 2: emit_dma(A, dmaL(1))
    for pre, ld in xload(2): A.items(pre + [ld])
    A.wait(lg="mw"); A.e("s_barrier")
    A.items(as_reads(0, 0) + as_reads(0, 1))
    A.wait(vm=("X", 0))
    for q in range(4):
        A.wait(lg=("AS", 0, q)); A.items(modulate(0, q))
        if q < 3: A.items(as_reads(0, q + 2) if q < 2 else as_reads(1, 0))
        if q == 2:
            for G in range(QD): A.items(qreads(G))
    A.stamp()
    A.wait(lg=("A", 0))
    Sc, leftover, vmg = gen_qproj(A)
    N = len(Sc.mf)
    kv0 = kreads(0, ("K", 0)) + vreads(0, 0, ("V", 0))
    for g in range(N - 4 * QD, N):
        if g not in vmg: Sc.mem[g].append(kv0.pop(0))
    conv = []
    for t2 in range(8):
        for n in range(2):
            cv, sw = qconvert(2 * (t2 // 4) + n, t2 % 4)
            conv.append((512 + 8 * t2 + 7 + 5, cv, sw))
    pend = []
    for ready, cv, sw in conv: pend += [(ready, x) for x in cv]
    for g in range(512, N):
        if g not in vmg and len(Sc.mem[g]) < 2 and pend and pend[0][0] <= g: Sc.va[g].append(pend.pop(0)[1])
    for c in range(9):
        Sc.emit(A, 64 * c, 64 * c + 64)
        if A.stamping == 4 or c in (3, 8): A.stamp()
    A.e(f"s_mul_i32 s3, s{sT8}, 9216\ns_add_u32 s3, s3, {WS_H2}"); A.srd(sH2, sWs, 9216, "s3")
    A.e("v_lshlrev_b32 v14, 7, v0")
    emit_dma(A, leftover)
    A.vmem(f"buffer_load_dword a{aDum}, v14, {s(sWr,4)}, 0 offen")
    A.items(kv0)
    A.items([x for _, x in pend]); A.e("s_nop 0")
    for _, cv, sw in conv: A.items(sw)
    A.wait(lg=(("K", 0), 0))
    for j in range(4):
        for t in range(4):
            d = S0 + 4 * j
            A.e(f"{MF} {v(d,4)}, {a(KF(0,t),4)}, {v(Q(j,t),4)}, {'0' if t == 0 else v(d,4)}")
    A.e("s_nop 1")
    for j in range(4):
        d = S0 + 4 * j
        A.e(f"v_max3_f32 v{d}, v{d}, v{d+1}, v{d+2}\nv_max_f32 v{d}, v{d}, v{d+3}")
    xmax_to_negm(A, [S0 + 4 * j for j in range(4)], BIAS)
    NIT = opt.get("nit", 12)
    A.label("L2_entry")
    for i in range(16): A.e(f"v_accvgpr_write_b32 a{aL+i}, 0")
    for i in range(32): A.e(f"v_mov_b32 v{O(3,0)+i}, 0")
    A.e(f"s_mov_b32 s{sBase}, s{sW4}\ns_mov_b32 s{sDel}, {-2*SLOT}\ns_mov_b32 s{sCnt}, {NIT}\ns_mov_b32 s{sT}, {3*16384}")
    A.e(f"v_lshrrev_b32 v14, 2, v0\ns_mul_i32 s3, s{sW}, 144\nv_add_u32 v14, s3, v14\nv_mul_u32_u24 v14, 9216, v14\nv_and_b32 v15, 3, v0\nv_lshl_add_u32 v{vFg}, v15, 4, v14")
    A.e(f"s_lshr_b32 s3, s2, 3\ns_lshl_b32 s3, s3, 2\ns_add_u32 s3, s3, s{sW}\ns_and_b32 s15, s2, 7")
    A.e(f"s_lshl_b32 s14, s3, 7\nv_lshl_add_u32 v{vAS}, v0, 14, s14\nv_min_u32 v{vAS}, L2_codeend-L2_begin-8, v{vAS}")
    A.e(f"s_mul_i32 s14, s3, 9\ns_lshr_b32 s14, s14, 1\nv_min_u32 v15, 44, v0\nv_mul_u32_u24 v12, 7282, v15\nv_lshrrev_b32 v12, 16, v12\nv_mul_u32_u24 v13, 63, v12\nv_add_u32 v12, v15, v13")
    A.e(f"s_mul_i32 s14, s14, 72\ns_mul_i32 s56, s15, 9\ns_add_u32 s14, s14, s56\nv_add_u32 v12, s14, v12\nv_lshlrev_b32 v12, 7, v12")
    A.e(f"s_mul_i32 s14, s3, 81\ns_lshr_b32 s14, s14, 1\ns_mul_i32 s56, s15, 5184\ns_add_u32 s14, s14, s56\nv_min_u32 v13, 40, v0\nv_add_u32 v13, s14, v13\nv_lshlrev_b32 v13, 7, v13")
    A.e(f"s_mul_i32 s14, s3, 72\ns_andn2_b32 s56, s{sG}, 3\ns_mul_i32 s56, s56, 2304\ns_add_u32 s14, s14, s56\nv_min_u32 v14, 35, v0\nv_add_u32 v14, s14, v14\nv_lshlrev_b32 v14, 7, v14\nv_add_u32 v15, 4608, v14")
    A.wait(vm=("L", 10), lg=("V", 0)); A.e("s_barrier")
    A.stamp()
    gen_stage(0, "first", dma_kv_dyn(3, 1), opt).emit(A)
    tcode = [([], ("vm", f"global_load_dword a{aDum}, v{vAS}, s[98:99]", None))] if opt.get("tloop", 0) else []
    def body(i):
        gen_stage(i, "A", dma_kv_dyn(i + 3, 0), opt, tcode).emit(A)
        Sb = gen_stage(i + 1, "B", dma_kv_dyn(i + 4, 1), opt)
        Sb.sh[128].append(f"s_sub_u32 s{sCnt}, s{sCnt}, 1"); Sb.sh[129].append(f"s_cmp_lg_u32 s{sCnt}, 0")
        Sb.emit(A)
    if opt.get("align_loop", 1): A.e(".p2align 5")
    A.label("L2_loop")
    n0 = len(A.L); body(1); n1 = len(A.L); body(3)
    assert A.L[n0:n1] == A.L[n1:], "loop body not in steady state"
    assert lint(A.L[n0:], "loop2x") == 0
    del A.L[n1:]
    def shift(t, d):
        if isinstance(t, tuple) and t[0] in ("L", "V"): return (t[0], t[1] + d)
        if isinstance(t, tuple) and isinstance(t[0], tuple): return ((t[0][0], t[0][1] + d), t[1])
        return t
    A.vm = [shift(t, 2 * NIT - 4) for t in A.vm]; A.lg = [shift(t, 2 * NIT - 4) for t in A.lg]
    A.e("s_cbranch_scc1 L2_loop")
    def gt(ch):
        vr, sp = dict(g=(12, 4), u=(12, 6), d=(13, 8), a=(14, 10), b=(15, 10))[ch]
        return ([], ("vm", f"global_load_dword a{aDum}, v{vr}, {s(sp,2)}", None))
    fw = ld_ffn(); plan = opt.get("plan", {25: "a012", 26: "b345", 27: "u678", 28: "d"})
    for i in range(2 * NIT + 1, 31):
        ex = [fw[int(ch)] if ch.isdigit() else gt(ch) for ch in plan.get(i, "")]
        if i in (29, 30):
            ex += [([], ("vm", f"buffer_store_dwordx4 a[56:59], v{vKV}, {s(sH2,4)}, 0 offen offset:{1024*k} sc1", None)) for k in range(2 * (i - 29), 2 * (i - 28))]
        gen_stage(i, "A" if i % 2 else "B", dma_kv_dyn(i + 3, 1 - i % 2) if i < 29 else dma_wo(i - 29), opt, ex).emit(A)
    nup = opt.get("nup", 16)
    upd = [x for k in range(9) for x in ([fw[9 + k]] + ([fw[18 + k]] if 18 + k < 9 + nup else []))]
    Sl = gen_stage(31, "last", dma_wo(2), opt, upd, opt.get("xs31", 1))
    def norm(j, pk):
        r = vTmp + 2 * (j % 2)
        out = [f"v_accvgpr_read_b32 v{r}, a{aL+4*j}", f"v_accvgpr_read_b32 v{r+1}, a{aL+4*j+1}", f"v_add_f32 v{r}, v{r}, v{r+1}",
               f"v_cmp_nlt_f32 {s(56+2*j,2)}, v{r}, s15", f"v_rcp_f32 v{r}, v{r}"]
        body = []
        for x in range(4):
            o = O(j, 2 * x)
            if pk: body += [f"v_pk_mul_f32 {v(o+i,2)}, {v(o+i,2)}, {v(r,2)} op_sel_hi:[1,0]" for i in range(0, 8, 2)]
            else: body += [f"v_mul_f32 v{o+i}, v{o+i}, v{r}" for i in range(8)]
            body += [f"v_cvt_pk_bf16_f32 v{o+i}, v{o+2*i}, v{o+2*i+1}" for i in range(4)]
        return out, body
    Sl.sh[40].append(f"s_mov_b32 s15, {hex(f2u(2.0**60))}")
    rest = Sl.fill([(149, x) for x in oreads(0)], 149, 165); assert not rest
    rest = Sl.fill([(70 + 33 * j, x) for j in range(2) for x in sum(norm(j, False), [])], 70, 165)
    Sl.emit(A)
    A.stamp()
    h2_, b2 = norm(2, True); h3, b3 = norm(3, True)
    rest = [x for _, x in rest]
    if len(rest) >= 48:
        A.items(rest[:-48] + h2_ + norm(1, True)[1] + h3[:4])
    else: A.items(h2_ + rest + h3[:4])
    A.e("s_or_b64 s[56:57], s[56:57], s[58:59]\n" + h3[4] + "\ns_or_b64 s[60:61], s[60:61], s[62:63]\ns_or_b64 s[56:57], s[56:57], s[60:61]\ns_cselect_b32 s3, 1, 0")
    if opt.get("force_fallback"): A.e("s_mov_b32 s3, 1")
    A.e(f"s_andn2_b32 s3, s3, s{sPass}\ns_lshl2_add_u32 s14, s{sW}, {FLAG}\nv_mov_b32 v{NM+8}, s3\nv_mov_b32 v{NM+9}, s14\nv_mov_b32 v{NM+10}, {FLAG}")
    A.lds(f"ds_write_b32 v{NM+9}, v{NM+8}", "fw")
    A.items(b2 + b3)
    A.wait(lg=("W", 0, 0))
    A.stamp()
    So, leftover = gen_oproj(A)
    for c in range(9):
        So.emit(A, 64 * c, 64 * c + 64)
        if A.stamping == 3: A.stamp()
    A.e("s_nop 7")
    for n in range(2):
        cv, sw, st = oepi(17, n)
        A.items(cv + ["s_nop 1"] + sw + st[0] + [st[1]])
    A.stamp()
    gen_tail(A, B, opt)
    A.label("L2_end")
    A.e("s_endpgm")
    A.L += B.L
    A.label("L2_fallback")
    A.wait_all(); A.e(f"s_nop 7\ns_barrier\ns_lshl_b32 s3, s{sW}, 12\nv_add_u32 v{vKV}, s3, v{vX}")
    init_kv_addr()
    for j in range(4): A.e(f"v_mov_b32 v{P0+j}, 0xff800000")
    A.e(f"s_mov_b32 s{sPass}, 1\ns_mov_b32 s{sT}, 0")
    A.label("L2_fb_loop")
    emit_dma(A, dma_kv_static(None, (0,), 2))
    A.wait_all(); A.e("s_barrier")
    A.items(kreads(0, "fk")); A.wait_all(); A.e("s_barrier")
    for j in range(4):
        for kt in range(4):
            for t in range(4):
                d = S0 + 4 * kt
                A.e(f"{MF} {v(d,4)}, {a(KF(kt,t),4)}, {v(Q(j,t),4)}, {'0' if t == 0 else v(d,4)}")
        A.e("s_nop 7")
        for i in range(8): A.e(f"v_max3_f32 v{P0+j}, v{P0+j}, v{S0+2*i}, v{S0+2*i+1}")
    A.e(f"s_add_u32 s{sT}, s{sT}, 16384\ns_cmp_lt_u32 s{sT}, {32*16384}\ns_cbranch_scc1 L2_fb_loop")
    xmax_to_negm(A, [P0 + j for j in range(4)], 0.0)
    for i in range(3): emit_dma(A, dma_kv_static(i))
    A.wait_all(); A.e("s_barrier")
    A.items(kreads(0, "fk") + vreads(0, 0, "fv")); A.wait_all()
    A.e("s_branch L2_entry")
    A.label("L2_codeend")
    if opt.get("walk", 1): A.L = insert_pads(A.L, "L2_walkret", "L2_end")
    return A, dict(name=KNAME, grid=256, block=256, lds=LDS_BYTES, vgpr=512, acc=256)
```

```python
from asmlib import *
from layout import *

RING = 16384; SLOT = 36864; HALF = 16896; PIECE = 1056
ASB = 9216
SCR = 13824
FLAG = SCR
LDS_BYTES = RING + 4 * SLOT
BIAS = 32.0
vK, vV, vT, vT2, vKV, vWq, vWo, vX, vAS, vPt, vIdx = 1, 2, 3, 4, 5, 6, 7, 8, 9, 10, 11
vTmp = 12
S0 = 16; P0 = 32; NM = 48; Q0 = 64; O0 = 128
AS0 = 16; T0 = 32; X0 = 48
def O(j, dt): return O0 + (j * 8 + dt) * 4
def Q(j, t): return Q0 + (j * 4 + t) * 4
def X(c, n, kl): return X0 + ((c + 2) % 5) * 16 + (n * 2 + kl) * 4
aL = 0; aOne = 16; aK = 64; aV = 128
def KF(kt, t): return aK + (kt * 4 + t) * 4
def VF(buf, dt, u): return aV + buf * 64 + (dt * 2 + u) * 4
sK, sV, sWq, sWo, sXn, sWr, sPt = 16, 20, 24, 28, 32, 36, 40
sC, sWm, sDb = 16, 88, 60
sW4, sOff, sT, sBase, sDel, sCnt, sPass, sW, sG, sTb, sOff2 = 44, 45, 46, 47, 48, 49, 50, 51, 52, 53, 54
sWg, sWu, sWd, sXi, sOut, sWs, sPr = 64, 68, 72, 76, 80, 84, 88
sW9, sT8, sCap = 55, 96, 97
sH2 = 32
sSt = 24; sYp = 32
vFg = vWq
aDum = 63
MF = "v_mfma_f32_16x16x32_bf16"

def trd(dst, slot, off):
    base = vT if slot < 2 else vT2
    return f"ds_read_b64_tr_b16 {a(dst,2)}, v{base} offset:{(slot % 2) * SLOT + off}"

def dma_wq(c):
    slot = (c + 1) % 4; out = []
    for kl in range(2):
        for r in range(4):
            out.append(([f"s_add_u32 m0, s{sW4}, {slot*SLOT + kl*HALF + r*PIECE}", f"s_mov_b32 s{sOff}, {(64*c + 32*kl + r) * 8192}"],
                        ("vm", f"buffer_load_dwordx4 v{vWq}, {s(sWq,4)}, s{sOff} offen{OPT.get('wq_nt','')} lds", ("L", c))))
    return out
def dma_kv_static(i, halves=(0, 1), slot=None):
    slot = (i + 2) % 4 if slot is None else slot; out = []
    for h in halves:
        for j in range(4):
            pre = [f"s_add_u32 m0, s{sW4}, {slot*SLOT + h*HALF + 32*j}"]
            if i is not None and j == 0 and h == halves[0]: pre.append(f"s_mov_b32 s{sT}, {i*16384}")
            out.append((pre, ("vm", f"buffer_load_dwordx4 v{vKV}, {s(sV if h else sK,4)}, s{sT} offen offset:{1024*j}{OPT.get('kv_nt','')} lds", ("L", 9 + (i or 0)))))
    return out
def dma_kv_dyn(i, odd):
    out = []
    for h in range(2):
        for j in range(4):
            pre = [f"s_add_u32 m0, s{sBase}, {odd*SLOT + h*HALF + 32*j}"] + [f"s_add_u32 s{sT}, s{sT}, 16384"] * (h == 0 and j == 0)
            out.append((pre, ("vm", f"buffer_load_dwordx4 v{vKV}, {s(sV if h else sK,4)}, s{sT} offen offset:{1024*j}{OPT.get('kv_nt','')} lds", ("L", 9 + i))))
    return out
def dma_wo(c):
    slot = (c + 2) % 4; out = []
    for hi in range(2):
        for r in range(4):
            pre = [f"s_add_u32 m0, s{sW4}, {slot*SLOT + hi*HALF - 96*r}"]
            if r == 0: pre.append(f"s_mov_b32 s{sOff}, {c*128 + hi*128*1152}")
            out.append((pre, ("vm", f"buffer_load_dwordx4 v{vWo}, {s(sWo,4)}, s{sOff} offen offset:{1152*r}{OPT.get('wo_nt','')} lds", ("L", 41 + c))))
    return out
def FW(k): return 20 + 4 * k if k < 9 else aV + 4 * (k - 9)
def ld_ffn():
    out = []
    for m in range(3):
        for i in range(9):
            d = a(FW(9 * m + i), 4)
            if m < 2: out.append(([f"s_mov_b32 s{sOff2}, {i*16*9216}"], ("vm", f"buffer_load_dwordx4 {d}, v{vFg}, {s(sWu if m else sWg,4)}, s{sOff2} offen", "fw")))
            else: out.append(([f"s_add_u32 s{sOff2}, s{sW9}, {1024*i}"], ("vm", f"buffer_load_dwordx4 {d}, v{vX}, {s(sWd,4)}, s{sOff2} offen", "fw")))
    return out
def touch(vaddr, srd, off):
    return ([f"s_mov_b32 s{sOff2}, {off}"], f"buffer_load_dword a{aDum}, v{vaddr}, {s(srd,4)}, s{sOff2} offen")
def dmaL(n):
    return dma_wq(n) if n < 9 else (dma_kv_static(n - 9) if n < 41 else dma_wo(n - 41))
def emit_dma(A, lst):
    for pre, ld in lst:
        A.items(pre)
        if len(pre) == 1: A.e("s_nop 0")
        A.item(ld)
def xload(c):
    return [([f"s_mov_b32 s{sOff2}, {n*18432 + (2*c+kl)*1024}"],
             ("vm", f"buffer_load_dwordx4 {v(X(c,n,kl),4)}, v{vX}, {s(sXn,4)}, s{sOff2} offen sc1", ("X", c))) for n in range(2) for kl in range(2)]
def place_vm(Sc, g, item):
    pre, ld = item
    for k, p in enumerate(pre): Sc.sh[g - 1 + k].append(p)
    Sc.mem[g].append(ld)

def as_reads(c, q):
    kl, hf = q // 2, q % 2; d = AS0 + (q % 2) * 8; off = ASB + (2 * c + kl) * 256 + hf * 16
    return [("lds", f"ds_read_b128 {v(d,4)}, v{vAS} offset:{off}", ("AS", c, q)), ("lds", f"ds_read_b128 {v(d+4,4)}, v{vAS} offset:{off+32}", ("AS", c, q))]
def modulate(c, q):
    kl, hf = q // 2, q % 2; d = AS0 + (q % 2) * 8; out = []
    for n in range(2):
        x = X(c, n, kl) + 2 * hf; t = T0 + 4 * n
        for i in range(4):
            out.append(f"v_fma_mix_f32 v{t+i}, v{x+i//2}, v{d+i}, v{d+4+i} op_sel:[{i%2},0,0] op_sel_hi:[1,0,0]")
        out += [f"v_cvt_pk_bf16_f32 v{x}, v{t}, v{t+1}", f"v_cvt_pk_bf16_f32 v{x+1}, v{t+2}, v{t+3}"]
    return out

def kreads(off, tag): return [("lds", f"ds_read_b128 {a(KF(kt,t),4)}, v{vK} offset:{off + kt*256 + t*64}", (tag, kt)) for kt in range(4) for t in range(4)]
def vreads(buf, off, tag): return [("lds", f"ds_read_b64_tr_b16 {a(VF(buf,dt,u)+2*b,2)}, v{vV} offset:{off + (2*u+b)*256 + dt*32}", tag) for dt in range(8) for u in range(2) for b in range(2)]

QD = 3
def AF(grp, kl): return aV + 64 + (grp % 8) * 8 + kl * 4
def qreads(G):
    c, mt = divmod(G, 16); slot = (c + 1) % 4
    return [("lds", trd(AF(G, kl) + 2 * b, slot, kl * HALF + b * 512 + mt * 32), ("A", G)) for kl in range(2) for b in range(2)]

def gen_qproj(A):
    Sc = Sched()
    for c in range(9):
        for mt in range(16):
            G = c * 16 + mt
            for n in range(2):
                d = O(2 * (mt // 8) + n, mt % 8)
                for kl in range(2):
                    cc = "0" if c == 0 and kl == 0 else v(d, 4)
                    Sc.mfma(f"{MF} {v(d,4)}, {a(AF(G,kl),4)}, {v(X(c,n,kl),4)}, {cc}")
    N = len(Sc.mf); vmg = set()
    leftover = []
    for k, it in enumerate(dmaL(2)):
        g = 3 + 4 * k; place_vm(Sc, g, it); vmg.add(g)
    for c in range(9):
        gb = 64 * (c + 1) - 4 * QD - 1 if c < 8 else OPT.get("gb8", 551)
        Sc.sh[gb] += [("wait", ("L", c + 1), None), "s_barrier"]
        for k, it in enumerate(dmaL(c + 3)):
            g = gb + 4 + 4 * k
            if g < N: place_vm(Sc, g, it); vmg.add(g)
            else: leftover.append(it)
    for c in range(6):
        for k, it in enumerate(xload(c + 3)):
            g = 64 * c + 35 + 4 * k
            assert g not in vmg
            place_vm(Sc, g, it); vmg.add(g)
    for G in range(144):
        if G > 0: Sc.sh[4 * G - 1].append(("wait", None, ("A", G)))
        if G + QD < 144:
            rd = qreads(G + QD); gs = [g for g in range(4 * G, 4 * G + 4) if g not in vmg]
            if len(gs) == 3: gs = [gs[0], gs[1], gs[1], gs[2]]
            for g, r in zip(gs, rd): Sc.mem[g].append(r)
    for c in range(8):
        Sc.sh[64 * c].append(("wait", ("X", c + 1), None))
        for q in range(4):
            w0 = 64 * c + 16 * q
            nxt = as_reads(c + 1, q + 1) if q < 3 else (as_reads(c + 2, 0) if c < 7 else [])
            items = modulate(c + 1, q)
            Sc.sh[w0].append(("wait", None, ("AS", c + 1, q)))
            free = [g for g in range(w0, w0 + 16) if g not in vmg and len(Sc.mem[g]) < 2]
            for r in nxt:
                g = free.pop(0); Sc.mem[g].append(r)
            over = len(items) - len(free)
            odd = sorted(range(w0 + 1, w0 + 16, 2), key=lambda g: (g in vmg, -g))
            slots = sorted(free + odd[:over] if over > 0 else free); assert len(slots) >= len(items)
            for g, it in zip(slots, items): Sc.va[g].append(it)
    return Sc, leftover, vmg

def qconvert(j, t):
    o = O(j, 2 * t); q = Q(j, t)
    return [f"v_cvt_pk_bf16_f32 v{q+i}, v{o+2*i}, v{o+2*i+1}" for i in range(4)], [f"v_permlane32_swap_b32 v{q}, v{q+2}", f"v_permlane32_swap_b32 v{q+1}, v{q+3}"]

def pf_addr(A):
    A.e(f"v_lshrrev_b32 v14, 2, v0\ns_mul_i32 s3, s{sW}, 144\nv_add_u32 v14, s3, v14\nv_mul_u32_u24 v14, 9216, v14\nv_and_b32 v15, 3, v0\nv_lshl_add_u32 v{vFg}, v15, 4, v14")
    A.e(f"s_lshr_b32 s3, s2, 3\ns_lshl2_add_u32 s3, s3, s{sW}\ns_and_b32 s15, s2, 7\nv_lshlrev_b32 v{vAS}, 7, v0")
    A.e(f"s_mul_i32 s14, s3, 9\ns_lshr_b32 s14, s14, 1\nv_min_u32 v15, 44, v0\nv_mul_u32_u24 v12, 7282, v15\nv_lshrrev_b32 v12, 16, v12\nv_mul_u32_u24 v13, 63, v12\nv_add_u32 v12, v15, v13")
    A.e(f"s_mul_i32 s14, s14, 72\ns_mul_i32 s56, s15, 9\ns_add_u32 s14, s14, s56\nv_add_lshl_u32 v12, s14, v12, 7")
    A.e(f"s_mul_i32 s14, s3, 81\ns_lshr_b32 s14, s14, 1\ns_mul_i32 s56, s15, 5184\ns_add_u32 s14, s14, s56\nv_min_u32 v13, 40, v0\nv_add_lshl_u32 v13, s14, v13, 7")
    A.e(f"s_mul_i32 s14, s3, 72\ns_andn2_b32 s56, s{sG}, 3\ns_mul_i32 s56, s56, 2304\ns_add_u32 s14, s14, s56\nv_min_u32 v14, 35, v0\nv_add_lshl_u32 v14, s14, v14, 7\nv_add_u32 v15, 4608, v14")

def xmax_to_negm(A, src, bias):
    t = P0 + 8
    for op in ("v_permlane16_swap_b32", "v_permlane32_swap_b32"):
        for j in range(4): A.e(f"v_mov_b32 v{t+j}, v{src[j]}")
        for j in range(4): A.e(f"{op} v{t+j}, v{src[j]}")
        for j in range(4): A.e(f"v_max_f32 v{src[j]}, v{src[j]}, v{t+j}")
    for j in range(4):
        for i in range(4): A.e(f"v_sub_f32 v{NM+4*j+i}, {hex(f2u(-bias))}, v{src[j]}")

def gen_stage(i, kind, dma, opt, extra=(), xstep=2, bar=2, dgap=None):
    par = i % 2; Sc = Sched(); first = kind == "first"; last = kind == "last"
    nun = 5 if last else 4
    for j in range(nun):
        for kt in range(4):
            for t in range(4):
                d = S0 + 4 * kt
                Sc.mfma(None if j == 4 else f"{MF} {v(d,4)}, {a(KF(kt,t),4)}, {v(Q(j,t),4)}, {v(NM+4*j,4) if t == 0 else v(d,4)}")
        jp = (j - 1) % 4; vb = par if j > 0 else 1 - par; p = P0 + 8 * (jp % 2)
        skip = first and j == 0
        for dt in range(8):
            for u in range(2):
                d = O(jp, dt); cc = "0" if first and u == 0 else v(d, 4)
                Sc.mfma(None if skip else f"{MF} {v(d,4)}, {a(VF(vb,dt,u),4)}, {v(p+4*u,4)}, {cc}")
        Sc.mfma(None if skip else f"v_smfmac_f32_16x16x64_bf16 {a(aL+4*jp,4)}, {a(aOne,4)}, {v(p,8)}, v{vIdx}")
        b = 33 * j
        for x in range(16):
            prev = x < 4
            if (prev and skip) or (j == 4 and not prev): continue
            e = (x - 4) % 16
            Sc.va[b + 2 * x].append(f"v_exp_f32 v{S0+e}, v{S0+e}")
        for k in range(8):
            prev = k < 3; pr = (k + 5) % 8
            if (prev and skip) or (j == 4 and not prev): continue
            pb = P0 + 8 * ((j - 1 if prev else j) % 2)
            Sc.va[b + 4 * k + 1].append(f"v_cvt_pk_bf16_f32 v{pb+pr}, v{S0+2*pr}, v{S0+2*pr+1}")
    if first:
        for g in range(16, 33):
            if g % 2 == 0: Sc.va[g].append("s_nop 0")
        Sc.sh[16].append("s_nop 3"); Sc.sh[8].append("s_nop 1")
    if last:
        for g in range(33 * 4, 33 * 4 + 8, 2): Sc.va[g].append("s_nop 0")
        Sc.va[33 * 4 + 15].append("s_nop 1")
    for kt in range(1, 4): Sc.sh[4 * kt - 1].append(("wait", None, (("K", i), kt)))
    cand = [33 * j + r for j in range(4 if last else 3) for r in range(3, 32, 4)]
    gs = cand[:len(dma)] + cand[len(dma)::xstep]
    if dgap:
        gs = cand[4:4 + len(dma)] + cand[max(8, 4 + len(dma))::xstep]
        if len(dma) == 16: gs = cand[4:12] + cand[16:24]
        Sc.sh[15] += [("wait", ("L", 9 + i + 2), None), "s_barrier"]
    dma = list(dma) + list(extra)
    vmg = set()
    for g, it in zip(gs, dma): place_vm(Sc, g, it); vmg.add(g)
    assert len(vmg) == len(dma)
    if kind == "A":
        Sc.va[1].append(f"v_add_u32 v{vK}, s{sDel}, v{vK}"); Sc.va[5].append(f"v_add_u32 v{vV}, s{sDel}, v{vV}")
        Sc.sh[0].append(f"s_sub_u32 s{sBase}, s{sBase}, s{sDel}")
        Sc.sh[8].append(f"s_sub_u32 s{sDel}, 0, s{sDel}")
    if not last:
        off = 0 if kind == "A" else SLOT
        if first:
            rest = Sc.fill([(0, x) for x in vreads(0, 0, ("V", 0))], 0, 16)
            for _, x in rest: Sc.mem[16].append(x)
            Sc.sh[47].append(("wait", None, ("V", 0)))
        free = [33 * j + r for j in range(3) for r in list(range(1, 32, 2)) + [32] if 33 * j + r >= 17 and 33 * j + r not in vmg]
        vr = vreads(1 - par, off, ("V", i + 1))
        if len(free) < 32:
            two = [g for g in free if not Sc.va[g]]
            free = sorted(free + two[len(two) - (32 - len(free)):]); assert len(free) == 32
        for n, r in enumerate(vr):
            assert free[n] >= 16 + n // 2
            Sc.mem[free[n]].append(r)
        for n, r in enumerate(kreads(off, ("K", i + 1))): Sc.mem[99 + 2 * n + 1].append(r)
        if bar: Sc.sh[131] += [("wait", ("L", 9 + i + bar), (("K", i + 1), 0)), "s_barrier"]
        else: Sc.sh[131].append(("wait", None, (("K", i + 1), 0)))
    return Sc

OA = 16; OR = 48
def OB(n, u): return O(2 * (u // 4) + n, 2 * (u % 4))
def WF(grp, u): return aK + (grp % 2) * 32 + u * 4
def oreads(G):
    c, ntl = divmod(G, 4); slot = (c + 2) % 4
    return [("lds", trd(WF(G, u) + 2 * b, slot, (u // 4) * HALF + (2 * (u % 4) + b) * 128 + ntl * 32), ("W", G, u // 2)) for u in range(8) for b in range(2)]
def oacc(G, n): return OA + ((G % 4) * 2 + n) * 4
def oepi(pair, n):
    r = OR + 4 * n; x, y = oacc(2 * pair, n), oacc(2 * pair + 1, n); c, aa = divmod(pair, 2)
    cv = [f"v_cvt_pk_bf16_f32 v{r}, v{x}, v{x+1}", f"v_cvt_pk_bf16_f32 v{r+1}, v{x+2}, v{x+3}", f"v_cvt_pk_bf16_f32 v{r+2}, v{y}, v{y+1}", f"v_cvt_pk_bf16_f32 v{r+3}, v{y+2}, v{y+3}"]
    sw = [f"v_permlane32_swap_b32 v{r}, v{r+2}", f"v_permlane32_swap_b32 v{r+1}, v{r+3}"]
    st = ([f"s_mov_b32 s{sOff2}, {n*294912 + c*1024}"], ("vm", f"buffer_store_dwordx4 {v(r,4)}, v{vPt}, {s(sPt,4)}, s{sOff2} offen offset:{aa*512}{OPT.get('st_flags', ' sc1')}", "st"))
    return cv, sw, st

vXA, vXC = vK, vV
XR = 64
def HOLE(k): return O0 + 8 * k + 4
def xi_loads(ob):
    return [([], ("vm", f"buffer_load_dwordx4 {v(XR+4*i,4)}, v{vXC if i == 2 else vXA}, {s(sXi,4)}, 0 offen offset:{ob if i == 1 else 0}", "xi")) for i in range(3)]
vWA, vWC, vPA, vPB, vFa, vFl, vOne = 12, 13, 5, 59, 6, 9, 15
sFl, sRem, sQ, sRdyA, sFs, sPa = sBase, sDel, sT, sCnt, 56, 28
def WR(q): return 224 + 8 * (q // 4) + q % 4
def wr_loads():
    return [([], ("vm", f"buffer_load_dwordx4 {v(WR(4*i),4)}, v{vWC if i == 2 else vWA}, {s(sWr,4)}, 0 offen offset:{512*i}", "xi")) for i in range(3)]
def NV(r, h): return 76 + 12 * h + 4 * r
def mv_loads():
    return [([f"s_movk_i32 s{sOff}, {4608 + 13824*h + 4096*r}"], ("vm", f"buffer_load_dwordx4 {v(NV(r,h),4)}, v{vPB if r == 2 else vPA}, {s(sWs,4)}, s{sOff} offen sc1", "xi")) for r in range(3) for h in range(2)]
def item_addr(A, ma, mc, oc, t=14):
    A.e(f"s_mul_i32 s3, s{sW}, {ma}\nv_lshrrev_b32 v{t}, 3, v0\nv_lshl_add_u32 v{vWA}, v{t}, 4, s3\nv_and_b32 v{t}, 1, v{t}")
    if mc != ma: A.e(f"s_mul_i32 s3, s{sW}, {mc}")
    A.e(f"v_lshl_add_u32 v{vWC}, v{t}, 4, s3")
    A.e(f"v_and_b32 v{t}, 7, v0\nv_mul_u32_u24 v{t}, 1152, v{t}\nv_add_u32 v{vXA}, v{t}, v{vWA}\nv_add_u32 v{vXC}, v{t}, v{vWC}\nv_add_u32 v{vXC}, {oc}, v{vXC}")
def ready_mask(d):
    return ["s_lshr_b32 s3, vcc_lo, 1", "s_and_b32 s3, s3, vcc_lo", "s_lshr_b32 s14, s3, 2", f"s_and_b32 s{d}, s3, s14"]

vF2, vF0, vF1, vG0, vG1 = 104, 105, 106, 110, 111
aF = 64
def fw_write(k): return ("lds", f"ds_write_b128 v{(vF1, vF0, vF2)[k//9]}, {a(FW(k),4)} offset:{((3 + k//9) % 2)*SLOT + 1024*(k%9)}", "fww")
def fa_reads():
    far = [("lds", f"ds_read_b64_tr_b16 {a(aF+4*kk+2*b,2)}, v{vG0} offset:{2048*kk + 256*b}", "fa") for kk in range(18) for b in range(2)]
    return far + [("lds", f"ds_read_b64_tr_b16 {a(aF+72+4*nt+2*b,2)}, v{vG1} offset:{32*nt + 4608*b}", "fa") for nt in range(9) for b in range(2)]

def gen_oproj(A):
    Sc = Sched()
    for G in range(36):
        for n in range(2):
            for u in range(8):
                d = oacc(G, n)
                Sc.mfma(f"{MF} {v(d,4)}, {a(WF(G,u),4)}, {v(OB(n,u),4)}, {'0' if u == 0 else v(d,4)}")
    N = len(Sc.mf); vmg = set(); leftover = []
    st = OPT.get("o_step", 2)
    for c in range(8):
        gb = 64 * c + 47
        Sc.sh[gb] += [("wait", ("L", 41 + c + 1), "fw"), "s_barrier"]
        if c + 3 <= 8:
            for k, it in enumerate(dma_wo(c + 3)):
                g = gb + 2 + st * k; place_vm(Sc, g, it); vmg.add(g)
    misc = ld_ffn()[9 + OPT.get("nup", 16):]
    gl = list(range(3, 32, 4)); assert len(gl) >= len(misc)
    for g, it in zip(gl, misc): place_vm(Sc, g, it); vmg.add(g)
    Sc.sh[440] += [f"s_sub_u32 s{sPa}, s{sPr}, 4096", f"s_subb_u32 s{sPa+1}, s{sPr+1}, 0"]; Sc.sh[441].append(f"s_mov_b32 s{sPa+2}, 147456")
    if OPT.get("fo", 0):
        Sc.sh[64 * 8 + 15].append("s_barrier")
        for m, g0 in enumerate((64 * 6 + 48, 64 * 7 + 48, 64 * 8 + 16)):
            gs_ = [g0 + 2 * k for k in range(8)] + [g0 + 32]
            for k, g in enumerate(gs_): Sc.mem[g].append(fw_write(9 * m + k)); vmg.add(g)
    swg = set()
    for p in range(17):
        for n in range(2):
            b = 16 * (2 * p + 2) + 8 * n
            cv, sw, st = oepi(p, n)
            for k, x in enumerate(cv): Sc.va[b + k].append(x)
            Sc.va[b + 5].append(sw[0]); Sc.va[b + 6].append(sw[1]); swg |= {b + 5, b + 6}
            Sc.sh[b + 4].append(st[0][0]); Sc.va[b + 7].append(st[1])
    for G in range(36):
        for h in range(4):
            g = 16 * G + 2 * h - 1
            if g >= 0: Sc.sh[g].append(("wait", None, ("W", G, h)))
        if G + 1 < 36:
            gs = [g for g in range(16 * G, 16 * G + 16) if g not in vmg and g not in swg]
            two = [g for g in gs if not Sc.va[g]]
            extra = 16 - len(gs)
            if extra > len(two): two = two + [g for g in range(16 * G + 7, 16 * G + 16, 8)] * 4
            gs = sorted(gs + two[:extra]); assert len(gs) == 16
            for g, r in zip(gs, oreads(G + 1)): Sc.mem[g].append(r)
    f = NM + 12
    Sc.mem[47].append(("lds", f"ds_read_b128 {v(f,4)}, v{NM+10}", "fr"))
    Sc.sh[55].append(("wait", None, "fr"))
    Sc.va[55] += [f"v_or3_b32 v{f}, v{f}, v{f+1}, v{f+2}", f"v_or_b32 v{f}, v{f}, v{f+3}"]
    Sc.va[63].append(f"v_readfirstlane_b32 s3, v{f}")
    Sc.sh[65].append("s_cmp_lg_u32 s3, 0"); Sc.sh[66].append("s_cbranch_scc1 L2_fallback")
    T = Asm(); item_addr(T, 128, 32, 1024)
    T.e(f"s_lshl_b32 s14, s{sW}, 10\nv_add_u32 v{vPA}, s14, v{vX}\nv_and_b32 v{vPB}, 0xf0, v{vX}\ns_lshl_b32 s14, s{sW}, 8\nv_add_u32 v{vPB}, s14, v{vPB}")
    T.e(f"v_and_b32 v{vFa}, 15, v0\nv_lshlrev_b32 v{vFa}, 8, v{vFa}\nv_min_u32 v{vOne}, 1, v0\nv_lshlrev_b32 v{vOne}, 30, v{vOne}")
    T.e(f"s_lshl_b32 s15, s{sTb}, 14\ns_add_u32 s15, s15, {WS_F1}\ns_and_b32 s14, s{sG}, 12\ns_lshl_b32 s14, s14, 10\ns_add_u32 s{sFl}, s15, s14")
    T.e(f"s_lshl4_add_u32 s3, s{sW}, s{sG}\ns_lshl_b32 s3, s3, 8\ns_add_u32 s{sFs}, s3, s15")
    T.e(f"s_add_u32 s14, s{sW9}, {RING}\nv_add_u32 v{vF2}, s14, v{vX}\nv_and_b32 v14, 32, v0\nv_xor_b32 v{vF0}, v14, v{vF2}\nv_add_u32 v{vF1}, {2*SLOT}, v{vF0}")
    T.e(f"v_lshrrev_b32 v{vG0}, 4, v0\nv_bfe_u32 v14, v0, 2, 2\nv_lshl_add_u32 v{vG0}, v{vG0}, 3, v14\nv_and_b32 v14, 3, v0\nv_mul_u32_u24 v{vG1}, 1152, v{vG0}\nv_lshlrev_b32 v{vG0}, 6, v{vG0}")
    T.e(f"v_lshl_add_u32 v{vG0}, v14, 3, v{vG0}\nv_lshl_add_u32 v{vG1}, v14, 3, v{vG1}\ns_lshr_b32 s3, s{sW}, 1\ns_xor_b32 s3, s3, 1\ns_mul_i32 s3, s3, {3*SLOT}\ns_and_b32 s14, s{sW}, 1\ns_lshl_b32 s14, s14, 5")
    T.e(f"s_add_u32 s3, s3, s14\ns_add_u32 s3, s3, {RING}\nv_add_u32 v{vG0}, s3, v{vG0}\nv_and_b32 v14, 16, v0\nv_lshlrev_b32 v14, 1, v14\nv_xor_b32 v{vG0}, v14, v{vG0}\ns_mul_i32 s3, s{sW}, 288\ns_add_u32 s3, s3, {RING + SLOT}\nv_add_u32 v{vG1}, s3, v{vG1}")
    rest = Sc.fill([(0, x) for x in T.L], 80, 400); assert not rest
    return Sc, leftover

def xsum8(A, regs, tmp):
    A.e("s_nop 1")
    for x in regs: A.e(f"v_add_f32_dpp v{x}, v{x}, v{x} row_ror:8 row_mask:0xf bank_mask:0xf")
    xsumG(A, regs, tmp)
def xsumG(A, regs, tmp):
    for op in ("v_permlane16_swap_b32", "v_permlane32_swap_b32"):
        for k, x in enumerate(regs): A.e(f"v_mov_b32 v{tmp+k}, v{x}")
        if len(regs) < 3: A.e(f"s_nop {2 - len(regs)}")
        for k, x in enumerate(regs): A.e(f"{op} v{tmp+k}, v{x}")
        for k, x in enumerate(regs): A.e(f"v_add_f32 v{x}, v{x}, v{tmp+k}")
def merge2(A, m1, m2, t1, t2):
    A.e(f"v_max_u32 v{m2}, v{m2}, v{t2}\nv_med3_u32 v{m2}, v{m1}, v{t1}, v{m2}\nv_max_u32 v{m1}, v{m1}, v{t1}")
def top2_lanes(A, m1, m2, t1, t2, rors, swaps):
    for sh in rors:
        A.e(f"s_nop 1\nv_mov_b32_dpp v{t1}, v{m1} row_ror:{sh} row_mask:0xf bank_mask:0xf\nv_mov_b32_dpp v{t2}, v{m2} row_ror:{sh} row_mask:0xf bank_mask:0xf")
        merge2(A, m1, m2, t1, t2)
    for op in swaps:
        A.e(f"v_mov_b32 v{t1}, v{m1}\nv_mov_b32 v{t2}, v{m2}\ns_nop 0\n{op} v{t1}, v{m1}\n{op} v{t2}, v{m2}")
        merge2(A, m1, m2, t1, t2)
def dot24(A, d, t, x, y):
    for acc, lo, hi in ((d, 0, 16), (t, 16, 24)):
        for i in range(lo, hi):
            if y is None:
                if i == lo: continue
                A.e(f"v_add_f32 v{acc}, v{x+lo if i == lo+1 else acc}, v{x+i}")
            else: A.e(f"{'v_mul_f32' if i == lo else 'v_fmac_f32'} v{acc}, v{x+i}, v{y+i}")
    A.e(f"v_fmac_f32 v{d}, 0x3e800000, v{t}")
def dot24p(A, d, t, x, y):
    for acc, lo, hi in ((t, 0, 16), (t + 2, 16, 24)):
        for i in range(lo, hi, 2):
            if y is None:
                if i > lo: A.e(f"v_pk_add_f32 {v(acc,2)}, {v(x+lo if i == lo+2 else acc,2)}, {v(x+i,2)}")
            elif i == lo: A.e(f"v_pk_mul_f32 {v(acc,2)}, {v(x+i,2)}, {v(y+i,2)}")
            else: A.e(f"v_pk_fma_f32 {v(acc,2)}, {v(x+i,2)}, {v(y+i,2)}, {v(acc,2)}")
    A.e(f"v_add_f32 v{d}, v{t}, v{t+1}\nv_add_f32 v{t+2}, v{t+2}, v{t+3}\nv_fmac_f32 v{d}, 0x3e800000, v{t+2}")
def poll(A, name, loads, test, sleep=1, shrink=0):
    A.e(f"s_mov_b32 s{sCap}, 0x20000")
    A.label(name)
    A.e(loads); A.wait_all(lg=False); A.e(test)
    A.e(f"s_sub_u32 s{sCap}, s{sCap}, 1\ns_cselect_b64 vcc, 0, vcc\ns_cmp_eq_u64 vcc, 0\ns_cbranch_scc1 {name}_ok")
    if shrink: A.e("s_mov_b64 exec, vcc")
    if sleep: A.e(f"s_sleep {sleep}")
    A.e(f"s_branch {name}")
    A.label(name + "_ok")
    if shrink: A.e("s_mov_b64 exec, -1")

def gen_tail(A, B, opt):
    ACC, GA, U, TM, PL = 16, 40, 76, 100, 112
    vMA, vMC, vPC = 3, 4, 7
    TB = RING + 2 * SLOT
    ST = SCR + 256
    def acc(dst, src, first):
        for q in range(4):
            if first: A.e(f"v_lshlrev_b32 v{dst+2*q}, 16, v{src+q}\nv_and_b32 v{dst+2*q+1}, 0xffff0000, v{src+q}")
            else:
                t = TM + 2 * (q % 2)
                A.e(f"v_lshlrev_b32 v{t}, 16, v{src+q}\nv_and_b32 v{t+1}, 0xffff0000, v{src+q}\nv_pk_add_f32 {v(dst+2*q,2)}, {v(dst+2*q,2)}, {v(t,2)}")
    fl = f"buffer_load_dword v{vFl}, v{vFa}, {s(sWs,4)}, s{sFl} offen sc1"
    A.vmem(fl, ("fl", 0))
    misc = mv_loads() + wr_loads() + xi_loads(512); nm = opt.get("nm", 12)
    for pre, ld in misc[:nm]: A.items(pre + [ld])
    far = fa_reads()
    if opt.get("fo", 0) == 1: A.wait(lg="fww"); A.e("s_barrier"); A.items(far[:opt.get("nf0", 54)]); far = far[opt.get("nf0", 54):]
    A.wait(vm="st")
    A.vmem(f"buffer_store_dword v{vT}, v{vOne}, {s(sWs,4)}, s{sFs} offen sc1")
    A.e(f"s_movk_i32 s{sRem}, 0x1111\nv_lshrrev_b32 v15, 4, v0\nv_mul_u32_u24 v15, 9216, v15\nv_add_u32 v15, 4096, v15\nv_add_u32 v{vPC}, v{vPB}, v15")
    A.stamp()
    ready = f"v_cmp_ne_u32 vcc, 0, v{vFl}\ns_nop 0\n" + "\n".join(ready_mask(3)) + f"\ns_and_b32 s3, s3, s{sRem}"
    n0 = opt.get("n0", 10)
    def choose(i):
        if A.stamping == 5 and i: A.stamp()
        A.wait(vm=("fl", i))
        A.e(ready + f"\ns_cbranch_scc0 L2_g{i}s"); A.label(f"L2_g{i}r")
        A.e(f"s_ff1_i32_b32 s3, s3\ns_bitset0_b32 s{sRem}, s3\ns_mul_i32 s{sQ}, s3, 9216")
        B.label(f"L2_g{i}s")
        poll(B, f"L2_g{i}", fl, ready + f"\ns_cselect_b64 vcc, 0, -1", opt.get("sl1", 1))
        B.e(f"s_cmp_eq_u32 s3, 0\ns_cselect_b32 s3, s{sRem}, s3\ns_branch L2_g{i}r")
        if i == 0 or A.stamping == 5: A.stamp()
        if n0 // 5 - 1 <= i < 3: A.vmem(fl, ("fl", i + 1))
    pend = []
    for i in range(4):
        R0 = PL + 36 * i
        pend.append([lambda i=i: choose(i), ("vm", f"buffer_load_dwordx4 {v(R0,4)}, v{vPC}, {s(sPr,4)}, s{sQ} offen{OPT.get('pl', ' sc1')}", ("c", i))])
        for g in range(4):
            pend.append([f"s_add_u32 s{sQ}, s{sQ}, 9216"] * (g > 0) + [("vm", f"buffer_load_dwordx4 {v(R0+4+8*g+4*h,4)}, v{vPA}, {s(sPa if h else sPr,4)}, s{sQ} offen{OPT.get('pl', ' sc1')}", ("p", i, g, h)) for h in range(2)])
    win = opt.get("win", 99)
    def pace(free=False, step=None):
        if step is not None and opt.get("burst", 0):
            while pend and (20 - len(pend)) // 5 * 5 <= step + opt.get("off", 3): A.items(pend.pop(0))
        elif pend and (free or (20 - len(pend) < opt.get("n1", 10) if step is None else 20 - len(pend) <= step + opt.get("off", 3))):
            if len(A.vm) > win and not free:
                A.e(f"s_waitcnt vmcnt({win})"); del A.vm[:len(A.vm) - win]
            A.items(pend.pop(0))
        for _ in range(opt.get("nfw", 2)):
            if fww: A.item(fww.pop(0))
    fww = []
    for k in range(n0):
        pace(True)
        if k == opt.get("mpos", 0):
            for pre, ld in misc[nm:]: A.items(pre + [ld])
    A.wait(vm="xi")
    nv = [NV(r, h) + k for r in range(3) for h in range(2) for k in range(4)]
    A.e(f"v_mov_b32 v14, v{vWC}")
    tree2 = f"v_max_u32 v13, v{nv[0]}, v{nv[1]}\n" + "\n".join(f"v_max3_u32 v13, v13, v{nv[2*k]}, v{nv[2*k+1]}" for k in range(1, 12)) + "\nv_cmp_eq_u32 vcc, -1, v13"
    A.e(tree2 + "\ns_nop 0\ns_cmp_lg_u64 vcc, 0\ns_cbranch_scc1 L2_pns"); A.label("L2_pnr")
    B.label("L2_pns"); poll(B, "L2_pn", "\n".join(pre[0] + "\n" + ld[1] for pre, ld in mv_loads()), tree2); B.e("s_branch L2_pnr")
    for r in range(3):
        for k in (0, 2): A.e(f"v_pk_add_f32 {v(U+4*r+k,2)}, {v(NV(r,0)+k,2)}, {v(NV(r,1)+k,2)}")
        A.lds(f"ds_write_b128 v{vPB if r == 2 else vPA}, {v(U+4*r,4)} offset:{4096*r}", "mv")
    A.wait(lg="mv")
    A.e("s_barrier")
    if not opt.get("fo", 0): fww += [fw_write(k) for k in range(27)]
    A.e(f"v_lshlrev_b32 v{vMA}, 1, v{vWA}\nv_lshlrev_b32 v{vMC}, 1, v14")
    def vec(m, d, tag):
        for i in range(3):
            for h in range(2): A.lds(f"ds_read_b128 {v(d+8*i+4*h,4)}, v{vMC if i == 2 else vMA} offset:{m*2304 + 1024*i + 16*h}", tag)
    vec(2, U, "cb"); vec(1, GA, "sb")
    pace()
    A.wait(lg="sb")
    for q in range(12):
        t = 12 + 2 * (q % 2)
        A.e(f"v_lshlrev_b32 v{t}, 16, v{WR(q)}\nv_and_b32 v{t+1}, 0xffff0000, v{WR(q)}\nv_pk_mul_f32 {v(U+2*q,2)}, {v(U+2*q,2)}, {v(t,2)}\nv_pk_mul_f32 {v(GA+2*q,2)}, {v(GA+2*q,2)}, {v(t,2)}")
        if q == 5: pace()
    pace()
    dot24p(A, TM, 12, U, None); dot24p(A, TM + 1, 12, GA, None)
    vec(0, GA, "ga")
    pace()
    xsum8(A, [TM, TM + 1], TM + 2)
    A.e(f"v_and_b32 v14, 7, v0\nv_lshlrev_b32 v11, 4, v14\nv_add_u32 v11, {ST}, v11\ns_lshl_b32 s3, s{sW}, 2\nv_add_u32 v10, s3, v11")
    A.lds(f"ds_write_b32 v10, v{TM} offset:384", "ut"); A.lds(f"ds_write_b32 v10, v{TM+1} offset:512", "ut")
    vR0, vR1, vR2 = TM + 7, TM + 8, TM + 9
    A.e(f"v_lshl_add_u32 v{vXA}, v14, 4, v{vXA}\nv_lshl_add_u32 v{vXC}, v14, 4, v{vXC}\nv_add_u32 v{vXA}, {TB}, v{vXA}\nv_add_u32 v{vXC}, {TB}, v{vXC}")
    A.e(f"s_and_b32 s14, s{sW}, 1\ns_mul_i32 s14, s14, 9344\ns_add_u32 s14, s14, {TB}\nv_add_u32 v{vR0}, s14, v{vX}\nv_lshrrev_b32 v15, 3, v0\nv_mul_u32_u24 v12, {1152-128}, v15\nv_add_u32 v{vR2}, v12, v{vX}")
    A.e(f"v_lshl_add_u32 v12, v15, 4, v12\nv_add_u32 v{vR1}, v12, v{vR0}")
    A.e(f"s_mul_i32 s3, s{sT8}, 9216\ns_cmp_eq_u32 s{sW}, 3\ns_cselect_b32 s3, 0, s3\ns_cselect_b64 {s(sSt,2)}, {s(sH2,2)}, {s(sOut,2)}")
    A.srd(sSt, sSt, 9216, "s3")
    pace()
    A.wait(lg="ut")
    CB, SB, GB, D = PL, PL + 24, PL + 48, PL + 72
    KV, KA = XR, XR + 4
    for i in range(4):
        R0 = PL + 36 * i
        A.wait(vm=("c", i)); pace(step=5 * i); acc(ACC + 16, R0, i == 0)
        if i == 2:
            vec(2, CB, "m"); vec(1, SB, "m"); vec(3, GB, "m")
        if i == 3:
            A.e(f"s_lshl_b32 s3, s{sT8}, 3\ns_sub_u32 s3, 0xfff, s3\nv_and_b32 v{vFa}, 7, v0\nv_sub_u32 v{vFa}, s3, v{vFa}\ns_mov_b32 s57, 0xfffff000")
            A.e(f"s_mul_i32 s58, s{sT8}, {KS}\ns_add_u32 s58, s58, {WS_KEY}\ns_xor_b32 s3, s{sW}, 2\nv_or_b32 v{vFl}, s3, v0\nv_min_u32 v{vFl}, 1, v{vFl}\nv_lshlrev_b32 v{vFl}, 30, v{vFl}")
            xsumG(A, list(range(ACC + 16, ACC + 24)), D + 24)
            for q in range(12): A.e(f"v_lshlrev_b32 v{D+2*q}, 16, v{XR+q}\nv_and_b32 v{D+2*q+1}, 0xffff0000, v{XR+q}")
            A.e(f"s_cmp_lt_u32 s2, 180\ns_cselect_b32 s3, 2, 0\ns_cmp_lt_u32 s{sW}, s3\ns_cselect_b32 s3, 0, 0x40000000\nv_mul_u32_u24 v{KA}, {KS}, v0\nv_or_b32 v{KA}, s3, v{KA}")
            A.e(f"s_mul_i32 s15, s{sW}, {128*KS}\ns_add_u32 s15, s15, {WS_KEY}\ns_add_u32 s59, s15, {64*KS}\ns_lshl_b32 s3, s{sW}, 7\ns_sub_u32 s3, s{sT8}, s3\nv_cmp_eq_u32 s[60:61], s3, v0\ns_sub_u32 s3, s3, 64\nv_cmp_eq_u32 s[62:63], s3, v0")
        for g in range(4):
            A.wait(vm=("p", i, g, 0)); pace(step=5 * i + 1 + g); acc(ACC + 8, R0 + 4 + 8 * g, i == 0 and g == 0)
            A.wait(vm=("p", i, g, 1)); acc(ACC, R0 + 8 + 8 * g, i == 0 and g == 0)
    assert not pend and not fww
    A.stamp()
    A.wait(lg="ga")
    for q in range(12): A.e(f"v_pk_fma_f32 {v(ACC+2*q,2)}, {v(ACC+2*q,2)}, {v(GA+2*q,2)}, {v(D+2*q,2)}")
    MU, M2, DD = TM, TM + 1, TM + 2
    dot24p(A, MU, 12, ACC, None); xsum8(A, [MU], TM + 3)
    A.e(f"v_mul_f32 v{MU}, {hex(f2u(1/144))}, v{MU}")
    for i in range(0, 24, 2): A.e(f"v_pk_add_f32 {v(D+i,2)}, {v(ACC+i,2)}, {v(MU,2)} op_sel_hi:[1,0] neg_lo:[0,1] neg_hi:[0,1]")
    dot24p(A, M2, 12, D, D); dot24p(A, DD, 12, D, U); xsum8(A, [M2, DD], TM + 3)
    for k in range(3): A.lds(f"ds_write_b32 v10, v{TM+k} offset:{128*k}", "sw")
    A.wait(lg="sw"); A.e("s_barrier")
    R = GA
    for k in range(5): A.lds(f"ds_read_b128 {v(R+4*k,4)}, v11 offset:{128*k}", ("sr", k))
    A.wait(lg=("sr", 0))
    A.e(f"v_add_f32 v12, v{R}, v{R+1}\nv_add_f32 v13, v{R+2}, v{R+3}\nv_add_f32 v12, v12, v13\nv_mul_f32 v12, 0x3e800000, v12")
    for k in range(4): A.e(f"v_sub_f32 v{R+k}, v{R+k}, v12")
    A.e(f"v_sub_f32 v{MU}, v{MU}, v12\nv_mul_f32 v13, v{R}, v{R}")
    for k in range(1, 4): A.e(f"v_fmac_f32 v13, v{R+k}, v{R+k}")
    A.wait(lg=("sr", 1))
    A.e(f"v_add_f32 v14, v{R+4}, v{R+5}\nv_add_f32 v15, v{R+6}, v{R+7}\nv_add_f32 v14, v14, v15\nv_fmac_f32 v14, {hex(f2u(144.0))}, v13")
    A.e(f"v_mov_b32 v13, {hex(f2u(1e-5))}\nv_fmac_f32 v13, {hex(f2u(1/576))}, v14\nv_rsq_f32 v13, v13")
    A.wait(lg=("sr", 4))
    K1, K2 = R + 4, R + 5
    for k in (0, 2): A.e(f"v_pk_fma_f32 {v(R+8+k,2)}, {v(R+k,2)}, {v(R+12+k,2)}, {v(R+8+k,2)}")
    A.e(f"v_pk_add_f32 {v(R+8,2)}, {v(R+8,2)}, {v(R+10,2)}\nv_pk_add_f32 {v(R+16,2)}, {v(R+16,2)}, {v(R+18,2)}\nv_add_f32 v14, v{R+8}, v{R+9}\nv_add_f32 v15, v{R+16}, v{R+17}\nv_fmac_f32 v15, v14, v13")
    A.e(f"v_ashrrev_i32 v12, 31, v15\nv_or_b32 v12, 0x80000000, v12\nv_xor_b32 v12, v12, v15\nv_and_or_b32 v{K1}, v12, s57, v{vFa}\nv_mov_b32 v{K2}, 0")
    top2_lanes(A, K1, K2, 14, 15, (1, 2, 4), ())
    A.e(f"buffer_store_dwordx2 {v(K1,2)}, v{vFl}, {s(sWs,4)}, s58 offen offset:8 sc1")
    kld = [f"buffer_load_dwordx2 {v(KV+2*h,2)}, v{KA}, {s(sWs,4)}, {'s59' if h else 's15'} offen offset:8 sc1" for h in range(2)]
    if opt.get("kearly", 0): A.e("\n".join(kld))
    A.stamp()
    A.e(f"v_mul_f32 v{MU}, v{MU}, v13")
    for i in range(0, 24, 2): A.e(f"v_pk_fma_f32 {v(D+i,2)}, {v(D+i,2)}, v[12:13], {v(MU,2)} op_sel:[0,1,0] op_sel_hi:[1,1,0]")
    for i in range(0, 24, 2): A.e(f"v_pk_fma_f32 {v(D+i,2)}, {v(D+i,2)}, {v(CB+i,2)}, {v(SB+i,2)}")
    for m, src in ((1, D), (0, ACC)):
        if m == 0:
            for i in range(0, 24, 2): A.e(f"v_pk_fma_f32 {v(ACC+i,2)}, {v(D+i,2)}, {v(GB+i,2)}, {v(ACC+i,2)}")
        for i in range(3):
            d = CB + 12 * m + 4 * i
            for q in range(4): A.e(f"v_cvt_pk_bf16_f32 v{d+q}, v{src+8*i+2*q}, v{src+8*i+2*q+1}")
            if m == 1:
                for q in range(4): A.e(f"v_min_u32 v{d+q}, -2, v{d+q}")
            A.lds(f"ds_write_b128 v{vXC if i == 2 else vXA}, {v(d,4)} offset:{9344*m + (512 if i == 1 else 0)}", "tw")
    A.e(f"v_lshrrev_b32 v7, 4, v0\nv_and_b32 v6, 1, v0\nv_bfe_u32 v5, v0, 2, 2\nv_lshlrev_b32 v5, 6, v5\nv_lshl_add_u32 v5, v7, 4, v5\nv_mov_b32 v14, {SCR + 1792}")
    if A.stamping == 5: A.stamp()
    A.wait(lg="tw"); A.e(f"s_barrier\ns_cmp_lt_u32 s{sW}, 2\ns_cbranch_scc1 L2_keys")
    for r in range(9): A.lds(f"ds_read_b128 {v(SB+4*r,4)}, v{vR1 if r == 8 else vR0} offset:{1024 if r == 8 else 1168*r}", ("tr", r))
    for r in range(9):
        if r in (0, 4): A.e(f"s_movk_i32 s3, {1152*r}")
        A.wait(lg=("tr", r))
        A.e(f"buffer_store_dwordx4 {v(SB+4*r,4)}, v{vR2 if r == 8 else vX}, {s(sSt,4)}, {0 if r == 8 else 's3'} offen offset:{1024 if r == 8 else 1152*(r%4)} sc1")
    if not opt.get("fh", 0): A.items(far)
    rdy = f"buffer_store_dword v14, v{vFl}, {s(sWs,4)}, s{sFs} offen offset:128 sc1"
    A.e(f"s_cmp_lt_u32 s2, 144\ns_cbranch_scc1 L2_join\ns_waitcnt vmcnt(0)\n{rdy}\ns_cmp_lt_u32 s2, 180\ns_cbranch_scc1 L2_join\ns_branch L2_fin")
    A.label("L2_keys")
    A.e("s_cmp_ge_u32 s2, 180\ns_cbranch_scc1 L2_fin")
    if not opt.get("kearly", 0): A.e("\n".join(kld))
    if not opt.get("fh", 0): A.items(far)
    ktest = "\n".join(f"v_cndmask_b32 v{KV+2*h+k}, v{KV+2*h+k}, v{K1+k}, {s(60+2*h,2)}" for h in range(2) for k in range(2))
    ktest += f"\nv_min_u32 v12, v{KV}, v{KV+1}\nv_min_u32 v13, v{KV+2}, v{KV+3}\nv_cmp_eq_u32 s[4:5], 0, v12\nv_cmp_eq_u32 s[6:7], 0, v13\ns_nop 0\ns_or_b64 vcc, s[4:5], s[6:7]"
    A.e(f"s_waitcnt vmcnt(0)\n{ktest}\ns_cbranch_scc0 L2_p2_ok")
    poll(A, "L2_p2", f"s_or_b64 exec, s[4:5], 1\n{kld[0]}\ns_or_b64 exec, s[6:7], 1\n{kld[1]}\ns_mov_b64 exec, -1", ktest, opt.get("sl2", 1))
    merge2(A, KV, KV + 1, KV + 2, KV + 3)
    top2_lanes(A, KV, KV + 1, 12, 13, (1, 2, 4, 8), ("v_permlane16_swap_b32", "v_permlane32_swap_b32"))
    A.e(f"s_lshl3_add_u32 s3, s{sW}, {SCR + 1792}\nv_mov_b32 v12, s3\nds_write_b64 v12, {v(KV,2)}\ns_waitcnt lgkmcnt(0)")
    A.label("L2_join")
    A.stamp()
    A.vm = []; A.lg = []
    A.e("s_barrier\nds_read_b128 v[16:19], v14\nv_cmp_eq_u32 vcc, 0, v6\ns_waitcnt lgkmcnt(0)")
    merge2(A, 16, 17, 18, 19)
    A.e("v_cndmask_b32 v16, v17, v16, vcc\nv_and_b32 v3, 0x7ff, v16\nv_sub_u32 v3, 2047, v3\nv_mul_u32_u24 v4, 1152, v3")
    A.stamp()
    A.e("s_cmp_ge_u32 s2, 144\ns_cbranch_scc1 L2_red")
    A.e(f"v_add_u32 v5, v5, v4\ns_mov_b32 s59, {WS_H2}")
    H = 128
    A.e("v_and_b32 v12, 8, v0\nv_lshlrev_b32 v12, 4, v12\nv_sub_u32 v3, v5, v12")
    hld = [f"buffer_load_dwordx4 {v(H+4*i,4)}, v{3 if i == 4 else 5}, {s(sWs,4)}, s59 offen offset:{256*i} sc1" for i in range(5)]
    for x in hld: A.vmem(x, "h")
    if opt.get("fh", 0): A.items([(x[0], x[1], "fa" if k < 36 else "fb") for k, x in enumerate(far)])
    LX = SCR + 1024
    A.e(f"v_lshlrev_b32 v11, 7, v6\nv_lshl_add_u32 v13, v7, 5, v11\nv_add_u32 v13, {LX}, v13\nv_lshl_add_u32 v11, v7, 4, v11")
    A.e(f"s_lshr_b32 s3, s{sW}, 1\ns_lshl_b32 s3, s3, 8\ns_and_b32 s14, s{sW}, 1\ns_lshl_b32 s14, s14, 6\ns_add_u32 s3, s3, s14\ns_add_u32 s3, s3, {LX}\nv_add_u32 v11, s3, v11")
    A.e(f"s_mul_i32 s14, s{sW}, 1152\ns_mul_i32 s15, s2, 4608\ns_add_u32 s15, s15, s14\ns_add_u32 s15, s15, {WS_YP}\nv_lshlrev_b32 v10, 3, v0")
    A.wait(vm="h", lg="fa"); A.e(rdy)
    if A.stamping == 5: A.stamp()
    htree = [f"v_max_u32 v12, v{H}, v{H+1}"] + [f"v_max3_u32 v12, v12, v{H+2*k}, v{H+2*k+1}" for k in range(1, 10)] + ["v_cmp_eq_u32 vcc, -1, v12"]
    A.label("L2_hr")
    for n_, kk in enumerate((0, 1, 2, 3, 4, 5, 6, 7, 8, 9, 10, 11, 14, 15, 12, 13, 17, 16)):
        d = v(88 + 4 * (kk % 4), 4)
        A.e(f"{MF} {d}, {a(aF+4*kk,4)}, {v(H+4*(kk//4),4)}, {'0' if kk < 4 else d}")
        if n_ < len(htree): A.e(htree[n_])
    A.e("s_cmp_lg_u64 vcc, 0\ns_cbranch_scc1 L2_hs\ns_nop 1")
    B.label("L2_hs")
    poll(B, "L2_h", "\n".join(hld), "\n".join(htree))
    for k in range(20): B.e(f"v_min_u32 v{H+k}, -2, v{H+k}")
    B.e("s_nop 1\ns_branch L2_hr")
    for i in range(4): A.e(f"v_add_f32_dpp v{96+i}, v{100+i}, v{96+i} row_shl:4 row_mask:0xf bank_mask:0xf bound_ctrl:1")
    for i in range(4): A.e(f"v_add_f32_dpp v{88+i}, v{92+i}, v{88+i} row_shl:4 row_mask:0xf bank_mask:0xf bound_ctrl:1")
    for i in range(4): A.e(f"v_add_f32_dpp v{88+i}, v{96+i}, v{88+i} row_shl:8 row_mask:0xf bank_mask:0xf bound_ctrl:1")
    A.e("s_mov_b32 exec_lo, 0x30003\ns_mov_b32 exec_hi, 0x30003")
    A.lds("ds_write_b128 v11, v[88:91]", "x"); A.e("s_mov_b64 exec, -1"); A.wait(lg="x"); A.e("s_barrier")
    for i in range(4): A.lds(f"ds_read_b128 {v(16+4*i,4)}, v13 offset:{(i//2)*256 + (i%2)*16}", ("y", i // 2))
    A.e(f"v_mov_b32 v12, {hex(f2u(-LOG2E))}")
    A.wait(lg=("y", 0))
    for i in range(0, 8, 2): A.e(f"v_pk_mul_f32 {v(32+i,2)}, {v(16+i,2)}, v[12:13] op_sel_hi:[1,0]")
    for i in range(8): A.e(f"v_exp_f32 v{32+i}, v{32+i}")
    for i in range(0, 8, 2): A.e(f"v_pk_add_f32 {v(32+i,2)}, {v(32+i,2)}, 1.0 op_sel_hi:[1,0]")
    for i in range(8): A.e(f"v_rcp_f32 v{32+i}, v{32+i}")
    A.wait(lg=("y", 1))
    for i in range(0, 8, 2): A.e(f"v_pk_mul_f32 {v(16+i,2)}, {v(16+i,2)}, {v(32+i,2)}")
    for i in range(0, 8, 2): A.e(f"v_pk_mul_f32 {v(16+i,2)}, {v(16+i,2)}, {v(24+i,2)}")
    for q in range(4): A.e(f"v_cvt_pk_bf16_f32 v{40+q}, v{16+2*q}, v{17+2*q}")
    A.e("s_nop 1")
    for nt in range(9): A.e(f"{MF} {v(48+4*nt,4)}, v[40:43], {a(aF+72+4*nt,4)}, 0")
    A.e("s_nop 0")
    for half in range(2):
        for G_ in range(4):
            for t in range(2):
                if half == 0 and G_ == 0: continue
                A.e(f"v_mov_b32_dpp v{48+2*half+t}, v{48+4*(4*half+G_)+t} quad_perm:[0,1,2,3] row_mask:{hex(1 << G_)} bank_mask:0xf")
            if G_ < 3 and not (half == 0 and G_ == 0): A.e("s_nop 0")
    for r_ in (48, 49, 50, 51, 80, 81): A.e(f"v_min_u32 v{r_}, -2, v{r_}")
    A.e(f"buffer_store_dwordx4 v[48:51], v{vX}, {s(sWs,4)}, s15 offen sc1\ns_mov_b64 exec, 0xffff\nbuffer_store_dwordx2 v[80:81], v10, {s(sWs,4)}, s15 offen offset:1024 sc1")
    A.e("s_branch L2_fin")
    A.label("L2_red")
    A.vm = []; A.lg = []
    A.e(f"s_mov_b32 s3, {WS_YP}"); A.srd(sYp, sWs, YP_BYTES, "s3")
    A.e("s_sub_u32 s3, s2, 144\ns_mul_i32 s14, s3, 7282\ns_lshr_b32 s14, s14, 16\ns_mul_i32 s15, s14, 9\ns_sub_u32 s15, s3, s15\ns_mul_i32 s14, s14, 144")
    A.e("s_cmp_eq_u32 s15, 8\ns_cselect_b32 s56, 1, 64\ns_cselect_b32 s57, 2, 1\ns_cselect_b32 s15, 16, s15\ns_lshl3_add_u32 s14, s15, s14")
    A.e("v_bfe_u32 v7, v0, 2, 3\nv_mul_u32_u24 v7, s57, v7\nv_bfe_u32 v9, v0, 1, 1\nv_mul_u32_u24 v9, s56, v9\nv_add3_u32 v7, v7, v9, s14\nv_lshl_add_u32 v9, v7, 1, v4\nv_lshlrev_b32 v7, 2, v7")
    A.e(f"v_lshrrev_b32 v12, 7, v3\nv_bfe_u32 v13, v3, 3, 4\nv_lshl_add_u32 v13, v12, 6, v13\nv_lshlrev_b32 v13, 8, v13\ns_mov_b32 s59, {WS_F1 + 2*16*256}")
    poll(A, "L2_r", f"buffer_load_dword v12, v13, {s(sWs,4)}, s59 offen offset:128 sc1", "v_cmp_eq_u32 vcc, 0, v12")
    A.e(f"buffer_load_ushort v18, v9, {s(sOut,4)}, 0 offen sc1\nds_read_b32 v20, v7 offset:{3*2304}")
    A.e(f"v_and_b32 v6, 7, v0\nv_lshrrev_b32 v10, 3, v0\ns_lshl_b32 s14, s{sW}, 3\nv_add_u32 v10, s14, v10\nv_mul_u32_u24 v10, 4608, v10\nv_lshl_add_u32 v10, v6, 4, v10\ns_lshl_b32 s3, s3, 7\nv_add_u32 v24, s3, v10")
    for r in range(1, 5): A.e(f"v_add_u32 v{24+r}, {147456*r}, v24")
    A.e("v_and_b32 v16, 0xfffff800, v16\nv_not_b32 v12, v16\nv_ashrrev_i32 v12, 31, v12\nv_or_b32 v12, 0x80000000, v12\nv_xor_b32 v16, v16, v12")
    A.e(f"v_mul_f32 v16, {hex(f2u(-LOG2E))}, v16\nv_exp_f32 v16, v16\ns_nop 0\nv_add_f32 v16, 1.0, v16\nv_rcp_f32 v16, v16\ns_waitcnt lgkmcnt(0)\nv_mul_f32 v20, v20, v16")
    A.e(f"s_lshl_b32 s14, s{sW}, 7\ns_add_u32 s14, s14, {SCR + 2048}\nv_lshl_add_u32 v10, v6, 4, s14\nv_and_b32 v11, 31, v0\nv_lshlrev_b32 v11, 2, v11")
    if opt.get("pre3", 0):
        A.e("s_mov_b64 exec, 1")
        poll(A, "L2_p3a", f"buffer_load_dword v32, v24, {s(sYp,4)}, 0 offen sc1", "v_cmp_eq_u32 vcc, -1, v32", opt.get("sl3", 1))
        A.e("s_mov_b64 exec, -1")
    tree = "v_max3_u32 v12, v32, v33, v34\n" + "\n".join(f"v_max3_u32 v12, v12, v{35+2*i}, v{36+2*i}" for i in range(8)) + "\nv_max_u32 v12, v12, v51\nv_cmp_eq_u32 vcc, -1, v12"
    poll(A, "L2_p3", "\n".join(f"buffer_load_dwordx4 {v(32+4*r,4)}, v{24+r}, {s(sYp,4)}, 0 offen sc1" for r in range(5)), tree, 0)
    for i in range(0, 4, 2):
        A.e(f"v_pk_add_f32 {v(32+i,2)}, {v(32+i,2)}, {v(36+i,2)}\nv_pk_add_f32 {v(40+i,2)}, {v(40+i,2)}, {v(44+i,2)}\nv_pk_add_f32 {v(32+i,2)}, {v(32+i,2)}, {v(48+i,2)}\nv_pk_add_f32 {v(32+i,2)}, {v(32+i,2)}, {v(40+i,2)}")
    xsum8(A, [32, 33, 34, 35], 12)
    A.e("ds_write_b128 v10, v[32:35]\ns_waitcnt lgkmcnt(0)\ns_barrier")
    A.e(f"s_cmp_lg_u32 s{sW}, 0\ns_cbranch_scc1 L2_fin")
    for k in range(4): A.e(f"ds_read_b32 v{32+k}, v11 offset:{SCR + 2048 + 128*k}")
    A.e("v_lshlrev_b32 v12, 16, v18\ns_mov_b32 exec_hi, 0\ns_waitcnt lgkmcnt(0)")
    A.e("v_pk_add_f32 v[32:33], v[32:33], v[34:35]\nv_add_f32 v32, v32, v33\nv_fmac_f32 v12, v32, v20\nv_cvt_pk_bf16_f32 v12, v12, v12")
    A.e(f"buffer_store_short v12, v9, {s(sOut,4)}, 0 offen{opt.get('finf', ' sc1')}")
    A.label("L2_fin")
    if A.stamping: A.e("s_mov_b64 exec, -1")
    A.stamp()
    if opt.get("enc"):
        ea, eb, clk = opt["enc"]; o = 0 if clk else 1
        A.e("s_cmp_lg_u32 s2, 150\ns_cbranch_scc1 L2_noenc")
        if ea < 0:
            A.e(f"s_load_dwordx2 s[60:61], s[0:1], 112\ns_waitcnt lgkmcnt(0)\ns_mov_b32 s62, 0x10000000\ns_mov_b32 s63, 0x20000\nv_mov_b32 v2, {WS_STAMP + 150*1024 + 4}\nbuffer_load_dword v1, v2, s[60:63], 0 offen\ns_waitcnt vmcnt(0)")
        A.e(f"v_accvgpr_read_b32 v1, a61\ns_nop 0\nv_readlane_b32 s56, v1, {2*eb+o}\nv_readlane_b32 s57, v1, {2*ea+o}\ns_nop 0\ns_sub_u32 s56, s56, s57")
        A.e("s_lshr_b32 s56, s56, 3" if clk else "s_lshl_b32 s56, s56, 2")
        A.e("s_min_u32 s56, s56, 100000\ns_mov_b32 s57, s93")
        A.label("L2_enc")
        A.e("s_memrealtime s[94:95]\ns_waitcnt lgkmcnt(0)\ns_sub_u32 s58, s94, s57\ns_cmp_lt_u32 s58, s56\ns_cbranch_scc1 L2_enc")
        A.label("L2_noenc")
    else: A.stamp_flush(1, WS_STAMP, sW)

OPT = {}
def gen_k2(opt={}):
    OPT.clear(); OPT.update(opt)
    A = Asm(); A.stamp_agpr = 60
    A.label("L2_begin")
    A.e("s_getpc_b64 s[98:99]")
    A.e("s_cmp_ge_u32 s2, 256\ns_cbranch_scc1 L2_end")
    A.stamp()
    for d, off in ((sXi, 0), (sC, 80), (sWm, 88), (12, 112), (sDb, 104)): A.e(f"s_load_dwordx2 {s(d,2)}, s[0:1], {off}")
    vTid = 155
    tch = opt.get("touch", "cq")
    A.e(f"s_and_b32 s3, s2, 7\ns_lshr_b32 s14, s2, 3\nv_mov_b32 v{vTid}, v0\nv_lshrrev_b32 v10, 6, v0\nv_and_b32 v0, 63, v0")
    if "c" in tch:
        A.e(f"s_lshl_b32 s15, s14, 9\nv_lshl_add_u32 v13, v10, 7, s15\nv_lshl_add_u32 v13, v0, 14, v13\nv_min_u32 v13, L2_codeend-L2_begin-8, v13\ns_mov_b64 exec, 31")
        A.vmem(f"global_load_dword a{aDum}, v13, s[98:99]"); A.e("s_mov_b64 exec, -1")
    A.e(f"v_readfirstlane_b32 s{sW}, v10")
    A.e(f"s_and_b32 s{sG}, s3, 3\ns_and_b32 s15, s14, 3\ns_lshl2_add_u32 s{sG}, s{sG}, s15")
    A.e(f"s_lshr_b32 s{sTb}, s3, 2\ns_lshr_b32 s15, s14, 2\ns_lshl3_add_u32 s{sTb}, s{sTb}, s15\ns_lshl4_add_u32 s{sT8}, s{sTb}, s{sG}")
    sP, sSl, sHf = sCnt, sPass, sW9
    A.e(f"s_mul_i32 s{sP}, s3, 27\ns_max_u32 s14, s14, 5\ns_add_u32 s{sP}, s{sP}, s14\ns_sub_u32 s{sP}, s{sP}, 5\ns_lshr_b32 s{sHf}, s3, 2\ns_mul_i32 s15, s{sHf}, 108\ns_sub_u32 s{sSl}, s{sP}, s15")
    item_addr(A, 288, 288, 256)
    vW4, vW1 = 153, 154
    A.e(f"v_and_b32 v4, 0xfc, v{vTid}\nv_and_b32 v7, 3, v0\nv_mul_u32_u24 v3, 6912, v4\nv_lshl_add_u32 v{vW4}, v7, 4, v3")
    A.e(f"s_mul_i32 s3, s{sT8}, 9216\ns_movk_i32 s{sXi+2}, 9216\ns_mov_b32 s{sXi+3}, 0x20000\ns_mov_b32 s{sWm+3}, s{sXi+3}")
    A.e(f"v_lshlrev_b32 v{vX}, 4, v0\ns_mov_b32 s{sWs+2}, {WS_SIZE}\ns_mov_b32 s{sWs+3}, s{sXi+3}\ns_movk_i32 s{sDb+2}, 256\ns_mov_b32 s{sDb+3}, s{sXi+3}")
    A.e(f"s_lshl_b32 s14, s{sSl}, 6\ns_sub_u32 s{sWm+2}, {288*6912}, s14\ns_cmp_ge_u32 s2, 40\ns_cselect_b32 s{sWm+2}, s{sWm+2}, 0\ns_mul_i32 s15, s{sHf}, {288*6912}\ns_add_u32 s14, s14, s15")
    A.e("s_waitcnt lgkmcnt(0)")
    A.fstamp()
    A.e(f"s_add_u32 s{sXi}, s{sXi}, s3\ns_addc_u32 s{sXi+1}, s{sXi+1}, 0")
    for pre, ld in xi_loads(128): A.item(ld)
    A.e(f"s_add_u32 s{sWm}, s{sWm}, s14\ns_addc_u32 s{sWm+1}, s{sWm+1}, 0")
    ncl = opt.get("ncl", 8); nst = 16 // ncl
    A.e(f"s_mov_b64 {s(sWs,2)}, s[12:13]\ns_cmp_ge_u32 s2, {ncl}\ns_cbranch_scc1 L2_noclr")
    assert ncl == 8
    for i in range(4): A.e(f"v_mov_b32 v{52+i}, -1\nv_mov_b32 v{56+i}, 0")
    A.e(f"s_lshl2_add_u32 s15, s2, s{sW}\ns_lshl_b32 s3, s15, 10\nbuffer_store_dwordx4 v[52:55], v{vX}, {s(sWs,4)}, s3 offen sc1")
    A.e(f"v_lshrrev_b32 v13, 3, v0\nv_mul_u32_u24 v13, {KS - 128}, v13\nv_add_u32 v13, v13, v{vX}\ns_mul_i32 s3, s15, {8*KS}\ns_add_u32 s3, s3, {WS_KEY}\nbuffer_store_dwordx4 v[56:59], v13, {s(sWs,4)}, s3 offen sc1")
    A.label("L2_noclr")
    nclr = len(A.vm)
    WM, CC = 128, 148
    nw0 = opt.get("nw0", 4)
    def wload(i):
        if 0 < i < 4: A.e(f"s_movk_i32 s3, {6912*i}")
        A.vmem(f"buffer_load_dwordx4 {v(WM+4*i,4)}, v{vW4 if i < 4 else vW1}, {s(sWm,4)}, {'s3' if 0 < i < 4 else 0} offen", ("w", i))
    for i in range(min(nw0, 4)): wload(i)
    A.fstamp()
    A.e(f"v_lshrrev_b32 v3, 2, v3\nv_lshl_add_u32 v3, v7, 4, v3\nv_add_u32 v{vW1}, {256*6912}, v3\nv_lshrrev_b32 v3, 1, v4\nv_lshlrev_b32 v4, 1, v4")
    A.e(f"s_mul_i32 s3, s{sHf}, 576"); A.srd(sC, sC, 576, "s3")
    A.vmem(f"buffer_load_dwordx2 {v(CC,2)}, v4, {s(sC,4)}, 0 offen", "c")
    for i in range(4): A.e(f"v_mov_b32 v{WM+16+i}, 0")
    A.e(f"v_mov_b32 v{CC+2}, 0\ns_cmp_ge_u32 s{sW}, 2\ns_cbranch_scc1 L2_w23")
    A.e(f"buffer_load_dwordx4 {v(WM+16,4)}, v{vW1}, {s(sWm,4)}, 0 offen\nbuffer_load_ushort v{CC+2}, v3, {s(sC,4)}, 0 offen offset:512")
    A.label("L2_w23")
    A.e("s_load_dwordx8 s[4:11], s[0:1], 8")
    for d, off in ((sWg, 56), (sWu, 64), (sWd, 72), (sOut, 96), (sWr, 48)): A.e(f"s_load_dwordx2 {s(d,2)}, s[0:1], {off}")
    B = Asm()
    A.fstamp()
    F = 156
    vL7, vSt, vSw, vXs, vYc, vMw, vL4, vXf, vMs = F, F + 1, F + 2, F + 3, F + 4, F + 5, F + 6, F + 7, F + 8
    SA, SD, SV = F + 10, F + 11, F + 12
    A.e(f"s_cmp_eq_u32 s{sW}, 0\ns_cselect_b32 s3, 0, 0x40000000\nv_mul_u32_u24 v{vL7}, {256//ncl}, v0\nv_or_b32 v{vL7}, s3, v{vL7}\ns_mul_i32 s{sW4}, s{sW}, {4*PIECE}\ns_add_u32 s{sW4}, s{sW4}, {RING}\nv_lshl_add_u32 v{vKV}, v10, 12, v{vX}")
    A.e(f"v_lshrrev_b32 v13, 5, v0\nv_lshl_add_u32 v13, v10, 1, v13\nv_lshlrev_b32 v13, 15, v13\nv_and_b32 v14, 31, v0\nv_lshl_add_u32 v{vWq}, v14, 4, v13")
    for i in range(4): A.e(f"v_mov_b32 v{56+i}, 0\nv_mov_b32 v{60+i}, -1")
    A.e(f"s_and_b32 s14, s{sTb}, 7\ns_lshl2_add_u32 s14, s14, s{sW}\nv_lshrrev_b32 v13, 2, v0\nv_lshl_add_u32 v13, v13, 5, s14\nv_lshlrev_b32 v13, 13, v13\nv_lshl_add_u32 v13, v7, 7, v13")
    A.e("s_waitcnt lgkmcnt(0)")
    A.e(f"s_lshl_b32 s3, s{sG}, 9"); A.srd(sWq, 8, 0, "s3"); A.e(f"s_sub_u32 s{sWq+2}, {576*8192}, s3")
    if True:
        nq = opt.get("nq", 16)
        A.e(f"s_mov_b64 exec, {hex((1 << nq) - 1)}" if nq <= 31 else f"s_mov_b32 exec_hi, {hex((1 << (nq - 32)) - 1)}")
        A.vmem(f"buffer_load_dword a{aDum}, v13, {s(sWq,4)}, 0 offen", "tq"); A.e("s_mov_b64 exec, -1")
    A.e(f"s_mov_b32 s{sWr+2}, 1152\ns_mov_b32 s{sWr+3}, 0x20000")
    A.stamp()
    ST = SCR + 256; MP = RING
    sF1, sYc, sXs, sXf, sMl, sKy, sMul, sAdd = 56, 57, 58, 59, 100, 101, sBase, sDel
    A.e(f"v_and_b32 v14, 7, v0\nv_lshlrev_b32 v{vSt}, 4, v14\nv_add_u32 v{vSt}, {ST}, v{vSt}\nv_lshl_add_u32 v{vSw}, v10, 2, v{vSt}")
    A.e(f"s_mul_i32 s3, s{sW}, {18*256}\nv_lshl_add_u32 v14, v14, 4, s3\nv_lshrrev_b32 v15, 3, v0\nv_lshl_add_u32 v{vXs}, v15, 8, v14")
    A.e(f"s_lshr_b32 s3, s{sT8}, 1\ns_mul_i32 s3, s3, 18432\ns_and_b32 s14, s{sT8}, 1\ns_lshl_b32 s14, s14, 7\ns_add_u32 s3, s3, s14\ns_add_u32 s{sXs}, s3, {WS_XN}")
    A.e(f"s_lshl_b32 s3, s{sTb}, 2\ns_add_u32 s3, s3, s{sW}\ns_lshl_b32 s14, s3, 4\ns_add_u32 s14, s14, s{sG}\ns_lshl_b32 s14, s14, 8\ns_add_u32 s{sF1}, s14, {WS_F1}")
    A.e(f"s_mul_i32 s14, s3, {4*KS}\ns_add_u32 s{sXf}, s14, {WS_KEY}\nv_and_b32 v14, 3, v0\nv_mul_u32_u24 v{vXf}, {KS}, v14")
    A.e(f"s_mul_i32 s14, s3, 36864\ns_add_u32 s14, s14, {WS_XN}"); A.srd(sXn, 12, 36864, "s14")
    A.e(f"s_mul_i32 s15, s2, 4608\ns_mul_i32 s14, s{sW}, 1152\ns_add_u32 s15, s15, s14\ns_add_u32 s{sYc}, s15, {WS_YP}")
    A.e(f"s_cmp_ge_u32 s2, 144\ns_cselect_b32 s14, 0x40000000, 0\nv_or_b32 v{vYc}, s14, v{vX}")
    A.e(f"v_lshrrev_b32 v12, 4, v{vTid}\nv_lshlrev_b32 v12, 7, v12\nv_lshl_add_u32 v{vMw}, v7, 5, v12\nv_lshlrev_b32 v{vL4}, 2, v0")
    A.e(f"s_mul_i32 s3, s{sSl}, 3641\ns_lshr_b32 s3, s3, 16\ns_mov_b32 s{sMul}, 1.0\ns_mov_b32 s{sAdd}, 0\ns_cmp_lt_u32 s3, 2\ns_cselect_b32 s{sMul}, {hex(f2u(C0))}, s{sMul}")
    A.e(f"s_cmp_eq_u32 s3, 1\ns_cselect_b32 s{sAdd}, {hex(f2u(C0))}, s{sAdd}\ns_cmp_eq_u32 s3, 4\ns_cselect_b32 s{sAdd}, 1.0, s{sAdd}\ns_cmp_eq_u32 s{sHf}, 0\ns_cselect_b32 s{sAdd}, s{sAdd}, 0")
    A.e(f"s_lshl_b32 s{sMl}, s{sP}, 7\ns_mul_i32 s14, s{sT8}, {KS}\ns_add_u32 s{sKy}, s14, {WS_KEY}")
    A.e(f"s_mul_i32 s3, s{sW}, 1152\nv_add_u32 v{SA}, s3, v{vX}")
    A.e(f"s_and_b32 s3, s{sW}, 1\ns_mul_i32 s3, s3, {36*64}\ns_cmp_lt_u32 s{sW}, 2\ns_cselect_b32 s14, 32, 0\ns_add_u32 s3, s3, s14\ns_add_u32 s3, s3, {ASB}")
    A.e(f"v_lshrrev_b32 v14, 1, v0\nv_lshl_add_u32 v14, v14, 6, s3\nv_and_b32 v15, 1, v0\nv_lshl_add_u32 v{SD}, v15, 4, v14")
    A.e(f"s_cmp_eq_u32 s{sW}, 1\ns_cselect_b32 s3, 40, 256\ns_cmp_ge_u32 s2, s3\ns_cselect_b32 s3, 0, 0x40000000\nv_or_b32 v{vMs}, s3, v{vL4}")
    for i in range(4): A.e(f"v_mov_b32 v{SV+4+i}, 0\nv_mov_b32 v{SV+12+i}, 0")
    A.e(f"s_lshl_b32 s3, s{sTb}, 2\ns_add_u32 s3, s3, s{sW}\nv_mov_b32 v12, v10")
    A.e(f"s_mul_i32 s14, s3, {4*147456}\ns_mul_i32 s15, s{sG}, 9216\ns_add_u32 s14, s14, s15\ns_add_u32 s14, s14, {WS_PART}"); A.srd(sPt, 12, 0, "s14"); A.e(f"s_sub_u32 s{sPt+2}, {4*147456}, s15")
    if opt.get("x_nostore"): A.e(f"s_mov_b32 s{sPt+2}, 0")
    A.e(f"s_lshl_b32 s3, s{sG}, 19"); A.srd(sK, 4, 524288, "s3"); A.srd(sV, 6, 524288, "s3")
    A.e(f"s_mul_i32 s3, s{sG}, 294912"); A.srd(sWo, 10, 294912, "s3")
    A.e(f"s_mov_b64 s[4:5], {s(sWg,2)}\ns_mov_b64 s[6:7], {s(sWu,2)}\ns_mov_b64 s[8:9], {s(sWd,2)}")
    A.e(f"s_mov_b32 s{sPass}, 0\ns_mul_i32 s{sW9}, s{sW}, 9216")
    A.e("s_min_u32 s15, s2, 143\ns_and_b32 s3, s15, 7\ns_mul_i32 s3, s3, 18\ns_lshr_b32 s15, s15, 3\ns_add_u32 s15, s15, s3\ns_lshl_b32 s3, s15, 6")
    A.srd(sWg, sWg, 0, "s3"); A.srd(sWu, sWu, 0, "s3")
    A.e(f"s_sub_u32 s14, {576*9216}, s3\ns_mul_i32 s3, s15, 36864"); A.srd(sWd, sWd, 0, "s3")
    A.e(f"s_cmp_lt_u32 s2, 144\ns_cselect_b32 s{sWg+2}, s14, 0\ns_cselect_b32 s{sWu+2}, s14, 0\ns_cselect_b32 s{sWd+2}, 36864, 0")
    A.e(f"s_mov_b32 s{sOut+2}, 2359296\ns_mov_b32 s{sOut+3}, 0x20000")

    A.e(f"v_lshrrev_b32 v13, 4, v0\nv_lshlrev_b32 v{vAS}, 6, v13")
    A.e(f"v_lshrrev_b32 v14, 2, v0\nv_mul_u32_u24 v14, {PIECE}, v14\nv_add_u32 v14, {RING}, v14")
    A.e(f"v_and_b32 v15, 1, v0\nv_lshlrev_b32 v15, 4, v15\nv_add_u32 v{vT}, v14, v15\nv_and_b32 v15, 2, v0\nv_lshl_add_u32 v{vT}, v15, 2, v{vT}\nv_add_u32 v{vT2}, {2*SLOT}, v{vT}")
    A.e(f"v_lshrrev_b32 v14, 3, v0\nv_lshlrev_b32 v14, 2, v14\nv_add_u32 v14, v14, v12\nv_mul_u32_u24 v14, {4*1152}, v14\nv_and_b32 v15, 7, v0\nv_lshl_add_u32 v{vWo}, v15, 4, v14")
    A.e(f"v_lshlrev_b32 v{vPt}, 4, v15\nv_lshl_add_u32 v{vPt}, v13, 7, v{vPt}\nv_bfe_u32 v14, v0, 3, 1\nv_mul_u32_u24 v14, 147456, v14\nv_add_u32 v{vPt}, v{vPt}, v14")
    def init_kv_addr():
        A.e(f"v_lshrrev_b32 v14, 2, v0\nv_mul_u32_u24 v14, {PIECE}, v14\nv_and_b32 v15, 3, v0\nv_lshl_add_u32 v14, v15, 3, v14\nv_add_u32 v{vV}, {RING + 2*SLOT + HALF}, v14")
        A.e(f"v_and_b32 v14, 15, v0\nv_mul_u32_u24 v14, {PIECE}, v14\nv_lshrrev_b32 v15, 4, v0\nv_lshl_add_u32 v14, v15, 4, v14\nv_add_u32 v{vK}, {RING + 2*SLOT}, v14")
    init_kv_addr()
    A.e(f"v_and_b32 v14, 1, v0\nv_cmp_eq_u32 vcc, 0, v14\nv_mov_b32 v{vIdx}, 0xeeeeeeee\nv_mov_b32 v15, 0x44444444\nv_cndmask_b32 v{vIdx}, v{vIdx}, v15, vcc")
    A.e(f"v_and_b32 v14, {14 if opt.get('ones2', 0) else 2}, v0\nv_cmp_eq_u32 vcc, 0, v14\nv_mov_b32 v15, 0x3f803f80\ns_nop 0\nv_cndmask_b32 v15, 0, v15, vcc")
    for i in range(4): A.e(f"v_accvgpr_write_b32 a{aOne+i}, v15\nv_accvgpr_write_b32 a{56+i}, -1")
    for i in range(16): A.e(f"v_accvgpr_write_b32 a{aL+i}, 0")
    A.e(f"s_cmp_ge_u32 s2, {ncl}\ns_cbranch_scc1 L2_noclr2")
    A.e(f"s_mul_i32 s14, s2, {256//ncl}\ns_mov_b64 exec, 1\ns_waitcnt vmcnt({len(A.vm) - nclr})\ns_barrier\nbuffer_store_dword v60, v{vL7}, {s(sDb,4)}, s14 offen sc1\ns_mov_b64 exec, -1")
    A.label("L2_noclr2")
    A.stamp()
    XF, MA, TF = 24, 16, 48
    A.wait(vm="xi"); A.fstamp()
    for i in range(nw0, 4): wload(i)
    for q in range(12): A.e(f"v_lshlrev_b32 v{XF+2*q}, 16, v{XR+q}\nv_and_b32 v{XF+2*q+1}, 0xffff0000, v{XR+q}")
    dot24p(A, TF, 12, XF, None); xsum8(A, [TF], TF + 2)
    A.e(f"v_mul_f32 v{TF}, {hex(f2u(1/144))}, v{TF}")
    for i in range(0, 24, 2): A.e(f"v_pk_add_f32 {v(XF+i,2)}, {v(XF+i,2)}, {v(TF,2)} op_sel_hi:[1,0] neg_lo:[0,1] neg_hi:[0,1]")
    dot24p(A, TF + 1, 12, XF, XF); xsum8(A, [TF + 1], TF + 2)
    A.lds(f"ds_write_b32 v{vSw}, v{TF}", "f"); A.lds(f"ds_write_b32 v{vSw}, v{TF+1} offset:128", "f")
    A.wait(lg="f"); A.e("s_barrier")
    A.lds(f"ds_read_b128 {v(MA,4)}, v{vSt}", "g0"); A.lds(f"ds_read_b128 {v(MA+4,4)}, v{vSt} offset:128", "g1")
    A.e(f"s_add_u32 s14, s{sXs}, 4096")
    A.wait(lg="g0")
    A.e(f"v_add_f32 v12, v{MA}, v{MA+1}\nv_add_f32 v13, v{MA+2}, v{MA+3}\nv_add_f32 v12, v12, v13\nv_mul_f32 v12, 0x3e800000, v12")
    for k in range(4): A.e(f"v_sub_f32 v{MA+k}, v{MA+k}, v12")
    A.e(f"v_sub_f32 v{TF}, v{TF}, v12\nv_mul_f32 v13, v{MA}, v{MA}")
    for k in range(1, 4): A.e(f"v_fmac_f32 v13, v{MA+k}, v{MA+k}")
    A.wait(lg="g1")
    A.e(f"v_add_f32 v14, v{MA+4}, v{MA+5}\nv_add_f32 v15, v{MA+6}, v{MA+7}\nv_add_f32 v14, v14, v15\nv_fmac_f32 v14, {hex(f2u(144.0))}, v13")
    A.e(f"v_mov_b32 v12, {hex(f2u(1e-5))}\nv_fmac_f32 v12, {hex(f2u(1/576))}, v14\nv_rsq_f32 v12, v12\ns_nop 0\nv_mul_f32 v{TF}, v{TF}, v12")
    for i in range(3):
        for q in range(0, 8, 2): A.e(f"v_pk_fma_f32 {v(XF+8*i+q,2)}, {v(XF+8*i+q,2)}, v[12:13], {v(TF,2)} op_sel_hi:[1,0,0]")
        for q in range(4): A.e(f"v_cvt_pk_f16_f32 v{XR+4*i+q}, v{XF+8*i+2*q}, v{XF+8*i+2*q+1}")
        if i == 2: A.e("s_mov_b64 exec, 0xffff")
        A.vmem(f"buffer_store_dwordx4 {v(XR+4*i,4)}, v{vXs}, {s(sWs,4)}, {'s14' if i == 2 else s(sXs)} offen offset:{2048*(i%2)} sc1")
    A.fstamp()
    A.vmem(f"buffer_store_dwordx4 v[56:59], v{vX}, {s(sWs,4)}, s{sF1} offen sc1")
    A.e("s_mov_b64 exec, 0xff")
    A.vmem(f"buffer_store_dwordx4 v[60:63], v{vYc}, {s(sWs,4)}, s{sYc} offen offset:1024 sc1"); A.e("s_mov_b64 exec, -1")
    A.vmem(f"buffer_store_dwordx4 v[60:63], v{vYc}, {s(sWs,4)}, s{sYc} offen sc1"); A.e(f"s_mov_b64 exec, {(1 << ncl) - 1}")
    p0 = f"buffer_load_dword v{TF+3}, v{vL7}, {s(sDb,4)}, 0 offen sc1"
    A.vmem(p0, "p0"); A.e("s_mov_b64 exec, -1")
    A.stamp()
    A.e(f"s_mul_i32 s3, s{sT8}, 147456\ns_add_u32 s3, s3, {WS_PART + 4096}"); A.srd(sPr, 12, 147456 - 4096, "s3")
    A.wait(vm="tq")
    CF = 40
    A.e(f"v_lshlrev_b32 v{CF}, 16, v{CC}\nv_and_b32 v{CF+1}, 0xffff0000, v{CC}\nv_lshlrev_b32 v{CF+2}, 16, v{CC+1}\nv_and_b32 v{CF+3}, 0xffff0000, v{CC+1}\nv_lshlrev_b32 v{CF+4}, 16, v{CC+2}")
    for i in range(5): A.e(f"v_mul_f32 v{MA+i}, {hex(f2u(-LOG2E))}, v{CF+i}")
    for i in range(5): A.e(f"v_exp_f32 v{MA+i}, v{MA+i}")
    for i in range(5): A.e(f"v_add_f32 v{MA+i}, 1.0, v{MA+i}")
    for i in range(5): A.e(f"v_rcp_f32 v{MA+i}, v{MA+i}")
    for i in range(5): A.e(f"v_mul_f32 v{XF+2*i}, v{CF+i}, v{MA+i}")
    for i in range(5):
        A.wait(vm=("w", i))
        for q in range(4):
            t = 12 + 2 * (q % 2)
            A.e(f"v_lshlrev_b32 v{t}, 16, v{WM+4*i+q}\nv_and_b32 v{t+1}, 0xffff0000, v{WM+4*i+q}")
            if i == 0: A.e(f"v_pk_mul_f32 {v(MA+2*q,2)}, {v(t,2)}, {v(XF,2)} op_sel_hi:[1,0]")
            else: A.e(f"v_pk_fma_f32 {v(MA+2*q,2)}, {v(t,2)}, {v(XF+2*i,2)}, {v(MA+2*q,2)} op_sel_hi:[1,0,1]")
    for sh in (4, 8):
        for q in range(8): A.e(f"v_add_f32_dpp v{MA+q}, v{MA+q}, v{MA+q} row_ror:{sh} row_mask:0xf bank_mask:0xf")
    A.e("s_mov_b32 exec_lo, 0xf000f\ns_mov_b32 exec_hi, 0xf000f")
    A.lds(f"ds_write_b128 v{vMw}, {v(MA,4)} offset:{MP}", "f"); A.lds(f"ds_write_b128 v{vMw}, {v(MA+4,4)} offset:{MP+16}", "f")
    A.e(f"s_mov_b64 exec, {(1 << ncl) - 1}")
    A.fstamp(); A.wait(vm="p0"); A.fstamp()
    A.e(f"v_cmp_eq_u32 vcc, s{sW}, v{TF+3}\ns_nop 0\ns_cmp_lg_u64 vcc, 0\ns_cbranch_scc1 L2_p0s"); A.label("L2_p0r")
    B.label("L2_p0s"); poll(B, "L2_p0", p0, f"v_cmp_eq_u32 vcc, 0, v{TF+3}"); B.e("s_branch L2_p0r")
    A.e("s_mov_b64 exec, 1"); A.wait(lg="f"); A.e("s_barrier")
    A.vmem(f"buffer_store_dword v60, v{vL7}, {s(sWs,4)}, s{sKy} offen sc1"); A.e("s_mov_b64 exec, -1")
    for i in range(8): A.lds(f"ds_read_b32 v{XF+i}, v{vL4} offset:{MP + 256*i}", "g2")
    A.wait(lg="g2")
    A.e(f"v_pk_add_f32 {v(XF,2)}, {v(XF,2)}, {v(XF+2,2)}\nv_pk_add_f32 {v(XF+4,2)}, {v(XF+4,2)}, {v(XF+6,2)}\nv_pk_add_f32 {v(XF,2)}, {v(XF,2)}, {v(XF+4,2)}\nv_add_f32 v52, v{XF}, v{XF+1}")
    A.e(f"v_mov_b32 v53, v52\nv_mov_b32 v54, s{sAdd}\ns_nop 0\nv_permlane32_swap_b32 v53, v52\nv_add_f32 v52, v52, v53")
    A.e(f"v_fma_f32 v52, v52, s{sMul}, v54\nv_min_u32 v52, -2, v52\ns_mov_b32 exec_hi, 0")
    A.vmem(f"buffer_store_dword v52, v{vMs}, {s(sWs,4)}, s{sMl} offen sc1"); A.e("s_mov_b64 exec, -1")
    A.fstamp()
    for c in range(opt.get("nl0", 2)): emit_dma(A, dmaL(c))
    A.stamp()
    if opt.get("walk", 1):
        A.e(f"s_mov_b64 exec, 0\ns_cmp_eq_u32 s{sW}, 0\ns_cbranch_scc1 L2_pad0\ns_cmp_eq_u32 s{sW}, 1\ns_cbranch_scc1 L2_pad1\ns_cmp_eq_u32 s{sW}, 2\ns_cbranch_scc1 L2_pad2\ns_branch L2_pad3")
        A.e(".p2align 12"); A.label("L2_walkret")
    A.e("s_mov_b64 exec, 15")
    poll(A, "L2_px", f"buffer_load_dword v13, v{vXf}, {s(sWs,4)}, s{sXf} offen sc1", "v_cmp_eq_u32 vcc, 0, v13")
    A.e("s_mov_b64 exec, -1")
    A.stamp()
    A.e("s_movk_i32 s14, 13824")
    sweep = [f"buffer_load_dwordx4 {v(SV+8*h,4)}, v{SA}, {s(sWs,4)}, {'s14' if h else 0} offen sc1" for h in range(2)]
    sweep += [("s_mov_b64 exec, 0xff\n" if h == 0 else "") + f"buffer_load_dwordx4 {v(SV+8*h+4,4)}, v{SA}, {s(sWs,4)}, {'s14' if h else 0} offen offset:1024 sc1" + ("\ns_mov_b64 exec, -1" if h else "") for h in range(2)]
    tree = f"v_max_u32 v13, v{SV}, v{SV+1}\n" + "\n".join(f"v_max3_u32 v13, v13, v{SV+2*k}, v{SV+2*k+1}" for k in range(1, 8)) + "\nv_cmp_eq_u32 vcc, -1, v13"
    for x in sweep: A.vmem(x, "sw")
    for c in range(2):
        for pre, ld in xload(c): A.items(pre + [ld])
    A.fstamp(); A.wait(vm="sw"); A.fstamp()
    A.e(tree + "\ns_nop 0\ns_cmp_lg_u64 vcc, 0\ns_cbranch_scc1 L2_pms"); A.label("L2_pmr")
    B.label("L2_pms"); poll(B, "L2_pm", "\n".join(sweep), tree); B.e("s_branch L2_pmr")
    A.fstamp()
    for k in range(0, 8, 2): A.e(f"v_pk_add_f32 {v(SV+k,2)}, {v(SV+k,2)}, {v(SV+8+k,2)}")
    A.lds(f"ds_write_b128 v{SD}, {v(SV,4)}", "mw"); A.e("s_mov_b64 exec, 0xff"); A.lds(f"ds_write_b128 v{SD}, {v(SV+4,4)} offset:2048", "mw"); A.e("s_mov_b64 exec, -1")
    if opt.get("nl0", 2) < 2: emit_dma(A, dmaL(1))
    for pre, ld in xload(2): A.items(pre + [ld])
    A.wait(lg="mw"); A.e("s_barrier")
    A.items(as_reads(0, 0) + as_reads(0, 1))
    A.wait(vm=("X", 0))
    for q in range(4):
        A.wait(lg=("AS", 0, q)); A.items(modulate(0, q))
        if q < 3: A.items(as_reads(0, q + 2) if q < 2 else as_reads(1, 0))
        if q == 2:
            for G in range(QD): A.items(qreads(G))
    A.stamp()
    A.wait(lg=("A", 0))
    Sc, leftover, vmg = gen_qproj(A)
    N = len(Sc.mf)
    T = Asm(); pf_addr(T)
    rest = Sc.fill([(0, x) for x in T.L], 512, N); assert not rest
    rest = Sc.fill([(0, x) for x in kreads(0, ("K", 0))], N - 4 * QD, N); assert not rest
    pend = []
    for t2 in range(8):
        cs = [qconvert(2 * (t2 // 4) + n, t2 % 4) for n in range(2)]
        pend += [(512 + 8 * t2 + 7 + 5, x) for x in cs[0][0] + cs[1][0]]
    pend = Sc.fill(pend, 512, N)
    late = len(pend) > 32
    for c in range(9):
        Sc.emit(A, 64 * c, 64 * c + 64)
        if A.stamping == 4 or c in (3, 8): A.stamp()
    A.e(f"s_mul_i32 s3, s{sT8}, 9216\ns_add_u32 s3, s3, {WS_H2}"); A.srd(sH2, sWs, 9216, "s3")
    emit_dma(A, leftover)
    if late: A.items([x for _, x in pend[:-32]]); pend = pend[-32:]
    for t in range(4):
        for j in range(2): A.items(qconvert(j, t)[1])
    A.items([x for _, x in pend]); A.e("s_nop 0")
    for t in range(4):
        for j in range(2, 4): A.items(qconvert(j, t)[1])
    A.wait(lg=(("K", 0), 0))
    for j in range(4):
        for t in range(4):
            d = S0 + 4 * j
            A.e(f"{MF} {v(d,4)}, {a(KF(0,t),4)}, {v(Q(j,t),4)}, {'0' if t == 0 else v(d,4)}")
    A.e("s_nop 1")
    for j in range(4):
        d = S0 + 4 * j
        A.e(f"v_max3_f32 v{d}, v{d}, v{d+1}, v{d+2}\nv_max_f32 v{d}, v{d}, v{d+3}")
    xmax_to_negm(A, [S0 + 4 * j for j in range(4)], BIAS)
    NIT = opt.get("nit", 11)
    A.label("L2_entry")
    A.e(f"s_mov_b32 s{sBase}, s{sW4}\ns_mov_b32 s{sDel}, {-2*SLOT}\ns_mov_b32 s{sCnt}, {NIT}\ns_mov_b32 s{sT}, {2*16384}")
    A.wait(vm=("L", 10)); A.e("s_barrier")
    A.stamp()
    pair = opt.get("pair", 1)
    Sf = gen_stage(0, "first", dma_kv_dyn(3, 1), opt, bar=0 if pair else 2)
    rest = Sf.fill([(0, f"v_mov_b32 v{O(3,0)+i}, 0") for i in range(32)], 33, 132)
    for _, x in rest: Sf.va[17].append(x)
    Sf.emit(A)
    tcode = []
    def body(i):
        if pair == 1:
            gen_stage(i, "A", dma_kv_dyn(i + 3, 0) + dma_kv_dyn(i + 4, 1), opt, bar=0, dgap=1).emit(A)
            Sb = gen_stage(i + 1, "B", [], opt, bar=0)
        elif pair == 2:
            gen_stage(i, "A", dma_kv_dyn(i + 3, 0), opt, bar=0, dgap=1).emit(A)
            Sb = gen_stage(i + 1, "B", dma_kv_dyn(i + 4, 1), opt, bar=0)
        else:
            gen_stage(i, "A", dma_kv_dyn(i + 3, 0), opt).emit(A)
            Sb = gen_stage(i + 1, "B", dma_kv_dyn(i + 4, 1), opt)
        Sb.sh[128].append(f"s_sub_u32 s{sCnt}, s{sCnt}, 1"); Sb.sh[129].append(f"s_cmp_lg_u32 s{sCnt}, 0")
        Sb.emit(A)
    if opt.get("align_loop", 1): A.e(".p2align 5")
    A.label("L2_loop")
    n0 = len(A.L); body(1); n1 = len(A.L); body(3)
    assert A.L[n0:n1] == A.L[n1:], "loop body not in steady state"
    assert lint(A.L[n0:], "loop2x") == 0
    del A.L[n1:]
    def shift(t, d):
        if isinstance(t, tuple) and t[0] in ("L", "V"): return (t[0], t[1] + d)
        if isinstance(t, tuple) and isinstance(t[0], tuple): return ((t[0][0], t[0][1] + d), t[1])
        return t
    A.vm = [shift(t, 2 * NIT - 4) for t in A.vm]; A.lg = [shift(t, 2 * NIT - 4) for t in A.lg]
    A.e("s_cbranch_scc1 L2_loop")
    def gt(ch):
        if ch == "r": return ([], ("vm", f"buffer_load_dword a{aDum}, v{vAS}, {s(sWr,4)}, 0 offen", None))
        vr, sp = dict(g=(12, 4), u=(12, 6), d=(13, 8), a=(14, 10), b=(15, 10))[ch]
        return ([], ("vm", f"global_load_dword a{aDum}, v{vr}, {s(sp,2)}", None))
    fw = ld_ffn()
    plan = opt.get("plan", {24: "ga", 26: "bu", 28: "dr01234", 30: "5678ABCD"} if pair == 1 else {23: "g", 24: "a", 25: "b", 26: "u012", 27: "d345", 28: "r678", 29: "AB", 30: "CD"})
    def tile(n, odd): return dma_kv_dyn(n, odd) if n < 32 else dma_wo(n - 32)
    for i in range(2 * NIT + 1, 31):
        ex = [fw[int(ch)] if ch.isdigit() else gt(ch) if ch.islower() else
              ([], ("vm", f"buffer_store_dwordx4 a[56:59], v{vKV}, {s(sH2,4)}, 0 offen offset:{1024*(ord(ch) - 65)} sc1", None)) for ch in plan.get(i, "")]
        if pair == 1: gen_stage(i, "A" if i % 2 else "B", tile(i + 3, 0) + tile(i + 4, 1) if i % 2 else [], opt, ex, bar=0, dgap=i % 2).emit(A)
        else: gen_stage(i, "A" if i % 2 else "B", tile(i + 3, 1 - i % 2), opt, ex, bar=0 if pair else 2, dgap=pair and i % 2).emit(A)
    nup = opt.get("nup", 16)
    upd = [x for k in range(9) for x in ([fw[9 + k]] + ([fw[18 + k]] if 18 + k < 9 + nup else []))]
    Sl = gen_stage(31, "last", dma_wo(2), opt, upd, opt.get("xs31", 1), dgap=pair)
    def norm(j, pk):
        r = vTmp + 2 * (j % 2)
        out = [f"v_accvgpr_read_b32 v{r}, a{aL+4*j}", f"v_accvgpr_read_b32 v{r+1}, a{aL+4*j+1}", f"v_add_f32 v{r}, v{r}, v{r+1}"]
        if opt.get("ones2", 0):
            for op in ("v_permlane16_swap_b32", "v_permlane32_swap_b32"):
                out += [f"v_mov_b32 v{r+1}, v{r}", "s_nop 1" if pk else "s_nop 0", f"{op} v{r+1}, v{r}", f"v_add_f32 v{r}, v{r}, v{r+1}"]
        out += [f"v_cmp_nlt_f32 {s(56+2*j,2)}, v{r}, s15", f"v_rcp_f32 v{r}, v{r}"]
        body = []
        for x in range(4):
            o = O(j, 2 * x)
            if pk: body += [f"v_pk_mul_f32 {v(o+i,2)}, {v(o+i,2)}, {v(r,2)} op_sel_hi:[1,0]" for i in range(0, 8, 2)]
            else: body += [f"v_mul_f32 v{o+i}, v{o+i}, v{r}" for i in range(8)]
            body += [f"v_cvt_pk_bf16_f32 v{o+i}, v{o+2*i}, v{o+2*i+1}" for i in range(4)]
        return out, body
    Sl.sh[40].append(f"s_mov_b32 s15, {hex(f2u(2.0**60))}")
    rest = Sl.fill([(149, x) for x in oreads(0)], 149, 165); assert not rest
    rest = Sl.fill([(70 + 33 * j, x) for j in range(2) for x in sum(norm(j, False), [])], 70, 165)
    Sl.emit(A)
    A.stamp()
    h2_, b2 = norm(2, True); h3, b3 = norm(3, True)
    rest = ["s_nop 1" if x == "s_nop 0" else x for _, x in rest]
    if len(rest) >= 48:
        A.items(rest[:-48] + h2_ + norm(1, True)[1] + h3[:-1])
    else: A.items(h2_ + rest + h3[:-1])
    A.e("s_or_b64 s[56:57], s[56:57], s[58:59]\n" + h3[-1] + "\ns_or_b64 s[60:61], s[60:61], s[62:63]\ns_or_b64 s[56:57], s[56:57], s[60:61]\ns_cselect_b32 s3, 1, 0")
    if opt.get("force_fallback"): A.e("s_mov_b32 s3, 1")
    A.e(f"s_andn2_b32 s3, s3, s{sPass}\ns_lshl2_add_u32 s14, s{sW}, {FLAG}\nv_mov_b32 v{NM+8}, s3\nv_mov_b32 v{NM+9}, s14\nv_mov_b32 v{NM+10}, {FLAG}")
    A.lds(f"ds_write_b32 v{NM+9}, v{NM+8}", "fw")
    A.items(b2 + b3)
    A.wait(lg=("W", 0, 0))
    A.stamp()
    So, leftover = gen_oproj(A)
    for c in range(9):
        So.emit(A, 64 * c, 64 * c + 64)
        if A.stamping == 3: A.stamp()
    A.e("s_nop 7")
    for n in range(2):
        cv, sw, st = oepi(17, n)
        A.items(cv + ["s_nop 1"] + sw + st[0] + [st[1]])
    A.stamp()
    gen_tail(A, B, opt)
    A.label("L2_end")
    A.e("s_endpgm")
    A.L += B.L
    A.label("L2_fallback")
    A.wait_all(); A.e(f"s_nop 7\ns_barrier\ns_lshl_b32 s3, s{sW}, 12\nv_add_u32 v{vKV}, s3, v{vX}")
    init_kv_addr()
    for j in range(4): A.e(f"v_mov_b32 v{P0+j}, 0xff800000")
    A.e(f"s_mov_b32 s{sPass}, 1\ns_mov_b32 s{sT}, 0")
    A.label("L2_fb_loop")
    emit_dma(A, dma_kv_static(None, (0,), 2))
    A.wait_all(); A.e("s_barrier")
    A.items(kreads(0, "fk")); A.wait_all(); A.e("s_barrier")
    for j in range(4):
        for kt in range(4):
            for t in range(4):
                d = S0 + 4 * kt
                A.e(f"{MF} {v(d,4)}, {a(KF(kt,t),4)}, {v(Q(j,t),4)}, {'0' if t == 0 else v(d,4)}")
        A.e("s_nop 7")
        for i in range(8): A.e(f"v_max3_f32 v{P0+j}, v{P0+j}, v{S0+2*i}, v{S0+2*i+1}")
    A.e(f"s_add_u32 s{sT}, s{sT}, 16384\ns_cmp_lt_u32 s{sT}, {32*16384}\ns_cbranch_scc1 L2_fb_loop")
    xmax_to_negm(A, [P0 + j for j in range(4)], 0.0)
    for i in range(3): emit_dma(A, dma_kv_static(i))
    A.wait_all(); A.e("s_barrier")
    A.items(kreads(0, "fk")); pf_addr(A)
    for i in range(16): A.e(f"v_accvgpr_write_b32 a{aL+i}, 0")
    A.wait_all()
    A.e("s_branch L2_entry")
    A.label("L2_codeend")
    if opt.get("walk", 1): A.L = insert_pads(A.L, "L2_walkret", "L2_end")
    return A, dict(name=KNAME, grid=256, block=256, lds=LDS_BYTES, vgpr=512, acc=256)
```

```python
from asmlib import *
from layout import *

RING = 16384; SLOT = 36864; HALF = 16896; PIECE = 1056
ASB = 9216
SCR = 13824
FLAG = SCR
LDS_BYTES = RING + 4 * SLOT
BIAS = 32.0
vK, vV, vT, vT2, vKV, vWq, vWo, vX, vAS, vPt, vIdx = 1, 2, 3, 4, 5, 6, 7, 8, 9, 10, 11
vTmp = 12
S0 = 16; P0 = 32; NM = 48; Q0 = 64; O0 = 128
AS0 = 16; T0 = 32; X0 = 48
def O(j, dt): return O0 + (j * 8 + dt) * 4
def Q(j, t): return Q0 + (j * 4 + t) * 4
def X(c, n, kl): return X0 + ((c + 2) % 5) * 16 + (n * 2 + kl) * 4
aL = 0; aOne = 16; aK = 64; aV = 128
def KF(kt, t): return aK + (kt * 4 + t) * 4
def VF(buf, dt, u): return aV + buf * 64 + (dt * 2 + u) * 4
sK, sV, sWq, sWo, sXn, sWr, sPt = 16, 20, 24, 28, 32, 36, 40
sC, sWm, sDb = 16, 88, 60
sW4, sOff, sT, sBase, sDel, sCnt, sPass, sW, sG, sTb, sOff2 = 44, 45, 46, 47, 48, 49, 50, 51, 52, 53, 54
sWg, sWu, sWd, sXi, sOut, sWs, sPr = 64, 68, 72, 76, 80, 84, 88
sW9, sT8, sCap = 55, 96, 97
sH2 = 32
sSt = 24; sYp = 32
vFg = vWq
aDum = 63
MF = "v_mfma_f32_16x16x32_bf16"

def trd(dst, slot, off):
    base = vT if slot < 2 else vT2
    return f"ds_read_b64_tr_b16 {a(dst,2)}, v{base} offset:{(slot % 2) * SLOT + off}"

def dma_wq(c):
    slot = (c + 1) % 4; out = []
    for kl in range(2):
        for r in range(4):
            out.append(([f"s_add_u32 m0, s{sW4}, {slot*SLOT + kl*HALF + r*PIECE}", f"s_mov_b32 s{sOff}, {(64*c + 32*kl + r) * 8192}"],
                        ("vm", f"buffer_load_dwordx4 v{vWq}, {s(sWq,4)}, s{sOff} offen{OPT.get('wq_nt','')} lds", ("L", c))))
    return out
def dma_kv_static(i, halves=(0, 1), slot=None):
    slot = (i + 2) % 4 if slot is None else slot; out = []
    for h in halves:
        for j in range(4):
            pre = [f"s_add_u32 m0, s{sW4}, {slot*SLOT + h*HALF + 32*j}"]
            if i is not None and j == 0 and h == halves[0]: pre.append(f"s_mov_b32 s{sT}, {i*16384}")
            out.append((pre, ("vm", f"buffer_load_dwordx4 v{vKV}, {s(sV if h else sK,4)}, s{sT} offen offset:{1024*j}{OPT.get('kv_nt','')} lds", ("L", 9 + (i or 0)))))
    return out
def dma_kv_dyn(i, odd):
    out = []
    for h in range(2):
        for j in range(4):
            pre = [f"s_add_u32 m0, s{sBase}, {odd*SLOT + h*HALF + 32*j}"]
            out.append((pre, ("vm", f"buffer_load_dwordx4 v{vKV}, {s(sV if h else sK,4)}, s{sT} offen offset:{1024*j}{OPT.get('kv_nt','')} lds", ("L", 9 + i))))
    return out
def dma_wo(c):
    slot = (c + 2) % 4; out = []
    for hi in range(2):
        for r in range(4):
            pre = [f"s_add_u32 m0, s{sW4}, {slot*SLOT + hi*HALF - 96*r}"]
            if r == 0: pre.append(f"s_mov_b32 s{sOff}, {c*128 + hi*128*1152}")
            out.append((pre, ("vm", f"buffer_load_dwordx4 v{vWo}, {s(sWo,4)}, s{sOff} offen offset:{1152*r}{OPT.get('wo_nt','')} lds", ("L", 41 + c))))
    return out
def FW(k): return 20 + 4 * k if k < 9 else aV + 4 * (k - 9)
def ld_ffn():
    out = []
    for m in range(3):
        for i in range(9):
            d = a(FW(9 * m + i), 4)
            if m < 2: out.append(([f"s_mov_b32 s{sOff2}, {i*16*9216}"], ("vm", f"buffer_load_dwordx4 {d}, v{vFg}, {s(sWu if m else sWg,4)}, s{sOff2} offen", "fw")))
            else: out.append(([f"s_add_u32 s{sOff2}, s{sW9}, {1024*i}"], ("vm", f"buffer_load_dwordx4 {d}, v{vX}, {s(sWd,4)}, s{sOff2} offen", "fw")))
    return out
def touch(vaddr, srd, off):
    return ([f"s_mov_b32 s{sOff2}, {off}"], f"buffer_load_dword a{aDum}, v{vaddr}, {s(srd,4)}, s{sOff2} offen")
def dmaL(n):
    return dma_wq(n) if n < 9 else (dma_kv_static(n - 9) if n < 41 else dma_wo(n - 41))
def emit_dma(A, lst):
    for pre, ld in lst:
        A.items(pre)
        if len(pre) == 1: A.e("s_nop 0")
        A.item(ld)
def xload(c):
    return [([f"s_mov_b32 s{sOff2}, {n*18432 + (2*c+kl)*1024}"],
             ("vm", f"buffer_load_dwordx4 {v(X(c,n,kl),4)}, v{vX}, {s(sXn,4)}, s{sOff2} offen sc1", ("X", c))) for n in range(2) for kl in range(2)]
def place_vm(Sc, g, item):
    pre, ld = item
    for k, p in enumerate(pre): Sc.sh[g - 1 + k].append(p)
    Sc.mem[g].append(ld)

def as_reads(c, q):
    kl, hf = q // 2, q % 2; d = AS0 + (q % 2) * 8; off = ASB + (2 * c + kl) * 256 + hf * 16
    return [("lds", f"ds_read_b128 {v(d,4)}, v{vAS} offset:{off}", ("AS", c, q)), ("lds", f"ds_read_b128 {v(d+4,4)}, v{vAS} offset:{off+32}", ("AS", c, q))]
def modulate(c, q):
    kl, hf = q // 2, q % 2; d = AS0 + (q % 2) * 8; out = []
    for n in range(2):
        x = X(c, n, kl) + 2 * hf; t = T0 + 4 * n
        for i in range(4):
            out.append(f"v_fma_mix_f32 v{t+i}, v{x+i//2}, v{d+i}, v{d+4+i} op_sel:[{i%2},0,0] op_sel_hi:[1,0,0]")
        out += [f"v_cvt_pk_bf16_f32 v{x}, v{t}, v{t+1}", f"v_cvt_pk_bf16_f32 v{x+1}, v{t+2}, v{t+3}"]
    return out

def kreads(off, tag): return [("lds", f"ds_read_b128 {a(KF(kt,t),4)}, v{vK} offset:{off + kt*256 + t*64}", (tag, kt)) for kt in range(4) for t in range(4)]
def vreads(buf, off, tag): return [("lds", f"ds_read_b64_tr_b16 {a(VF(buf,dt,u)+2*b,2)}, v{vV} offset:{off + (2*u+b)*256 + dt*32}", tag) for dt in range(8) for u in range(2) for b in range(2)]

QD = 3
def AF(grp, kl): return aV + 64 + (grp % 8) * 8 + kl * 4
def qreads(G):
    c, mt = divmod(G, 16); slot = (c + 1) % 4
    return [("lds", trd(AF(G, kl) + 2 * b, slot, kl * HALF + b * 512 + mt * 32), ("A", G)) for kl in range(2) for b in range(2)]

def gen_qproj(A):
    Sc = Sched()
    for c in range(9):
        for mt in range(16):
            G = c * 16 + mt
            for n in range(2):
                d = O(2 * (mt // 8) + n, mt % 8)
                for kl in range(2):
                    cc = "0" if c == 0 and kl == 0 else v(d, 4)
                    Sc.mfma(f"{MF} {v(d,4)}, {a(AF(G,kl),4)}, {v(X(c,n,kl),4)}, {cc}")
    N = len(Sc.mf); vmg = set()
    leftover = []
    for k, it in enumerate(dmaL(2)):
        g = 3 + 4 * k; place_vm(Sc, g, it); vmg.add(g)
    for c in range(9):
        gb = 64 * (c + 1) - 4 * QD - 1 if c < 8 else OPT.get("gb8", 551)
        Sc.sh[gb] += [("wait", ("L", c + 1), None), "s_barrier"]
        for k, it in enumerate(dmaL(c + 3)):
            g = gb + 4 + 4 * k
            if g < N: place_vm(Sc, g, it); vmg.add(g)
            else: leftover.append(it)
    for c in range(6):
        for k, it in enumerate(xload(c + 3)):
            g = 64 * c + 35 + 4 * k
            assert g not in vmg
            place_vm(Sc, g, it); vmg.add(g)
    for G in range(144):
        if G > 0: Sc.sh[4 * G - 1].append(("wait", None, ("A", G)))
        if G + QD < 144:
            rd = qreads(G + QD); gs = [g for g in range(4 * G, 4 * G + 4) if g not in vmg]
            if len(gs) == 3: gs = [gs[0], gs[1], gs[1], gs[2]]
            for g, r in zip(gs, rd): Sc.mem[g].append(r)
    for c in range(8):
        Sc.sh[64 * c].append(("wait", ("X", c + 1), None))
        for q in range(4):
            w0 = 64 * c + 16 * q
            nxt = as_reads(c + 1, q + 1) if q < 3 else (as_reads(c + 2, 0) if c < 7 else [])
            items = modulate(c + 1, q)
            Sc.sh[w0].append(("wait", None, ("AS", c + 1, q)))
            free = [g for g in range(w0, w0 + 16) if g not in vmg and len(Sc.mem[g]) < 2]
            for r in nxt:
                g = free.pop(0); Sc.mem[g].append(r)
            over = len(items) - len(free)
            odd = sorted(range(w0 + 1, w0 + 16, 2), key=lambda g: (g in vmg, -g))
            slots = sorted(free + odd[:over] if over > 0 else free); assert len(slots) >= len(items)
            for g, it in zip(slots, items): Sc.va[g].append(it)
    return Sc, leftover, vmg

def qconvert(j, t):
    o = O(j, 2 * t); q = Q(j, t)
    return [f"v_cvt_pk_bf16_f32 v{q+i}, v{o+2*i}, v{o+2*i+1}" for i in range(4)], [f"v_permlane32_swap_b32 v{q}, v{q+2}", f"v_permlane32_swap_b32 v{q+1}, v{q+3}"]

def pf_addr(A):
    A.e(f"v_lshrrev_b32 v14, 2, v0\ns_mul_i32 s3, s{sW}, 144\nv_add_u32 v14, s3, v14\nv_mul_u32_u24 v14, 9216, v14\nv_and_b32 v15, 3, v0\nv_lshl_add_u32 v{vFg}, v15, 4, v14")
    A.e(f"s_lshr_b32 s3, s2, 3\ns_lshl2_add_u32 s3, s3, s{sW}\ns_and_b32 s15, s2, 7\nv_lshlrev_b32 v{vAS}, 7, v0")
    A.e(f"s_mul_i32 s14, s3, 9\ns_lshr_b32 s14, s14, 1\nv_min_u32 v15, 44, v0\nv_mul_u32_u24 v12, 7282, v15\nv_lshrrev_b32 v12, 16, v12\nv_mul_u32_u24 v13, 63, v12\nv_add_u32 v12, v15, v13")
    A.e(f"s_mul_i32 s14, s14, 72\ns_mul_i32 s56, s15, 9\ns_add_u32 s14, s14, s56\nv_add_lshl_u32 v12, s14, v12, 7")
    A.e(f"s_mul_i32 s14, s3, 81\ns_lshr_b32 s14, s14, 1\ns_mul_i32 s56, s15, 5184\ns_add_u32 s14, s14, s56\nv_min_u32 v13, 40, v0\nv_add_lshl_u32 v13, s14, v13, 7")
    A.e(f"s_mul_i32 s14, s3, 72\ns_andn2_b32 s56, s{sG}, 3\ns_mul_i32 s56, s56, 2304\ns_add_u32 s14, s14, s56\nv_min_u32 v14, 35, v0\nv_add_lshl_u32 v14, s14, v14, 7\nv_add_u32 v15, 4608, v14")

def xmax_to_negm(A, src, bias):
    t = P0 + 8
    for op in ("v_permlane16_swap_b32", "v_permlane32_swap_b32"):
        for j in range(4): A.e(f"v_mov_b32 v{t+j}, v{src[j]}")
        for j in range(4): A.e(f"{op} v{t+j}, v{src[j]}")
        for j in range(4): A.e(f"v_max_f32 v{src[j]}, v{src[j]}, v{t+j}")
    for j in range(4):
        for i in range(4): A.e(f"v_sub_f32 v{NM+4*j+i}, {hex(f2u(-bias))}, v{src[j]}")

def gen_stage(i, kind, dma, opt, extra=(), xstep=2):
    par = i % 2; Sc = Sched(); first = kind == "first"; last = kind == "last"
    nun = 5 if last else 4
    for j in range(nun):
        for kt in range(4):
            for t in range(4):
                d = S0 + 4 * kt
                Sc.mfma(None if j == 4 else f"{MF} {v(d,4)}, {a(KF(kt,t),4)}, {v(Q(j,t),4)}, {v(NM+4*j,4) if t == 0 else v(d,4)}")
        jp = (j - 1) % 4; vb = par if j > 0 else 1 - par; p = P0 + 8 * (jp % 2)
        skip = first and j == 0
        for dt in range(8):
            for u in range(2):
                d = O(jp, dt); cc = "0" if first and u == 0 else v(d, 4)
                Sc.mfma(None if skip else f"{MF} {v(d,4)}, {a(VF(vb,dt,u),4)}, {v(p+4*u,4)}, {cc}")
        Sc.mfma(None if skip else f"v_smfmac_f32_16x16x64_bf16 {a(aL+4*jp,4)}, {a(aOne,4)}, {v(p,8)}, v{vIdx}")
        b = 33 * j
        for x in range(16):
            prev = x < 4
            if (prev and skip) or (j == 4 and not prev): continue
            e = (x - 4) % 16
            Sc.va[b + 2 * x].append(f"v_exp_f32 v{S0+e}, v{S0+e}")
        for k in range(8):
            prev = k < 3; pr = (k + 5) % 8
            if (prev and skip) or (j == 4 and not prev): continue
            pb = P0 + 8 * ((j - 1 if prev else j) % 2)
            Sc.va[b + 4 * k + 1].append(f"v_cvt_pk_bf16_f32 v{pb+pr}, v{S0+2*pr}, v{S0+2*pr+1}")
    if first:
        for g in range(16, 33):
            if g % 2 == 0: Sc.va[g].append("s_nop 0")
        Sc.sh[16].append("s_nop 3"); Sc.sh[8].append("s_nop 1")
    if last:
        for g in range(33 * 4, 33 * 4 + 8, 2): Sc.va[g].append("s_nop 0")
        Sc.va[33 * 4 + 15].append("s_nop 1")
    for kt in range(1, 4): Sc.sh[4 * kt - 1].append(("wait", None, (("K", i), kt)))
    cand = [33 * j + r for j in range(4 if last else 3) for r in range(3, 32, 4)]
    gs = cand[:len(dma)] + cand[len(dma)::xstep]
    dma = list(dma) + list(extra)
    vmg = set()
    for g, it in zip(gs, dma): place_vm(Sc, g, it); vmg.add(g)
    assert len(vmg) == len(dma)
    if kind == "A":
        Sc.va[1].append(f"v_add_u32 v{vK}, s{sDel}, v{vK}"); Sc.va[5].append(f"v_add_u32 v{vV}, s{sDel}, v{vV}")
        Sc.sh[0].append(f"s_sub_u32 s{sBase}, s{sBase}, s{sDel}")
        Sc.sh[8].append(f"s_sub_u32 s{sDel}, 0, s{sDel}")
    if not last:
        Sc.sh[100].append(f"s_add_u32 s{sT}, s{sT}, 16384"); pass
        off = 0 if kind == "A" else SLOT
        if first:
            rest = Sc.fill([(0, x) for x in vreads(0, 0, ("V", 0))], 0, 16)
            for _, x in rest: Sc.mem[16].append(x)
            Sc.sh[47].append(("wait", None, ("V", 0)))
        free = [33 * j + r for j in range(3) for r in list(range(1, 32, 2)) + [32] if 33 * j + r >= 17 and 33 * j + r not in vmg]
        vr = vreads(1 - par, off, ("V", i + 1))
        if len(free) < 32: free = sorted(free + free[len(free) - (32 - len(free)):])
        for n, r in enumerate(vr):
            assert free[n] >= 16 + n // 2
            Sc.mem[free[n]].append(r)
        for n, r in enumerate(kreads(off, ("K", i + 1))): Sc.mem[99 + 2 * n + 1].append(r)
        Sc.sh[131] += [("wait", ("L", 9 + i + 2), (("K", i + 1), 0)), "s_barrier"]
    return Sc

OA = 16; OR = 48
def OB(n, u): return O(2 * (u // 4) + n, 2 * (u % 4))
def WF(grp, u): return aK + (grp % 2) * 32 + u * 4
def oreads(G):
    c, ntl = divmod(G, 4); slot = (c + 2) % 4
    return [("lds", trd(WF(G, u) + 2 * b, slot, (u // 4) * HALF + (2 * (u % 4) + b) * 128 + ntl * 32), ("W", G, u // 2)) for u in range(8) for b in range(2)]
def oacc(G, n): return OA + ((G % 4) * 2 + n) * 4
def oepi(pair, n):
    r = OR + 4 * n; x, y = oacc(2 * pair, n), oacc(2 * pair + 1, n); c, aa = divmod(pair, 2)
    cv = [f"v_cvt_pk_bf16_f32 v{r}, v{x}, v{x+1}", f"v_cvt_pk_bf16_f32 v{r+1}, v{x+2}, v{x+3}", f"v_cvt_pk_bf16_f32 v{r+2}, v{y}, v{y+1}", f"v_cvt_pk_bf16_f32 v{r+3}, v{y+2}, v{y+3}"]
    sw = [f"v_permlane32_swap_b32 v{r}, v{r+2}", f"v_permlane32_swap_b32 v{r+1}, v{r+3}"]
    st = ([f"s_mov_b32 s{sOff2}, {n*294912 + c*1024}"], ("vm", f"buffer_store_dwordx4 {v(r,4)}, v{vPt}, {s(sPt,4)}, s{sOff2} offen offset:{aa*512}{OPT.get('st_flags', ' sc1')}", "st"))
    return cv, sw, st

vXA, vXC = vK, vV
XR = 64
def HOLE(k): return O0 + 8 * k + 4
def xi_loads(ob):
    return [([], ("vm", f"buffer_load_dwordx4 {v(XR+4*i,4)}, v{vXC if i == 2 else vXA}, {s(sXi,4)}, 0 offen offset:{ob if i == 1 else 0}", "xi")) for i in range(3)]
vWA, vWC, vPA, vPB, vFa, vFl, vOne = 12, 13, 5, 59, 6, 9, 15
sFl, sRem, sQ, sRdyA, sFs, sPa = sBase, sDel, sT, sCnt, 56, 28
def WR(q): return 224 + 8 * (q // 4) + q % 4
def wr_loads():
    return [([], ("vm", f"buffer_load_dwordx4 {v(WR(4*i),4)}, v{vWC if i == 2 else vWA}, {s(sWr,4)}, 0 offen offset:{512*i}", "xi")) for i in range(3)]
def NV(r, h): return 76 + 12 * h + 4 * r
def mv_loads():
    return [([f"s_movk_i32 s{sOff}, {4608 + 13824*h + 4096*r}"], ("vm", f"buffer_load_dwordx4 {v(NV(r,h),4)}, v{vPB if r == 2 else vPA}, {s(sWs,4)}, s{sOff} offen sc1", "xi")) for r in range(3) for h in range(2)]
def item_addr(A, ma, mc, oc, t=14):
    A.e(f"s_mul_i32 s3, s{sW}, {ma}\nv_lshrrev_b32 v{t}, 3, v0\nv_lshl_add_u32 v{vWA}, v{t}, 4, s3\nv_and_b32 v{t}, 1, v{t}")
    if mc != ma: A.e(f"s_mul_i32 s3, s{sW}, {mc}")
    A.e(f"v_lshl_add_u32 v{vWC}, v{t}, 4, s3")
    A.e(f"v_and_b32 v{t}, 7, v0\nv_mul_u32_u24 v{t}, 1152, v{t}\nv_add_u32 v{vXA}, v{t}, v{vWA}\nv_add_u32 v{vXC}, v{t}, v{vWC}\nv_add_u32 v{vXC}, {oc}, v{vXC}")
def ready_mask(d):
    return ["s_lshr_b32 s3, vcc_lo, 1", "s_and_b32 s3, s3, vcc_lo", "s_lshr_b32 s14, s3, 2", f"s_and_b32 s{d}, s3, s14"]

def gen_oproj(A):
    Sc = Sched()
    for G in range(36):
        for n in range(2):
            for u in range(8):
                d = oacc(G, n)
                Sc.mfma(f"{MF} {v(d,4)}, {a(WF(G,u),4)}, {v(OB(n,u),4)}, {'0' if u == 0 else v(d,4)}")
    N = len(Sc.mf); vmg = set(); leftover = []
    st = OPT.get("o_step", 2)
    for c in range(8):
        gb = 64 * c + 47
        Sc.sh[gb] += [("wait", ("L", 41 + c + 1), "fw"), "s_barrier"]
        if c + 3 <= 8:
            for k, it in enumerate(dma_wo(c + 3)):
                g = gb + 2 + st * k; place_vm(Sc, g, it); vmg.add(g)
    misc = ld_ffn()[9 + OPT.get("nup", 16):]
    gl = list(range(3, 32, 4)); assert len(gl) >= len(misc)
    for g, it in zip(gl, misc): place_vm(Sc, g, it); vmg.add(g)
    Sc.sh[440] += [f"s_sub_u32 s{sPa}, s{sPr}, 4096", f"s_subb_u32 s{sPa+1}, s{sPr+1}, 0"]; Sc.sh[441].append(f"s_mov_b32 s{sPa+2}, 147456")
    swg = set()
    for p in range(17):
        for n in range(2):
            b = 16 * (2 * p + 2) + 8 * n
            cv, sw, st = oepi(p, n)
            for k, x in enumerate(cv): Sc.va[b + k].append(x)
            Sc.va[b + 5].append(sw[0]); Sc.va[b + 6].append(sw[1]); swg |= {b + 5, b + 6}
            Sc.sh[b + 4].append(st[0][0]); Sc.va[b + 7].append(st[1])
    for G in range(36):
        for h in range(4):
            g = 16 * G + 2 * h - 1
            if g >= 0: Sc.sh[g].append(("wait", None, ("W", G, h)))
        if G + 1 < 36:
            gs = [g for g in range(16 * G, 16 * G + 16) if g not in vmg and g not in swg]
            two = [g for g in gs if not Sc.va[g]]
            extra = 16 - len(gs)
            if extra > len(two): two = two + [g for g in range(16 * G + 7, 16 * G + 16, 8)] * 4
            gs = sorted(gs + two[:extra]); assert len(gs) == 16
            for g, r in zip(gs, oreads(G + 1)): Sc.mem[g].append(r)
    f = NM + 12
    Sc.mem[47].append(("lds", f"ds_read_b128 {v(f,4)}, v{NM+10}", "fr"))
    Sc.sh[55].append(("wait", None, "fr"))
    Sc.va[55] += [f"v_or3_b32 v{f}, v{f}, v{f+1}, v{f+2}", f"v_or_b32 v{f}, v{f}, v{f+3}"]
    Sc.va[63].append(f"v_readfirstlane_b32 s3, v{f}")
    Sc.sh[65].append("s_cmp_lg_u32 s3, 0"); Sc.sh[66].append("s_cbranch_scc1 L2_fallback")
    T = Asm(); item_addr(T, 128, 32, 1024)
    T.e(f"s_lshl_b32 s14, s{sW}, 10\nv_add_u32 v{vPA}, s14, v{vX}\nv_and_b32 v{vPB}, 0xf0, v{vX}\ns_lshl_b32 s14, s{sW}, 8\nv_add_u32 v{vPB}, s14, v{vPB}")
    T.e(f"v_and_b32 v{vFa}, 15, v0\nv_lshlrev_b32 v{vFa}, 8, v{vFa}\nv_min_u32 v{vOne}, 1, v0\nv_lshlrev_b32 v{vOne}, 30, v{vOne}")
    T.e(f"s_lshl_b32 s15, s{sTb}, 14\ns_add_u32 s15, s15, {WS_F1}\ns_and_b32 s14, s{sG}, 12\ns_lshl_b32 s14, s14, 10\ns_add_u32 s{sFl}, s15, s14")
    T.e(f"s_lshl4_add_u32 s3, s{sW}, s{sG}\ns_lshl_b32 s3, s3, 8\ns_add_u32 s{sFs}, s3, s15")
    rest = Sc.fill([(0, x) for x in T.L], 80, 300); assert not rest
    return Sc, leftover

def xsum8(A, regs, tmp):
    A.e("s_nop 1")
    for x in regs: A.e(f"v_add_f32_dpp v{x}, v{x}, v{x} row_ror:8 row_mask:0xf bank_mask:0xf")
    xsumG(A, regs, tmp)
def xsumG(A, regs, tmp):
    for op in ("v_permlane16_swap_b32", "v_permlane32_swap_b32"):
        for k, x in enumerate(regs): A.e(f"v_mov_b32 v{tmp+k}, v{x}")
        if len(regs) < 3: A.e(f"s_nop {2 - len(regs)}")
        for k, x in enumerate(regs): A.e(f"{op} v{tmp+k}, v{x}")
        for k, x in enumerate(regs): A.e(f"v_add_f32 v{x}, v{x}, v{tmp+k}")
def merge2(A, m1, m2, t1, t2):
    A.e(f"v_max_u32 v{m2}, v{m2}, v{t2}\nv_med3_u32 v{m2}, v{m1}, v{t1}, v{m2}\nv_max_u32 v{m1}, v{m1}, v{t1}")
def top2_lanes(A, m1, m2, t1, t2, rors, swaps):
    for sh in rors:
        A.e(f"s_nop 1\nv_mov_b32_dpp v{t1}, v{m1} row_ror:{sh} row_mask:0xf bank_mask:0xf\nv_mov_b32_dpp v{t2}, v{m2} row_ror:{sh} row_mask:0xf bank_mask:0xf")
        merge2(A, m1, m2, t1, t2)
    for op in swaps:
        A.e(f"v_mov_b32 v{t1}, v{m1}\nv_mov_b32 v{t2}, v{m2}\ns_nop 0\n{op} v{t1}, v{m1}\n{op} v{t2}, v{m2}")
        merge2(A, m1, m2, t1, t2)
def dot24(A, d, t, x, y):
    for acc, lo, hi in ((d, 0, 16), (t, 16, 24)):
        for i in range(lo, hi):
            if y is None:
                if i == lo: continue
                A.e(f"v_add_f32 v{acc}, v{x+lo if i == lo+1 else acc}, v{x+i}")
            else: A.e(f"{'v_mul_f32' if i == lo else 'v_fmac_f32'} v{acc}, v{x+i}, v{y+i}")
    A.e(f"v_fmac_f32 v{d}, 0x3e800000, v{t}")
def dot24p(A, d, t, x, y):
    for acc, lo, hi in ((t, 0, 16), (t + 2, 16, 24)):
        for i in range(lo, hi, 2):
            if y is None:
                if i > lo: A.e(f"v_pk_add_f32 {v(acc,2)}, {v(x+lo if i == lo+2 else acc,2)}, {v(x+i,2)}")
            elif i == lo: A.e(f"v_pk_mul_f32 {v(acc,2)}, {v(x+i,2)}, {v(y+i,2)}")
            else: A.e(f"v_pk_fma_f32 {v(acc,2)}, {v(x+i,2)}, {v(y+i,2)}, {v(acc,2)}")
    A.e(f"v_add_f32 v{d}, v{t}, v{t+1}\nv_add_f32 v{t+2}, v{t+2}, v{t+3}\nv_fmac_f32 v{d}, 0x3e800000, v{t+2}")
def poll(A, name, loads, test, sleep=1, shrink=0):
    A.e(f"s_mov_b32 s{sCap}, 0x20000")
    A.label(name)
    A.e(loads); A.wait_all(lg=False); A.e(test)
    A.e(f"s_sub_u32 s{sCap}, s{sCap}, 1\ns_cselect_b64 vcc, 0, vcc\ns_cmp_eq_u64 vcc, 0\ns_cbranch_scc1 {name}_ok")
    if shrink: A.e("s_mov_b64 exec, vcc")
    if sleep: A.e(f"s_sleep {sleep}")
    A.e(f"s_branch {name}")
    A.label(name + "_ok")
    if shrink: A.e("s_mov_b64 exec, -1")

def gen_tail(A, B, opt):
    ACC, GA, U, TM, PL = 16, 40, 76, 100, 112
    vMA, vMC, vPC = 3, 4, 7
    TB = RING + 2 * SLOT
    ST = SCR + 256
    aF = 64
    def acc(dst, src, first):
        for q in range(4):
            if first: A.e(f"v_lshlrev_b32 v{dst+2*q}, 16, v{src+q}\nv_and_b32 v{dst+2*q+1}, 0xffff0000, v{src+q}")
            else:
                t = TM + 2 * (q % 2)
                A.e(f"v_lshlrev_b32 v{t}, 16, v{src+q}\nv_and_b32 v{t+1}, 0xffff0000, v{src+q}\nv_pk_add_f32 {v(dst+2*q,2)}, {v(dst+2*q,2)}, {v(t,2)}")
    fl = f"buffer_load_dword v{vFl}, v{vFa}, {s(sWs,4)}, s{sFl} offen sc1"
    A.vmem(fl, ("fl", 0))
    for pre, ld in mv_loads() + wr_loads() + xi_loads(512): A.items(pre + [ld])
    A.wait(vm="st")
    A.vmem(f"buffer_store_dword v{vT}, v{vOne}, {s(sWs,4)}, s{sFs} offen sc1")
    A.e(f"s_movk_i32 s{sRem}, 0x1111\nv_lshrrev_b32 v15, 4, v0\nv_mul_u32_u24 v15, 9216, v15\nv_add_u32 v15, 4096, v15\nv_add_u32 v{vPC}, v{vPB}, v15")
    A.stamp()
    ready = f"v_cmp_ne_u32 vcc, 0, v{vFl}\ns_nop 0\n" + "\n".join(ready_mask(3)) + f"\ns_and_b32 s3, s3, s{sRem}"
    def choose(i):
        A.wait(vm=("fl", i))
        A.e(ready + f"\ns_cbranch_scc0 L2_g{i}s"); A.label(f"L2_g{i}r")
        A.e(f"s_ff1_i32_b32 s3, s3\ns_bitset0_b32 s{sRem}, s3\ns_mul_i32 s{sQ}, s3, 9216")
        B.label(f"L2_g{i}s")
        poll(B, f"L2_g{i}", fl, ready + f"\ns_cselect_b64 vcc, 0, -1", opt.get("sl1", 1))
        B.e(f"s_cmp_eq_u32 s3, 0\ns_cselect_b32 s3, s{sRem}, s3\ns_branch L2_g{i}r")
        if i == 0: A.stamp()
        if i < 3: A.vmem(fl, ("fl", i + 1))
    pend = []
    for i in range(4):
        R0 = PL + 36 * i
        pend.append([lambda i=i: choose(i), ("vm", f"buffer_load_dwordx4 {v(R0,4)}, v{vPC}, {s(sPr,4)}, s{sQ} offen{OPT.get('pl', ' sc1')}", ("c", i))])
        for g in range(4):
            pend.append([f"s_add_u32 s{sQ}, s{sQ}, 9216"] * (g > 0) + [("vm", f"buffer_load_dwordx4 {v(R0+4+8*g+4*h,4)}, v{vPA}, {s(sPa if h else sPr,4)}, s{sQ} offen{OPT.get('pl', ' sc1')}", ("p", i, g, h)) for h in range(2)])
    win = opt.get("win", 99)
    def pace(free=False, step=None):
        if step is not None and opt.get("burst", 0):
            while pend and (20 - len(pend)) // 5 * 5 <= step + opt.get("off", 3): A.items(pend.pop(0))
        elif pend and (step is None or 20 - len(pend) <= step + opt.get("off", 3)):
            if len(A.vm) > win and not free:
                A.e(f"s_waitcnt vmcnt({win})"); del A.vm[:len(A.vm) - win]
            A.items(pend.pop(0))
        for _ in range(2):
            if fww: A.item(fww.pop(0))
    fww = []
    for _ in range(5): pace(True)
    A.wait(vm="xi")
    nv = [NV(r, h) + k for r in range(3) for h in range(2) for k in range(4)]
    A.e(f"v_mov_b32 v14, v{vWC}")
    tree2 = f"v_max_u32 v13, v{nv[0]}, v{nv[1]}\n" + "\n".join(f"v_max3_u32 v13, v13, v{nv[2*k]}, v{nv[2*k+1]}" for k in range(1, 12)) + "\nv_cmp_eq_u32 vcc, -1, v13"
    A.e(tree2 + "\ns_nop 0\ns_cmp_lg_u64 vcc, 0\ns_cbranch_scc1 L2_pns"); A.label("L2_pnr")
    B.label("L2_pns"); poll(B, "L2_pn", "\n".join(pre[0] + "\n" + ld[1] for pre, ld in mv_loads()), tree2); B.e("s_branch L2_pnr")
    for r in range(3):
        for k in (0, 2): A.e(f"v_pk_add_f32 {v(U+4*r+k,2)}, {v(NV(r,0)+k,2)}, {v(NV(r,1)+k,2)}")
        A.lds(f"ds_write_b128 v{vPB if r == 2 else vPA}, {v(U+4*r,4)} offset:{4096*r}", "mv")
    A.wait(lg="mv")
    vF0, vF1 = TM + 5, TM + 6
    A.e(f"s_barrier\ns_add_u32 s14, s{sW9}, {RING}\nv_add_u32 v{vF0}, s14, v{vX}\nv_add_u32 v{vF1}, {2*SLOT}, v{vF0}")
    fww += [("lds", f"ds_write_b128 v{vF0 + ((3 + k//9) % 4)//2}, {a(FW(k),4)} offset:{((3 + k//9) % 2)*SLOT + 1024*(k%9)}", "fww") for k in range(27)]
    A.e(f"v_lshlrev_b32 v{vMA}, 1, v{vWA}\nv_lshlrev_b32 v{vMC}, 1, v14")
    def vec(m, d, tag):
        for i in range(3):
            for h in range(2): A.lds(f"ds_read_b128 {v(d+8*i+4*h,4)}, v{vMC if i == 2 else vMA} offset:{m*2304 + 1024*i + 16*h}", tag)
    vec(2, U, "cb"); vec(1, GA, "sb")
    pace()
    A.wait(lg="sb")
    for q in range(12):
        t = 12 + 2 * (q % 2)
        A.e(f"v_lshlrev_b32 v{t}, 16, v{WR(q)}\nv_and_b32 v{t+1}, 0xffff0000, v{WR(q)}\nv_pk_mul_f32 {v(U+2*q,2)}, {v(U+2*q,2)}, {v(t,2)}\nv_pk_mul_f32 {v(GA+2*q,2)}, {v(GA+2*q,2)}, {v(t,2)}")
        if q == 5: pace()
    pace()
    dot24p(A, TM, 12, U, None); dot24p(A, TM + 1, 12, GA, None)
    vec(0, GA, "ga")
    pace()
    xsum8(A, [TM, TM + 1], TM + 2)
    A.e(f"v_and_b32 v14, 7, v0\nv_lshlrev_b32 v11, 4, v14\nv_add_u32 v11, {ST}, v11\ns_lshl_b32 s3, s{sW}, 2\nv_add_u32 v10, s3, v11")
    A.lds(f"ds_write_b32 v10, v{TM} offset:384", "ut"); A.lds(f"ds_write_b32 v10, v{TM+1} offset:512", "ut")
    vR0, vR1, vR2 = TM + 7, TM + 8, TM + 9
    A.e(f"v_lshl_add_u32 v{vXA}, v14, 4, v{vXA}\nv_lshl_add_u32 v{vXC}, v14, 4, v{vXC}\nv_add_u32 v{vXA}, {TB}, v{vXA}\nv_add_u32 v{vXC}, {TB}, v{vXC}")
    A.e(f"s_and_b32 s14, s{sW}, 1\ns_mul_i32 s14, s14, 9344\ns_add_u32 s14, s14, {TB}\nv_add_u32 v{vR0}, s14, v{vX}\nv_lshrrev_b32 v15, 3, v0\nv_mul_u32_u24 v12, {1152-128}, v15\nv_add_u32 v{vR2}, v12, v{vX}")
    A.e(f"v_lshl_add_u32 v12, v15, 4, v12\nv_add_u32 v{vR1}, v12, v{vR0}")
    A.e(f"s_mul_i32 s3, s{sT8}, 9216\ns_cmp_eq_u32 s{sW}, 3\ns_cselect_b32 s3, 0, s3\ns_cselect_b64 {s(sSt,2)}, {s(sH2,2)}, {s(sOut,2)}")
    A.srd(sSt, sSt, 9216, "s3")
    pace()
    A.wait(lg="ut")
    CB, SB, GB, D = PL, PL + 24, PL + 48, PL + 72
    KV, KA = XR, XR + 4
    for i in range(4):
        R0 = PL + 36 * i
        A.wait(vm=("c", i)); pace(step=5 * i); acc(ACC + 16, R0, i == 0)
        if i == 2:
            assert not fww
            A.e(f"v_lshrrev_b32 v12, 4, v0\nv_bfe_u32 v13, v0, 2, 2\nv_lshl_add_u32 v12, v12, 3, v13\nv_and_b32 v13, 3, v0\nv_lshlrev_b32 v14, 6, v12\nv_lshl_add_u32 v14, v13, 3, v14")
            A.e(f"s_cmp_lt_u32 s{sW}, 2\ns_cselect_b32 s3, {3*SLOT}, 0\ns_and_b32 s14, s{sW}, 1\ns_lshl_b32 s14, s14, 5\ns_add_u32 s3, s3, s14\ns_add_u32 s3, s3, {RING}\nv_add_u32 v{vF0}, s3, v14")
            A.e(f"v_mul_u32_u24 v14, 1152, v12\nv_lshl_add_u32 v14, v13, 3, v14\ns_mul_i32 s3, s{sW}, 288\ns_add_u32 s3, s3, {RING + SLOT}\nv_add_u32 v{vF1}, s3, v14")
            if opt.get("far", 1) == 0: A.wait(lg="fww"); A.e("s_barrier")
            vec(2, CB, "m"); vec(1, SB, "m"); vec(3, GB, "m")
            far = [("lds", f"ds_read_b64_tr_b16 {a(aF+4*kk+2*b,2)}, v{vF0} offset:{2048*kk + 256*b}", "fa") for kk in range(18) for b in range(2)]
            far += [("lds", f"ds_read_b64_tr_b16 {a(aF+72+4*nt+2*b,2)}, v{vF1} offset:{32*nt + 4608*b}", "fa") for nt in range(9) for b in range(2)]
            if opt.get("far", 1) == 0: fww += [(lambda c=far[k:k+7]: A.items(c)) for k in range(0, 54, 7)]
        if i == 3:
            A.e(f"s_lshl_b32 s3, s{sT8}, 3\ns_sub_u32 s3, 0xfff, s3\nv_and_b32 v{vFa}, 7, v0\nv_sub_u32 v{vFa}, s3, v{vFa}\ns_mov_b32 s57, 0xfffff000")
            A.e(f"s_mul_i32 s58, s{sT8}, {KS}\ns_add_u32 s58, s58, {WS_KEY}\ns_xor_b32 s3, s{sW}, 2\nv_or_b32 v{vFl}, s3, v0\nv_min_u32 v{vFl}, 1, v{vFl}\nv_lshlrev_b32 v{vFl}, 30, v{vFl}")
            xsumG(A, list(range(ACC + 16, ACC + 24)), D + 24)
            for q in range(12): A.e(f"v_lshlrev_b32 v{D+2*q}, 16, v{XR+q}\nv_and_b32 v{D+2*q+1}, 0xffff0000, v{XR+q}")
            A.e(f"s_cmp_lt_u32 s2, 180\ns_cselect_b32 s3, 2, 0\ns_cmp_lt_u32 s{sW}, s3\ns_cselect_b32 s3, 0, 0x40000000\nv_mul_u32_u24 v{KA}, {KS}, v0\nv_or_b32 v{KA}, s3, v{KA}")
            A.e(f"s_mul_i32 s15, s{sW}, {128*KS}\ns_add_u32 s15, s15, {WS_KEY}\ns_add_u32 s59, s15, {64*KS}\ns_lshl_b32 s3, s{sW}, 7\ns_sub_u32 s3, s{sT8}, s3\nv_cmp_eq_u32 s[60:61], s3, v0\ns_sub_u32 s3, s3, 64\nv_cmp_eq_u32 s[62:63], s3, v0")
        for g in range(4):
            A.wait(vm=("p", i, g, 0)); pace(step=5 * i + 1 + g); acc(ACC + 8, R0 + 4 + 8 * g, i == 0 and g == 0)
            A.wait(vm=("p", i, g, 1)); acc(ACC, R0 + 8 + 8 * g, i == 0 and g == 0)
    assert not pend and not fww
    A.stamp()
    A.wait(lg="ga")
    for q in range(12): A.e(f"v_pk_fma_f32 {v(ACC+2*q,2)}, {v(ACC+2*q,2)}, {v(GA+2*q,2)}, {v(D+2*q,2)}")
    MU, M2, DD = TM, TM + 1, TM + 2
    dot24p(A, MU, 12, ACC, None); xsum8(A, [MU], TM + 3)
    A.e(f"v_mul_f32 v{MU}, {hex(f2u(1/144))}, v{MU}")
    for i in range(0, 24, 2): A.e(f"v_pk_add_f32 {v(D+i,2)}, {v(ACC+i,2)}, {v(MU,2)} op_sel_hi:[1,0] neg_lo:[0,1] neg_hi:[0,1]")
    dot24p(A, M2, 12, D, D); dot24p(A, DD, 12, D, U); xsum8(A, [M2, DD], TM + 3)
    for k in range(3): A.lds(f"ds_write_b32 v10, v{TM+k} offset:{128*k}", "sw")
    A.wait(lg="sw"); A.e("s_barrier")
    R = GA
    for k in range(5): A.lds(f"ds_read_b128 {v(R+4*k,4)}, v11 offset:{128*k}", ("sr", k))
    A.wait(lg=("sr", 0))
    A.e(f"v_add_f32 v12, v{R}, v{R+1}\nv_add_f32 v13, v{R+2}, v{R+3}\nv_add_f32 v12, v12, v13\nv_mul_f32 v12, 0x3e800000, v12")
    for k in range(4): A.e(f"v_sub_f32 v{R+k}, v{R+k}, v12")
    A.e(f"v_sub_f32 v{MU}, v{MU}, v12\nv_mul_f32 v13, v{R}, v{R}")
    for k in range(1, 4): A.e(f"v_fmac_f32 v13, v{R+k}, v{R+k}")
    A.wait(lg=("sr", 1))
    A.e(f"v_add_f32 v14, v{R+4}, v{R+5}\nv_add_f32 v15, v{R+6}, v{R+7}\nv_add_f32 v14, v14, v15\nv_fmac_f32 v14, {hex(f2u(144.0))}, v13")
    A.e(f"v_mov_b32 v13, {hex(f2u(1e-5))}\nv_fmac_f32 v13, {hex(f2u(1/576))}, v14\nv_rsq_f32 v13, v13")
    A.wait(lg=("sr", 4))
    K1, K2 = R + 4, R + 5
    for k in (0, 2): A.e(f"v_pk_fma_f32 {v(R+8+k,2)}, {v(R+k,2)}, {v(R+12+k,2)}, {v(R+8+k,2)}")
    A.e(f"v_pk_add_f32 {v(R+8,2)}, {v(R+8,2)}, {v(R+10,2)}\nv_pk_add_f32 {v(R+16,2)}, {v(R+16,2)}, {v(R+18,2)}\nv_add_f32 v14, v{R+8}, v{R+9}\nv_add_f32 v15, v{R+16}, v{R+17}\nv_fmac_f32 v15, v14, v13")
    A.e(f"v_ashrrev_i32 v12, 31, v15\nv_or_b32 v12, 0x80000000, v12\nv_xor_b32 v12, v12, v15\nv_and_or_b32 v{K1}, v12, s57, v{vFa}\nv_mov_b32 v{K2}, 0")
    top2_lanes(A, K1, K2, 14, 15, (1, 2, 4), ())
    A.e(f"buffer_store_dwordx2 {v(K1,2)}, v{vFl}, {s(sWs,4)}, s58 offen offset:8 sc1")
    kld = [f"buffer_load_dwordx2 {v(KV+2*h,2)}, v{KA}, {s(sWs,4)}, {'s59' if h else 's15'} offen offset:8 sc1" for h in range(2)]
    if opt.get("kearly", 0): A.e("\n".join(kld))
    A.stamp()
    A.e(f"v_mul_f32 v{MU}, v{MU}, v13")
    for i in range(0, 24, 2): A.e(f"v_pk_fma_f32 {v(D+i,2)}, {v(D+i,2)}, v[12:13], {v(MU,2)} op_sel:[0,1,0] op_sel_hi:[1,1,0]")
    for i in range(0, 24, 2): A.e(f"v_pk_fma_f32 {v(D+i,2)}, {v(D+i,2)}, {v(CB+i,2)}, {v(SB+i,2)}")
    for m, src in ((1, D), (0, ACC)):
        if m == 0:
            for i in range(0, 24, 2): A.e(f"v_pk_fma_f32 {v(ACC+i,2)}, {v(D+i,2)}, {v(GB+i,2)}, {v(ACC+i,2)}")
        for i in range(3):
            d = CB + 12 * m + 4 * i
            for q in range(4): A.e(f"v_cvt_pk_bf16_f32 v{d+q}, v{src+8*i+2*q}, v{src+8*i+2*q+1}")
            if m == 1:
                for q in range(4): A.e(f"v_min_u32 v{d+q}, -2, v{d+q}")
            A.lds(f"ds_write_b128 v{vXC if i == 2 else vXA}, {v(d,4)} offset:{9344*m + (512 if i == 1 else 0)}", "tw")
    A.e(f"v_lshrrev_b32 v7, 4, v0\nv_and_b32 v6, 1, v0\nv_bfe_u32 v5, v0, 2, 2\nv_lshlrev_b32 v5, 6, v5\nv_lshl_add_u32 v5, v7, 4, v5\nv_mov_b32 v14, {SCR + 1792}")
    A.wait(lg="tw"); A.e(f"s_barrier\ns_cmp_lt_u32 s{sW}, 2\ns_cbranch_scc1 L2_keys")
    for r in range(9): A.lds(f"ds_read_b128 {v(SB+4*r,4)}, v{vR1 if r == 8 else vR0} offset:{1024 if r == 8 else 1168*r}", ("tr", r))
    for r in range(9):
        if r in (0, 4): A.e(f"s_movk_i32 s3, {1152*r}")
        A.wait(lg=("tr", r))
        A.e(f"buffer_store_dwordx4 {v(SB+4*r,4)}, v{vR2 if r == 8 else vX}, {s(sSt,4)}, {0 if r == 8 else 's3'} offen offset:{1024 if r == 8 else 1152*(r%4)} sc1")
    if opt.get("far", 1) == 1: A.items(far)
    rdy = f"buffer_store_dword v14, v{vFl}, {s(sWs,4)}, s{sFs} offen offset:128 sc1"
    A.e(f"s_cmp_lt_u32 s2, 144\ns_cbranch_scc1 L2_join\ns_waitcnt vmcnt(0)\n{rdy}\ns_cmp_lt_u32 s2, 180\ns_cbranch_scc1 L2_join\ns_branch L2_fin")
    A.label("L2_keys")
    A.e("s_cmp_ge_u32 s2, 180\ns_cbranch_scc1 L2_fin")
    if not opt.get("kearly", 0): A.e("\n".join(kld))
    if opt.get("far", 1) == 1: A.items(far)
    ktest = "\n".join(f"v_cndmask_b32 v{KV+2*h+k}, v{KV+2*h+k}, v{K1+k}, {s(60+2*h,2)}" for h in range(2) for k in range(2))
    ktest += f"\nv_min_u32 v12, v{KV}, v{KV+1}\nv_min_u32 v13, v{KV+2}, v{KV+3}\nv_cmp_eq_u32 s[4:5], 0, v12\nv_cmp_eq_u32 s[6:7], 0, v13\ns_nop 0\ns_or_b64 vcc, s[4:5], s[6:7]"
    A.e(f"s_waitcnt vmcnt(0)\n{ktest}\ns_cbranch_scc0 L2_p2_ok")
    poll(A, "L2_p2", f"s_or_b64 exec, s[4:5], 1\n{kld[0]}\ns_or_b64 exec, s[6:7], 1\n{kld[1]}\ns_mov_b64 exec, -1", ktest, opt.get("sl2", 1))
    merge2(A, KV, KV + 1, KV + 2, KV + 3)
    top2_lanes(A, KV, KV + 1, 12, 13, (1, 2, 4, 8), ("v_permlane16_swap_b32", "v_permlane32_swap_b32"))
    A.e(f"s_lshl3_add_u32 s3, s{sW}, {SCR + 1792}\nv_mov_b32 v12, s3\nds_write_b64 v12, {v(KV,2)}\ns_waitcnt lgkmcnt(0)")
    A.label("L2_join")
    A.stamp()
    A.vm = []; A.lg = []
    A.e("s_barrier\nds_read_b128 v[16:19], v14\nv_cmp_eq_u32 vcc, 0, v6\ns_waitcnt lgkmcnt(0)")
    merge2(A, 16, 17, 18, 19)
    A.e("v_cndmask_b32 v16, v17, v16, vcc\nv_and_b32 v3, 0x7ff, v16\nv_sub_u32 v3, 2047, v3\nv_mul_u32_u24 v4, 1152, v3")
    A.stamp()
    A.e("s_cmp_ge_u32 s2, 144\ns_cbranch_scc1 L2_red")
    A.e(f"v_add_u32 v5, v5, v4\ns_mov_b32 s59, {WS_H2}")
    H = 128
    A.e("v_and_b32 v12, 8, v0\nv_lshlrev_b32 v12, 4, v12\nv_sub_u32 v3, v5, v12")
    hld = [f"buffer_load_dwordx4 {v(H+4*i,4)}, v{3 if i == 4 else 5}, {s(sWs,4)}, s59 offen offset:{256*i} sc1" for i in range(5)]
    for x in hld: A.vmem(x, "h")
    LX = SCR + 1024
    A.e(f"v_lshlrev_b32 v11, 7, v6\nv_lshl_add_u32 v13, v7, 5, v11\nv_add_u32 v13, {LX}, v13\nv_lshl_add_u32 v11, v7, 4, v11")
    A.e(f"s_lshr_b32 s3, s{sW}, 1\ns_lshl_b32 s3, s3, 8\ns_and_b32 s14, s{sW}, 1\ns_lshl_b32 s14, s14, 6\ns_add_u32 s3, s3, s14\ns_add_u32 s3, s3, {LX}\nv_add_u32 v11, s3, v11")
    A.e(f"s_mul_i32 s14, s{sW}, 1152\ns_mul_i32 s15, s2, 4608\ns_add_u32 s15, s15, s14\ns_add_u32 s15, s15, {WS_YP}\nv_lshlrev_b32 v10, 3, v0")
    A.wait(vm="h"); A.e(rdy)
    htree = [f"v_max_u32 v12, v{H}, v{H+1}"] + [f"v_max3_u32 v12, v12, v{H+2*k}, v{H+2*k+1}" for k in range(1, 10)] + ["v_cmp_eq_u32 vcc, -1, v12"]
    A.label("L2_hr")
    for n_, kk in enumerate((0, 1, 2, 3, 4, 5, 6, 7, 8, 9, 10, 11, 14, 15, 12, 13, 17, 16)):
        d = v(88 + 4 * (kk % 4), 4)
        A.e(f"{MF} {d}, {a(aF+4*kk,4)}, {v(H+4*(kk//4),4)}, {'0' if kk < 4 else d}")
        if n_ < len(htree): A.e(htree[n_])
    A.e("s_cmp_lg_u64 vcc, 0\ns_cbranch_scc1 L2_hs\ns_nop 1")
    B.label("L2_hs")
    poll(B, "L2_h", "\n".join(hld), "\n".join(htree))
    for k in range(20): B.e(f"v_min_u32 v{H+k}, -2, v{H+k}")
    B.e("s_nop 1\ns_branch L2_hr")
    for i in range(4): A.e(f"v_add_f32_dpp v{96+i}, v{100+i}, v{96+i} row_shl:4 row_mask:0xf bank_mask:0xf bound_ctrl:1")
    for i in range(4): A.e(f"v_add_f32_dpp v{88+i}, v{92+i}, v{88+i} row_shl:4 row_mask:0xf bank_mask:0xf bound_ctrl:1")
    for i in range(4): A.e(f"v_add_f32_dpp v{88+i}, v{96+i}, v{88+i} row_shl:8 row_mask:0xf bank_mask:0xf bound_ctrl:1")
    A.e("s_mov_b32 exec_lo, 0x30003\ns_mov_b32 exec_hi, 0x30003")
    A.lds("ds_write_b128 v11, v[88:91]", "x"); A.e("s_mov_b64 exec, -1"); A.wait(lg="x"); A.e("s_barrier")
    for i in range(4): A.lds(f"ds_read_b128 {v(16+4*i,4)}, v13 offset:{(i//2)*256 + (i%2)*16}", ("y", i // 2))
    A.e(f"v_mov_b32 v12, {hex(f2u(-LOG2E))}")
    A.wait(lg=("y", 0))
    for i in range(0, 8, 2): A.e(f"v_pk_mul_f32 {v(32+i,2)}, {v(16+i,2)}, v[12:13] op_sel_hi:[1,0]")
    for i in range(8): A.e(f"v_exp_f32 v{32+i}, v{32+i}")
    for i in range(0, 8, 2): A.e(f"v_pk_add_f32 {v(32+i,2)}, {v(32+i,2)}, 1.0 op_sel_hi:[1,0]")
    for i in range(8): A.e(f"v_rcp_f32 v{32+i}, v{32+i}")
    A.wait(lg=("y", 1))
    for i in range(0, 8, 2): A.e(f"v_pk_mul_f32 {v(16+i,2)}, {v(16+i,2)}, {v(32+i,2)}")
    for i in range(0, 8, 2): A.e(f"v_pk_mul_f32 {v(16+i,2)}, {v(16+i,2)}, {v(24+i,2)}")
    for q in range(4): A.e(f"v_cvt_pk_bf16_f32 v{40+q}, v{16+2*q}, v{17+2*q}")
    A.e("s_nop 1")
    for nt in range(9): A.e(f"{MF} {v(48+4*nt,4)}, v[40:43], {a(aF+72+4*nt,4)}, 0")
    A.e("s_nop 0")
    for half in range(2):
        for G_ in range(4):
            for t in range(2):
                if half == 0 and G_ == 0: continue
                A.e(f"v_mov_b32_dpp v{48+2*half+t}, v{48+4*(4*half+G_)+t} quad_perm:[0,1,2,3] row_mask:{hex(1 << G_)} bank_mask:0xf")
            if G_ < 3 and not (half == 0 and G_ == 0): A.e("s_nop 0")
    for r_ in (48, 49, 50, 51, 80, 81): A.e(f"v_min_u32 v{r_}, -2, v{r_}")
    A.e(f"buffer_store_dwordx4 v[48:51], v{vX}, {s(sWs,4)}, s15 offen sc1\ns_mov_b64 exec, 0xffff\nbuffer_store_dwordx2 v[80:81], v10, {s(sWs,4)}, s15 offen offset:1024 sc1")
    A.e("s_branch L2_fin")
    A.label("L2_red")
    A.vm = []; A.lg = []
    A.e(f"s_mov_b32 s3, {WS_YP}"); A.srd(sYp, sWs, YP_BYTES, "s3")
    A.e("s_sub_u32 s3, s2, 144\ns_mul_i32 s14, s3, 7282\ns_lshr_b32 s14, s14, 16\ns_mul_i32 s15, s14, 9\ns_sub_u32 s15, s3, s15\ns_mul_i32 s14, s14, 144")
    A.e("s_cmp_eq_u32 s15, 8\ns_cselect_b32 s56, 1, 64\ns_cselect_b32 s57, 2, 1\ns_cselect_b32 s15, 16, s15\ns_lshl3_add_u32 s14, s15, s14")
    A.e("v_bfe_u32 v7, v0, 2, 3\nv_mul_u32_u24 v7, s57, v7\nv_bfe_u32 v9, v0, 1, 1\nv_mul_u32_u24 v9, s56, v9\nv_add3_u32 v7, v7, v9, s14\nv_lshl_add_u32 v9, v7, 1, v4\nv_lshlrev_b32 v7, 2, v7")
    A.e(f"v_lshrrev_b32 v12, 7, v3\nv_bfe_u32 v13, v3, 3, 4\nv_lshl_add_u32 v13, v12, 6, v13\nv_lshlrev_b32 v13, 8, v13\ns_mov_b32 s59, {WS_F1 + 2*16*256}")
    poll(A, "L2_r", f"buffer_load_dword v12, v13, {s(sWs,4)}, s59 offen offset:128 sc1", "v_cmp_eq_u32 vcc, 0, v12")
    A.e(f"buffer_load_ushort v18, v9, {s(sOut,4)}, 0 offen sc1\nds_read_b32 v20, v7 offset:{3*2304}")
    A.e(f"v_and_b32 v6, 7, v0\nv_lshrrev_b32 v10, 3, v0\ns_lshl_b32 s14, s{sW}, 3\nv_add_u32 v10, s14, v10\nv_mul_u32_u24 v10, 4608, v10\nv_lshl_add_u32 v10, v6, 4, v10\ns_lshl_b32 s3, s3, 7\nv_add_u32 v24, s3, v10")
    for r in range(1, 5): A.e(f"v_add_u32 v{24+r}, {147456*r}, v24")
    A.e("v_and_b32 v16, 0xfffff800, v16\nv_not_b32 v12, v16\nv_ashrrev_i32 v12, 31, v12\nv_or_b32 v12, 0x80000000, v12\nv_xor_b32 v16, v16, v12")
    A.e(f"v_mul_f32 v16, {hex(f2u(-LOG2E))}, v16\nv_exp_f32 v16, v16\ns_nop 0\nv_add_f32 v16, 1.0, v16\nv_rcp_f32 v16, v16\ns_waitcnt lgkmcnt(0)\nv_mul_f32 v20, v20, v16")
    A.e(f"s_lshl_b32 s14, s{sW}, 7\ns_add_u32 s14, s14, {SCR + 2048}\nv_lshl_add_u32 v10, v6, 4, s14\nv_and_b32 v11, 31, v0\nv_lshlrev_b32 v11, 2, v11")
    if opt.get("pre3", 0):
        A.e("s_mov_b64 exec, 1")
        poll(A, "L2_p3a", f"buffer_load_dword v32, v24, {s(sYp,4)}, 0 offen sc1", "v_cmp_eq_u32 vcc, -1, v32", opt.get("sl3", 1))
        A.e("s_mov_b64 exec, -1")
    tree = "v_max3_u32 v12, v32, v33, v34\n" + "\n".join(f"v_max3_u32 v12, v12, v{35+2*i}, v{36+2*i}" for i in range(8)) + "\nv_max_u32 v12, v12, v51\nv_cmp_eq_u32 vcc, -1, v12"
    poll(A, "L2_p3", "\n".join(f"buffer_load_dwordx4 {v(32+4*r,4)}, v{24+r}, {s(sYp,4)}, 0 offen sc1" for r in range(5)), tree, 0)
    for i in range(0, 4, 2):
        A.e(f"v_pk_add_f32 {v(32+i,2)}, {v(32+i,2)}, {v(36+i,2)}\nv_pk_add_f32 {v(40+i,2)}, {v(40+i,2)}, {v(44+i,2)}\nv_pk_add_f32 {v(32+i,2)}, {v(32+i,2)}, {v(48+i,2)}\nv_pk_add_f32 {v(32+i,2)}, {v(32+i,2)}, {v(40+i,2)}")
    xsum8(A, [32, 33, 34, 35], 12)
    A.e("ds_write_b128 v10, v[32:35]\ns_waitcnt lgkmcnt(0)\ns_barrier")
    A.e(f"s_cmp_lg_u32 s{sW}, 0\ns_cbranch_scc1 L2_fin")
    for k in range(4): A.e(f"ds_read_b32 v{32+k}, v11 offset:{SCR + 2048 + 128*k}")
    A.e("v_lshlrev_b32 v12, 16, v18\ns_mov_b32 exec_hi, 0\ns_waitcnt lgkmcnt(0)")
    A.e("v_pk_add_f32 v[32:33], v[32:33], v[34:35]\nv_add_f32 v32, v32, v33\nv_fmac_f32 v12, v32, v20\nv_cvt_pk_bf16_f32 v12, v12, v12")
    A.e(f"buffer_store_short v12, v9, {s(sOut,4)}, 0 offen{opt.get('finf', ' sc1')}")
    A.label("L2_fin")
    if A.stamping: A.e("s_mov_b64 exec, -1")
    A.stamp()
    if opt.get("enc"):
        ea, eb, clk = opt["enc"]; o = 0 if clk else 1
        A.e("s_cmp_lg_u32 s2, 150\ns_cbranch_scc1 L2_noenc")
        if ea < 0:
            A.e(f"s_load_dwordx2 s[60:61], s[0:1], 112\ns_waitcnt lgkmcnt(0)\ns_mov_b32 s62, 0x10000000\ns_mov_b32 s63, 0x20000\nv_mov_b32 v2, {WS_STAMP + 150*1024 + 4}\nbuffer_load_dword v1, v2, s[60:63], 0 offen\ns_waitcnt vmcnt(0)")
        A.e(f"v_accvgpr_read_b32 v1, a61\ns_nop 0\nv_readlane_b32 s56, v1, {2*eb+o}\nv_readlane_b32 s57, v1, {2*ea+o}\ns_nop 0\ns_sub_u32 s56, s56, s57")
        A.e("s_lshr_b32 s56, s56, 3" if clk else "s_lshl_b32 s56, s56, 2")
        A.e("s_min_u32 s56, s56, 100000\ns_mov_b32 s57, s93")
        A.label("L2_enc")
        A.e("s_memrealtime s[94:95]\ns_waitcnt lgkmcnt(0)\ns_sub_u32 s58, s94, s57\ns_cmp_lt_u32 s58, s56\ns_cbranch_scc1 L2_enc")
        A.label("L2_noenc")
    else: A.stamp_flush(1, WS_STAMP, sW)

OPT = {}
def gen_k2(opt={}):
    OPT.clear(); OPT.update(opt)
    A = Asm(); A.stamp_agpr = 60
    A.label("L2_begin")
    A.e("s_getpc_b64 s[98:99]")
    A.e("s_cmp_ge_u32 s2, 256\ns_cbranch_scc1 L2_end")
    A.stamp()
    for d, off in ((sXi, 0), (sC, 80), (sWm, 88), (12, 112), (sDb, 104)): A.e(f"s_load_dwordx2 {s(d,2)}, s[0:1], {off}")
    vTid = 155
    tch = opt.get("touch", "cq")
    A.e(f"s_and_b32 s3, s2, 7\ns_lshr_b32 s14, s2, 3\nv_mov_b32 v{vTid}, v0\nv_lshrrev_b32 v10, 6, v0\nv_and_b32 v0, 63, v0")
    if "c" in tch:
        A.e(f"s_lshl_b32 s15, s14, 9\nv_lshl_add_u32 v13, v10, 7, s15\nv_lshl_add_u32 v13, v0, 14, v13\nv_min_u32 v13, L2_codeend-L2_begin-8, v13\ns_mov_b64 exec, 31")
        A.vmem(f"global_load_dword a{aDum}, v13, s[98:99]"); A.e("s_mov_b64 exec, -1")
    A.e(f"v_readfirstlane_b32 s{sW}, v10")
    A.e(f"s_and_b32 s{sG}, s3, 3\ns_and_b32 s15, s14, 3\ns_lshl2_add_u32 s{sG}, s{sG}, s15")
    A.e(f"s_lshr_b32 s{sTb}, s3, 2\ns_lshr_b32 s15, s14, 2\ns_lshl3_add_u32 s{sTb}, s{sTb}, s15\ns_lshl4_add_u32 s{sT8}, s{sTb}, s{sG}")
    sP, sSl, sHf = sCnt, sPass, sW9
    A.e(f"s_mul_i32 s{sP}, s3, 27\ns_max_u32 s14, s14, 5\ns_add_u32 s{sP}, s{sP}, s14\ns_sub_u32 s{sP}, s{sP}, 5\ns_lshr_b32 s{sHf}, s3, 2\ns_mul_i32 s15, s{sHf}, 108\ns_sub_u32 s{sSl}, s{sP}, s15")
    item_addr(A, 288, 288, 256)
    vW4, vW1 = 153, 154
    A.e(f"v_and_b32 v4, 0xfc, v{vTid}\nv_and_b32 v7, 3, v0\nv_mul_u32_u24 v3, 6912, v4\nv_lshl_add_u32 v{vW4}, v7, 4, v3")
    A.e(f"s_mul_i32 s3, s{sT8}, 9216\ns_movk_i32 s{sXi+2}, 9216\ns_mov_b32 s{sXi+3}, 0x20000\ns_mov_b32 s{sWm+3}, s{sXi+3}")
    A.e(f"v_lshlrev_b32 v{vX}, 4, v0\ns_mov_b32 s{sWs+2}, {WS_SIZE}\ns_mov_b32 s{sWs+3}, s{sXi+3}\ns_movk_i32 s{sDb+2}, 256\ns_mov_b32 s{sDb+3}, s{sXi+3}")
    A.e(f"s_lshl_b32 s14, s{sSl}, 6\ns_sub_u32 s{sWm+2}, {288*6912}, s14\ns_cmp_ge_u32 s2, 40\ns_cselect_b32 s{sWm+2}, s{sWm+2}, 0\ns_mul_i32 s15, s{sHf}, {288*6912}\ns_add_u32 s14, s14, s15")
    A.e("s_waitcnt lgkmcnt(0)")
    A.fstamp()
    A.e(f"s_add_u32 s{sXi}, s{sXi}, s3\ns_addc_u32 s{sXi+1}, s{sXi+1}, 0")
    for pre, ld in xi_loads(128): A.item(ld)
    A.e(f"s_add_u32 s{sWm}, s{sWm}, s14\ns_addc_u32 s{sWm+1}, s{sWm+1}, 0")
    ncl = opt.get("ncl", 8); nst = 16 // ncl
    A.e(f"s_mov_b64 {s(sWs,2)}, s[12:13]\ns_cmp_ge_u32 s2, {ncl}\ns_cbranch_scc1 L2_noclr")
    assert ncl == 8
    for i in range(4): A.e(f"v_mov_b32 v{52+i}, -1\nv_mov_b32 v{56+i}, 0")
    A.e(f"s_lshl2_add_u32 s15, s2, s{sW}\ns_lshl_b32 s3, s15, 10\nbuffer_store_dwordx4 v[52:55], v{vX}, {s(sWs,4)}, s3 offen sc1")
    A.e(f"v_lshrrev_b32 v13, 3, v0\nv_mul_u32_u24 v13, {KS - 128}, v13\nv_add_u32 v13, v13, v{vX}\ns_mul_i32 s3, s15, {8*KS}\ns_add_u32 s3, s3, {WS_KEY}\nbuffer_store_dwordx4 v[56:59], v13, {s(sWs,4)}, s3 offen sc1")
    A.label("L2_noclr")
    nclr = len(A.vm)
    WM, CC = 128, 148
    nw0 = opt.get("nw0", 4)
    def wload(i):
        if 0 < i < 4: A.e(f"s_movk_i32 s3, {6912*i}")
        A.vmem(f"buffer_load_dwordx4 {v(WM+4*i,4)}, v{vW4 if i < 4 else vW1}, {s(sWm,4)}, {'s3' if 0 < i < 4 else 0} offen", ("w", i))
    for i in range(min(nw0, 4)): wload(i)
    A.fstamp()
    A.e(f"v_lshrrev_b32 v3, 2, v3\nv_lshl_add_u32 v3, v7, 4, v3\nv_add_u32 v{vW1}, {256*6912}, v3\nv_lshrrev_b32 v3, 1, v4\nv_lshlrev_b32 v4, 1, v4")
    A.e(f"s_mul_i32 s3, s{sHf}, 576"); A.srd(sC, sC, 576, "s3")
    A.vmem(f"buffer_load_dwordx2 {v(CC,2)}, v4, {s(sC,4)}, 0 offen", "c")
    for i in range(4): A.e(f"v_mov_b32 v{WM+16+i}, 0")
    A.e(f"v_mov_b32 v{CC+2}, 0\ns_cmp_ge_u32 s{sW}, 2\ns_cbranch_scc1 L2_w23")
    A.e(f"buffer_load_dwordx4 {v(WM+16,4)}, v{vW1}, {s(sWm,4)}, 0 offen\nbuffer_load_ushort v{CC+2}, v3, {s(sC,4)}, 0 offen offset:512")
    A.label("L2_w23")
    A.e("s_load_dwordx8 s[4:11], s[0:1], 8")
    for d, off in ((sWg, 56), (sWu, 64), (sWd, 72), (sOut, 96), (sWr, 48)): A.e(f"s_load_dwordx2 {s(d,2)}, s[0:1], {off}")
    B = Asm()
    A.fstamp()
    F = 156
    vL7, vSt, vSw, vXs, vYc, vMw, vL4, vXf, vMs = F, F + 1, F + 2, F + 3, F + 4, F + 5, F + 6, F + 7, F + 8
    SA, SD, SV = F + 10, F + 11, F + 12
    A.e(f"s_cmp_eq_u32 s{sW}, 0\ns_cselect_b32 s3, 0, 0x40000000\nv_mul_u32_u24 v{vL7}, {256//ncl}, v0\nv_or_b32 v{vL7}, s3, v{vL7}\ns_mul_i32 s{sW4}, s{sW}, {4*PIECE}\ns_add_u32 s{sW4}, s{sW4}, {RING}\nv_lshl_add_u32 v{vKV}, v10, 12, v{vX}")
    A.e(f"v_lshrrev_b32 v13, 5, v0\nv_lshl_add_u32 v13, v10, 1, v13\nv_lshlrev_b32 v13, 15, v13\nv_and_b32 v14, 31, v0\nv_lshl_add_u32 v{vWq}, v14, 4, v13")
    for i in range(4): A.e(f"v_mov_b32 v{56+i}, 0\nv_mov_b32 v{60+i}, -1")
    A.e(f"s_and_b32 s14, s{sTb}, 7\ns_lshl2_add_u32 s14, s14, s{sW}\nv_lshrrev_b32 v13, 2, v0\nv_lshl_add_u32 v13, v13, 5, s14\nv_lshlrev_b32 v13, 13, v13\nv_lshl_add_u32 v13, v7, 7, v13")
    A.e("s_waitcnt lgkmcnt(0)")
    A.e(f"s_lshl_b32 s3, s{sG}, 9"); A.srd(sWq, 8, 0, "s3"); A.e(f"s_sub_u32 s{sWq+2}, {576*8192}, s3")
    if True:
        nq = opt.get("nq", 16)
        A.e(f"s_mov_b64 exec, {hex((1 << nq) - 1)}" if nq <= 31 else f"s_mov_b32 exec_hi, {hex((1 << (nq - 32)) - 1)}")
        A.vmem(f"buffer_load_dword a{aDum}, v13, {s(sWq,4)}, 0 offen", "tq"); A.e("s_mov_b64 exec, -1")
    A.e(f"s_mov_b32 s{sWr+2}, 1152\ns_mov_b32 s{sWr+3}, 0x20000")
    A.stamp()
    ST = SCR + 256; MP = RING
    sF1, sYc, sXs, sXf, sMl, sKy, sMul, sAdd = 56, 57, 58, 59, 100, 101, sBase, sDel
    A.e(f"v_and_b32 v14, 7, v0\nv_lshlrev_b32 v{vSt}, 4, v14\nv_add_u32 v{vSt}, {ST}, v{vSt}\nv_lshl_add_u32 v{vSw}, v10, 2, v{vSt}")
    A.e(f"s_mul_i32 s3, s{sW}, {18*256}\nv_lshl_add_u32 v14, v14, 4, s3\nv_lshrrev_b32 v15, 3, v0\nv_lshl_add_u32 v{vXs}, v15, 8, v14")
    A.e(f"s_lshr_b32 s3, s{sT8}, 1\ns_mul_i32 s3, s3, 18432\ns_and_b32 s14, s{sT8}, 1\ns_lshl_b32 s14, s14, 7\ns_add_u32 s3, s3, s14\ns_add_u32 s{sXs}, s3, {WS_XN}")
    A.e(f"s_lshl_b32 s3, s{sTb}, 2\ns_add_u32 s3, s3, s{sW}\ns_lshl_b32 s14, s3, 4\ns_add_u32 s14, s14, s{sG}\ns_lshl_b32 s14, s14, 8\ns_add_u32 s{sF1}, s14, {WS_F1}")
    A.e(f"s_mul_i32 s14, s3, {4*KS}\ns_add_u32 s{sXf}, s14, {WS_KEY}\nv_and_b32 v14, 3, v0\nv_mul_u32_u24 v{vXf}, {KS}, v14")
    A.e(f"s_mul_i32 s14, s3, 36864\ns_add_u32 s14, s14, {WS_XN}"); A.srd(sXn, 12, 36864, "s14")
    A.e(f"s_mul_i32 s15, s2, 4608\ns_mul_i32 s14, s{sW}, 1152\ns_add_u32 s15, s15, s14\ns_add_u32 s{sYc}, s15, {WS_YP}")
    A.e(f"s_cmp_ge_u32 s2, 144\ns_cselect_b32 s14, 0x40000000, 0\nv_or_b32 v{vYc}, s14, v{vX}")
    A.e(f"v_lshrrev_b32 v12, 4, v{vTid}\nv_lshlrev_b32 v12, 7, v12\nv_lshl_add_u32 v{vMw}, v7, 5, v12\nv_lshlrev_b32 v{vL4}, 2, v0")
    A.e(f"s_mul_i32 s3, s{sSl}, 3641\ns_lshr_b32 s3, s3, 16\ns_mov_b32 s{sMul}, 1.0\ns_mov_b32 s{sAdd}, 0\ns_cmp_lt_u32 s3, 2\ns_cselect_b32 s{sMul}, {hex(f2u(C0))}, s{sMul}")
    A.e(f"s_cmp_eq_u32 s3, 1\ns_cselect_b32 s{sAdd}, {hex(f2u(C0))}, s{sAdd}\ns_cmp_eq_u32 s3, 4\ns_cselect_b32 s{sAdd}, 1.0, s{sAdd}\ns_cmp_eq_u32 s{sHf}, 0\ns_cselect_b32 s{sAdd}, s{sAdd}, 0")
    A.e(f"s_lshl_b32 s{sMl}, s{sP}, 7\ns_mul_i32 s14, s{sT8}, {KS}\ns_add_u32 s{sKy}, s14, {WS_KEY}")
    A.e(f"s_mul_i32 s3, s{sW}, 1152\nv_add_u32 v{SA}, s3, v{vX}")
    A.e(f"s_and_b32 s3, s{sW}, 1\ns_mul_i32 s3, s3, {36*64}\ns_cmp_lt_u32 s{sW}, 2\ns_cselect_b32 s14, 32, 0\ns_add_u32 s3, s3, s14\ns_add_u32 s3, s3, {ASB}")
    A.e(f"v_lshrrev_b32 v14, 1, v0\nv_lshl_add_u32 v14, v14, 6, s3\nv_and_b32 v15, 1, v0\nv_lshl_add_u32 v{SD}, v15, 4, v14")
    A.e(f"s_cmp_eq_u32 s{sW}, 1\ns_cselect_b32 s3, 40, 256\ns_cmp_ge_u32 s2, s3\ns_cselect_b32 s3, 0, 0x40000000\nv_or_b32 v{vMs}, s3, v{vL4}")
    for i in range(4): A.e(f"v_mov_b32 v{SV+4+i}, 0\nv_mov_b32 v{SV+12+i}, 0")
    A.e(f"s_lshl_b32 s3, s{sTb}, 2\ns_add_u32 s3, s3, s{sW}\nv_mov_b32 v12, v10")
    A.e(f"s_mul_i32 s14, s3, {4*147456}\ns_mul_i32 s15, s{sG}, 9216\ns_add_u32 s14, s14, s15\ns_add_u32 s14, s14, {WS_PART}"); A.srd(sPt, 12, 0, "s14"); A.e(f"s_sub_u32 s{sPt+2}, {4*147456}, s15")
    if opt.get("x_nostore"): A.e(f"s_mov_b32 s{sPt+2}, 0")
    A.e(f"s_lshl_b32 s3, s{sG}, 19"); A.srd(sK, 4, 524288, "s3"); A.srd(sV, 6, 524288, "s3")
    A.e(f"s_mul_i32 s3, s{sG}, 294912"); A.srd(sWo, 10, 294912, "s3")
    A.e(f"s_mov_b64 s[4:5], {s(sWg,2)}\ns_mov_b64 s[6:7], {s(sWu,2)}\ns_mov_b64 s[8:9], {s(sWd,2)}")
    A.e(f"s_mov_b32 s{sPass}, 0\ns_mul_i32 s{sW9}, s{sW}, 9216")
    A.e("s_min_u32 s15, s2, 143\ns_and_b32 s3, s15, 7\ns_mul_i32 s3, s3, 18\ns_lshr_b32 s15, s15, 3\ns_add_u32 s15, s15, s3\ns_lshl_b32 s3, s15, 6")
    A.srd(sWg, sWg, 0, "s3"); A.srd(sWu, sWu, 0, "s3")
    A.e(f"s_sub_u32 s14, {576*9216}, s3\ns_mul_i32 s3, s15, 36864"); A.srd(sWd, sWd, 0, "s3")
    A.e(f"s_cmp_lt_u32 s2, 144\ns_cselect_b32 s{sWg+2}, s14, 0\ns_cselect_b32 s{sWu+2}, s14, 0\ns_cselect_b32 s{sWd+2}, 36864, 0")
    A.e(f"s_mov_b32 s{sOut+2}, 2359296\ns_mov_b32 s{sOut+3}, 0x20000")

    A.e(f"v_lshrrev_b32 v13, 4, v0\nv_lshlrev_b32 v{vAS}, 6, v13")
    A.e(f"v_lshrrev_b32 v14, 2, v0\nv_mul_u32_u24 v14, {PIECE}, v14\nv_add_u32 v14, {RING}, v14")
    A.e(f"v_and_b32 v15, 1, v0\nv_lshlrev_b32 v15, 4, v15\nv_add_u32 v{vT}, v14, v15\nv_and_b32 v15, 2, v0\nv_lshl_add_u32 v{vT}, v15, 2, v{vT}\nv_add_u32 v{vT2}, {2*SLOT}, v{vT}")
    A.e(f"v_lshrrev_b32 v14, 3, v0\nv_lshlrev_b32 v14, 2, v14\nv_add_u32 v14, v14, v12\nv_mul_u32_u24 v14, {4*1152}, v14\nv_and_b32 v15, 7, v0\nv_lshl_add_u32 v{vWo}, v15, 4, v14")
    A.e(f"v_lshlrev_b32 v{vPt}, 4, v15\nv_lshl_add_u32 v{vPt}, v13, 7, v{vPt}\nv_bfe_u32 v14, v0, 3, 1\nv_mul_u32_u24 v14, 147456, v14\nv_add_u32 v{vPt}, v{vPt}, v14")
    def init_kv_addr():
        A.e(f"v_lshrrev_b32 v14, 2, v0\nv_mul_u32_u24 v14, {PIECE}, v14\nv_and_b32 v15, 3, v0\nv_lshl_add_u32 v14, v15, 3, v14\nv_add_u32 v{vV}, {RING + 2*SLOT + HALF}, v14")
        A.e(f"v_and_b32 v14, 15, v0\nv_mul_u32_u24 v14, {PIECE}, v14\nv_lshrrev_b32 v15, 4, v0\nv_lshl_add_u32 v14, v15, 4, v14\nv_add_u32 v{vK}, {RING + 2*SLOT}, v14")
    init_kv_addr()
    A.e(f"v_and_b32 v14, 1, v0\nv_cmp_eq_u32 vcc, 0, v14\nv_mov_b32 v{vIdx}, 0xeeeeeeee\nv_mov_b32 v15, 0x44444444\nv_cndmask_b32 v{vIdx}, v{vIdx}, v15, vcc")
    A.e(f"v_and_b32 v14, 2, v0\nv_cmp_eq_u32 vcc, 0, v14\nv_mov_b32 v15, 0x3f803f80\ns_nop 0\nv_cndmask_b32 v15, 0, v15, vcc")
    for i in range(4): A.e(f"v_accvgpr_write_b32 a{aOne+i}, v15\nv_accvgpr_write_b32 a{56+i}, -1")
    for i in range(16): A.e(f"v_accvgpr_write_b32 a{aL+i}, 0")
    A.e(f"s_cmp_ge_u32 s2, {ncl}\ns_cbranch_scc1 L2_noclr2")
    A.e(f"s_mul_i32 s14, s2, {256//ncl}\ns_mov_b64 exec, 1\ns_waitcnt vmcnt({len(A.vm) - nclr})\ns_barrier\nbuffer_store_dword v60, v{vL7}, {s(sDb,4)}, s14 offen sc1\ns_mov_b64 exec, -1")
    A.label("L2_noclr2")
    A.stamp()
    XF, MA, TF = 24, 16, 48
    A.wait(vm="xi"); A.fstamp()
    for i in range(nw0, 4): wload(i)
    for q in range(12): A.e(f"v_lshlrev_b32 v{XF+2*q}, 16, v{XR+q}\nv_and_b32 v{XF+2*q+1}, 0xffff0000, v{XR+q}")
    dot24p(A, TF, 12, XF, None); xsum8(A, [TF], TF + 2)
    A.e(f"v_mul_f32 v{TF}, {hex(f2u(1/144))}, v{TF}")
    for i in range(0, 24, 2): A.e(f"v_pk_add_f32 {v(XF+i,2)}, {v(XF+i,2)}, {v(TF,2)} op_sel_hi:[1,0] neg_lo:[0,1] neg_hi:[0,1]")
    dot24p(A, TF + 1, 12, XF, XF); xsum8(A, [TF + 1], TF + 2)
    A.lds(f"ds_write_b32 v{vSw}, v{TF}", "f"); A.lds(f"ds_write_b32 v{vSw}, v{TF+1} offset:128", "f")
    A.wait(lg="f"); A.e("s_barrier")
    A.lds(f"ds_read_b128 {v(MA,4)}, v{vSt}", "g0"); A.lds(f"ds_read_b128 {v(MA+4,4)}, v{vSt} offset:128", "g1")
    A.e(f"s_add_u32 s14, s{sXs}, 4096")
    A.wait(lg="g0")
    A.e(f"v_add_f32 v12, v{MA}, v{MA+1}\nv_add_f32 v13, v{MA+2}, v{MA+3}\nv_add_f32 v12, v12, v13\nv_mul_f32 v12, 0x3e800000, v12")
    for k in range(4): A.e(f"v_sub_f32 v{MA+k}, v{MA+k}, v12")
    A.e(f"v_sub_f32 v{TF}, v{TF}, v12\nv_mul_f32 v13, v{MA}, v{MA}")
    for k in range(1, 4): A.e(f"v_fmac_f32 v13, v{MA+k}, v{MA+k}")
    A.wait(lg="g1")
    A.e(f"v_add_f32 v14, v{MA+4}, v{MA+5}\nv_add_f32 v15, v{MA+6}, v{MA+7}\nv_add_f32 v14, v14, v15\nv_fmac_f32 v14, {hex(f2u(144.0))}, v13")
    A.e(f"v_mov_b32 v12, {hex(f2u(1e-5))}\nv_fmac_f32 v12, {hex(f2u(1/576))}, v14\nv_rsq_f32 v12, v12\ns_nop 0\nv_mul_f32 v{TF}, v{TF}, v12")
    for i in range(3):
        for q in range(0, 8, 2): A.e(f"v_pk_fma_f32 {v(XF+8*i+q,2)}, {v(XF+8*i+q,2)}, v[12:13], {v(TF,2)} op_sel_hi:[1,0,0]")
        for q in range(4): A.e(f"v_cvt_pk_f16_f32 v{XR+4*i+q}, v{XF+8*i+2*q}, v{XF+8*i+2*q+1}")
        if i == 2: A.e("s_mov_b64 exec, 0xffff")
        A.vmem(f"buffer_store_dwordx4 {v(XR+4*i,4)}, v{vXs}, {s(sWs,4)}, {'s14' if i == 2 else s(sXs)} offen offset:{2048*(i%2)} sc1")
    A.fstamp()
    A.vmem(f"buffer_store_dwordx4 v[56:59], v{vX}, {s(sWs,4)}, s{sF1} offen sc1")
    A.e("s_mov_b64 exec, 0xff")
    A.vmem(f"buffer_store_dwordx4 v[60:63], v{vYc}, {s(sWs,4)}, s{sYc} offen offset:1024 sc1"); A.e("s_mov_b64 exec, -1")
    A.vmem(f"buffer_store_dwordx4 v[60:63], v{vYc}, {s(sWs,4)}, s{sYc} offen sc1"); A.e(f"s_mov_b64 exec, {(1 << ncl) - 1}")
    p0 = f"buffer_load_dword v{TF+3}, v{vL7}, {s(sDb,4)}, 0 offen sc1"
    A.vmem(p0, "p0"); A.e("s_mov_b64 exec, -1")
    A.stamp()
    A.e(f"s_mul_i32 s3, s{sT8}, 147456\ns_add_u32 s3, s3, {WS_PART + 4096}"); A.srd(sPr, 12, 147456 - 4096, "s3")
    A.wait(vm="tq")
    CF = 40
    A.e(f"v_lshlrev_b32 v{CF}, 16, v{CC}\nv_and_b32 v{CF+1}, 0xffff0000, v{CC}\nv_lshlrev_b32 v{CF+2}, 16, v{CC+1}\nv_and_b32 v{CF+3}, 0xffff0000, v{CC+1}\nv_lshlrev_b32 v{CF+4}, 16, v{CC+2}")
    for i in range(5): A.e(f"v_mul_f32 v{MA+i}, {hex(f2u(-LOG2E))}, v{CF+i}")
    for i in range(5): A.e(f"v_exp_f32 v{MA+i}, v{MA+i}")
    for i in range(5): A.e(f"v_add_f32 v{MA+i}, 1.0, v{MA+i}")
    for i in range(5): A.e(f"v_rcp_f32 v{MA+i}, v{MA+i}")
    for i in range(5): A.e(f"v_mul_f32 v{XF+2*i}, v{CF+i}, v{MA+i}")
    for i in range(5):
        A.wait(vm=("w", i))
        for q in range(4):
            t = 12 + 2 * (q % 2)
            A.e(f"v_lshlrev_b32 v{t}, 16, v{WM+4*i+q}\nv_and_b32 v{t+1}, 0xffff0000, v{WM+4*i+q}")
            if i == 0: A.e(f"v_pk_mul_f32 {v(MA+2*q,2)}, {v(t,2)}, {v(XF,2)} op_sel_hi:[1,0]")
            else: A.e(f"v_pk_fma_f32 {v(MA+2*q,2)}, {v(t,2)}, {v(XF+2*i,2)}, {v(MA+2*q,2)} op_sel_hi:[1,0,1]")
    for sh in (4, 8):
        for q in range(8): A.e(f"v_add_f32_dpp v{MA+q}, v{MA+q}, v{MA+q} row_ror:{sh} row_mask:0xf bank_mask:0xf")
    A.e("s_mov_b32 exec_lo, 0xf000f\ns_mov_b32 exec_hi, 0xf000f")
    A.lds(f"ds_write_b128 v{vMw}, {v(MA,4)} offset:{MP}", "f"); A.lds(f"ds_write_b128 v{vMw}, {v(MA+4,4)} offset:{MP+16}", "f")
    A.e(f"s_mov_b64 exec, {(1 << ncl) - 1}")
    A.fstamp(); A.wait(vm="p0"); A.fstamp()
    A.e(f"v_cmp_eq_u32 vcc, s{sW}, v{TF+3}\ns_nop 0\ns_cmp_lg_u64 vcc, 0\ns_cbranch_scc1 L2_p0s"); A.label("L2_p0r")
    B.label("L2_p0s"); poll(B, "L2_p0", p0, f"v_cmp_eq_u32 vcc, 0, v{TF+3}"); B.e("s_branch L2_p0r")
    A.e("s_mov_b64 exec, 1"); A.wait(lg="f"); A.e("s_barrier")
    A.vmem(f"buffer_store_dword v60, v{vL7}, {s(sWs,4)}, s{sKy} offen sc1"); A.e("s_mov_b64 exec, -1")
    for i in range(8): A.lds(f"ds_read_b32 v{XF+i}, v{vL4} offset:{MP + 256*i}", "g2")
    A.wait(lg="g2")
    A.e(f"v_pk_add_f32 {v(XF,2)}, {v(XF,2)}, {v(XF+2,2)}\nv_pk_add_f32 {v(XF+4,2)}, {v(XF+4,2)}, {v(XF+6,2)}\nv_pk_add_f32 {v(XF,2)}, {v(XF,2)}, {v(XF+4,2)}\nv_add_f32 v52, v{XF}, v{XF+1}")
    A.e(f"v_mov_b32 v53, v52\nv_mov_b32 v54, s{sAdd}\ns_nop 0\nv_permlane32_swap_b32 v53, v52\nv_add_f32 v52, v52, v53")
    A.e(f"v_fma_f32 v52, v52, s{sMul}, v54\nv_min_u32 v52, -2, v52\ns_mov_b32 exec_hi, 0")
    A.vmem(f"buffer_store_dword v52, v{vMs}, {s(sWs,4)}, s{sMl} offen sc1"); A.e("s_mov_b64 exec, -1")
    A.fstamp()
    for c in range(opt.get("nl0", 2)): emit_dma(A, dmaL(c))
    A.stamp()
    if opt.get("walk", 1):
        A.e(f"s_mov_b64 exec, 0\ns_cmp_eq_u32 s{sW}, 0\ns_cbranch_scc1 L2_pad0\ns_cmp_eq_u32 s{sW}, 1\ns_cbranch_scc1 L2_pad1\ns_cmp_eq_u32 s{sW}, 2\ns_cbranch_scc1 L2_pad2\ns_branch L2_pad3")
        A.e(".p2align 12"); A.label("L2_walkret")
    A.e("s_mov_b64 exec, 15")
    poll(A, "L2_px", f"buffer_load_dword v13, v{vXf}, {s(sWs,4)}, s{sXf} offen sc1", "v_cmp_eq_u32 vcc, 0, v13")
    A.e("s_mov_b64 exec, -1")
    A.stamp()
    A.e("s_movk_i32 s14, 13824")
    sweep = [f"buffer_load_dwordx4 {v(SV+8*h,4)}, v{SA}, {s(sWs,4)}, {'s14' if h else 0} offen sc1" for h in range(2)]
    sweep += [("s_mov_b64 exec, 0xff\n" if h == 0 else "") + f"buffer_load_dwordx4 {v(SV+8*h+4,4)}, v{SA}, {s(sWs,4)}, {'s14' if h else 0} offen offset:1024 sc1" + ("\ns_mov_b64 exec, -1" if h else "") for h in range(2)]
    tree = f"v_max_u32 v13, v{SV}, v{SV+1}\n" + "\n".join(f"v_max3_u32 v13, v13, v{SV+2*k}, v{SV+2*k+1}" for k in range(1, 8)) + "\nv_cmp_eq_u32 vcc, -1, v13"
    for x in sweep: A.vmem(x, "sw")
    for c in range(2):
        for pre, ld in xload(c): A.items(pre + [ld])
    A.fstamp(); A.wait(vm="sw"); A.fstamp()
    A.e(tree + "\ns_nop 0\ns_cmp_lg_u64 vcc, 0\ns_cbranch_scc1 L2_pms"); A.label("L2_pmr")
    B.label("L2_pms"); poll(B, "L2_pm", "\n".join(sweep), tree); B.e("s_branch L2_pmr")
    A.fstamp()
    for k in range(0, 8, 2): A.e(f"v_pk_add_f32 {v(SV+k,2)}, {v(SV+k,2)}, {v(SV+8+k,2)}")
    A.lds(f"ds_write_b128 v{SD}, {v(SV,4)}", "mw"); A.e("s_mov_b64 exec, 0xff"); A.lds(f"ds_write_b128 v{SD}, {v(SV+4,4)} offset:2048", "mw"); A.e("s_mov_b64 exec, -1")
    if opt.get("nl0", 2) < 2: emit_dma(A, dmaL(1))
    for pre, ld in xload(2): A.items(pre + [ld])
    A.wait(lg="mw"); A.e("s_barrier")
    A.items(as_reads(0, 0) + as_reads(0, 1))
    A.wait(vm=("X", 0))
    for q in range(4):
        A.wait(lg=("AS", 0, q)); A.items(modulate(0, q))
        if q < 3: A.items(as_reads(0, q + 2) if q < 2 else as_reads(1, 0))
        if q == 2:
            for G in range(QD): A.items(qreads(G))
    A.stamp()
    A.wait(lg=("A", 0))
    Sc, leftover, vmg = gen_qproj(A)
    N = len(Sc.mf)
    T = Asm(); pf_addr(T)
    rest = Sc.fill([(0, x) for x in T.L], 512, N); assert not rest
    rest = Sc.fill([(0, x) for x in kreads(0, ("K", 0))], N - 4 * QD, N); assert not rest
    pend = []
    for t2 in range(8):
        cs = [qconvert(2 * (t2 // 4) + n, t2 % 4) for n in range(2)]
        pend += [(512 + 8 * t2 + 7 + 5, x) for x in cs[0][0] + cs[1][0]]
    pend = Sc.fill(pend, 512, N)
    late = len(pend) > 32
    for c in range(9):
        Sc.emit(A, 64 * c, 64 * c + 64)
        if A.stamping == 4 or c in (3, 8): A.stamp()
    A.e(f"s_mul_i32 s3, s{sT8}, 9216\ns_add_u32 s3, s3, {WS_H2}"); A.srd(sH2, sWs, 9216, "s3")
    emit_dma(A, leftover)
    if late: A.items([x for _, x in pend[:-32]]); pend = pend[-32:]
    for t in range(4):
        for j in range(2): A.items(qconvert(j, t)[1])
    A.items([x for _, x in pend]); A.e("s_nop 0")
    for t in range(4):
        for j in range(2, 4): A.items(qconvert(j, t)[1])
    A.wait(lg=(("K", 0), 0))
    for j in range(4):
        for t in range(4):
            d = S0 + 4 * j
            A.e(f"{MF} {v(d,4)}, {a(KF(0,t),4)}, {v(Q(j,t),4)}, {'0' if t == 0 else v(d,4)}")
    A.e("s_nop 1")
    for j in range(4):
        d = S0 + 4 * j
        A.e(f"v_max3_f32 v{d}, v{d}, v{d+1}, v{d+2}\nv_max_f32 v{d}, v{d}, v{d+3}")
    xmax_to_negm(A, [S0 + 4 * j for j in range(4)], BIAS)
    NIT = opt.get("nit", 12)
    A.label("L2_entry")
    A.e(f"s_mov_b32 s{sBase}, s{sW4}\ns_mov_b32 s{sDel}, {-2*SLOT}\ns_mov_b32 s{sCnt}, {NIT}\ns_mov_b32 s{sT}, {3*16384}")
    A.wait(vm=("L", 10)); A.e("s_barrier")
    A.stamp()
    Sf = gen_stage(0, "first", dma_kv_dyn(3, 1), opt)
    rest = Sf.fill([(0, f"v_mov_b32 v{O(3,0)+i}, 0") for i in range(32)], 33, 132)
    for _, x in rest: Sf.va[17].append(x)
    Sf.emit(A)
    tcode = []
    def body(i):
        gen_stage(i, "A", dma_kv_dyn(i + 3, 0), opt, tcode).emit(A)
        Sb = gen_stage(i + 1, "B", dma_kv_dyn(i + 4, 1), opt)
        Sb.sh[128].append(f"s_sub_u32 s{sCnt}, s{sCnt}, 1"); Sb.sh[129].append(f"s_cmp_lg_u32 s{sCnt}, 0")
        Sb.emit(A)
    if opt.get("align_loop", 1): A.e(".p2align 5")
    A.label("L2_loop")
    n0 = len(A.L); body(1); n1 = len(A.L); body(3)
    assert A.L[n0:n1] == A.L[n1:], "loop body not in steady state"
    assert lint(A.L[n0:], "loop2x") == 0
    del A.L[n1:]
    def shift(t, d):
        if isinstance(t, tuple) and t[0] in ("L", "V"): return (t[0], t[1] + d)
        if isinstance(t, tuple) and isinstance(t[0], tuple): return ((t[0][0], t[0][1] + d), t[1])
        return t
    A.vm = [shift(t, 2 * NIT - 4) for t in A.vm]; A.lg = [shift(t, 2 * NIT - 4) for t in A.lg]
    A.e("s_cbranch_scc1 L2_loop")
    def gt(ch):
        if ch == "r": return ([], ("vm", f"buffer_load_dword a{aDum}, v{vAS}, {s(sWr,4)}, 0 offen", None))
        vr, sp = dict(g=(12, 4), u=(12, 6), d=(13, 8), a=(14, 10), b=(15, 10))[ch]
        return ([], ("vm", f"global_load_dword a{aDum}, v{vr}, {s(sp,2)}", None))
    fw = ld_ffn(); plan = opt.get("plan", {25: "a012", 26: "b345", 27: "u678", 28: "dr"})
    for i in range(2 * NIT + 1, 31):
        ex = [fw[int(ch)] if ch.isdigit() else gt(ch) for ch in plan.get(i, "")]
        if i in (29, 30):
            ex += [([], ("vm", f"buffer_store_dwordx4 a[56:59], v{vKV}, {s(sH2,4)}, 0 offen offset:{1024*k} sc1", None)) for k in range(2 * (i - 29), 2 * (i - 28))]
        gen_stage(i, "A" if i % 2 else "B", dma_kv_dyn(i + 3, 1 - i % 2) if i < 29 else dma_wo(i - 29), opt, ex).emit(A)
    nup = opt.get("nup", 16)
    upd = [x for k in range(9) for x in ([fw[9 + k]] + ([fw[18 + k]] if 18 + k < 9 + nup else []))]
    Sl = gen_stage(31, "last", dma_wo(2), opt, upd, opt.get("xs31", 1))
    def norm(j, pk):
        r = vTmp + 2 * (j % 2)
        out = [f"v_accvgpr_read_b32 v{r}, a{aL+4*j}", f"v_accvgpr_read_b32 v{r+1}, a{aL+4*j+1}", f"v_add_f32 v{r}, v{r}, v{r+1}",
               f"v_cmp_nlt_f32 {s(56+2*j,2)}, v{r}, s15", f"v_rcp_f32 v{r}, v{r}"]
        body = []
        for x in range(4):
            o = O(j, 2 * x)
            if pk: body += [f"v_pk_mul_f32 {v(o+i,2)}, {v(o+i,2)}, {v(r,2)} op_sel_hi:[1,0]" for i in range(0, 8, 2)]
            else: body += [f"v_mul_f32 v{o+i}, v{o+i}, v{r}" for i in range(8)]
            body += [f"v_cvt_pk_bf16_f32 v{o+i}, v{o+2*i}, v{o+2*i+1}" for i in range(4)]
        return out, body
    Sl.sh[40].append(f"s_mov_b32 s15, {hex(f2u(2.0**60))}")
    rest = Sl.fill([(149, x) for x in oreads(0)], 149, 165); assert not rest
    rest = Sl.fill([(70 + 33 * j, x) for j in range(2) for x in sum(norm(j, False), [])], 70, 165)
    Sl.emit(A)
    A.stamp()
    h2_, b2 = norm(2, True); h3, b3 = norm(3, True)
    rest = [x for _, x in rest]
    if len(rest) >= 48:
        A.items(rest[:-48] + h2_ + norm(1, True)[1] + h3[:4])
    else: A.items(h2_ + rest + h3[:4])
    A.e("s_or_b64 s[56:57], s[56:57], s[58:59]\n" + h3[4] + "\ns_or_b64 s[60:61], s[60:61], s[62:63]\ns_or_b64 s[56:57], s[56:57], s[60:61]\ns_cselect_b32 s3, 1, 0")
    if opt.get("force_fallback"): A.e("s_mov_b32 s3, 1")
    A.e(f"s_andn2_b32 s3, s3, s{sPass}\ns_lshl2_add_u32 s14, s{sW}, {FLAG}\nv_mov_b32 v{NM+8}, s3\nv_mov_b32 v{NM+9}, s14\nv_mov_b32 v{NM+10}, {FLAG}")
    A.lds(f"ds_write_b32 v{NM+9}, v{NM+8}", "fw")
    A.items(b2 + b3)
    A.wait(lg=("W", 0, 0))
    A.stamp()
    So, leftover = gen_oproj(A)
    for c in range(9):
        So.emit(A, 64 * c, 64 * c + 64)
        if A.stamping == 3: A.stamp()
    A.e("s_nop 7")
    for n in range(2):
        cv, sw, st = oepi(17, n)
        A.items(cv + ["s_nop 1"] + sw + st[0] + [st[1]])
    A.stamp()
    gen_tail(A, B, opt)
    A.label("L2_end")
    A.e("s_endpgm")
    A.L += B.L
    A.label("L2_fallback")
    A.wait_all(); A.e(f"s_nop 7\ns_barrier\ns_lshl_b32 s3, s{sW}, 12\nv_add_u32 v{vKV}, s3, v{vX}")
    init_kv_addr()
    for j in range(4): A.e(f"v_mov_b32 v{P0+j}, 0xff800000")
    A.e(f"s_mov_b32 s{sPass}, 1\ns_mov_b32 s{sT}, 0")
    A.label("L2_fb_loop")
    emit_dma(A, dma_kv_static(None, (0,), 2))
    A.wait_all(); A.e("s_barrier")
    A.items(kreads(0, "fk")); A.wait_all(); A.e("s_barrier")
    for j in range(4):
        for kt in range(4):
            for t in range(4):
                d = S0 + 4 * kt
                A.e(f"{MF} {v(d,4)}, {a(KF(kt,t),4)}, {v(Q(j,t),4)}, {'0' if t == 0 else v(d,4)}")
        A.e("s_nop 7")
        for i in range(8): A.e(f"v_max3_f32 v{P0+j}, v{P0+j}, v{S0+2*i}, v{S0+2*i+1}")
    A.e(f"s_add_u32 s{sT}, s{sT}, 16384\ns_cmp_lt_u32 s{sT}, {32*16384}\ns_cbranch_scc1 L2_fb_loop")
    xmax_to_negm(A, [P0 + j for j in range(4)], 0.0)
    for i in range(3): emit_dma(A, dma_kv_static(i))
    A.wait_all(); A.e("s_barrier")
    A.items(kreads(0, "fk")); pf_addr(A)
    for i in range(16): A.e(f"v_accvgpr_write_b32 a{aL+i}, 0")
    A.wait_all()
    A.e("s_branch L2_entry")
    A.label("L2_codeend")
    if opt.get("walk", 1): A.L = insert_pads(A.L, "L2_walkret", "L2_end")
    return A, dict(name=KNAME, grid=256, block=256, lds=LDS_BYTES, vgpr=512, acc=256)
```

```python
from asmlib import *
from layout import *

RING = 16384; SLOT = 36864; HALF = 16896; PIECE = 1056
ASB = 9216
SCR = 13824
FLAG = SCR
LDS_BYTES = RING + 4 * SLOT
BIAS = int(os.environ.get("BIAS", 102))
vK, vV, vT, vT2, vKV, vWq, vWo, vX, vAS, vPt, vIdx = 1, 2, 3, 4, 5, 6, 7, 8, 9, 10, 11
vTmp = 12
S0 = 16; P0 = 32; NM = 48; Q0 = 64; O0 = 128
AS0 = 16; T0 = 32; X0 = 48
def O(j, dt): return O0 + (j * 8 + dt) * 4
def Q(j, t): return Q0 + (j * 4 + t) * 4
def X(c, n, kl): return X0 + ((c + 2) % 5) * 16 + (n * 2 + kl) * 4
aL = 0; aOne = 16; aK = 64; aV = 128
def KF(kt, t): return aK + (kt * 4 + t) * 4
def VF(buf, dt, u): return aV + buf * 64 + (dt * 2 + u) * 4
sK, sV, sWq, sWo, sXn, sWr, sPt = 16, 20, 24, 28, 32, 36, 40
sC, sWm, sDb = 16, 88, 60
sW4, sOff, sT, sBase, sDel, sCnt, sPass, sW, sG, sTb, sOff2 = 44, 45, 46, 47, 48, 49, 50, 51, 52, 53, 54
sWg, sWu, sWd, sXi, sOut, sWs, sPr = 64, 68, 72, 76, 80, 84, 88
sW9, sT8, sCap = 55, 96, 97
sH2 = 32
sSt = 24; sYp = 32
vFg = vWq
aDum = 63
MF = "v_mfma_f32_16x16x32_bf16"

def trd(dst, slot, off):
    base = vT if slot < 2 else vT2
    return f"ds_read_b64_tr_b16 {a(dst,2)}, v{base} offset:{(slot % 2) * SLOT + off}"

def dma_wq(c):
    slot = (c + 1) % 4; out = []
    for kl in range(2):
        for r in range(4):
            out.append(([f"s_add_u32 m0, s{sW4}, {slot*SLOT + kl*HALF + r*PIECE}", f"s_mov_b32 s{sOff}, {(64*c + 32*kl + r) * 8192}"],
                        ("vm", f"buffer_load_dwordx4 v{vWq}, {s(sWq,4)}, s{sOff} offen{OPT.get('wq_nt','')} lds", ("L", c))))
    return out
def dma_kv_static(i, halves=(0, 1), slot=None):
    slot = (i + 2) % 4 if slot is None else slot; out = []
    for h in halves:
        for j in range(4):
            pre = [f"s_add_u32 m0, s{sW4}, {slot*SLOT + h*HALF + 32*j}"]
            if i is not None and j == 0 and h == halves[0]: pre.append(f"s_mov_b32 s{sT}, {i*16384}")
            out.append((pre, ("vm", f"buffer_load_dwordx4 v{vKV}, {s(sV if h else sK,4)}, s{sT} offen offset:{1024*j}{OPT.get('kv_nt','')} lds", ("L", 9 + (i or 0)))))
    return out
def dma_kv_dyn(i, odd):
    out = []
    for h in range(2):
        for j in range(4):
            pre = [f"s_add_u32 m0, s{sBase}, {odd*SLOT + h*HALF + 32*j}"] + [f"s_add_u32 s{sT}, s{sT}, 16384"] * (h == 0 and j == 0)
            out.append((pre, ("vm", f"buffer_load_dwordx4 v{vKV}, {s(sV if h else sK,4)}, s{sT} offen offset:{1024*j}{OPT.get('kv_nt','')} lds", ("L", 9 + i))))
    return out
def dma_wo(c):
    slot = (c + 2) % 4; out = []
    for hi in range(2):
        for r in range(4):
            pre = [f"s_add_u32 m0, s{sW4}, {slot*SLOT + hi*HALF - 96*r}"]
            if r == 0: pre.append(f"s_mov_b32 s{sOff}, {c*128 + hi*128*1152}")
            out.append((pre, ("vm", f"buffer_load_dwordx4 v{vWo}, {s(sWo,4)}, s{sOff} offen offset:{1152*r}{OPT.get('wo_nt','')} lds", ("L", 41 + c))))
    return out
def FW(k): return 20 + 4 * k if k < 9 else aV + 4 * (k - 9)
def ld_ffn():
    out = []
    for m in range(3):
        for i in range(9):
            d = a(FW(9 * m + i), 4)
            if m < 2: out.append(([f"s_mov_b32 s{sOff2}, {i*16*9216}"], ("vm", f"buffer_load_dwordx4 {d}, v{vFg}, {s(sWu if m else sWg,4)}, s{sOff2} offen", "fw")))
            else: out.append(([f"s_add_u32 s{sOff2}, s{sW9}, {1024*i}"], ("vm", f"buffer_load_dwordx4 {d}, v{vX}, {s(sWd,4)}, s{sOff2} offen", "fw")))
    return out
def touch(vaddr, srd, off):
    return ([f"s_mov_b32 s{sOff2}, {off}"], f"buffer_load_dword a{aDum}, v{vaddr}, {s(srd,4)}, s{sOff2} offen")
def dmaL(n):
    return dma_wq(n) if n < 9 else (dma_kv_static(n - 9) if n < 41 else dma_wo(n - 41))
def emit_dma(A, lst):
    for pre, ld in lst:
        A.items(pre)
        if len(pre) == 1: A.e("s_nop 0")
        A.item(ld)
def xload(c):
    return [([f"s_mov_b32 s{sOff2}, {n*18432 + (2*c+kl)*1024}"],
             ("vm", f"buffer_load_dwordx4 {v(X(c,n,kl),4)}, v{vX}, {s(sXn,4)}, s{sOff2} offen sc1", ("X", c))) for n in range(2) for kl in range(2)]
def place_vm(Sc, g, item):
    pre, ld = item
    for k, p in enumerate(pre): Sc.sh[g - 1 + k].append(p)
    Sc.mem[g].append(ld)

def as_reads(c, q):
    kl, hf = q // 2, q % 2; d = AS0 + (q % 2) * 8; off = ASB + (2 * c + kl) * 256 + hf * 16
    return [("lds", f"ds_read_b128 {v(d,4)}, v{vAS} offset:{off}", ("AS", c, q)), ("lds", f"ds_read_b128 {v(d+4,4)}, v{vAS} offset:{off+32}", ("AS", c, q))]
def modulate(c, q):
    kl, hf = q // 2, q % 2; d = AS0 + (q % 2) * 8; out = []
    for n in range(2):
        x = X(c, n, kl) + 2 * hf; t = T0 + 4 * n
        for i in range(4):
            out.append(f"v_fma_mix_f32 v{t+i}, v{x+i//2}, v{d+i}, v{d+4+i} op_sel:[{i%2},0,0] op_sel_hi:[1,0,0]")
        out += [f"v_cvt_pk_bf16_f32 v{x}, v{t}, v{t+1}", f"v_cvt_pk_bf16_f32 v{x+1}, v{t+2}, v{t+3}"]
    return out

def kreads(off, tag): return [("lds", f"ds_read_b128 {a(KF(kt,t),4)}, v{vK} offset:{off + kt*256 + t*64}", (tag, kt)) for kt in range(4) for t in range(4)]
def vreads(buf, off, tag): return [("lds", f"ds_read_b64_tr_b16 {a(VF(buf,dt,u)+2*b,2)}, v{vV} offset:{off + (2*u+b)*256 + dt*32}", tag) for dt in range(8) for u in range(2) for b in range(2)]

QD = 3
def AF(grp, kl): return aV + 64 + (grp % 8) * 8 + kl * 4
def qreads(G):
    c, mt = divmod(G, 16); slot = (c + 1) % 4
    return [("lds", trd(AF(G, kl) + 2 * b, slot, kl * HALF + b * 512 + mt * 32), ("A", G)) for kl in range(2) for b in range(2)]

def gen_qproj(A):
    Sc = Sched()
    for c in range(9):
        for mt in range(16):
            G = c * 16 + mt
            for n in range(2):
                d = O(2 * (mt // 8) + n, mt % 8)
                for kl in range(2):
                    cc = "0" if c == 0 and kl == 0 else v(d, 4)
                    Sc.mfma(f"{MF} {v(d,4)}, {a(AF(G,kl),4)}, {v(X(c,n,kl),4)}, {cc}")
    N = len(Sc.mf); vmg = set()
    leftover = []
    for k, it in enumerate(dmaL(2)):
        g = 3 + 4 * k; place_vm(Sc, g, it); vmg.add(g)
    for c in range(9):
        gb = 64 * (c + 1) - 4 * QD - 1 if c < 8 else OPT.get("gb8", 551)
        Sc.sh[gb] += [("wait", ("L", c + 1), None), "s_barrier"]
        for k, it in enumerate(dmaL(c + 3)):
            g = gb + 4 + 4 * k
            if g < N: place_vm(Sc, g, it); vmg.add(g)
            else: leftover.append(it)
    for c in range(6):
        for k, it in enumerate(xload(c + 3)):
            g = 64 * c + 35 + 4 * k
            assert g not in vmg
            place_vm(Sc, g, it); vmg.add(g)
    for G in range(144):
        if G > 0: Sc.sh[4 * G - 1].append(("wait", None, ("A", G)))
        if G + QD < 144:
            rd = qreads(G + QD); gs = [g for g in range(4 * G, 4 * G + 4) if g not in vmg]
            if len(gs) == 3: gs = [gs[0], gs[1], gs[1], gs[2]]
            for g, r in zip(gs, rd): Sc.mem[g].append(r)
    for c in range(8):
        Sc.sh[64 * c].append(("wait", ("X", c + 1), None))
        for q in range(4):
            w0 = 64 * c + 16 * q
            nxt = as_reads(c + 1, q + 1) if q < 3 else (as_reads(c + 2, 0) if c < 7 else [])
            items = modulate(c + 1, q)
            Sc.sh[w0].append(("wait", None, ("AS", c + 1, q)))
            free = [g for g in range(w0, w0 + 16) if g not in vmg and len(Sc.mem[g]) < 2]
            for r in nxt:
                g = free.pop(0); Sc.mem[g].append(r)
            over = len(items) - len(free)
            odd = sorted(range(w0 + 1, w0 + 16, 2), key=lambda g: (g in vmg, -g))
            slots = sorted(free + odd[:over] if over > 0 else free); assert len(slots) >= len(items)
            for g, it in zip(slots, items): Sc.va[g].append(it)
    return Sc, leftover, vmg

def qconvert(j, t):
    o = O(j, 2 * t); q = Q(j, t)
    return [f"v_cvt_pk_bf16_f32 v{q+i}, v{o+2*i}, v{o+2*i+1}" for i in range(4)], [f"v_permlane32_swap_b32 v{q}, v{q+2}", f"v_permlane32_swap_b32 v{q+1}, v{q+3}"]

def pf_addr(A):
    A.e(f"v_lshrrev_b32 v14, 2, v0\ns_mul_i32 s3, s{sW}, 144\nv_add_u32 v14, s3, v14\nv_mul_u32_u24 v14, 9216, v14\nv_and_b32 v15, 3, v0\nv_lshl_add_u32 v{vFg}, v15, 4, v14")
    A.e(f"s_lshr_b32 s3, s2, 3\ns_lshl2_add_u32 s3, s3, s{sW}\ns_and_b32 s15, s2, 7\nv_lshlrev_b32 v{vAS}, 7, v0")
    A.e(f"s_mul_i32 s14, s3, 9\ns_lshr_b32 s14, s14, 1\nv_min_u32 v15, 44, v0\nv_mul_u32_u24 v12, 7282, v15\nv_lshrrev_b32 v12, 16, v12\nv_mul_u32_u24 v13, 63, v12\nv_add_u32 v12, v15, v13")
    A.e(f"s_mul_i32 s14, s14, 72\ns_mul_i32 s56, s15, 9\ns_add_u32 s14, s14, s56\nv_add_lshl_u32 v12, s14, v12, 7")
    A.e(f"s_mul_i32 s14, s3, 81\ns_lshr_b32 s14, s14, 1\ns_mul_i32 s56, s15, 5184\ns_add_u32 s14, s14, s56\nv_min_u32 v13, 40, v0\nv_add_lshl_u32 v13, s14, v13, 7")
    A.e(f"s_mul_i32 s14, s3, 72\ns_andn2_b32 s56, s{sG}, 3\ns_mul_i32 s56, s56, 2304\ns_add_u32 s14, s14, s56\nv_min_u32 v14, 35, v0\nv_add_lshl_u32 v14, s14, v14, 7\nv_add_u32 v15, 4608, v14")

def xmax_to_negm(A, src, bias):
    t = P0 + 8
    for op in ("v_permlane16_swap_b32", "v_permlane32_swap_b32"):
        for j in range(4): A.e(f"v_mov_b32 v{t+j}, v{src[j]}")
        for j in range(4): A.e(f"{op} v{t+j}, v{src[j]}")
        for j in range(4): A.e(f"v_max_f32 v{src[j]}, v{src[j]}, v{t+j}")
    if bias:
        for j in range(4): A.e(f"v_floor_f32 v{src[j]}, v{src[j]}")
    for j in range(4):
        for i in range(4): A.e(f"v_sub_f32 v{NM+4*j+i}, {hex(f2u(-float(bias)))}, v{src[j]}")

def rescale(A, j, t):
    A.e(f"v_accvgpr_read_b32 v{t}, a{aL+4*j}\nv_accvgpr_read_b32 v{t+1}, a{aL+4*j+1}\nv_add_f32 v{t+2}, v{t}, v{t+1}\nv_frexp_exp_i32_f32 v{t}, v{t+2}")
    A.e(f"v_sub_u32 v{t}, {1 - BIAS}, v{t}\nv_max_i32 v{t}, -120, v{t}\nv_cvt_f32_i32 v{t+1}, v{t}\nv_ldexp_f32 v{t}, 1.0, v{t}")
    for i in range(4): A.e(f"v_add_f32 v{NM+4*j+i}, v{NM+4*j+i}, v{t+1}")
    A.e(f"v_mul_f32 v{t+2}, v{t+2}, v{t}\nv_accvgpr_write_b32 a{aL+4*j+1}, 0\nv_accvgpr_write_b32 a{aL+4*j}, v{t+2}")
    for i in range(0, 32, 2): A.e(f"v_pk_mul_f32 {v(O(j,0)+i,2)}, {v(O(j,0)+i,2)}, {v(t,2)} op_sel_hi:[1,0]")

def gen_stage(i, kind, dma, opt, extra=(), xstep=2, bar=2, dgap=None):
    par = i % 2; Sc = Sched(); first = kind == "first"; last = kind == "last"
    nun = 5 if last else 4
    for j in range(nun):
        for kt in range(4):
            for t in range(4):
                d = S0 + 4 * kt
                Sc.mfma(None if j == 4 else f"{MF} {v(d,4)}, {a(KF(kt,t),4)}, {v(Q(j,t),4)}, {v(NM+4*j,4) if t == 0 else v(d,4)}")
        jp = (j - 1) % 4; vb = par if j > 0 else 1 - par; p = P0 + 8 * (jp % 2)
        skip = first and j == 0
        for dt in range(8):
            for u in range(2):
                d = O(jp, dt); cc = "0" if first and u == 0 else v(d, 4)
                Sc.mfma(None if skip else f"{MF} {v(d,4)}, {a(VF(vb,dt,u),4)}, {v(p+4*u,4)}, {cc}")
        Sc.mfma(None if skip else f"v_smfmac_f32_16x16x64_bf16 {a(aL+4*jp,4)}, {a(aOne,4)}, {v(p,8)}, v{vIdx}")
        b = 33 * j
        for x in range(16):
            prev = x < 4
            if (prev and skip) or (j == 4 and not prev): continue
            e = (x - 4) % 16
            Sc.va[b + 2 * x].append(f"v_exp_f32 v{S0+e}, v{S0+e}")
        for k in range(8):
            prev = k < 3; pr = (k + 5) % 8
            if (prev and skip) or (j == 4 and not prev): continue
            pb = P0 + 8 * ((j - 1 if prev else j) % 2)
            if opt.get("perm", 1): Sc.va[b + 4 * k + 1].append(f"v_perm_b32 v{pb+pr}, v{S0+2*pr+1}, v{S0+2*pr}, s100")
            else: Sc.va[b + 4 * k + 1].append(f"v_cvt_pk_bf16_f32 v{pb+pr}, v{S0+2*pr}, v{S0+2*pr+1}")
    if first:
        for g in range(16, 33):
            if g % 2 == 0: Sc.va[g].append("s_nop 0")
        Sc.sh[16].append("s_nop 3"); Sc.sh[8].append("s_nop 1")
    if last:
        for g in range(33 * 4, 33 * 4 + 8, 2): Sc.va[g].append("s_nop 0")
        Sc.va[33 * 4 + 15].append("s_nop 1")
    for kt in range(1, 4): Sc.sh[4 * kt - 1].append(("wait", None, (("K", i), kt)))
    cand = [33 * j + r for j in range(4 if last else 3) for r in range(3, 32, 4)]
    gs = cand[:len(dma)] + cand[len(dma)::xstep]
    if dgap:
        gs = cand[4:4 + len(dma)] + cand[max(8, 4 + len(dma))::xstep]
        if len(dma) == 16: gs = cand[4:12] + cand[16:24]
        Sc.sh[15] += [("wait", ("L", 9 + i + 2), None), "s_barrier"]
    dma = list(dma) + list(extra)
    vmg = set()
    for g, it in zip(gs, dma): place_vm(Sc, g, it); vmg.add(g)
    assert len(vmg) == len(dma)
    if kind == "A":
        Sc.va[1].append(f"v_add_u32 v{vK}, s{sDel}, v{vK}"); Sc.va[5].append(f"v_add_u32 v{vV}, s{sDel}, v{vV}")
        Sc.sh[0].append(f"s_sub_u32 s{sBase}, s{sBase}, s{sDel}")
        Sc.sh[8].append(f"s_sub_u32 s{sDel}, 0, s{sDel}")
    if not last:
        off = 0 if kind == "A" else SLOT
        if first:
            rest = Sc.fill([(0, x) for x in vreads(0, 0, ("V", 0))], 0, 16)
            for _, x in rest: Sc.mem[16].append(x)
            Sc.sh[47].append(("wait", None, ("V", 0)))
        free = [33 * j + r for j in range(3) for r in list(range(1, 32, 2)) + [32] if 33 * j + r >= 17 and 33 * j + r not in vmg]
        vr = vreads(1 - par, off, ("V", i + 1))
        if len(free) < 32:
            two = [g for g in free if not Sc.va[g]]
            free = sorted(free + two[len(two) - (32 - len(free)):]); assert len(free) == 32
        for n, r in enumerate(vr):
            assert free[n] >= 16 + n // 2
            Sc.mem[free[n]].append(r)
        for n, r in enumerate(kreads(off, ("K", i + 1))): Sc.mem[99 + 2 * n + 1].append(r)
        if bar: Sc.sh[131] += [("wait", ("L", 9 + i + bar), (("K", i + 1), 0)), "s_barrier"]
        else: Sc.sh[131].append(("wait", None, (("K", i + 1), 0)))
    return Sc

OA = 16; OR = 48
def OB(n, u): return O(2 * (u // 4) + n, 2 * (u % 4))
def WF(grp, u): return aK + (grp % 2) * 32 + u * 4
def oreads(G):
    c, ntl = divmod(G, 4); slot = (c + 2) % 4
    return [("lds", trd(WF(G, u) + 2 * b, slot, (u // 4) * HALF + (2 * (u % 4) + b) * 128 + ntl * 32), ("W", G, u // 2)) for u in range(8) for b in range(2)]
def oacc(G, n): return OA + ((G % 4) * 2 + n) * 4
def oepi(pair, n):
    r = OR + 4 * n; x, y = oacc(2 * pair, n), oacc(2 * pair + 1, n); c, aa = divmod(pair, 2)
    cv = [f"v_cvt_pk_bf16_f32 v{r}, v{x}, v{x+1}", f"v_cvt_pk_bf16_f32 v{r+1}, v{x+2}, v{x+3}", f"v_cvt_pk_bf16_f32 v{r+2}, v{y}, v{y+1}", f"v_cvt_pk_bf16_f32 v{r+3}, v{y+2}, v{y+3}"]
    sw = [f"v_permlane32_swap_b32 v{r}, v{r+2}", f"v_permlane32_swap_b32 v{r+1}, v{r+3}"]
    st = ([f"s_mov_b32 s{sOff2}, {n*294912 + c*1024}"], ("vm", f"buffer_store_dwordx4 {v(r,4)}, v{vPt}, {s(sPt,4)}, s{sOff2} offen offset:{aa*512}{OPT.get('st_flags', ' sc1')}", "st"))
    return cv, sw, st

vXA, vXC = vK, vV
XR = 64
def HOLE(k): return O0 + 8 * k + 4
def xi_loads(ob):
    return [([], ("vm", f"buffer_load_dwordx4 {v(XR+4*i,4)}, v{vXC if i == 2 else vXA}, {s(sXi,4)}, 0 offen offset:{ob if i == 1 else 0}", "xi")) for i in range(3)]
vWA, vWC, vPA, vPB, vFa, vFl, vOne = 12, 13, 5, 59, 6, 9, 15
sFl, sRem, sQ, sRdyA, sFs, sPa = sBase, sDel, sT, sCnt, 56, 28
def WR(q): return 224 + 8 * (q // 4) + q % 4
def wr_loads():
    return [([], ("vm", f"buffer_load_dwordx4 {v(WR(4*i),4)}, v{vWC if i == 2 else vWA}, {s(sWr,4)}, 0 offen offset:{512*i}", "xi")) for i in range(3)]
def NV(r, h): return 76 + 12 * h + 4 * r
def mv_loads():
    return [([f"s_movk_i32 s{sOff}, {4608 + 13824*h + 4096*r}"], ("vm", f"buffer_load_dwordx4 {v(NV(r,h),4)}, v{vPB if r == 2 else vPA}, {s(sWs,4)}, s{sOff} offen sc1", "xi")) for r in range(3) for h in range(2)]
def item_addr(A, ma, mc, oc, t=14):
    A.e(f"s_mul_i32 s3, s{sW}, {ma}\nv_lshrrev_b32 v{t}, 3, v0\nv_lshl_add_u32 v{vWA}, v{t}, 4, s3\nv_and_b32 v{t}, 1, v{t}")
    if mc != ma: A.e(f"s_mul_i32 s3, s{sW}, {mc}")
    A.e(f"v_lshl_add_u32 v{vWC}, v{t}, 4, s3")
    A.e(f"v_and_b32 v{t}, 7, v0\nv_mul_u32_u24 v{t}, 1152, v{t}\nv_add_u32 v{vXA}, v{t}, v{vWA}\nv_add_u32 v{vXC}, v{t}, v{vWC}\nv_add_u32 v{vXC}, {oc}, v{vXC}")
def ready_mask(d):
    return ["s_lshr_b32 s3, vcc_lo, 1", "s_and_b32 s3, s3, vcc_lo", "s_lshr_b32 s14, s3, 2", f"s_and_b32 s{d}, s3, s14"]

vF2, vF0, vF1, vG0, vG1 = 104, 105, 106, 110, 111
aF = 64
def fw_write(k): return ("lds", f"ds_write_b128 v{(vF1, vF0, vF2)[k//9]}, {a(FW(k),4)} offset:{((3 + k//9) % 2)*SLOT + 1024*(k%9)}", "fww")
def fa_reads():
    far = [("lds", f"ds_read_b64_tr_b16 {a(aF+4*kk+2*b,2)}, v{vG0} offset:{2048*kk + 256*b}", "fa") for kk in range(18) for b in range(2)]
    return far + [("lds", f"ds_read_b64_tr_b16 {a(aF+72+4*nt+2*b,2)}, v{vG1} offset:{32*nt + 4608*b}", "fa") for nt in range(9) for b in range(2)]

def gen_oproj(A):
    Sc = Sched()
    for G in range(36):
        for n in range(2):
            for u in range(8):
                d = oacc(G, n)
                Sc.mfma(f"{MF} {v(d,4)}, {a(WF(G,u),4)}, {v(OB(n,u),4)}, {'0' if u == 0 else v(d,4)}")
    N = len(Sc.mf); vmg = set(); leftover = []
    st = OPT.get("o_step", 2)
    for c in range(8):
        gb = 64 * c + 47
        Sc.sh[gb] += [("wait", ("L", 41 + c + 1), "fw"), "s_barrier"]
        if c + 3 <= 8:
            for k, it in enumerate(dma_wo(c + 3)):
                g = gb + 2 + st * k; place_vm(Sc, g, it); vmg.add(g)
    misc = ld_ffn()[9 + OPT.get("nup", 16):]
    gl = list(range(3, 32, 4)); assert len(gl) >= len(misc)
    for g, it in zip(gl, misc): place_vm(Sc, g, it); vmg.add(g)
    Sc.sh[440] += [f"s_sub_u32 s{sPa}, s{sPr}, 4096", f"s_subb_u32 s{sPa+1}, s{sPr+1}, 0"]; Sc.sh[441].append(f"s_mov_b32 s{sPa+2}, 147456")
    if OPT.get("fo", 0):
        Sc.sh[64 * 8 + 15].append("s_barrier")
        for m, g0 in enumerate((64 * 6 + 48, 64 * 7 + 48, 64 * 8 + 16)):
            gs_ = [g0 + 2 * k for k in range(8)] + [g0 + 32]
            for k, g in enumerate(gs_): Sc.mem[g].append(fw_write(9 * m + k)); vmg.add(g)
    swg = set()
    for p in range(17):
        for n in range(2):
            b = 16 * (2 * p + 2) + 8 * n
            cv, sw, st = oepi(p, n)
            for k, x in enumerate(cv): Sc.va[b + k].append(x)
            Sc.va[b + 5].append(sw[0]); Sc.va[b + 6].append(sw[1]); swg |= {b + 5, b + 6}
            Sc.sh[b + 4].append(st[0][0]); Sc.va[b + 7].append(st[1])
    for G in range(36):
        for h in range(4):
            g = 16 * G + 2 * h - 1
            if g >= 0: Sc.sh[g].append(("wait", None, ("W", G, h)))
        if G + 1 < 36:
            gs = [g for g in range(16 * G, 16 * G + 16) if g not in vmg and g not in swg]
            two = [g for g in gs if not Sc.va[g]]
            extra = 16 - len(gs)
            if extra > len(two): two = two + [g for g in range(16 * G + 7, 16 * G + 16, 8)] * 4
            gs = sorted(gs + two[:extra]); assert len(gs) == 16
            for g, r in zip(gs, oreads(G + 1)): Sc.mem[g].append(r)
    f = NM + 12
    Sc.mem[47].append(("lds", f"ds_read_b128 {v(f,4)}, v{NM+10}", "fr"))
    Sc.sh[55].append(("wait", None, "fr"))
    Sc.va[55] += [f"v_or3_b32 v{f}, v{f}, v{f+1}, v{f+2}", f"v_or_b32 v{f}, v{f}, v{f+3}"]
    Sc.va[63].append(f"v_readfirstlane_b32 s3, v{f}")
    Sc.sh[65].append("s_cmp_lg_u32 s3, 0"); Sc.sh[66].append("s_cbranch_scc1 L2_fallback")
    T = Asm(); item_addr(T, 128, 32, 1024)
    T.e(f"s_lshl_b32 s14, s{sW}, 10\nv_add_u32 v{vPA}, s14, v{vX}\nv_and_b32 v{vPB}, 0xf0, v{vX}\ns_lshl_b32 s14, s{sW}, 8\nv_add_u32 v{vPB}, s14, v{vPB}")
    T.e(f"v_and_b32 v{vFa}, 15, v0\nv_lshlrev_b32 v{vFa}, 8, v{vFa}\nv_min_u32 v{vOne}, 1, v0\nv_lshlrev_b32 v{vOne}, 30, v{vOne}")
    T.e(f"s_lshl_b32 s15, s{sTb}, 14\ns_add_u32 s15, s15, {WS_F1}\ns_and_b32 s14, s{sG}, 12\ns_lshl_b32 s14, s14, 10\ns_add_u32 s{sFl}, s15, s14")
    T.e(f"s_lshl4_add_u32 s3, s{sW}, s{sG}\ns_lshl_b32 s3, s3, 8\ns_add_u32 s{sFs}, s3, s15")
    T.e(f"s_add_u32 s14, s{sW9}, {RING}\nv_add_u32 v{vF2}, s14, v{vX}\nv_and_b32 v14, 32, v0\nv_xor_b32 v{vF0}, v14, v{vF2}\nv_add_u32 v{vF1}, {2*SLOT}, v{vF0}")
    T.e(f"v_lshrrev_b32 v{vG0}, 4, v0\nv_bfe_u32 v14, v0, 2, 2\nv_lshl_add_u32 v{vG0}, v{vG0}, 3, v14\nv_and_b32 v14, 3, v0\nv_mul_u32_u24 v{vG1}, 1152, v{vG0}\nv_lshlrev_b32 v{vG0}, 6, v{vG0}")
    T.e(f"v_lshl_add_u32 v{vG0}, v14, 3, v{vG0}\nv_lshl_add_u32 v{vG1}, v14, 3, v{vG1}\ns_lshr_b32 s3, s{sW}, 1\ns_xor_b32 s3, s3, 1\ns_mul_i32 s3, s3, {3*SLOT}\ns_and_b32 s14, s{sW}, 1\ns_lshl_b32 s14, s14, 5")
    T.e(f"s_add_u32 s3, s3, s14\ns_add_u32 s3, s3, {RING}\nv_add_u32 v{vG0}, s3, v{vG0}\nv_and_b32 v14, 16, v0\nv_lshlrev_b32 v14, 1, v14\nv_xor_b32 v{vG0}, v14, v{vG0}\ns_mul_i32 s3, s{sW}, 288\ns_add_u32 s3, s3, {RING + SLOT}\nv_add_u32 v{vG1}, s3, v{vG1}")
    rest = Sc.fill([(0, x) for x in T.L], 80, 400); assert not rest
    return Sc, leftover

def xsum8(A, regs, tmp):
    A.e("s_nop 1")
    for x in regs: A.e(f"v_add_f32_dpp v{x}, v{x}, v{x} row_ror:8 row_mask:0xf bank_mask:0xf")
    xsumG(A, regs, tmp)
def xsumG(A, regs, tmp):
    for op in ("v_permlane16_swap_b32", "v_permlane32_swap_b32"):
        for k, x in enumerate(regs): A.e(f"v_mov_b32 v{tmp+k}, v{x}")
        if len(regs) < 3: A.e(f"s_nop {2 - len(regs)}")
        for k, x in enumerate(regs): A.e(f"{op} v{tmp+k}, v{x}")
        for k, x in enumerate(regs): A.e(f"v_add_f32 v{x}, v{x}, v{tmp+k}")
def merge2(A, m1, m2, t1, t2):
    A.e(f"v_max_u32 v{m2}, v{m2}, v{t2}\nv_med3_u32 v{m2}, v{m1}, v{t1}, v{m2}\nv_max_u32 v{m1}, v{m1}, v{t1}")
def top2_lanes(A, m1, m2, t1, t2, rors, swaps):
    for sh in rors:
        A.e(f"s_nop 1\nv_mov_b32_dpp v{t1}, v{m1} row_ror:{sh} row_mask:0xf bank_mask:0xf\nv_mov_b32_dpp v{t2}, v{m2} row_ror:{sh} row_mask:0xf bank_mask:0xf")
        merge2(A, m1, m2, t1, t2)
    for op in swaps:
        A.e(f"v_mov_b32 v{t1}, v{m1}\nv_mov_b32 v{t2}, v{m2}\ns_nop 0\n{op} v{t1}, v{m1}\n{op} v{t2}, v{m2}")
        merge2(A, m1, m2, t1, t2)
def dot24(A, d, t, x, y):
    for acc, lo, hi in ((d, 0, 16), (t, 16, 24)):
        for i in range(lo, hi):
            if y is None:
                if i == lo: continue
                A.e(f"v_add_f32 v{acc}, v{x+lo if i == lo+1 else acc}, v{x+i}")
            else: A.e(f"{'v_mul_f32' if i == lo else 'v_fmac_f32'} v{acc}, v{x+i}, v{y+i}")
    A.e(f"v_fmac_f32 v{d}, 0x3e800000, v{t}")
def dot24p(A, d, t, x, y):
    for acc, lo, hi in ((t, 0, 16), (t + 2, 16, 24)):
        for i in range(lo, hi, 2):
            if y is None:
                if i > lo: A.e(f"v_pk_add_f32 {v(acc,2)}, {v(x+lo if i == lo+2 else acc,2)}, {v(x+i,2)}")
            elif i == lo: A.e(f"v_pk_mul_f32 {v(acc,2)}, {v(x+i,2)}, {v(y+i,2)}")
            else: A.e(f"v_pk_fma_f32 {v(acc,2)}, {v(x+i,2)}, {v(y+i,2)}, {v(acc,2)}")
    A.e(f"v_add_f32 v{d}, v{t}, v{t+1}\nv_add_f32 v{t+2}, v{t+2}, v{t+3}\nv_fmac_f32 v{d}, 0x3e800000, v{t+2}")
def poll(A, name, loads, test, sleep=1, shrink=0):
    A.e(f"s_mov_b32 s{sCap}, 0x20000")
    A.label(name)
    A.e(loads); A.wait_all(lg=False); A.e(test)
    A.e(f"s_sub_u32 s{sCap}, s{sCap}, 1\ns_cselect_b64 vcc, 0, vcc\ns_cmp_eq_u64 vcc, 0\ns_cbranch_scc1 {name}_ok")
    if shrink: A.e("s_mov_b64 exec, vcc")
    if sleep: A.e(f"s_sleep {sleep}")
    A.e(f"s_branch {name}")
    A.label(name + "_ok")
    if shrink: A.e("s_mov_b64 exec, -1")

def gen_tail(A, B, opt):
    ACC, GA, U, TM, PL = 16, 40, 76, 100, 112
    vMA, vMC, vPC = 3, 4, 7
    TB = RING + 2 * SLOT
    ST = SCR + 256
    def acc(dst, src, first):
        for q in range(4):
            if first: A.e(f"v_lshlrev_b32 v{dst+2*q}, 16, v{src+q}\nv_and_b32 v{dst+2*q+1}, 0xffff0000, v{src+q}")
            else:
                t = TM + 2 * (q % 2)
                A.e(f"v_lshlrev_b32 v{t}, 16, v{src+q}\nv_and_b32 v{t+1}, 0xffff0000, v{src+q}\nv_pk_add_f32 {v(dst+2*q,2)}, {v(dst+2*q,2)}, {v(t,2)}")
    fl = f"buffer_load_dword v{vFl}, v{vFa}, {s(sWs,4)}, s{sFl} offen sc1"
    A.vmem(fl, ("fl", 0))
    misc = mv_loads() + wr_loads() + xi_loads(512); nm = opt.get("nm", 12)
    for pre, ld in misc[:nm]: A.items(pre + [ld])
    far = fa_reads()
    if opt.get("fo", 0) == 1: A.wait(lg="fww"); A.e("s_barrier"); A.items(far[:opt.get("nf0", 54)]); far = far[opt.get("nf0", 54):]
    A.wait(vm="st")
    A.vmem(f"buffer_store_dword v{vT}, v{vOne}, {s(sWs,4)}, s{sFs} offen sc1")
    A.e(f"s_movk_i32 s{sRem}, 0x1111\nv_lshrrev_b32 v15, 4, v0\nv_mul_u32_u24 v15, 9216, v15\nv_add_u32 v15, 4096, v15\nv_add_u32 v{vPC}, v{vPB}, v15")
    A.stamp()
    ready = f"v_cmp_ne_u32 vcc, 0, v{vFl}\ns_nop 0\n" + "\n".join(ready_mask(3)) + f"\ns_and_b32 s3, s3, s{sRem}"
    n0 = opt.get("n0", 10)
    def choose(i):
        if A.stamping == 5 and i: A.stamp()
        A.wait(vm=("fl", i))
        A.e(ready + f"\ns_cbranch_scc0 L2_g{i}s"); A.label(f"L2_g{i}r")
        A.e(f"s_ff1_i32_b32 s3, s3\ns_bitset0_b32 s{sRem}, s3\ns_mul_i32 s{sQ}, s3, 9216")
        B.label(f"L2_g{i}s")
        poll(B, f"L2_g{i}", fl, ready + f"\ns_cselect_b64 vcc, 0, -1", opt.get("sl1", 1))
        B.e(f"s_cmp_eq_u32 s3, 0\ns_cselect_b32 s3, s{sRem}, s3\ns_branch L2_g{i}r")
        if i == 0 or A.stamping == 5: A.stamp()
        if n0 // 5 - 1 <= i < 3: A.vmem(fl, ("fl", i + 1))
    pend = []
    for i in range(4):
        R0 = PL + 36 * i
        pend.append([lambda i=i: choose(i), ("vm", f"buffer_load_dwordx4 {v(R0,4)}, v{vPC}, {s(sPr,4)}, s{sQ} offen{OPT.get('pl', ' sc1')}", ("c", i))])
        for g in range(4):
            pend.append([f"s_add_u32 s{sQ}, s{sQ}, 9216"] * (g > 0) + [("vm", f"buffer_load_dwordx4 {v(R0+4+8*g+4*h,4)}, v{vPA}, {s(sPa if h else sPr,4)}, s{sQ} offen{OPT.get('pl', ' sc1')}", ("p", i, g, h)) for h in range(2)])
    win = opt.get("win", 99)
    def pace(free=False, step=None):
        if step is not None and opt.get("burst", 0):
            while pend and (20 - len(pend)) // 5 * 5 <= step + opt.get("off", 3): A.items(pend.pop(0))
        elif pend and (free or (20 - len(pend) < opt.get("n1", 10) if step is None else 20 - len(pend) <= step + opt.get("off", 3))):
            if len(A.vm) > win and not free:
                A.e(f"s_waitcnt vmcnt({win})"); del A.vm[:len(A.vm) - win]
            A.items(pend.pop(0))
        for _ in range(opt.get("nfw", 2)):
            if fww: A.item(fww.pop(0))
    fww = []
    for k in range(n0):
        pace(True)
        if k == opt.get("mpos", 0):
            for pre, ld in misc[nm:]: A.items(pre + [ld])
    A.wait(vm="xi")
    nv = [NV(r, h) + k for r in range(3) for h in range(2) for k in range(4)]
    A.e(f"v_mov_b32 v14, v{vWC}")
    tree2 = f"v_max_u32 v13, v{nv[0]}, v{nv[1]}\n" + "\n".join(f"v_max3_u32 v13, v13, v{nv[2*k]}, v{nv[2*k+1]}" for k in range(1, 12)) + "\nv_cmp_eq_u32 vcc, -1, v13"
    A.e(tree2 + "\ns_nop 0\ns_cmp_lg_u64 vcc, 0\ns_cbranch_scc1 L2_pns"); A.label("L2_pnr")
    B.label("L2_pns"); poll(B, "L2_pn", "\n".join(pre[0] + "\n" + ld[1] for pre, ld in mv_loads()), tree2); B.e("s_branch L2_pnr")
    for r in range(3):
        for k in (0, 2): A.e(f"v_pk_add_f32 {v(U+4*r+k,2)}, {v(NV(r,0)+k,2)}, {v(NV(r,1)+k,2)}")
        A.lds(f"ds_write_b128 v{vPB if r == 2 else vPA}, {v(U+4*r,4)} offset:{4096*r}", "mv")
    A.wait(lg="mv")
    A.e("s_barrier")
    if not opt.get("fo", 0): fww += [fw_write(k) for k in range(27)]
    A.e(f"v_lshlrev_b32 v{vMA}, 1, v{vWA}\nv_lshlrev_b32 v{vMC}, 1, v14")
    def vec(m, d, tag):
        for i in range(3):
            for h in range(2): A.lds(f"ds_read_b128 {v(d+8*i+4*h,4)}, v{vMC if i == 2 else vMA} offset:{m*2304 + 1024*i + 16*h}", tag)
    vec(2, U, "cb"); vec(1, GA, "sb")
    pace()
    A.wait(lg="sb")
    for q in range(12):
        t = 12 + 2 * (q % 2)
        A.e(f"v_lshlrev_b32 v{t}, 16, v{WR(q)}\nv_and_b32 v{t+1}, 0xffff0000, v{WR(q)}\nv_pk_mul_f32 {v(U+2*q,2)}, {v(U+2*q,2)}, {v(t,2)}\nv_pk_mul_f32 {v(GA+2*q,2)}, {v(GA+2*q,2)}, {v(t,2)}")
        if q == 5: pace()
    pace()
    dot24p(A, TM, 12, U, None); dot24p(A, TM + 1, 12, GA, None)
    vec(0, GA, "ga")
    pace()
    xsum8(A, [TM, TM + 1], TM + 2)
    A.e(f"v_and_b32 v14, 7, v0\nv_lshlrev_b32 v11, 4, v14\nv_add_u32 v11, {ST}, v11\ns_lshl_b32 s3, s{sW}, 2\nv_add_u32 v10, s3, v11")
    A.lds(f"ds_write_b32 v10, v{TM} offset:384", "ut"); A.lds(f"ds_write_b32 v10, v{TM+1} offset:512", "ut")
    vR0, vR1, vR2 = TM + 7, TM + 8, TM + 9
    A.e(f"v_lshl_add_u32 v{vXA}, v14, 4, v{vXA}\nv_lshl_add_u32 v{vXC}, v14, 4, v{vXC}\nv_add_u32 v{vXA}, {TB}, v{vXA}\nv_add_u32 v{vXC}, {TB}, v{vXC}")
    A.e(f"s_and_b32 s14, s{sW}, 1\ns_mul_i32 s14, s14, 9344\ns_add_u32 s14, s14, {TB}\nv_add_u32 v{vR0}, s14, v{vX}\nv_lshrrev_b32 v15, 3, v0\nv_mul_u32_u24 v12, {1152-128}, v15\nv_add_u32 v{vR2}, v12, v{vX}")
    A.e(f"v_lshl_add_u32 v12, v15, 4, v12\nv_add_u32 v{vR1}, v12, v{vR0}")
    A.e(f"s_mul_i32 s3, s{sT8}, 9216\ns_cmp_eq_u32 s{sW}, 3\ns_cselect_b32 s3, 0, s3\ns_cselect_b64 {s(sSt,2)}, {s(sH2,2)}, {s(sOut,2)}")
    A.srd(sSt, sSt, 9216, "s3")
    pace()
    A.wait(lg="ut")
    CB, SB, GB, D = PL, PL + 24, PL + 48, PL + 72
    KV, KA = XR, XR + 4
    for i in range(4):
        R0 = PL + 36 * i
        A.wait(vm=("c", i)); pace(step=5 * i); acc(ACC + 16, R0, i == 0)
        if i == 2:
            vec(2, CB, "m"); vec(1, SB, "m"); vec(3, GB, "m")
        if i == 3:
            A.e(f"s_lshl_b32 s3, s{sT8}, 3\ns_sub_u32 s3, 0xfff, s3\nv_and_b32 v{vFa}, 7, v0\nv_sub_u32 v{vFa}, s3, v{vFa}\ns_mov_b32 s57, 0xfffff000")
            A.e(f"s_mul_i32 s58, s{sT8}, {KS}\ns_add_u32 s58, s58, {WS_KEY}\ns_xor_b32 s3, s{sW}, 2\nv_or_b32 v{vFl}, s3, v0\nv_min_u32 v{vFl}, 1, v{vFl}\nv_lshlrev_b32 v{vFl}, 30, v{vFl}")
            xsumG(A, list(range(ACC + 16, ACC + 24)), D + 24)
            for q in range(12): A.e(f"v_lshlrev_b32 v{D+2*q}, 16, v{XR+q}\nv_and_b32 v{D+2*q+1}, 0xffff0000, v{XR+q}")
            A.e(f"s_cmp_lt_u32 s2, 180\ns_cselect_b32 s3, 2, 0\ns_cmp_lt_u32 s{sW}, s3\ns_cselect_b32 s3, 0, 0x40000000\nv_mul_u32_u24 v{KA}, {KS}, v0\nv_or_b32 v{KA}, s3, v{KA}")
            A.e(f"s_mul_i32 s15, s{sW}, {128*KS}\ns_add_u32 s15, s15, {WS_KEY}\ns_add_u32 s59, s15, {64*KS}\ns_lshl_b32 s3, s{sW}, 7\ns_sub_u32 s3, s{sT8}, s3\nv_cmp_eq_u32 s[60:61], s3, v0\ns_sub_u32 s3, s3, 64\nv_cmp_eq_u32 s[62:63], s3, v0")
        for g in range(4):
            A.wait(vm=("p", i, g, 0)); pace(step=5 * i + 1 + g); acc(ACC + 8, R0 + 4 + 8 * g, i == 0 and g == 0)
            A.wait(vm=("p", i, g, 1)); acc(ACC, R0 + 8 + 8 * g, i == 0 and g == 0)
    assert not pend and not fww
    A.stamp()
    A.wait(lg="ga")
    for q in range(12): A.e(f"v_pk_fma_f32 {v(ACC+2*q,2)}, {v(ACC+2*q,2)}, {v(GA+2*q,2)}, {v(D+2*q,2)}")
    MU, M2, DD = TM, TM + 1, TM + 2
    dot24p(A, MU, 12, ACC, None); xsum8(A, [MU], TM + 3)
    A.e(f"v_mul_f32 v{MU}, {hex(f2u(1/144))}, v{MU}")
    for i in range(0, 24, 2): A.e(f"v_pk_add_f32 {v(D+i,2)}, {v(ACC+i,2)}, {v(MU,2)} op_sel_hi:[1,0] neg_lo:[0,1] neg_hi:[0,1]")
    dot24p(A, M2, 12, D, D); dot24p(A, DD, 12, D, U); xsum8(A, [M2, DD], TM + 3)
    for k in range(3): A.lds(f"ds_write_b32 v10, v{TM+k} offset:{128*k}", "sw")
    A.wait(lg="sw"); A.e("s_barrier")
    R = GA
    for k in range(5): A.lds(f"ds_read_b128 {v(R+4*k,4)}, v11 offset:{128*k}", ("sr", k))
    A.wait(lg=("sr", 0))
    A.e(f"v_add_f32 v12, v{R}, v{R+1}\nv_add_f32 v13, v{R+2}, v{R+3}\nv_add_f32 v12, v12, v13\nv_mul_f32 v12, 0x3e800000, v12")
    for k in range(4): A.e(f"v_sub_f32 v{R+k}, v{R+k}, v12")
    A.e(f"v_sub_f32 v{MU}, v{MU}, v12\nv_mul_f32 v13, v{R}, v{R}")
    for k in range(1, 4): A.e(f"v_fmac_f32 v13, v{R+k}, v{R+k}")
    A.wait(lg=("sr", 1))
    A.e(f"v_add_f32 v14, v{R+4}, v{R+5}\nv_add_f32 v15, v{R+6}, v{R+7}\nv_add_f32 v14, v14, v15\nv_fmac_f32 v14, {hex(f2u(144.0))}, v13")
    A.e(f"v_mov_b32 v13, {hex(f2u(1e-5))}\nv_fmac_f32 v13, {hex(f2u(1/576))}, v14\nv_rsq_f32 v13, v13")
    A.wait(lg=("sr", 4))
    K1, K2 = R + 4, R + 5
    for k in (0, 2): A.e(f"v_pk_fma_f32 {v(R+8+k,2)}, {v(R+k,2)}, {v(R+12+k,2)}, {v(R+8+k,2)}")
    A.e(f"v_pk_add_f32 {v(R+8,2)}, {v(R+8,2)}, {v(R+10,2)}\nv_pk_add_f32 {v(R+16,2)}, {v(R+16,2)}, {v(R+18,2)}\nv_add_f32 v14, v{R+8}, v{R+9}\nv_add_f32 v15, v{R+16}, v{R+17}\nv_fmac_f32 v15, v14, v13")
    A.e(f"v_ashrrev_i32 v12, 31, v15\nv_or_b32 v12, 0x80000000, v12\nv_xor_b32 v12, v12, v15\nv_and_or_b32 v{K1}, v12, s57, v{vFa}\nv_mov_b32 v{K2}, 0")
    top2_lanes(A, K1, K2, 14, 15, (1, 2, 4), ())
    A.e(f"buffer_store_dwordx2 {v(K1,2)}, v{vFl}, {s(sWs,4)}, s58 offen offset:8 sc1")
    kld = [f"buffer_load_dwordx2 {v(KV+2*h,2)}, v{KA}, {s(sWs,4)}, {'s59' if h else 's15'} offen offset:8 sc1" for h in range(2)]
    if opt.get("kearly", 0): A.e("\n".join(kld))
    A.stamp()
    A.e(f"v_mul_f32 v{MU}, v{MU}, v13")
    for i in range(0, 24, 2): A.e(f"v_pk_fma_f32 {v(D+i,2)}, {v(D+i,2)}, v[12:13], {v(MU,2)} op_sel:[0,1,0] op_sel_hi:[1,1,0]")
    for i in range(0, 24, 2): A.e(f"v_pk_fma_f32 {v(D+i,2)}, {v(D+i,2)}, {v(CB+i,2)}, {v(SB+i,2)}")
    for m, src in ((1, D), (0, ACC)):
        if m == 0:
            for i in range(0, 24, 2): A.e(f"v_pk_fma_f32 {v(ACC+i,2)}, {v(D+i,2)}, {v(GB+i,2)}, {v(ACC+i,2)}")
        for i in range(3):
            d = CB + 12 * m + 4 * i
            for q in range(4): A.e(f"v_cvt_pk_bf16_f32 v{d+q}, v{src+8*i+2*q}, v{src+8*i+2*q+1}")
            if m == 1:
                for q in range(4): A.e(f"v_min_u32 v{d+q}, -2, v{d+q}")
            A.lds(f"ds_write_b128 v{vXC if i == 2 else vXA}, {v(d,4)} offset:{9344*m + (512 if i == 1 else 0)}", "tw")
    A.e(f"v_lshrrev_b32 v7, 4, v0\nv_and_b32 v6, 1, v0\nv_bfe_u32 v5, v0, 2, 2\nv_lshlrev_b32 v5, 6, v5\nv_lshl_add_u32 v5, v7, 4, v5\nv_mov_b32 v14, {SCR + 1792}\ns_movk_i32 s57, 1168")
    if A.stamping == 5: A.stamp()
    A.wait(lg="tw"); A.e(f"s_barrier\ns_cmp_lt_u32 s{sW}, 2\ns_cbranch_scc1 L2_keys")
    if opt.get("cand", 1):
        A.e(f"s_cmp_eq_u32 s{sW}, 2\ns_cbranch_scc1 L2_rows\nv_not_b32 v12, v{K1}\nv_not_b32 v13, v{K2}\nv_and_b32 v12, 7, v12\nv_and_b32 v13, 7, v13")
        A.e(f"v_cmp_gt_u32 vcc, 8, v0\nv_mul_u32_u24 v{SB+12}, 1168, v12\nv_mul_u32_u24 v{SB+13}, 1168, v13\nv_cndmask_b32 v15, v13, v12, vcc")
        A.e(f"v_add_u32 v{SB+12}, v{SB+12}, v{vR0}\nv_add_u32 v{SB+13}, v{SB+13}, v{vR0}\nds_read_b128 {v(SB,4)}, v{SB+12}\nds_read_b128 {v(SB+4,4)}, v{SB+13}")
        A.e(f"v_lshrrev_b32 v{SB+14}, 3, v0\nv_sub_u32 v15, v15, v{SB+14}\nv_mad_i32_i24 v{SB+14}, v15, s57, v{vR1}\nds_read_b128 {v(SB+8,4)}, v{SB+14} offset:1024")
        A.e(f"s_movk_i32 s3, 1152\nv_mad_u32_u24 v12, v12, s3, v{vX}\nv_mad_u32_u24 v13, v13, s3, v{vX}\nv_mad_i32_i24 v15, v15, s3, v{vR2}")
        A.e(f"s_waitcnt lgkmcnt(2)\nbuffer_store_dwordx4 {v(SB,4)}, v12, {s(sSt,4)}, 0 offen sc1\ns_waitcnt lgkmcnt(1)\nbuffer_store_dwordx4 {v(SB+4,4)}, v13, {s(sSt,4)}, 0 offen sc1")
        A.e(f"s_mov_b64 exec, 0xffff\ns_waitcnt lgkmcnt(0)\nbuffer_store_dwordx4 {v(SB+8,4)}, v15, {s(sSt,4)}, 0 offen offset:1024 sc1\ns_mov_b64 exec, -1\ns_branch L2_rowsdone")
        A.label("L2_rows")
    for r in range(9): A.lds(f"ds_read_b128 {v(SB+4*r,4)}, v{vR1 if r == 8 else vR0} offset:{1024 if r == 8 else 1168*r}", ("tr", r))
    for r in range(9):
        if r in (0, 4): A.e(f"s_movk_i32 s3, {1152*r}")
        A.wait(lg=("tr", r))
        A.e(f"buffer_store_dwordx4 {v(SB+4*r,4)}, v{vR2 if r == 8 else vX}, {s(sSt,4)}, {0 if r == 8 else 's3'} offen offset:{1024 if r == 8 else 1152*(r%4)} sc1")
    A.label("L2_rowsdone")
    if not opt.get("fh", 0): A.items(far)
    rdy = f"buffer_store_dword v14, v{vFl}, {s(sWs,4)}, s{sFs} offen offset:128 sc1"
    A.e(f"s_cmp_lt_u32 s2, 144\ns_cbranch_scc1 L2_join\ns_waitcnt vmcnt(0)\n{rdy}\ns_cmp_lt_u32 s2, 180\ns_cbranch_scc1 L2_join\ns_branch L2_fin")
    A.label("L2_keys")
    A.e("s_cmp_ge_u32 s2, 180\ns_cbranch_scc1 L2_fin")
    if not opt.get("kearly", 0): A.e("\n".join(kld))
    if not opt.get("fh", 0): A.items(far)
    ktest = "\n".join(f"v_cndmask_b32 v{KV+2*h+k}, v{KV+2*h+k}, v{K1+k}, {s(60+2*h,2)}" for h in range(2) for k in range(2))
    ktest += f"\nv_min_u32 v12, v{KV}, v{KV+1}\nv_min_u32 v13, v{KV+2}, v{KV+3}\nv_cmp_eq_u32 s[4:5], 0, v12\nv_cmp_eq_u32 s[6:7], 0, v13\ns_nop 0\ns_or_b64 vcc, s[4:5], s[6:7]"
    A.e(f"s_waitcnt vmcnt(0)\n{ktest}\ns_cbranch_scc0 L2_p2_ok")
    poll(A, "L2_p2", f"s_or_b64 exec, s[4:5], 1\n{kld[0]}\ns_or_b64 exec, s[6:7], 1\n{kld[1]}\ns_mov_b64 exec, -1", ktest, opt.get("sl2", 1))
    merge2(A, KV, KV + 1, KV + 2, KV + 3)
    top2_lanes(A, KV, KV + 1, 12, 13, (1, 2, 4, 8), ("v_permlane16_swap_b32", "v_permlane32_swap_b32"))
    A.e(f"s_lshl3_add_u32 s3, s{sW}, {SCR + 1792}\nv_mov_b32 v12, s3\nds_write_b64 v12, {v(KV,2)}\ns_waitcnt lgkmcnt(0)")
    A.label("L2_join")
    A.stamp()
    A.vm = []; A.lg = []
    A.e("s_barrier\nds_read_b128 v[16:19], v14\nv_cmp_eq_u32 vcc, 0, v6\ns_waitcnt lgkmcnt(0)")
    merge2(A, 16, 17, 18, 19)
    A.e("v_cndmask_b32 v16, v17, v16, vcc\nv_and_b32 v3, 0x7ff, v16\nv_sub_u32 v3, 2047, v3\nv_mul_u32_u24 v4, 1152, v3")
    A.stamp()
    A.e("s_cmp_ge_u32 s2, 144\ns_cbranch_scc1 L2_red")
    A.e(f"v_add_u32 v5, v5, v4\ns_mov_b32 s59, {WS_H2}")
    H = 128
    A.e("v_and_b32 v12, 8, v0\nv_lshlrev_b32 v12, 4, v12\nv_sub_u32 v3, v5, v12")
    hld = [f"buffer_load_dwordx4 {v(H+4*i,4)}, v{3 if i == 4 else 5}, {s(sWs,4)}, s59 offen offset:{256*i} sc1" for i in range(5)]
    for x in hld: A.vmem(x, "h")
    if opt.get("fh", 0): A.items([(x[0], x[1], "fa" if k < 36 else "fb") for k, x in enumerate(far)])
    LX = SCR + 1024
    A.e(f"v_lshlrev_b32 v11, 7, v6\nv_lshl_add_u32 v13, v7, 5, v11\nv_add_u32 v13, {LX}, v13\nv_lshl_add_u32 v11, v7, 4, v11")
    A.e(f"s_lshr_b32 s3, s{sW}, 1\ns_lshl_b32 s3, s3, 8\ns_and_b32 s14, s{sW}, 1\ns_lshl_b32 s14, s14, 6\ns_add_u32 s3, s3, s14\ns_add_u32 s3, s3, {LX}\nv_add_u32 v11, s3, v11")
    A.e(f"s_mul_i32 s14, s{sW}, 1152\ns_mul_i32 s15, s2, 4608\ns_add_u32 s15, s15, s14\ns_add_u32 s15, s15, {WS_YP}\nv_lshlrev_b32 v10, 3, v0")
    A.wait(vm="h", lg="fa"); A.e(rdy)
    if A.stamping == 5: A.stamp()
    htree = [f"v_max_u32 v12, v{H}, v{H+1}"] + [f"v_max3_u32 v12, v12, v{H+2*k}, v{H+2*k+1}" for k in range(1, 10)] + ["v_cmp_eq_u32 vcc, -1, v12"]
    A.label("L2_hr")
    for n_, kk in enumerate((0, 1, 2, 3, 4, 5, 6, 7, 8, 9, 10, 11, 14, 15, 12, 13, 17, 16)):
        d = v(88 + 4 * (kk % 4), 4)
        A.e(f"{MF} {d}, {a(aF+4*kk,4)}, {v(H+4*(kk//4),4)}, {'0' if kk < 4 else d}")
        if n_ < len(htree): A.e(htree[n_])
    A.e("s_cmp_lg_u64 vcc, 0\ns_cbranch_scc1 L2_hs\ns_nop 1")
    B.label("L2_hs")
    poll(B, "L2_h", "\n".join(hld), "\n".join(htree))
    for k in range(20): B.e(f"v_min_u32 v{H+k}, -2, v{H+k}")
    B.e("s_nop 1\ns_branch L2_hr")
    for i in range(4): A.e(f"v_add_f32_dpp v{96+i}, v{100+i}, v{96+i} row_shl:4 row_mask:0xf bank_mask:0xf bound_ctrl:1")
    for i in range(4): A.e(f"v_add_f32_dpp v{88+i}, v{92+i}, v{88+i} row_shl:4 row_mask:0xf bank_mask:0xf bound_ctrl:1")
    for i in range(4): A.e(f"v_add_f32_dpp v{88+i}, v{96+i}, v{88+i} row_shl:8 row_mask:0xf bank_mask:0xf bound_ctrl:1")
    A.e("s_mov_b32 exec_lo, 0x30003\ns_mov_b32 exec_hi, 0x30003")
    A.lds("ds_write_b128 v11, v[88:91]", "x"); A.e("s_mov_b64 exec, -1"); A.wait(lg="x"); A.e("s_barrier")
    for i in range(4): A.lds(f"ds_read_b128 {v(16+4*i,4)}, v13 offset:{(i//2)*256 + (i%2)*16}", ("y", i // 2))
    A.e(f"v_mov_b32 v12, {hex(f2u(-LOG2E))}")
    A.wait(lg=("y", 0))
    for i in range(0, 8, 2): A.e(f"v_pk_mul_f32 {v(32+i,2)}, {v(16+i,2)}, v[12:13] op_sel_hi:[1,0]")
    for i in range(8): A.e(f"v_exp_f32 v{32+i}, v{32+i}")
    for i in range(0, 8, 2): A.e(f"v_pk_add_f32 {v(32+i,2)}, {v(32+i,2)}, 1.0 op_sel_hi:[1,0]")
    for i in range(8): A.e(f"v_rcp_f32 v{32+i}, v{32+i}")
    A.wait(lg=("y", 1))
    for i in range(0, 8, 2): A.e(f"v_pk_mul_f32 {v(16+i,2)}, {v(16+i,2)}, {v(32+i,2)}")
    for i in range(0, 8, 2): A.e(f"v_pk_mul_f32 {v(16+i,2)}, {v(16+i,2)}, {v(24+i,2)}")
    for q in range(4): A.e(f"v_cvt_pk_bf16_f32 v{40+q}, v{16+2*q}, v{17+2*q}")
    A.e("s_nop 1")
    for nt in range(9): A.e(f"{MF} {v(48+4*nt,4)}, v[40:43], {a(aF+72+4*nt,4)}, 0")
    A.e("s_nop 0")
    for half in range(2):
        for G_ in range(4):
            for t in range(2):
                if half == 0 and G_ == 0: continue
                A.e(f"v_mov_b32_dpp v{48+2*half+t}, v{48+4*(4*half+G_)+t} quad_perm:[0,1,2,3] row_mask:{hex(1 << G_)} bank_mask:0xf")
            if G_ < 3 and not (half == 0 and G_ == 0): A.e("s_nop 0")
    for r_ in (48, 49, 50, 51, 80, 81): A.e(f"v_min_u32 v{r_}, -2, v{r_}")
    A.e(f"buffer_store_dwordx4 v[48:51], v{vX}, {s(sWs,4)}, s15 offen sc1\ns_mov_b64 exec, 0xffff\nbuffer_store_dwordx2 v[80:81], v10, {s(sWs,4)}, s15 offen offset:1024 sc1")
    A.e("s_branch L2_fin")
    A.label("L2_red")
    A.vm = []; A.lg = []
    A.e(f"s_mov_b32 s3, {WS_YP}"); A.srd(sYp, sWs, YP_BYTES, "s3")
    A.e("s_sub_u32 s3, s2, 144\ns_mul_i32 s14, s3, 7282\ns_lshr_b32 s14, s14, 16\ns_mul_i32 s15, s14, 9\ns_sub_u32 s15, s3, s15\ns_mul_i32 s14, s14, 144")
    A.e("s_cmp_eq_u32 s15, 8\ns_cselect_b32 s56, 1, 64\ns_cselect_b32 s57, 2, 1\ns_cselect_b32 s15, 16, s15\ns_lshl3_add_u32 s14, s15, s14")
    A.e("v_bfe_u32 v7, v0, 2, 3\nv_mul_u32_u24 v7, s57, v7\nv_bfe_u32 v9, v0, 1, 1\nv_mul_u32_u24 v9, s56, v9\nv_add3_u32 v7, v7, v9, s14\nv_lshl_add_u32 v9, v7, 1, v4\nv_lshlrev_b32 v7, 2, v7")
    A.e(f"v_lshrrev_b32 v12, 7, v3\nv_bfe_u32 v13, v3, 3, 4\nv_lshl_add_u32 v13, v12, 6, v13\nv_lshlrev_b32 v13, 8, v13\ns_mov_b32 s59, {WS_F1 + 2*16*256}")
    poll(A, "L2_r", f"buffer_load_dword v12, v13, {s(sWs,4)}, s59 offen offset:128 sc1", "v_cmp_eq_u32 vcc, 0, v12")
    A.e(f"buffer_load_ushort v18, v9, {s(sOut,4)}, 0 offen sc1\nds_read_b32 v20, v7 offset:{3*2304}")
    A.e(f"v_and_b32 v6, 7, v0\nv_lshrrev_b32 v10, 3, v0\ns_lshl_b32 s14, s{sW}, 3\nv_add_u32 v10, s14, v10\nv_mul_u32_u24 v10, 4608, v10\nv_lshl_add_u32 v10, v6, 4, v10\ns_lshl_b32 s3, s3, 7\nv_add_u32 v24, s3, v10")
    for r in range(1, 5): A.e(f"v_add_u32 v{24+r}, {147456*r}, v24")
    A.e("v_and_b32 v16, 0xfffff800, v16\nv_not_b32 v12, v16\nv_ashrrev_i32 v12, 31, v12\nv_or_b32 v12, 0x80000000, v12\nv_xor_b32 v16, v16, v12")
    A.e(f"v_mul_f32 v16, {hex(f2u(-LOG2E))}, v16\nv_exp_f32 v16, v16\ns_nop 0\nv_add_f32 v16, 1.0, v16\nv_rcp_f32 v16, v16\ns_waitcnt lgkmcnt(0)\nv_mul_f32 v20, v20, v16")
    A.e(f"s_lshl_b32 s14, s{sW}, 7\ns_add_u32 s14, s14, {SCR + 2048}\nv_lshl_add_u32 v10, v6, 4, s14\nv_and_b32 v11, 31, v0\nv_lshlrev_b32 v11, 2, v11")
    if opt.get("pre3", 0):
        A.e("s_mov_b64 exec, 1")
        poll(A, "L2_p3a", f"buffer_load_dword v32, v24, {s(sYp,4)}, 0 offen sc1", "v_cmp_eq_u32 vcc, -1, v32", opt.get("sl3", 1))
        A.e("s_mov_b64 exec, -1")
    tree = "v_max3_u32 v12, v32, v33, v34\n" + "\n".join(f"v_max3_u32 v12, v12, v{35+2*i}, v{36+2*i}" for i in range(8)) + "\nv_max_u32 v12, v12, v51\nv_cmp_eq_u32 vcc, -1, v12"
    poll(A, "L2_p3", "\n".join(f"buffer_load_dwordx4 {v(32+4*r,4)}, v{24+r}, {s(sYp,4)}, 0 offen sc1" for r in range(5)), tree, 0)
    for i in range(0, 4, 2):
        A.e(f"v_pk_add_f32 {v(32+i,2)}, {v(32+i,2)}, {v(36+i,2)}\nv_pk_add_f32 {v(40+i,2)}, {v(40+i,2)}, {v(44+i,2)}\nv_pk_add_f32 {v(32+i,2)}, {v(32+i,2)}, {v(48+i,2)}\nv_pk_add_f32 {v(32+i,2)}, {v(32+i,2)}, {v(40+i,2)}")
    xsum8(A, [32, 33, 34, 35], 12)
    A.e("ds_write_b128 v10, v[32:35]\ns_waitcnt lgkmcnt(0)\ns_barrier")
    A.e(f"s_cmp_lg_u32 s{sW}, 0\ns_cbranch_scc1 L2_fin")
    for k in range(4): A.e(f"ds_read_b32 v{32+k}, v11 offset:{SCR + 2048 + 128*k}")
    A.e("v_lshlrev_b32 v12, 16, v18\ns_mov_b32 exec_hi, 0\ns_waitcnt lgkmcnt(0)")
    A.e("v_pk_add_f32 v[32:33], v[32:33], v[34:35]\nv_add_f32 v32, v32, v33\nv_fmac_f32 v12, v32, v20\nv_cvt_pk_bf16_f32 v12, v12, v12")
    A.e(f"buffer_store_short v12, v9, {s(sOut,4)}, 0 offen{opt.get('finf', ' sc1')}")
    A.label("L2_fin")
    if A.stamping: A.e("s_mov_b64 exec, -1")
    A.stamp()
    if opt.get("enc"):
        ea, eb, clk = opt["enc"]; o = 0 if clk else 1
        A.e("s_cmp_lg_u32 s2, 150\ns_cbranch_scc1 L2_noenc")
        if ea < 0:
            A.e(f"s_load_dwordx2 s[60:61], s[0:1], 112\ns_waitcnt lgkmcnt(0)\ns_mov_b32 s62, 0x10000000\ns_mov_b32 s63, 0x20000\nv_mov_b32 v2, {WS_STAMP + 150*1024 + 4}\nbuffer_load_dword v1, v2, s[60:63], 0 offen\ns_waitcnt vmcnt(0)")
        A.e(f"v_accvgpr_read_b32 v1, a61\ns_nop 0\nv_readlane_b32 s56, v1, {2*eb+o}\nv_readlane_b32 s57, v1, {2*ea+o}\ns_nop 0\ns_sub_u32 s56, s56, s57")
        A.e("s_lshr_b32 s56, s56, 3" if clk else "s_lshl_b32 s56, s56, 2")
        A.e("s_min_u32 s56, s56, 100000\ns_mov_b32 s57, s93")
        A.label("L2_enc")
        A.e("s_memrealtime s[94:95]\ns_waitcnt lgkmcnt(0)\ns_sub_u32 s58, s94, s57\ns_cmp_lt_u32 s58, s56\ns_cbranch_scc1 L2_enc")
        A.label("L2_noenc")
    else: A.stamp_flush(1, WS_STAMP, sW)

OPT = {}
def gen_k2(opt={}):
    OPT.clear(); OPT.update(opt)
    A = Asm(); A.stamp_agpr = 60
    A.label("L2_begin")
    A.e("s_getpc_b64 s[98:99]")
    A.e("s_cmp_ge_u32 s2, 256\ns_cbranch_scc1 L2_end")
    A.stamp()
    for d, off in ((sXi, 0), (sC, 80), (sWm, 88), (12, 112), (sDb, 104)): A.e(f"s_load_dwordx2 {s(d,2)}, s[0:1], {off}")
    vTid = 155
    tch = opt.get("touch", "cq")
    A.e(f"s_and_b32 s3, s2, 7\ns_lshr_b32 s14, s2, 3\nv_mov_b32 v{vTid}, v0\nv_lshrrev_b32 v10, 6, v0\nv_and_b32 v0, 63, v0")
    if "c" in tch:
        A.e(f"s_lshl_b32 s15, s14, 9\nv_lshl_add_u32 v13, v10, 7, s15\nv_lshl_add_u32 v13, v0, 14, v13\nv_min_u32 v13, L2_codeend-L2_begin-8, v13\ns_mov_b64 exec, 31")
        A.vmem(f"global_load_dword a{aDum}, v13, s[98:99]"); A.e("s_mov_b64 exec, -1")
    A.e(f"v_readfirstlane_b32 s{sW}, v10")
    A.e(f"s_and_b32 s{sG}, s3, 3\ns_and_b32 s15, s14, 3\ns_lshl2_add_u32 s{sG}, s{sG}, s15")
    A.e(f"s_lshr_b32 s{sTb}, s3, 2\ns_lshr_b32 s15, s14, 2\ns_lshl3_add_u32 s{sTb}, s{sTb}, s15\ns_lshl4_add_u32 s{sT8}, s{sTb}, s{sG}")
    sP, sSl, sHf = sCnt, sPass, sW9
    A.e(f"s_mul_i32 s{sP}, s3, 27\ns_max_u32 s14, s14, 5\ns_add_u32 s{sP}, s{sP}, s14\ns_sub_u32 s{sP}, s{sP}, 5\ns_lshr_b32 s{sHf}, s3, 2\ns_mul_i32 s15, s{sHf}, 108\ns_sub_u32 s{sSl}, s{sP}, s15")
    item_addr(A, 288, 288, 256)
    vW4, vW1 = 153, 154
    A.e(f"v_and_b32 v4, 0xfc, v{vTid}\nv_and_b32 v7, 3, v0\nv_mul_u32_u24 v3, 6912, v4\nv_lshl_add_u32 v{vW4}, v7, 4, v3")
    A.e(f"s_mul_i32 s3, s{sT8}, 9216\ns_movk_i32 s{sXi+2}, 9216\ns_mov_b32 s{sXi+3}, 0x20000\ns_mov_b32 s{sWm+3}, s{sXi+3}")
    A.e(f"v_lshlrev_b32 v{vX}, 4, v0\ns_mov_b32 s{sWs+2}, {WS_SIZE}\ns_mov_b32 s{sWs+3}, s{sXi+3}\ns_movk_i32 s{sDb+2}, 256\ns_mov_b32 s{sDb+3}, s{sXi+3}")
    A.e(f"s_lshl_b32 s14, s{sSl}, 6\ns_sub_u32 s{sWm+2}, {288*6912}, s14\ns_cmp_ge_u32 s2, 40\ns_cselect_b32 s{sWm+2}, s{sWm+2}, 0\ns_mul_i32 s15, s{sHf}, {288*6912}\ns_add_u32 s14, s14, s15")
    A.e("s_waitcnt lgkmcnt(0)")
    A.fstamp()
    A.e(f"s_add_u32 s{sXi}, s{sXi}, s3\ns_addc_u32 s{sXi+1}, s{sXi+1}, 0")
    for pre, ld in xi_loads(128): A.item(ld)
    A.e(f"s_add_u32 s{sWm}, s{sWm}, s14\ns_addc_u32 s{sWm+1}, s{sWm+1}, 0")
    ncl = opt.get("ncl", 8); nst = 16 // ncl
    A.e(f"s_mov_b64 {s(sWs,2)}, s[12:13]\ns_cmp_ge_u32 s2, {ncl}\ns_cbranch_scc1 L2_noclr")
    assert ncl == 8
    for i in range(4): A.e(f"v_mov_b32 v{52+i}, -1\nv_mov_b32 v{56+i}, 0")
    A.e(f"s_lshl2_add_u32 s15, s2, s{sW}\ns_lshl_b32 s3, s15, 10\nbuffer_store_dwordx4 v[52:55], v{vX}, {s(sWs,4)}, s3 offen sc1")
    A.e(f"v_lshrrev_b32 v13, 3, v0\nv_mul_u32_u24 v13, {KS - 128}, v13\nv_add_u32 v13, v13, v{vX}\ns_mul_i32 s3, s15, {8*KS}\ns_add_u32 s3, s3, {WS_KEY}\nbuffer_store_dwordx4 v[56:59], v13, {s(sWs,4)}, s3 offen sc1")
    A.label("L2_noclr")
    nclr = len(A.vm)
    WM, CC = 128, 148
    nw0 = opt.get("nw0", 4)
    def wload(i):
        if 0 < i < 4: A.e(f"s_movk_i32 s3, {6912*i}")
        A.vmem(f"buffer_load_dwordx4 {v(WM+4*i,4)}, v{vW4 if i < 4 else vW1}, {s(sWm,4)}, {'s3' if 0 < i < 4 else 0} offen", ("w", i))
    for i in range(min(nw0, 4)): wload(i)
    A.fstamp()
    A.e(f"v_lshrrev_b32 v3, 2, v3\nv_lshl_add_u32 v3, v7, 4, v3\nv_add_u32 v{vW1}, {256*6912}, v3\nv_lshrrev_b32 v3, 1, v4\nv_lshlrev_b32 v4, 1, v4")
    A.e(f"s_mul_i32 s3, s{sHf}, 576"); A.srd(sC, sC, 576, "s3")
    A.vmem(f"buffer_load_dwordx2 {v(CC,2)}, v4, {s(sC,4)}, 0 offen", "c")
    for i in range(4): A.e(f"v_mov_b32 v{WM+16+i}, 0")
    A.e(f"v_mov_b32 v{CC+2}, 0\ns_cmp_ge_u32 s{sW}, 2\ns_cbranch_scc1 L2_w23")
    A.e(f"buffer_load_dwordx4 {v(WM+16,4)}, v{vW1}, {s(sWm,4)}, 0 offen\nbuffer_load_ushort v{CC+2}, v3, {s(sC,4)}, 0 offen offset:512")
    A.label("L2_w23")
    A.e("s_load_dwordx8 s[4:11], s[0:1], 8")
    for d, off in ((sWg, 56), (sWu, 64), (sWd, 72), (sOut, 96), (sWr, 48)): A.e(f"s_load_dwordx2 {s(d,2)}, s[0:1], {off}")
    B = Asm()
    A.fstamp()
    F = 156
    vL7, vSt, vSw, vXs, vYc, vMw, vL4, vXf, vMs = F, F + 1, F + 2, F + 3, F + 4, F + 5, F + 6, F + 7, F + 8
    SA, SD, SV = F + 10, F + 11, F + 12
    A.e(f"s_cmp_eq_u32 s{sW}, 0\ns_cselect_b32 s3, 0, 0x40000000\nv_mul_u32_u24 v{vL7}, {256//ncl}, v0\nv_or_b32 v{vL7}, s3, v{vL7}\ns_mul_i32 s{sW4}, s{sW}, {4*PIECE}\ns_add_u32 s{sW4}, s{sW4}, {RING}\nv_lshl_add_u32 v{vKV}, v10, 12, v{vX}")
    A.e(f"v_lshrrev_b32 v13, 5, v0\nv_lshl_add_u32 v13, v10, 1, v13\nv_lshlrev_b32 v13, 15, v13\nv_and_b32 v14, 31, v0\nv_lshl_add_u32 v{vWq}, v14, 4, v13")
    for i in range(4): A.e(f"v_mov_b32 v{56+i}, 0\nv_mov_b32 v{60+i}, -1")
    A.e(f"s_and_b32 s14, s{sTb}, 7\ns_lshl2_add_u32 s14, s14, s{sW}\nv_lshrrev_b32 v13, 2, v0\nv_lshl_add_u32 v13, v13, 5, s14\nv_lshlrev_b32 v13, 13, v13\nv_lshl_add_u32 v13, v7, 7, v13")
    A.e("s_waitcnt lgkmcnt(0)")
    A.e(f"s_lshl_b32 s3, s{sG}, 9"); A.srd(sWq, 8, 0, "s3"); A.e(f"s_sub_u32 s{sWq+2}, {576*8192}, s3")
    if True:
        nq = opt.get("nq", 16)
        A.e(f"s_mov_b64 exec, {hex((1 << nq) - 1)}" if nq <= 31 else f"s_mov_b32 exec_hi, {hex((1 << (nq - 32)) - 1)}")
        A.vmem(f"buffer_load_dword a{aDum}, v13, {s(sWq,4)}, 0 offen", "tq"); A.e("s_mov_b64 exec, -1")
    A.e(f"s_mov_b32 s{sWr+2}, 1152\ns_mov_b32 s{sWr+3}, 0x20000")
    A.stamp()
    ST = SCR + 256; MP = RING
    sF1, sYc, sXs, sXf, sMl, sKy, sMul, sAdd = 56, 57, 58, 59, 100, 101, sBase, sDel
    A.e(f"v_and_b32 v14, 7, v0\nv_lshlrev_b32 v{vSt}, 4, v14\nv_add_u32 v{vSt}, {ST}, v{vSt}\nv_lshl_add_u32 v{vSw}, v10, 2, v{vSt}")
    A.e(f"s_mul_i32 s3, s{sW}, {18*256}\nv_lshl_add_u32 v14, v14, 4, s3\nv_lshrrev_b32 v15, 3, v0\nv_lshl_add_u32 v{vXs}, v15, 8, v14")
    A.e(f"s_lshr_b32 s3, s{sT8}, 1\ns_mul_i32 s3, s3, 18432\ns_and_b32 s14, s{sT8}, 1\ns_lshl_b32 s14, s14, 7\ns_add_u32 s3, s3, s14\ns_add_u32 s{sXs}, s3, {WS_XN}")
    A.e(f"s_lshl_b32 s3, s{sTb}, 2\ns_add_u32 s3, s3, s{sW}\ns_lshl_b32 s14, s3, 4\ns_add_u32 s14, s14, s{sG}\ns_lshl_b32 s14, s14, 8\ns_add_u32 s{sF1}, s14, {WS_F1}")
    A.e(f"s_mul_i32 s14, s3, {4*KS}\ns_add_u32 s{sXf}, s14, {WS_KEY}\nv_and_b32 v14, 3, v0\nv_mul_u32_u24 v{vXf}, {KS}, v14")
    A.e(f"s_mul_i32 s14, s3, 36864\ns_add_u32 s14, s14, {WS_XN}"); A.srd(sXn, 12, 36864, "s14")
    A.e(f"s_mul_i32 s15, s2, 4608\ns_mul_i32 s14, s{sW}, 1152\ns_add_u32 s15, s15, s14\ns_add_u32 s{sYc}, s15, {WS_YP}")
    A.e(f"s_cmp_ge_u32 s2, 144\ns_cselect_b32 s14, 0x40000000, 0\nv_or_b32 v{vYc}, s14, v{vX}")
    A.e(f"v_lshrrev_b32 v12, 4, v{vTid}\nv_lshlrev_b32 v12, 7, v12\nv_lshl_add_u32 v{vMw}, v7, 5, v12\nv_lshlrev_b32 v{vL4}, 2, v0")
    A.e(f"s_mul_i32 s3, s{sSl}, 3641\ns_lshr_b32 s3, s3, 16\ns_mov_b32 s{sMul}, 1.0\ns_mov_b32 s{sAdd}, 0\ns_cmp_lt_u32 s3, 2\ns_cselect_b32 s{sMul}, {hex(f2u(C0))}, s{sMul}")
    A.e(f"s_cmp_eq_u32 s3, 1\ns_cselect_b32 s{sAdd}, {hex(f2u(C0))}, s{sAdd}\ns_cmp_eq_u32 s3, 4\ns_cselect_b32 s{sAdd}, 1.0, s{sAdd}\ns_cmp_eq_u32 s{sHf}, 0\ns_cselect_b32 s{sAdd}, s{sAdd}, 0")
    A.e(f"s_lshl_b32 s{sMl}, s{sP}, 7\ns_mul_i32 s14, s{sT8}, {KS}\ns_add_u32 s{sKy}, s14, {WS_KEY}")
    A.e(f"s_mul_i32 s3, s{sW}, 1152\nv_add_u32 v{SA}, s3, v{vX}")
    A.e(f"s_and_b32 s3, s{sW}, 1\ns_mul_i32 s3, s3, {36*64}\ns_cmp_lt_u32 s{sW}, 2\ns_cselect_b32 s14, 32, 0\ns_add_u32 s3, s3, s14\ns_add_u32 s3, s3, {ASB}")
    A.e(f"v_lshrrev_b32 v14, 1, v0\nv_lshl_add_u32 v14, v14, 6, s3\nv_and_b32 v15, 1, v0\nv_lshl_add_u32 v{SD}, v15, 4, v14")
    A.e(f"s_cmp_eq_u32 s{sW}, 1\ns_cselect_b32 s3, 40, 256\ns_cmp_ge_u32 s2, s3\ns_cselect_b32 s3, 0, 0x40000000\nv_or_b32 v{vMs}, s3, v{vL4}")
    for i in range(4): A.e(f"v_mov_b32 v{SV+4+i}, 0\nv_mov_b32 v{SV+12+i}, 0")
    A.e(f"s_lshl_b32 s3, s{sTb}, 2\ns_add_u32 s3, s3, s{sW}\nv_mov_b32 v12, v10")
    A.e(f"s_mul_i32 s14, s3, {4*147456}\ns_mul_i32 s15, s{sG}, 9216\ns_add_u32 s14, s14, s15\ns_add_u32 s14, s14, {WS_PART}"); A.srd(sPt, 12, 0, "s14"); A.e(f"s_sub_u32 s{sPt+2}, {4*147456}, s15")
    if opt.get("x_nostore"): A.e(f"s_mov_b32 s{sPt+2}, 0")
    A.e(f"s_lshl_b32 s3, s{sG}, 19"); A.srd(sK, 4, 524288, "s3"); A.srd(sV, 6, 524288, "s3")
    A.e(f"s_mul_i32 s3, s{sG}, 294912"); A.srd(sWo, 10, 294912, "s3")
    A.e(f"s_mov_b64 s[4:5], {s(sWg,2)}\ns_mov_b64 s[6:7], {s(sWu,2)}\ns_mov_b64 s[8:9], {s(sWd,2)}")
    A.e(f"s_mov_b32 s{sPass}, 0\ns_mul_i32 s{sW9}, s{sW}, 9216")
    A.e("s_min_u32 s15, s2, 143\ns_and_b32 s3, s15, 7\ns_mul_i32 s3, s3, 18\ns_lshr_b32 s15, s15, 3\ns_add_u32 s15, s15, s3\ns_lshl_b32 s3, s15, 6")
    A.srd(sWg, sWg, 0, "s3"); A.srd(sWu, sWu, 0, "s3")
    A.e(f"s_sub_u32 s14, {576*9216}, s3\ns_mul_i32 s3, s15, 36864"); A.srd(sWd, sWd, 0, "s3")
    A.e(f"s_cmp_lt_u32 s2, 144\ns_cselect_b32 s{sWg+2}, s14, 0\ns_cselect_b32 s{sWu+2}, s14, 0\ns_cselect_b32 s{sWd+2}, 36864, 0")
    A.e(f"s_mov_b32 s{sOut+2}, 2359296\ns_mov_b32 s{sOut+3}, 0x20000")

    A.e(f"v_lshrrev_b32 v13, 4, v0\nv_lshlrev_b32 v{vAS}, 6, v13")
    A.e(f"v_lshrrev_b32 v14, 2, v0\nv_mul_u32_u24 v14, {PIECE}, v14\nv_add_u32 v14, {RING}, v14")
    A.e(f"v_and_b32 v15, 1, v0\nv_lshlrev_b32 v15, 4, v15\nv_add_u32 v{vT}, v14, v15\nv_and_b32 v15, 2, v0\nv_lshl_add_u32 v{vT}, v15, 2, v{vT}\nv_add_u32 v{vT2}, {2*SLOT}, v{vT}")
    A.e(f"v_lshrrev_b32 v14, 3, v0\nv_lshlrev_b32 v14, 2, v14\nv_add_u32 v14, v14, v12\nv_mul_u32_u24 v14, {4*1152}, v14\nv_and_b32 v15, 7, v0\nv_lshl_add_u32 v{vWo}, v15, 4, v14")
    A.e(f"v_lshlrev_b32 v{vPt}, 4, v15\nv_lshl_add_u32 v{vPt}, v13, 7, v{vPt}\nv_bfe_u32 v14, v0, 3, 1\nv_mul_u32_u24 v14, 147456, v14\nv_add_u32 v{vPt}, v{vPt}, v14")
    def init_kv_addr():
        A.e(f"v_lshrrev_b32 v14, 2, v0\nv_mul_u32_u24 v14, {PIECE}, v14\nv_and_b32 v15, 3, v0\nv_lshl_add_u32 v14, v15, 3, v14\nv_add_u32 v{vV}, {RING + 2*SLOT + HALF}, v14")
        A.e(f"v_and_b32 v14, 15, v0\nv_mul_u32_u24 v14, {PIECE}, v14\nv_lshrrev_b32 v15, 4, v0\nv_lshl_add_u32 v14, v15, 4, v14\nv_add_u32 v{vK}, {RING + 2*SLOT}, v14")
    init_kv_addr()
    A.e(f"v_and_b32 v14, 1, v0\nv_cmp_eq_u32 vcc, 0, v14\nv_mov_b32 v{vIdx}, 0xeeeeeeee\nv_mov_b32 v15, 0x44444444\nv_cndmask_b32 v{vIdx}, v{vIdx}, v15, vcc")
    A.e(f"v_and_b32 v14, {14 if opt.get('ones2', 0) else 2}, v0\nv_cmp_eq_u32 vcc, 0, v14\nv_mov_b32 v15, 0x3f803f80\ns_nop 0\nv_cndmask_b32 v15, 0, v15, vcc")
    for i in range(4): A.e(f"v_accvgpr_write_b32 a{aOne+i}, v15\nv_accvgpr_write_b32 a{56+i}, -1")
    for i in range(16): A.e(f"v_accvgpr_write_b32 a{aL+i}, 0")
    A.e(f"s_cmp_ge_u32 s2, {ncl}\ns_cbranch_scc1 L2_noclr2")
    A.e(f"s_mul_i32 s14, s2, {256//ncl}\ns_mov_b64 exec, 1\ns_waitcnt vmcnt({len(A.vm) - nclr})\ns_barrier\nbuffer_store_dword v60, v{vL7}, {s(sDb,4)}, s14 offen sc1\ns_mov_b64 exec, -1")
    A.label("L2_noclr2")
    A.stamp()
    XF, MA, TF = 24, 16, 48
    A.wait(vm="xi"); A.fstamp()
    for i in range(nw0, 4): wload(i)
    for q in range(12): A.e(f"v_lshlrev_b32 v{XF+2*q}, 16, v{XR+q}\nv_and_b32 v{XF+2*q+1}, 0xffff0000, v{XR+q}")
    dot24p(A, TF, 12, XF, None); xsum8(A, [TF], TF + 2)
    A.e(f"v_mul_f32 v{TF}, {hex(f2u(1/144))}, v{TF}")
    for i in range(0, 24, 2): A.e(f"v_pk_add_f32 {v(XF+i,2)}, {v(XF+i,2)}, {v(TF,2)} op_sel_hi:[1,0] neg_lo:[0,1] neg_hi:[0,1]")
    dot24p(A, TF + 1, 12, XF, XF); xsum8(A, [TF + 1], TF + 2)
    A.lds(f"ds_write_b32 v{vSw}, v{TF}", "f"); A.lds(f"ds_write_b32 v{vSw}, v{TF+1} offset:128", "f")
    A.wait(lg="f"); A.e("s_barrier")
    A.lds(f"ds_read_b128 {v(MA,4)}, v{vSt}", "g0"); A.lds(f"ds_read_b128 {v(MA+4,4)}, v{vSt} offset:128", "g1")
    A.e(f"s_add_u32 s14, s{sXs}, 4096")
    A.wait(lg="g0")
    A.e(f"v_add_f32 v12, v{MA}, v{MA+1}\nv_add_f32 v13, v{MA+2}, v{MA+3}\nv_add_f32 v12, v12, v13\nv_mul_f32 v12, 0x3e800000, v12")
    for k in range(4): A.e(f"v_sub_f32 v{MA+k}, v{MA+k}, v12")
    A.e(f"v_sub_f32 v{TF}, v{TF}, v12\nv_mul_f32 v13, v{MA}, v{MA}")
    for k in range(1, 4): A.e(f"v_fmac_f32 v13, v{MA+k}, v{MA+k}")
    A.wait(lg="g1")
    A.e(f"v_add_f32 v14, v{MA+4}, v{MA+5}\nv_add_f32 v15, v{MA+6}, v{MA+7}\nv_add_f32 v14, v14, v15\nv_fmac_f32 v14, {hex(f2u(144.0))}, v13")
    A.e(f"v_mov_b32 v12, {hex(f2u(1e-5))}\nv_fmac_f32 v12, {hex(f2u(1/576))}, v14\nv_rsq_f32 v12, v12\ns_nop 0\nv_mul_f32 v{TF}, v{TF}, v12")
    for i in range(3):
        for q in range(0, 8, 2): A.e(f"v_pk_fma_f32 {v(XF+8*i+q,2)}, {v(XF+8*i+q,2)}, v[12:13], {v(TF,2)} op_sel_hi:[1,0,0]")
        for q in range(4): A.e(f"v_cvt_pk_f16_f32 v{XR+4*i+q}, v{XF+8*i+2*q}, v{XF+8*i+2*q+1}")
        if i == 2: A.e("s_mov_b64 exec, 0xffff")
        A.vmem(f"buffer_store_dwordx4 {v(XR+4*i,4)}, v{vXs}, {s(sWs,4)}, {'s14' if i == 2 else s(sXs)} offen offset:{2048*(i%2)} sc1")
    A.fstamp()
    A.vmem(f"buffer_store_dwordx4 v[56:59], v{vX}, {s(sWs,4)}, s{sF1} offen sc1")
    A.e("s_mov_b64 exec, 0xff")
    A.vmem(f"buffer_store_dwordx4 v[60:63], v{vYc}, {s(sWs,4)}, s{sYc} offen offset:1024 sc1"); A.e("s_mov_b64 exec, -1")
    A.vmem(f"buffer_store_dwordx4 v[60:63], v{vYc}, {s(sWs,4)}, s{sYc} offen sc1"); A.e(f"s_mov_b64 exec, {(1 << ncl) - 1}")
    p0 = f"buffer_load_dword v{TF+3}, v{vL7}, {s(sDb,4)}, 0 offen sc1"
    A.vmem(p0, "p0"); A.e("s_mov_b64 exec, -1")
    A.stamp()
    A.e(f"s_mul_i32 s3, s{sT8}, 147456\ns_add_u32 s3, s3, {WS_PART + 4096}"); A.srd(sPr, 12, 147456 - 4096, "s3")
    A.wait(vm="tq")
    CF = 40
    A.e(f"v_lshlrev_b32 v{CF}, 16, v{CC}\nv_and_b32 v{CF+1}, 0xffff0000, v{CC}\nv_lshlrev_b32 v{CF+2}, 16, v{CC+1}\nv_and_b32 v{CF+3}, 0xffff0000, v{CC+1}\nv_lshlrev_b32 v{CF+4}, 16, v{CC+2}")
    for i in range(5): A.e(f"v_mul_f32 v{MA+i}, {hex(f2u(-LOG2E))}, v{CF+i}")
    for i in range(5): A.e(f"v_exp_f32 v{MA+i}, v{MA+i}")
    for i in range(5): A.e(f"v_add_f32 v{MA+i}, 1.0, v{MA+i}")
    for i in range(5): A.e(f"v_rcp_f32 v{MA+i}, v{MA+i}")
    for i in range(5): A.e(f"v_mul_f32 v{XF+2*i}, v{CF+i}, v{MA+i}")
    for i in range(5):
        A.wait(vm=("w", i))
        for q in range(4):
            t = 12 + 2 * (q % 2)
            A.e(f"v_lshlrev_b32 v{t}, 16, v{WM+4*i+q}\nv_and_b32 v{t+1}, 0xffff0000, v{WM+4*i+q}")
            if i == 0: A.e(f"v_pk_mul_f32 {v(MA+2*q,2)}, {v(t,2)}, {v(XF,2)} op_sel_hi:[1,0]")
            else: A.e(f"v_pk_fma_f32 {v(MA+2*q,2)}, {v(t,2)}, {v(XF+2*i,2)}, {v(MA+2*q,2)} op_sel_hi:[1,0,1]")
    for sh in (4, 8):
        for q in range(8): A.e(f"v_add_f32_dpp v{MA+q}, v{MA+q}, v{MA+q} row_ror:{sh} row_mask:0xf bank_mask:0xf")
    A.e("s_mov_b32 exec_lo, 0xf000f\ns_mov_b32 exec_hi, 0xf000f")
    A.lds(f"ds_write_b128 v{vMw}, {v(MA,4)} offset:{MP}", "f"); A.lds(f"ds_write_b128 v{vMw}, {v(MA+4,4)} offset:{MP+16}", "f")
    A.e(f"s_mov_b64 exec, {(1 << ncl) - 1}")
    A.fstamp(); A.wait(vm="p0"); A.fstamp()
    A.e(f"v_cmp_eq_u32 vcc, s{sW}, v{TF+3}\ns_nop 0\ns_cmp_lg_u64 vcc, 0\ns_cbranch_scc1 L2_p0s"); A.label("L2_p0r")
    B.label("L2_p0s"); poll(B, "L2_p0", p0, f"v_cmp_eq_u32 vcc, 0, v{TF+3}"); B.e("s_branch L2_p0r")
    A.e("s_mov_b64 exec, 1"); A.wait(lg="f"); A.e("s_barrier")
    A.vmem(f"buffer_store_dword v60, v{vL7}, {s(sWs,4)}, s{sKy} offen sc1"); A.e("s_mov_b64 exec, -1")
    for i in range(8): A.lds(f"ds_read_b32 v{XF+i}, v{vL4} offset:{MP + 256*i}", "g2")
    A.wait(lg="g2")
    A.e(f"v_pk_add_f32 {v(XF,2)}, {v(XF,2)}, {v(XF+2,2)}\nv_pk_add_f32 {v(XF+4,2)}, {v(XF+4,2)}, {v(XF+6,2)}\nv_pk_add_f32 {v(XF,2)}, {v(XF,2)}, {v(XF+4,2)}\nv_add_f32 v52, v{XF}, v{XF+1}")
    A.e(f"v_mov_b32 v53, v52\nv_mov_b32 v54, s{sAdd}\ns_nop 0\nv_permlane32_swap_b32 v53, v52\nv_add_f32 v52, v52, v53")
    A.e(f"v_fma_f32 v52, v52, s{sMul}, v54\nv_min_u32 v52, -2, v52\ns_mov_b32 exec_hi, 0")
    A.vmem(f"buffer_store_dword v52, v{vMs}, {s(sWs,4)}, s{sMl} offen sc1"); A.e("s_mov_b64 exec, -1")
    A.fstamp()
    for c in range(opt.get("nl0", 2)): emit_dma(A, dmaL(c))
    A.stamp()
    if opt.get("walk", 1):
        A.e(f"s_mov_b64 exec, 0\ns_cmp_eq_u32 s{sW}, 0\ns_cbranch_scc1 L2_pad0\ns_cmp_eq_u32 s{sW}, 1\ns_cbranch_scc1 L2_pad1\ns_cmp_eq_u32 s{sW}, 2\ns_cbranch_scc1 L2_pad2\ns_branch L2_pad3")
        A.e(".p2align 12"); A.label("L2_walkret")
    A.e("s_mov_b64 exec, 15")
    poll(A, "L2_px", f"buffer_load_dword v13, v{vXf}, {s(sWs,4)}, s{sXf} offen sc1", "v_cmp_eq_u32 vcc, 0, v13")
    A.e("s_mov_b64 exec, -1")
    A.stamp()
    A.e("s_movk_i32 s14, 13824")
    sweep = [f"buffer_load_dwordx4 {v(SV+8*h,4)}, v{SA}, {s(sWs,4)}, {'s14' if h else 0} offen sc1" for h in range(2)]
    sweep += [("s_mov_b64 exec, 0xff\n" if h == 0 else "") + f"buffer_load_dwordx4 {v(SV+8*h+4,4)}, v{SA}, {s(sWs,4)}, {'s14' if h else 0} offen offset:1024 sc1" + ("\ns_mov_b64 exec, -1" if h else "") for h in range(2)]
    tree = f"v_max_u32 v13, v{SV}, v{SV+1}\n" + "\n".join(f"v_max3_u32 v13, v13, v{SV+2*k}, v{SV+2*k+1}" for k in range(1, 8)) + "\nv_cmp_eq_u32 vcc, -1, v13"
    for x in sweep: A.vmem(x, "sw")
    for c in range(2):
        for pre, ld in xload(c): A.items(pre + [ld])
    A.fstamp(); A.wait(vm="sw"); A.fstamp()
    A.e(tree + "\ns_nop 0\ns_cmp_lg_u64 vcc, 0\ns_cbranch_scc1 L2_pms"); A.label("L2_pmr")
    B.label("L2_pms"); poll(B, "L2_pm", "\n".join(sweep), tree); B.e("s_branch L2_pmr")
    A.fstamp()
    for k in range(0, 8, 2): A.e(f"v_pk_add_f32 {v(SV+k,2)}, {v(SV+k,2)}, {v(SV+8+k,2)}")
    A.lds(f"ds_write_b128 v{SD}, {v(SV,4)}", "mw"); A.e("s_mov_b64 exec, 0xff"); A.lds(f"ds_write_b128 v{SD}, {v(SV+4,4)} offset:2048", "mw"); A.e("s_mov_b64 exec, -1")
    if opt.get("nl0", 2) < 2: emit_dma(A, dmaL(1))
    for pre, ld in xload(2): A.items(pre + [ld])
    A.wait(lg="mw"); A.e("s_barrier")
    A.items(as_reads(0, 0) + as_reads(0, 1))
    A.wait(vm=("X", 0))
    for q in range(4):
        A.wait(lg=("AS", 0, q)); A.items(modulate(0, q))
        if q < 3: A.items(as_reads(0, q + 2) if q < 2 else as_reads(1, 0))
        if q == 2:
            for G in range(QD): A.items(qreads(G))
    A.stamp()
    A.wait(lg=("A", 0))
    Sc, leftover, vmg = gen_qproj(A)
    N = len(Sc.mf)
    T = Asm(); pf_addr(T)
    rest = Sc.fill([(0, x) for x in T.L], 512, N); assert not rest
    rest = Sc.fill([(0, x) for x in kreads(0, ("K", 0))], N - 4 * QD, N); assert not rest
    pend = []
    for t2 in range(8):
        cs = [qconvert(2 * (t2 // 4) + n, t2 % 4) for n in range(2)]
        pend += [(512 + 8 * t2 + 7 + 5, x) for x in cs[0][0] + cs[1][0]]
    pend = Sc.fill(pend, 512, N)
    late = len(pend) > 32
    for c in range(9):
        Sc.emit(A, 64 * c, 64 * c + 64)
        if A.stamping == 4 or c in (3, 8): A.stamp()
    A.e(f"s_mul_i32 s3, s{sT8}, 9216\ns_add_u32 s3, s3, {WS_H2}"); A.srd(sH2, sWs, 9216, "s3")
    emit_dma(A, leftover)
    if late: A.items([x for _, x in pend[:-32]]); pend = pend[-32:]
    for t in range(4):
        for j in range(2): A.items(qconvert(j, t)[1])
    A.items([x for _, x in pend]); A.e("s_nop 0")
    for t in range(4):
        for j in range(2, 4): A.items(qconvert(j, t)[1])
    A.wait(lg=(("K", 0), 0))
    for j in range(4):
        for t in range(4):
            d = S0 + 4 * j
            A.e(f"{MF} {v(d,4)}, {a(KF(0,t),4)}, {v(Q(j,t),4)}, {'0' if t == 0 else v(d,4)}")
    A.e("s_nop 1")
    for j in range(4):
        d = S0 + 4 * j
        A.e(f"v_max3_f32 v{d}, v{d}, v{d+1}, v{d+2}\nv_max_f32 v{d}, v{d}, v{d+3}")
    xmax_to_negm(A, [S0 + 4 * j for j in range(4)], BIAS)
    NIT = opt.get("nit", 11)
    A.label("L2_entry")
    A.e(f"s_mov_b32 s{sBase}, s{sW4}\ns_mov_b32 s{sDel}, {-2*SLOT}\ns_mov_b32 s{sCnt}, {NIT}\ns_mov_b32 s{sT}, {2*16384}\ns_mov_b32 s100, 0x07060302")
    rs = opt.get("rs", (3,))
    A.e(f"s_cmp_eq_u32 s{sPass}, 0\ns_cselect_b32 s101, {1 + sum(1 << (NIT - k) for k in rs)}, 1")
    A.wait(vm=("L", 10)); A.e("s_barrier")
    A.stamp()
    pair = opt.get("pair", 1)
    Sf = gen_stage(0, "first", dma_kv_dyn(3, 1), opt, bar=0 if pair else 2)
    rest = Sf.fill([(0, f"v_mov_b32 v{O(3,0)+i}, 0") for i in range(32)], 33, 132)
    for _, x in rest: Sf.va[17].append(x)
    Sf.emit(A)
    tcode = []
    def body(i):
        if pair == 1:
            Sa = gen_stage(i, "A", dma_kv_dyn(i + 3, 0) + dma_kv_dyn(i + 4, 1), opt, bar=0, dgap=1)
            Sa.sh[64].append(f"s_bitcmp1_b32 s101, s{sCnt}"); Sa.sh[65] += ["s_cbranch_scc1 L2_rsb", "L2_rsbr:"]
            Sa.emit(A)
            Sb = gen_stage(i + 1, "B", [], opt, bar=0)
        elif pair == 2:
            gen_stage(i, "A", dma_kv_dyn(i + 3, 0), opt, bar=0, dgap=1).emit(A)
            Sb = gen_stage(i + 1, "B", dma_kv_dyn(i + 4, 1), opt, bar=0)
        else:
            gen_stage(i, "A", dma_kv_dyn(i + 3, 0), opt).emit(A)
            Sb = gen_stage(i + 1, "B", dma_kv_dyn(i + 4, 1), opt)
        Sb.sh[128].append(f"s_sub_u32 s{sCnt}, s{sCnt}, 1"); Sb.sh[129].append(f"s_bitcmp0_b32 s101, s{sCnt}")
        Sb.emit(A)
    if opt.get("align_loop", 1): A.e(".p2align 5")
    A.label("L2_loop")
    n0 = len(A.L); body(1); n1 = len(A.L); body(3)
    assert A.L[n0:n1] == A.L[n1:], "loop body not in steady state"
    assert lint(A.L[n0:], "loop2x") == 0
    del A.L[n1:]
    def shift(t, d):
        if isinstance(t, tuple) and t[0] in ("L", "V"): return (t[0], t[1] + d)
        if isinstance(t, tuple) and isinstance(t[0], tuple): return ((t[0][0], t[0][1] + d), t[1])
        return t
    A.vm = [shift(t, 2 * NIT - 4) for t in A.vm]; A.lg = [shift(t, 2 * NIT - 4) for t in A.lg]
    A.e(f"s_cbranch_scc1 L2_loop\ns_cmp_eq_u32 s{sCnt}, 0\ns_cbranch_scc1 L2_loopend")
    assert pair == 1
    A.e("s_nop 3")
    for j in range(3): rescale(A, j, P0 + 4 * (j % 2))
    A.e("s_branch L2_loop")
    A.label("L2_rsb"); A.e("s_nop 3"); rescale(A, 3, P0); A.e("s_branch L2_rsbr")
    A.label("L2_loopend")
    def gt(ch):
        if ch == "r": return ([], ("vm", f"buffer_load_dword a{aDum}, v{vAS}, {s(sWr,4)}, 0 offen", None))
        vr, sp = dict(g=(12, 4), u=(12, 6), d=(13, 8), a=(14, 10), b=(15, 10))[ch]
        return ([], ("vm", f"global_load_dword a{aDum}, v{vr}, {s(sp,2)}", None))
    fw = ld_ffn()
    plan = opt.get("plan", {24: "ga", 26: "bu", 28: "dr01234", 30: "5678ABCD"} if pair == 1 else {23: "g", 24: "a", 25: "b", 26: "u012", 27: "d345", 28: "r678", 29: "AB", 30: "CD"})
    def tile(n, odd): return dma_kv_dyn(n, odd) if n < 32 else dma_wo(n - 32)
    for i in range(2 * NIT + 1, 31):
        ex = [fw[int(ch)] if ch.isdigit() else gt(ch) if ch.islower() else
              ([], ("vm", f"buffer_store_dwordx4 a[56:59], v{vKV}, {s(sH2,4)}, 0 offen offset:{1024*(ord(ch) - 65)} sc1", None)) for ch in plan.get(i, "")]
        if pair == 1: gen_stage(i, "A" if i % 2 else "B", tile(i + 3, 0) + tile(i + 4, 1) if i % 2 else [], opt, ex, bar=0, dgap=i % 2).emit(A)
        else: gen_stage(i, "A" if i % 2 else "B", tile(i + 3, 1 - i % 2), opt, ex, bar=0 if pair else 2, dgap=pair and i % 2).emit(A)
    nup = opt.get("nup", 16)
    upd = [x for k in range(9) for x in ([fw[9 + k]] + ([fw[18 + k]] if 18 + k < 9 + nup else []))]
    Sl = gen_stage(31, "last", dma_wo(2), opt, upd, opt.get("xs31", 1), dgap=pair)
    def norm(j, pk):
        r = vTmp + 2 * (j % 2)
        out = [f"v_accvgpr_read_b32 v{r}, a{aL+4*j}", f"v_accvgpr_read_b32 v{r+1}, a{aL+4*j+1}", f"v_add_f32 v{r}, v{r}, v{r+1}"]
        if opt.get("ones2", 0):
            for op in ("v_permlane16_swap_b32", "v_permlane32_swap_b32"):
                out += [f"v_mov_b32 v{r+1}, v{r}", "s_nop 1" if pk else "s_nop 0", f"{op} v{r+1}, v{r}", f"v_add_f32 v{r}, v{r}, v{r+1}"]
        out += [f"v_subrev_u32 v{r+1}, {hex(f2u(2.0**(-BIAS-3)))}, v{r}", f"v_cmp_gt_u32 {s(56+2*j,2)}, v{r+1}, s15", f"v_rcp_f32 v{r}, v{r}"]
        body = []
        for x in range(4):
            o = O(j, 2 * x)
            if pk: body += [f"v_pk_mul_f32 {v(o+i,2)}, {v(o+i,2)}, {v(r,2)} op_sel_hi:[1,0]" for i in range(0, 8, 2)]
            else: body += [f"v_mul_f32 v{o+i}, v{o+i}, v{r}" for i in range(8)]
            body += [f"v_cvt_pk_bf16_f32 v{o+i}, v{o+2*i}, v{o+2*i+1}" for i in range(4)]
        return out, body
    def guard():
        out = []
        for j in range(4):
            q = [O(j, 2 * x) + i for x in range(4) for i in range(4)]
            out += [f"v_max_f32 v{12+j}, |v{q[0]}|, |v{q[1]}|"] + [f"v_max3_f32 v{12+j}, v{12+j}, |v{q[k]}|, |v{q[k+1]}|" for k in range(2, 16, 2)]
        return out + ["v_min3_f32 v12, v12, v13, v14", "v_min_f32 v12, v12, v15", f"v_cmp_gt_f32 vcc, {hex(f2u(2.0**-20))}, v12"]
    Sl.sh[40].append(f"s_mov_b32 s15, {hex(f2u(2.0**60) - f2u(2.0**(-BIAS-3)))}")
    rest = Sl.fill([(149, x) for x in oreads(0)], 149, 165); assert not rest
    rest = Sl.fill([(70 + 33 * j, x) for j in range(2) for x in sum(norm(j, False), [])], 70, 165)
    Sl.emit(A)
    A.stamp()
    h2_, b2 = norm(2, True); h3, b3 = norm(3, True)
    rest = ["s_nop 1" if x == "s_nop 0" else x for _, x in rest]
    if len(rest) >= 48:
        A.items(rest[:-48] + h2_ + norm(1, True)[1] + h3[:-1])
    else: A.items(h2_ + rest + h3[:-1])
    A.e("s_or_b64 s[56:57], s[56:57], s[58:59]\n" + h3[-1] + "\ns_or_b64 s[60:61], s[60:61], s[62:63]\ns_or_b64 s[56:57], s[56:57], s[60:61]")
    A.e(f"s_lshl2_add_u32 s14, s{sW}, {FLAG}\nv_mov_b32 v{NM+9}, s14\nv_mov_b32 v{NM+10}, {FLAG}")
    A.items(b2 + b3)
    A.wait(lg=("W", 0, 0))
    A.stamp()
    So, leftover = gen_oproj(A)
    fin = ["s_or_b64 s[56:57], s[56:57], vcc\ns_cselect_b32 s3, 1, 0\n" + ("s_mov_b32 s3, 1\n" if opt.get("force_fallback") else "") + f"s_andn2_b32 s3, s3, s{sPass}"]
    rest = So.fill([(0, x) for x in guard()], 0, 38)
    So.va[39] += [x for _, x in rest]
    So.sh[41] += fin; So.va[41].append(f"v_mov_b32 v{NM+8}, s3"); So.mem[43].append(("lds", f"ds_write_b32 v{NM+9}, v{NM+8}", "fw"))
    for c in range(9):
        So.emit(A, 64 * c, 64 * c + 64)
        if A.stamping == 3: A.stamp()
    A.e("s_nop 7")
    for n in range(2):
        cv, sw, st = oepi(17, n)
        A.items(cv + ["s_nop 1"] + sw + st[0] + [st[1]])
    A.stamp()
    gen_tail(A, B, opt)
    A.label("L2_end")
    A.e("s_endpgm")
    A.L += B.L
    A.label("L2_fallback")
    A.wait_all(); A.e(f"s_nop 7\ns_barrier\ns_lshl_b32 s3, s{sW}, 12\nv_add_u32 v{vKV}, s3, v{vX}")
    init_kv_addr()
    for j in range(4): A.e(f"v_mov_b32 v{P0+j}, 0xff800000")
    A.e(f"s_mov_b32 s{sPass}, 1\ns_mov_b32 s{sT}, 0")
    A.label("L2_fb_loop")
    emit_dma(A, dma_kv_static(None, (0,), 2))
    A.wait_all(); A.e("s_barrier")
    A.items(kreads(0, "fk")); A.wait_all(); A.e("s_barrier")
    for j in range(4):
        for kt in range(4):
            for t in range(4):
                d = S0 + 4 * kt
                A.e(f"{MF} {v(d,4)}, {a(KF(kt,t),4)}, {v(Q(j,t),4)}, {'0' if t == 0 else v(d,4)}")
        A.e("s_nop 7")
        for i in range(8): A.e(f"v_max3_f32 v{P0+j}, v{P0+j}, v{S0+2*i}, v{S0+2*i+1}")
    A.e(f"s_add_u32 s{sT}, s{sT}, 16384\ns_cmp_lt_u32 s{sT}, {32*16384}\ns_cbranch_scc1 L2_fb_loop")
    xmax_to_negm(A, [P0 + j for j in range(4)], 0.0)
    for i in range(3): emit_dma(A, dma_kv_static(i))
    A.wait_all(); A.e("s_barrier")
    A.items(kreads(0, "fk")); pf_addr(A)
    for i in range(16): A.e(f"v_accvgpr_write_b32 a{aL+i}, 0")
    A.wait_all()
    A.e("s_branch L2_entry")
    A.label("L2_codeend")
    if opt.get("walk", 1): A.L = insert_pads(A.L, "L2_walkret", "L2_end")
    return A, dict(name=KNAME, grid=256, block=256, lds=LDS_BYTES, vgpr=512, acc=256)
```

```python
from asmlib import *
from layout import *

RING = 16384; SLOT = 36864; HALF = 16896; PIECE = 1056
ASB = 9216
SCR = 13824
FLAG = SCR
LDS_BYTES = RING + 4 * SLOT
BIAS = 64
vK, vV, vT, vT2, vKV, vWq, vWo, vX, vAS, vPt, vIdx = 1, 2, 3, 4, 5, 6, 7, 8, 9, 10, 11
vTmp = 12
S0 = 16; P0 = 32; NM = 48; Q0 = 64; O0 = 128
AS0 = 16; T0 = 32; X0 = 48
def O(j, dt): return O0 + (j * 8 + dt) * 4
def Q(j, t): return Q0 + (j * 4 + t) * 4
def X(c, n, kl): return X0 + ((c + 2) % 5) * 16 + (n * 2 + kl) * 4
aL = 0; aOne = 16; aK = 64; aV = 128
def KF(kt, t): return aK + (kt * 4 + t) * 4
def VF(buf, dt, u): return aV + buf * 64 + (dt * 2 + u) * 4
sK, sV, sWq, sWo, sXn, sWr, sPt = 16, 20, 24, 28, 32, 36, 40
sC, sWm, sDb = 16, 88, 60
sW4, sOff, sT, sBase, sDel, sCnt, sPass, sW, sG, sTb, sOff2 = 44, 45, 46, 47, 48, 49, 50, 51, 52, 53, 54
sWg, sWu, sWd, sXi, sOut, sWs, sPr = 64, 68, 72, 76, 80, 84, 88
sW9, sT8, sCap = 55, 96, 97
sH2 = 32
sSt = 24; sYp = 32
vFg = vWq
aDum = 63
MF = "v_mfma_f32_16x16x32_bf16"

def trd(dst, slot, off):
    base = vT if slot < 2 else vT2
    return f"ds_read_b64_tr_b16 {a(dst,2)}, v{base} offset:{(slot % 2) * SLOT + off}"

def dma_wq(c):
    slot = (c + 1) % 4; out = []
    for kl in range(2):
        for r in range(4):
            out.append(([f"s_add_u32 m0, s{sW4}, {slot*SLOT + kl*HALF + r*PIECE}", f"s_mov_b32 s{sOff}, {(64*c + 32*kl + r) * 8192}"],
                        ("vm", f"buffer_load_dwordx4 v{vWq}, {s(sWq,4)}, s{sOff} offen{OPT.get('wq_nt','')} lds", ("L", c))))
    return out
def dma_kv_static(i, halves=(0, 1), slot=None):
    slot = (i + 2) % 4 if slot is None else slot; out = []
    for h in halves:
        for j in range(4):
            pre = [f"s_add_u32 m0, s{sW4}, {slot*SLOT + h*HALF + 32*j}"]
            if i is not None and j == 0 and h == halves[0]: pre.append(f"s_mov_b32 s{sT}, {i*16384}")
            out.append((pre, ("vm", f"buffer_load_dwordx4 {'off' if OPT.get('tid', 1) else v(vKV)}, {s(sV if h else sK,4)}, s{sT}{'' if OPT.get('tid', 1) else ' offen'} offset:{1024*j}{OPT.get('kv_nt','')} lds", ("L", 9 + (i or 0)))))
    return out
def dma_kv_dyn(i, odd):
    out = []
    for h in range(2):
        for j in range(4):
            pre = [f"s_add_u32 m0, s{sBase}, {odd*SLOT + h*HALF + 32*j}"] + [f"s_add_u32 s{sT}, s{sT}, 16384"] * (h == 0 and j == 0)
            out.append((pre, ("vm", f"buffer_load_dwordx4 {'off' if OPT.get('tid', 1) else v(vKV)}, {s(sV if h else sK,4)}, s{sT}{'' if OPT.get('tid', 1) else ' offen'} offset:{1024*j}{OPT.get('kv_nt','')} lds", ("L", 9 + i))))
    return out
def dma_wo(c):
    slot = (c + 2) % 4; out = []
    for hi in range(2):
        for r in range(4):
            pre = [f"s_add_u32 m0, s{sW4}, {slot*SLOT + hi*HALF - 96*r}"]
            if r == 0: pre.append(f"s_mov_b32 s{sOff}, {c*128 + hi*128*1152}")
            out.append((pre, ("vm", f"buffer_load_dwordx4 v{vWo}, {s(sWo,4)}, s{sOff} offen offset:{1152*r}{OPT.get('wo_nt','')} lds", ("L", 41 + c))))
    return out
def FW(k): return 20 + 4 * k if k < 9 else aV + 4 * (k - 9)
def ld_ffn():
    out = []
    for m in range(3):
        for i in range(9):
            d = a(FW(9 * m + i), 4)
            if m < 2: out.append(([f"s_mov_b32 s{sOff2}, {i*16*9216}"], ("vm", f"buffer_load_dwordx4 {d}, v{vFg}, {s(sWu if m else sWg,4)}, s{sOff2} offen", "fw")))
            else: out.append(([f"s_add_u32 s{sOff2}, s{sW9}, {1024*i}"], ("vm", f"buffer_load_dwordx4 {d}, v{vX}, {s(sWd,4)}, s{sOff2} offen", "fw")))
    return out
def touch(vaddr, srd, off):
    return ([f"s_mov_b32 s{sOff2}, {off}"], f"buffer_load_dword a{aDum}, v{vaddr}, {s(srd,4)}, s{sOff2} offen")
def dmaL(n):
    return dma_wq(n) if n < 9 else (dma_kv_static(n - 9) if n < 41 else dma_wo(n - 41))
def emit_dma(A, lst):
    for pre, ld in lst:
        A.items(pre)
        if len(pre) == 1: A.e("s_nop 0")
        A.item(ld)
def xload(c):
    return [([f"s_mov_b32 s{sOff2}, {n*18432 + (2*c+kl)*1024}"],
             ("vm", f"buffer_load_dwordx4 {v(X(c,n,kl),4)}, v{vX}, {s(sXn,4)}, s{sOff2} offen sc1", ("X", c))) for n in range(2) for kl in range(2)]
def place_vm(Sc, g, item):
    pre, ld = item
    for k, p in enumerate(pre): Sc.sh[g - 1 + k].append(p)
    Sc.mem[g].append(ld)

def as_reads(c, q):
    kl, hf = q // 2, q % 2; d = AS0 + (q % 2) * 8; off = ASB + (2 * c + kl) * 256 + hf * 16
    return [("lds", f"ds_read_b128 {v(d,4)}, v{vAS} offset:{off}", ("AS", c, q)), ("lds", f"ds_read_b128 {v(d+4,4)}, v{vAS} offset:{off+32}", ("AS", c, q))]
def modulate(c, q):
    kl, hf = q // 2, q % 2; d = AS0 + (q % 2) * 8; out = []
    for n in range(2):
        x = X(c, n, kl) + 2 * hf; t = T0 + 4 * n
        for i in range(4):
            out.append(f"v_fma_mix_f32 v{t+i}, v{x+i//2}, v{d+i}, v{d+4+i} op_sel:[{i%2},0,0] op_sel_hi:[1,0,0]")
        out += [f"v_cvt_pk_bf16_f32 v{x}, v{t}, v{t+1}", f"v_cvt_pk_bf16_f32 v{x+1}, v{t+2}, v{t+3}"]
    return out

def kreads(off, tag): return [("lds", f"ds_read_b128 {a(KF(kt,t),4)}, v{vK} offset:{off + kt*256 + t*64}", (tag, kt)) for kt in range(4) for t in range(4)]
def vreads(buf, off, tag): return [("lds", f"ds_read_b64_tr_b16 {a(VF(buf,dt,u)+2*b,2)}, v{vV} offset:{off + (2*u+b)*256 + dt*32}", tag) for dt in range(8) for u in range(2) for b in range(2)]

QD = 3
def AF(grp, kl): return aV + 64 + (grp % 8) * 8 + kl * 4
def qreads(G):
    c, mt = divmod(G, 16); slot = (c + 1) % 4
    return [("lds", trd(AF(G, kl) + 2 * b, slot, kl * HALF + b * 512 + mt * 32), ("A", G)) for kl in range(2) for b in range(2)]

def gen_qproj(A):
    Sc = Sched()
    for c in range(9):
        for mt in range(16):
            G = c * 16 + mt
            for n in range(2):
                d = O(2 * (mt // 8) + n, mt % 8)
                for kl in range(2):
                    cc = "0" if c == 0 and kl == 0 else v(d, 4)
                    Sc.mfma(f"{MF} {v(d,4)}, {a(AF(G,kl),4)}, {v(X(c,n,kl),4)}, {cc}")
    N = len(Sc.mf); vmg = set()
    leftover = []
    for k, it in enumerate(dmaL(2)):
        g = 3 + 4 * k; place_vm(Sc, g, it); vmg.add(g)
    for c in range(9):
        gb = 64 * (c + 1) - 4 * QD - 1 if c < 8 else OPT.get("gb8", 551)
        Sc.sh[gb] += [("wait", ("L", c + 1), None), "s_barrier"]
        for k, it in enumerate(dmaL(c + 3)):
            g = gb + 4 + 4 * k
            if g < N: place_vm(Sc, g, it); vmg.add(g)
            else: leftover.append(it)
    for c in range(6):
        for k, it in enumerate(xload(c + 3)):
            g = 64 * c + 35 + 4 * k
            assert g not in vmg
            place_vm(Sc, g, it); vmg.add(g)
    for G in range(144):
        if G > 0: Sc.sh[4 * G - 1].append(("wait", None, ("A", G)))
        if G + QD < 144:
            rd = qreads(G + QD); gs = [g for g in range(4 * G, 4 * G + 4) if g not in vmg]
            if len(gs) == 3: gs = [gs[0], gs[1], gs[1], gs[2]]
            for g, r in zip(gs, rd): Sc.mem[g].append(r)
    for c in range(8):
        Sc.sh[64 * c].append(("wait", ("X", c + 1), None))
        for q in range(4):
            w0 = 64 * c + 16 * q
            nxt = as_reads(c + 1, q + 1) if q < 3 else (as_reads(c + 2, 0) if c < 7 else [])
            items = modulate(c + 1, q)
            Sc.sh[w0].append(("wait", None, ("AS", c + 1, q)))
            free = [g for g in range(w0, w0 + 16) if g not in vmg and len(Sc.mem[g]) < 2]
            for r in nxt:
                g = free.pop(0); Sc.mem[g].append(r)
            over = len(items) - len(free)
            odd = sorted(range(w0 + 1, w0 + 16, 2), key=lambda g: (g in vmg, -g))
            slots = sorted(free + odd[:over] if over > 0 else free); assert len(slots) >= len(items)
            for g, it in zip(slots, items): Sc.va[g].append(it)
    return Sc, leftover, vmg

def qconvert(j, t):
    o = O(j, 2 * t); q = Q(j, t)
    return [f"v_cvt_pk_bf16_f32 v{q+i}, v{o+2*i}, v{o+2*i+1}" for i in range(4)], [f"v_permlane32_swap_b32 v{q}, v{q+2}", f"v_permlane32_swap_b32 v{q+1}, v{q+3}"]

def pf_addr(A):
    A.e(f"v_lshrrev_b32 v14, 2, v0\ns_mul_i32 s3, s{sW}, 144\nv_add_u32 v14, s3, v14\nv_mul_u32_u24 v14, 9216, v14\nv_and_b32 v15, 3, v0\nv_lshl_add_u32 v{vFg}, v15, 4, v14")
    A.e(f"s_lshr_b32 s3, s2, 3\ns_lshl2_add_u32 s3, s3, s{sW}\ns_and_b32 s15, s2, 7\nv_bfe_u32 v14, v0, 3, 2\nv_mul_u32_u24 v14, 1152, v14\nv_and_b32 v15, 7, v0\nv_add_lshl_u32 v{vAS}, v14, v15, 7")
    A.e(f"s_mul_i32 s14, s3, 9\ns_lshr_b32 s14, s14, 1\nv_min_u32 v15, 44, v0\nv_mul_u32_u24 v12, 7282, v15\nv_lshrrev_b32 v12, 16, v12\nv_mul_u32_u24 v13, 63, v12\nv_add_u32 v12, v15, v13")
    A.e(f"s_mul_i32 s14, s14, 72\ns_mul_i32 s56, s15, 9\ns_add_u32 s14, s14, s56\nv_add_lshl_u32 v12, s14, v12, 7")
    A.e(f"s_mul_i32 s14, s3, 81\ns_lshr_b32 s14, s14, 1\ns_mul_i32 s56, s15, 5184\ns_add_u32 s14, s14, s56\nv_min_u32 v13, 40, v0\nv_add_lshl_u32 v13, s14, v13, 7")
    A.e(f"s_mul_i32 s14, s3, 72\ns_andn2_b32 s56, s{sG}, 3\ns_mul_i32 s56, s56, 2304\ns_add_u32 s14, s14, s56\nv_min_u32 v14, 35, v0\nv_add_lshl_u32 v14, s14, v14, 7\nv_add_u32 v15, 4608, v14")

def xmax_to_negm(A, src, bias):
    t = P0 + 8
    for op in ("v_permlane16_swap_b32", "v_permlane32_swap_b32"):
        for j in range(4): A.e(f"v_mov_b32 v{t+j}, v{src[j]}")
        for j in range(4): A.e(f"{op} v{t+j}, v{src[j]}")
        for j in range(4): A.e(f"v_max_f32 v{src[j]}, v{src[j]}, v{t+j}")
    for j in range(4):
        for i in range(4): A.e(f"v_sub_f32 v{NM+4*j+i}, {hex(f2u(-float(bias)))}, v{src[j]}")

def gen_stage(i, kind, dma, opt, extra=(), xstep=2, bar=2, dgap=None):
    par = i % 2; Sc = Sched(); first = kind == "first"; last = kind == "last"
    nun = 5 if last else 4
    for j in range(nun):
        for kt in range(4):
            for t in range(4):
                d = S0 + 4 * kt
                Sc.mfma(None if j == 4 else f"{MF} {v(d,4)}, {a(KF(kt,t),4)}, {v(Q(j,t),4)}, {v(NM+4*j,4) if t == 0 else v(d,4)}")
        jp = (j - 1) % 4; vb = par if j > 0 else 1 - par; p = P0 + 8 * (jp % 2)
        skip = first and j == 0
        for dt in range(8):
            for u in range(2):
                d = O(jp, dt); cc = "0" if first and u == 0 else v(d, 4)
                Sc.mfma(None if skip else f"{MF} {v(d,4)}, {a(VF(vb,dt,u),4)}, {v(p+4*u,4)}, {cc}")
        Sc.mfma(None if skip else f"v_smfmac_f32_16x16x64_bf16 {a(aL+4*jp,4)}, {a(aOne,4)}, {v(p,8)}, v{vIdx}")
        b = 33 * j
        for x in range(16):
            prev = x < 4
            if (prev and skip) or (j == 4 and not prev): continue
            e = (x - 4) % 16
            Sc.va[b + 2 * x].append(f"v_exp_f32 v{S0+e}, v{S0+e}")
        for k in range(8):
            prev = k < 3; pr = (k + 5) % 8
            if (prev and skip) or (j == 4 and not prev): continue
            pb = P0 + 8 * ((j - 1 if prev else j) % 2)
            if opt.get("perm", 1): Sc.va[b + 4 * k + 1].append(f"v_perm_b32 v{pb+pr}, v{S0+2*pr+1}, v{S0+2*pr}, s100")
            else: Sc.va[b + 4 * k + 1].append(f"v_cvt_pk_bf16_f32 v{pb+pr}, v{S0+2*pr}, v{S0+2*pr+1}")
    if first:
        for g in range(16, 33):
            if g % 2 == 0: Sc.va[g].append("s_nop 0")
        Sc.sh[16].append("s_nop 3"); Sc.sh[8].append("s_nop 1")
    if last:
        for g in range(33 * 4, 33 * 4 + 8, 2): Sc.va[g].append("s_nop 0")
        Sc.va[33 * 4 + 15].append("s_nop 1")
    for kt in range(1, 4): Sc.sh[4 * kt - 1].append(("wait", None, (("K", i), kt)))
    cand = [33 * j + r for j in range(4 if last else 3) for r in range(3, 32, 4)]
    gs = cand[:len(dma)] + cand[len(dma)::xstep]
    if dgap:
        gs = cand[4:4 + len(dma)] + cand[max(8, 4 + len(dma))::xstep]
        if len(dma) == 16: gs = cand[4:12] + cand[16:24]
        Sc.sh[15] += [("wait", ("L", 9 + i + 2), None), "s_barrier"]
    dma = list(dma) + list(extra)
    vmg = set()
    for g, it in zip(gs, dma): place_vm(Sc, g, it); vmg.add(g)
    assert len(vmg) == len(dma)
    if kind == "A":
        Sc.va[1].append(f"v_add_u32 v{vK}, s{sDel}, v{vK}"); Sc.va[5].append(f"v_add_u32 v{vV}, s{sDel}, v{vV}")
        Sc.sh[0].append(f"s_sub_u32 s{sBase}, s{sBase}, s{sDel}")
        Sc.sh[8].append(f"s_sub_u32 s{sDel}, 0, s{sDel}")
    if not last:
        off = 0 if kind == "A" else SLOT
        if first:
            rest = Sc.fill([(0, x) for x in vreads(0, 0, ("V", 0))], 0, 16)
            for _, x in rest: Sc.mem[16].append(x)
            Sc.sh[47].append(("wait", None, ("V", 0)))
        free = [33 * j + r for j in range(3) for r in list(range(1, 32, 2)) + [32] if 33 * j + r >= 17 and 33 * j + r not in vmg]
        vr = vreads(1 - par, off, ("V", i + 1))
        if len(free) < 32:
            two = [g for g in free if not Sc.va[g]]
            free = sorted(free + two[len(two) - (32 - len(free)):]); assert len(free) == 32
        for n, r in enumerate(vr):
            assert free[n] >= 16 + n // 2
            Sc.mem[free[n]].append(r)
        for n, r in enumerate(kreads(off, ("K", i + 1))): Sc.mem[99 + 2 * n + 1].append(r)
        if bar: Sc.sh[131] += [("wait", ("L", 9 + i + bar), (("K", i + 1), 0)), "s_barrier"]
        else: Sc.sh[131].append(("wait", None, (("K", i + 1), 0)))
    return Sc

OA = 16; OR = 48
def OB(n, u): return O(2 * (u // 4) + n, 2 * (u % 4))
def WF(grp, u): return aK + (grp % 2) * 32 + u * 4
def oreads(G):
    c, ntl = divmod(G, 4); slot = (c + 2) % 4
    return [("lds", trd(WF(G, u) + 2 * b, slot, (u // 4) * HALF + (2 * (u % 4) + b) * 128 + ntl * 32), ("W", G, u // 2)) for u in range(8) for b in range(2)]
def oacc(G, n): return OA + ((G % 4) * 2 + n) * 4
def oepi(pair, n):
    r = OR + 4 * n; x, y = oacc(2 * pair, n), oacc(2 * pair + 1, n); c, aa = divmod(pair, 2)
    cv = [f"v_cvt_pk_bf16_f32 v{r}, v{x}, v{x+1}", f"v_cvt_pk_bf16_f32 v{r+1}, v{x+2}, v{x+3}", f"v_cvt_pk_bf16_f32 v{r+2}, v{y}, v{y+1}", f"v_cvt_pk_bf16_f32 v{r+3}, v{y+2}, v{y+3}"]
    sw = [f"v_permlane32_swap_b32 v{r}, v{r+2}", f"v_permlane32_swap_b32 v{r+1}, v{r+3}"]
    st = ([f"s_mov_b32 s{sOff2}, {n*294912 + c*1024}"], ("vm", f"buffer_store_dwordx4 {v(r,4)}, v{vPt}, {s(sPt,4)}, s{sOff2} offen offset:{aa*512}{OPT.get('st_flags', ' sc1')}", "st"))
    return cv, sw, st

vXA, vXC = vK, vV
XR = 64
def HOLE(k): return O0 + 8 * k + 4
def xi_loads(ob):
    return [([], ("vm", f"buffer_load_dwordx4 {v(XR+4*i,4)}, v{vXC if i == 2 else vXA}, {s(sXi,4)}, 0 offen offset:{ob if i == 1 else 0}", "xi")) for i in range(3)]
vWA, vWC, vPA, vPB, vFa, vFl, vOne = 12, 13, 5, 59, 6, 9, 15
sFl, sRem, sQ, sRdyA, sFs, sPa = sBase, sDel, sT, sCnt, 56, 28
def WR(q): return 224 + 8 * (q // 4) + q % 4
def wr_loads():
    return [([], ("vm", f"buffer_load_dwordx4 {v(WR(4*i),4)}, v{vWC if i == 2 else vWA}, {s(sWr,4)}, 0 offen offset:{512*i}", "xi")) for i in range(3)]
def NV(r, h): return 76 + 12 * h + 4 * r
def mv_loads():
    return [([f"s_movk_i32 s{sOff}, {4608 + 13824*h + 4096*r}"], ("vm", f"buffer_load_dwordx4 {v(NV(r,h),4)}, v{vPB if r == 2 else vPA}, {s(sWs,4)}, s{sOff} offen sc1", "xi")) for r in range(3) for h in range(2)]
def item_addr(A, ma, mc, oc, t=14):
    A.e(f"s_mul_i32 s3, s{sW}, {ma}\nv_lshrrev_b32 v{t}, 3, v0\nv_lshl_add_u32 v{vWA}, v{t}, 4, s3\nv_and_b32 v{t}, 1, v{t}")
    if mc != ma: A.e(f"s_mul_i32 s3, s{sW}, {mc}")
    A.e(f"v_lshl_add_u32 v{vWC}, v{t}, 4, s3")
    A.e(f"v_and_b32 v{t}, 7, v0\nv_mul_u32_u24 v{t}, 1152, v{t}\nv_add_u32 v{vXA}, v{t}, v{vWA}\nv_add_u32 v{vXC}, v{t}, v{vWC}\nv_add_u32 v{vXC}, {oc}, v{vXC}")
def ready_mask(d):
    return ["s_lshr_b32 s3, vcc_lo, 1", "s_and_b32 s3, s3, vcc_lo", "s_lshr_b32 s14, s3, 2", f"s_and_b32 s{d}, s3, s14"]

vF2, vF0, vF1, vG0, vG1 = 104, 105, 106, 110, 111
aF = 64
def fw_write(k): return ("lds", f"ds_write_b128 v{(vF1, vF0, vF2)[k//9]}, {a(FW(k),4)} offset:{((3 + k//9) % 2)*SLOT + 1024*(k%9)}", "fww")
def fa_reads():
    far = [("lds", f"ds_read_b64_tr_b16 {a(aF+4*kk+2*b,2)}, v{vG0} offset:{2048*kk + 256*b}", "fa") for kk in range(18) for b in range(2)]
    return far + [("lds", f"ds_read_b64_tr_b16 {a(aF+72+4*nt+2*b,2)}, v{vG1} offset:{32*nt + 4608*b}", "fa") for nt in range(9) for b in range(2)]

def gen_oproj(A):
    Sc = Sched()
    for G in range(36):
        for n in range(2):
            for u in range(8):
                d = oacc(G, n)
                Sc.mfma(f"{MF} {v(d,4)}, {a(WF(G,u),4)}, {v(OB(n,u),4)}, {'0' if u == 0 else v(d,4)}")
    N = len(Sc.mf); vmg = set(); leftover = []
    st = OPT.get("o_step", 2)
    for c in range(8):
        gb = 64 * c + 47
        Sc.sh[gb] += [("wait", ("L", 41 + c + 1), "fw"), "s_barrier"]
        if c + 3 <= 8:
            for k, it in enumerate(dma_wo(c + 3)):
                g = gb + 2 + st * k; place_vm(Sc, g, it); vmg.add(g)
    misc = ld_ffn()[9 + OPT.get("nup", 16):]
    gl = list(range(3, 32, 4)); assert len(gl) >= len(misc)
    for g, it in zip(gl, misc): place_vm(Sc, g, it); vmg.add(g)
    Sc.sh[440] += [f"s_sub_u32 s{sPa}, s{sPr}, 4096", f"s_subb_u32 s{sPa+1}, s{sPr+1}, 0"]; Sc.sh[441].append(f"s_mov_b32 s{sPa+2}, 147456")
    if OPT.get("fo", 0):
        Sc.sh[64 * 8 + 15].append("s_barrier")
        for m, g0 in enumerate((64 * 6 + 48, 64 * 7 + 48, 64 * 8 + 16)):
            gs_ = [g0 + 2 * k for k in range(8)] + [g0 + 32]
            for k, g in enumerate(gs_): Sc.mem[g].append(fw_write(9 * m + k)); vmg.add(g)
    swg = set()
    for p in range(17):
        for n in range(2):
            b = 16 * (2 * p + 2) + 8 * n
            cv, sw, st = oepi(p, n)
            for k, x in enumerate(cv): Sc.va[b + k].append(x)
            Sc.va[b + 5].append(sw[0]); Sc.va[b + 6].append(sw[1]); swg |= {b + 5, b + 6}
            Sc.sh[b + 4].append(st[0][0]); Sc.va[b + 7].append(st[1])
    for G in range(36):
        for h in range(4):
            g = 16 * G + 2 * h - 1
            if g >= 0: Sc.sh[g].append(("wait", None, ("W", G, h)))
        if G + 1 < 36:
            gs = [g for g in range(16 * G, 16 * G + 16) if g not in vmg and g not in swg]
            two = [g for g in gs if not Sc.va[g]]
            extra = 16 - len(gs)
            if extra > len(two): two = two + [g for g in range(16 * G + 7, 16 * G + 16, 8)] * 4
            gs = sorted(gs + two[:extra]); assert len(gs) == 16
            for g, r in zip(gs, oreads(G + 1)): Sc.mem[g].append(r)
    f = NM + 12
    Sc.mem[47].append(("lds", f"ds_read_b128 {v(f,4)}, v{NM+10}", "fr"))
    Sc.sh[55].append(("wait", None, "fr"))
    Sc.va[55] += [f"v_or3_b32 v{f}, v{f}, v{f+1}, v{f+2}", f"v_or_b32 v{f}, v{f}, v{f+3}"]
    Sc.va[63].append(f"v_readfirstlane_b32 s3, v{f}")
    Sc.sh[65].append("s_cmp_lg_u32 s3, 0"); Sc.sh[66].append("s_cbranch_scc1 L2_fallback")
    T = Asm(); item_addr(T, 128, 32, 1024)
    T.e(f"s_lshl_b32 s14, s{sW}, 10\nv_add_u32 v{vPA}, s14, v{vX}\nv_and_b32 v{vPB}, 0xf0, v{vX}\ns_lshl_b32 s14, s{sW}, 8\nv_add_u32 v{vPB}, s14, v{vPB}")
    T.e(f"v_and_b32 v{vFa}, 15, v0\nv_lshlrev_b32 v{vFa}, 8, v{vFa}\nv_min_u32 v{vOne}, 1, v0\nv_lshlrev_b32 v{vOne}, 30, v{vOne}")
    T.e(f"s_lshl_b32 s15, s{sTb}, 14\ns_add_u32 s15, s15, {WS_F1}\ns_and_b32 s14, s{sG}, 12\ns_lshl_b32 s14, s14, 10\ns_add_u32 s{sFl}, s15, s14")
    T.e(f"s_lshl4_add_u32 s3, s{sW}, s{sG}\ns_lshl_b32 s3, s3, 8\ns_add_u32 s{sFs}, s3, s15")
    T.e(f"s_add_u32 s14, s{sW9}, {RING}\nv_add_u32 v{vF2}, s14, v{vX}\nv_and_b32 v14, 32, v0\nv_xor_b32 v{vF0}, v14, v{vF2}\nv_add_u32 v{vF1}, {2*SLOT}, v{vF0}")
    T.e(f"v_lshrrev_b32 v{vG0}, 4, v0\nv_bfe_u32 v14, v0, 2, 2\nv_lshl_add_u32 v{vG0}, v{vG0}, 3, v14\nv_and_b32 v14, 3, v0\nv_mul_u32_u24 v{vG1}, 1152, v{vG0}\nv_lshlrev_b32 v{vG0}, 6, v{vG0}")
    T.e(f"v_lshl_add_u32 v{vG0}, v14, 3, v{vG0}\nv_lshl_add_u32 v{vG1}, v14, 3, v{vG1}\ns_lshr_b32 s3, s{sW}, 1\ns_xor_b32 s3, s3, 1\ns_mul_i32 s3, s3, {3*SLOT}\ns_and_b32 s14, s{sW}, 1\ns_lshl_b32 s14, s14, 5")
    T.e(f"s_add_u32 s3, s3, s14\ns_add_u32 s3, s3, {RING}\nv_add_u32 v{vG0}, s3, v{vG0}\nv_and_b32 v14, 16, v0\nv_lshlrev_b32 v14, 1, v14\nv_xor_b32 v{vG0}, v14, v{vG0}\ns_mul_i32 s3, s{sW}, 288\ns_add_u32 s3, s3, {RING + SLOT}\nv_add_u32 v{vG1}, s3, v{vG1}")
    rest = Sc.fill([(0, x) for x in T.L], 80, 400); assert not rest
    return Sc, leftover

def xsum8(A, regs, tmp):
    A.e("s_nop 1")
    for x in regs: A.e(f"v_add_f32_dpp v{x}, v{x}, v{x} row_ror:8 row_mask:0xf bank_mask:0xf")
    xsumG(A, regs, tmp)
def xsumG(A, regs, tmp):
    for op in ("v_permlane16_swap_b32", "v_permlane32_swap_b32"):
        for k, x in enumerate(regs): A.e(f"v_mov_b32 v{tmp+k}, v{x}")
        if len(regs) < 3: A.e(f"s_nop {2 - len(regs)}")
        for k, x in enumerate(regs): A.e(f"{op} v{tmp+k}, v{x}")
        for k, x in enumerate(regs): A.e(f"v_add_f32 v{x}, v{x}, v{tmp+k}")
def merge2(A, m1, m2, t1, t2):
    A.e(f"v_max_u32 v{m2}, v{m2}, v{t2}\nv_med3_u32 v{m2}, v{m1}, v{t1}, v{m2}\nv_max_u32 v{m1}, v{m1}, v{t1}")
def top2_lanes(A, m1, m2, t1, t2, rors, swaps):
    for sh in rors:
        A.e(f"s_nop 1\nv_mov_b32_dpp v{t1}, v{m1} row_ror:{sh} row_mask:0xf bank_mask:0xf\nv_mov_b32_dpp v{t2}, v{m2} row_ror:{sh} row_mask:0xf bank_mask:0xf")
        merge2(A, m1, m2, t1, t2)
    for op in swaps:
        A.e(f"v_mov_b32 v{t1}, v{m1}\nv_mov_b32 v{t2}, v{m2}\ns_nop 0\n{op} v{t1}, v{m1}\n{op} v{t2}, v{m2}")
        merge2(A, m1, m2, t1, t2)
def dot24(A, d, t, x, y):
    for acc, lo, hi in ((d, 0, 16), (t, 16, 24)):
        for i in range(lo, hi):
            if y is None:
                if i == lo: continue
                A.e(f"v_add_f32 v{acc}, v{x+lo if i == lo+1 else acc}, v{x+i}")
            else: A.e(f"{'v_mul_f32' if i == lo else 'v_fmac_f32'} v{acc}, v{x+i}, v{y+i}")
    A.e(f"v_fmac_f32 v{d}, 0x3e800000, v{t}")
def dot24p(A, d, t, x, y):
    for acc, lo, hi in ((t, 0, 16), (t + 2, 16, 24)):
        for i in range(lo, hi, 2):
            if y is None:
                if i > lo: A.e(f"v_pk_add_f32 {v(acc,2)}, {v(x+lo if i == lo+2 else acc,2)}, {v(x+i,2)}")
            elif i == lo: A.e(f"v_pk_mul_f32 {v(acc,2)}, {v(x+i,2)}, {v(y+i,2)}")
            else: A.e(f"v_pk_fma_f32 {v(acc,2)}, {v(x+i,2)}, {v(y+i,2)}, {v(acc,2)}")
    A.e(f"v_add_f32 v{d}, v{t}, v{t+1}\nv_add_f32 v{t+2}, v{t+2}, v{t+3}\nv_fmac_f32 v{d}, 0x3e800000, v{t+2}")
def poll(A, name, loads, test, sleep=1, shrink=0):
    A.e(f"s_mov_b32 s{sCap}, 0x20000")
    A.label(name)
    A.e(loads); A.wait_all(lg=False); A.e(test)
    A.e(f"s_sub_u32 s{sCap}, s{sCap}, 1\ns_cselect_b64 vcc, 0, vcc\ns_cmp_eq_u64 vcc, 0\ns_cbranch_scc1 {name}_ok")
    if shrink: A.e("s_mov_b64 exec, vcc")
    if sleep: A.e(f"s_sleep {sleep}")
    A.e(f"s_branch {name}")
    A.label(name + "_ok")
    if shrink: A.e("s_mov_b64 exec, -1")

def gen_tail(A, B, opt):
    ACC, GA, U, TM, PL = 16, 40, 76, 100, 112
    vMA, vMC, vPC = 3, 4, 7
    TB = RING + 2 * SLOT
    ST = SCR + 256
    def acc(dst, src, first):
        for q in range(4):
            if first: A.e(f"v_lshlrev_b32 v{dst+2*q}, 16, v{src+q}\nv_and_b32 v{dst+2*q+1}, 0xffff0000, v{src+q}")
            else:
                t = TM + 2 * (q % 2)
                A.e(f"v_lshlrev_b32 v{t}, 16, v{src+q}\nv_and_b32 v{t+1}, 0xffff0000, v{src+q}\nv_pk_add_f32 {v(dst+2*q,2)}, {v(dst+2*q,2)}, {v(t,2)}")
    fl = f"buffer_load_dword v{vFl}, v{vFa}, {s(sWs,4)}, s{sFl} offen sc1"
    A.vmem(fl, ("fl", 0))
    misc = mv_loads() + wr_loads() + xi_loads(512); nm = opt.get("nm", 12)
    for pre, ld in misc[:nm]: A.items(pre + [ld])
    far = fa_reads()
    if opt.get("fo", 0) == 1: A.wait(lg="fww"); A.e("s_barrier"); A.items(far[:opt.get("nf0", 54)]); far = far[opt.get("nf0", 54):]
    A.wait(vm="st")
    A.vmem(f"buffer_store_dword v{vT}, v{vOne}, {s(sWs,4)}, s{sFs} offen sc1")
    A.e(f"s_movk_i32 s{sRem}, 0x1111\nv_lshrrev_b32 v15, 4, v0\nv_mul_u32_u24 v15, 9216, v15\nv_add_u32 v15, 4096, v15\nv_add_u32 v{vPC}, v{vPB}, v15")
    A.stamp()
    ready = f"v_cmp_ne_u32 vcc, 0, v{vFl}\ns_nop 0\n" + "\n".join(ready_mask(3)) + f"\ns_and_b32 s3, s3, s{sRem}"
    n0 = opt.get("n0", 10)
    def choose(i):
        if A.stamping == 5 and i: A.stamp()
        A.wait(vm=("fl", i))
        A.e(ready + f"\ns_cbranch_scc0 L2_g{i}s"); A.label(f"L2_g{i}r")
        A.e(f"s_ff1_i32_b32 s3, s3\ns_bitset0_b32 s{sRem}, s3\ns_mul_i32 s{sQ}, s3, 9216")
        B.label(f"L2_g{i}s")
        poll(B, f"L2_g{i}", fl, ready + f"\ns_cselect_b64 vcc, 0, -1", opt.get("sl1", 1))
        B.e(f"s_cmp_eq_u32 s3, 0\ns_cselect_b32 s3, s{sRem}, s3\ns_branch L2_g{i}r")
        if i == 0 or A.stamping == 5: A.stamp()
        if n0 // 5 - 1 <= i < 3: A.vmem(fl, ("fl", i + 1))
    pend = []
    for i in range(4):
        R0 = PL + 36 * i
        pend.append([lambda i=i: choose(i), ("vm", f"buffer_load_dwordx4 {v(R0,4)}, v{vPC}, {s(sPr,4)}, s{sQ} offen{OPT.get('pl', ' sc1')}", ("c", i))])
        for g in range(4):
            pend.append([f"s_add_u32 s{sQ}, s{sQ}, 9216"] * (g > 0) + [("vm", f"buffer_load_dwordx4 {v(R0+4+8*g+4*h,4)}, v{vPA}, {s(sPa if h else sPr,4)}, s{sQ} offen{OPT.get('pl', ' sc1')}", ("p", i, g, h)) for h in range(2)])
    win = opt.get("win", 99)
    def pace(free=False, step=None):
        if step is not None and opt.get("burst", 0):
            while pend and (20 - len(pend)) // 5 * 5 <= step + opt.get("off", 3): A.items(pend.pop(0))
        elif pend and (free or (20 - len(pend) < opt.get("n1", 10) if step is None else 20 - len(pend) <= step + opt.get("off", 3))):
            if len(A.vm) > win and not free:
                A.e(f"s_waitcnt vmcnt({win})"); del A.vm[:len(A.vm) - win]
            A.items(pend.pop(0))
        for _ in range(opt.get("nfw", 2)):
            if fww: A.item(fww.pop(0))
    fww = []
    for k in range(n0):
        pace(True)
        if k == opt.get("mpos", 0):
            for pre, ld in misc[nm:]: A.items(pre + [ld])
    A.wait(vm="xi")
    nv = [NV(r, h) + k for r in range(3) for h in range(2) for k in range(4)]
    A.e(f"v_mov_b32 v14, v{vWC}")
    tree2 = f"v_max_u32 v13, v{nv[0]}, v{nv[1]}\n" + "\n".join(f"v_max3_u32 v13, v13, v{nv[2*k]}, v{nv[2*k+1]}" for k in range(1, 12)) + "\nv_cmp_eq_u32 vcc, -1, v13"
    A.e(tree2 + "\ns_nop 0\ns_cmp_lg_u64 vcc, 0\ns_cbranch_scc1 L2_pns"); A.label("L2_pnr")
    B.label("L2_pns"); poll(B, "L2_pn", "\n".join(pre[0] + "\n" + ld[1] for pre, ld in mv_loads()), tree2); B.e("s_branch L2_pnr")
    for r in range(3):
        for k in (0, 2): A.e(f"v_pk_add_f32 {v(U+4*r+k,2)}, {v(NV(r,0)+k,2)}, {v(NV(r,1)+k,2)}")
        A.lds(f"ds_write_b128 v{vPB if r == 2 else vPA}, {v(U+4*r,4)} offset:{4096*r}", "mv")
    A.wait(lg="mv")
    A.e("s_barrier")
    if not opt.get("fo", 0): fww += [fw_write(k) for k in range(27)]
    A.e(f"v_lshlrev_b32 v{vMA}, 1, v{vWA}\nv_lshlrev_b32 v{vMC}, 1, v14")
    def vec(m, d, tag):
        for i in range(3):
            for h in range(2): A.lds(f"ds_read_b128 {v(d+8*i+4*h,4)}, v{vMC if i == 2 else vMA} offset:{m*2304 + 1024*i + 16*h}", tag)
    vec(2, U, "cb"); vec(1, GA, "sb")
    pace()
    A.wait(lg="sb")
    for q in range(12):
        t = 12 + 2 * (q % 2)
        A.e(f"v_lshlrev_b32 v{t}, 16, v{WR(q)}\nv_and_b32 v{t+1}, 0xffff0000, v{WR(q)}\nv_pk_mul_f32 {v(U+2*q,2)}, {v(U+2*q,2)}, {v(t,2)}\nv_pk_mul_f32 {v(GA+2*q,2)}, {v(GA+2*q,2)}, {v(t,2)}")
        if q == 5: pace()
    pace()
    dot24p(A, TM, 12, U, None); dot24p(A, TM + 1, 12, GA, None)
    vec(0, GA, "ga")
    pace()
    xsum8(A, [TM, TM + 1], TM + 2)
    A.e(f"v_and_b32 v14, 7, v0\nv_lshlrev_b32 v11, 4, v14\nv_add_u32 v11, {ST}, v11\ns_lshl_b32 s3, s{sW}, 2\nv_add_u32 v10, s3, v11")
    A.lds(f"ds_write_b32 v10, v{TM} offset:384", "ut"); A.lds(f"ds_write_b32 v10, v{TM+1} offset:512", "ut")
    vR0, vR1, vR2 = TM + 7, TM + 8, TM + 9
    A.e(f"v_lshl_add_u32 v{vXA}, v14, 4, v{vXA}\nv_lshl_add_u32 v{vXC}, v14, 4, v{vXC}\nv_add_u32 v{vXA}, {TB}, v{vXA}\nv_add_u32 v{vXC}, {TB}, v{vXC}")
    A.e(f"s_and_b32 s14, s{sW}, 1\ns_mul_i32 s14, s14, 9344\ns_add_u32 s14, s14, {TB}\nv_add_u32 v{vR0}, s14, v{vX}\nv_lshrrev_b32 v15, 3, v0\nv_mul_u32_u24 v12, {1152-128}, v15\nv_add_u32 v{vR2}, v12, v{vX}")
    A.e(f"v_lshl_add_u32 v12, v15, 4, v12\nv_add_u32 v{vR1}, v12, v{vR0}")
    A.e(f"s_mul_i32 s3, s{sT8}, 9216\ns_cmp_eq_u32 s{sW}, 3\ns_cselect_b32 s3, 0, s3\ns_cselect_b64 {s(sSt,2)}, {s(sH2,2)}, {s(sOut,2)}")
    A.srd(sSt, sSt, 9216, "s3")
    pace()
    A.wait(lg="ut")
    CB, SB, GB, D = PL, PL + 24, PL + 48, PL + 72
    KV, KA = XR, XR + 4
    for i in range(4):
        R0 = PL + 36 * i
        A.wait(vm=("c", i)); pace(step=5 * i); acc(ACC + 16, R0, i == 0)
        if i == 2:
            vec(2, CB, "m"); vec(1, SB, "m"); vec(3, GB, "m")
        if i == 3:
            A.e(f"s_lshl_b32 s3, s{sT8}, 3\ns_sub_u32 s3, 0xfff, s3\nv_and_b32 v{vFa}, 7, v0\nv_sub_u32 v{vFa}, s3, v{vFa}\ns_mov_b32 s57, 0xfffff000")
            A.e(f"s_mul_i32 s58, s{sT8}, {KS}\ns_add_u32 s58, s58, {WS_KEY}\ns_xor_b32 s3, s{sW}, 2\nv_or_b32 v{vFl}, s3, v0\nv_min_u32 v{vFl}, 1, v{vFl}\nv_lshlrev_b32 v{vFl}, 30, v{vFl}")
            xsumG(A, list(range(ACC + 16, ACC + 24)), D + 24)
            for q in range(12): A.e(f"v_lshlrev_b32 v{D+2*q}, 16, v{XR+q}\nv_and_b32 v{D+2*q+1}, 0xffff0000, v{XR+q}")
            A.e(f"s_cmp_lt_u32 s2, 180\ns_cselect_b32 s3, 2, 0\ns_cmp_lt_u32 s{sW}, s3\ns_cselect_b32 s3, 0, 0x40000000\nv_mul_u32_u24 v{KA}, {KS}, v0\nv_or_b32 v{KA}, s3, v{KA}")
            A.e(f"s_mul_i32 s15, s{sW}, {128*KS}\ns_add_u32 s15, s15, {WS_KEY}\ns_add_u32 s59, s15, {64*KS}\ns_lshl_b32 s3, s{sW}, 7\ns_sub_u32 s3, s{sT8}, s3\nv_cmp_eq_u32 s[60:61], s3, v0\ns_sub_u32 s3, s3, 64\nv_cmp_eq_u32 s[62:63], s3, v0")
        for g in range(4):
            A.wait(vm=("p", i, g, 0)); pace(step=5 * i + 1 + g); acc(ACC + 8, R0 + 4 + 8 * g, i == 0 and g == 0)
            A.wait(vm=("p", i, g, 1)); acc(ACC, R0 + 8 + 8 * g, i == 0 and g == 0)
    assert not pend and not fww
    A.stamp()
    A.wait(lg="ga")
    for q in range(12): A.e(f"v_pk_fma_f32 {v(ACC+2*q,2)}, {v(ACC+2*q,2)}, {v(GA+2*q,2)}, {v(D+2*q,2)}")
    MU, M2, DD = TM, TM + 1, TM + 2
    dot24p(A, MU, 12, ACC, None); xsum8(A, [MU], TM + 3)
    A.e(f"v_mul_f32 v{MU}, {hex(f2u(1/144))}, v{MU}")
    for i in range(0, 24, 2): A.e(f"v_pk_add_f32 {v(D+i,2)}, {v(ACC+i,2)}, {v(MU,2)} op_sel_hi:[1,0] neg_lo:[0,1] neg_hi:[0,1]")
    dot24p(A, M2, 12, D, D); dot24p(A, DD, 12, D, U); xsum8(A, [M2, DD], TM + 3)
    for k in range(3): A.lds(f"ds_write_b32 v10, v{TM+k} offset:{128*k}", "sw")
    A.wait(lg="sw"); A.e("s_barrier")
    R = GA
    for k in range(5): A.lds(f"ds_read_b128 {v(R+4*k,4)}, v11 offset:{128*k}", ("sr", k))
    A.wait(lg=("sr", 0))
    A.e(f"v_add_f32 v12, v{R}, v{R+1}\nv_add_f32 v13, v{R+2}, v{R+3}\nv_add_f32 v12, v12, v13\nv_mul_f32 v12, 0x3e800000, v12")
    for k in range(4): A.e(f"v_sub_f32 v{R+k}, v{R+k}, v12")
    A.e(f"v_sub_f32 v{MU}, v{MU}, v12\nv_mul_f32 v13, v{R}, v{R}")
    for k in range(1, 4): A.e(f"v_fmac_f32 v13, v{R+k}, v{R+k}")
    A.wait(lg=("sr", 1))
    A.e(f"v_add_f32 v14, v{R+4}, v{R+5}\nv_add_f32 v15, v{R+6}, v{R+7}\nv_add_f32 v14, v14, v15\nv_fmac_f32 v14, {hex(f2u(144.0))}, v13")
    A.e(f"v_mov_b32 v13, {hex(f2u(1e-5))}\nv_fmac_f32 v13, {hex(f2u(1/576))}, v14\nv_rsq_f32 v13, v13")
    A.wait(lg=("sr", 4))
    K1, K2 = R + 4, R + 5
    for k in (0, 2): A.e(f"v_pk_fma_f32 {v(R+8+k,2)}, {v(R+k,2)}, {v(R+12+k,2)}, {v(R+8+k,2)}")
    A.e(f"v_pk_add_f32 {v(R+8,2)}, {v(R+8,2)}, {v(R+10,2)}\nv_pk_add_f32 {v(R+16,2)}, {v(R+16,2)}, {v(R+18,2)}\nv_add_f32 v14, v{R+8}, v{R+9}\nv_add_f32 v15, v{R+16}, v{R+17}\nv_fmac_f32 v15, v14, v13")
    A.e(f"v_ashrrev_i32 v12, 31, v15\nv_or_b32 v12, 0x80000000, v12\nv_xor_b32 v12, v12, v15\nv_and_or_b32 v{K1}, v12, s57, v{vFa}\nv_mov_b32 v{K2}, 0")
    top2_lanes(A, K1, K2, 14, 15, (1, 2, 4), ())
    A.e(f"buffer_store_dwordx2 {v(K1,2)}, v{vFl}, {s(sWs,4)}, s58 offen offset:8 sc1")
    kld = [f"buffer_load_dwordx2 {v(KV+2*h,2)}, v{KA}, {s(sWs,4)}, {'s59' if h else 's15'} offen offset:8 sc1" for h in range(2)]
    if opt.get("kearly", 0): A.e("\n".join(kld))
    A.stamp()
    A.e(f"v_mul_f32 v{MU}, v{MU}, v13")
    for i in range(0, 24, 2): A.e(f"v_pk_fma_f32 {v(D+i,2)}, {v(D+i,2)}, v[12:13], {v(MU,2)} op_sel:[0,1,0] op_sel_hi:[1,1,0]")
    for i in range(0, 24, 2): A.e(f"v_pk_fma_f32 {v(D+i,2)}, {v(D+i,2)}, {v(CB+i,2)}, {v(SB+i,2)}")
    for m, src in ((1, D), (0, ACC)):
        if m == 0:
            for i in range(0, 24, 2): A.e(f"v_pk_fma_f32 {v(ACC+i,2)}, {v(D+i,2)}, {v(GB+i,2)}, {v(ACC+i,2)}")
        for i in range(3):
            d = CB + 12 * m + 4 * i
            for q in range(4): A.e(f"v_cvt_pk_bf16_f32 v{d+q}, v{src+8*i+2*q}, v{src+8*i+2*q+1}")
            if m == 1:
                for q in range(4): A.e(f"v_min_u32 v{d+q}, -2, v{d+q}")
            A.lds(f"ds_write_b128 v{vXC if i == 2 else vXA}, {v(d,4)} offset:{9344*m + (512 if i == 1 else 0)}", "tw")
    A.e(f"v_lshrrev_b32 v7, 4, v0\nv_and_b32 v6, 1, v0\nv_bfe_u32 v5, v0, 2, 2\nv_lshlrev_b32 v5, 6, v5\nv_lshl_add_u32 v5, v7, 4, v5\nv_mov_b32 v14, {SCR + 1792}\ns_movk_i32 s57, 1168")
    if A.stamping == 5: A.stamp()
    A.wait(lg="tw"); A.e(f"s_barrier\ns_cmp_lt_u32 s{sW}, 2\ns_cbranch_scc1 L2_keys")
    if opt.get("cand", 1):
        A.e(f"s_cmp_eq_u32 s{sW}, 2\ns_cbranch_scc1 L2_rows\nv_not_b32 v12, v{K1}\nv_not_b32 v13, v{K2}\nv_and_b32 v12, 7, v12\nv_and_b32 v13, 7, v13")
        A.e(f"v_cmp_gt_u32 vcc, 8, v0\nv_mul_u32_u24 v{SB+12}, 1168, v12\nv_mul_u32_u24 v{SB+13}, 1168, v13\nv_cndmask_b32 v15, v13, v12, vcc")
        A.e(f"v_add_u32 v{SB+12}, v{SB+12}, v{vR0}\nv_add_u32 v{SB+13}, v{SB+13}, v{vR0}\nds_read_b128 {v(SB,4)}, v{SB+12}\nds_read_b128 {v(SB+4,4)}, v{SB+13}")
        A.e(f"v_lshrrev_b32 v{SB+14}, 3, v0\nv_sub_u32 v15, v15, v{SB+14}\nv_mad_i32_i24 v{SB+14}, v15, s57, v{vR1}\nds_read_b128 {v(SB+8,4)}, v{SB+14} offset:1024")
        A.e(f"s_movk_i32 s3, 1152\nv_mad_u32_u24 v12, v12, s3, v{vX}\nv_mad_u32_u24 v13, v13, s3, v{vX}\nv_mad_i32_i24 v15, v15, s3, v{vR2}")
        A.e(f"s_waitcnt lgkmcnt(2)\nbuffer_store_dwordx4 {v(SB,4)}, v12, {s(sSt,4)}, 0 offen sc1\ns_waitcnt lgkmcnt(1)\nbuffer_store_dwordx4 {v(SB+4,4)}, v13, {s(sSt,4)}, 0 offen sc1")
        A.e(f"s_mov_b64 exec, 0xffff\ns_waitcnt lgkmcnt(0)\nbuffer_store_dwordx4 {v(SB+8,4)}, v15, {s(sSt,4)}, 0 offen offset:1024 sc1\ns_mov_b64 exec, -1\ns_branch L2_rowsdone")
        A.label("L2_rows")
    for r in range(9): A.lds(f"ds_read_b128 {v(SB+4*r,4)}, v{vR1 if r == 8 else vR0} offset:{1024 if r == 8 else 1168*r}", ("tr", r))
    for r in range(9):
        if r in (0, 4): A.e(f"s_movk_i32 s3, {1152*r}")
        A.wait(lg=("tr", r))
        A.e(f"buffer_store_dwordx4 {v(SB+4*r,4)}, v{vR2 if r == 8 else vX}, {s(sSt,4)}, {0 if r == 8 else 's3'} offen offset:{1024 if r == 8 else 1152*(r%4)} sc1")
    A.label("L2_rowsdone")
    if not opt.get("fh", 0): A.items(far)
    rdy = f"buffer_store_dword v14, v{vFl}, {s(sWs,4)}, s{sFs} offen offset:128 sc1"
    A.e(f"s_cmp_lt_u32 s2, 144\ns_cbranch_scc1 L2_join\ns_waitcnt vmcnt(0)\n{rdy}\ns_cmp_lt_u32 s2, 180\ns_cbranch_scc1 L2_join\ns_branch L2_fin")
    A.label("L2_keys")
    A.e("s_cmp_ge_u32 s2, 180\ns_cbranch_scc1 L2_fin")
    if not opt.get("kearly", 0): A.e("\n".join(kld))
    if not opt.get("fh", 0): A.items(far)
    ktest = "\n".join(f"v_cndmask_b32 v{KV+2*h+k}, v{KV+2*h+k}, v{K1+k}, {s(60+2*h,2)}" for h in range(2) for k in range(2))
    ktest += f"\nv_min_u32 v12, v{KV}, v{KV+1}\nv_min_u32 v13, v{KV+2}, v{KV+3}\nv_cmp_eq_u32 s[4:5], 0, v12\nv_cmp_eq_u32 s[6:7], 0, v13\ns_nop 0\ns_or_b64 vcc, s[4:5], s[6:7]"
    A.e(f"s_waitcnt vmcnt(0)\n{ktest}\ns_cbranch_scc0 L2_p2_ok")
    poll(A, "L2_p2", f"s_or_b64 exec, s[4:5], 1\n{kld[0]}\ns_or_b64 exec, s[6:7], 1\n{kld[1]}\ns_mov_b64 exec, -1", ktest, opt.get("sl2", 1))
    merge2(A, KV, KV + 1, KV + 2, KV + 3)
    top2_lanes(A, KV, KV + 1, 12, 13, (1, 2, 4, 8), ("v_permlane16_swap_b32", "v_permlane32_swap_b32"))
    A.e(f"s_lshl3_add_u32 s3, s{sW}, {SCR + 1792}\nv_mov_b32 v12, s3\nds_write_b64 v12, {v(KV,2)}\ns_waitcnt lgkmcnt(0)")
    A.label("L2_join")
    A.stamp()
    A.vm = []; A.lg = []
    A.e("s_barrier\nds_read_b128 v[16:19], v14\nv_cmp_eq_u32 vcc, 0, v6\ns_waitcnt lgkmcnt(0)")
    merge2(A, 16, 17, 18, 19)
    A.e("v_cndmask_b32 v16, v17, v16, vcc\nv_and_b32 v3, 0x7ff, v16\nv_sub_u32 v3, 2047, v3\nv_mul_u32_u24 v4, 1152, v3")
    A.stamp()
    A.e("s_cmp_ge_u32 s2, 144\ns_cbranch_scc1 L2_red")
    A.e(f"v_add_u32 v5, v5, v4\ns_mov_b32 s59, {WS_H2}")
    H = 128
    A.e("v_and_b32 v12, 8, v0\nv_lshlrev_b32 v12, 4, v12\nv_sub_u32 v3, v5, v12")
    hld = [f"buffer_load_dwordx4 {v(H+4*i,4)}, v{3 if i == 4 else 5}, {s(sWs,4)}, s59 offen offset:{256*i} sc1" for i in range(5)]
    for x in hld: A.vmem(x, "h")
    if opt.get("fh", 0): A.items([(x[0], x[1], "fa" if k < 36 else "fb") for k, x in enumerate(far)])
    LX = SCR + 1024
    A.e(f"v_lshlrev_b32 v11, 7, v6\nv_lshl_add_u32 v13, v7, 5, v11\nv_add_u32 v13, {LX}, v13\nv_lshl_add_u32 v11, v7, 4, v11")
    A.e(f"s_lshr_b32 s3, s{sW}, 1\ns_lshl_b32 s3, s3, 8\ns_and_b32 s14, s{sW}, 1\ns_lshl_b32 s14, s14, 6\ns_add_u32 s3, s3, s14\ns_add_u32 s3, s3, {LX}\nv_add_u32 v11, s3, v11")
    A.e(f"s_mul_i32 s14, s{sW}, 1152\ns_mul_i32 s15, s2, 4608\ns_add_u32 s15, s15, s14\ns_add_u32 s15, s15, {WS_YP}\nv_lshlrev_b32 v10, 3, v0")
    A.wait(vm="h", lg="fa"); A.e(rdy)
    if A.stamping == 5: A.stamp()
    htree = [f"v_max_u32 v12, v{H}, v{H+1}"] + [f"v_max3_u32 v12, v12, v{H+2*k}, v{H+2*k+1}" for k in range(1, 10)] + ["v_cmp_eq_u32 vcc, -1, v12"]
    A.label("L2_hr")
    for n_, kk in enumerate((0, 1, 2, 3, 4, 5, 6, 7, 8, 9, 10, 11, 14, 15, 12, 13, 17, 16)):
        d = v(88 + 4 * (kk % 4), 4)
        A.e(f"{MF} {d}, {a(aF+4*kk,4)}, {v(H+4*(kk//4),4)}, {'0' if kk < 4 else d}")
        if n_ < len(htree): A.e(htree[n_])
    A.e("s_cmp_lg_u64 vcc, 0\ns_cbranch_scc1 L2_hs\ns_nop 1")
    B.label("L2_hs")
    poll(B, "L2_h", "\n".join(hld), "\n".join(htree))
    for k in range(20): B.e(f"v_min_u32 v{H+k}, -2, v{H+k}")
    B.e("s_nop 1\ns_branch L2_hr")
    for i in range(4): A.e(f"v_add_f32_dpp v{96+i}, v{100+i}, v{96+i} row_shl:4 row_mask:0xf bank_mask:0xf bound_ctrl:1")
    for i in range(4): A.e(f"v_add_f32_dpp v{88+i}, v{92+i}, v{88+i} row_shl:4 row_mask:0xf bank_mask:0xf bound_ctrl:1")
    for i in range(4): A.e(f"v_add_f32_dpp v{88+i}, v{96+i}, v{88+i} row_shl:8 row_mask:0xf bank_mask:0xf bound_ctrl:1")
    A.e("s_mov_b32 exec_lo, 0x30003\ns_mov_b32 exec_hi, 0x30003")
    A.lds("ds_write_b128 v11, v[88:91]", "x"); A.e("s_mov_b64 exec, -1"); A.wait(lg="x"); A.e("s_barrier")
    for i in range(4): A.lds(f"ds_read_b128 {v(16+4*i,4)}, v13 offset:{(i//2)*256 + (i%2)*16}", ("y", i // 2))
    A.e(f"v_mov_b32 v12, {hex(f2u(-LOG2E))}")
    A.wait(lg=("y", 0))
    for i in range(0, 8, 2): A.e(f"v_pk_mul_f32 {v(32+i,2)}, {v(16+i,2)}, v[12:13] op_sel_hi:[1,0]")
    for i in range(8): A.e(f"v_exp_f32 v{32+i}, v{32+i}")
    for i in range(0, 8, 2): A.e(f"v_pk_add_f32 {v(32+i,2)}, {v(32+i,2)}, 1.0 op_sel_hi:[1,0]")
    for i in range(8): A.e(f"v_rcp_f32 v{32+i}, v{32+i}")
    A.wait(lg=("y", 1))
    for i in range(0, 8, 2): A.e(f"v_pk_mul_f32 {v(16+i,2)}, {v(16+i,2)}, {v(32+i,2)}")
    for i in range(0, 8, 2): A.e(f"v_pk_mul_f32 {v(16+i,2)}, {v(16+i,2)}, {v(24+i,2)}")
    for q in range(4): A.e(f"v_cvt_pk_bf16_f32 v{40+q}, v{16+2*q}, v{17+2*q}")
    A.e("s_nop 1")
    for nt in range(9): A.e(f"{MF} {v(48+4*nt,4)}, v[40:43], {a(aF+72+4*nt,4)}, 0")
    A.e("s_nop 0")
    for half in range(2):
        for G_ in range(4):
            for t in range(2):
                if half == 0 and G_ == 0: continue
                A.e(f"v_mov_b32_dpp v{48+2*half+t}, v{48+4*(4*half+G_)+t} quad_perm:[0,1,2,3] row_mask:{hex(1 << G_)} bank_mask:0xf")
            if G_ < 3 and not (half == 0 and G_ == 0): A.e("s_nop 0")
    for r_ in (48, 49, 50, 51, 80, 81): A.e(f"v_min_u32 v{r_}, -2, v{r_}")
    A.e(f"buffer_store_dwordx4 v[48:51], v{vX}, {s(sWs,4)}, s15 offen sc1\ns_mov_b64 exec, 0xffff\nbuffer_store_dwordx2 v[80:81], v10, {s(sWs,4)}, s15 offen offset:1024 sc1")
    A.e("s_branch L2_fin")
    A.label("L2_red")
    A.vm = []; A.lg = []
    A.e(f"s_mov_b32 s3, {WS_YP}"); A.srd(sYp, sWs, YP_BYTES, "s3")
    A.e("s_sub_u32 s3, s2, 144\ns_mul_i32 s14, s3, 7282\ns_lshr_b32 s14, s14, 16\ns_mul_i32 s15, s14, 9\ns_sub_u32 s15, s3, s15\ns_mul_i32 s14, s14, 144")
    A.e("s_cmp_eq_u32 s15, 8\ns_cselect_b32 s56, 1, 64\ns_cselect_b32 s57, 2, 1\ns_cselect_b32 s15, 16, s15\ns_lshl3_add_u32 s14, s15, s14")
    A.e("v_bfe_u32 v7, v0, 2, 3\nv_mul_u32_u24 v7, s57, v7\nv_bfe_u32 v9, v0, 1, 1\nv_mul_u32_u24 v9, s56, v9\nv_add3_u32 v7, v7, v9, s14\nv_lshl_add_u32 v9, v7, 1, v4\nv_lshlrev_b32 v7, 2, v7")
    A.e(f"v_lshrrev_b32 v12, 7, v3\nv_bfe_u32 v13, v3, 3, 4\nv_lshl_add_u32 v13, v12, 6, v13\nv_lshlrev_b32 v13, 8, v13\ns_mov_b32 s59, {WS_F1 + 2*16*256}")
    poll(A, "L2_r", f"buffer_load_dword v12, v13, {s(sWs,4)}, s59 offen offset:128 sc1", "v_cmp_eq_u32 vcc, 0, v12")
    A.e(f"buffer_load_ushort v18, v9, {s(sOut,4)}, 0 offen sc1\nds_read_b32 v20, v7 offset:{3*2304}")
    A.e(f"v_and_b32 v6, 7, v0\nv_lshrrev_b32 v10, 3, v0\ns_lshl_b32 s14, s{sW}, 3\nv_add_u32 v10, s14, v10\nv_mul_u32_u24 v10, 4608, v10\nv_lshl_add_u32 v10, v6, 4, v10\ns_lshl_b32 s3, s3, 7\nv_add_u32 v24, s3, v10")
    for r in range(1, 5): A.e(f"v_add_u32 v{24+r}, {147456*r}, v24")
    A.e("v_and_b32 v16, 0xfffff800, v16\nv_not_b32 v12, v16\nv_ashrrev_i32 v12, 31, v12\nv_or_b32 v12, 0x80000000, v12\nv_xor_b32 v16, v16, v12")
    A.e(f"v_mul_f32 v16, {hex(f2u(-LOG2E))}, v16\nv_exp_f32 v16, v16\ns_nop 0\nv_add_f32 v16, 1.0, v16\nv_rcp_f32 v16, v16\ns_waitcnt lgkmcnt(0)\nv_mul_f32 v20, v20, v16")
    A.e(f"s_lshl_b32 s14, s{sW}, 7\ns_add_u32 s14, s14, {SCR + 2048}\nv_lshl_add_u32 v10, v6, 4, s14\nv_and_b32 v11, 31, v0\nv_lshlrev_b32 v11, 2, v11")
    if opt.get("pre3", 0):
        A.e("s_mov_b64 exec, 1")
        poll(A, "L2_p3a", f"buffer_load_dword v32, v24, {s(sYp,4)}, 0 offen sc1", "v_cmp_eq_u32 vcc, -1, v32", opt.get("sl3", 1))
        A.e("s_mov_b64 exec, -1")
    tree = "v_max3_u32 v12, v32, v33, v34\n" + "\n".join(f"v_max3_u32 v12, v12, v{35+2*i}, v{36+2*i}" for i in range(8)) + "\nv_max_u32 v12, v12, v51\nv_cmp_eq_u32 vcc, -1, v12"
    poll(A, "L2_p3", "\n".join(f"buffer_load_dwordx4 {v(32+4*r,4)}, v{24+r}, {s(sYp,4)}, 0 offen sc1" for r in range(5)), tree, 0)
    for i in range(0, 4, 2):
        A.e(f"v_pk_add_f32 {v(32+i,2)}, {v(32+i,2)}, {v(36+i,2)}\nv_pk_add_f32 {v(40+i,2)}, {v(40+i,2)}, {v(44+i,2)}\nv_pk_add_f32 {v(32+i,2)}, {v(32+i,2)}, {v(48+i,2)}\nv_pk_add_f32 {v(32+i,2)}, {v(32+i,2)}, {v(40+i,2)}")
    xsum8(A, [32, 33, 34, 35], 12)
    A.e("ds_write_b128 v10, v[32:35]\ns_waitcnt lgkmcnt(0)\ns_barrier")
    A.e(f"s_cmp_lg_u32 s{sW}, 0\ns_cbranch_scc1 L2_fin")
    for k in range(4): A.e(f"ds_read_b32 v{32+k}, v11 offset:{SCR + 2048 + 128*k}")
    A.e("v_lshlrev_b32 v12, 16, v18\ns_mov_b32 exec_hi, 0\ns_waitcnt lgkmcnt(0)")
    A.e("v_pk_add_f32 v[32:33], v[32:33], v[34:35]\nv_add_f32 v32, v32, v33\nv_fmac_f32 v12, v32, v20\nv_cvt_pk_bf16_f32 v12, v12, v12")
    A.e(f"buffer_store_short v12, v9, {s(sOut,4)}, 0 offen{opt.get('finf', ' sc1')}")
    A.label("L2_fin")
    if A.stamping: A.e("s_mov_b64 exec, -1")
    A.stamp()
    if opt.get("enc"):
        ea, eb, clk = opt["enc"]; o = 0 if clk else 1
        A.e("s_cmp_lg_u32 s2, 150\ns_cbranch_scc1 L2_noenc")
        if ea < 0:
            A.e(f"s_load_dwordx2 s[60:61], s[0:1], 112\ns_waitcnt lgkmcnt(0)\ns_mov_b32 s62, 0x10000000\ns_mov_b32 s63, 0x20000\nv_mov_b32 v2, {WS_STAMP + 150*1024 + 4}\nbuffer_load_dword v1, v2, s[60:63], 0 offen\ns_waitcnt vmcnt(0)")
        A.e(f"v_accvgpr_read_b32 v1, a61\ns_nop 0\nv_readlane_b32 s56, v1, {2*eb+o}\nv_readlane_b32 s57, v1, {2*ea+o}\ns_nop 0\ns_sub_u32 s56, s56, s57")
        A.e("s_lshr_b32 s56, s56, 3" if clk else "s_lshl_b32 s56, s56, 2")
        A.e("s_min_u32 s56, s56, 100000\ns_mov_b32 s57, s93")
        A.label("L2_enc")
        A.e("s_memrealtime s[94:95]\ns_waitcnt lgkmcnt(0)\ns_sub_u32 s58, s94, s57\ns_cmp_lt_u32 s58, s56\ns_cbranch_scc1 L2_enc")
        A.label("L2_noenc")
    else: A.stamp_flush(1, WS_STAMP, sW)

OPT = {}
def gen_k2(opt={}):
    OPT.clear(); OPT.update(opt)
    A = Asm(); A.stamp_agpr = 60
    A.label("L2_begin")
    A.e("s_getpc_b64 s[98:99]")
    A.e("s_cmp_ge_u32 s2, 256\ns_cbranch_scc1 L2_end")
    A.stamp()
    for d, off in ((sXi, 0), (sC, 80), (sWm, 88), (12, 112), (sDb, 104)): A.e(f"s_load_dwordx2 {s(d,2)}, s[0:1], {off}")
    vTid = 155
    tch = opt.get("touch", "cq")
    A.e(f"s_and_b32 s3, s2, 7\ns_lshr_b32 s14, s2, 3\nv_mov_b32 v{vTid}, v0\nv_lshrrev_b32 v10, 6, v0\nv_and_b32 v0, 63, v0")
    if "c" in tch:
        A.e(f"s_lshl_b32 s15, s14, 9\nv_lshl_add_u32 v13, v10, 7, s15\nv_lshl_add_u32 v13, v0, 14, v13\nv_min_u32 v13, L2_codeend-L2_begin-8, v13\ns_mov_b64 exec, 31")
        A.vmem(f"global_load_dword a{aDum}, v13, s[98:99]"); A.e("s_mov_b64 exec, -1")
    A.e(f"v_readfirstlane_b32 s{sW}, v10")
    A.e(f"s_and_b32 s{sG}, s3, 3\ns_and_b32 s15, s14, 3\ns_lshl2_add_u32 s{sG}, s{sG}, s15")
    A.e(f"s_lshr_b32 s{sTb}, s3, 2\ns_lshr_b32 s15, s14, 2\ns_lshl3_add_u32 s{sTb}, s{sTb}, s15\ns_lshl4_add_u32 s{sT8}, s{sTb}, s{sG}")
    sP, sSl, sHf = sCnt, sPass, sW9
    A.e(f"s_mul_i32 s{sP}, s3, 27\ns_max_u32 s14, s14, 5\ns_add_u32 s{sP}, s{sP}, s14\ns_sub_u32 s{sP}, s{sP}, 5\ns_lshr_b32 s{sHf}, s3, 2\ns_mul_i32 s15, s{sHf}, 108\ns_sub_u32 s{sSl}, s{sP}, s15")
    item_addr(A, 288, 288, 256)
    vW4, vW1 = 153, 154
    A.e(f"v_and_b32 v4, 0xfc, v{vTid}\nv_and_b32 v7, 3, v0\nv_mul_u32_u24 v3, 6912, v4\nv_lshl_add_u32 v{vW4}, v7, 4, v3")
    A.e(f"s_mul_i32 s3, s{sT8}, 9216\ns_movk_i32 s{sXi+2}, 9216\ns_mov_b32 s{sXi+3}, 0x20000\ns_mov_b32 s{sWm+3}, s{sXi+3}")
    A.e(f"v_lshlrev_b32 v{vX}, 4, v0\ns_mov_b32 s{sWs+2}, {WS_SIZE}\ns_mov_b32 s{sWs+3}, s{sXi+3}\ns_movk_i32 s{sDb+2}, 256\ns_mov_b32 s{sDb+3}, s{sXi+3}")
    A.e(f"s_lshl_b32 s14, s{sSl}, 6\ns_sub_u32 s{sWm+2}, {288*6912}, s14\ns_cmp_ge_u32 s2, 40\ns_cselect_b32 s{sWm+2}, s{sWm+2}, 0\ns_mul_i32 s15, s{sHf}, {288*6912}\ns_add_u32 s14, s14, s15")
    A.e("s_waitcnt lgkmcnt(0)")
    A.fstamp()
    A.e(f"s_add_u32 s{sXi}, s{sXi}, s3\ns_addc_u32 s{sXi+1}, s{sXi+1}, 0")
    for pre, ld in xi_loads(128): A.item(ld)
    A.e(f"s_add_u32 s{sWm}, s{sWm}, s14\ns_addc_u32 s{sWm+1}, s{sWm+1}, 0")
    ncl = opt.get("ncl", 8); nst = 16 // ncl
    A.e(f"s_mov_b64 {s(sWs,2)}, s[12:13]\ns_cmp_ge_u32 s2, {ncl}\ns_cbranch_scc1 L2_noclr")
    assert ncl == 8
    for i in range(4): A.e(f"v_mov_b32 v{52+i}, -1\nv_mov_b32 v{56+i}, 0")
    A.e(f"s_lshl2_add_u32 s15, s2, s{sW}\ns_lshl_b32 s3, s15, 10\nbuffer_store_dwordx4 v[52:55], v{vX}, {s(sWs,4)}, s3 offen sc1")
    A.e(f"v_lshrrev_b32 v13, 3, v0\nv_mul_u32_u24 v13, {KS - 128}, v13\nv_add_u32 v13, v13, v{vX}\ns_mul_i32 s3, s15, {8*KS}\ns_add_u32 s3, s3, {WS_KEY}\nbuffer_store_dwordx4 v[56:59], v13, {s(sWs,4)}, s3 offen sc1")
    A.label("L2_noclr")
    nclr = len(A.vm)
    WM, CC = 128, 148
    nw0 = opt.get("nw0", 4)
    def wload(i):
        if 0 < i < 4: A.e(f"s_movk_i32 s3, {6912*i}")
        A.vmem(f"buffer_load_dwordx4 {v(WM+4*i,4)}, v{vW4 if i < 4 else vW1}, {s(sWm,4)}, {'s3' if 0 < i < 4 else 0} offen", ("w", i))
    for i in range(min(nw0, 4)): wload(i)
    A.fstamp()
    A.e(f"v_lshrrev_b32 v3, 2, v3\nv_lshl_add_u32 v3, v7, 4, v3\nv_add_u32 v{vW1}, {256*6912}, v3\nv_lshrrev_b32 v3, 1, v4\nv_lshlrev_b32 v4, 1, v4")
    A.e(f"s_mul_i32 s3, s{sHf}, 576"); A.srd(sC, sC, 576, "s3")
    for i in range(4): A.e(f"v_mov_b32 v{WM+16+i}, 0")
    A.e(f"v_mov_b32 v{CC+2}, 0\ns_cmp_ge_u32 s{sW}, 2\ns_cbranch_scc1 L2_w23")
    A.e(f"buffer_load_dwordx4 {v(WM+16,4)}, v{vW1}, {s(sWm,4)}, 0 offen\nbuffer_load_ushort v{CC+2}, v3, {s(sC,4)}, 0 offen offset:512")
    A.label("L2_w23")
    A.vmem(f"buffer_load_dwordx2 {v(CC,2)}, v4, {s(sC,4)}, 0 offen", "c")
    A.e("s_load_dwordx8 s[4:11], s[0:1], 8")
    for d, off in ((sWg, 56), (sWu, 64), (sWd, 72), (sOut, 96), (sWr, 48)): A.e(f"s_load_dwordx2 {s(d,2)}, s[0:1], {off}")
    B = Asm()
    A.fstamp()
    F = 156
    vL7, vSt, vSw, vXs, vYc, vMw, vL4, vXf, vMs = F, F + 1, F + 2, F + 3, F + 4, F + 5, F + 6, F + 7, F + 8
    SA, SD, SV = F + 10, F + 11, F + 12
    A.e(f"s_cmp_eq_u32 s{sW}, 0\ns_cselect_b32 s3, 0, 0x40000000\nv_mul_u32_u24 v{vL7}, {256//ncl}, v0\nv_or_b32 v{vL7}, s3, v{vL7}\ns_mul_i32 s{sW4}, s{sW}, {4*PIECE}\ns_add_u32 s{sW4}, s{sW4}, {RING}\nv_lshl_add_u32 v{vKV}, v10, 12, v{vX}")
    A.e(f"v_lshrrev_b32 v13, 5, v0\nv_lshl_add_u32 v13, v10, 1, v13\nv_lshlrev_b32 v13, 15, v13\nv_and_b32 v14, 31, v0\nv_lshl_add_u32 v{vWq}, v14, 4, v13")
    for i in range(4): A.e(f"v_mov_b32 v{56+i}, 0\nv_mov_b32 v{60+i}, -1")
    A.e(f"s_and_b32 s14, s{sTb}, 7\ns_lshl2_add_u32 s14, s14, s{sW}\nv_lshrrev_b32 v13, 2, v0\nv_lshl_add_u32 v13, v13, 5, s14\nv_lshlrev_b32 v13, 13, v13\nv_lshl_add_u32 v{F+9}, v7, 7, v13")
    A.e("s_waitcnt lgkmcnt(0)")
    A.e(f"s_lshl_b32 s3, s{sG}, 9"); A.srd(sWq, 8, 0, "s3"); A.e(f"s_sub_u32 s{sWq+2}, {576*8192}, s3")
    A.e(f"s_mov_b32 s{sWr+2}, 1152\ns_mov_b32 s{sWr+3}, 0x20000")
    A.stamp()
    ST = SCR + 256; MP = RING
    sF1, sYc, sXs, sXf, sMl, sKy, sMul, sAdd = 56, 57, 58, 59, 100, 101, sBase, sDel
    A.e(f"v_and_b32 v14, 7, v0\nv_lshlrev_b32 v{vSt}, 4, v14\nv_add_u32 v{vSt}, {ST}, v{vSt}\nv_lshl_add_u32 v{vSw}, v10, 2, v{vSt}")
    A.e(f"s_mul_i32 s3, s{sW}, {18*256}\nv_lshl_add_u32 v14, v14, 4, s3\nv_lshrrev_b32 v15, 3, v0\nv_lshl_add_u32 v{vXs}, v15, 8, v14")
    A.e(f"s_lshr_b32 s3, s{sT8}, 1\ns_mul_i32 s3, s3, 18432\ns_and_b32 s14, s{sT8}, 1\ns_lshl_b32 s14, s14, 7\ns_add_u32 s3, s3, s14\ns_add_u32 s{sXs}, s3, {WS_XN}")
    A.e(f"s_lshl_b32 s3, s{sTb}, 2\ns_add_u32 s3, s3, s{sW}\ns_lshl_b32 s14, s3, 4\ns_add_u32 s14, s14, s{sG}\ns_lshl_b32 s14, s14, 8\ns_add_u32 s{sF1}, s14, {WS_F1}")
    A.e(f"s_mul_i32 s14, s3, {4*KS}\ns_add_u32 s{sXf}, s14, {WS_KEY}\nv_and_b32 v14, 3, v0\nv_mul_u32_u24 v{vXf}, {KS}, v14")
    A.e(f"s_mul_i32 s14, s3, 36864\ns_add_u32 s14, s14, {WS_XN}"); A.srd(sXn, 12, 36864, "s14")
    A.e(f"s_mul_i32 s15, s2, 4608\ns_mul_i32 s14, s{sW}, 1152\ns_add_u32 s15, s15, s14\ns_add_u32 s{sYc}, s15, {WS_YP}")
    A.e(f"s_cmp_ge_u32 s2, 144\ns_cselect_b32 s14, 0x40000000, 0\nv_or_b32 v{vYc}, s14, v{vX}")
    A.e(f"v_lshrrev_b32 v12, 4, v{vTid}\nv_lshlrev_b32 v12, 7, v12\nv_lshl_add_u32 v{vMw}, v7, 5, v12\nv_lshlrev_b32 v{vL4}, 2, v0")
    A.e(f"s_mul_i32 s3, s{sSl}, 3641\ns_lshr_b32 s3, s3, 16\ns_mov_b32 s{sMul}, 1.0\ns_mov_b32 s{sAdd}, 0\ns_cmp_lt_u32 s3, 2\ns_cselect_b32 s{sMul}, {hex(f2u(C0))}, s{sMul}")
    A.e(f"s_cmp_eq_u32 s3, 1\ns_cselect_b32 s{sAdd}, {hex(f2u(C0))}, s{sAdd}\ns_cmp_eq_u32 s3, 4\ns_cselect_b32 s{sAdd}, 1.0, s{sAdd}\ns_cmp_eq_u32 s{sHf}, 0\ns_cselect_b32 s{sAdd}, s{sAdd}, 0")
    A.e(f"s_lshl_b32 s{sMl}, s{sP}, 7\ns_mul_i32 s14, s{sT8}, {KS}\ns_add_u32 s{sKy}, s14, {WS_KEY}")
    A.e(f"s_mul_i32 s3, s{sW}, 1152\nv_add_u32 v{SA}, s3, v{vX}")
    A.e(f"s_and_b32 s3, s{sW}, 1\ns_mul_i32 s3, s3, {36*64}\ns_cmp_lt_u32 s{sW}, 2\ns_cselect_b32 s14, 32, 0\ns_add_u32 s3, s3, s14\ns_add_u32 s3, s3, {ASB}")
    A.e(f"v_lshrrev_b32 v14, 1, v0\nv_lshl_add_u32 v14, v14, 6, s3\nv_and_b32 v15, 1, v0\nv_lshl_add_u32 v{SD}, v15, 4, v14")
    A.e(f"s_cmp_eq_u32 s{sW}, 1\ns_cselect_b32 s3, 40, 256\ns_cmp_ge_u32 s2, s3\ns_cselect_b32 s3, 0, 0x40000000\nv_or_b32 v{vMs}, s3, v{vL4}")
    for i in range(4): A.e(f"v_mov_b32 v{SV+4+i}, 0\nv_mov_b32 v{SV+12+i}, 0")
    def wq_touch():
        nq = opt.get("nq", 16)
        A.e(f"s_mov_b64 exec, {hex((1 << nq) - 1)}" if nq <= 31 else f"s_mov_b32 exec_hi, {hex((1 << (nq - 32)) - 1)}")
        A.vmem(f"buffer_load_dword a{aDum}, v{F+9}, {s(sWq,4)}, 0 offen", "tq"); A.e("s_mov_b64 exec, -1")
    def init_kv_addr():
        A.e(f"v_lshrrev_b32 v14, 2, v0\nv_mul_u32_u24 v14, {PIECE}, v14\nv_and_b32 v15, 3, v0\nv_lshl_add_u32 v14, v15, 3, v14\nv_add_u32 v{vV}, {RING + 2*SLOT + HALF}, v14")
        A.e(f"v_and_b32 v14, 15, v0\nv_mul_u32_u24 v14, {PIECE}, v14\nv_lshrrev_b32 v15, 4, v0\nv_lshl_add_u32 v14, v15, 4, v14\nv_add_u32 v{vK}, {RING + 2*SLOT}, v14")
    def late_setup():
        A.e(f"s_lshl_b32 s3, s{sTb}, 2\ns_add_u32 s3, s3, s{sW}\nv_mov_b32 v12, v10")
        A.e(f"s_mul_i32 s14, s3, {4*147456}\ns_mul_i32 s15, s{sG}, 9216\ns_add_u32 s14, s14, s15\ns_add_u32 s14, s14, {WS_PART}"); A.srd(sPt, 12, 0, "s14"); A.e(f"s_sub_u32 s{sPt+2}, {4*147456}, s15")
        if opt.get("x_nostore"): A.e(f"s_mov_b32 s{sPt+2}, 0")
        A.e(f"s_lshl_b32 s3, s{sG}, 19"); A.srd(sK, 4, 524288, "s3"); A.srd(sV, 6, 524288, "s3")
        if opt.get("tid", 1):
            A.e(f"s_lshl_b32 s3, s{sW}, 12")
            for d in (sK, sV): A.e(f"s_add_u32 s{d}, s{d}, s3\ns_addc_u32 s{d+1}, s{d+1}, 0x100000\ns_mov_b32 s{d+2}, 32768\ns_mov_b32 s{d+3}, 0x800000")
        A.e(f"s_mul_i32 s3, s{sG}, 294912"); A.srd(sWo, 10, 294912, "s3")
        A.e(f"s_mov_b64 s[4:5], {s(sWg,2)}\ns_mov_b64 s[6:7], {s(sWu,2)}\ns_mov_b64 s[8:9], {s(sWd,2)}")
        A.e(f"s_mov_b32 s{sPass}, 0\ns_mul_i32 s{sW9}, s{sW}, 9216")
        A.e("s_min_u32 s15, s2, 143\ns_and_b32 s3, s15, 7\ns_mul_i32 s3, s3, 18\ns_lshr_b32 s15, s15, 3\ns_add_u32 s15, s15, s3\ns_lshl_b32 s3, s15, 6")
        A.srd(sWg, sWg, 0, "s3"); A.srd(sWu, sWu, 0, "s3")
        A.e(f"s_sub_u32 s14, {576*9216}, s3\ns_mul_i32 s3, s15, 36864"); A.srd(sWd, sWd, 0, "s3")
        A.e(f"s_cmp_lt_u32 s2, 144\ns_cselect_b32 s{sWg+2}, s14, 0\ns_cselect_b32 s{sWu+2}, s14, 0\ns_cselect_b32 s{sWd+2}, 36864, 0")
        A.e(f"s_mov_b32 s{sOut+2}, 2359296\ns_mov_b32 s{sOut+3}, 0x20000")

        A.e(f"v_lshrrev_b32 v13, 4, v0\nv_lshlrev_b32 v{vAS}, 6, v13")
        A.e(f"v_lshrrev_b32 v14, 2, v0\nv_mul_u32_u24 v14, {PIECE}, v14\nv_add_u32 v14, {RING}, v14")
        A.e(f"v_and_b32 v15, 1, v0\nv_lshlrev_b32 v15, 4, v15\nv_add_u32 v{vT}, v14, v15\nv_and_b32 v15, 2, v0\nv_lshl_add_u32 v{vT}, v15, 2, v{vT}\nv_add_u32 v{vT2}, {2*SLOT}, v{vT}")
        A.e(f"v_lshrrev_b32 v14, 3, v0\nv_lshlrev_b32 v14, 2, v14\nv_add_u32 v14, v14, v12\nv_mul_u32_u24 v14, {4*1152}, v14\nv_and_b32 v15, 7, v0\nv_lshl_add_u32 v{vWo}, v15, 4, v14")
        A.e(f"v_lshlrev_b32 v{vPt}, 4, v15\nv_lshl_add_u32 v{vPt}, v13, 7, v{vPt}\nv_bfe_u32 v14, v0, 3, 1\nv_mul_u32_u24 v14, 147456, v14\nv_add_u32 v{vPt}, v{vPt}, v14")
        init_kv_addr()
        A.e(f"v_and_b32 v14, 1, v0\nv_cmp_eq_u32 vcc, 0, v14\nv_mov_b32 v{vIdx}, 0xeeeeeeee\nv_mov_b32 v15, 0x44444444\nv_cndmask_b32 v{vIdx}, v{vIdx}, v15, vcc")
        A.e(f"v_and_b32 v14, {14 if opt.get('ones2', 0) else 2}, v0\nv_cmp_eq_u32 vcc, 0, v14\nv_mov_b32 v15, 0x3f803f80\ns_nop 0\nv_cndmask_b32 v15, 0, v15, vcc")
        for i in range(4): A.e(f"v_accvgpr_write_b32 a{aOne+i}, v15\nv_accvgpr_write_b32 a{56+i}, -1")
        for i in range(16): A.e(f"v_accvgpr_write_b32 a{aL+i}, 0")
    ls = opt.get("ls", 0); tqp = opt.get("tqp", 1)
    if not ls: late_setup()
    if tqp == 0: wq_touch()
    A.e(f"s_cmp_ge_u32 s2, {ncl}\ns_cbranch_scc1 L2_noclr2")
    A.e(f"s_mul_i32 s14, s2, {256//ncl}\ns_mov_b64 exec, 1\ns_waitcnt vmcnt({len(A.vm) - nclr})\ns_barrier\nbuffer_store_dword v60, v{vL7}, {s(sDb,4)}, s14 offen sc1\ns_mov_b64 exec, -1")
    A.label("L2_noclr2")
    if tqp == 1: wq_touch()
    A.stamp()
    XF, MA, TF = 24, 16, 48
    A.wait(vm="xi"); A.fstamp()
    if tqp == 2: wq_touch()
    for i in range(nw0, 4): wload(i)
    for q in range(12): A.e(f"v_lshlrev_b32 v{XF+2*q}, 16, v{XR+q}\nv_and_b32 v{XF+2*q+1}, 0xffff0000, v{XR+q}")
    dot24p(A, TF, 12, XF, None); xsum8(A, [TF], TF + 2)
    A.e(f"v_mul_f32 v{TF}, {hex(f2u(1/144))}, v{TF}")
    for i in range(0, 24, 2): A.e(f"v_pk_add_f32 {v(XF+i,2)}, {v(XF+i,2)}, {v(TF,2)} op_sel_hi:[1,0] neg_lo:[0,1] neg_hi:[0,1]")
    dot24p(A, TF + 1, 12, XF, XF); xsum8(A, [TF + 1], TF + 2)
    A.lds(f"ds_write_b32 v{vSw}, v{TF}", "f"); A.lds(f"ds_write_b32 v{vSw}, v{TF+1} offset:128", "f")
    A.wait(lg="f"); A.e("s_barrier")
    A.lds(f"ds_read_b128 {v(MA,4)}, v{vSt}", "g0"); A.lds(f"ds_read_b128 {v(MA+4,4)}, v{vSt} offset:128", "g1")
    A.e(f"s_add_u32 s14, s{sXs}, 4096")
    A.wait(lg="g0")
    A.e(f"v_add_f32 v12, v{MA}, v{MA+1}\nv_add_f32 v13, v{MA+2}, v{MA+3}\nv_add_f32 v12, v12, v13\nv_mul_f32 v12, 0x3e800000, v12")
    for k in range(4): A.e(f"v_sub_f32 v{MA+k}, v{MA+k}, v12")
    A.e(f"v_sub_f32 v{TF}, v{TF}, v12\nv_mul_f32 v13, v{MA}, v{MA}")
    for k in range(1, 4): A.e(f"v_fmac_f32 v13, v{MA+k}, v{MA+k}")
    A.wait(lg="g1")
    A.e(f"v_add_f32 v14, v{MA+4}, v{MA+5}\nv_add_f32 v15, v{MA+6}, v{MA+7}\nv_add_f32 v14, v14, v15\nv_fmac_f32 v14, {hex(f2u(144.0))}, v13")
    A.e(f"v_mov_b32 v12, {hex(f2u(1e-5))}\nv_fmac_f32 v12, {hex(f2u(1/576))}, v14\nv_rsq_f32 v12, v12\ns_nop 0\nv_mul_f32 v{TF}, v{TF}, v12")
    for i in range(3):
        for q in range(0, 8, 2): A.e(f"v_pk_fma_f32 {v(XF+8*i+q,2)}, {v(XF+8*i+q,2)}, v[12:13], {v(TF,2)} op_sel_hi:[1,0,0]")
        for q in range(4): A.e(f"v_cvt_pk_f16_f32 v{XR+4*i+q}, v{XF+8*i+2*q}, v{XF+8*i+2*q+1}")
        if i == 2: A.e("s_mov_b64 exec, 0xffff")
        A.vmem(f"buffer_store_dwordx4 {v(XR+4*i,4)}, v{vXs}, {s(sWs,4)}, {'s14' if i == 2 else s(sXs)} offen offset:{2048*(i%2)} sc1")
    A.fstamp()
    A.vmem(f"buffer_store_dwordx4 v[56:59], v{vX}, {s(sWs,4)}, s{sF1} offen sc1")
    A.e("s_mov_b64 exec, 0xff")
    A.vmem(f"buffer_store_dwordx4 v[60:63], v{vYc}, {s(sWs,4)}, s{sYc} offen offset:1024 sc1"); A.e("s_mov_b64 exec, -1")
    A.vmem(f"buffer_store_dwordx4 v[60:63], v{vYc}, {s(sWs,4)}, s{sYc} offen sc1"); A.e(f"s_mov_b64 exec, {(1 << ncl) - 1}")
    p0 = f"buffer_load_dword v{TF+3}, v{vL7}, {s(sDb,4)}, 0 offen sc1"
    A.vmem(p0, "p0"); A.e("s_mov_b64 exec, -1")
    if tqp == 3: wq_touch()
    A.stamp()
    A.e(f"s_mul_i32 s3, s{sT8}, 147456\ns_add_u32 s3, s3, {WS_PART + 4096}"); A.srd(sPr, 12, 147456 - 4096, "s3")
    A.wait(vm="c")
    CF = 40
    A.e(f"v_lshlrev_b32 v{CF}, 16, v{CC}\nv_and_b32 v{CF+1}, 0xffff0000, v{CC}\nv_lshlrev_b32 v{CF+2}, 16, v{CC+1}\nv_and_b32 v{CF+3}, 0xffff0000, v{CC+1}\nv_lshlrev_b32 v{CF+4}, 16, v{CC+2}")
    for i in range(5): A.e(f"v_mul_f32 v{MA+i}, {hex(f2u(-LOG2E))}, v{CF+i}")
    for i in range(5): A.e(f"v_exp_f32 v{MA+i}, v{MA+i}")
    for i in range(5): A.e(f"v_add_f32 v{MA+i}, 1.0, v{MA+i}")
    for i in range(5): A.e(f"v_rcp_f32 v{MA+i}, v{MA+i}")
    for i in range(5): A.e(f"v_mul_f32 v{XF+2*i}, v{CF+i}, v{MA+i}")
    for i in range(5):
        A.wait(vm=("w", i))
        for q in range(4):
            t = 12 + 2 * (q % 2)
            A.e(f"v_lshlrev_b32 v{t}, 16, v{WM+4*i+q}\nv_and_b32 v{t+1}, 0xffff0000, v{WM+4*i+q}")
            if i == 0: A.e(f"v_pk_mul_f32 {v(MA+2*q,2)}, {v(t,2)}, {v(XF,2)} op_sel_hi:[1,0]")
            else: A.e(f"v_pk_fma_f32 {v(MA+2*q,2)}, {v(t,2)}, {v(XF+2*i,2)}, {v(MA+2*q,2)} op_sel_hi:[1,0,1]")
    for sh in (4, 8):
        for q in range(8): A.e(f"v_add_f32_dpp v{MA+q}, v{MA+q}, v{MA+q} row_ror:{sh} row_mask:0xf bank_mask:0xf")
    A.e("s_mov_b32 exec_lo, 0xf000f\ns_mov_b32 exec_hi, 0xf000f")
    A.lds(f"ds_write_b128 v{vMw}, {v(MA,4)} offset:{MP}", "f"); A.lds(f"ds_write_b128 v{vMw}, {v(MA+4,4)} offset:{MP+16}", "f")
    A.e(f"s_mov_b64 exec, {(1 << ncl) - 1}")
    A.fstamp(); A.wait(vm="p0"); A.fstamp()
    A.e(f"v_cmp_eq_u32 vcc, s{sW}, v{TF+3}\ns_nop 0\ns_cmp_lg_u64 vcc, 0\ns_cbranch_scc1 L2_p0s"); A.label("L2_p0r")
    B.label("L2_p0s"); poll(B, "L2_p0", p0, f"v_cmp_eq_u32 vcc, 0, v{TF+3}"); B.e("s_branch L2_p0r")
    A.e("s_mov_b64 exec, 1"); A.wait(lg="f"); A.e("s_barrier")
    A.vmem(f"buffer_store_dword v60, v{vL7}, {s(sWs,4)}, s{sKy} offen sc1"); A.e("s_mov_b64 exec, -1")
    for i in range(8): A.lds(f"ds_read_b32 v{XF+i}, v{vL4} offset:{MP + 256*i}", "g2")
    A.wait(lg="g2")
    A.e(f"v_pk_add_f32 {v(XF,2)}, {v(XF,2)}, {v(XF+2,2)}\nv_pk_add_f32 {v(XF+4,2)}, {v(XF+4,2)}, {v(XF+6,2)}\nv_pk_add_f32 {v(XF,2)}, {v(XF,2)}, {v(XF+4,2)}\nv_add_f32 v52, v{XF}, v{XF+1}")
    A.e(f"v_mov_b32 v53, v52\nv_mov_b32 v54, s{sAdd}\ns_nop 0\nv_permlane32_swap_b32 v53, v52\nv_add_f32 v52, v52, v53")
    A.e(f"v_fma_f32 v52, v52, s{sMul}, v54\nv_min_u32 v52, -2, v52\ns_mov_b32 exec_hi, 0")
    A.vmem(f"buffer_store_dword v52, v{vMs}, {s(sWs,4)}, s{sMl} offen sc1"); A.e("s_mov_b64 exec, -1")
    A.fstamp()
    if ls: late_setup()
    fo2 = opt.get("fo2", 1); nl0 = opt.get("nl0", 2)
    for c in range(nl0): emit_dma(A, dmaL(c))
    A.stamp()
    if opt.get("walk", 1):
        A.e(f"s_mov_b64 exec, 0\ns_cmp_eq_u32 s{sW}, 0\ns_cbranch_scc1 L2_pad0\ns_cmp_eq_u32 s{sW}, 1\ns_cbranch_scc1 L2_pad1\ns_cmp_eq_u32 s{sW}, 2\ns_cbranch_scc1 L2_pad2\ns_branch L2_pad3")
        A.e(".p2align 12"); A.label("L2_walkret")
    px = f"buffer_load_dword v12, v{vXf}, {s(sWs,4)}, s{sXf} offen sc1"
    A.e("s_mov_b64 exec, 15")
    if fo2: A.vmem(px, "px")
    else: poll(A, "L2_px", px, "v_cmp_eq_u32 vcc, 0, v12"); A.stamp()
    A.e("s_mov_b64 exec, -1")
    A.e("s_movk_i32 s14, 13824")
    sweep = [f"buffer_load_dwordx4 {v(SV+8*h,4)}, v{SA}, {s(sWs,4)}, {'s14' if h else 0} offen sc1" for h in range(2)]
    sweep += [("s_mov_b64 exec, 0xff\n" if h == 0 else "") + f"buffer_load_dwordx4 {v(SV+8*h+4,4)}, v{SA}, {s(sWs,4)}, {'s14' if h else 0} offen offset:1024 sc1" + ("\ns_mov_b64 exec, -1" if h else "") for h in range(2)]
    tree = f"v_max_u32 v13, v{SV}, v{SV+1}\n" + "\n".join(f"v_max3_u32 v13, v13, v{SV+2*k}, v{SV+2*k+1}" for k in range(1, 8)) + "\nv_cmp_eq_u32 vcc, -1, v13"
    for x in sweep: A.vmem(x, "sw")
    if fo2:
        if nl0 < 1: emit_dma(A, dmaL(0))
        A.e("s_mov_b64 exec, 15"); A.wait(vm="px")
        A.e("v_cmp_eq_u32 vcc, 0, v12\ns_nop 0\ns_cmp_eq_u64 vcc, 0\ns_cbranch_scc1 L2_px_ok")
        keep = list(A.vm); poll(A, "L2_px", px, "v_cmp_eq_u32 vcc, 0, v12", 0); A.vm = keep
        A.e("s_mov_b64 exec, -1"); A.stamp()
    for c in range(2):
        for pre, ld in xload(c): A.items(pre + [ld])
    A.fstamp(); A.wait(vm="sw"); A.fstamp()
    A.e(tree + "\ns_nop 0\ns_cmp_lg_u64 vcc, 0\ns_cbranch_scc1 L2_pms"); A.label("L2_pmr")
    B.label("L2_pms"); poll(B, "L2_pm", "\n".join(sweep), tree); B.e("s_branch L2_pmr")
    A.fstamp()
    for k in range(0, 8, 2): A.e(f"v_pk_add_f32 {v(SV+k,2)}, {v(SV+k,2)}, {v(SV+8+k,2)}")
    A.lds(f"ds_write_b128 v{SD}, {v(SV,4)}", "mw"); A.e("s_mov_b64 exec, 0xff"); A.lds(f"ds_write_b128 v{SD}, {v(SV+4,4)} offset:2048", "mw"); A.e("s_mov_b64 exec, -1")
    A.wait(vm=("L", 0), lg="mw"); A.e("s_barrier")
    A.items(as_reads(0, 0) + as_reads(0, 1))
    if nl0 < 2: emit_dma(A, dmaL(1))
    for pre, ld in xload(2): A.items(pre + [ld])
    A.wait(vm=("X", 0))
    for q in range(4):
        A.wait(lg=("AS", 0, q)); A.items(modulate(0, q))
        if q < 3: A.items(as_reads(0, q + 2) if q < 2 else as_reads(1, 0))
        if q == 2:
            for G in range(QD): A.items(qreads(G))
    A.stamp()
    A.wait(lg=("A", 0))
    Sc, leftover, vmg = gen_qproj(A)
    N = len(Sc.mf)
    T = Asm(); pf_addr(T)
    rest = Sc.fill([(0, x) for x in T.L], 512, N); assert not rest
    rest = Sc.fill([(0, x) for x in kreads(0, ("K", 0))], N - 4 * QD, N); assert not rest
    pend = []
    for t2 in range(8):
        cs = [qconvert(2 * (t2 // 4) + n, t2 % 4) for n in range(2)]
        pend += [(512 + 8 * t2 + 7 + 5, x) for x in cs[0][0] + cs[1][0]]
    pend = Sc.fill(pend, 512, N)
    late = len(pend) > 32
    for c in range(9):
        Sc.emit(A, 64 * c, 64 * c + 64)
        if A.stamping == 4 or c in (3, 8): A.stamp()
    A.e(f"s_mul_i32 s3, s{sT8}, 9216\ns_add_u32 s3, s3, {WS_H2}"); A.srd(sH2, sWs, 9216, "s3")
    emit_dma(A, leftover)
    if late: A.items([x for _, x in pend[:-32]]); pend = pend[-32:]
    for t in range(4):
        for j in range(2): A.items(qconvert(j, t)[1])
    A.items([x for _, x in pend]); A.e("s_nop 0")
    for t in range(4):
        for j in range(2, 4): A.items(qconvert(j, t)[1])
    A.wait(lg=(("K", 0), 0))
    for j in range(4):
        for t in range(4):
            d = S0 + 4 * j
            A.e(f"{MF} {v(d,4)}, {a(KF(0,t),4)}, {v(Q(j,t),4)}, {'0' if t == 0 else v(d,4)}")
    A.e("s_nop 1")
    for j in range(4):
        d = S0 + 4 * j
        A.e(f"v_max3_f32 v{d}, v{d}, v{d+1}, v{d+2}\nv_max_f32 v{d}, v{d}, v{d+3}")
    xmax_to_negm(A, [S0 + 4 * j for j in range(4)], BIAS)
    NIT = opt.get("nit", 11)
    A.label("L2_entry")
    A.e(f"s_mov_b32 s{sBase}, s{sW4}\ns_mov_b32 s{sDel}, {-2*SLOT}\ns_mov_b32 s{sCnt}, {NIT}\ns_mov_b32 s{sT}, {2*16384}\ns_mov_b32 s100, 0x07060302\ns_mov_b32 s101, 0")
    A.wait(vm=("L", 10)); A.e("s_barrier")
    A.stamp()
    pair = opt.get("pair", 1)
    Sf = gen_stage(0, "first", dma_kv_dyn(3, 1), opt, bar=0 if pair else 2)
    rest = Sf.fill([(0, f"v_mov_b32 v{O(3,0)+i}, 0") for i in range(32)], 33, 132)
    for _, x in rest: Sf.va[17].append(x)
    Sf.emit(A)
    tcode = []
    def body(i):
        if pair == 1:
            Sa = gen_stage(i, "A", dma_kv_dyn(i + 3, 0) + dma_kv_dyn(i + 4, 1), opt, bar=0, dgap=1)
            Sa.emit(A)
            tp = [([], ("vm", f"buffer_load_dword a{aDum}, v{vAS}, {s(sPt,4)}, s101 offen{opt.get('tpf', '')}", None))] if opt.get("tp", 1) else []
            Sb = gen_stage(i + 1, "B", [], opt, tp, bar=0)
            Sb.sh[20].append("s_add_u32 s101, s101, 1024"); Sb.sh[21].append("s_min_u32 s101, s101, 8192")
        elif pair == 2:
            gen_stage(i, "A", dma_kv_dyn(i + 3, 0), opt, bar=0, dgap=1).emit(A)
            Sb = gen_stage(i + 1, "B", dma_kv_dyn(i + 4, 1), opt, bar=0)
        else:
            gen_stage(i, "A", dma_kv_dyn(i + 3, 0), opt).emit(A)
            Sb = gen_stage(i + 1, "B", dma_kv_dyn(i + 4, 1), opt)
        Sb.sh[128].append(f"s_sub_u32 s{sCnt}, s{sCnt}, 1"); Sb.sh[129].append(f"s_cmp_lg_u32 s{sCnt}, 0")
        Sb.emit(A)
    if opt.get("align_loop", 1): A.e(".p2align 5")
    A.label("L2_loop")
    if opt.get("tp", 1): A.vmem(f"buffer_load_dword a{aDum}, v{vAS}, {s(sWr,4)}, 0 offen"); A.L.insert(len(A.L) - 3, A.L.pop())
    n0 = len(A.L); body(1); n1 = len(A.L); body(3)
    assert A.L[n0:n1] == A.L[n1:], "loop body not in steady state"
    assert lint(A.L[n0:], "loop2x") == 0
    del A.L[n1:]
    def shift(t, d):
        if isinstance(t, tuple) and t[0] in ("L", "V"): return (t[0], t[1] + d)
        if isinstance(t, tuple) and isinstance(t[0], tuple): return ((t[0][0], t[0][1] + d), t[1])
        return t
    A.vm = [shift(t, 2 * NIT - 4) for t in A.vm]; A.lg = [shift(t, 2 * NIT - 4) for t in A.lg]
    A.e("s_cbranch_scc1 L2_loop")
    def gt(ch):
        if ch in "rs": return ([], ("vm", f"buffer_load_dword a{aDum}, v{vAS}, {s(sWr,4)}, 0 offen offset:{128*(ch == 's')}", None))
        vr, sp = dict(g=(12, 4), u=(12, 6), d=(13, 8), a=(14, 10), b=(15, 10))[ch]
        return ([], ("vm", f"global_load_dword a{aDum}, v{vr}, {s(sp,2)}", None))
    fw = ld_ffn()
    plan = opt.get("plan", {24: "ga", 26: "bu", 28: "drs01234", 30: "5678ABCD"} if pair == 1 else {23: "g", 24: "a", 25: "b", 26: "u012", 27: "d345", 28: "r678", 29: "AB", 30: "CD"})
    def tile(n, odd): return dma_kv_dyn(n, odd) if n < 32 else dma_wo(n - 32)
    for i in range(2 * NIT + 1, 31):
        ex = [fw[int(ch)] if ch.isdigit() else gt(ch) if ch.islower() else
              ([], ("vm", f"buffer_store_dwordx4 a[56:59], v{vKV}, {s(sH2,4)}, 0 offen offset:{1024*(ord(ch) - 65)} sc1", None)) for ch in plan.get(i, "")]
        if pair == 1: gen_stage(i, "A" if i % 2 else "B", tile(i + 3, 0) + tile(i + 4, 1) if i % 2 else [], opt, ex, bar=0, dgap=i % 2).emit(A)
        else: gen_stage(i, "A" if i % 2 else "B", tile(i + 3, 1 - i % 2), opt, ex, bar=0 if pair else 2, dgap=pair and i % 2).emit(A)
    nup = opt.get("nup", 16)
    upd = [x for k in range(9) for x in ([fw[9 + k]] + ([fw[18 + k]] if 18 + k < 9 + nup else []))]
    Sl = gen_stage(31, "last", dma_wo(2), opt, upd, opt.get("xs31", 1), dgap=pair)
    def norm(j, pk):
        r = vTmp + 2 * (j % 2)
        out = [f"v_accvgpr_read_b32 v{r}, a{aL+4*j}", f"v_accvgpr_read_b32 v{r+1}, a{aL+4*j+1}", f"v_add_f32 v{r}, v{r}, v{r+1}"]
        if opt.get("ones2", 0):
            for op in ("v_permlane16_swap_b32", "v_permlane32_swap_b32"):
                out += [f"v_mov_b32 v{r+1}, v{r}", "s_nop 1" if pk else "s_nop 0", f"{op} v{r+1}, v{r}", f"v_add_f32 v{r}, v{r}, v{r+1}"]
        out += [f"v_subrev_u32 v{r+1}, {hex(f2u(2.0**(-BIAS-3)))}, v{r}", f"v_cmp_gt_u32 {s(56+2*j,2)}, v{r+1}, s15", f"v_rcp_f32 v{r}, v{r}"]
        body = []
        for x in range(4):
            o = O(j, 2 * x)
            if pk: body += [f"v_pk_mul_f32 {v(o+i,2)}, {v(o+i,2)}, {v(r,2)} op_sel_hi:[1,0]" for i in range(0, 8, 2)]
            else: body += [f"v_mul_f32 v{o+i}, v{o+i}, v{r}" for i in range(8)]
            body += [f"v_cvt_pk_bf16_f32 v{o+i}, v{o+2*i}, v{o+2*i+1}" for i in range(4)]
        return out, body
    Sl.sh[40].append(f"s_mov_b32 s15, {hex(f2u(2.0**60) - f2u(2.0**(-BIAS-3)))}")
    rest = Sl.fill([(149, x) for x in oreads(0)], 149, 165); assert not rest
    rest = Sl.fill([(70 + 33 * j, x) for j in range(2) for x in sum(norm(j, False), [])], 70, 165)
    Sl.emit(A)
    A.stamp()
    h2_, b2 = norm(2, True); h3, b3 = norm(3, True)
    rest = ["s_nop 1" if x == "s_nop 0" else x for _, x in rest]
    if len(rest) >= 48:
        A.items(rest[:-48] + h2_ + norm(1, True)[1] + h3[:-1])
    else: A.items(h2_ + rest + h3[:-1])
    A.e("s_or_b64 s[56:57], s[56:57], s[58:59]\n" + h3[-1] + "\ns_or_b64 s[60:61], s[60:61], s[62:63]\ns_or_b64 s[56:57], s[56:57], s[60:61]")
    A.e(f"s_lshl2_add_u32 s14, s{sW}, {FLAG}\nv_mov_b32 v{NM+9}, s14\nv_mov_b32 v{NM+10}, {FLAG}")
    A.items(b2 + b3)
    A.wait(lg=("W", 0, 0))
    A.stamp()
    So, leftover = gen_oproj(A)
    So.sh[2].append("s_cmp_lg_u64 s[56:57], 0\ns_cselect_b32 s3, 1, 0"); So.sh[4].append(("s_mov_b32 s3, 1\n" if opt.get("force_fallback") else "") + f"s_andn2_b32 s3, s3, s{sPass}")
    So.va[9].append(f"v_mov_b32 v{NM+8}, s3"); So.mem[15].append(("lds", f"ds_write_b32 v{NM+9}, v{NM+8}", "fw"))
    for c in range(9):
        So.emit(A, 64 * c, 64 * c + 64)
        if A.stamping == 3: A.stamp()
    A.e("s_nop 7")
    for n in range(2):
        cv, sw, st = oepi(17, n)
        A.items(cv + ["s_nop 1"] + sw + st[0] + [st[1]])
    A.stamp()
    gen_tail(A, B, opt)
    A.label("L2_end")
    A.e("s_endpgm")
    A.L += B.L
    A.label("L2_fallback")
    A.wait_all(); A.e(f"s_nop 7\ns_barrier\ns_lshl_b32 s3, s{sW}, 12\nv_add_u32 v{vKV}, s3, v{vX}")
    init_kv_addr()
    for j in range(4): A.e(f"v_mov_b32 v{P0+j}, 0xff800000")
    A.e(f"s_mov_b32 s{sPass}, 1\ns_mov_b32 s{sT}, 0")
    A.label("L2_fb_loop")
    emit_dma(A, dma_kv_static(None, (0,), 2))
    A.wait_all(); A.e("s_barrier")
    A.items(kreads(0, "fk")); A.wait_all(); A.e("s_barrier")
    for j in range(4):
        for kt in range(4):
            for t in range(4):
                d = S0 + 4 * kt
                A.e(f"{MF} {v(d,4)}, {a(KF(kt,t),4)}, {v(Q(j,t),4)}, {'0' if t == 0 else v(d,4)}")
        A.e("s_nop 7")
        for i in range(8): A.e(f"v_max3_f32 v{P0+j}, v{P0+j}, v{S0+2*i}, v{S0+2*i+1}")
    A.e(f"s_add_u32 s{sT}, s{sT}, 16384\ns_cmp_lt_u32 s{sT}, {32*16384}\ns_cbranch_scc1 L2_fb_loop")
    xmax_to_negm(A, [P0 + j for j in range(4)], 0.0)
    for i in range(3): emit_dma(A, dma_kv_static(i))
    A.wait_all(); A.e("s_barrier")
    A.items(kreads(0, "fk")); pf_addr(A)
    for i in range(16): A.e(f"v_accvgpr_write_b32 a{aL+i}, 0")
    A.wait_all()
    A.e("s_branch L2_entry")
    A.label("L2_codeend")
    if opt.get("walk", 1): A.L = insert_pads(A.L, "L2_walkret", "L2_end")
    return A, dict(name=KNAME, grid=256, block=256, lds=LDS_BYTES, vgpr=512, acc=256)
```

```python
from asmlib import *
from layout import *

RING = 16384; SLOT = 36864; HALF = 16896; PIECE = 1056
ASB = 9216
SCR = 13824
FLAG = SCR
LDS_BYTES = RING + 4 * SLOT
BIAS = 64
vK, vV, vT, vT2, vKV, vWq, vWo, vX, vAS, vPt, vIdx = 1, 2, 3, 4, 5, 6, 7, 8, 9, 10, 11
vTmp = 12
S0 = 16; P0 = 32; NM = 48; Q0 = 64; O0 = 128
AS0 = 16; T0 = 32; X0 = 48
def O(j, dt): return O0 + (j * 8 + dt) * 4
def Q(j, t): return Q0 + (j * 4 + t) * 4
def X(c, n, kl): return X0 + ((c + 2) % 5) * 16 + (n * 2 + kl) * 4
aL = 0; aOne = 16; aK = 64; aV = 128
def KF(kt, t): return aK + (kt * 4 + t) * 4
def VF(buf, dt, u): return aV + buf * 64 + (dt * 2 + u) * 4
sK, sV, sWq, sWo, sXn, sWr, sPt = 16, 20, 24, 28, 32, 36, 40
sC, sWm, sDb = 16, 88, 60
sW4, sOff, sT, sBase, sDel, sCnt, sPass, sW, sG, sTb, sOff2 = 44, 45, 46, 47, 48, 49, 50, 51, 52, 53, 54
sWg, sWu, sWd, sXi, sOut, sWs, sPr = 64, 68, 72, 76, 80, 84, 88
sW9, sT8, sCap = 55, 96, 97
sH2 = 32
sSt = 24; sYp = 32
vFg = vWq
aDum = 63
MF = "v_mfma_f32_16x16x32_bf16"

def trd(dst, slot, off):
    base = vT if slot < 2 else vT2
    return f"ds_read_b64_tr_b16 {a(dst,2)}, v{base} offset:{(slot % 2) * SLOT + off}"

def dma_wq(c):
    slot = (c + 1) % 4; out = []
    for kl in range(2):
        for r in range(4):
            out.append(([f"s_add_u32 m0, s{sW4}, {slot*SLOT + kl*HALF + r*PIECE}", f"s_mov_b32 s{sOff}, {(64*c + 32*kl + r) * 8192}"],
                        ("vm", f"buffer_load_dwordx4 v{vWq}, {s(sWq,4)}, s{sOff} offen{OPT.get('wq_nt','')} lds", ("L", c))))
    return out
def dma_kv_static(i, halves=(0, 1), slot=None):
    slot = (i + 2) % 4 if slot is None else slot; out = []
    for h in halves:
        for j in range(4):
            pre = [f"s_add_u32 m0, s{sW4}, {slot*SLOT + h*HALF + 32*j}"]
            if i is not None and j == 0 and h == halves[0]: pre.append(f"s_mov_b32 s{sT}, {i*16384}")
            out.append((pre, ("vm", f"buffer_load_dwordx4 {'off' if OPT.get('tid', 1) else v(vKV)}, {s(sV if h else sK,4)}, s{sT}{'' if OPT.get('tid', 1) else ' offen'} offset:{1024*j}{OPT.get('kv_nt','')} lds", ("L", 9 + (i or 0)))))
    return out
def dma_kv_dyn(i, odd):
    out = []
    for h in range(2):
        for j in range(4):
            pre = [f"s_add_u32 m0, s{sBase}, {odd*SLOT + h*HALF + 32*j}"] + [f"s_add_u32 s{sT}, s{sT}, 16384"] * (h == 0 and j == 0)
            out.append((pre, ("vm", f"buffer_load_dwordx4 {'off' if OPT.get('tid', 1) else v(vKV)}, {s(sV if h else sK,4)}, s{sT}{'' if OPT.get('tid', 1) else ' offen'} offset:{1024*j}{OPT.get('kv_nt','')} lds", ("L", 9 + i))))
    return out
def dma_wo(c):
    slot = (c + 2) % 4; out = []
    for hi in range(2):
        for r in range(4):
            pre = [f"s_add_u32 m0, s{sW4}, {slot*SLOT + hi*HALF - 96*r}"]
            if r == 0: pre.append(f"s_mov_b32 s{sOff}, {c*128 + hi*128*1152}")
            out.append((pre, ("vm", f"buffer_load_dwordx4 v{vWo}, {s(sWo,4)}, s{sOff} offen offset:{1152*r}{OPT.get('wo_nt','')} lds", ("L", 41 + c))))
    return out
def FW(k): return 20 + 4 * k if k < 9 else aV + 4 * (k - 9)
def ld_ffn():
    out = []
    for m in range(3):
        for i in range(9):
            d = a(FW(9 * m + i), 4)
            if m < 2: out.append(([f"s_mov_b32 s{sOff2}, {i*16*9216}"], ("vm", f"buffer_load_dwordx4 {d}, v{vFg}, {s(sWu if m else sWg,4)}, s{sOff2} offen", "fw")))
            else: out.append(([f"s_add_u32 s{sOff2}, s{sW9}, {1024*i}"], ("vm", f"buffer_load_dwordx4 {d}, v{vX}, {s(sWd,4)}, s{sOff2} offen", "fw")))
    return out
def touch(vaddr, srd, off):
    return ([f"s_mov_b32 s{sOff2}, {off}"], f"buffer_load_dword a{aDum}, v{vaddr}, {s(srd,4)}, s{sOff2} offen")
def dmaL(n):
    return dma_wq(n) if n < 9 else (dma_kv_static(n - 9) if n < 41 else dma_wo(n - 41))
def emit_dma(A, lst):
    for pre, ld in lst:
        A.items(pre)
        if len(pre) == 1: A.e("s_nop 0")
        A.item(ld)
def xload(c):
    return [([f"s_mov_b32 s{sOff2}, {n*18432 + (2*c+kl)*1024}"],
             ("vm", f"buffer_load_dwordx4 {v(X(c,n,kl),4)}, {'off' if OPT.get('tidx', 1) else v(vX)}, {s(sXn,4)}, s{sOff2}{'' if OPT.get('tidx', 1) else ' offen'} sc1", ("X", c))) for n in range(2) for kl in range(2)]
def place_vm(Sc, g, item):
    pre, ld = item
    for k, p in enumerate(pre): Sc.sh[g - 1 + k].append(p)
    Sc.mem[g].append(ld)

def as_reads(c, q):
    kl, hf = q // 2, q % 2; d = AS0 + (q % 2) * 8; off = ASB + (2 * c + kl) * 256 + hf * 16
    return [("lds", f"ds_read_b128 {v(d,4)}, v{vAS} offset:{off}", ("AS", c, q)), ("lds", f"ds_read_b128 {v(d+4,4)}, v{vAS} offset:{off+32}", ("AS", c, q))]
def modulate(c, q):
    kl, hf = q // 2, q % 2; d = AS0 + (q % 2) * 8; out = []
    for n in range(2):
        x = X(c, n, kl) + 2 * hf; t = T0 + 4 * n
        for i in range(4):
            out.append(f"v_fma_mix_f32 v{t+i}, v{x+i//2}, v{d+i}, v{d+4+i} op_sel:[{i%2},0,0] op_sel_hi:[1,0,0]")
        out += [f"v_cvt_pk_bf16_f32 v{x}, v{t}, v{t+1}", f"v_cvt_pk_bf16_f32 v{x+1}, v{t+2}, v{t+3}"]
    return out

def kreads(off, tag): return [("lds", f"ds_read_b128 {a(KF(kt,t),4)}, v{vK} offset:{off + kt*256 + t*64}", (tag, kt)) for kt in range(4) for t in range(4)]
def vreads(buf, off, tag): return [("lds", f"ds_read_b64_tr_b16 {a(VF(buf,dt,u)+2*b,2)}, v{vV} offset:{off + (2*u+b)*256 + dt*32}", tag) for dt in range(8) for u in range(2) for b in range(2)]

QD = 3
def AF(grp, kl): return aV + 64 + (grp % 8) * 8 + kl * 4
def qreads(G):
    c, mt = divmod(G, 16); slot = (c + 1) % 4
    return [("lds", trd(AF(G, kl) + 2 * b, slot, kl * HALF + b * 512 + mt * 32), ("A", G)) for kl in range(2) for b in range(2)]

def gen_qproj(A):
    Sc = Sched()
    for c in range(9):
        for mt in range(16):
            G = c * 16 + mt
            for n in range(2):
                d = O(2 * (mt // 8) + n, mt % 8)
                for kl in range(2):
                    cc = "0" if c == 0 and kl == 0 else v(d, 4)
                    Sc.mfma(f"{MF} {v(d,4)}, {a(AF(G,kl),4)}, {v(X(c,n,kl),4)}, {cc}")
    N = len(Sc.mf); vmg = set()
    leftover = []
    for k, it in enumerate(dmaL(2)):
        g = 3 + 4 * k; place_vm(Sc, g, it); vmg.add(g)
    for c in range(9):
        gb = 64 * (c + 1) - 4 * QD - 1 if c < 8 else OPT.get("gb8", 551)
        Sc.sh[gb] += [("wait", ("L", c + 1), None), "s_barrier"]
        for k, it in enumerate(dmaL(c + 3)):
            g = gb + 4 + 4 * k
            if g < N: place_vm(Sc, g, it); vmg.add(g)
            else: leftover.append(it)
    for c in range(6):
        for k, it in enumerate(xload(c + 3)):
            g = 64 * c + 35 + 4 * k
            assert g not in vmg
            place_vm(Sc, g, it); vmg.add(g)
    for G in range(144):
        if G > 0: Sc.sh[4 * G - 1].append(("wait", None, ("A", G)))
        if G + QD < 144:
            rd = qreads(G + QD); gs = [g for g in range(4 * G, 4 * G + 4) if g not in vmg]
            if len(gs) == 3: gs = [gs[0], gs[1], gs[1], gs[2]]
            for g, r in zip(gs, rd): Sc.mem[g].append(r)
    for c in range(8):
        Sc.sh[64 * c].append(("wait", ("X", c + 1), None))
        for q in range(4):
            w0 = 64 * c + 16 * q
            nxt = as_reads(c + 1, q + 1) if q < 3 else (as_reads(c + 2, 0) if c < 7 else [])
            items = modulate(c + 1, q)
            Sc.sh[w0].append(("wait", None, ("AS", c + 1, q)))
            free = [g for g in range(w0, w0 + 16) if g not in vmg and len(Sc.mem[g]) < 2]
            for r in nxt:
                g = free.pop(0); Sc.mem[g].append(r)
            over = len(items) - len(free)
            odd = sorted(range(w0 + 1, w0 + 16, 2), key=lambda g: (g in vmg, -g))
            slots = sorted(free + odd[:over] if over > 0 else free); assert len(slots) >= len(items)
            for g, it in zip(slots, items): Sc.va[g].append(it)
    return Sc, leftover, vmg

def qconvert(j, t):
    o = O(j, 2 * t); q = Q(j, t)
    return [f"v_cvt_pk_bf16_f32 v{q+i}, v{o+2*i}, v{o+2*i+1}" for i in range(4)], [f"v_permlane32_swap_b32 v{q}, v{q+2}", f"v_permlane32_swap_b32 v{q+1}, v{q+3}"]

def pf_addr(A):
    A.e(f"v_lshrrev_b32 v14, 2, v0\ns_mul_i32 s3, s{sW}, 144\nv_add_u32 v14, s3, v14\nv_mul_u32_u24 v14, 9216, v14\nv_and_b32 v15, 3, v0\nv_lshl_add_u32 v{vFg}, v15, 4, v14")
    A.e(f"s_lshr_b32 s3, s2, 3\ns_lshl2_add_u32 s3, s3, s{sW}\ns_and_b32 s15, s2, 7\nv_lshlrev_b32 v{vAS}, 7, v0")
    A.e(f"s_mul_i32 s14, s3, 9\ns_lshr_b32 s14, s14, 1\nv_min_u32 v15, 44, v0\nv_mul_u32_u24 v12, 7282, v15\nv_lshrrev_b32 v12, 16, v12\nv_mul_u32_u24 v13, 63, v12\nv_add_u32 v12, v15, v13")
    A.e(f"s_mul_i32 s14, s14, 72\ns_mul_i32 s56, s15, 9\ns_add_u32 s14, s14, s56\nv_add_lshl_u32 v12, s14, v12, 7")
    A.e(f"s_mul_i32 s14, s3, 81\ns_lshr_b32 s14, s14, 1\ns_mul_i32 s56, s15, 5184\ns_add_u32 s14, s14, s56\nv_min_u32 v13, 40, v0\nv_add_lshl_u32 v13, s14, v13, 7")
    A.e(f"s_mul_i32 s14, s3, 72\ns_andn2_b32 s56, s{sG}, 3\ns_mul_i32 s56, s56, 2304\ns_add_u32 s14, s14, s56\nv_min_u32 v14, 35, v0\nv_add_lshl_u32 v14, s14, v14, 7\nv_add_u32 v15, 4608, v14")

def xmax_to_negm(A, src, bias):
    t = P0 + 8
    for op in ("v_permlane16_swap_b32", "v_permlane32_swap_b32"):
        for j in range(4): A.e(f"v_mov_b32 v{t+j}, v{src[j]}")
        for j in range(4): A.e(f"{op} v{t+j}, v{src[j]}")
        for j in range(4): A.e(f"v_max_f32 v{src[j]}, v{src[j]}, v{t+j}")
    for j in range(4):
        for i in range(4): A.e(f"v_sub_f32 v{NM+4*j+i}, {hex(f2u(-float(bias)))}, v{src[j]}")

def gen_stage(i, kind, dma, opt, extra=(), xstep=2, bar=2, dgap=None):
    par = i % 2; Sc = Sched(); first = kind == "first"; last = kind == "last"
    nun = 5 if last else 4
    for j in range(nun):
        for kt in range(4):
            for t in range(4):
                d = S0 + 4 * kt
                Sc.mfma(None if j == 4 else f"{MF} {v(d,4)}, {a(KF(kt,t),4)}, {v(Q(j,t),4)}, {v(NM+4*j,4) if t == 0 else v(d,4)}")
        jp = (j - 1) % 4; vb = par if j > 0 else 1 - par; p = P0 + 8 * (jp % 2)
        skip = first and j == 0
        for dt in range(8):
            for u in range(2):
                d = O(jp, dt); cc = "0" if first and u == 0 else v(d, 4)
                Sc.mfma(None if skip else f"{MF} {v(d,4)}, {a(VF(vb,dt,u),4)}, {v(p+4*u,4)}, {cc}")
        Sc.mfma(None if skip else f"v_smfmac_f32_16x16x64_bf16 {a(aL+4*jp,4)}, {a(aOne,4)}, {v(p,8)}, v{vIdx}")
        b = 33 * j
        for x in range(16):
            prev = x < 4
            if (prev and skip) or (j == 4 and not prev): continue
            e = (x - 4) % 16
            Sc.va[b + 2 * x].append(f"v_exp_f32 v{S0+e}, v{S0+e}")
        for k in range(8):
            prev = k < 3; pr = (k + 5) % 8
            if (prev and skip) or (j == 4 and not prev): continue
            pb = P0 + 8 * ((j - 1 if prev else j) % 2)
            if opt.get("perm", 1): Sc.va[b + 4 * k + 1].append(f"v_perm_b32 v{pb+pr}, v{S0+2*pr+1}, v{S0+2*pr}, s100")
            else: Sc.va[b + 4 * k + 1].append(f"v_cvt_pk_bf16_f32 v{pb+pr}, v{S0+2*pr}, v{S0+2*pr+1}")
    if first:
        for g in range(16, 33):
            if g % 2 == 0: Sc.va[g].append("s_nop 0")
        Sc.sh[16].append("s_nop 3"); Sc.sh[8].append("s_nop 1")
    if last:
        for g in range(33 * 4, 33 * 4 + 8, 2): Sc.va[g].append("s_nop 0")
        Sc.va[33 * 4 + 15].append("s_nop 1")
    for kt in range(1, 4): Sc.sh[4 * kt - 1].append(("wait", None, (("K", i), kt)))
    cand = [33 * j + r for j in range(4 if last else 3) for r in range(3, 32, 4)]
    gs = cand[:len(dma)] + cand[len(dma)::xstep]
    if dgap:
        gs = cand[4:4 + len(dma)] + cand[max(8, 4 + len(dma))::xstep]
        if len(dma) == 16: gs = cand[4:12] + cand[16:24]
        Sc.sh[15] += [("wait", ("L", 9 + i + 2), None), "s_barrier"]
    dma = list(dma) + list(extra)
    vmg = set()
    for g, it in zip(gs, dma): place_vm(Sc, g, it); vmg.add(g)
    assert len(vmg) == len(dma)
    if kind == "A":
        Sc.va[1].append(f"v_add_u32 v{vK}, s{sDel}, v{vK}"); Sc.va[5].append(f"v_add_u32 v{vV}, s{sDel}, v{vV}")
        Sc.sh[0].append(f"s_sub_u32 s{sBase}, s{sBase}, s{sDel}")
        Sc.sh[8].append(f"s_sub_u32 s{sDel}, 0, s{sDel}")
    if not last:
        off = 0 if kind == "A" else SLOT
        if first:
            rest = Sc.fill([(0, x) for x in vreads(0, 0, ("V", 0))], 0, 16)
            for _, x in rest: Sc.mem[16].append(x)
            Sc.sh[47].append(("wait", None, ("V", 0)))
        free = [33 * j + r for j in range(3) for r in list(range(1, 32, 2)) + [32] if 33 * j + r >= 17 and 33 * j + r not in vmg]
        vr = vreads(1 - par, off, ("V", i + 1))
        if len(free) < 32:
            two = [g for g in free if not Sc.va[g]]
            free = sorted(free + two[len(two) - (32 - len(free)):]); assert len(free) == 32
        for n, r in enumerate(vr):
            assert free[n] >= 16 + n // 2
            Sc.mem[free[n]].append(r)
        for n, r in enumerate(kreads(off, ("K", i + 1))): Sc.mem[99 + 2 * n + 1].append(r)
        if bar: Sc.sh[131] += [("wait", ("L", 9 + i + bar), (("K", i + 1), 0)), "s_barrier"]
        else: Sc.sh[131].append(("wait", None, (("K", i + 1), 0)))
    return Sc

OA = 16; OR = 48
def OB(n, u): return O(2 * (u // 4) + n, 2 * (u % 4))
def WF(grp, u): return aK + (grp % 2) * 32 + u * 4
def oreads(G):
    c, ntl = divmod(G, 4); slot = (c + 2) % 4
    return [("lds", trd(WF(G, u) + 2 * b, slot, (u // 4) * HALF + (2 * (u % 4) + b) * 128 + ntl * 32), ("W", G, u // 2)) for u in range(8) for b in range(2)]
def oacc(G, n): return OA + ((G % 4) * 2 + n) * 4
def oepi(pair, n):
    r = OR + 4 * n; x, y = oacc(2 * pair, n), oacc(2 * pair + 1, n); c, aa = divmod(pair, 2)
    cv = [f"v_cvt_pk_bf16_f32 v{r}, v{x}, v{x+1}", f"v_cvt_pk_bf16_f32 v{r+1}, v{x+2}, v{x+3}", f"v_cvt_pk_bf16_f32 v{r+2}, v{y}, v{y+1}", f"v_cvt_pk_bf16_f32 v{r+3}, v{y+2}, v{y+3}"]
    sw = [f"v_permlane32_swap_b32 v{r}, v{r+2}", f"v_permlane32_swap_b32 v{r+1}, v{r+3}"]
    st = ([f"s_mov_b32 s{sOff2}, {n*294912 + c*1024}"], ("vm", f"buffer_store_dwordx4 {v(r,4)}, v{vPt}, {s(sPt,4)}, s{sOff2} offen offset:{aa*512}{OPT.get('st_flags', ' sc1')}", "st"))
    return cv, sw, st

vXA, vXC = vK, vV
XR = 64
def HOLE(k): return O0 + 8 * k + 4
def xi_loads(ob):
    return [([], ("vm", f"buffer_load_dwordx4 {v(XR+4*i,4)}, v{vXC if i == 2 else vXA}, {s(sXi,4)}, 0 offen offset:{ob if i == 1 else 0}", "xi")) for i in range(3)]
vWA, vWC, vPA, vPB, vFa, vFl, vOne = 12, 13, 5, 59, 6, 9, 15
sFl, sRem, sQ, sRdyA, sFs, sPa = sBase, sDel, sT, sCnt, 56, 28
def WR(q): return 224 + 8 * (q // 4) + q % 4
def wr_loads():
    return [([], ("vm", f"buffer_load_dwordx4 {v(WR(4*i),4)}, v{vWC if i == 2 else vWA}, {s(sWr,4)}, 0 offen offset:{512*i}", "xi")) for i in range(3)]
def NV(r, h): return 76 + 12 * h + 4 * r
def mv_loads():
    return [([f"s_movk_i32 s{sOff}, {4608 + 13824*h + 4096*r}"], ("vm", f"buffer_load_dwordx4 {v(NV(r,h),4)}, v{vPB if r == 2 else vPA}, {s(sWs,4)}, s{sOff} offen sc1", "xi")) for r in range(3) for h in range(2)]
def item_addr(A, ma, mc, oc, t=14):
    A.e(f"s_mul_i32 s3, s{sW}, {ma}\nv_lshrrev_b32 v{t}, 3, v0\nv_lshl_add_u32 v{vWA}, v{t}, 4, s3\nv_and_b32 v{t}, 1, v{t}")
    if mc != ma: A.e(f"s_mul_i32 s3, s{sW}, {mc}")
    A.e(f"v_lshl_add_u32 v{vWC}, v{t}, 4, s3")
    A.e(f"v_and_b32 v{t}, 7, v0\nv_mul_u32_u24 v{t}, 1152, v{t}\nv_add_u32 v{vXA}, v{t}, v{vWA}\nv_add_u32 v{vXC}, v{t}, v{vWC}\nv_add_u32 v{vXC}, {oc}, v{vXC}")
def ready_mask(d):
    return ["s_lshr_b32 s3, vcc_lo, 1", "s_and_b32 s3, s3, vcc_lo", "s_lshr_b32 s14, s3, 2", f"s_and_b32 s{d}, s3, s14"]

vF2, vF0, vF1, vG0, vG1 = 104, 105, 106, 110, 111
aF = 64
def fw_write(k): return ("lds", f"ds_write_b128 v{(vF1, vF0, vF2)[k//9]}, {a(FW(k),4)} offset:{((3 + k//9) % 2)*SLOT + 1024*(k%9)}", "fww")
def fa_reads():
    far = [("lds", f"ds_read_b64_tr_b16 {a(aF+4*kk+2*b,2)}, v{vG0} offset:{2048*kk + 256*b}", "fa") for kk in range(18) for b in range(2)]
    return far + [("lds", f"ds_read_b64_tr_b16 {a(aF+72+4*nt+2*b,2)}, v{vG1} offset:{32*nt + 4608*b}", "fa") for nt in range(9) for b in range(2)]

def gen_oproj(A):
    Sc = Sched()
    for G in range(36):
        for n in range(2):
            for u in range(8):
                d = oacc(G, n)
                Sc.mfma(f"{MF} {v(d,4)}, {a(WF(G,u),4)}, {v(OB(n,u),4)}, {'0' if u == 0 else v(d,4)}")
    N = len(Sc.mf); vmg = set(); leftover = []
    st = OPT.get("o_step", 2)
    for c in range(8):
        gb = 64 * c + 47
        Sc.sh[gb] += [("wait", ("L", 41 + c + 1), "fw"), "s_barrier"]
        if c + 3 <= 8:
            for k, it in enumerate(dma_wo(c + 3)):
                g = gb + 2 + st * k; place_vm(Sc, g, it); vmg.add(g)
    misc = ld_ffn()[9 + OPT.get("nup", 16):]
    gl = list(range(3, 32, 4)); assert len(gl) >= len(misc)
    for g, it in zip(gl, misc): place_vm(Sc, g, it); vmg.add(g)
    Sc.sh[440] += [f"s_sub_u32 s{sPa}, s{sPr}, 4096", f"s_subb_u32 s{sPa+1}, s{sPr+1}, 0"]; Sc.sh[441].append(f"s_mov_b32 s{sPa+2}, 147456")
    if OPT.get("fo", 0):
        Sc.sh[64 * 8 + 15].append("s_barrier")
        for m, g0 in enumerate((64 * 6 + 48, 64 * 7 + 48, 64 * 8 + 16)):
            gs_ = [g0 + 2 * k for k in range(8)] + [g0 + 32]
            for k, g in enumerate(gs_): Sc.mem[g].append(fw_write(9 * m + k)); vmg.add(g)
    swg = set()
    for p in range(17):
        for n in range(2):
            b = 16 * (2 * p + 2) + 8 * n
            cv, sw, st = oepi(p, n)
            for k, x in enumerate(cv): Sc.va[b + k].append(x)
            Sc.va[b + 5].append(sw[0]); Sc.va[b + 6].append(sw[1]); swg |= {b + 5, b + 6}
            Sc.sh[b + 4].append(st[0][0]); Sc.va[b + 7].append(st[1])
    for G in range(36):
        for h in range(4):
            g = 16 * G + 2 * h - 1
            if g >= 0: Sc.sh[g].append(("wait", None, ("W", G, h)))
        if G + 1 < 36:
            gs = [g for g in range(16 * G, 16 * G + 16) if g not in vmg and g not in swg]
            two = [g for g in gs if not Sc.va[g]]
            extra = 16 - len(gs)
            if extra > len(two): two = two + [g for g in range(16 * G + 7, 16 * G + 16, 8)] * 4
            gs = sorted(gs + two[:extra]); assert len(gs) == 16
            for g, r in zip(gs, oreads(G + 1)): Sc.mem[g].append(r)
    f = NM + 12
    Sc.mem[47].append(("lds", f"ds_read_b128 {v(f,4)}, v{NM+10}", "fr"))
    Sc.sh[55].append(("wait", None, "fr"))
    Sc.va[55] += [f"v_or3_b32 v{f}, v{f}, v{f+1}, v{f+2}", f"v_or_b32 v{f}, v{f}, v{f+3}"]
    Sc.va[63].append(f"v_readfirstlane_b32 s3, v{f}")
    Sc.sh[65].append("s_cmp_lg_u32 s3, 0"); Sc.sh[66].append("s_cbranch_scc1 L2_fallback")
    T = Asm(); item_addr(T, 128, 32, 1024)
    T.e(f"s_lshl_b32 s14, s{sW}, 10\nv_add_u32 v{vPA}, s14, v{vX}\nv_and_b32 v{vPB}, 0xf0, v{vX}\ns_lshl_b32 s14, s{sW}, 8\nv_add_u32 v{vPB}, s14, v{vPB}")
    T.e(f"v_and_b32 v{vFa}, 15, v0\nv_lshlrev_b32 v{vFa}, 8, v{vFa}\nv_min_u32 v{vOne}, 1, v0\nv_lshlrev_b32 v{vOne}, 30, v{vOne}")
    T.e(f"s_lshl_b32 s15, s{sTb}, 14\ns_add_u32 s15, s15, {WS_F1}\ns_and_b32 s14, s{sG}, 12\ns_lshl_b32 s14, s14, 10\ns_add_u32 s{sFl}, s15, s14")
    T.e(f"s_lshl4_add_u32 s3, s{sW}, s{sG}\ns_lshl_b32 s3, s3, 8\ns_add_u32 s{sFs}, s3, s15")
    T.e(f"s_add_u32 s14, s{sW9}, {RING}\nv_add_u32 v{vF2}, s14, v{vX}\nv_and_b32 v14, 32, v0\nv_xor_b32 v{vF0}, v14, v{vF2}\nv_add_u32 v{vF1}, {2*SLOT}, v{vF0}")
    T.e(f"v_lshrrev_b32 v{vG0}, 4, v0\nv_bfe_u32 v14, v0, 2, 2\nv_lshl_add_u32 v{vG0}, v{vG0}, 3, v14\nv_and_b32 v14, 3, v0\nv_mul_u32_u24 v{vG1}, 1152, v{vG0}\nv_lshlrev_b32 v{vG0}, 6, v{vG0}")
    T.e(f"v_lshl_add_u32 v{vG0}, v14, 3, v{vG0}\nv_lshl_add_u32 v{vG1}, v14, 3, v{vG1}\ns_lshr_b32 s3, s{sW}, 1\ns_xor_b32 s3, s3, 1\ns_mul_i32 s3, s3, {3*SLOT}\ns_and_b32 s14, s{sW}, 1\ns_lshl_b32 s14, s14, 5")
    T.e(f"s_add_u32 s3, s3, s14\ns_add_u32 s3, s3, {RING}\nv_add_u32 v{vG0}, s3, v{vG0}\nv_and_b32 v14, 16, v0\nv_lshlrev_b32 v14, 1, v14\nv_xor_b32 v{vG0}, v14, v{vG0}\ns_mul_i32 s3, s{sW}, 288\ns_add_u32 s3, s3, {RING + SLOT}\nv_add_u32 v{vG1}, s3, v{vG1}")
    rest = Sc.fill([(0, x) for x in T.L], 80, 400); assert not rest
    return Sc, leftover

def xsum8(A, regs, tmp):
    A.e("s_nop 1")
    for x in regs: A.e(f"v_add_f32_dpp v{x}, v{x}, v{x} row_ror:8 row_mask:0xf bank_mask:0xf")
    xsumG(A, regs, tmp)
def xsumG(A, regs, tmp):
    for op in ("v_permlane16_swap_b32", "v_permlane32_swap_b32"):
        for k, x in enumerate(regs): A.e(f"v_mov_b32 v{tmp+k}, v{x}")
        if len(regs) < 3: A.e(f"s_nop {2 - len(regs)}")
        for k, x in enumerate(regs): A.e(f"{op} v{tmp+k}, v{x}")
        for k, x in enumerate(regs): A.e(f"v_add_f32 v{x}, v{x}, v{tmp+k}")
def merge2(A, m1, m2, t1, t2):
    A.e(f"v_max_u32 v{m2}, v{m2}, v{t2}\nv_med3_u32 v{m2}, v{m1}, v{t1}, v{m2}\nv_max_u32 v{m1}, v{m1}, v{t1}")
def top2_lanes(A, m1, m2, t1, t2, rors, swaps):
    for sh in rors:
        A.e(f"s_nop 1\nv_mov_b32_dpp v{t1}, v{m1} row_ror:{sh} row_mask:0xf bank_mask:0xf\nv_mov_b32_dpp v{t2}, v{m2} row_ror:{sh} row_mask:0xf bank_mask:0xf")
        merge2(A, m1, m2, t1, t2)
    for op in swaps:
        A.e(f"v_mov_b32 v{t1}, v{m1}\nv_mov_b32 v{t2}, v{m2}\ns_nop 0\n{op} v{t1}, v{m1}\n{op} v{t2}, v{m2}")
        merge2(A, m1, m2, t1, t2)
def dot24(A, d, t, x, y):
    for acc, lo, hi in ((d, 0, 16), (t, 16, 24)):
        for i in range(lo, hi):
            if y is None:
                if i == lo: continue
                A.e(f"v_add_f32 v{acc}, v{x+lo if i == lo+1 else acc}, v{x+i}")
            else: A.e(f"{'v_mul_f32' if i == lo else 'v_fmac_f32'} v{acc}, v{x+i}, v{y+i}")
    A.e(f"v_fmac_f32 v{d}, 0x3e800000, v{t}")
def dot24p(A, d, t, x, y):
    for acc, lo, hi in ((t, 0, 16), (t + 2, 16, 24)):
        for i in range(lo, hi, 2):
            if y is None:
                if i > lo: A.e(f"v_pk_add_f32 {v(acc,2)}, {v(x+lo if i == lo+2 else acc,2)}, {v(x+i,2)}")
            elif i == lo: A.e(f"v_pk_mul_f32 {v(acc,2)}, {v(x+i,2)}, {v(y+i,2)}")
            else: A.e(f"v_pk_fma_f32 {v(acc,2)}, {v(x+i,2)}, {v(y+i,2)}, {v(acc,2)}")
    A.e(f"v_add_f32 v{d}, v{t}, v{t+1}\nv_add_f32 v{t+2}, v{t+2}, v{t+3}\nv_fmac_f32 v{d}, 0x3e800000, v{t+2}")
def poll(A, name, loads, test, sleep=1, shrink=0):
    A.e(f"s_mov_b32 s{sCap}, 0x20000")
    A.label(name)
    A.e(loads); A.wait_all(lg=False); A.e(test)
    A.e(f"s_sub_u32 s{sCap}, s{sCap}, 1\ns_cselect_b64 vcc, 0, vcc\ns_cmp_eq_u64 vcc, 0\ns_cbranch_scc1 {name}_ok")
    if shrink: A.e("s_mov_b64 exec, vcc")
    if sleep: A.e(f"s_sleep {sleep}")
    A.e(f"s_branch {name}")
    A.label(name + "_ok")
    if shrink: A.e("s_mov_b64 exec, -1")

def gen_tail(A, B, opt):
    ACC, GA, U, TM, PL = 16, 40, 76, 100, 112
    vMA, vMC, vPC = 3, 4, 7
    TB = RING + 2 * SLOT
    ST = SCR + 256
    def acc(dst, src, first):
        for q in range(4):
            if first: A.e(f"v_lshlrev_b32 v{dst+2*q}, 16, v{src+q}\nv_and_b32 v{dst+2*q+1}, 0xffff0000, v{src+q}")
            else:
                t = TM + 2 * (q % 2)
                A.e(f"v_lshlrev_b32 v{t}, 16, v{src+q}\nv_and_b32 v{t+1}, 0xffff0000, v{src+q}\nv_pk_add_f32 {v(dst+2*q,2)}, {v(dst+2*q,2)}, {v(t,2)}")
    fl = f"buffer_load_dword v{vFl}, v{vFa}, {s(sWs,4)}, s{sFl} offen sc1"
    A.vmem(fl, ("fl", 0))
    misc = mv_loads() + wr_loads() + xi_loads(512); nm = opt.get("nm", 12)
    for pre, ld in misc[:nm]: A.items(pre + [ld])
    far = fa_reads()
    if opt.get("fo", 0) == 1: A.wait(lg="fww"); A.e("s_barrier"); A.items(far[:opt.get("nf0", 54)]); far = far[opt.get("nf0", 54):]
    A.wait(vm="st")
    A.vmem(f"buffer_store_dword v{vT}, v{vOne}, {s(sWs,4)}, s{sFs} offen sc1")
    A.e(f"s_movk_i32 s{sRem}, 0x1111\nv_lshrrev_b32 v15, 4, v0\nv_mul_u32_u24 v15, 9216, v15\nv_add_u32 v15, 4096, v15\nv_add_u32 v{vPC}, v{vPB}, v15")
    A.stamp()
    ready = f"v_cmp_ne_u32 vcc, 0, v{vFl}\ns_nop 0\n" + "\n".join(ready_mask(3)) + f"\ns_and_b32 s3, s3, s{sRem}"
    n0 = opt.get("n0", 10)
    def choose(i):
        if A.stamping == 5 and i: A.stamp()
        A.wait(vm=("fl", i))
        A.e(ready + f"\ns_cbranch_scc0 L2_g{i}s"); A.label(f"L2_g{i}r")
        A.e(f"s_ff1_i32_b32 s3, s3\ns_bitset0_b32 s{sRem}, s3\ns_mul_i32 s{sQ}, s3, 9216")
        B.label(f"L2_g{i}s")
        poll(B, f"L2_g{i}", fl, ready + f"\ns_cselect_b64 vcc, 0, -1", opt.get("sl1", 1))
        B.e(f"s_cmp_eq_u32 s3, 0\ns_cselect_b32 s3, s{sRem}, s3\ns_branch L2_g{i}r")
        if i == 0 or A.stamping == 5: A.stamp()
        if n0 // 5 - 1 <= i < 3: A.vmem(fl, ("fl", i + 1))
    pend = []
    for i in range(4):
        R0 = PL + 36 * i
        pend.append([lambda i=i: choose(i), ("vm", f"buffer_load_dwordx4 {v(R0,4)}, v{vPC}, {s(sPr,4)}, s{sQ} offen{OPT.get('pl', ' sc1')}", ("c", i))])
        for g in range(4):
            pend.append([f"s_add_u32 s{sQ}, s{sQ}, 9216"] * (g > 0) + [("vm", f"buffer_load_dwordx4 {v(R0+4+8*g+4*h,4)}, v{vPA}, {s(sPa if h else sPr,4)}, s{sQ} offen{OPT.get('pl', ' sc1')}", ("p", i, g, h)) for h in range(2)])
    win = opt.get("win", 99)
    def pace(free=False, step=None):
        if step is not None and opt.get("burst", 0):
            while pend and (20 - len(pend)) // 5 * 5 <= step + opt.get("off", 3): A.items(pend.pop(0))
        elif pend and (free or (20 - len(pend) < opt.get("n1", 10) if step is None else 20 - len(pend) <= step + opt.get("off", 3))):
            if len(A.vm) > win and not free:
                A.e(f"s_waitcnt vmcnt({win})"); del A.vm[:len(A.vm) - win]
            A.items(pend.pop(0))
        for _ in range(opt.get("nfw", 2)):
            if fww: A.item(fww.pop(0))
    fww = []
    for k in range(n0):
        pace(True)
        if k == opt.get("mpos", 0):
            for pre, ld in misc[nm:]: A.items(pre + [ld])
    A.wait(vm="xi")
    nv = [NV(r, h) + k for r in range(3) for h in range(2) for k in range(4)]
    A.e(f"v_mov_b32 v14, v{vWC}")
    tree2 = f"v_max_u32 v13, v{nv[0]}, v{nv[1]}\n" + "\n".join(f"v_max3_u32 v13, v13, v{nv[2*k]}, v{nv[2*k+1]}" for k in range(1, 12)) + "\nv_cmp_eq_u32 vcc, -1, v13"
    A.e(tree2 + "\ns_nop 0\ns_cmp_lg_u64 vcc, 0\ns_cbranch_scc1 L2_pns"); A.label("L2_pnr")
    B.label("L2_pns"); poll(B, "L2_pn", "\n".join(pre[0] + "\n" + ld[1] for pre, ld in mv_loads()), tree2); B.e("s_branch L2_pnr")
    for r in range(3):
        for k in (0, 2): A.e(f"v_pk_add_f32 {v(U+4*r+k,2)}, {v(NV(r,0)+k,2)}, {v(NV(r,1)+k,2)}")
        A.lds(f"ds_write_b128 v{vPB if r == 2 else vPA}, {v(U+4*r,4)} offset:{4096*r}", "mv")
    A.wait(lg="mv")
    A.e("s_barrier")
    if not opt.get("fo", 0): fww += [fw_write(k) for k in range(27)]
    A.e(f"v_lshlrev_b32 v{vMA}, 1, v{vWA}\nv_lshlrev_b32 v{vMC}, 1, v14")
    def vec(m, d, tag):
        for i in range(3):
            for h in range(2): A.lds(f"ds_read_b128 {v(d+8*i+4*h,4)}, v{vMC if i == 2 else vMA} offset:{m*2304 + 1024*i + 16*h}", tag)
    vec(2, U, "cb"); vec(1, GA, "sb")
    pace()
    A.wait(lg="sb")
    for q in range(12):
        t = 12 + 2 * (q % 2)
        A.e(f"v_lshlrev_b32 v{t}, 16, v{WR(q)}\nv_and_b32 v{t+1}, 0xffff0000, v{WR(q)}\nv_pk_mul_f32 {v(U+2*q,2)}, {v(U+2*q,2)}, {v(t,2)}\nv_pk_mul_f32 {v(GA+2*q,2)}, {v(GA+2*q,2)}, {v(t,2)}")
        if q == 5: pace()
    pace()
    dot24p(A, TM, 12, U, None); dot24p(A, TM + 1, 12, GA, None)
    vec(0, GA, "ga")
    pace()
    xsum8(A, [TM, TM + 1], TM + 2)
    A.e(f"v_and_b32 v14, 7, v0\nv_lshlrev_b32 v11, 4, v14\nv_add_u32 v11, {ST}, v11\ns_lshl_b32 s3, s{sW}, 2\nv_add_u32 v10, s3, v11")
    A.lds(f"ds_write_b32 v10, v{TM} offset:384", "ut"); A.lds(f"ds_write_b32 v10, v{TM+1} offset:512", "ut")
    vR0, vR1, vR2 = TM + 7, TM + 8, TM + 9
    A.e(f"v_lshl_add_u32 v{vXA}, v14, 4, v{vXA}\nv_lshl_add_u32 v{vXC}, v14, 4, v{vXC}\nv_add_u32 v{vXA}, {TB}, v{vXA}\nv_add_u32 v{vXC}, {TB}, v{vXC}")
    A.e(f"s_and_b32 s14, s{sW}, 1\ns_mul_i32 s14, s14, 9344\ns_add_u32 s14, s14, {TB}\nv_add_u32 v{vR0}, s14, v{vX}\nv_lshrrev_b32 v15, 3, v0\nv_mul_u32_u24 v12, {1152-128}, v15\nv_add_u32 v{vR2}, v12, v{vX}")
    A.e(f"v_lshl_add_u32 v12, v15, 4, v12\nv_add_u32 v{vR1}, v12, v{vR0}")
    A.e(f"s_mul_i32 s3, s{sT8}, 9216\ns_cmp_eq_u32 s{sW}, 3\ns_cselect_b32 s3, 0, s3\ns_cselect_b64 {s(sSt,2)}, {s(sH2,2)}, {s(sOut,2)}")
    A.srd(sSt, sSt, 9216, "s3")
    pace()
    A.wait(lg="ut")
    CB, SB, GB, D = PL, PL + 24, PL + 48, PL + 72
    KV, KA = XR, XR + 4
    for i in range(4):
        R0 = PL + 36 * i
        A.wait(vm=("c", i)); pace(step=5 * i); acc(ACC + 16, R0, i == 0)
        if i == 2:
            vec(2, CB, "m"); vec(1, SB, "m"); vec(3, GB, "m")
        if i == 3:
            A.e(f"s_lshl_b32 s3, s{sT8}, 3\ns_sub_u32 s3, 0xfff, s3\nv_and_b32 v{vFa}, 7, v0\nv_sub_u32 v{vFa}, s3, v{vFa}\ns_mov_b32 s57, 0xfffff000")
            A.e(f"s_mul_i32 s58, s{sT8}, {KS}\ns_add_u32 s58, s58, {WS_KEY}\ns_xor_b32 s3, s{sW}, 2\nv_or_b32 v{vFl}, s3, v0\nv_min_u32 v{vFl}, 1, v{vFl}\nv_lshlrev_b32 v{vFl}, 30, v{vFl}")
            xsumG(A, list(range(ACC + 16, ACC + 24)), D + 24)
            for q in range(12): A.e(f"v_lshlrev_b32 v{D+2*q}, 16, v{XR+q}\nv_and_b32 v{D+2*q+1}, 0xffff0000, v{XR+q}")
            A.e(f"s_cmp_lt_u32 s2, 180\ns_cselect_b32 s3, 2, 0\ns_cmp_lt_u32 s{sW}, s3\ns_cselect_b32 s3, 0, 0x40000000\nv_mul_u32_u24 v{KA}, {KS}, v0\nv_or_b32 v{KA}, s3, v{KA}")
            A.e(f"s_mul_i32 s15, s{sW}, {128*KS}\ns_add_u32 s15, s15, {WS_KEY}\ns_add_u32 s59, s15, {64*KS}\ns_lshl_b32 s3, s{sW}, 7\ns_sub_u32 s3, s{sT8}, s3\nv_cmp_eq_u32 s[60:61], s3, v0\ns_sub_u32 s3, s3, 64\nv_cmp_eq_u32 s[62:63], s3, v0")
        for g in range(4):
            A.wait(vm=("p", i, g, 0)); pace(step=5 * i + 1 + g); acc(ACC + 8, R0 + 4 + 8 * g, i == 0 and g == 0)
            A.wait(vm=("p", i, g, 1)); acc(ACC, R0 + 8 + 8 * g, i == 0 and g == 0)
    assert not pend and not fww
    A.stamp()
    A.wait(lg="ga")
    for q in range(12): A.e(f"v_pk_fma_f32 {v(ACC+2*q,2)}, {v(ACC+2*q,2)}, {v(GA+2*q,2)}, {v(D+2*q,2)}")
    MU, M2, DD = TM, TM + 1, TM + 2
    dot24p(A, MU, 12, ACC, None); xsum8(A, [MU], TM + 3)
    A.e(f"v_mul_f32 v{MU}, {hex(f2u(1/144))}, v{MU}")
    for i in range(0, 24, 2): A.e(f"v_pk_add_f32 {v(D+i,2)}, {v(ACC+i,2)}, {v(MU,2)} op_sel_hi:[1,0] neg_lo:[0,1] neg_hi:[0,1]")
    dot24p(A, M2, 12, D, D); dot24p(A, DD, 12, D, U); xsum8(A, [M2, DD], TM + 3)
    for k in range(3): A.lds(f"ds_write_b32 v10, v{TM+k} offset:{128*k}", "sw")
    A.wait(lg="sw"); A.e("s_barrier")
    R = GA
    for k in range(5): A.lds(f"ds_read_b128 {v(R+4*k,4)}, v11 offset:{128*k}", ("sr", k))
    A.wait(lg=("sr", 0))
    A.e(f"v_add_f32 v12, v{R}, v{R+1}\nv_add_f32 v13, v{R+2}, v{R+3}\nv_add_f32 v12, v12, v13\nv_mul_f32 v12, 0x3e800000, v12")
    for k in range(4): A.e(f"v_sub_f32 v{R+k}, v{R+k}, v12")
    A.e(f"v_sub_f32 v{MU}, v{MU}, v12\nv_mul_f32 v13, v{R}, v{R}")
    for k in range(1, 4): A.e(f"v_fmac_f32 v13, v{R+k}, v{R+k}")
    A.wait(lg=("sr", 1))
    A.e(f"v_add_f32 v14, v{R+4}, v{R+5}\nv_add_f32 v15, v{R+6}, v{R+7}\nv_add_f32 v14, v14, v15\nv_fmac_f32 v14, {hex(f2u(144.0))}, v13")
    A.e(f"v_mov_b32 v13, {hex(f2u(1e-5))}\nv_fmac_f32 v13, {hex(f2u(1/576))}, v14\nv_rsq_f32 v13, v13")
    A.wait(lg=("sr", 4))
    K1, K2 = R + 4, R + 5
    for k in (0, 2): A.e(f"v_pk_fma_f32 {v(R+8+k,2)}, {v(R+k,2)}, {v(R+12+k,2)}, {v(R+8+k,2)}")
    A.e(f"v_pk_add_f32 {v(R+8,2)}, {v(R+8,2)}, {v(R+10,2)}\nv_pk_add_f32 {v(R+16,2)}, {v(R+16,2)}, {v(R+18,2)}\nv_add_f32 v14, v{R+8}, v{R+9}\nv_add_f32 v15, v{R+16}, v{R+17}\nv_fmac_f32 v15, v14, v13")
    A.e(f"v_ashrrev_i32 v12, 31, v15\nv_or_b32 v12, 0x80000000, v12\nv_xor_b32 v12, v12, v15\nv_and_or_b32 v{K1}, v12, s57, v{vFa}\nv_mov_b32 v{K2}, 0")
    top2_lanes(A, K1, K2, 14, 15, (1, 2, 4), ())
    A.e(f"buffer_store_dwordx2 {v(K1,2)}, v{vFl}, {s(sWs,4)}, s58 offen offset:8 sc1")
    kld = [f"buffer_load_dwordx2 {v(KV+2*h,2)}, v{KA}, {s(sWs,4)}, {'s59' if h else 's15'} offen offset:8 sc1" for h in range(2)]
    if opt.get("kearly", 0): A.e("\n".join(kld))
    A.stamp()
    A.e(f"v_mul_f32 v{MU}, v{MU}, v13")
    for i in range(0, 24, 2): A.e(f"v_pk_fma_f32 {v(D+i,2)}, {v(D+i,2)}, v[12:13], {v(MU,2)} op_sel:[0,1,0] op_sel_hi:[1,1,0]")
    for i in range(0, 24, 2): A.e(f"v_pk_fma_f32 {v(D+i,2)}, {v(D+i,2)}, {v(CB+i,2)}, {v(SB+i,2)}")
    for m, src in ((1, D), (0, ACC)):
        if m == 0:
            for i in range(0, 24, 2): A.e(f"v_pk_fma_f32 {v(ACC+i,2)}, {v(D+i,2)}, {v(GB+i,2)}, {v(ACC+i,2)}")
        for i in range(3):
            d = CB + 12 * m + 4 * i
            for q in range(4): A.e(f"v_cvt_pk_bf16_f32 v{d+q}, v{src+8*i+2*q}, v{src+8*i+2*q+1}")
            if m == 1:
                for q in range(4): A.e(f"v_min_u32 v{d+q}, -2, v{d+q}")
            A.lds(f"ds_write_b128 v{vXC if i == 2 else vXA}, {v(d,4)} offset:{9344*m + (512 if i == 1 else 0)}", "tw")
    A.e(f"v_lshrrev_b32 v7, 4, v0\nv_and_b32 v6, 1, v0\nv_bfe_u32 v5, v0, 2, 2\nv_lshlrev_b32 v5, 6, v5\nv_lshl_add_u32 v5, v7, 4, v5\nv_mov_b32 v14, {SCR + 1792}\ns_movk_i32 s57, 1168")
    if A.stamping == 5: A.stamp()
    A.wait(lg="tw"); A.e(f"s_barrier\ns_cmp_lt_u32 s{sW}, 2\ns_cbranch_scc1 L2_keys")
    if opt.get("cand", 1):
        A.e(f"s_cmp_eq_u32 s{sW}, 2\ns_cbranch_scc1 L2_rows\nv_not_b32 v12, v{K1}\nv_not_b32 v13, v{K2}\nv_and_b32 v12, 7, v12\nv_and_b32 v13, 7, v13")
        A.e(f"v_cmp_gt_u32 vcc, 8, v0\nv_mul_u32_u24 v{SB+12}, 1168, v12\nv_mul_u32_u24 v{SB+13}, 1168, v13\nv_cndmask_b32 v15, v13, v12, vcc")
        A.e(f"v_add_u32 v{SB+12}, v{SB+12}, v{vR0}\nv_add_u32 v{SB+13}, v{SB+13}, v{vR0}\nds_read_b128 {v(SB,4)}, v{SB+12}\nds_read_b128 {v(SB+4,4)}, v{SB+13}")
        A.e(f"v_lshrrev_b32 v{SB+14}, 3, v0\nv_sub_u32 v15, v15, v{SB+14}\nv_mad_i32_i24 v{SB+14}, v15, s57, v{vR1}\nds_read_b128 {v(SB+8,4)}, v{SB+14} offset:1024")
        A.e(f"s_movk_i32 s3, 1152\nv_mad_u32_u24 v12, v12, s3, v{vX}\nv_mad_u32_u24 v13, v13, s3, v{vX}\nv_mad_i32_i24 v15, v15, s3, v{vR2}")
        A.e(f"s_waitcnt lgkmcnt(2)\nbuffer_store_dwordx4 {v(SB,4)}, v12, {s(sSt,4)}, 0 offen sc1\ns_waitcnt lgkmcnt(1)\nbuffer_store_dwordx4 {v(SB+4,4)}, v13, {s(sSt,4)}, 0 offen sc1")
        A.e(f"s_mov_b64 exec, 0xffff\ns_waitcnt lgkmcnt(0)\nbuffer_store_dwordx4 {v(SB+8,4)}, v15, {s(sSt,4)}, 0 offen offset:1024 sc1\ns_mov_b64 exec, -1\ns_branch L2_rowsdone")
        A.label("L2_rows")
    for r in range(9): A.lds(f"ds_read_b128 {v(SB+4*r,4)}, v{vR1 if r == 8 else vR0} offset:{1024 if r == 8 else 1168*r}", ("tr", r))
    for r in range(9):
        if r in (0, 4): A.e(f"s_movk_i32 s3, {1152*r}")
        A.wait(lg=("tr", r))
        A.e(f"buffer_store_dwordx4 {v(SB+4*r,4)}, v{vR2 if r == 8 else vX}, {s(sSt,4)}, {0 if r == 8 else 's3'} offen offset:{1024 if r == 8 else 1152*(r%4)} sc1")
    A.label("L2_rowsdone")
    if not opt.get("fh", 0): A.items(far)
    rdy = f"buffer_store_dword v14, v{vFl}, {s(sWs,4)}, s{sFs} offen offset:128 sc1"
    A.e(f"s_cmp_lt_u32 s2, 144\ns_cbranch_scc1 L2_join\ns_waitcnt vmcnt(0)\n{rdy}\ns_cmp_lt_u32 s2, 180\ns_cbranch_scc1 L2_join\ns_branch L2_fin")
    A.label("L2_keys")
    A.e("s_cmp_ge_u32 s2, 180\ns_cbranch_scc1 L2_fin")
    if not opt.get("kearly", 0): A.e("\n".join(kld))
    if not opt.get("fh", 0): A.items(far)
    ktest = "\n".join(f"v_cndmask_b32 v{KV+2*h+k}, v{KV+2*h+k}, v{K1+k}, {s(60+2*h,2)}" for h in range(2) for k in range(2))
    ktest += f"\nv_min_u32 v12, v{KV}, v{KV+1}\nv_min_u32 v13, v{KV+2}, v{KV+3}\nv_cmp_eq_u32 s[4:5], 0, v12\nv_cmp_eq_u32 s[6:7], 0, v13\ns_nop 0\ns_or_b64 vcc, s[4:5], s[6:7]"
    A.e(f"s_waitcnt vmcnt(0)\n{ktest}\ns_cbranch_scc0 L2_p2_ok")
    poll(A, "L2_p2", f"s_or_b64 exec, s[4:5], 1\n{kld[0]}\ns_or_b64 exec, s[6:7], 1\n{kld[1]}\ns_mov_b64 exec, -1", ktest, opt.get("sl2", 1))
    merge2(A, KV, KV + 1, KV + 2, KV + 3)
    top2_lanes(A, KV, KV + 1, 12, 13, (1, 2, 4, 8), ("v_permlane16_swap_b32", "v_permlane32_swap_b32"))
    A.e(f"s_lshl3_add_u32 s3, s{sW}, {SCR + 1792}\nv_mov_b32 v12, s3\nds_write_b64 v12, {v(KV,2)}\ns_waitcnt lgkmcnt(0)")
    A.label("L2_join")
    A.stamp()
    A.vm = []; A.lg = []
    A.e("s_barrier\nds_read_b128 v[16:19], v14\nv_cmp_eq_u32 vcc, 0, v6\ns_waitcnt lgkmcnt(0)")
    merge2(A, 16, 17, 18, 19)
    A.e("v_cndmask_b32 v16, v17, v16, vcc\nv_and_b32 v3, 0x7ff, v16\nv_sub_u32 v3, 2047, v3\nv_mul_u32_u24 v4, 1152, v3")
    A.stamp()
    A.e("s_cmp_ge_u32 s2, 144\ns_cbranch_scc1 L2_red")
    A.e(f"v_add_u32 v5, v5, v4\ns_mov_b32 s59, {WS_H2}")
    H = 128
    A.e("v_and_b32 v12, 8, v0\nv_lshlrev_b32 v12, 4, v12\nv_sub_u32 v3, v5, v12")
    hld = [f"buffer_load_dwordx4 {v(H+4*i,4)}, v{3 if i == 4 else 5}, {s(sWs,4)}, s59 offen offset:{256*i} sc1" for i in range(5)]
    for x in hld: A.vmem(x, "h")
    if opt.get("fh", 0): A.items([(x[0], x[1], "fa" if k < 36 else "fb") for k, x in enumerate(far)])
    LX = SCR + 1024
    A.e(f"v_lshlrev_b32 v11, 7, v6\nv_lshl_add_u32 v13, v7, 5, v11\nv_add_u32 v13, {LX}, v13\nv_lshl_add_u32 v11, v7, 4, v11")
    A.e(f"s_lshr_b32 s3, s{sW}, 1\ns_lshl_b32 s3, s3, 8\ns_and_b32 s14, s{sW}, 1\ns_lshl_b32 s14, s14, 6\ns_add_u32 s3, s3, s14\ns_add_u32 s3, s3, {LX}\nv_add_u32 v11, s3, v11")
    A.e(f"s_mul_i32 s14, s{sW}, 1152\ns_mul_i32 s15, s2, 4608\ns_add_u32 s15, s15, s14\ns_add_u32 s15, s15, {WS_YP}\nv_lshlrev_b32 v10, 3, v0")
    A.wait(vm="h", lg="fa"); A.e(rdy)
    if A.stamping == 5: A.stamp()
    htree = [f"v_max_u32 v12, v{H}, v{H+1}"] + [f"v_max3_u32 v12, v12, v{H+2*k}, v{H+2*k+1}" for k in range(1, 10)] + ["v_cmp_eq_u32 vcc, -1, v12"]
    A.label("L2_hr")
    for n_, kk in enumerate((0, 1, 2, 3, 4, 5, 6, 7, 8, 9, 10, 11, 14, 15, 12, 13, 17, 16)):
        d = v(88 + 4 * (kk % 4), 4)
        A.e(f"{MF} {d}, {a(aF+4*kk,4)}, {v(H+4*(kk//4),4)}, {'0' if kk < 4 else d}")
        if n_ < len(htree): A.e(htree[n_])
    A.e("s_cmp_lg_u64 vcc, 0\ns_cbranch_scc1 L2_hs\ns_nop 1")
    if A.stamping == 5: A.stamp(); A.nst -= 2
    B.label("L2_hs")
    poll(B, "L2_h", "\n".join(hld), "\n".join(htree))
    for k in range(20): B.e(f"v_min_u32 v{H+k}, -2, v{H+k}")
    B.e("s_nop 1\ns_branch L2_hr")
    for i in range(4): A.e(f"v_add_f32_dpp v{96+i}, v{100+i}, v{96+i} row_shl:4 row_mask:0xf bank_mask:0xf bound_ctrl:1")
    for i in range(4): A.e(f"v_add_f32_dpp v{88+i}, v{92+i}, v{88+i} row_shl:4 row_mask:0xf bank_mask:0xf bound_ctrl:1")
    for i in range(4): A.e(f"v_add_f32_dpp v{88+i}, v{96+i}, v{88+i} row_shl:8 row_mask:0xf bank_mask:0xf bound_ctrl:1")
    A.e("s_mov_b32 exec_lo, 0x30003\ns_mov_b32 exec_hi, 0x30003")
    A.lds("ds_write_b128 v11, v[88:91]", "x"); A.e("s_mov_b64 exec, -1"); A.wait(lg="x"); A.e("s_barrier")
    for i in range(4): A.lds(f"ds_read_b128 {v(16+4*i,4)}, v13 offset:{(i//2)*256 + (i%2)*16}", ("y", i // 2))
    A.e(f"v_mov_b32 v12, {hex(f2u(-LOG2E))}")
    A.wait(lg=("y", 0))
    for i in range(0, 8, 2): A.e(f"v_pk_mul_f32 {v(32+i,2)}, {v(16+i,2)}, v[12:13] op_sel_hi:[1,0]")
    for i in range(8): A.e(f"v_exp_f32 v{32+i}, v{32+i}")
    for i in range(0, 8, 2): A.e(f"v_pk_add_f32 {v(32+i,2)}, {v(32+i,2)}, 1.0 op_sel_hi:[1,0]")
    for i in range(8): A.e(f"v_rcp_f32 v{32+i}, v{32+i}")
    A.wait(lg=("y", 1))
    for i in range(0, 8, 2): A.e(f"v_pk_mul_f32 {v(16+i,2)}, {v(16+i,2)}, {v(32+i,2)}")
    for i in range(0, 8, 2): A.e(f"v_pk_mul_f32 {v(16+i,2)}, {v(16+i,2)}, {v(24+i,2)}")
    for q in range(4): A.e(f"v_cvt_pk_bf16_f32 v{40+q}, v{16+2*q}, v{17+2*q}")
    A.e("s_nop 1")
    for nt in range(9): A.e(f"{MF} {v(48+4*nt,4)}, v[40:43], {a(aF+72+4*nt,4)}, 0")
    A.e("s_nop 0")
    for half in range(2):
        for G_ in range(4):
            for t in range(2):
                if half == 0 and G_ == 0: continue
                A.e(f"v_mov_b32_dpp v{48+2*half+t}, v{48+4*(4*half+G_)+t} quad_perm:[0,1,2,3] row_mask:{hex(1 << G_)} bank_mask:0xf")
            if G_ < 3 and not (half == 0 and G_ == 0): A.e("s_nop 0")
    for r_ in (48, 49, 50, 51, 80, 81): A.e(f"v_min_u32 v{r_}, -2, v{r_}")
    A.e(f"buffer_store_dwordx4 v[48:51], v{vX}, {s(sWs,4)}, s15 offen sc1\ns_mov_b64 exec, 0xffff\nbuffer_store_dwordx2 v[80:81], v10, {s(sWs,4)}, s15 offen offset:1024 sc1")
    A.e("s_branch L2_fin")
    A.label("L2_red")
    A.vm = []; A.lg = []
    A.e(f"s_mov_b32 s3, {WS_YP}"); A.srd(sYp, sWs, YP_BYTES, "s3")
    A.e("s_sub_u32 s3, s2, 144\ns_mul_i32 s14, s3, 7282\ns_lshr_b32 s14, s14, 16\ns_mul_i32 s15, s14, 9\ns_sub_u32 s15, s3, s15\ns_mul_i32 s14, s14, 144")
    A.e("s_cmp_eq_u32 s15, 8\ns_cselect_b32 s56, 1, 64\ns_cselect_b32 s57, 2, 1\ns_cselect_b32 s15, 16, s15\ns_lshl3_add_u32 s14, s15, s14")
    A.e("v_bfe_u32 v7, v0, 2, 3\nv_mul_u32_u24 v7, s57, v7\nv_bfe_u32 v9, v0, 1, 1\nv_mul_u32_u24 v9, s56, v9\nv_add3_u32 v7, v7, v9, s14\nv_lshl_add_u32 v9, v7, 1, v4\nv_lshlrev_b32 v7, 2, v7")
    A.e(f"v_lshrrev_b32 v12, 7, v3\nv_bfe_u32 v13, v3, 3, 4\nv_lshl_add_u32 v13, v12, 6, v13\nv_lshlrev_b32 v13, 8, v13\ns_mov_b32 s59, {WS_F1 + 2*16*256}")
    poll(A, "L2_r", f"buffer_load_dword v12, v13, {s(sWs,4)}, s59 offen offset:128 sc1", "v_cmp_eq_u32 vcc, 0, v12")
    if A.stamping == 5: A.stamp()
    A.e(f"buffer_load_ushort v18, v9, {s(sOut,4)}, 0 offen sc1\nds_read_b32 v20, v7 offset:{3*2304}")
    A.e(f"v_and_b32 v6, 7, v0\nv_lshrrev_b32 v10, 3, v0\ns_lshl_b32 s14, s{sW}, 3\nv_add_u32 v10, s14, v10\nv_mul_u32_u24 v10, 4608, v10\nv_lshl_add_u32 v10, v6, 4, v10\ns_lshl_b32 s3, s3, 7\nv_add_u32 v24, s3, v10")
    for r in range(1, 5): A.e(f"v_add_u32 v{24+r}, {147456*r}, v24")
    A.e("v_and_b32 v16, 0xfffff800, v16\nv_not_b32 v12, v16\nv_ashrrev_i32 v12, 31, v12\nv_or_b32 v12, 0x80000000, v12\nv_xor_b32 v16, v16, v12")
    A.e(f"v_mul_f32 v16, {hex(f2u(-LOG2E))}, v16\nv_exp_f32 v16, v16\ns_nop 0\nv_add_f32 v16, 1.0, v16\nv_rcp_f32 v16, v16\ns_waitcnt lgkmcnt(0)\nv_mul_f32 v20, v20, v16")
    A.e(f"s_lshl_b32 s14, s{sW}, 7\ns_add_u32 s14, s14, {SCR + 2048}\nv_lshl_add_u32 v10, v6, 4, s14\nv_and_b32 v11, 31, v0\nv_lshlrev_b32 v11, 2, v11")
    if opt.get("pre3", 0):
        A.e("s_mov_b64 exec, 1")
        poll(A, "L2_p3a", f"buffer_load_dword v32, v24, {s(sYp,4)}, 0 offen sc1", "v_cmp_eq_u32 vcc, -1, v32", opt.get("sl3", 1))
        A.e("s_mov_b64 exec, -1")
    tree = "v_max3_u32 v12, v32, v33, v34\n" + "\n".join(f"v_max3_u32 v12, v12, v{35+2*i}, v{36+2*i}" for i in range(8)) + "\nv_max_u32 v12, v12, v51\nv_cmp_eq_u32 vcc, -1, v12"
    poll(A, "L2_p3", "\n".join(f"buffer_load_dwordx4 {v(32+4*r,4)}, v{24+r}, {s(sYp,4)}, 0 offen sc1" for r in range(5)), tree, 0)
    if A.stamping == 5: A.stamp()
    for i in range(0, 4, 2):
        A.e(f"v_pk_add_f32 {v(32+i,2)}, {v(32+i,2)}, {v(36+i,2)}\nv_pk_add_f32 {v(40+i,2)}, {v(40+i,2)}, {v(44+i,2)}\nv_pk_add_f32 {v(32+i,2)}, {v(32+i,2)}, {v(48+i,2)}\nv_pk_add_f32 {v(32+i,2)}, {v(32+i,2)}, {v(40+i,2)}")
    xsum8(A, [32, 33, 34, 35], 12)
    A.e("ds_write_b128 v10, v[32:35]\ns_waitcnt lgkmcnt(0)\ns_barrier")
    A.e(f"s_cmp_lg_u32 s{sW}, 0\ns_cbranch_scc1 L2_fin")
    for k in range(4): A.e(f"ds_read_b32 v{32+k}, v11 offset:{SCR + 2048 + 128*k}")
    A.e("v_lshlrev_b32 v12, 16, v18\ns_mov_b32 exec_hi, 0\ns_waitcnt lgkmcnt(0)")
    A.e("v_pk_add_f32 v[32:33], v[32:33], v[34:35]\nv_add_f32 v32, v32, v33\nv_fmac_f32 v12, v32, v20\nv_cvt_pk_bf16_f32 v12, v12, v12")
    A.e(f"buffer_store_short v12, v9, {s(sOut,4)}, 0 offen{opt.get('finf', ' sc1')}")
    A.label("L2_fin")
    if A.stamping: A.e("s_mov_b64 exec, -1")
    A.stamp()
    if opt.get("enc"):
        ea, eb, clk = opt["enc"]; o = 0 if clk else 1
        A.e("s_cmp_lg_u32 s2, 150\ns_cbranch_scc1 L2_noenc")
        if ea < 0:
            A.e(f"s_load_dwordx2 s[60:61], s[0:1], 112\ns_waitcnt lgkmcnt(0)\ns_mov_b32 s62, 0x10000000\ns_mov_b32 s63, 0x20000\nv_mov_b32 v2, {WS_STAMP + 150*1024 + 4}\nbuffer_load_dword v1, v2, s[60:63], 0 offen\ns_waitcnt vmcnt(0)")
        A.e(f"v_accvgpr_read_b32 v1, a61\ns_nop 0\nv_readlane_b32 s56, v1, {2*eb+o}\nv_readlane_b32 s57, v1, {2*ea+o}\ns_nop 0\ns_sub_u32 s56, s56, s57")
        A.e("s_lshr_b32 s56, s56, 3" if clk else "s_lshl_b32 s56, s56, 2")
        A.e("s_min_u32 s56, s56, 100000\ns_mov_b32 s57, s93")
        A.label("L2_enc")
        A.e("s_memrealtime s[94:95]\ns_waitcnt lgkmcnt(0)\ns_sub_u32 s58, s94, s57\ns_cmp_lt_u32 s58, s56\ns_cbranch_scc1 L2_enc")
        A.label("L2_noenc")
    else: A.stamp_flush(1, WS_STAMP, sW)

OPT = {}
def gen_k2(opt={}):
    OPT.clear(); OPT.update(opt)
    A = Asm(); A.stamp_agpr = 60
    A.label("L2_begin")
    A.e("s_getpc_b64 s[98:99]")
    A.e("s_cmp_ge_u32 s2, 256\ns_cbranch_scc1 L2_end")
    A.stamp()
    for d, off in ((sXi, 0), (sC, 80), (sWm, 88), (12, 112), (sDb, 104)): A.e(f"s_load_dwordx2 {s(d,2)}, s[0:1], {off}")
    vTid = 155
    tch = opt.get("touch", "cq")
    A.e(f"s_and_b32 s3, s2, 7\ns_lshr_b32 s14, s2, 3\nv_mov_b32 v{vTid}, v0\nv_lshrrev_b32 v10, 6, v0\nv_and_b32 v0, 63, v0")
    if "c" in tch:
        A.e(f"s_lshl_b32 s15, s14, 9\nv_lshl_add_u32 v13, v10, 7, s15\nv_lshl_add_u32 v13, v0, 14, v13\nv_min_u32 v13, L2_codeend-L2_begin-8, v13\ns_mov_b64 exec, 31")
        A.vmem(f"global_load_dword a{aDum}, v13, s[98:99]"); A.e("s_mov_b64 exec, -1")
    A.e(f"v_readfirstlane_b32 s{sW}, v10")
    par = opt.get("par", 0)
    A.e((f"s_lshr_b32 s{sG}, s3, 1" if par else f"s_and_b32 s{sG}, s3, 3") + f"\ns_and_b32 s15, s14, 3\ns_lshl2_add_u32 s{sG}, s{sG}, s15")
    A.e((f"s_and_b32 s{sTb}, s3, 1" if par else f"s_lshr_b32 s{sTb}, s3, 2") + f"\ns_lshr_b32 s15, s14, 2\ns_lshl3_add_u32 s{sTb}, s{sTb}, s15\ns_lshl4_add_u32 s{sT8}, s{sTb}, s{sG}")
    sP, sSl, sHf = sCnt, sPass, sW9
    A.e(f"s_mul_i32 s{sP}, s3, 27\ns_max_u32 s14, s14, 5\ns_add_u32 s{sP}, s{sP}, s14\ns_sub_u32 s{sP}, s{sP}, 5\ns_lshr_b32 s{sHf}, s3, 2\ns_mul_i32 s15, s{sHf}, 108\ns_sub_u32 s{sSl}, s{sP}, s15")
    item_addr(A, 288, 288, 256)
    vW4, vW1 = 153, 154
    A.e(f"v_and_b32 v4, 0xfc, v{vTid}\nv_and_b32 v7, 3, v0\nv_mul_u32_u24 v3, 6912, v4\nv_lshl_add_u32 v{vW4}, v7, 4, v3")
    A.e(f"s_mul_i32 s3, s{sT8}, 9216\ns_movk_i32 s{sXi+2}, 9216\ns_mov_b32 s{sXi+3}, 0x20000\ns_mov_b32 s{sWm+3}, s{sXi+3}")
    A.e(f"v_lshlrev_b32 v{vX}, 4, v0\ns_mov_b32 s{sWs+2}, {WS_SIZE}\ns_mov_b32 s{sWs+3}, s{sXi+3}\ns_movk_i32 s{sDb+2}, 256\ns_mov_b32 s{sDb+3}, s{sXi+3}")
    A.e(f"s_lshl_b32 s14, s{sSl}, 6\ns_sub_u32 s{sWm+2}, {288*6912}, s14\ns_cmp_ge_u32 s2, 40\ns_cselect_b32 s{sWm+2}, s{sWm+2}, 0\ns_mul_i32 s15, s{sHf}, {288*6912}\ns_add_u32 s14, s14, s15")
    A.e("s_waitcnt lgkmcnt(0)")
    A.fstamp()
    A.e(f"s_add_u32 s{sXi}, s{sXi}, s3\ns_addc_u32 s{sXi+1}, s{sXi+1}, 0")
    for pre, ld in xi_loads(128): A.item(ld)
    A.e(f"s_add_u32 s{sWm}, s{sWm}, s14\ns_addc_u32 s{sWm+1}, s{sWm+1}, 0")
    ncl = opt.get("ncl", 8); nst = 16 // ncl
    A.e(f"s_mov_b64 {s(sWs,2)}, s[12:13]\ns_cmp_ge_u32 s2, {ncl}\ns_cbranch_scc1 L2_noclr")
    assert ncl == 8
    for i in range(4): A.e(f"v_mov_b32 v{52+i}, -1\nv_mov_b32 v{56+i}, 0")
    A.e(f"s_lshl2_add_u32 s15, s2, s{sW}\ns_lshl_b32 s3, s15, 10\nbuffer_store_dwordx4 v[52:55], v{vX}, {s(sWs,4)}, s3 offen sc1")
    A.e(f"v_lshrrev_b32 v13, 3, v0\nv_mul_u32_u24 v13, {max(KS, 128) - 128}, v13\nv_add_u32 v13, v13, v{vX}\ns_mul_i32 s3, s15, {8*max(KS, 128)}\ns_add_u32 s3, s3, {WS_KEY}\nbuffer_store_dwordx4 v[56:59], v13, {s(sWs,4)}, s3 offen sc1")
    A.label("L2_noclr")
    nclr = len(A.vm)
    WM, CC = 128, 148
    nw0 = opt.get("nw0", 4)
    def wload(i):
        if 0 < i < 4: A.e(f"s_movk_i32 s3, {6912*i}")
        A.vmem(f"buffer_load_dwordx4 {v(WM+4*i,4)}, v{vW4 if i < 4 else vW1}, {s(sWm,4)}, {'s3' if 0 < i < 4 else 0} offen", ("w", i))
    for i in range(min(nw0, 4)): wload(i)
    A.fstamp()
    A.e(f"v_lshrrev_b32 v3, 2, v3\nv_lshl_add_u32 v3, v7, 4, v3\nv_add_u32 v{vW1}, {256*6912}, v3\nv_lshrrev_b32 v3, 1, v4\nv_lshlrev_b32 v4, 1, v4")
    A.e(f"s_mul_i32 s3, s{sHf}, 576"); A.srd(sC, sC, 576, "s3")
    for i in range(4): A.e(f"v_mov_b32 v{WM+16+i}, 0")
    A.e(f"v_mov_b32 v{CC+2}, 0\ns_cmp_ge_u32 s{sW}, 2\ns_cbranch_scc1 L2_w23")
    A.e(f"buffer_load_dwordx4 {v(WM+16,4)}, v{vW1}, {s(sWm,4)}, 0 offen\nbuffer_load_ushort v{CC+2}, v3, {s(sC,4)}, 0 offen offset:512")
    A.label("L2_w23")
    A.vmem(f"buffer_load_dwordx2 {v(CC,2)}, v4, {s(sC,4)}, 0 offen", "c")
    A.e("s_load_dwordx8 s[4:11], s[0:1], 8")
    for d, off in ((sWg, 56), (sWu, 64), (sWd, 72), (sOut, 96), (sWr, 48)): A.e(f"s_load_dwordx2 {s(d,2)}, s[0:1], {off}")
    B = Asm()
    A.fstamp()
    F = 156
    vL7, vSt, vSw, vXs, vYc, vMw, vL4, vXf, vMs = F, F + 1, F + 2, F + 3, F + 4, F + 5, F + 6, F + 7, F + 8
    SA, SD, SV = F + 10, F + 11, F + 12
    A.e(f"s_cmp_eq_u32 s{sW}, 0\ns_cselect_b32 s3, 0, 0x40000000\nv_mul_u32_u24 v{vL7}, {256//ncl}, v0\nv_or_b32 v{vL7}, s3, v{vL7}\ns_mul_i32 s{sW4}, s{sW}, {4*PIECE}\ns_add_u32 s{sW4}, s{sW4}, {RING}\nv_lshl_add_u32 v{vKV}, v10, 12, v{vX}")
    A.e(f"v_lshrrev_b32 v13, 5, v0\nv_lshl_add_u32 v13, v10, 1, v13\nv_lshlrev_b32 v13, 15, v13\nv_and_b32 v14, 31, v0\nv_lshl_add_u32 v{vWq}, v14, 4, v13")
    for i in range(4): A.e(f"v_mov_b32 v{56+i}, 0\nv_mov_b32 v{60+i}, -1")
    A.e(f"s_and_b32 s14, s{sTb}, 7\ns_lshl2_add_u32 s14, s14, s{sW}\nv_lshrrev_b32 v13, 2, v0\nv_lshl_add_u32 v13, v13, 5, s14\nv_lshlrev_b32 v13, 13, v13\nv_lshl_add_u32 v{F+9}, v7, 7, v13")
    A.e("s_waitcnt lgkmcnt(0)")
    A.e(f"s_lshl_b32 s3, s{sG}, 9"); A.srd(sWq, 8, 0, "s3"); A.e(f"s_sub_u32 s{sWq+2}, {576*8192}, s3")
    A.e(f"s_mov_b32 s{sWr+2}, 1152\ns_mov_b32 s{sWr+3}, 0x20000")
    A.stamp()
    ST = SCR + 256; MP = RING
    sF1, sYc, sXs, sXf, sMl, sKy, sMul, sAdd = 56, 57, 58, 59, 100, 101, sBase, sDel
    A.e(f"v_and_b32 v14, 7, v0\nv_lshlrev_b32 v{vSt}, 4, v14\nv_add_u32 v{vSt}, {ST}, v{vSt}\nv_lshl_add_u32 v{vSw}, v10, 2, v{vSt}")
    A.e(f"s_mul_i32 s3, s{sW}, {18*256}\nv_lshl_add_u32 v14, v14, 4, s3\nv_lshrrev_b32 v15, 3, v0\nv_lshl_add_u32 v{vXs}, v15, 8, v14")
    A.e(f"s_lshr_b32 s3, s{sT8}, 1\ns_mul_i32 s3, s3, 18432\ns_and_b32 s14, s{sT8}, 1\ns_lshl_b32 s14, s14, 7\ns_add_u32 s3, s3, s14\ns_add_u32 s{sXs}, s3, {WS_XN}")
    A.e(f"s_lshl_b32 s3, s{sTb}, 2\ns_add_u32 s3, s3, s{sW}\ns_lshl_b32 s14, s3, 4\ns_add_u32 s14, s14, s{sG}\ns_lshl_b32 s14, s14, 8\ns_add_u32 s{sF1}, s14, {WS_F1}")
    A.e(f"s_mul_i32 s14, s3, {4*KS}\ns_add_u32 s{sXf}, s14, {WS_KEY}\nv_and_b32 v14, 3, v0\nv_mul_u32_u24 v{vXf}, {KS}, v14")
    A.e(f"s_mul_i32 s14, s3, 36864\ns_add_u32 s14, s14, {WS_XN}"); A.srd(sXn, 12, 36864, "s14")
    if opt.get("tidx", 1): A.e(f"s_or_b32 s{sXn+1}, s{sXn+1}, 0x100000\ns_mov_b32 s{sXn+3}, 0x800000")
    A.e(f"s_mul_i32 s15, s2, 4608\ns_mul_i32 s14, s{sW}, 1152\ns_add_u32 s15, s15, s14\ns_add_u32 s{sYc}, s15, {WS_YP}")
    A.e(f"s_cmp_ge_u32 s2, 144\ns_cselect_b32 s14, 0x40000000, 0\nv_or_b32 v{vYc}, s14, v{vX}")
    A.e(f"v_lshrrev_b32 v12, 4, v{vTid}\nv_lshlrev_b32 v12, 7, v12\nv_lshl_add_u32 v{vMw}, v7, 5, v12\nv_lshlrev_b32 v{vL4}, 2, v0")
    A.e(f"s_mul_i32 s3, s{sSl}, 3641\ns_lshr_b32 s3, s3, 16\ns_mov_b32 s{sMul}, 1.0\ns_mov_b32 s{sAdd}, 0\ns_cmp_lt_u32 s3, 2\ns_cselect_b32 s{sMul}, {hex(f2u(C0))}, s{sMul}")
    A.e(f"s_cmp_eq_u32 s3, 1\ns_cselect_b32 s{sAdd}, {hex(f2u(C0))}, s{sAdd}\ns_cmp_eq_u32 s3, 4\ns_cselect_b32 s{sAdd}, 1.0, s{sAdd}\ns_cmp_eq_u32 s{sHf}, 0\ns_cselect_b32 s{sAdd}, s{sAdd}, 0")
    A.e(f"s_lshl_b32 s{sMl}, s{sP}, 7\ns_mul_i32 s14, s{sT8}, {KS}\ns_add_u32 s{sKy}, s14, {WS_KEY}")
    A.e(f"s_mul_i32 s3, s{sW}, 1152\nv_add_u32 v{SA}, s3, v{vX}")
    A.e(f"s_and_b32 s3, s{sW}, 1\ns_mul_i32 s3, s3, {36*64}\ns_cmp_lt_u32 s{sW}, 2\ns_cselect_b32 s14, 32, 0\ns_add_u32 s3, s3, s14\ns_add_u32 s3, s3, {ASB}")
    A.e(f"v_lshrrev_b32 v14, 1, v0\nv_lshl_add_u32 v14, v14, 6, s3\nv_and_b32 v15, 1, v0\nv_lshl_add_u32 v{SD}, v15, 4, v14")
    A.e(f"s_cmp_eq_u32 s{sW}, 1\ns_cselect_b32 s3, 40, 256\ns_cmp_ge_u32 s2, s3\ns_cselect_b32 s3, 0, 0x40000000\nv_or_b32 v{vMs}, s3, v{vL4}")
    for i in range(4): A.e(f"v_mov_b32 v{SV+4+i}, 0\nv_mov_b32 v{SV+12+i}, 0")
    def wq_touch():
        nq = opt.get("nq", 16)
        A.e(f"s_mov_b64 exec, {hex((1 << nq) - 1)}" if nq <= 31 else f"s_mov_b32 exec_hi, {hex((1 << (nq - 32)) - 1)}")
        A.vmem(f"buffer_load_dword a{aDum}, v{F+9}, {s(sWq,4)}, 0 offen", "tq"); A.e("s_mov_b64 exec, -1")
    def init_kv_addr():
        A.e(f"v_lshrrev_b32 v14, 2, v0\nv_mul_u32_u24 v14, {PIECE}, v14\nv_and_b32 v15, 3, v0\nv_lshl_add_u32 v14, v15, 3, v14\nv_add_u32 v{vV}, {RING + 2*SLOT + HALF}, v14")
        A.e(f"v_and_b32 v14, 15, v0\nv_mul_u32_u24 v14, {PIECE}, v14\nv_lshrrev_b32 v15, 4, v0\nv_lshl_add_u32 v14, v15, 4, v14\nv_add_u32 v{vK}, {RING + 2*SLOT}, v14")
    def late_setup():
        A.e(f"s_lshl_b32 s3, s{sTb}, 2\ns_add_u32 s3, s3, s{sW}\nv_mov_b32 v12, v10")
        A.e(f"s_mul_i32 s14, s3, {4*147456}\ns_mul_i32 s15, s{sG}, 9216\ns_add_u32 s14, s14, s15\ns_add_u32 s14, s14, {WS_PART}"); A.srd(sPt, 12, 0, "s14"); A.e(f"s_sub_u32 s{sPt+2}, {4*147456}, s15")
        if opt.get("x_nostore"): A.e(f"s_mov_b32 s{sPt+2}, 0")
        A.e(f"s_lshl_b32 s3, s{sG}, 19"); A.srd(sK, 4, 524288, "s3"); A.srd(sV, 6, 524288, "s3")
        if opt.get("tid", 1):
            A.e(f"s_lshl_b32 s3, s{sW}, 12")
            for d in (sK, sV): A.e(f"s_add_u32 s{d}, s{d}, s3\ns_addc_u32 s{d+1}, s{d+1}, 0x100000\ns_mov_b32 s{d+2}, 32768\ns_mov_b32 s{d+3}, 0x800000")
        A.e(f"s_mul_i32 s3, s{sG}, 294912"); A.srd(sWo, 10, 294912, "s3")
        A.e(f"s_mov_b64 s[4:5], {s(sWg,2)}\ns_mov_b64 s[6:7], {s(sWu,2)}\ns_mov_b64 s[8:9], {s(sWd,2)}")
        A.e(f"s_mov_b32 s{sPass}, 0\ns_mul_i32 s{sW9}, s{sW}, 9216")
        A.e("s_min_u32 s15, s2, 143\ns_and_b32 s3, s15, 7\ns_mul_i32 s3, s3, 18\ns_lshr_b32 s15, s15, 3\ns_add_u32 s15, s15, s3\ns_lshl_b32 s3, s15, 6")
        A.srd(sWg, sWg, 0, "s3"); A.srd(sWu, sWu, 0, "s3")
        A.e(f"s_sub_u32 s14, {576*9216}, s3\ns_mul_i32 s3, s15, 36864"); A.srd(sWd, sWd, 0, "s3")
        A.e(f"s_cmp_lt_u32 s2, 144\ns_cselect_b32 s{sWg+2}, s14, 0\ns_cselect_b32 s{sWu+2}, s14, 0\ns_cselect_b32 s{sWd+2}, 36864, 0")
        A.e(f"s_mov_b32 s{sOut+2}, 2359296\ns_mov_b32 s{sOut+3}, 0x20000")

        A.e(f"v_lshrrev_b32 v13, 4, v0\nv_lshlrev_b32 v{vAS}, 6, v13")
        A.e(f"v_lshrrev_b32 v14, 2, v0\nv_mul_u32_u24 v14, {PIECE}, v14\nv_add_u32 v14, {RING}, v14")
        A.e(f"v_and_b32 v15, 1, v0\nv_lshlrev_b32 v15, 4, v15\nv_add_u32 v{vT}, v14, v15\nv_and_b32 v15, 2, v0\nv_lshl_add_u32 v{vT}, v15, 2, v{vT}\nv_add_u32 v{vT2}, {2*SLOT}, v{vT}")
        A.e(f"v_lshrrev_b32 v14, 3, v0\nv_lshlrev_b32 v14, 2, v14\nv_add_u32 v14, v14, v12\nv_mul_u32_u24 v14, {4*1152}, v14\nv_and_b32 v15, 7, v0\nv_lshl_add_u32 v{vWo}, v15, 4, v14")
        A.e(f"v_lshlrev_b32 v{vPt}, 4, v15\nv_lshl_add_u32 v{vPt}, v13, 7, v{vPt}\nv_bfe_u32 v14, v0, 3, 1\nv_mul_u32_u24 v14, 147456, v14\nv_add_u32 v{vPt}, v{vPt}, v14")
        init_kv_addr()
        A.e(f"v_and_b32 v14, 1, v0\nv_cmp_eq_u32 vcc, 0, v14\nv_mov_b32 v{vIdx}, 0xeeeeeeee\nv_mov_b32 v15, 0x44444444\nv_cndmask_b32 v{vIdx}, v{vIdx}, v15, vcc")
        A.e(f"v_and_b32 v14, {14 if opt.get('ones2', 0) else 2}, v0\nv_cmp_eq_u32 vcc, 0, v14\nv_mov_b32 v15, 0x3f803f80\ns_nop 0\nv_cndmask_b32 v15, 0, v15, vcc")
        for i in range(4): A.e(f"v_accvgpr_write_b32 a{aOne+i}, v15\nv_accvgpr_write_b32 a{56+i}, -1")
        for i in range(16): A.e(f"v_accvgpr_write_b32 a{aL+i}, 0")
    ls = opt.get("ls", 0); tqp = opt.get("tqp", 1)
    if not ls: late_setup()
    if tqp == 0: wq_touch()
    A.e(f"s_cmp_ge_u32 s2, {ncl}\ns_cbranch_scc1 L2_noclr2")
    A.e(f"s_mul_i32 s14, s2, {256//ncl}\ns_mov_b64 exec, 1\ns_waitcnt vmcnt({len(A.vm) - nclr})\ns_barrier\nbuffer_store_dword v60, v{vL7}, {s(sDb,4)}, s14 offen sc1\ns_mov_b64 exec, -1")
    A.label("L2_noclr2")
    if tqp == 1: wq_touch()
    A.stamp()
    XF, MA, TF = 24, 16, 48
    A.wait(vm="xi"); A.fstamp()
    if tqp == 2: wq_touch()
    for i in range(nw0, 4): wload(i)
    for q in range(12): A.e(f"v_lshlrev_b32 v{XF+2*q}, 16, v{XR+q}\nv_and_b32 v{XF+2*q+1}, 0xffff0000, v{XR+q}")
    dot24p(A, TF, 12, XF, None); xsum8(A, [TF], TF + 2)
    A.e(f"v_mul_f32 v{TF}, {hex(f2u(1/144))}, v{TF}")
    for i in range(0, 24, 2): A.e(f"v_pk_add_f32 {v(XF+i,2)}, {v(XF+i,2)}, {v(TF,2)} op_sel_hi:[1,0] neg_lo:[0,1] neg_hi:[0,1]")
    dot24p(A, TF + 1, 12, XF, XF); xsum8(A, [TF + 1], TF + 2)
    A.lds(f"ds_write_b32 v{vSw}, v{TF}", "f"); A.lds(f"ds_write_b32 v{vSw}, v{TF+1} offset:128", "f")
    A.wait(lg="f"); A.e("s_barrier")
    A.lds(f"ds_read_b128 {v(MA,4)}, v{vSt}", "g0"); A.lds(f"ds_read_b128 {v(MA+4,4)}, v{vSt} offset:128", "g1")
    A.e(f"s_add_u32 s14, s{sXs}, 4096")
    A.wait(lg="g0")
    A.e(f"v_add_f32 v12, v{MA}, v{MA+1}\nv_add_f32 v13, v{MA+2}, v{MA+3}\nv_add_f32 v12, v12, v13\nv_mul_f32 v12, 0x3e800000, v12")
    for k in range(4): A.e(f"v_sub_f32 v{MA+k}, v{MA+k}, v12")
    A.e(f"v_sub_f32 v{TF}, v{TF}, v12\nv_mul_f32 v13, v{MA}, v{MA}")
    for k in range(1, 4): A.e(f"v_fmac_f32 v13, v{MA+k}, v{MA+k}")
    A.wait(lg="g1")
    A.e(f"v_add_f32 v14, v{MA+4}, v{MA+5}\nv_add_f32 v15, v{MA+6}, v{MA+7}\nv_add_f32 v14, v14, v15\nv_fmac_f32 v14, {hex(f2u(144.0))}, v13")
    A.e(f"v_mov_b32 v12, {hex(f2u(1e-5))}\nv_fmac_f32 v12, {hex(f2u(1/576))}, v14\nv_rsq_f32 v12, v12\ns_nop 0\nv_mul_f32 v{TF}, v{TF}, v12")
    for i in range(3):
        for q in range(0, 8, 2): A.e(f"v_pk_fma_f32 {v(XF+8*i+q,2)}, {v(XF+8*i+q,2)}, v[12:13], {v(TF,2)} op_sel_hi:[1,0,0]")
        for q in range(4): A.e(f"v_cvt_pk_f16_f32 v{XR+4*i+q}, v{XF+8*i+2*q}, v{XF+8*i+2*q+1}")
        if i == 2: A.e("s_mov_b64 exec, 0xffff")
        A.vmem(f"buffer_store_dwordx4 {v(XR+4*i,4)}, v{vXs}, {s(sWs,4)}, {'s14' if i == 2 else s(sXs)} offen offset:{2048*(i%2)} sc1")
    A.fstamp()
    A.vmem(f"buffer_store_dwordx4 v[56:59], v{vX}, {s(sWs,4)}, s{sF1} offen sc1")
    A.e("s_mov_b64 exec, 0xff")
    A.vmem(f"buffer_store_dwordx4 v[60:63], v{vYc}, {s(sWs,4)}, s{sYc} offen offset:1024 sc1"); A.e("s_mov_b64 exec, -1")
    A.vmem(f"buffer_store_dwordx4 v[60:63], v{vYc}, {s(sWs,4)}, s{sYc} offen sc1"); A.e(f"s_mov_b64 exec, {(1 << ncl) - 1}")
    p0 = f"buffer_load_dword v{TF+3}, v{vL7}, {s(sDb,4)}, 0 offen sc1"
    A.vmem(p0, "p0"); A.e("s_mov_b64 exec, -1")
    if tqp == 3: wq_touch()
    A.stamp()
    A.e(f"s_mul_i32 s3, s{sT8}, 147456\ns_add_u32 s3, s3, {WS_PART + 4096}"); A.srd(sPr, 12, 147456 - 4096, "s3")
    A.wait(vm="c")
    CF = 40
    A.e(f"v_lshlrev_b32 v{CF}, 16, v{CC}\nv_and_b32 v{CF+1}, 0xffff0000, v{CC}\nv_lshlrev_b32 v{CF+2}, 16, v{CC+1}\nv_and_b32 v{CF+3}, 0xffff0000, v{CC+1}\nv_lshlrev_b32 v{CF+4}, 16, v{CC+2}")
    for i in range(5): A.e(f"v_mul_f32 v{MA+i}, {hex(f2u(-LOG2E))}, v{CF+i}")
    for i in range(5): A.e(f"v_exp_f32 v{MA+i}, v{MA+i}")
    for i in range(5): A.e(f"v_add_f32 v{MA+i}, 1.0, v{MA+i}")
    for i in range(5): A.e(f"v_rcp_f32 v{MA+i}, v{MA+i}")
    for i in range(5): A.e(f"v_mul_f32 v{XF+2*i}, v{CF+i}, v{MA+i}")
    for i in range(5):
        A.wait(vm=("w", i))
        for q in range(4):
            t = 12 + 2 * (q % 2)
            A.e(f"v_lshlrev_b32 v{t}, 16, v{WM+4*i+q}\nv_and_b32 v{t+1}, 0xffff0000, v{WM+4*i+q}")
            if i == 0: A.e(f"v_pk_mul_f32 {v(MA+2*q,2)}, {v(t,2)}, {v(XF,2)} op_sel_hi:[1,0]")
            else: A.e(f"v_pk_fma_f32 {v(MA+2*q,2)}, {v(t,2)}, {v(XF+2*i,2)}, {v(MA+2*q,2)} op_sel_hi:[1,0,1]")
    for sh in (4, 8):
        for q in range(8): A.e(f"v_add_f32_dpp v{MA+q}, v{MA+q}, v{MA+q} row_ror:{sh} row_mask:0xf bank_mask:0xf")
    A.e("s_mov_b32 exec_lo, 0xf000f\ns_mov_b32 exec_hi, 0xf000f")
    A.lds(f"ds_write_b128 v{vMw}, {v(MA,4)} offset:{MP}", "f"); A.lds(f"ds_write_b128 v{vMw}, {v(MA+4,4)} offset:{MP+16}", "f")
    A.e(f"s_mov_b64 exec, {(1 << ncl) - 1}")
    A.fstamp(); A.wait(vm="p0"); A.fstamp()
    A.e(f"v_cmp_eq_u32 vcc, s{sW}, v{TF+3}\ns_nop 0\ns_cmp_lg_u64 vcc, 0\ns_cbranch_scc1 L2_p0s"); A.label("L2_p0r")
    B.label("L2_p0s"); poll(B, "L2_p0", p0, f"v_cmp_eq_u32 vcc, 0, v{TF+3}"); B.e("s_branch L2_p0r")
    A.e("s_mov_b64 exec, 1"); A.wait(lg="f"); A.e("s_barrier")
    A.vmem(f"buffer_store_dword v60, v{vL7}, {s(sWs,4)}, s{sKy} offen sc1"); A.e("s_mov_b64 exec, -1")
    for i in range(8): A.lds(f"ds_read_b32 v{XF+i}, v{vL4} offset:{MP + 256*i}", "g2")
    A.wait(lg="g2")
    A.e(f"v_pk_add_f32 {v(XF,2)}, {v(XF,2)}, {v(XF+2,2)}\nv_pk_add_f32 {v(XF+4,2)}, {v(XF+4,2)}, {v(XF+6,2)}\nv_pk_add_f32 {v(XF,2)}, {v(XF,2)}, {v(XF+4,2)}\nv_add_f32 v52, v{XF}, v{XF+1}")
    A.e(f"v_mov_b32 v53, v52\nv_mov_b32 v54, s{sAdd}\ns_nop 0\nv_permlane32_swap_b32 v53, v52\nv_add_f32 v52, v52, v53")
    A.e(f"v_fma_f32 v52, v52, s{sMul}, v54\nv_min_u32 v52, -2, v52\ns_mov_b32 exec_hi, 0")
    A.vmem(f"buffer_store_dword v52, v{vMs}, {s(sWs,4)}, s{sMl} offen sc1"); A.e("s_mov_b64 exec, -1")
    A.fstamp()
    if ls: late_setup()
    fo2 = opt.get("fo2", 1); nl0 = opt.get("nl0", 2)
    for c in range(nl0): emit_dma(A, dmaL(c))
    A.stamp()
    if opt.get("walk", 1):
        A.e(f"s_mov_b64 exec, 0\ns_cmp_eq_u32 s{sW}, 0\ns_cbranch_scc1 L2_pad0\ns_cmp_eq_u32 s{sW}, 1\ns_cbranch_scc1 L2_pad1\ns_cmp_eq_u32 s{sW}, 2\ns_cbranch_scc1 L2_pad2\ns_branch L2_pad3")
        A.e(".p2align 12"); A.label("L2_walkret")
    px = f"buffer_load_dword v12, v{vXf}, {s(sWs,4)}, s{sXf} offen sc1"
    A.e("s_mov_b64 exec, 15")
    if fo2: A.vmem(px, "px")
    else: poll(A, "L2_px", px, "v_cmp_eq_u32 vcc, 0, v12"); A.stamp()
    A.e("s_mov_b64 exec, -1")
    A.e("s_movk_i32 s14, 13824")
    sweep = [f"buffer_load_dwordx4 {v(SV+8*h,4)}, v{SA}, {s(sWs,4)}, {'s14' if h else 0} offen sc1" for h in range(2)]
    sweep += [("s_mov_b64 exec, 0xff\n" if h == 0 else "") + f"buffer_load_dwordx4 {v(SV+8*h+4,4)}, v{SA}, {s(sWs,4)}, {'s14' if h else 0} offen offset:1024 sc1" + ("\ns_mov_b64 exec, -1" if h else "") for h in range(2)]
    tree = f"v_max_u32 v13, v{SV}, v{SV+1}\n" + "\n".join(f"v_max3_u32 v13, v13, v{SV+2*k}, v{SV+2*k+1}" for k in range(1, 8)) + "\nv_cmp_eq_u32 vcc, -1, v13"
    for x in sweep: A.vmem(x, "sw")
    if fo2:
        if nl0 < 1: emit_dma(A, dmaL(0))
        A.e("s_mov_b64 exec, 15"); A.wait(vm="px")
        A.e("v_cmp_eq_u32 vcc, 0, v12\ns_nop 0\ns_cmp_eq_u64 vcc, 0\ns_cbranch_scc1 L2_px_ok")
        keep = list(A.vm); poll(A, "L2_px", px, "v_cmp_eq_u32 vcc, 0, v12", 0); A.vm = keep
        A.e("s_mov_b64 exec, -1"); A.stamp()
    for c in range(2):
        for pre, ld in xload(c): A.items(pre + [ld])
    A.fstamp(); A.wait(vm="sw"); A.fstamp()
    A.e(tree + "\ns_nop 0\ns_cmp_lg_u64 vcc, 0\ns_cbranch_scc1 L2_pms"); A.label("L2_pmr")
    B.label("L2_pms"); poll(B, "L2_pm", "\n".join(sweep), tree); B.e("s_branch L2_pmr")
    A.fstamp()
    for k in range(0, 8, 2): A.e(f"v_pk_add_f32 {v(SV+k,2)}, {v(SV+k,2)}, {v(SV+8+k,2)}")
    A.lds(f"ds_write_b128 v{SD}, {v(SV,4)}", "mw"); A.e("s_mov_b64 exec, 0xff"); A.lds(f"ds_write_b128 v{SD}, {v(SV+4,4)} offset:2048", "mw"); A.e("s_mov_b64 exec, -1")
    A.wait(vm=("L", 0), lg="mw"); A.e("s_barrier")
    A.items(as_reads(0, 0) + as_reads(0, 1))
    if nl0 < 2: emit_dma(A, dmaL(1))
    for pre, ld in xload(2): A.items(pre + [ld])
    A.wait(vm=("X", 0))
    for q in range(4):
        A.wait(lg=("AS", 0, q)); A.items(modulate(0, q))
        if q < 3: A.items(as_reads(0, q + 2) if q < 2 else as_reads(1, 0))
        if q == 2:
            for G in range(QD): A.items(qreads(G))
    A.stamp()
    A.wait(lg=("A", 0))
    Sc, leftover, vmg = gen_qproj(A)
    N = len(Sc.mf)
    T = Asm(); pf_addr(T)
    rest = Sc.fill([(0, x) for x in T.L], 512, N); assert not rest
    rest = Sc.fill([(0, x) for x in kreads(0, ("K", 0))], N - 4 * QD, N); assert not rest
    pend = []
    for t2 in range(8):
        cs = [qconvert(2 * (t2 // 4) + n, t2 % 4) for n in range(2)]
        pend += [(512 + 8 * t2 + 7 + 5, x) for x in cs[0][0] + cs[1][0]]
    pend = Sc.fill(pend, 512, N)
    late = len(pend) > 32
    for c in range(9):
        Sc.emit(A, 64 * c, 64 * c + 64)
        if A.stamping == 4 or c in (3, 8): A.stamp()
    A.e(f"s_mul_i32 s3, s{sT8}, 9216\ns_add_u32 s3, s3, {WS_H2}"); A.srd(sH2, sWs, 9216, "s3")
    emit_dma(A, leftover)
    if late: A.items([x for _, x in pend[:-32]]); pend = pend[-32:]
    for t in range(4):
        for j in range(2): A.items(qconvert(j, t)[1])
    A.items([x for _, x in pend]); A.e("s_nop 0")
    for t in range(4):
        for j in range(2, 4): A.items(qconvert(j, t)[1])
    A.wait(lg=(("K", 0), 0))
    for j in range(4):
        for t in range(4):
            d = S0 + 4 * j
            A.e(f"{MF} {v(d,4)}, {a(KF(0,t),4)}, {v(Q(j,t),4)}, {'0' if t == 0 else v(d,4)}")
    A.e("s_nop 1")
    for j in range(4):
        d = S0 + 4 * j
        A.e(f"v_max3_f32 v{d}, v{d}, v{d+1}, v{d+2}\nv_max_f32 v{d}, v{d}, v{d+3}")
    xmax_to_negm(A, [S0 + 4 * j for j in range(4)], BIAS)
    NIT = opt.get("nit", 11)
    A.label("L2_entry")
    A.e(f"s_mov_b32 s{sBase}, s{sW4}\ns_mov_b32 s{sDel}, {-2*SLOT}\ns_mov_b32 s{sCnt}, {NIT}\ns_mov_b32 s{sT}, {2*16384}\ns_mov_b32 s100, 0x07060302")
    A.wait(vm=("L", 10)); A.e("s_barrier")
    A.stamp()
    pair = opt.get("pair", 1)
    Sf = gen_stage(0, "first", dma_kv_dyn(3, 1), opt, bar=0 if pair else 2)
    rest = Sf.fill([(0, f"v_mov_b32 v{O(3,0)+i}, 0") for i in range(32)], 33, 132)
    for _, x in rest: Sf.va[17].append(x)
    Sf.emit(A)
    tcode = []
    def body(i):
        if pair == 1:
            Sa = gen_stage(i, "A", dma_kv_dyn(i + 3, 0) + dma_kv_dyn(i + 4, 1), opt, bar=0, dgap=1)
            Sa.emit(A)
            Sb = gen_stage(i + 1, "B", [], opt, bar=0)
        elif pair == 2:
            gen_stage(i, "A", dma_kv_dyn(i + 3, 0), opt, bar=0, dgap=1).emit(A)
            Sb = gen_stage(i + 1, "B", dma_kv_dyn(i + 4, 1), opt, bar=0)
        else:
            gen_stage(i, "A", dma_kv_dyn(i + 3, 0), opt).emit(A)
            Sb = gen_stage(i + 1, "B", dma_kv_dyn(i + 4, 1), opt)
        Sb.sh[128].append(f"s_sub_u32 s{sCnt}, s{sCnt}, 1"); Sb.sh[129].append(f"s_cmp_lg_u32 s{sCnt}, 0")
        Sb.emit(A)
    if opt.get("align_loop", 1): A.e(".p2align 5")
    A.label("L2_loop")
    n0 = len(A.L); body(1); n1 = len(A.L); body(3)
    assert A.L[n0:n1] == A.L[n1:], "loop body not in steady state"
    assert lint(A.L[n0:], "loop2x") == 0
    del A.L[n1:]
    def shift(t, d):
        if isinstance(t, tuple) and t[0] in ("L", "V"): return (t[0], t[1] + d)
        if isinstance(t, tuple) and isinstance(t[0], tuple): return ((t[0][0], t[0][1] + d), t[1])
        return t
    A.vm = [shift(t, 2 * NIT - 4) for t in A.vm]; A.lg = [shift(t, 2 * NIT - 4) for t in A.lg]
    A.e("s_cbranch_scc1 L2_loop")
    def gt(ch):
        if ch == "r": return ([], ("vm", f"buffer_load_dword a{aDum}, v{vAS}, {s(sWr,4)}, 0 offen", None))
        vr, sp = dict(g=(12, 4), u=(12, 6), d=(13, 8), a=(14, 10), b=(15, 10))[ch]
        return ([], ("vm", f"global_load_dword a{aDum}, v{vr}, {s(sp,2)}", None))
    fw = ld_ffn()
    plan = opt.get("plan", {24: "ga", 26: "bu", 28: "dr01234", 30: "5678ABCD"} if pair == 1 else {23: "g", 24: "a", 25: "b", 26: "u012", 27: "d345", 28: "r678", 29: "AB", 30: "CD"})
    def tile(n, odd): return dma_kv_dyn(n, odd) if n < 32 else dma_wo(n - 32)
    for i in range(2 * NIT + 1, 31):
        ex = [fw[int(ch)] if ch.isdigit() else gt(ch) if ch.islower() else
              ([], ("vm", f"buffer_store_dwordx4 a[56:59], v{vKV}, {s(sH2,4)}, 0 offen offset:{1024*(ord(ch) - 65)} sc1", None)) for ch in plan.get(i, "")]
        if pair == 1: gen_stage(i, "A" if i % 2 else "B", tile(i + 3, 0) + tile(i + 4, 1) if i % 2 else [], opt, ex, bar=0, dgap=i % 2).emit(A)
        else: gen_stage(i, "A" if i % 2 else "B", tile(i + 3, 1 - i % 2), opt, ex, bar=0 if pair else 2, dgap=pair and i % 2).emit(A)
    nup = opt.get("nup", 16)
    upd = [x for k in range(9) for x in ([fw[9 + k]] + ([fw[18 + k]] if 18 + k < 9 + nup else []))]
    Sl = gen_stage(31, "last", dma_wo(2), opt, upd, opt.get("xs31", 1), dgap=pair)
    def norm(j, pk):
        r = vTmp + 2 * (j % 2)
        out = [f"v_accvgpr_read_b32 v{r}, a{aL+4*j}", f"v_accvgpr_read_b32 v{r+1}, a{aL+4*j+1}", f"v_add_f32 v{r}, v{r}, v{r+1}"]
        if opt.get("ones2", 0):
            for op in ("v_permlane16_swap_b32", "v_permlane32_swap_b32"):
                out += [f"v_mov_b32 v{r+1}, v{r}", "s_nop 1" if pk else "s_nop 0", f"{op} v{r+1}, v{r}", f"v_add_f32 v{r}, v{r}, v{r+1}"]
        out += [f"v_subrev_u32 v{r+1}, {hex(f2u(2.0**(-BIAS-3)))}, v{r}", f"v_cmp_gt_u32 {s(56+2*j,2)}, v{r+1}, s15", f"v_rcp_f32 v{r}, v{r}"]
        body = []
        for x in range(4):
            o = O(j, 2 * x)
            if pk: body += [f"v_pk_mul_f32 {v(o+i,2)}, {v(o+i,2)}, {v(r,2)} op_sel_hi:[1,0]" for i in range(0, 8, 2)]
            else: body += [f"v_mul_f32 v{o+i}, v{o+i}, v{r}" for i in range(8)]
            body += [f"v_cvt_pk_bf16_f32 v{o+i}, v{o+2*i}, v{o+2*i+1}" for i in range(4)]
        return out, body
    Sl.sh[40].append(f"s_mov_b32 s15, {hex(f2u(2.0**60) - f2u(2.0**(-BIAS-3)))}")
    rest = Sl.fill([(149, x) for x in oreads(0)], 149, 165); assert not rest
    rest = Sl.fill([(70 + 33 * j, x) for j in range(2) for x in sum(norm(j, False), [])], 70, 165)
    Sl.emit(A)
    A.stamp()
    h2_, b2 = norm(2, True); h3, b3 = norm(3, True)
    rest = ["s_nop 1" if x == "s_nop 0" else x for _, x in rest]
    if len(rest) >= 48:
        A.items(rest[:-48] + h2_ + norm(1, True)[1] + h3[:-1])
    else: A.items(h2_ + rest + h3[:-1])
    A.e("s_or_b64 s[56:57], s[56:57], s[58:59]\n" + h3[-1] + "\ns_or_b64 s[60:61], s[60:61], s[62:63]\ns_or_b64 s[56:57], s[56:57], s[60:61]")
    A.e(f"s_lshl2_add_u32 s14, s{sW}, {FLAG}\nv_mov_b32 v{NM+9}, s14\nv_mov_b32 v{NM+10}, {FLAG}")
    A.items(b2 + b3)
    A.wait(lg=("W", 0, 0))
    A.stamp()
    So, leftover = gen_oproj(A)
    So.sh[2].append("s_cmp_lg_u64 s[56:57], 0\ns_cselect_b32 s3, 1, 0"); So.sh[4].append(("s_mov_b32 s3, 1\n" if opt.get("force_fallback") else "") + f"s_andn2_b32 s3, s3, s{sPass}")
    So.va[9].append(f"v_mov_b32 v{NM+8}, s3"); So.mem[15].append(("lds", f"ds_write_b32 v{NM+9}, v{NM+8}", "fw"))
    for c in range(9):
        So.emit(A, 64 * c, 64 * c + 64)
        if A.stamping == 3: A.stamp()
    A.e("s_nop 7")
    for n in range(2):
        cv, sw, st = oepi(17, n)
        A.items(cv + ["s_nop 1"] + sw + st[0] + [st[1]])
    A.stamp()
    gen_tail(A, B, opt)
    A.label("L2_end")
    A.e("s_endpgm")
    A.L += B.L
    A.label("L2_fallback")
    A.wait_all(); A.e(f"s_nop 7\ns_barrier\ns_lshl_b32 s3, s{sW}, 12\nv_add_u32 v{vKV}, s3, v{vX}")
    init_kv_addr()
    for j in range(4): A.e(f"v_mov_b32 v{P0+j}, 0xff800000")
    A.e(f"s_mov_b32 s{sPass}, 1\ns_mov_b32 s{sT}, 0")
    A.label("L2_fb_loop")
    emit_dma(A, dma_kv_static(None, (0,), 2))
    A.wait_all(); A.e("s_barrier")
    A.items(kreads(0, "fk")); A.wait_all(); A.e("s_barrier")
    for j in range(4):
        for kt in range(4):
            for t in range(4):
                d = S0 + 4 * kt
                A.e(f"{MF} {v(d,4)}, {a(KF(kt,t),4)}, {v(Q(j,t),4)}, {'0' if t == 0 else v(d,4)}")
        A.e("s_nop 7")
        for i in range(8): A.e(f"v_max3_f32 v{P0+j}, v{P0+j}, v{S0+2*i}, v{S0+2*i+1}")
    A.e(f"s_add_u32 s{sT}, s{sT}, 16384\ns_cmp_lt_u32 s{sT}, {32*16384}\ns_cbranch_scc1 L2_fb_loop")
    xmax_to_negm(A, [P0 + j for j in range(4)], 0.0)
    for i in range(3): emit_dma(A, dma_kv_static(i))
    A.wait_all(); A.e("s_barrier")
    A.items(kreads(0, "fk")); pf_addr(A)
    for i in range(16): A.e(f"v_accvgpr_write_b32 a{aL+i}, 0")
    A.wait_all()
    A.e("s_branch L2_entry")
    A.label("L2_codeend")
    if opt.get("walk", 1): A.L = insert_pads(A.L, "L2_walkret", "L2_end")
    return A, dict(name=KNAME, grid=256, block=256, lds=LDS_BYTES, vgpr=512, acc=256)
```

```python
from asmlib import *
from layout import *

RING = 16384; SLOT = 36864; HALF = 16896; PIECE = 1056
ASB = 9216
SCR = 13824
FLAG = SCR
LDS_BYTES = RING + 4 * SLOT
BIAS = 64
vK, vV, vT, vT2, vKV, vWq, vWo, vX, vAS, vPt, vIdx = 1, 2, 3, 4, 5, 6, 7, 8, 9, 10, 11
vTmp = 12
S0 = 16; P0 = 32; NM = 48; Q0 = 64; O0 = 128
AS0 = 16; T0 = 32; X0 = 48
def O(j, dt): return O0 + (j * 8 + dt) * 4
def Q(j, t): return Q0 + (j * 4 + t) * 4
def X(c, n, kl): return X0 + ((c + 2) % 5) * 16 + (n * 2 + kl) * 4
aL = 0; aOne = 16; aK = 64; aV = 128
def KF(kt, t): return aK + (kt * 4 + t) * 4
def VF(buf, dt, u): return aV + buf * 64 + (dt * 2 + u) * 4
sK, sV, sWq, sWo, sXn, sWr, sPt = 16, 20, 24, 28, 32, 36, 40
sC, sWm, sDb = 16, 88, 60
sW4, sOff, sT, sBase, sDel, sCnt, sPass, sW, sG, sTb, sOff2 = 44, 45, 46, 47, 48, 49, 50, 51, 52, 53, 54
sWg, sWu, sWd, sXi, sOut, sWs, sPr = 64, 68, 72, 76, 80, 84, 88
sW9, sT8, sCap = 55, 96, 97
sH2 = 32
sSt = 24; sYp = 32
vFg = vWq
aDum = 63
MF = "v_mfma_f32_16x16x32_bf16"

def trd(dst, slot, off):
    base = vT if slot < 2 else vT2
    return f"ds_read_b64_tr_b16 {a(dst,2)}, v{base} offset:{(slot % 2) * SLOT + off}"

def dma_wq(c):
    slot = (c + 1) % 4; out = []
    for kl in range(2):
        for r in range(4):
            out.append(([f"s_add_u32 m0, s{sW4}, {slot*SLOT + kl*HALF + r*PIECE}", f"s_mov_b32 s{sOff}, {(64*c + 32*kl + r) * 8192}"],
                        ("vm", f"buffer_load_dwordx4 v{vWq}, {s(sWq,4)}, s{sOff} offen{OPT.get('wq_nt','')} lds", ("L", c))))
    return out
def dma_kv_static(i, halves=(0, 1), slot=None):
    slot = (i + 2) % 4 if slot is None else slot; out = []
    for h in halves:
        for j in range(4):
            pre = [f"s_add_u32 m0, s{sW4}, {slot*SLOT + h*HALF + 32*j}"]
            if i is not None and j == 0 and h == halves[0]: pre.append(f"s_mov_b32 s{sT}, {i*16384}")
            out.append((pre, ("vm", f"buffer_load_dwordx4 {'off' if OPT.get('tid', 1) else v(vKV)}, {s(sV if h else sK,4)}, s{sT}{'' if OPT.get('tid', 1) else ' offen'} offset:{1024*j}{OPT.get('kv_nt','')} lds", ("L", 9 + (i or 0)))))
    return out
def dma_kv_dyn(i, odd):
    out = []
    for h in range(2):
        for j in range(4):
            pre = [f"s_add_u32 m0, s{sBase}, {odd*SLOT + h*HALF + 32*j}"] + [f"s_add_u32 s{sT}, s{sT}, 16384"] * (h == 0 and j == 0)
            out.append((pre, ("vm", f"buffer_load_dwordx4 {'off' if OPT.get('tid', 1) else v(vKV)}, {s(sV if h else sK,4)}, s{sT}{'' if OPT.get('tid', 1) else ' offen'} offset:{1024*j}{OPT.get('kv_nt','')} lds", ("L", 9 + i))))
    return out
def dma_wo(c):
    slot = (c + 2) % 4; out = []
    for hi in range(2):
        for r in range(4):
            pre = [f"s_add_u32 m0, s{sW4}, {slot*SLOT + hi*HALF - 96*r}"]
            if r == 0: pre.append(f"s_mov_b32 s{sOff}, {c*128 + hi*128*1152}")
            out.append((pre, ("vm", f"buffer_load_dwordx4 v{vWo}, {s(sWo,4)}, s{sOff} offen offset:{1152*r}{OPT.get('wo_nt','')} lds", ("L", 41 + c))))
    return out
def FW(k): return 20 + 4 * k if k < 9 else aV + 4 * (k - 9)
def ld_ffn():
    out = []
    for m in range(3):
        for i in range(9):
            d = a(FW(9 * m + i), 4)
            if m < 2: out.append(([f"s_mov_b32 s{sOff2}, {i*16*9216}"], ("vm", f"buffer_load_dwordx4 {d}, v{vFg}, {s(sWu if m else sWg,4)}, s{sOff2} offen", "fw")))
            else: out.append(([f"s_add_u32 s{sOff2}, s{sW9}, {1024*i}"], ("vm", f"buffer_load_dwordx4 {d}, v{vX}, {s(sWd,4)}, s{sOff2} offen", "fw")))
    return out
def touch(vaddr, srd, off):
    return ([f"s_mov_b32 s{sOff2}, {off}"], f"buffer_load_dword a{aDum}, v{vaddr}, {s(srd,4)}, s{sOff2} offen")
def dmaL(n):
    return dma_wq(n) if n < 9 else (dma_kv_static(n - 9) if n < 41 else dma_wo(n - 41))
def emit_dma(A, lst):
    for pre, ld in lst:
        A.items(pre)
        if len(pre) == 1: A.e("s_nop 0")
        A.item(ld)
def xload(c):
    return [([f"s_mov_b32 s{sOff2}, {n*18432 + (2*c+kl)*1024}"],
             ("vm", f"buffer_load_dwordx4 {v(X(c,n,kl),4)}, {'off' if OPT.get('tidx', 1) else v(vX)}, {s(sXn,4)}, s{sOff2}{'' if OPT.get('tidx', 1) else ' offen'} sc1", ("X", c))) for n in range(2) for kl in range(2)]
def place_vm(Sc, g, item):
    pre, ld = item
    for k, p in enumerate(pre): Sc.sh[g - 1 + k].append(p)
    Sc.mem[g].append(ld)

def as_reads(c, q):
    kl, hf = q // 2, q % 2; d = AS0 + (q % 2) * 8; off = ASB + (2 * c + kl) * 256 + hf * 16
    return [("lds", f"ds_read_b128 {v(d,4)}, v{vAS} offset:{off}", ("AS", c, q)), ("lds", f"ds_read_b128 {v(d+4,4)}, v{vAS} offset:{off+32}", ("AS", c, q))]
def modulate(c, q):
    kl, hf = q // 2, q % 2; d = AS0 + (q % 2) * 8; out = []
    for n in range(2):
        x = X(c, n, kl) + 2 * hf; t = T0 + 4 * n
        for i in range(4):
            out.append(f"v_fma_mix_f32 v{t+i}, v{x+i//2}, v{d+i}, v{d+4+i} op_sel:[{i%2},0,0] op_sel_hi:[1,0,0]")
        out += [f"v_cvt_pk_bf16_f32 v{x}, v{t}, v{t+1}", f"v_cvt_pk_bf16_f32 v{x+1}, v{t+2}, v{t+3}"]
    return out

def kreads(off, tag): return [("lds", f"ds_read_b128 {a(KF(kt,t),4)}, v{vK} offset:{off + kt*256 + t*64}", (tag, kt)) for kt in range(4) for t in range(4)]
def vreads(buf, off, tag): return [("lds", f"ds_read_b64_tr_b16 {a(VF(buf,dt,u)+2*b,2)}, v{vV} offset:{off + (2*u+b)*256 + dt*32}", tag) for dt in range(8) for u in range(2) for b in range(2)]

QD = 3
def AF(grp, kl): return aV + 64 + (grp % 8) * 8 + kl * 4
def qreads(G):
    c, mt = divmod(G, 16); slot = (c + 1) % 4
    return [("lds", trd(AF(G, kl) + 2 * b, slot, kl * HALF + b * 512 + mt * 32), ("A", G)) for kl in range(2) for b in range(2)]

def gen_qproj(A):
    Sc = Sched()
    for c in range(9):
        for mt in range(16):
            G = c * 16 + mt
            for n in range(2):
                d = O(2 * (mt // 8) + n, mt % 8)
                for kl in range(2):
                    cc = "0" if c == 0 and kl == 0 else v(d, 4)
                    Sc.mfma(f"{MF} {v(d,4)}, {a(AF(G,kl),4)}, {v(X(c,n,kl),4)}, {cc}")
    N = len(Sc.mf); vmg = set()
    leftover = []
    for k, it in enumerate(dmaL(2)):
        g = 3 + 4 * k; place_vm(Sc, g, it); vmg.add(g)
    for c in range(9):
        gb = 64 * (c + 1) - 4 * QD - 1 if c < 8 else OPT.get("gb8", 551)
        Sc.sh[gb] += [("wait", ("L", c + 1), None), "s_barrier"]
        for k, it in enumerate(dmaL(c + 3)):
            g = gb + 4 + 4 * k
            if g < N: place_vm(Sc, g, it); vmg.add(g)
            else: leftover.append(it)
    for c in range(6):
        for k, it in enumerate(xload(c + 3)):
            g = 64 * c + 35 + 4 * k
            assert g not in vmg
            place_vm(Sc, g, it); vmg.add(g)
    for G in range(144):
        if G > 0: Sc.sh[4 * G - 1].append(("wait", None, ("A", G)))
        if G + QD < 144:
            rd = qreads(G + QD); gs = [g for g in range(4 * G, 4 * G + 4) if g not in vmg]
            if len(gs) == 3: gs = [gs[0], gs[1], gs[1], gs[2]]
            for g, r in zip(gs, rd): Sc.mem[g].append(r)
    for c in range(8):
        Sc.sh[64 * c].append(("wait", ("X", c + 1), None))
        for q in range(4):
            w0 = 64 * c + 16 * q
            nxt = as_reads(c + 1, q + 1) if q < 3 else (as_reads(c + 2, 0) if c < 7 else [])
            items = modulate(c + 1, q)
            Sc.sh[w0].append(("wait", None, ("AS", c + 1, q)))
            free = [g for g in range(w0, w0 + 16) if g not in vmg and len(Sc.mem[g]) < 2]
            for r in nxt:
                g = free.pop(0); Sc.mem[g].append(r)
            over = len(items) - len(free)
            odd = sorted(range(w0 + 1, w0 + 16, 2), key=lambda g: (g in vmg, -g))
            slots = sorted(free + odd[:over] if over > 0 else free); assert len(slots) >= len(items)
            for g, it in zip(slots, items): Sc.va[g].append(it)
    return Sc, leftover, vmg

def qconvert(j, t):
    o = O(j, 2 * t); q = Q(j, t)
    return [f"v_cvt_pk_bf16_f32 v{q+i}, v{o+2*i}, v{o+2*i+1}" for i in range(4)], [f"v_permlane32_swap_b32 v{q}, v{q+2}", f"v_permlane32_swap_b32 v{q+1}, v{q+3}"]

def pf_addr(A):
    A.e(f"v_lshrrev_b32 v14, 2, v0\ns_mul_i32 s3, s{sW}, 144\nv_add_u32 v14, s3, v14\nv_mul_u32_u24 v14, 9216, v14\nv_and_b32 v15, 3, v0\nv_lshl_add_u32 v{vFg}, v15, 4, v14")
    A.e(f"s_lshr_b32 s3, s2, 3\ns_lshl2_add_u32 s3, s3, s{sW}\ns_and_b32 s15, s2, 7\nv_lshlrev_b32 v{vAS}, 7, v0")
    A.e(f"s_mul_i32 s14, s3, 9\ns_lshr_b32 s14, s14, 1\nv_min_u32 v15, 44, v0\nv_mul_u32_u24 v12, 7282, v15\nv_lshrrev_b32 v12, 16, v12\nv_mul_u32_u24 v13, 63, v12\nv_add_u32 v12, v15, v13")
    A.e(f"s_mul_i32 s14, s14, 72\ns_mul_i32 s56, s15, 9\ns_add_u32 s14, s14, s56\nv_add_lshl_u32 v12, s14, v12, 7")
    A.e(f"s_mul_i32 s14, s3, 81\ns_lshr_b32 s14, s14, 1\ns_mul_i32 s56, s15, 5184\ns_add_u32 s14, s14, s56\nv_min_u32 v13, 40, v0\nv_add_lshl_u32 v13, s14, v13, 7")
    A.e(f"s_mul_i32 s14, s3, 72\ns_andn2_b32 s56, s{sG}, 3\ns_mul_i32 s56, s56, 2304\ns_add_u32 s14, s14, s56\nv_min_u32 v14, 35, v0\nv_add_lshl_u32 v14, s14, v14, 7\nv_add_u32 v15, 4608, v14")

def xmax_to_negm(A, src, bias):
    t = P0 + 8
    for op in ("v_permlane16_swap_b32", "v_permlane32_swap_b32"):
        for j in range(4): A.e(f"v_mov_b32 v{t+j}, v{src[j]}")
        for j in range(4): A.e(f"{op} v{t+j}, v{src[j]}")
        for j in range(4): A.e(f"v_max_f32 v{src[j]}, v{src[j]}, v{t+j}")
    for j in range(4):
        for i in range(4): A.e(f"v_sub_f32 v{NM+4*j+i}, {hex(f2u(-float(bias)))}, v{src[j]}")

def gen_stage(i, kind, dma, opt, extra=(), xstep=2, bar=2, dgap=None):
    par = i % 2; Sc = Sched(); first = kind == "first"; last = kind == "last"
    nun = 5 if last else 4
    for j in range(nun):
        for kt in range(4):
            for t in range(4):
                d = S0 + 4 * kt
                Sc.mfma(None if j == 4 else f"{MF} {v(d,4)}, {a(KF(kt,t),4)}, {v(Q(j,t),4)}, {v(NM+4*j,4) if t == 0 else v(d,4)}")
        jp = (j - 1) % 4; vb = par if j > 0 else 1 - par; p = P0 + 8 * (jp % 2)
        skip = first and j == 0
        for dt in range(8):
            for u in range(2):
                d = O(jp, dt); cc = "0" if first and u == 0 else v(d, 4)
                Sc.mfma(None if skip else f"{MF} {v(d,4)}, {a(VF(vb,dt,u),4)}, {v(p+4*u,4)}, {cc}")
        Sc.mfma(None if skip else f"v_smfmac_f32_16x16x64_bf16 {a(aL+4*jp,4)}, {a(aOne,4)}, {v(p,8)}, v{vIdx}")
        b = 33 * j
        for x in range(16):
            prev = x < 4
            if (prev and skip) or (j == 4 and not prev): continue
            e = (x - 4) % 16
            Sc.va[b + 2 * x].append(f"v_exp_f32 v{S0+e}, v{S0+e}")
        for k in range(8):
            prev = k < 3; pr = (k + 5) % 8
            if (prev and skip) or (j == 4 and not prev): continue
            pb = P0 + 8 * ((j - 1 if prev else j) % 2)
            if opt.get("perm", 1): Sc.va[b + 4 * k + 1].append(f"v_perm_b32 v{pb+pr}, v{S0+2*pr+1}, v{S0+2*pr}, s100")
            else: Sc.va[b + 4 * k + 1].append(f"v_cvt_pk_bf16_f32 v{pb+pr}, v{S0+2*pr}, v{S0+2*pr+1}")
    if first:
        for g in range(16, 33):
            if g % 2 == 0: Sc.va[g].append("s_nop 0")
        Sc.sh[16].append("s_nop 3"); Sc.sh[8].append("s_nop 1")
    if last:
        for g in range(33 * 4, 33 * 4 + 8, 2): Sc.va[g].append("s_nop 0")
        Sc.va[33 * 4 + 15].append("s_nop 1")
    for kt in range(1, 4): Sc.sh[4 * kt - 1].append(("wait", None, (("K", i), kt)))
    cand = [33 * j + r for j in range(4 if last else 3) for r in range(3, 32, 4)]
    gs = cand[:len(dma)] + cand[len(dma)::xstep]
    if dgap:
        gs = cand[4:4 + len(dma)] + cand[max(8, 4 + len(dma))::xstep]
        if len(dma) == 16: gs = cand[4:12] + cand[16:24]
        Sc.sh[15] += [("wait", ("L", 9 + i + 2), None), "s_barrier"]
    dma = list(dma) + list(extra)
    vmg = set()
    for g, it in zip(gs, dma): place_vm(Sc, g, it); vmg.add(g)
    assert len(vmg) == len(dma)
    if kind == "A":
        Sc.va[1].append(f"v_add_u32 v{vK}, s{sDel}, v{vK}"); Sc.va[5].append(f"v_add_u32 v{vV}, s{sDel}, v{vV}")
        Sc.sh[0].append(f"s_sub_u32 s{sBase}, s{sBase}, s{sDel}")
        Sc.sh[8].append(f"s_sub_u32 s{sDel}, 0, s{sDel}")
    if not last:
        off = 0 if kind == "A" else SLOT
        if first:
            rest = Sc.fill([(0, x) for x in vreads(0, 0, ("V", 0))], 0, 16)
            for _, x in rest: Sc.mem[16].append(x)
            Sc.sh[47].append(("wait", None, ("V", 0)))
        free = [33 * j + r for j in range(3) for r in list(range(1, 32, 2)) + [32] if 33 * j + r >= 17 and 33 * j + r not in vmg]
        vr = vreads(1 - par, off, ("V", i + 1))
        if len(free) < 32:
            two = [g for g in free if not Sc.va[g]]
            free = sorted(free + two[len(two) - (32 - len(free)):]); assert len(free) == 32
        for n, r in enumerate(vr):
            assert free[n] >= 16 + n // 2
            Sc.mem[free[n]].append(r)
        for n, r in enumerate(kreads(off, ("K", i + 1))): Sc.mem[99 + 2 * n + 1].append(r)
        if bar: Sc.sh[131] += [("wait", ("L", 9 + i + bar), (("K", i + 1), 0)), "s_barrier"]
        else: Sc.sh[131].append(("wait", None, (("K", i + 1), 0)))
    return Sc

OA = 16; OR = 48
def OB(n, u): return O(2 * (u // 4) + n, 2 * (u % 4))
def WF(grp, u): return aK + (grp % 2) * 32 + u * 4
def oreads(G):
    c, ntl = divmod(G, 4); slot = (c + 2) % 4
    return [("lds", trd(WF(G, u) + 2 * b, slot, (u // 4) * HALF + (2 * (u % 4) + b) * 128 + ntl * 32), ("W", G, u // 2)) for u in range(8) for b in range(2)]
def oacc(G, n): return OA + ((G % 4) * 2 + n) * 4
def oepi(pair, n):
    r = OR + 4 * n; x, y = oacc(2 * pair, n), oacc(2 * pair + 1, n); c, aa = divmod(pair, 2)
    cv = [f"v_cvt_pk_bf16_f32 v{r}, v{x}, v{x+1}", f"v_cvt_pk_bf16_f32 v{r+1}, v{x+2}, v{x+3}", f"v_cvt_pk_bf16_f32 v{r+2}, v{y}, v{y+1}", f"v_cvt_pk_bf16_f32 v{r+3}, v{y+2}, v{y+3}"]
    sw = [f"v_permlane32_swap_b32 v{r}, v{r+2}", f"v_permlane32_swap_b32 v{r+1}, v{r+3}"]
    st = ([f"s_mov_b32 s{sOff2}, {n*2*TS + c*1024}"], ("vm", f"buffer_store_dwordx4 {v(r,4)}, v{vPt}, {s(sPt,4)}, s{sOff2} offen offset:{aa*512}{OPT.get('st_flags', ' sc1')}", "st"))
    return cv, sw, st

vXA, vXC = vK, vV
XR = 64
def HOLE(k): return O0 + 8 * k + 4
def xi_loads(ob):
    return [([], ("vm", f"buffer_load_dwordx4 {v(XR+4*i,4)}, v{vXC if i == 2 else vXA}, {s(sXi,4)}, 0 offen offset:{ob if i == 1 else 0}", "xi")) for i in range(3)]
vWA, vWC, vPA, vPB, vFa, vFl, vOne = 12, 13, 5, 59, 6, 9, 15
sFl, sRem, sQ, sRdyA, sFs, sPa = sBase, sDel, sT, sCnt, 56, 28
def WR(q): return 224 + 8 * (q // 4) + q % 4
def wr_loads():
    return [([], ("vm", f"buffer_load_dwordx4 {v(WR(4*i),4)}, v{vWC if i == 2 else vWA}, {s(sWr,4)}, 0 offen offset:{512*i}", "xi")) for i in range(3)]
def NV(r, h): return 76 + 12 * h + 4 * r
def mv_loads():
    return [([f"s_movk_i32 s{sOff}, {4608 + 13824*h + 4096*r}"], ("vm", f"buffer_load_dwordx4 {v(NV(r,h),4)}, v{vPB if r == 2 else vPA}, {s(sWs,4)}, s{sOff} offen sc1", "xi")) for r in range(3) for h in range(2)]
def item_addr(A, ma, mc, oc, t=14):
    A.e(f"s_mul_i32 s3, s{sW}, {ma}\nv_lshrrev_b32 v{t}, 3, v0\nv_lshl_add_u32 v{vWA}, v{t}, 4, s3\nv_and_b32 v{t}, 1, v{t}")
    if mc != ma: A.e(f"s_mul_i32 s3, s{sW}, {mc}")
    A.e(f"v_lshl_add_u32 v{vWC}, v{t}, 4, s3")
    A.e(f"v_and_b32 v{t}, 7, v0\nv_mul_u32_u24 v{t}, 1152, v{t}\nv_add_u32 v{vXA}, v{t}, v{vWA}\nv_add_u32 v{vXC}, v{t}, v{vWC}\nv_add_u32 v{vXC}, {oc}, v{vXC}")
def ready_mask(d):
    return ["s_lshr_b32 s3, vcc_lo, 1", "s_and_b32 s3, s3, vcc_lo", "s_lshr_b32 s14, s3, 2", f"s_and_b32 s{d}, s3, s14"]

vF2, vF0, vF1, vG0, vG1 = 104, 105, 106, 110, 111
aF = 64
def fw_write(k): return ("lds", f"ds_write_b128 v{(vF1, vF0, vF2)[k//9]}, {a(FW(k),4)} offset:{((3 + k//9) % 2)*SLOT + 1024*(k%9)}", "fww")
def fa_reads():
    far = [("lds", f"ds_read_b64_tr_b16 {a(aF+4*kk+2*b,2)}, v{vG0} offset:{2048*kk + 256*b}", "fa") for kk in range(18) for b in range(2)]
    return far + [("lds", f"ds_read_b64_tr_b16 {a(aF+72+4*nt+2*b,2)}, v{vG1} offset:{32*nt + 4608*b}", "fa") for nt in range(9) for b in range(2)]

def gen_oproj(A):
    Sc = Sched()
    for G in range(36):
        for n in range(2):
            for u in range(8):
                d = oacc(G, n)
                Sc.mfma(f"{MF} {v(d,4)}, {a(WF(G,u),4)}, {v(OB(n,u),4)}, {'0' if u == 0 else v(d,4)}")
    N = len(Sc.mf); vmg = set(); leftover = []
    st = OPT.get("o_step", 2)
    for c in range(8):
        gb = 64 * c + 47
        Sc.sh[gb] += [("wait", ("L", 41 + c + 1), "fw"), "s_barrier"]
        if c + 3 <= 8:
            for k, it in enumerate(dma_wo(c + 3)):
                g = gb + 2 + st * k; place_vm(Sc, g, it); vmg.add(g)
    misc = ld_ffn()[9 + OPT.get("nup", 16):]
    gl = list(range(3, 32, 4)); assert len(gl) >= len(misc)
    for g, it in zip(gl, misc): place_vm(Sc, g, it); vmg.add(g)
    Sc.sh[440] += [f"s_sub_u32 s{sPa}, s{sPr}, 4096", f"s_subb_u32 s{sPa+1}, s{sPr+1}, 0"]; Sc.sh[441].append(f"s_mov_b32 s{sPa+2}, {TS}")
    if OPT.get("fo", 0):
        Sc.sh[64 * 8 + 15].append("s_barrier")
        for m, g0 in enumerate((64 * 6 + 48, 64 * 7 + 48, 64 * 8 + 16)):
            gs_ = [g0 + 2 * k for k in range(8)] + [g0 + 32]
            for k, g in enumerate(gs_): Sc.mem[g].append(fw_write(9 * m + k)); vmg.add(g)
    swg = set()
    for p in range(17):
        for n in range(2):
            b = 16 * (2 * p + 2) + 8 * n
            cv, sw, st = oepi(p, n)
            for k, x in enumerate(cv): Sc.va[b + k].append(x)
            Sc.va[b + 5].append(sw[0]); Sc.va[b + 6].append(sw[1]); swg |= {b + 5, b + 6}
            Sc.sh[b + 4].append(st[0][0]); Sc.va[b + 7].append(st[1])
    for G in range(36):
        for h in range(4):
            g = 16 * G + 2 * h - 1
            if g >= 0: Sc.sh[g].append(("wait", None, ("W", G, h)))
        if G + 1 < 36:
            gs = [g for g in range(16 * G, 16 * G + 16) if g not in vmg and g not in swg]
            two = [g for g in gs if not Sc.va[g]]
            extra = 16 - len(gs)
            if extra > len(two): two = two + [g for g in range(16 * G + 7, 16 * G + 16, 8)] * 4
            gs = sorted(gs + two[:extra]); assert len(gs) == 16
            for g, r in zip(gs, oreads(G + 1)): Sc.mem[g].append(r)
    f = NM + 12
    Sc.mem[47].append(("lds", f"ds_read_b128 {v(f,4)}, v{NM+10}", "fr"))
    Sc.sh[55].append(("wait", None, "fr"))
    Sc.va[55] += [f"v_or3_b32 v{f}, v{f}, v{f+1}, v{f+2}", f"v_or_b32 v{f}, v{f}, v{f+3}"]
    Sc.va[63].append(f"v_readfirstlane_b32 s3, v{f}")
    Sc.sh[65].append("s_cmp_lg_u32 s3, 0"); Sc.sh[66].append("s_cbranch_scc1 L2_fallback")
    T = Asm(); item_addr(T, 128, 32, 1024)
    T.e(f"s_lshl_b32 s14, s{sW}, 10\nv_add_u32 v{vPA}, s14, v{vX}\nv_and_b32 v{vPB}, 0xf0, v{vX}\ns_lshl_b32 s14, s{sW}, 8\nv_add_u32 v{vPB}, s14, v{vPB}")
    T.e(f"v_and_b32 v{vFa}, 15, v0\nv_lshlrev_b32 v{vFa}, 8, v{vFa}\nv_min_u32 v{vOne}, 1, v0\nv_lshlrev_b32 v{vOne}, 30, v{vOne}")
    T.e(f"s_lshl_b32 s15, s{sTb}, 14\ns_add_u32 s15, s15, {WS_F1}\ns_and_b32 s14, s{sG}, 12\ns_lshl_b32 s14, s14, 10\ns_add_u32 s{sFl}, s15, s14")
    T.e(f"s_lshl4_add_u32 s3, s{sW}, s{sG}\ns_lshl_b32 s3, s3, 8\ns_add_u32 s{sFs}, s3, s15")
    T.e(f"s_add_u32 s14, s{sW9}, {RING}\nv_add_u32 v{vF2}, s14, v{vX}\nv_and_b32 v14, 32, v0\nv_xor_b32 v{vF0}, v14, v{vF2}\nv_add_u32 v{vF1}, {2*SLOT}, v{vF0}")
    T.e(f"v_lshrrev_b32 v{vG0}, 4, v0\nv_bfe_u32 v14, v0, 2, 2\nv_lshl_add_u32 v{vG0}, v{vG0}, 3, v14\nv_and_b32 v14, 3, v0\nv_mul_u32_u24 v{vG1}, 1152, v{vG0}\nv_lshlrev_b32 v{vG0}, 6, v{vG0}")
    T.e(f"v_lshl_add_u32 v{vG0}, v14, 3, v{vG0}\nv_lshl_add_u32 v{vG1}, v14, 3, v{vG1}\ns_lshr_b32 s3, s{sW}, 1\ns_xor_b32 s3, s3, 1\ns_mul_i32 s3, s3, {3*SLOT}\ns_and_b32 s14, s{sW}, 1\ns_lshl_b32 s14, s14, 5")
    T.e(f"s_add_u32 s3, s3, s14\ns_add_u32 s3, s3, {RING}\nv_add_u32 v{vG0}, s3, v{vG0}\nv_and_b32 v14, 16, v0\nv_lshlrev_b32 v14, 1, v14\nv_xor_b32 v{vG0}, v14, v{vG0}\ns_mul_i32 s3, s{sW}, 288\ns_add_u32 s3, s3, {RING + SLOT}\nv_add_u32 v{vG1}, s3, v{vG1}")
    rest = Sc.fill([(0, x) for x in T.L], 80, 400); assert not rest
    return Sc, leftover

def xsum8(A, regs, tmp):
    A.e("s_nop 1")
    for x in regs: A.e(f"v_add_f32_dpp v{x}, v{x}, v{x} row_ror:8 row_mask:0xf bank_mask:0xf")
    xsumG(A, regs, tmp)
def xsumG(A, regs, tmp):
    for op in ("v_permlane16_swap_b32", "v_permlane32_swap_b32"):
        for k, x in enumerate(regs): A.e(f"v_mov_b32 v{tmp+k}, v{x}")
        if len(regs) < 3: A.e(f"s_nop {2 - len(regs)}")
        for k, x in enumerate(regs): A.e(f"{op} v{tmp+k}, v{x}")
        for k, x in enumerate(regs): A.e(f"v_add_f32 v{x}, v{x}, v{tmp+k}")
def merge2(A, m1, m2, t1, t2):
    A.e(f"v_max_u32 v{m2}, v{m2}, v{t2}\nv_med3_u32 v{m2}, v{m1}, v{t1}, v{m2}\nv_max_u32 v{m1}, v{m1}, v{t1}")
def top2_lanes(A, m1, m2, t1, t2, rors, swaps):
    for sh in rors:
        A.e(f"s_nop 1\nv_mov_b32_dpp v{t1}, v{m1} row_ror:{sh} row_mask:0xf bank_mask:0xf\nv_mov_b32_dpp v{t2}, v{m2} row_ror:{sh} row_mask:0xf bank_mask:0xf")
        merge2(A, m1, m2, t1, t2)
    for op in swaps:
        A.e(f"v_mov_b32 v{t1}, v{m1}\nv_mov_b32 v{t2}, v{m2}\ns_nop 0\n{op} v{t1}, v{m1}\n{op} v{t2}, v{m2}")
        merge2(A, m1, m2, t1, t2)
def dot24(A, d, t, x, y):
    for acc, lo, hi in ((d, 0, 16), (t, 16, 24)):
        for i in range(lo, hi):
            if y is None:
                if i == lo: continue
                A.e(f"v_add_f32 v{acc}, v{x+lo if i == lo+1 else acc}, v{x+i}")
            else: A.e(f"{'v_mul_f32' if i == lo else 'v_fmac_f32'} v{acc}, v{x+i}, v{y+i}")
    A.e(f"v_fmac_f32 v{d}, 0x3e800000, v{t}")
def dot24p(A, d, t, x, y):
    for acc, lo, hi in ((t, 0, 16), (t + 2, 16, 24)):
        for i in range(lo, hi, 2):
            if y is None:
                if i > lo: A.e(f"v_pk_add_f32 {v(acc,2)}, {v(x+lo if i == lo+2 else acc,2)}, {v(x+i,2)}")
            elif i == lo: A.e(f"v_pk_mul_f32 {v(acc,2)}, {v(x+i,2)}, {v(y+i,2)}")
            else: A.e(f"v_pk_fma_f32 {v(acc,2)}, {v(x+i,2)}, {v(y+i,2)}, {v(acc,2)}")
    A.e(f"v_add_f32 v{d}, v{t}, v{t+1}\nv_add_f32 v{t+2}, v{t+2}, v{t+3}\nv_fmac_f32 v{d}, 0x3e800000, v{t+2}")
def poll(A, name, loads, test, sleep=1, shrink=0):
    A.e(f"s_mov_b32 s{sCap}, 0x20000")
    A.label(name)
    A.e(loads); A.wait_all(lg=False); A.e(test)
    A.e(f"s_sub_u32 s{sCap}, s{sCap}, 1\ns_cselect_b64 vcc, 0, vcc\ns_cmp_eq_u64 vcc, 0\ns_cbranch_scc1 {name}_ok")
    if shrink: A.e("s_mov_b64 exec, vcc")
    if sleep: A.e(f"s_sleep {sleep}")
    A.e(f"s_branch {name}")
    A.label(name + "_ok")
    if shrink: A.e("s_mov_b64 exec, -1")

def gen_tail(A, B, opt):
    ACC, GA, U, TM, PL = 16, 40, 76, 100, 112
    vMA, vMC, vPC = 3, 4, 7
    TB = RING + 2 * SLOT
    ST = SCR + 256
    def acc(dst, src, first):
        for q in range(4):
            if first: A.e(f"v_lshlrev_b32 v{dst+2*q}, 16, v{src+q}\nv_and_b32 v{dst+2*q+1}, 0xffff0000, v{src+q}")
            else:
                t = TM + 2 * (q % 2)
                A.e(f"v_lshlrev_b32 v{t}, 16, v{src+q}\nv_and_b32 v{t+1}, 0xffff0000, v{src+q}\nv_pk_add_f32 {v(dst+2*q,2)}, {v(dst+2*q,2)}, {v(t,2)}")
    fl = f"buffer_load_dword v{vFl}, v{vFa}, {s(sWs,4)}, s{sFl} offen sc1"
    A.vmem(fl, ("fl", 0))
    misc = mv_loads() + wr_loads() + xi_loads(512); nm = opt.get("nm", 12)
    for pre, ld in misc[:nm]: A.items(pre + [ld])
    far = fa_reads()
    if opt.get("fo", 0) == 1: A.wait(lg="fww"); A.e("s_barrier"); A.items(far[:opt.get("nf0", 54)]); far = far[opt.get("nf0", 54):]
    A.wait(vm="st")
    A.vmem(f"buffer_store_dword v{vT}, v{vOne}, {s(sWs,4)}, s{sFs} offen sc1")
    A.e(f"s_movk_i32 s{sRem}, 0x1111\nv_lshrrev_b32 v15, 4, v0\nv_mul_u32_u24 v15, {GS}, v15\nv_add_u32 v15, 4096, v15\nv_add_u32 v{vPC}, v{vPB}, v15")
    A.stamp()
    ready = f"v_cmp_ne_u32 vcc, 0, v{vFl}\ns_nop 0\n" + "\n".join(ready_mask(3)) + f"\ns_and_b32 s3, s3, s{sRem}"
    n0 = opt.get("n0", 10)
    def choose(i):
        if A.stamping == 5 and i: A.stamp()
        A.wait(vm=("fl", i))
        A.e(ready + f"\ns_cbranch_scc0 L2_g{i}s"); A.label(f"L2_g{i}r")
        A.e(f"s_ff1_i32_b32 s3, s3\ns_bitset0_b32 s{sRem}, s3\ns_mul_i32 s{sQ}, s3, {GS}")
        B.label(f"L2_g{i}s")
        poll(B, f"L2_g{i}", fl, ready + f"\ns_cselect_b64 vcc, 0, -1", opt.get("sl1", 1))
        B.e(f"s_cmp_eq_u32 s3, 0\ns_cselect_b32 s3, s{sRem}, s3\ns_branch L2_g{i}r")
        if i == 0 or A.stamping == 5: A.stamp()
        if n0 // 5 - 1 <= i < 3: A.vmem(fl, ("fl", i + 1))
    pend = []
    for i in range(4):
        R0 = PL + 36 * i
        pend.append([lambda i=i: choose(i), ("vm", f"buffer_load_dwordx4 {v(R0,4)}, v{vPC}, {s(sPr,4)}, s{sQ} offen{OPT.get('pl', ' sc1')}", ("c", i))])
        for g in range(4):
            pend.append([f"s_add_u32 s{sQ}, s{sQ}, {GS}"] * (g > 0) + [("vm", f"buffer_load_dwordx4 {v(R0+4+8*g+4*h,4)}, v{vPA}, {s(sPa if h else sPr,4)}, s{sQ} offen{OPT.get('pl', ' sc1')}", ("p", i, g, h)) for h in range(2)])
    win = opt.get("win", 99)
    def pace(free=False, step=None):
        if step is not None and opt.get("burst", 0):
            while pend and (20 - len(pend)) // 5 * 5 <= step + opt.get("off", 3): A.items(pend.pop(0))
        elif pend and (free or (20 - len(pend) < opt.get("n1", 10) if step is None else 20 - len(pend) <= step + opt.get("off", 3))):
            if len(A.vm) > win and not free:
                A.e(f"s_waitcnt vmcnt({win})"); del A.vm[:len(A.vm) - win]
            A.items(pend.pop(0))
        for _ in range(opt.get("nfw", 2)):
            if fww: A.item(fww.pop(0))
    fww = []
    for k in range(n0):
        pace(True)
        if k == opt.get("mpos", 0):
            for pre, ld in misc[nm:]: A.items(pre + [ld])
    A.wait(vm="xi")
    nv = [NV(r, h) + k for r in range(3) for h in range(2) for k in range(4)]
    A.e(f"v_mov_b32 v14, v{vWC}")
    tree2 = f"v_max_u32 v13, v{nv[0]}, v{nv[1]}\n" + "\n".join(f"v_max3_u32 v13, v13, v{nv[2*k]}, v{nv[2*k+1]}" for k in range(1, 12)) + "\nv_cmp_eq_u32 vcc, -1, v13"
    A.e(tree2 + "\ns_nop 0\ns_cmp_lg_u64 vcc, 0\ns_cbranch_scc1 L2_pns"); A.label("L2_pnr")
    B.label("L2_pns"); poll(B, "L2_pn", "\n".join(pre[0] + "\n" + ld[1] for pre, ld in mv_loads()), tree2); B.e("s_branch L2_pnr")
    for r in range(3):
        for k in (0, 2): A.e(f"v_pk_add_f32 {v(U+4*r+k,2)}, {v(NV(r,0)+k,2)}, {v(NV(r,1)+k,2)}")
        A.lds(f"ds_write_b128 v{vPB if r == 2 else vPA}, {v(U+4*r,4)} offset:{4096*r}", "mv")
    A.wait(lg="mv")
    A.e("s_barrier")
    if not opt.get("fo", 0): fww += [fw_write(k) for k in range(27)]
    A.e(f"v_lshlrev_b32 v{vMA}, 1, v{vWA}\nv_lshlrev_b32 v{vMC}, 1, v14")
    def vec(m, d, tag):
        for i in range(3):
            for h in range(2): A.lds(f"ds_read_b128 {v(d+8*i+4*h,4)}, v{vMC if i == 2 else vMA} offset:{m*2304 + 1024*i + 16*h}", tag)
    vec(2, U, "cb"); vec(1, GA, "sb")
    pace()
    A.wait(lg="sb")
    for q in range(12):
        t = 12 + 2 * (q % 2)
        A.e(f"v_lshlrev_b32 v{t}, 16, v{WR(q)}\nv_and_b32 v{t+1}, 0xffff0000, v{WR(q)}\nv_pk_mul_f32 {v(U+2*q,2)}, {v(U+2*q,2)}, {v(t,2)}\nv_pk_mul_f32 {v(GA+2*q,2)}, {v(GA+2*q,2)}, {v(t,2)}")
        if q == 5: pace()
    pace()
    dot24p(A, TM, 12, U, None); dot24p(A, TM + 1, 12, GA, None)
    vec(0, GA, "ga")
    pace()
    xsum8(A, [TM, TM + 1], TM + 2)
    A.e(f"v_and_b32 v14, 7, v0\nv_lshlrev_b32 v11, 4, v14\nv_add_u32 v11, {ST}, v11\ns_lshl_b32 s3, s{sW}, 2\nv_add_u32 v10, s3, v11")
    A.lds(f"ds_write_b32 v10, v{TM} offset:384", "ut"); A.lds(f"ds_write_b32 v10, v{TM+1} offset:512", "ut")
    vR0, vR1, vR2 = TM + 7, TM + 8, TM + 9
    A.e(f"v_lshl_add_u32 v{vXA}, v14, 4, v{vXA}\nv_lshl_add_u32 v{vXC}, v14, 4, v{vXC}\nv_add_u32 v{vXA}, {TB}, v{vXA}\nv_add_u32 v{vXC}, {TB}, v{vXC}")
    A.e(f"s_and_b32 s14, s{sW}, 1\ns_mul_i32 s14, s14, 9344\ns_add_u32 s14, s14, {TB}\nv_add_u32 v{vR0}, s14, v{vX}\nv_lshrrev_b32 v15, 3, v0\nv_mul_u32_u24 v12, {1152-128}, v15\nv_add_u32 v{vR2}, v12, v{vX}")
    A.e(f"v_lshl_add_u32 v12, v15, 4, v12\nv_add_u32 v{vR1}, v12, v{vR0}")
    A.e(f"s_mul_i32 s3, s{sT8}, 9216\ns_cmp_eq_u32 s{sW}, 3\ns_cselect_b32 s3, 0, s3\ns_cselect_b64 {s(sSt,2)}, {s(sH2,2)}, {s(sOut,2)}")
    A.srd(sSt, sSt, 9216, "s3")
    pace()
    A.wait(lg="ut")
    CB, SB, GB, D = PL, PL + 24, PL + 48, PL + 72
    KV, KA = XR, XR + 4
    for i in range(4):
        R0 = PL + 36 * i
        A.wait(vm=("c", i)); pace(step=5 * i); acc(ACC + 16, R0, i == 0)
        if i == 2:
            vec(2, CB, "m"); vec(1, SB, "m"); vec(3, GB, "m")
        if i == 3:
            A.e(f"s_lshl_b32 s3, s{sT8}, 3\ns_sub_u32 s3, 0xfff, s3\nv_and_b32 v{vFa}, 7, v0\nv_sub_u32 v{vFa}, s3, v{vFa}\ns_mov_b32 s57, 0xfffff000")
            A.e(f"s_mul_i32 s58, s{sT8}, {KS}\ns_add_u32 s58, s58, {WS_KEY}\ns_xor_b32 s3, s{sW}, 2\nv_or_b32 v{vFl}, s3, v0\nv_min_u32 v{vFl}, 1, v{vFl}\nv_lshlrev_b32 v{vFl}, 30, v{vFl}")
            xsumG(A, list(range(ACC + 16, ACC + 24)), D + 24)
            for q in range(12): A.e(f"v_lshlrev_b32 v{D+2*q}, 16, v{XR+q}\nv_and_b32 v{D+2*q+1}, 0xffff0000, v{XR+q}")
            A.e(f"s_cmp_lt_u32 s2, 180\ns_cselect_b32 s3, 2, 0\ns_cmp_lt_u32 s{sW}, s3\ns_cselect_b32 s3, 0, 0x40000000\nv_mul_u32_u24 v{KA}, {KS}, v0\nv_or_b32 v{KA}, s3, v{KA}")
            A.e(f"s_mul_i32 s15, s{sW}, {128*KS}\ns_add_u32 s15, s15, {WS_KEY}\ns_add_u32 s59, s15, {64*KS}\ns_lshl_b32 s3, s{sW}, 7\ns_sub_u32 s3, s{sT8}, s3\nv_cmp_eq_u32 s[60:61], s3, v0\ns_sub_u32 s3, s3, 64\nv_cmp_eq_u32 s[62:63], s3, v0")
        for g in range(4):
            A.wait(vm=("p", i, g, 0)); pace(step=5 * i + 1 + g); acc(ACC + 8, R0 + 4 + 8 * g, i == 0 and g == 0)
            A.wait(vm=("p", i, g, 1)); acc(ACC, R0 + 8 + 8 * g, i == 0 and g == 0)
    assert not pend and not fww
    A.stamp()
    A.wait(lg="ga")
    for q in range(12): A.e(f"v_pk_fma_f32 {v(ACC+2*q,2)}, {v(ACC+2*q,2)}, {v(GA+2*q,2)}, {v(D+2*q,2)}")
    MU, M2, DD = TM, TM + 1, TM + 2
    dot24p(A, MU, 12, ACC, None); xsum8(A, [MU], TM + 3)
    A.e(f"v_mul_f32 v{MU}, {hex(f2u(1/144))}, v{MU}")
    for i in range(0, 24, 2): A.e(f"v_pk_add_f32 {v(D+i,2)}, {v(ACC+i,2)}, {v(MU,2)} op_sel_hi:[1,0] neg_lo:[0,1] neg_hi:[0,1]")
    dot24p(A, M2, 12, D, D); dot24p(A, DD, 12, D, U); xsum8(A, [M2, DD], TM + 3)
    for k in range(3): A.lds(f"ds_write_b32 v10, v{TM+k} offset:{128*k}", "sw")
    A.wait(lg="sw"); A.e("s_barrier")
    R = GA
    for k in range(5): A.lds(f"ds_read_b128 {v(R+4*k,4)}, v11 offset:{128*k}", ("sr", k))
    A.wait(lg=("sr", 0))
    A.e(f"v_add_f32 v12, v{R}, v{R+1}\nv_add_f32 v13, v{R+2}, v{R+3}\nv_add_f32 v12, v12, v13\nv_mul_f32 v12, 0x3e800000, v12")
    for k in range(4): A.e(f"v_sub_f32 v{R+k}, v{R+k}, v12")
    A.e(f"v_sub_f32 v{MU}, v{MU}, v12\nv_mul_f32 v13, v{R}, v{R}")
    for k in range(1, 4): A.e(f"v_fmac_f32 v13, v{R+k}, v{R+k}")
    A.wait(lg=("sr", 1))
    A.e(f"v_add_f32 v14, v{R+4}, v{R+5}\nv_add_f32 v15, v{R+6}, v{R+7}\nv_add_f32 v14, v14, v15\nv_fmac_f32 v14, {hex(f2u(144.0))}, v13")
    A.e(f"v_mov_b32 v13, {hex(f2u(1e-5))}\nv_fmac_f32 v13, {hex(f2u(1/576))}, v14\nv_rsq_f32 v13, v13")
    A.wait(lg=("sr", 4))
    K1, K2 = R + 4, R + 5
    for k in (0, 2): A.e(f"v_pk_fma_f32 {v(R+8+k,2)}, {v(R+k,2)}, {v(R+12+k,2)}, {v(R+8+k,2)}")
    A.e(f"v_pk_add_f32 {v(R+8,2)}, {v(R+8,2)}, {v(R+10,2)}\nv_pk_add_f32 {v(R+16,2)}, {v(R+16,2)}, {v(R+18,2)}\nv_add_f32 v14, v{R+8}, v{R+9}\nv_add_f32 v15, v{R+16}, v{R+17}\nv_fmac_f32 v15, v14, v13")
    A.e(f"v_ashrrev_i32 v12, 31, v15\nv_or_b32 v12, 0x80000000, v12\nv_xor_b32 v12, v12, v15\nv_and_or_b32 v{K1}, v12, s57, v{vFa}\nv_mov_b32 v{K2}, 0")
    top2_lanes(A, K1, K2, 14, 15, (1, 2, 4), ())
    A.e(f"buffer_store_dwordx2 {v(K1,2)}, v{vFl}, {s(sWs,4)}, s58 offen offset:8 sc1")
    kld = [f"buffer_load_dwordx2 {v(KV+2*h,2)}, v{KA}, {s(sWs,4)}, {'s59' if h else 's15'} offen offset:8 sc1" for h in range(2)]
    if opt.get("kearly", 0): A.e("\n".join(kld))
    A.stamp()
    A.e(f"v_mul_f32 v{MU}, v{MU}, v13")
    for i in range(0, 24, 2): A.e(f"v_pk_fma_f32 {v(D+i,2)}, {v(D+i,2)}, v[12:13], {v(MU,2)} op_sel:[0,1,0] op_sel_hi:[1,1,0]")
    for i in range(0, 24, 2): A.e(f"v_pk_fma_f32 {v(D+i,2)}, {v(D+i,2)}, {v(CB+i,2)}, {v(SB+i,2)}")
    for m, src in ((1, D), (0, ACC)):
        if m == 0:
            for i in range(0, 24, 2): A.e(f"v_pk_fma_f32 {v(ACC+i,2)}, {v(D+i,2)}, {v(GB+i,2)}, {v(ACC+i,2)}")
        for i in range(3):
            d = CB + 12 * m + 4 * i
            for q in range(4): A.e(f"v_cvt_pk_bf16_f32 v{d+q}, v{src+8*i+2*q}, v{src+8*i+2*q+1}")
            if m == 1:
                for q in range(4): A.e(f"v_min_u32 v{d+q}, -2, v{d+q}")
            A.lds(f"ds_write_b128 v{vXC if i == 2 else vXA}, {v(d,4)} offset:{9344*m + (512 if i == 1 else 0)}", "tw")
    A.e(f"v_lshrrev_b32 v7, 4, v0\nv_and_b32 v6, 1, v0\nv_bfe_u32 v5, v0, 2, 2\nv_lshlrev_b32 v5, 6, v5\nv_lshl_add_u32 v5, v7, 4, v5\nv_mov_b32 v14, {SCR + 1792}\ns_movk_i32 s57, 1168")
    if A.stamping == 5: A.stamp()
    A.wait(lg="tw"); A.e(f"s_barrier\ns_cmp_lt_u32 s{sW}, 2\ns_cbranch_scc1 L2_keys")
    if opt.get("cand", 1):
        A.e(f"s_cmp_eq_u32 s{sW}, 2\ns_cbranch_scc1 L2_rows\nv_not_b32 v12, v{K1}\nv_not_b32 v13, v{K2}\nv_and_b32 v12, 7, v12\nv_and_b32 v13, 7, v13")
        A.e(f"v_cmp_gt_u32 vcc, 8, v0\nv_mul_u32_u24 v{SB+12}, 1168, v12\nv_mul_u32_u24 v{SB+13}, 1168, v13\nv_cndmask_b32 v15, v13, v12, vcc")
        A.e(f"v_add_u32 v{SB+12}, v{SB+12}, v{vR0}\nv_add_u32 v{SB+13}, v{SB+13}, v{vR0}\nds_read_b128 {v(SB,4)}, v{SB+12}\nds_read_b128 {v(SB+4,4)}, v{SB+13}")
        A.e(f"v_lshrrev_b32 v{SB+14}, 3, v0\nv_sub_u32 v15, v15, v{SB+14}\nv_mad_i32_i24 v{SB+14}, v15, s57, v{vR1}\nds_read_b128 {v(SB+8,4)}, v{SB+14} offset:1024")
        A.e(f"s_movk_i32 s3, 1152\nv_mad_u32_u24 v12, v12, s3, v{vX}\nv_mad_u32_u24 v13, v13, s3, v{vX}\nv_mad_i32_i24 v15, v15, s3, v{vR2}")
        A.e(f"s_waitcnt lgkmcnt(2)\nbuffer_store_dwordx4 {v(SB,4)}, v12, {s(sSt,4)}, 0 offen sc1\ns_waitcnt lgkmcnt(1)\nbuffer_store_dwordx4 {v(SB+4,4)}, v13, {s(sSt,4)}, 0 offen sc1")
        A.e(f"s_mov_b64 exec, 0xffff\ns_waitcnt lgkmcnt(0)\nbuffer_store_dwordx4 {v(SB+8,4)}, v15, {s(sSt,4)}, 0 offen offset:1024 sc1\ns_mov_b64 exec, -1\ns_branch L2_rowsdone")
        A.label("L2_rows")
    for r in range(9): A.lds(f"ds_read_b128 {v(SB+4*r,4)}, v{vR1 if r == 8 else vR0} offset:{1024 if r == 8 else 1168*r}", ("tr", r))
    for r in range(9):
        if r in (0, 4): A.e(f"s_movk_i32 s3, {1152*r}")
        A.wait(lg=("tr", r))
        A.e(f"buffer_store_dwordx4 {v(SB+4*r,4)}, v{vR2 if r == 8 else vX}, {s(sSt,4)}, {0 if r == 8 else 's3'} offen offset:{1024 if r == 8 else 1152*(r%4)} sc1")
    A.label("L2_rowsdone")
    if not opt.get("fh", 0): A.items(far)
    rdy = f"buffer_store_dword v14, v{vFl}, {s(sWs,4)}, s{sFs} offen offset:128 sc1"
    A.e(f"s_cmp_lt_u32 s2, 144\ns_cbranch_scc1 L2_join\ns_waitcnt vmcnt(0)\n{rdy}\ns_cmp_lt_u32 s2, 180\ns_cbranch_scc1 L2_join\ns_branch L2_fin")
    A.label("L2_keys")
    A.e("s_cmp_ge_u32 s2, 180\ns_cbranch_scc1 L2_fin")
    if not opt.get("kearly", 0): A.e("\n".join(kld))
    if not opt.get("fh", 0): A.items(far)
    ktest = "\n".join(f"v_cndmask_b32 v{KV+2*h+k}, v{KV+2*h+k}, v{K1+k}, {s(60+2*h,2)}" for h in range(2) for k in range(2))
    ktest += f"\nv_min_u32 v12, v{KV}, v{KV+1}\nv_min_u32 v13, v{KV+2}, v{KV+3}\nv_cmp_eq_u32 s[4:5], 0, v12\nv_cmp_eq_u32 s[6:7], 0, v13\ns_nop 0\ns_or_b64 vcc, s[4:5], s[6:7]"
    A.e(f"s_waitcnt vmcnt(0)\n{ktest}\ns_cbranch_scc0 L2_p2_ok")
    poll(A, "L2_p2", f"s_or_b64 exec, s[4:5], 1\n{kld[0]}\ns_or_b64 exec, s[6:7], 1\n{kld[1]}\ns_mov_b64 exec, -1", ktest, opt.get("sl2", 1))
    merge2(A, KV, KV + 1, KV + 2, KV + 3)
    top2_lanes(A, KV, KV + 1, 12, 13, (1, 2, 4, 8), ("v_permlane16_swap_b32", "v_permlane32_swap_b32"))
    A.e(f"s_lshl3_add_u32 s3, s{sW}, {SCR + 1792}\nv_mov_b32 v12, s3\nds_write_b64 v12, {v(KV,2)}\ns_waitcnt lgkmcnt(0)")
    A.label("L2_join")
    A.stamp()
    A.vm = []; A.lg = []
    A.e("s_barrier\nds_read_b128 v[16:19], v14\nv_cmp_eq_u32 vcc, 0, v6\ns_waitcnt lgkmcnt(0)")
    merge2(A, 16, 17, 18, 19)
    A.e("v_cndmask_b32 v16, v17, v16, vcc\nv_and_b32 v3, 0x7ff, v16\nv_sub_u32 v3, 2047, v3\nv_mul_u32_u24 v4, 1152, v3")
    A.stamp()
    A.e("s_cmp_ge_u32 s2, 144\ns_cbranch_scc1 L2_red")
    A.e(f"v_add_u32 v5, v5, v4\ns_mov_b32 s59, {WS_H2}")
    H = 128
    A.e("v_and_b32 v12, 8, v0\nv_lshlrev_b32 v12, 4, v12\nv_sub_u32 v3, v5, v12")
    hld = [f"buffer_load_dwordx4 {v(H+4*i,4)}, v{3 if i == 4 else 5}, {s(sWs,4)}, s59 offen offset:{256*i} sc1" for i in range(5)]
    for x in hld: A.vmem(x, "h")
    if opt.get("fh", 0): A.items([(x[0], x[1], "fa" if k < 36 else "fb") for k, x in enumerate(far)])
    LX = SCR + 1024
    A.e(f"v_lshlrev_b32 v11, 7, v6\nv_lshl_add_u32 v13, v7, 5, v11\nv_add_u32 v13, {LX}, v13\nv_lshl_add_u32 v11, v7, 4, v11")
    A.e(f"s_lshr_b32 s3, s{sW}, 1\ns_lshl_b32 s3, s3, 8\ns_and_b32 s14, s{sW}, 1\ns_lshl_b32 s14, s14, 6\ns_add_u32 s3, s3, s14\ns_add_u32 s3, s3, {LX}\nv_add_u32 v11, s3, v11")
    A.e(f"s_mul_i32 s14, s{sW}, 1152\ns_mul_i32 s15, s2, 4608\ns_add_u32 s15, s15, s14\ns_add_u32 s15, s15, {WS_YP}\nv_lshlrev_b32 v10, 3, v0")
    A.wait(vm="h", lg="fa"); A.e(rdy)
    if A.stamping == 5: A.stamp()
    htree = [f"v_max_u32 v12, v{H}, v{H+1}"] + [f"v_max3_u32 v12, v12, v{H+2*k}, v{H+2*k+1}" for k in range(1, 10)] + ["v_cmp_eq_u32 vcc, -1, v12"]
    A.label("L2_hr")
    for n_, kk in enumerate((0, 1, 2, 3, 4, 5, 6, 7, 8, 9, 10, 11, 14, 15, 12, 13, 17, 16)):
        d = v(88 + 4 * (kk % 4), 4)
        A.e(f"{MF} {d}, {a(aF+4*kk,4)}, {v(H+4*(kk//4),4)}, {'0' if kk < 4 else d}")
        if n_ < len(htree): A.e(htree[n_])
    A.e("s_cmp_lg_u64 vcc, 0\ns_cbranch_scc1 L2_hs\ns_nop 1")
    if A.stamping == 5: A.stamp(); A.nst -= 2
    B.label("L2_hs")
    poll(B, "L2_h", "\n".join(hld), "\n".join(htree))
    for k in range(20): B.e(f"v_min_u32 v{H+k}, -2, v{H+k}")
    B.e("s_nop 1\ns_branch L2_hr")
    for i in range(4): A.e(f"v_add_f32_dpp v{96+i}, v{100+i}, v{96+i} row_shl:4 row_mask:0xf bank_mask:0xf bound_ctrl:1")
    for i in range(4): A.e(f"v_add_f32_dpp v{88+i}, v{92+i}, v{88+i} row_shl:4 row_mask:0xf bank_mask:0xf bound_ctrl:1")
    for i in range(4): A.e(f"v_add_f32_dpp v{88+i}, v{96+i}, v{88+i} row_shl:8 row_mask:0xf bank_mask:0xf bound_ctrl:1")
    A.e("s_mov_b32 exec_lo, 0x30003\ns_mov_b32 exec_hi, 0x30003")
    A.lds("ds_write_b128 v11, v[88:91]", "x"); A.e("s_mov_b64 exec, -1"); A.wait(lg="x"); A.e("s_barrier")
    for i in range(4): A.lds(f"ds_read_b128 {v(16+4*i,4)}, v13 offset:{(i//2)*256 + (i%2)*16}", ("y", i // 2))
    A.e(f"v_mov_b32 v12, {hex(f2u(-LOG2E))}")
    A.wait(lg=("y", 0))
    for i in range(0, 8, 2): A.e(f"v_pk_mul_f32 {v(32+i,2)}, {v(16+i,2)}, v[12:13] op_sel_hi:[1,0]")
    for i in range(8): A.e(f"v_exp_f32 v{32+i}, v{32+i}")
    for i in range(0, 8, 2): A.e(f"v_pk_add_f32 {v(32+i,2)}, {v(32+i,2)}, 1.0 op_sel_hi:[1,0]")
    for i in range(8): A.e(f"v_rcp_f32 v{32+i}, v{32+i}")
    A.wait(lg=("y", 1))
    for i in range(0, 8, 2): A.e(f"v_pk_mul_f32 {v(16+i,2)}, {v(16+i,2)}, {v(32+i,2)}")
    for i in range(0, 8, 2): A.e(f"v_pk_mul_f32 {v(16+i,2)}, {v(16+i,2)}, {v(24+i,2)}")
    for q in range(4): A.e(f"v_cvt_pk_bf16_f32 v{40+q}, v{16+2*q}, v{17+2*q}")
    A.e("s_nop 1")
    for nt in range(9): A.e(f"{MF} {v(48+4*nt,4)}, v[40:43], {a(aF+72+4*nt,4)}, 0")
    A.e("s_nop 0")
    for half in range(2):
        for G_ in range(4):
            for t in range(2):
                if half == 0 and G_ == 0: continue
                A.e(f"v_mov_b32_dpp v{48+2*half+t}, v{48+4*(4*half+G_)+t} quad_perm:[0,1,2,3] row_mask:{hex(1 << G_)} bank_mask:0xf")
            if G_ < 3 and not (half == 0 and G_ == 0): A.e("s_nop 0")
    for r_ in (48, 49, 50, 51, 80, 81): A.e(f"v_min_u32 v{r_}, -2, v{r_}")
    A.e(f"buffer_store_dwordx4 v[48:51], v{vX}, {s(sWs,4)}, s15 offen sc1\ns_mov_b64 exec, 0xffff\nbuffer_store_dwordx2 v[80:81], v10, {s(sWs,4)}, s15 offen offset:1024 sc1")
    A.e("s_branch L2_fin")
    A.label("L2_red")
    A.vm = []; A.lg = []
    A.e(f"s_mov_b32 s3, {WS_YP}"); A.srd(sYp, sWs, YP_BYTES, "s3")
    A.e("s_sub_u32 s3, s2, 144\ns_mul_i32 s14, s3, 7282\ns_lshr_b32 s14, s14, 16\ns_mul_i32 s15, s14, 9\ns_sub_u32 s15, s3, s15\ns_mul_i32 s14, s14, 144")
    A.e("s_cmp_eq_u32 s15, 8\ns_cselect_b32 s56, 1, 64\ns_cselect_b32 s57, 2, 1\ns_cselect_b32 s15, 16, s15\ns_lshl3_add_u32 s14, s15, s14")
    A.e("v_bfe_u32 v7, v0, 2, 3\nv_mul_u32_u24 v7, s57, v7\nv_bfe_u32 v9, v0, 1, 1\nv_mul_u32_u24 v9, s56, v9\nv_add3_u32 v7, v7, v9, s14\nv_lshl_add_u32 v9, v7, 1, v4\nv_lshlrev_b32 v7, 2, v7")
    A.e(f"v_lshrrev_b32 v12, 7, v3\nv_bfe_u32 v13, v3, 3, 4\nv_lshl_add_u32 v13, v12, 6, v13\nv_lshlrev_b32 v13, 8, v13\ns_mov_b32 s59, {WS_F1 + 2*16*256}")
    poll(A, "L2_r", f"buffer_load_dword v12, v13, {s(sWs,4)}, s59 offen offset:128 sc1", "v_cmp_eq_u32 vcc, 0, v12")
    if A.stamping == 5: A.stamp()
    A.e(f"buffer_load_ushort v18, v9, {s(sOut,4)}, 0 offen sc1\nds_read_b32 v20, v7 offset:{3*2304}")
    A.e(f"v_and_b32 v6, 7, v0\nv_lshrrev_b32 v10, 3, v0\ns_lshl_b32 s14, s{sW}, 3\nv_add_u32 v10, s14, v10\nv_mul_u32_u24 v10, 4608, v10\nv_lshl_add_u32 v10, v6, 4, v10\ns_lshl_b32 s3, s3, 7\nv_add_u32 v24, s3, v10")
    for r in range(1, 5): A.e(f"v_add_u32 v{24+r}, {147456*r}, v24")
    A.e("v_and_b32 v16, 0xfffff800, v16\nv_not_b32 v12, v16\nv_ashrrev_i32 v12, 31, v12\nv_or_b32 v12, 0x80000000, v12\nv_xor_b32 v16, v16, v12")
    A.e(f"v_mul_f32 v16, {hex(f2u(-LOG2E))}, v16\nv_exp_f32 v16, v16\ns_nop 0\nv_add_f32 v16, 1.0, v16\nv_rcp_f32 v16, v16\ns_waitcnt lgkmcnt(0)\nv_mul_f32 v20, v20, v16")
    A.e(f"s_lshl_b32 s14, s{sW}, 7\ns_add_u32 s14, s14, {SCR + 2048}\nv_lshl_add_u32 v10, v6, 4, s14\nv_and_b32 v11, 31, v0\nv_lshlrev_b32 v11, 2, v11")
    if opt.get("pre3", 0):
        A.e("s_mov_b64 exec, 1")
        poll(A, "L2_p3a", f"buffer_load_dword v32, v24, {s(sYp,4)}, 0 offen sc1", "v_cmp_eq_u32 vcc, -1, v32", opt.get("sl3", 1))
        A.e("s_mov_b64 exec, -1")
    tree = "v_max3_u32 v12, v32, v33, v34\n" + "\n".join(f"v_max3_u32 v12, v12, v{35+2*i}, v{36+2*i}" for i in range(8)) + "\nv_max_u32 v12, v12, v51\nv_cmp_eq_u32 vcc, -1, v12"
    poll(A, "L2_p3", "\n".join(f"buffer_load_dwordx4 {v(32+4*r,4)}, v{24+r}, {s(sYp,4)}, 0 offen sc1" for r in range(5)), tree, 0)
    if A.stamping == 5: A.stamp()
    for i in range(0, 4, 2):
        A.e(f"v_pk_add_f32 {v(32+i,2)}, {v(32+i,2)}, {v(36+i,2)}\nv_pk_add_f32 {v(40+i,2)}, {v(40+i,2)}, {v(44+i,2)}\nv_pk_add_f32 {v(32+i,2)}, {v(32+i,2)}, {v(48+i,2)}\nv_pk_add_f32 {v(32+i,2)}, {v(32+i,2)}, {v(40+i,2)}")
    xsum8(A, [32, 33, 34, 35], 12)
    A.e("ds_write_b128 v10, v[32:35]\ns_waitcnt lgkmcnt(0)\ns_barrier")
    A.e(f"s_cmp_lg_u32 s{sW}, 0\ns_cbranch_scc1 L2_fin")
    for k in range(4): A.e(f"ds_read_b32 v{32+k}, v11 offset:{SCR + 2048 + 128*k}")
    A.e("v_lshlrev_b32 v12, 16, v18\ns_mov_b32 exec_hi, 0\ns_waitcnt lgkmcnt(0)")
    A.e("v_pk_add_f32 v[32:33], v[32:33], v[34:35]\nv_add_f32 v32, v32, v33\nv_fmac_f32 v12, v32, v20\nv_cvt_pk_bf16_f32 v12, v12, v12")
    A.e(f"buffer_store_short v12, v9, {s(sOut,4)}, 0 offen{opt.get('finf', ' sc1')}")
    A.label("L2_fin")
    if A.stamping: A.e("s_mov_b64 exec, -1")
    A.stamp()
    if opt.get("enc"):
        ea, eb, clk = opt["enc"]; o = 0 if clk else 1
        A.e("s_cmp_lg_u32 s2, 150\ns_cbranch_scc1 L2_noenc")
        if ea < 0:
            A.e(f"s_load_dwordx2 s[60:61], s[0:1], 112\ns_waitcnt lgkmcnt(0)\ns_mov_b32 s62, 0x10000000\ns_mov_b32 s63, 0x20000\nv_mov_b32 v2, {WS_STAMP + 150*1024 + 4}\nbuffer_load_dword v1, v2, s[60:63], 0 offen\ns_waitcnt vmcnt(0)")
        A.e(f"v_accvgpr_read_b32 v1, a61\ns_nop 0\nv_readlane_b32 s56, v1, {2*eb+o}\nv_readlane_b32 s57, v1, {2*ea+o}\ns_nop 0\ns_sub_u32 s56, s56, s57")
        A.e("s_lshr_b32 s56, s56, 3" if clk else "s_lshl_b32 s56, s56, 2")
        A.e("s_min_u32 s56, s56, 100000\ns_mov_b32 s57, s93")
        A.label("L2_enc")
        A.e("s_memrealtime s[94:95]\ns_waitcnt lgkmcnt(0)\ns_sub_u32 s58, s94, s57\ns_cmp_lt_u32 s58, s56\ns_cbranch_scc1 L2_enc")
        A.label("L2_noenc")
    else: A.stamp_flush(1, WS_STAMP, sW)

OPT = {}
def gen_k2(opt={}):
    OPT.clear(); OPT.update(opt)
    A = Asm(); A.stamp_agpr = 60
    A.label("L2_begin")
    A.e("s_getpc_b64 s[98:99]")
    A.e("s_cmp_ge_u32 s2, 256\ns_cbranch_scc1 L2_end")
    A.stamp()
    for d, off in ((sXi, 0), (sC, 80), (sWm, 88), (12, 112), (sDb, 104)): A.e(f"s_load_dwordx2 {s(d,2)}, s[0:1], {off}")
    vTid = 155
    tch = opt.get("touch", "cq")
    A.e(f"s_and_b32 s3, s2, 7\ns_lshr_b32 s14, s2, 3\nv_mov_b32 v{vTid}, v0\nv_lshrrev_b32 v10, 6, v0\nv_and_b32 v0, 63, v0")
    if "c" in tch:
        A.e(f"s_lshl_b32 s15, s14, 9\nv_lshl_add_u32 v13, v10, 7, s15\nv_lshl_add_u32 v13, v0, 14, v13\nv_min_u32 v13, L2_codeend-L2_begin-8, v13\ns_mov_b64 exec, {31 if opt.get('nit', 11) >= 11 else 63}")
        A.vmem(f"global_load_dword a{aDum}, v13, s[98:99]"); A.e("s_mov_b64 exec, -1")
    A.e(f"v_readfirstlane_b32 s{sW}, v10")
    par = opt.get("par", 0)
    A.e((f"s_lshr_b32 s{sG}, s3, 1" if par else f"s_and_b32 s{sG}, s3, 3") + f"\ns_and_b32 s15, s14, 3\ns_lshl2_add_u32 s{sG}, s{sG}, s15")
    A.e((f"s_and_b32 s{sTb}, s3, 1" if par else f"s_lshr_b32 s{sTb}, s3, 2") + f"\ns_lshr_b32 s15, s14, 2\ns_lshl3_add_u32 s{sTb}, s{sTb}, s15\ns_lshl4_add_u32 s{sT8}, s{sTb}, s{sG}")
    sP, sSl, sHf = sCnt, sPass, sW9
    A.e(f"s_mul_i32 s{sP}, s3, 27\ns_max_u32 s14, s14, 5\ns_add_u32 s{sP}, s{sP}, s14\ns_sub_u32 s{sP}, s{sP}, 5\ns_lshr_b32 s{sHf}, s3, 2\ns_mul_i32 s15, s{sHf}, 108\ns_sub_u32 s{sSl}, s{sP}, s15")
    item_addr(A, 288, 288, 256)
    vW4, vW1 = 153, 154
    A.e(f"v_and_b32 v4, 0xfc, v{vTid}\nv_and_b32 v7, 3, v0\nv_mul_u32_u24 v3, 6912, v4\nv_lshl_add_u32 v{vW4}, v7, 4, v3")
    A.e(f"s_mul_i32 s3, s{sT8}, 9216\ns_movk_i32 s{sXi+2}, 9216\ns_mov_b32 s{sXi+3}, 0x20000\ns_mov_b32 s{sWm+3}, s{sXi+3}")
    A.e(f"v_lshlrev_b32 v{vX}, 4, v0\ns_mov_b32 s{sWs+2}, {WS_SIZE}\ns_mov_b32 s{sWs+3}, s{sXi+3}\ns_movk_i32 s{sDb+2}, 256\ns_mov_b32 s{sDb+3}, s{sXi+3}")
    A.e(f"s_lshl_b32 s14, s{sSl}, 6\ns_sub_u32 s{sWm+2}, {288*6912}, s14\ns_cmp_ge_u32 s2, 40\ns_cselect_b32 s{sWm+2}, s{sWm+2}, 0\ns_mul_i32 s15, s{sHf}, {288*6912}\ns_add_u32 s14, s14, s15")
    A.e("s_waitcnt lgkmcnt(0)")
    A.fstamp()
    A.e(f"s_add_u32 s{sXi}, s{sXi}, s3\ns_addc_u32 s{sXi+1}, s{sXi+1}, 0")
    for pre, ld in xi_loads(128): A.item(ld)
    A.e(f"s_add_u32 s{sWm}, s{sWm}, s14\ns_addc_u32 s{sWm+1}, s{sWm+1}, 0")
    ncl = opt.get("ncl", 8); nst = 16 // ncl
    A.e(f"s_mov_b64 {s(sWs,2)}, s[12:13]\ns_cmp_ge_u32 s2, {ncl}\ns_cbranch_scc1 L2_noclr")
    assert ncl == 8
    for i in range(4): A.e(f"v_mov_b32 v{52+i}, -1\nv_mov_b32 v{56+i}, 0")
    A.e(f"s_lshl2_add_u32 s15, s2, s{sW}\ns_lshl_b32 s3, s15, 10\nbuffer_store_dwordx4 v[52:55], v{vX}, {s(sWs,4)}, s3 offen sc1")
    A.e(f"v_lshrrev_b32 v13, 3, v0\nv_mul_u32_u24 v13, {max(KS, 128) - 128}, v13\nv_add_u32 v13, v13, v{vX}\ns_mul_i32 s3, s15, {8*max(KS, 128)}\ns_add_u32 s3, s3, {WS_KEY}\nbuffer_store_dwordx4 v[56:59], v13, {s(sWs,4)}, s3 offen sc1")
    A.label("L2_noclr")
    nclr = len(A.vm)
    WM, CC = 128, 148
    nw0 = opt.get("nw0", 4)
    def wload(i):
        if 0 < i < 4: A.e(f"s_movk_i32 s3, {6912*i}")
        A.vmem(f"buffer_load_dwordx4 {v(WM+4*i,4)}, v{vW4 if i < 4 else vW1}, {s(sWm,4)}, {'s3' if 0 < i < 4 else 0} offen", ("w", i))
    for i in range(min(nw0, 4)): wload(i)
    A.fstamp()
    A.e(f"v_lshrrev_b32 v3, 2, v3\nv_lshl_add_u32 v3, v7, 4, v3\nv_add_u32 v{vW1}, {256*6912}, v3\nv_lshrrev_b32 v3, 1, v4\nv_lshlrev_b32 v4, 1, v4")
    A.e(f"s_mul_i32 s3, s{sHf}, 576"); A.srd(sC, sC, 576, "s3")
    for i in range(4): A.e(f"v_mov_b32 v{WM+16+i}, 0")
    A.e(f"v_mov_b32 v{CC+2}, 0\ns_cmp_ge_u32 s{sW}, 2\ns_cbranch_scc1 L2_w23")
    A.e(f"buffer_load_dwordx4 {v(WM+16,4)}, v{vW1}, {s(sWm,4)}, 0 offen\nbuffer_load_ushort v{CC+2}, v3, {s(sC,4)}, 0 offen offset:512")
    A.label("L2_w23")
    A.vmem(f"buffer_load_dwordx2 {v(CC,2)}, v4, {s(sC,4)}, 0 offen", "c")
    A.e("s_load_dwordx8 s[4:11], s[0:1], 8")
    for d, off in ((sWg, 56), (sWu, 64), (sWd, 72), (sOut, 96), (sWr, 48)): A.e(f"s_load_dwordx2 {s(d,2)}, s[0:1], {off}")
    B = Asm()
    A.fstamp()
    F = 156
    vL7, vSt, vSw, vXs, vYc, vMw, vL4, vXf, vMs = F, F + 1, F + 2, F + 3, F + 4, F + 5, F + 6, F + 7, F + 8
    SA, SD, SV = F + 10, F + 11, F + 12
    A.e(f"s_cmp_eq_u32 s{sW}, 0\ns_cselect_b32 s3, 0, 0x40000000\nv_mul_u32_u24 v{vL7}, {256//ncl}, v0\nv_or_b32 v{vL7}, s3, v{vL7}\ns_mul_i32 s{sW4}, s{sW}, {4*PIECE}\ns_add_u32 s{sW4}, s{sW4}, {RING}\nv_lshl_add_u32 v{vKV}, v10, 12, v{vX}")
    A.e(f"v_lshrrev_b32 v13, 5, v0\nv_lshl_add_u32 v13, v10, 1, v13\nv_lshlrev_b32 v13, 15, v13\nv_and_b32 v14, 31, v0\nv_lshl_add_u32 v{vWq}, v14, 4, v13")
    for i in range(4): A.e(f"v_mov_b32 v{56+i}, 0\nv_mov_b32 v{60+i}, -1")
    A.e(f"s_and_b32 s14, s{sTb}, 7\ns_lshl2_add_u32 s14, s14, s{sW}\nv_lshrrev_b32 v13, 2, v0\nv_lshl_add_u32 v13, v13, 5, s14\nv_lshlrev_b32 v13, 13, v13\nv_lshl_add_u32 v{F+9}, v7, 7, v13")
    A.e("s_waitcnt lgkmcnt(0)")
    A.e(f"s_lshl_b32 s3, s{sG}, 9"); A.srd(sWq, 8, 0, "s3"); A.e(f"s_sub_u32 s{sWq+2}, {576*8192}, s3")
    A.e(f"s_mov_b32 s{sWr+2}, 1152\ns_mov_b32 s{sWr+3}, 0x20000")
    A.stamp()
    ST = SCR + 256; MP = RING
    sF1, sYc, sXs, sXf, sMl, sKy, sMul, sAdd = 56, 57, 58, 59, 100, 101, sBase, sDel
    A.e(f"v_and_b32 v14, 7, v0\nv_lshlrev_b32 v{vSt}, 4, v14\nv_add_u32 v{vSt}, {ST}, v{vSt}\nv_lshl_add_u32 v{vSw}, v10, 2, v{vSt}")
    A.e(f"s_mul_i32 s3, s{sW}, {18*256}\nv_lshl_add_u32 v14, v14, 4, s3\nv_lshrrev_b32 v15, 3, v0\nv_lshl_add_u32 v{vXs}, v15, 8, v14")
    A.e(f"s_lshr_b32 s3, s{sT8}, 1\ns_mul_i32 s3, s3, 18432\ns_and_b32 s14, s{sT8}, 1\ns_lshl_b32 s14, s14, 7\ns_add_u32 s3, s3, s14\ns_add_u32 s{sXs}, s3, {WS_XN}")
    A.e(f"s_lshl_b32 s3, s{sTb}, 2\ns_add_u32 s3, s3, s{sW}\ns_lshl_b32 s14, s3, 4\ns_add_u32 s14, s14, s{sG}\ns_lshl_b32 s14, s14, 8\ns_add_u32 s{sF1}, s14, {WS_F1}")
    A.e(f"s_mul_i32 s14, s3, {4*KS}\ns_add_u32 s{sXf}, s14, {WS_KEY}\nv_and_b32 v14, 3, v0\nv_mul_u32_u24 v{vXf}, {KS}, v14")
    A.e(f"s_mul_i32 s14, s3, 36864\ns_add_u32 s14, s14, {WS_XN}"); A.srd(sXn, 12, 36864, "s14")
    if opt.get("tidx", 1): A.e(f"s_or_b32 s{sXn+1}, s{sXn+1}, 0x100000\ns_mov_b32 s{sXn+3}, 0x800000")
    A.e(f"s_mul_i32 s15, s2, 4608\ns_mul_i32 s14, s{sW}, 1152\ns_add_u32 s15, s15, s14\ns_add_u32 s{sYc}, s15, {WS_YP}")
    A.e(f"s_cmp_ge_u32 s2, 144\ns_cselect_b32 s14, 0x40000000, 0\nv_or_b32 v{vYc}, s14, v{vX}")
    A.e(f"v_lshrrev_b32 v12, 4, v{vTid}\nv_lshlrev_b32 v12, 7, v12\nv_lshl_add_u32 v{vMw}, v7, 5, v12\nv_lshlrev_b32 v{vL4}, 2, v0")
    A.e(f"s_mul_i32 s3, s{sSl}, 3641\ns_lshr_b32 s3, s3, 16\ns_mov_b32 s{sMul}, 1.0\ns_mov_b32 s{sAdd}, 0\ns_cmp_lt_u32 s3, 2\ns_cselect_b32 s{sMul}, {hex(f2u(C0))}, s{sMul}")
    A.e(f"s_cmp_eq_u32 s3, 1\ns_cselect_b32 s{sAdd}, {hex(f2u(C0))}, s{sAdd}\ns_cmp_eq_u32 s3, 4\ns_cselect_b32 s{sAdd}, 1.0, s{sAdd}\ns_cmp_eq_u32 s{sHf}, 0\ns_cselect_b32 s{sAdd}, s{sAdd}, 0")
    A.e(f"s_lshl_b32 s{sMl}, s{sP}, 7\ns_mul_i32 s14, s{sT8}, {KS}\ns_add_u32 s{sKy}, s14, {WS_KEY}")
    A.e(f"s_mul_i32 s3, s{sW}, 1152\nv_add_u32 v{SA}, s3, v{vX}")
    A.e(f"s_and_b32 s3, s{sW}, 1\ns_mul_i32 s3, s3, {36*64}\ns_cmp_lt_u32 s{sW}, 2\ns_cselect_b32 s14, 32, 0\ns_add_u32 s3, s3, s14\ns_add_u32 s3, s3, {ASB}")
    A.e(f"v_lshrrev_b32 v14, 1, v0\nv_lshl_add_u32 v14, v14, 6, s3\nv_and_b32 v15, 1, v0\nv_lshl_add_u32 v{SD}, v15, 4, v14")
    A.e(f"s_cmp_eq_u32 s{sW}, 1\ns_cselect_b32 s3, 40, 256\ns_cmp_ge_u32 s2, s3\ns_cselect_b32 s3, 0, 0x40000000\nv_or_b32 v{vMs}, s3, v{vL4}")
    for i in range(4): A.e(f"v_mov_b32 v{SV+4+i}, 0\nv_mov_b32 v{SV+12+i}, 0")
    def wq_touch():
        nq = opt.get("nq", 16)
        A.e(f"s_mov_b64 exec, {hex((1 << nq) - 1)}" if nq <= 31 else f"s_mov_b32 exec_hi, {hex((1 << (nq - 32)) - 1)}")
        A.vmem(f"buffer_load_dword a{aDum}, v{F+9}, {s(sWq,4)}, 0 offen", "tq"); A.e("s_mov_b64 exec, -1")
    def init_kv_addr():
        A.e(f"v_lshrrev_b32 v14, 2, v0\nv_mul_u32_u24 v14, {PIECE}, v14\nv_and_b32 v15, 3, v0\nv_lshl_add_u32 v14, v15, 3, v14\nv_add_u32 v{vV}, {RING + 2*SLOT + HALF}, v14")
        A.e(f"v_and_b32 v14, 15, v0\nv_mul_u32_u24 v14, {PIECE}, v14\nv_lshrrev_b32 v15, 4, v0\nv_lshl_add_u32 v14, v15, 4, v14\nv_add_u32 v{vK}, {RING + 2*SLOT}, v14")
    def late_setup():
        A.e(f"s_lshl_b32 s3, s{sTb}, 2\ns_add_u32 s3, s3, s{sW}\nv_mov_b32 v12, v10")
        A.e(f"s_mul_i32 s14, s3, {4*TS}\ns_mul_i32 s15, s{sG}, {GS}\ns_add_u32 s14, s14, s15\ns_add_u32 s14, s14, {WS_PART}"); A.srd(sPt, 12, 0, "s14"); A.e(f"s_sub_u32 s{sPt+2}, {4*TS}, s15")
        if opt.get("x_nostore"): A.e(f"s_mov_b32 s{sPt+2}, 0")
        A.e(f"s_lshl_b32 s3, s{sG}, 19"); A.srd(sK, 4, 524288, "s3"); A.srd(sV, 6, 524288, "s3")
        if opt.get("tid", 1):
            A.e(f"s_lshl_b32 s3, s{sW}, 12")
            for d in (sK, sV): A.e(f"s_add_u32 s{d}, s{d}, s3\ns_addc_u32 s{d+1}, s{d+1}, 0x100000\ns_mov_b32 s{d+2}, 32768\ns_mov_b32 s{d+3}, 0x800000")
        A.e(f"s_mul_i32 s3, s{sG}, 294912"); A.srd(sWo, 10, 294912, "s3")
        A.e(f"s_mov_b64 s[4:5], {s(sWg,2)}\ns_mov_b64 s[6:7], {s(sWu,2)}\ns_mov_b64 s[8:9], {s(sWd,2)}")
        A.e(f"s_mov_b32 s{sPass}, 0\ns_mul_i32 s{sW9}, s{sW}, 9216")
        A.e("s_min_u32 s15, s2, 143\ns_and_b32 s3, s15, 7\ns_mul_i32 s3, s3, 18\ns_lshr_b32 s15, s15, 3\ns_add_u32 s15, s15, s3\ns_lshl_b32 s3, s15, 6")
        A.srd(sWg, sWg, 0, "s3"); A.srd(sWu, sWu, 0, "s3")
        A.e(f"s_sub_u32 s14, {576*9216}, s3\ns_mul_i32 s3, s15, 36864"); A.srd(sWd, sWd, 0, "s3")
        A.e(f"s_cmp_lt_u32 s2, 144\ns_cselect_b32 s{sWg+2}, s14, 0\ns_cselect_b32 s{sWu+2}, s14, 0\ns_cselect_b32 s{sWd+2}, 36864, 0")
        A.e(f"s_mov_b32 s{sOut+2}, 2359296\ns_mov_b32 s{sOut+3}, 0x20000")

        A.e(f"v_lshrrev_b32 v13, 4, v0\nv_lshlrev_b32 v{vAS}, 6, v13")
        A.e(f"v_lshrrev_b32 v14, 2, v0\nv_mul_u32_u24 v14, {PIECE}, v14\nv_add_u32 v14, {RING}, v14")
        A.e(f"v_and_b32 v15, 1, v0\nv_lshlrev_b32 v15, 4, v15\nv_add_u32 v{vT}, v14, v15\nv_and_b32 v15, 2, v0\nv_lshl_add_u32 v{vT}, v15, 2, v{vT}\nv_add_u32 v{vT2}, {2*SLOT}, v{vT}")
        A.e(f"v_lshrrev_b32 v14, 3, v0\nv_lshlrev_b32 v14, 2, v14\nv_add_u32 v14, v14, v12\nv_mul_u32_u24 v14, {4*1152}, v14\nv_and_b32 v15, 7, v0\nv_lshl_add_u32 v{vWo}, v15, 4, v14")
        A.e(f"v_lshlrev_b32 v{vPt}, 4, v15\nv_lshl_add_u32 v{vPt}, v13, 7, v{vPt}\nv_bfe_u32 v14, v0, 3, 1\nv_mul_u32_u24 v14, {TS}, v14\nv_add_u32 v{vPt}, v{vPt}, v14")
        init_kv_addr()
        A.e(f"v_and_b32 v14, 1, v0\nv_cmp_eq_u32 vcc, 0, v14\nv_mov_b32 v{vIdx}, 0xeeeeeeee\nv_mov_b32 v15, 0x44444444\nv_cndmask_b32 v{vIdx}, v{vIdx}, v15, vcc")
        A.e(f"v_and_b32 v14, {14 if opt.get('ones2', 0) else 2}, v0\nv_cmp_eq_u32 vcc, 0, v14\nv_mov_b32 v15, 0x3f803f80\ns_nop 0\nv_cndmask_b32 v15, 0, v15, vcc")
        for i in range(4): A.e(f"v_accvgpr_write_b32 a{aOne+i}, v15\nv_accvgpr_write_b32 a{56+i}, -1")
        for i in range(16): A.e(f"v_accvgpr_write_b32 a{aL+i}, 0")
    ls = opt.get("ls", 0); tqp = opt.get("tqp", 1)
    if not ls: late_setup()
    if tqp == 0: wq_touch()
    A.e(f"s_cmp_ge_u32 s2, {ncl}\ns_cbranch_scc1 L2_noclr2")
    A.e(f"s_mul_i32 s14, s2, {256//ncl}\ns_mov_b64 exec, 1\ns_waitcnt vmcnt({len(A.vm) - nclr})\ns_barrier\nbuffer_store_dword v60, v{vL7}, {s(sDb,4)}, s14 offen sc1\ns_mov_b64 exec, -1")
    A.label("L2_noclr2")
    if tqp == 1: wq_touch()
    A.stamp()
    XF, MA, TF = 24, 16, 48
    A.wait(vm="xi"); A.fstamp()
    if tqp == 2: wq_touch()
    for i in range(nw0, 4): wload(i)
    for q in range(12): A.e(f"v_lshlrev_b32 v{XF+2*q}, 16, v{XR+q}\nv_and_b32 v{XF+2*q+1}, 0xffff0000, v{XR+q}")
    dot24p(A, TF, 12, XF, None); xsum8(A, [TF], TF + 2)
    A.e(f"v_mul_f32 v{TF}, {hex(f2u(1/144))}, v{TF}")
    for i in range(0, 24, 2): A.e(f"v_pk_add_f32 {v(XF+i,2)}, {v(XF+i,2)}, {v(TF,2)} op_sel_hi:[1,0] neg_lo:[0,1] neg_hi:[0,1]")
    dot24p(A, TF + 1, 12, XF, XF); xsum8(A, [TF + 1], TF + 2)
    A.lds(f"ds_write_b32 v{vSw}, v{TF}", "f"); A.lds(f"ds_write_b32 v{vSw}, v{TF+1} offset:128", "f")
    A.wait(lg="f"); A.e("s_barrier")
    A.lds(f"ds_read_b128 {v(MA,4)}, v{vSt}", "g0"); A.lds(f"ds_read_b128 {v(MA+4,4)}, v{vSt} offset:128", "g1")
    A.e(f"s_add_u32 s14, s{sXs}, 4096")
    A.wait(lg="g0")
    A.e(f"v_add_f32 v12, v{MA}, v{MA+1}\nv_add_f32 v13, v{MA+2}, v{MA+3}\nv_add_f32 v12, v12, v13\nv_mul_f32 v12, 0x3e800000, v12")
    for k in range(4): A.e(f"v_sub_f32 v{MA+k}, v{MA+k}, v12")
    A.e(f"v_sub_f32 v{TF}, v{TF}, v12\nv_mul_f32 v13, v{MA}, v{MA}")
    for k in range(1, 4): A.e(f"v_fmac_f32 v13, v{MA+k}, v{MA+k}")
    A.wait(lg="g1")
    A.e(f"v_add_f32 v14, v{MA+4}, v{MA+5}\nv_add_f32 v15, v{MA+6}, v{MA+7}\nv_add_f32 v14, v14, v15\nv_fmac_f32 v14, {hex(f2u(144.0))}, v13")
    A.e(f"v_mov_b32 v12, {hex(f2u(1e-5))}\nv_fmac_f32 v12, {hex(f2u(1/576))}, v14\nv_rsq_f32 v12, v12\ns_nop 0\nv_mul_f32 v{TF}, v{TF}, v12")
    for i in range(3):
        for q in range(0, 8, 2): A.e(f"v_pk_fma_f32 {v(XF+8*i+q,2)}, {v(XF+8*i+q,2)}, v[12:13], {v(TF,2)} op_sel_hi:[1,0,0]")
        for q in range(4): A.e(f"v_cvt_pk_f16_f32 v{XR+4*i+q}, v{XF+8*i+2*q}, v{XF+8*i+2*q+1}")
        if i == 2: A.e("s_mov_b64 exec, 0xffff")
        A.vmem(f"buffer_store_dwordx4 {v(XR+4*i,4)}, v{vXs}, {s(sWs,4)}, {'s14' if i == 2 else s(sXs)} offen offset:{2048*(i%2)} sc1")
    A.fstamp()
    A.vmem(f"buffer_store_dwordx4 v[56:59], v{vX}, {s(sWs,4)}, s{sF1} offen sc1")
    A.e("s_mov_b64 exec, 0xff")
    A.vmem(f"buffer_store_dwordx4 v[60:63], v{vYc}, {s(sWs,4)}, s{sYc} offen offset:1024 sc1"); A.e("s_mov_b64 exec, -1")
    A.vmem(f"buffer_store_dwordx4 v[60:63], v{vYc}, {s(sWs,4)}, s{sYc} offen sc1"); A.e(f"s_mov_b64 exec, {(1 << ncl) - 1}")
    p0 = f"buffer_load_dword v{TF+3}, v{vL7}, {s(sDb,4)}, 0 offen sc1"
    A.vmem(p0, "p0"); A.e("s_mov_b64 exec, -1")
    if tqp == 3: wq_touch()
    A.stamp()
    A.e(f"s_mul_i32 s3, s{sT8}, {TS}\ns_add_u32 s3, s3, {WS_PART + 4096}"); A.srd(sPr, 12, TS - 4096, "s3")
    A.wait(vm="c")
    CF = 40
    A.e(f"v_lshlrev_b32 v{CF}, 16, v{CC}\nv_and_b32 v{CF+1}, 0xffff0000, v{CC}\nv_lshlrev_b32 v{CF+2}, 16, v{CC+1}\nv_and_b32 v{CF+3}, 0xffff0000, v{CC+1}\nv_lshlrev_b32 v{CF+4}, 16, v{CC+2}")
    for i in range(5): A.e(f"v_mul_f32 v{MA+i}, {hex(f2u(-LOG2E))}, v{CF+i}")
    for i in range(5): A.e(f"v_exp_f32 v{MA+i}, v{MA+i}")
    for i in range(5): A.e(f"v_add_f32 v{MA+i}, 1.0, v{MA+i}")
    for i in range(5): A.e(f"v_rcp_f32 v{MA+i}, v{MA+i}")
    for i in range(5): A.e(f"v_mul_f32 v{XF+2*i}, v{CF+i}, v{MA+i}")
    for i in range(5):
        A.wait(vm=("w", i))
        for q in range(4):
            t = 12 + 2 * (q % 2)
            A.e(f"v_lshlrev_b32 v{t}, 16, v{WM+4*i+q}\nv_and_b32 v{t+1}, 0xffff0000, v{WM+4*i+q}")
            if i == 0: A.e(f"v_pk_mul_f32 {v(MA+2*q,2)}, {v(t,2)}, {v(XF,2)} op_sel_hi:[1,0]")
            else: A.e(f"v_pk_fma_f32 {v(MA+2*q,2)}, {v(t,2)}, {v(XF+2*i,2)}, {v(MA+2*q,2)} op_sel_hi:[1,0,1]")
    for sh in (4, 8):
        for q in range(8): A.e(f"v_add_f32_dpp v{MA+q}, v{MA+q}, v{MA+q} row_ror:{sh} row_mask:0xf bank_mask:0xf")
    A.e("s_mov_b32 exec_lo, 0xf000f\ns_mov_b32 exec_hi, 0xf000f")
    A.lds(f"ds_write_b128 v{vMw}, {v(MA,4)} offset:{MP}", "f"); A.lds(f"ds_write_b128 v{vMw}, {v(MA+4,4)} offset:{MP+16}", "f")
    A.e(f"s_mov_b64 exec, {(1 << ncl) - 1}")
    A.fstamp(); A.wait(vm="p0"); A.fstamp()
    A.e(f"v_cmp_eq_u32 vcc, s{sW}, v{TF+3}\ns_nop 0\ns_cmp_lg_u64 vcc, 0\ns_cbranch_scc1 L2_p0s"); A.label("L2_p0r")
    B.label("L2_p0s"); poll(B, "L2_p0", p0, f"v_cmp_eq_u32 vcc, 0, v{TF+3}"); B.e("s_branch L2_p0r")
    A.e("s_mov_b64 exec, 1"); A.wait(lg="f"); A.e("s_barrier")
    A.vmem(f"buffer_store_dword v60, v{vL7}, {s(sWs,4)}, s{sKy} offen sc1"); A.e("s_mov_b64 exec, -1")
    for i in range(8): A.lds(f"ds_read_b32 v{XF+i}, v{vL4} offset:{MP + 256*i}", "g2")
    A.wait(lg="g2")
    A.e(f"v_pk_add_f32 {v(XF,2)}, {v(XF,2)}, {v(XF+2,2)}\nv_pk_add_f32 {v(XF+4,2)}, {v(XF+4,2)}, {v(XF+6,2)}\nv_pk_add_f32 {v(XF,2)}, {v(XF,2)}, {v(XF+4,2)}\nv_add_f32 v52, v{XF}, v{XF+1}")
    A.e(f"v_mov_b32 v53, v52\nv_mov_b32 v54, s{sAdd}\ns_nop 0\nv_permlane32_swap_b32 v53, v52\nv_add_f32 v52, v52, v53")
    A.e(f"v_fma_f32 v52, v52, s{sMul}, v54\nv_min_u32 v52, -2, v52\ns_mov_b32 exec_hi, 0")
    A.vmem(f"buffer_store_dword v52, v{vMs}, {s(sWs,4)}, s{sMl} offen sc1"); A.e("s_mov_b64 exec, -1")
    A.fstamp()
    if ls: late_setup()
    fo2 = opt.get("fo2", 1); nl0 = opt.get("nl0", 2)
    for c in range(nl0): emit_dma(A, dmaL(c))
    A.stamp()
    if opt.get("walk", 1):
        A.e(f"s_mov_b64 exec, 0\ns_cmp_eq_u32 s{sW}, 0\ns_cbranch_scc1 L2_pad0\ns_cmp_eq_u32 s{sW}, 1\ns_cbranch_scc1 L2_pad1\ns_cmp_eq_u32 s{sW}, 2\ns_cbranch_scc1 L2_pad2\ns_branch L2_pad3")
        A.e(".p2align 12"); A.label("L2_walkret")
    px = f"buffer_load_dword v12, v{vXf}, {s(sWs,4)}, s{sXf} offen sc1"
    A.e("s_mov_b64 exec, 15")
    if fo2: A.vmem(px, "px")
    else: poll(A, "L2_px", px, "v_cmp_eq_u32 vcc, 0, v12"); A.stamp()
    A.e("s_mov_b64 exec, -1")
    A.e("s_movk_i32 s14, 13824")
    sweep = [f"buffer_load_dwordx4 {v(SV+8*h,4)}, v{SA}, {s(sWs,4)}, {'s14' if h else 0} offen sc1" for h in range(2)]
    sweep += [("s_mov_b64 exec, 0xff\n" if h == 0 else "") + f"buffer_load_dwordx4 {v(SV+8*h+4,4)}, v{SA}, {s(sWs,4)}, {'s14' if h else 0} offen offset:1024 sc1" + ("\ns_mov_b64 exec, -1" if h else "") for h in range(2)]
    tree = f"v_max_u32 v13, v{SV}, v{SV+1}\n" + "\n".join(f"v_max3_u32 v13, v13, v{SV+2*k}, v{SV+2*k+1}" for k in range(1, 8)) + "\nv_cmp_eq_u32 vcc, -1, v13"
    for x in sweep: A.vmem(x, "sw")
    if fo2:
        if nl0 < 1: emit_dma(A, dmaL(0))
        A.e("s_mov_b64 exec, 15"); A.wait(vm="px")
        A.e("v_cmp_eq_u32 vcc, 0, v12\ns_nop 0\ns_cmp_eq_u64 vcc, 0\ns_cbranch_scc1 L2_px_ok")
        keep = list(A.vm); poll(A, "L2_px", px, "v_cmp_eq_u32 vcc, 0, v12", 0); A.vm = keep
        A.e("s_mov_b64 exec, -1"); A.stamp()
    for c in range(2):
        for pre, ld in xload(c): A.items(pre + [ld])
    A.fstamp(); A.wait(vm="sw"); A.fstamp()
    A.e(tree + "\ns_nop 0\ns_cmp_lg_u64 vcc, 0\ns_cbranch_scc1 L2_pms"); A.label("L2_pmr")
    B.label("L2_pms"); poll(B, "L2_pm", "\n".join(sweep), tree); B.e("s_branch L2_pmr")
    A.fstamp()
    for k in range(0, 8, 2): A.e(f"v_pk_add_f32 {v(SV+k,2)}, {v(SV+k,2)}, {v(SV+8+k,2)}")
    A.lds(f"ds_write_b128 v{SD}, {v(SV,4)}", "mw"); A.e("s_mov_b64 exec, 0xff"); A.lds(f"ds_write_b128 v{SD}, {v(SV+4,4)} offset:2048", "mw"); A.e("s_mov_b64 exec, -1")
    A.wait(vm=("L", 0), lg="mw"); A.e("s_barrier")
    A.items(as_reads(0, 0) + as_reads(0, 1))
    if nl0 < 2: emit_dma(A, dmaL(1))
    for pre, ld in xload(2): A.items(pre + [ld])
    A.wait(vm=("X", 0))
    for q in range(4):
        A.wait(lg=("AS", 0, q)); A.items(modulate(0, q))
        if q < 3: A.items(as_reads(0, q + 2) if q < 2 else as_reads(1, 0))
        if q == 2:
            for G in range(QD): A.items(qreads(G))
    A.stamp()
    A.wait(lg=("A", 0))
    Sc, leftover, vmg = gen_qproj(A)
    N = len(Sc.mf)
    T = Asm(); pf_addr(T)
    rest = Sc.fill([(0, x) for x in T.L], 512, N); assert not rest
    rest = Sc.fill([(0, x) for x in kreads(0, ("K", 0))], N - 4 * QD, N); assert not rest
    pend = []
    for t2 in range(8):
        cs = [qconvert(2 * (t2 // 4) + n, t2 % 4) for n in range(2)]
        pend += [(512 + 8 * t2 + 7 + 5, x) for x in cs[0][0] + cs[1][0]]
    pend = Sc.fill(pend, 512, N)
    late = len(pend) > 32
    for c in range(9):
        Sc.emit(A, 64 * c, 64 * c + 64)
        if A.stamping == 4 or c in (3, 8): A.stamp()
    A.e(f"s_mul_i32 s3, s{sT8}, 9216\ns_add_u32 s3, s3, {WS_H2}"); A.srd(sH2, sWs, 9216, "s3")
    emit_dma(A, leftover)
    if late: A.items([x for _, x in pend[:-32]]); pend = pend[-32:]
    for t in range(4):
        for j in range(2): A.items(qconvert(j, t)[1])
    A.items([x for _, x in pend]); A.e("s_nop 0")
    for t in range(4):
        for j in range(2, 4): A.items(qconvert(j, t)[1])
    A.wait(lg=(("K", 0), 0))
    for j in range(4):
        for t in range(4):
            d = S0 + 4 * j
            A.e(f"{MF} {v(d,4)}, {a(KF(0,t),4)}, {v(Q(j,t),4)}, {'0' if t == 0 else v(d,4)}")
    A.e("s_nop 1")
    for j in range(4):
        d = S0 + 4 * j
        A.e(f"v_max3_f32 v{d}, v{d}, v{d+1}, v{d+2}\nv_max_f32 v{d}, v{d}, v{d+3}")
    xmax_to_negm(A, [S0 + 4 * j for j in range(4)], BIAS)
    NIT = opt.get("nit", 11)
    A.label("L2_entry")
    A.e(f"s_mov_b32 s{sBase}, s{sW4}\ns_mov_b32 s{sDel}, {-2*SLOT}\ns_mov_b32 s{sCnt}, {NIT}\ns_mov_b32 s{sT}, {2*16384}\ns_mov_b32 s100, 0x07060302")
    A.wait(vm=("L", 10)); A.e("s_barrier")
    A.stamp()
    pair = opt.get("pair", 1)
    Sf = gen_stage(0, "first", dma_kv_dyn(3, 1), opt, bar=0 if pair else 2)
    rest = Sf.fill([(0, f"v_mov_b32 v{O(3,0)+i}, 0") for i in range(32)], 33, 132)
    for _, x in rest: Sf.va[17].append(x)
    Sf.emit(A)
    tcode = []
    def body(i):
        if pair == 1:
            Sa = gen_stage(i, "A", dma_kv_dyn(i + 3, 0) + dma_kv_dyn(i + 4, 1), opt, bar=0, dgap=1)
            Sa.emit(A)
            Sb = gen_stage(i + 1, "B", [], opt, bar=0)
        elif pair == 2:
            gen_stage(i, "A", dma_kv_dyn(i + 3, 0), opt, bar=0, dgap=1).emit(A)
            Sb = gen_stage(i + 1, "B", dma_kv_dyn(i + 4, 1), opt, bar=0)
        else:
            gen_stage(i, "A", dma_kv_dyn(i + 3, 0), opt).emit(A)
            Sb = gen_stage(i + 1, "B", dma_kv_dyn(i + 4, 1), opt)
        Sb.sh[128].append(f"s_sub_u32 s{sCnt}, s{sCnt}, 1"); Sb.sh[129].append(f"s_cmp_lg_u32 s{sCnt}, 0")
        Sb.emit(A)
    if opt.get("align_loop", 1): A.e(".p2align 5")
    A.label("L2_loop")
    n0 = len(A.L); body(1); n1 = len(A.L); body(3)
    assert A.L[n0:n1] == A.L[n1:], "loop body not in steady state"
    assert lint(A.L[n0:], "loop2x") == 0
    del A.L[n1:]
    def shift(t, d):
        if isinstance(t, tuple) and t[0] in ("L", "V"): return (t[0], t[1] + d)
        if isinstance(t, tuple) and isinstance(t[0], tuple): return ((t[0][0], t[0][1] + d), t[1])
        return t
    A.vm = [shift(t, 2 * NIT - 4) for t in A.vm]; A.lg = [shift(t, 2 * NIT - 4) for t in A.lg]
    A.e("s_cbranch_scc1 L2_loop")
    def gt(ch):
        if ch == "r": return ([], ("vm", f"buffer_load_dword a{aDum}, v{vAS}, {s(sWr,4)}, 0 offen", None))
        vr, sp = dict(g=(12, 4), u=(12, 6), d=(13, 8), a=(14, 10), b=(15, 10))[ch]
        return ([], ("vm", f"global_load_dword a{aDum}, v{vr}, {s(sp,2)}", None))
    fw = ld_ffn()
    plan = opt.get("plan", {24: "ga", 26: "bu", 28: "dr01234", 30: "5678ABCD"} if pair == 1 else {23: "g", 24: "a", 25: "b", 26: "u012", 27: "d345", 28: "r678", 29: "AB", 30: "CD"})
    def tile(n, odd): return dma_kv_dyn(n, odd) if n < 32 else dma_wo(n - 32)
    for i in range(2 * NIT + 1, 31):
        ex = [fw[int(ch)] if ch.isdigit() else gt(ch) if ch.islower() else
              ([], ("vm", f"buffer_store_dwordx4 a[56:59], v{vKV}, {s(sH2,4)}, 0 offen offset:{1024*(ord(ch) - 65)} sc1", None)) for ch in plan.get(i, "")]
        if pair == 1: gen_stage(i, "A" if i % 2 else "B", tile(i + 3, 0) + tile(i + 4, 1) if i % 2 else [], opt, ex, max(2, min(opt.get("xsb", 12), 24 // max(1, len(ex)))), bar=0, dgap=i % 2).emit(A)
        else: gen_stage(i, "A" if i % 2 else "B", tile(i + 3, 1 - i % 2), opt, ex, bar=0 if pair else 2, dgap=pair and i % 2).emit(A)
    nup = opt.get("nup", 16)
    upd = [x for k in range(9) for x in ([fw[9 + k]] + ([fw[18 + k]] if 18 + k < 9 + nup else []))]
    Sl = gen_stage(31, "last", dma_wo(2), opt, upd, opt.get("xs31", 1), dgap=pair)
    def norm(j, pk):
        r = vTmp + 2 * (j % 2)
        out = [f"v_accvgpr_read_b32 v{r}, a{aL+4*j}", f"v_accvgpr_read_b32 v{r+1}, a{aL+4*j+1}", f"v_add_f32 v{r}, v{r}, v{r+1}"]
        if opt.get("ones2", 0):
            for op in ("v_permlane16_swap_b32", "v_permlane32_swap_b32"):
                out += [f"v_mov_b32 v{r+1}, v{r}", "s_nop 1" if pk else "s_nop 0", f"{op} v{r+1}, v{r}", f"v_add_f32 v{r}, v{r}, v{r+1}"]
        out += [f"v_subrev_u32 v{r+1}, {hex(f2u(2.0**(-BIAS-3)))}, v{r}", f"v_cmp_gt_u32 {s(56+2*j,2)}, v{r+1}, s15", f"v_rcp_f32 v{r}, v{r}"]
        body = []
        for x in range(4):
            o = O(j, 2 * x)
            if pk: body += [f"v_pk_mul_f32 {v(o+i,2)}, {v(o+i,2)}, {v(r,2)} op_sel_hi:[1,0]" for i in range(0, 8, 2)]
            else: body += [f"v_mul_f32 v{o+i}, v{o+i}, v{r}" for i in range(8)]
            body += [f"v_cvt_pk_bf16_f32 v{o+i}, v{o+2*i}, v{o+2*i+1}" for i in range(4)]
        return out, body
    Sl.sh[40].append(f"s_mov_b32 s15, {hex(f2u(2.0**60) - f2u(2.0**(-BIAS-3)))}")
    rest = Sl.fill([(149, x) for x in oreads(0)], 149, 165); assert not rest
    rest = Sl.fill([(70 + 33 * j, x) for j in range(2) for x in sum(norm(j, False), [])], 70, 165)
    Sl.emit(A)
    A.stamp()
    h2_, b2 = norm(2, True); h3, b3 = norm(3, True)
    rest = ["s_nop 1" if x == "s_nop 0" else x for _, x in rest]
    if len(rest) >= 48:
        A.items(rest[:-48] + h2_ + norm(1, True)[1] + h3[:-1])
    else: A.items(h2_ + rest + h3[:-1])
    A.e("s_or_b64 s[56:57], s[56:57], s[58:59]\n" + h3[-1] + "\ns_or_b64 s[60:61], s[60:61], s[62:63]\ns_or_b64 s[56:57], s[56:57], s[60:61]")
    A.e(f"s_lshl2_add_u32 s14, s{sW}, {FLAG}\nv_mov_b32 v{NM+9}, s14\nv_mov_b32 v{NM+10}, {FLAG}")
    A.items(b2 + b3)
    A.wait(lg=("W", 0, 0))
    A.stamp()
    So, leftover = gen_oproj(A)
    So.sh[2].append("s_cmp_lg_u64 s[56:57], 0\ns_cselect_b32 s3, 1, 0"); So.sh[4].append(("s_mov_b32 s3, 1\n" if opt.get("force_fallback") else "") + f"s_andn2_b32 s3, s3, s{sPass}")
    So.va[9].append(f"v_mov_b32 v{NM+8}, s3"); So.mem[15].append(("lds", f"ds_write_b32 v{NM+9}, v{NM+8}", "fw"))
    for c in range(9):
        So.emit(A, 64 * c, 64 * c + 64)
        if A.stamping == 3: A.stamp()
    A.e("s_nop 7")
    for n in range(2):
        cv, sw, st = oepi(17, n)
        A.items(cv + ["s_nop 1"] + sw + st[0] + [st[1]])
    A.stamp()
    gen_tail(A, B, opt)
    A.label("L2_end")
    A.e("s_endpgm")
    A.L += B.L
    A.label("L2_fallback")
    A.wait_all(); A.e(f"s_nop 7\ns_barrier\ns_lshl_b32 s3, s{sW}, 12\nv_add_u32 v{vKV}, s3, v{vX}")
    init_kv_addr()
    for j in range(4): A.e(f"v_mov_b32 v{P0+j}, 0xff800000")
    A.e(f"s_mov_b32 s{sPass}, 1\ns_mov_b32 s{sT}, 0")
    A.label("L2_fb_loop")
    emit_dma(A, dma_kv_static(None, (0,), 2))
    A.wait_all(); A.e("s_barrier")
    A.items(kreads(0, "fk")); A.wait_all(); A.e("s_barrier")
    for j in range(4):
        for kt in range(4):
            for t in range(4):
                d = S0 + 4 * kt
                A.e(f"{MF} {v(d,4)}, {a(KF(kt,t),4)}, {v(Q(j,t),4)}, {'0' if t == 0 else v(d,4)}")
        A.e("s_nop 7")
        for i in range(8): A.e(f"v_max3_f32 v{P0+j}, v{P0+j}, v{S0+2*i}, v{S0+2*i+1}")
    A.e(f"s_add_u32 s{sT}, s{sT}, 16384\ns_cmp_lt_u32 s{sT}, {32*16384}\ns_cbranch_scc1 L2_fb_loop")
    xmax_to_negm(A, [P0 + j for j in range(4)], 0.0)
    for i in range(3): emit_dma(A, dma_kv_static(i))
    A.wait_all(); A.e("s_barrier")
    A.items(kreads(0, "fk")); pf_addr(A)
    for i in range(16): A.e(f"v_accvgpr_write_b32 a{aL+i}, 0")
    A.wait_all()
    A.e("s_branch L2_entry")
    A.label("L2_codeend")
    if opt.get("walk", 1): A.L = insert_pads(A.L, "L2_walkret", "L2_end")
    return A, dict(name=KNAME, grid=256, block=256, lds=LDS_BYTES, vgpr=512, acc=256)
```

```python
from asmlib import *
from layout import *

RING = 16384; SLOT = 36864; HALF = 16896; PIECE = 1056
ASB = 9216
SCR = 13824
FLAG = SCR
LDS_BYTES = RING + 4 * SLOT
BIAS = 64
vK, vV, vT, vT2, vKV, vWq, vWo, vX, vAS, vPt, vIdx = 1, 2, 3, 4, 5, 6, 7, 8, 9, 10, 11
vTmp = 12
S0 = 16; P0 = 32; NM = 48; Q0 = 64; O0 = 128
AS0 = 16; T0 = 32; X0 = 48
def O(j, dt): return O0 + (j * 8 + dt) * 4
def Q(j, t): return Q0 + (j * 4 + t) * 4
def X(c, n, kl): return X0 + ((c + 2) % 5) * 16 + (n * 2 + kl) * 4
aL = 0; aOne = 16; aK = 64; aV = 128
def KF(kt, t): return aK + (kt * 4 + t) * 4
def VF(buf, dt, u): return aV + buf * 64 + (dt * 2 + u) * 4
sK, sV, sWq, sWo, sXn, sWr, sPt = 16, 20, 24, 28, 32, 36, 40
sC, sWm, sDb = 16, 88, 60
sW4, sOff, sT, sBase, sDel, sCnt, sPass, sW, sG, sTb, sOff2 = 44, 45, 46, 47, 48, 49, 50, 51, 52, 53, 54
sWg, sWu, sWd, sXi, sOut, sWs, sPr = 64, 68, 72, 76, 80, 84, 88
sW9, sT8, sCap = 55, 96, 97
sH2 = 32
sSt = 24; sYp = 32
vFg = vWq
aDum = 63
MF = "v_mfma_f32_16x16x32_bf16"

def trd(dst, slot, off):
    base = vT if slot < 2 else vT2
    return f"ds_read_b64_tr_b16 {a(dst,2)}, v{base} offset:{(slot % 2) * SLOT + off}"

def dma_wq(c):
    slot = (c + 1) % 4; out = []
    for kl in range(2):
        for r in range(4):
            out.append(([f"s_add_u32 m0, s{sW4}, {slot*SLOT + kl*HALF + r*PIECE}", f"s_mov_b32 s{sOff}, {(64*c + 32*kl + r) * 8192}"],
                        ("vm", f"buffer_load_dwordx4 v{vWq}, {s(sWq,4)}, s{sOff} offen{OPT.get('wq_nt','')} lds", ("L", c))))
    return out
def dma_kv_static(i, halves=(0, 1), slot=None):
    slot = (i + 2) % 4 if slot is None else slot; out = []
    for h in halves:
        for j in range(4):
            pre = [f"s_add_u32 m0, s{sW4}, {slot*SLOT + h*HALF + 32*j}"]
            if i is not None and j == 0 and h == halves[0]: pre.append(f"s_mov_b32 s{sT}, {i*16384}")
            out.append((pre, ("vm", f"buffer_load_dwordx4 {'off' if OPT.get('tid', 1) else v(vKV)}, {s(sV if h else sK,4)}, s{sT}{'' if OPT.get('tid', 1) else ' offen'} offset:{1024*j}{OPT.get('kv_nt','')} lds", ("L", 9 + (i or 0)))))
    return out
def dma_kv_dyn(i, odd):
    out = []
    for h in range(2):
        for j in range(4):
            pre = [f"s_add_u32 m0, s{sBase}, {odd*SLOT + h*HALF + 32*j}"] + [f"s_add_u32 s{sT}, s{sT}, 16384"] * (h == 0 and j == 0)
            out.append((pre, ("vm", f"buffer_load_dwordx4 {'off' if OPT.get('tid', 1) else v(vKV)}, {s(sV if h else sK,4)}, s{sT}{'' if OPT.get('tid', 1) else ' offen'} offset:{1024*j}{OPT.get('kv_nt','')} lds", ("L", 9 + i))))
    return out
def dma_wo(c):
    slot = (c + 2) % 4; out = []
    for hi in range(2):
        for r in range(4):
            pre = [f"s_add_u32 m0, s{sW4}, {slot*SLOT + hi*HALF - 96*r}"]
            if r == 0: pre.append(f"s_mov_b32 s{sOff}, {c*128 + hi*128*1152}")
            out.append((pre, ("vm", f"buffer_load_dwordx4 v{vWo}, {s(sWo,4)}, s{sOff} offen offset:{1152*r}{OPT.get('wo_nt','')} lds", ("L", 41 + c))))
    return out
def FW(k): return 20 + 4 * k if k < 9 else aV + 4 * (k - 9)
def ld_ffn():
    out = []
    for m in range(3):
        for i in range(9):
            d = a(FW(9 * m + i), 4)
            if m < 2: out.append(([f"s_mov_b32 s{sOff2}, {i*16*9216}"], ("vm", f"buffer_load_dwordx4 {d}, v{vFg}, {s(sWu if m else sWg,4)}, s{sOff2} offen", "fw")))
            else: out.append(([f"s_add_u32 s{sOff2}, s{sW9}, {1024*i}"], ("vm", f"buffer_load_dwordx4 {d}, v{vX}, {s(sWd,4)}, s{sOff2} offen", "fw")))
    return out
def touch(vaddr, srd, off):
    return ([f"s_mov_b32 s{sOff2}, {off}"], f"buffer_load_dword a{aDum}, v{vaddr}, {s(srd,4)}, s{sOff2} offen")
def dmaL(n):
    return dma_wq(n) if n < 9 else (dma_kv_static(n - 9) if n < 41 else dma_wo(n - 41))
def emit_dma(A, lst):
    for pre, ld in lst:
        A.items(pre)
        if len(pre) == 1: A.e("s_nop 0")
        A.item(ld)
def xload(c):
    return [([f"s_mov_b32 s{sOff2}, {n*18432 + (2*c+kl)*1024}"],
             ("vm", f"buffer_load_dwordx4 {v(X(c,n,kl),4)}, {'off' if OPT.get('tidx', 1) else v(vX)}, {s(sXn,4)}, s{sOff2}{'' if OPT.get('tidx', 1) else ' offen'} sc1", ("X", c))) for n in range(2) for kl in range(2)]
def place_vm(Sc, g, item):
    pre, ld = item
    for k, p in enumerate(pre): Sc.sh[g - 1 + k].append(p)
    Sc.mem[g].append(ld)

def as_reads(c, q):
    kl, hf = q // 2, q % 2; d = AS0 + (q % 2) * 8; off = ASB + (2 * c + kl) * 256 + hf * 16
    return [("lds", f"ds_read_b128 {v(d,4)}, v{vAS} offset:{off}", ("AS", c, q)), ("lds", f"ds_read_b128 {v(d+4,4)}, v{vAS} offset:{off+32}", ("AS", c, q))]
def modulate(c, q):
    kl, hf = q // 2, q % 2; d = AS0 + (q % 2) * 8; out = []
    for n in range(2):
        x = X(c, n, kl) + 2 * hf; t = T0 + 4 * n
        for i in range(4):
            out.append(f"v_fma_mix_f32 v{t+i}, v{x+i//2}, v{d+i}, v{d+4+i} op_sel:[{i%2},0,0] op_sel_hi:[1,0,0]")
        out += [f"v_cvt_pk_bf16_f32 v{x}, v{t}, v{t+1}", f"v_cvt_pk_bf16_f32 v{x+1}, v{t+2}, v{t+3}"]
    return out

def kreads(off, tag): return [("lds", f"ds_read_b128 {a(KF(kt,t),4)}, v{vK} offset:{off + kt*256 + t*64}", (tag, kt)) for kt in range(4) for t in range(4)]
def vreads(buf, off, tag): return [("lds", f"ds_read_b64_tr_b16 {a(VF(buf,dt,u)+2*b,2)}, v{vV} offset:{off + (2*u+b)*256 + dt*32}", tag) for dt in range(8) for u in range(2) for b in range(2)]

QD = 3
def AF(grp, kl): return aV + 64 + (grp % 8) * 8 + kl * 4
def qreads(G):
    c, mt = divmod(G, 16); slot = (c + 1) % 4
    return [("lds", trd(AF(G, kl) + 2 * b, slot, kl * HALF + b * 512 + mt * 32), ("A", G)) for kl in range(2) for b in range(2)]

def gen_qproj(A):
    Sc = Sched()
    for c in range(9):
        for mt in range(16):
            G = c * 16 + mt
            for n in range(2):
                d = O(2 * (mt // 8) + n, mt % 8)
                for kl in range(2):
                    cc = "0" if c == 0 and kl == 0 else v(d, 4)
                    Sc.mfma(f"{MF} {v(d,4)}, {a(AF(G,kl),4)}, {v(X(c,n,kl),4)}, {cc}")
    N = len(Sc.mf); vmg = set()
    leftover = []
    for k, it in enumerate(dmaL(2)):
        g = 3 + 4 * k; place_vm(Sc, g, it); vmg.add(g)
    for c in range(9):
        gb = 64 * (c + 1) - 4 * QD - 1 if c < 8 else OPT.get("gb8", 551)
        Sc.sh[gb] += [("wait", ("L", c + 1), None), "s_barrier"]
        for k, it in enumerate(dmaL(c + 3)):
            g = gb + 4 + 4 * k
            if g < N: place_vm(Sc, g, it); vmg.add(g)
            else: leftover.append(it)
    for c in range(6):
        for k, it in enumerate(xload(c + 3)):
            g = 64 * c + 35 + 4 * k
            assert g not in vmg
            place_vm(Sc, g, it); vmg.add(g)
    for G in range(144):
        if G > 0: Sc.sh[4 * G - 1].append(("wait", None, ("A", G)))
        if G + QD < 144:
            rd = qreads(G + QD); gs = [g for g in range(4 * G, 4 * G + 4) if g not in vmg]
            if len(gs) == 3: gs = [gs[0], gs[1], gs[1], gs[2]]
            for g, r in zip(gs, rd): Sc.mem[g].append(r)
    for c in range(8):
        Sc.sh[64 * c].append(("wait", ("X", c + 1), None))
        for q in range(4):
            w0 = 64 * c + 16 * q
            nxt = as_reads(c + 1, q + 1) if q < 3 else (as_reads(c + 2, 0) if c < 7 else [])
            items = modulate(c + 1, q)
            Sc.sh[w0].append(("wait", None, ("AS", c + 1, q)))
            free = [g for g in range(w0, w0 + 16) if g not in vmg and len(Sc.mem[g]) < 2]
            for r in nxt:
                g = free.pop(0); Sc.mem[g].append(r)
            over = len(items) - len(free)
            odd = sorted(range(w0 + 1, w0 + 16, 2), key=lambda g: (g in vmg, -g))
            slots = sorted(free + odd[:over] if over > 0 else free); assert len(slots) >= len(items)
            for g, it in zip(slots, items): Sc.va[g].append(it)
    return Sc, leftover, vmg

def qconvert(j, t):
    o = O(j, 2 * t); q = Q(j, t)
    return [f"v_cvt_pk_bf16_f32 v{q+i}, v{o+2*i}, v{o+2*i+1}" for i in range(4)], [f"v_permlane32_swap_b32 v{q}, v{q+2}", f"v_permlane32_swap_b32 v{q+1}, v{q+3}"]

def pf_addr(A):
    A.e(f"v_lshrrev_b32 v14, 2, v0\ns_mul_i32 s3, s{sW}, 144\nv_add_u32 v14, s3, v14\nv_mul_u32_u24 v14, 9216, v14\nv_and_b32 v15, 3, v0\nv_lshl_add_u32 v{vFg}, v15, 4, v14")
    A.e(f"s_lshr_b32 s3, s2, 3\ns_lshl2_add_u32 s3, s3, s{sW}\ns_and_b32 s15, s2, 7\nv_lshlrev_b32 v{vAS}, 7, v0")
    A.e(f"s_mul_i32 s14, s3, 9\ns_lshr_b32 s14, s14, 1\nv_min_u32 v15, 44, v0\nv_mul_u32_u24 v12, 7282, v15\nv_lshrrev_b32 v12, 16, v12\nv_mul_u32_u24 v13, 63, v12\nv_add_u32 v12, v15, v13")
    A.e(f"s_mul_i32 s14, s14, 72\ns_mul_i32 s56, s15, 9\ns_add_u32 s14, s14, s56\nv_add_lshl_u32 v12, s14, v12, 7")
    A.e(f"s_mul_i32 s14, s3, 81\ns_lshr_b32 s14, s14, 1\ns_mul_i32 s56, s15, 5184\ns_add_u32 s14, s14, s56\nv_min_u32 v13, 40, v0\nv_add_lshl_u32 v13, s14, v13, 7")
    A.e(f"s_mul_i32 s14, s3, 72\ns_andn2_b32 s56, s{sG}, 3\ns_mul_i32 s56, s56, 2304\ns_add_u32 s14, s14, s56\nv_min_u32 v14, 35, v0\nv_add_lshl_u32 v14, s14, v14, 7\nv_add_u32 v15, 4608, v14")
    if OPT.get("x_odd"): A.e("s_and_b32 s14, s2, 1\ns_sub_u32 s14, s14, 1\nv_and_b32 v12, s14, v12\nv_and_b32 v13, s14, v13")

def xmax_to_negm(A, src, bias):
    t = P0 + 8
    for op in ("v_permlane16_swap_b32", "v_permlane32_swap_b32"):
        for j in range(4): A.e(f"v_mov_b32 v{t+j}, v{src[j]}")
        for j in range(4): A.e(f"{op} v{t+j}, v{src[j]}")
        for j in range(4): A.e(f"v_max_f32 v{src[j]}, v{src[j]}, v{t+j}")
    for j in range(4):
        for i in range(4): A.e(f"v_sub_f32 v{NM+4*j+i}, {hex(f2u(-float(bias)))}, v{src[j]}")

def gen_stage(i, kind, dma, opt, extra=(), xstep=2, bar=2, dgap=None):
    par = i % 2; Sc = Sched(); first = kind == "first"; last = kind == "last"
    nun = 5 if last else 4
    for j in range(nun):
        for kt in range(4):
            for t in range(4):
                d = S0 + 4 * kt
                Sc.mfma(None if j == 4 else f"{MF} {v(d,4)}, {a(KF(kt,t),4)}, {v(Q(j,t),4)}, {v(NM+4*j,4) if t == 0 else v(d,4)}")
        jp = (j - 1) % 4; vb = par if j > 0 else 1 - par; p = P0 + 8 * (jp % 2)
        skip = first and j == 0
        for dt in range(8):
            for u in range(2):
                d = O(jp, dt); cc = "0" if first and u == 0 else v(d, 4)
                Sc.mfma(None if skip else f"{MF} {v(d,4)}, {a(VF(vb,dt,u),4)}, {v(p+4*u,4)}, {cc}")
        Sc.mfma(None if skip else f"v_smfmac_f32_16x16x64_bf16 {a(aL+4*jp,4)}, {a(aOne,4)}, {v(p,8)}, v{vIdx}")
        b = 33 * j
        for x in range(16):
            prev = x < 4
            if (prev and skip) or (j == 4 and not prev): continue
            e = (x - 4) % 16
            Sc.va[b + 2 * x].append(f"v_exp_f32 v{S0+e}, v{S0+e}")
        for k in range(8):
            prev = k < 3; pr = (k + 5) % 8
            if (prev and skip) or (j == 4 and not prev): continue
            pb = P0 + 8 * ((j - 1 if prev else j) % 2)
            if opt.get("perm", 1): Sc.va[b + 4 * k + 1].append(f"v_perm_b32 v{pb+pr}, v{S0+2*pr+1}, v{S0+2*pr}, s100")
            else: Sc.va[b + 4 * k + 1].append(f"v_cvt_pk_bf16_f32 v{pb+pr}, v{S0+2*pr}, v{S0+2*pr+1}")
    if first:
        for g in range(16, 33):
            if g % 2 == 0: Sc.va[g].append("s_nop 0")
        Sc.sh[16].append("s_nop 3"); Sc.sh[8].append("s_nop 1")
    if last:
        for g in range(33 * 4, 33 * 4 + 8, 2): Sc.va[g].append("s_nop 0")
        Sc.va[33 * 4 + 15].append("s_nop 1")
    for kt in range(1, 4): Sc.sh[4 * kt - 1].append(("wait", None, (("K", i), kt)))
    cand = [33 * j + r for j in range(4 if last else 3) for r in range(3, 32, 4)]
    gs = cand[:len(dma)] + cand[len(dma)::xstep]
    if dgap:
        gs = cand[4:4 + len(dma)] + cand[max(8, 4 + len(dma))::xstep]
        if len(dma) == 16: gs = cand[4:12] + cand[16:24]
        Sc.sh[15] += [("wait", ("L", 9 + i + 2), None), "s_barrier"]
    dma = list(dma) + list(extra)
    vmg = set()
    for g, it in zip(gs, dma): place_vm(Sc, g, it); vmg.add(g)
    assert len(vmg) == len(dma)
    if kind == "A":
        Sc.va[1].append(f"v_add_u32 v{vK}, s{sDel}, v{vK}"); Sc.va[5].append(f"v_add_u32 v{vV}, s{sDel}, v{vV}")
        Sc.sh[0].append(f"s_sub_u32 s{sBase}, s{sBase}, s{sDel}")
        Sc.sh[8].append(f"s_sub_u32 s{sDel}, 0, s{sDel}")
    if not last:
        off = 0 if kind == "A" else SLOT
        if first:
            rest = Sc.fill([(0, x) for x in vreads(0, 0, ("V", 0))], 0, 16)
            for _, x in rest: Sc.mem[16].append(x)
            Sc.sh[47].append(("wait", None, ("V", 0)))
        free = [33 * j + r for j in range(3) for r in list(range(1, 32, 2)) + [32] if 33 * j + r >= 17 and 33 * j + r not in vmg]
        vr = vreads(1 - par, off, ("V", i + 1))
        if len(free) < 32:
            two = [g for g in free if not Sc.va[g]]
            free = sorted(free + two[len(two) - (32 - len(free)):]); assert len(free) == 32
        for n, r in enumerate(vr):
            assert free[n] >= 16 + n // 2
            Sc.mem[free[n]].append(r)
        for n, r in enumerate(kreads(off, ("K", i + 1))): Sc.mem[99 + 2 * n + 1].append(r)
        if bar: Sc.sh[131] += [("wait", ("L", 9 + i + bar), (("K", i + 1), 0)), "s_barrier"]
        else: Sc.sh[131].append(("wait", None, (("K", i + 1), 0)))
    return Sc

OA = 16; OR = 48
def OB(n, u): return O(2 * (u // 4) + n, 2 * (u % 4))
def WF(grp, u): return aK + (grp % 2) * 32 + u * 4
def oreads(G):
    c, ntl = divmod(G, 4); slot = (c + 2) % 4
    return [("lds", trd(WF(G, u) + 2 * b, slot, (u // 4) * HALF + (2 * (u % 4) + b) * 128 + ntl * 32), ("W", G, u // 2)) for u in range(8) for b in range(2)]
def oacc(G, n): return OA + ((G % 4) * 2 + n) * 4
def oepi(pair, n):
    r = OR + 4 * n; x, y = oacc(2 * pair, n), oacc(2 * pair + 1, n); c, aa = divmod(pair, 2)
    cv = [f"v_cvt_pk_bf16_f32 v{r}, v{x}, v{x+1}", f"v_cvt_pk_bf16_f32 v{r+1}, v{x+2}, v{x+3}", f"v_cvt_pk_bf16_f32 v{r+2}, v{y}, v{y+1}", f"v_cvt_pk_bf16_f32 v{r+3}, v{y+2}, v{y+3}"]
    sw = [f"v_permlane32_swap_b32 v{r}, v{r+2}", f"v_permlane32_swap_b32 v{r+1}, v{r+3}"]
    st = ([f"s_mov_b32 s{sOff2}, {n*294912 + c*1024}"], ("vm", f"buffer_store_dwordx4 {v(r,4)}, v{vPt}, {s(sPt,4)}, s{sOff2} offen offset:{aa*512}{OPT.get('st_flags', ' sc1')}", "st"))
    return cv, sw, st

vXA, vXC = vK, vV
XR = 64
def HOLE(k): return O0 + 8 * k + 4
def xi_loads(ob):
    return [([], ("vm", f"buffer_load_dwordx4 {v(XR+4*i,4)}, v{vXC if i == 2 else vXA}, {s(sXi,4)}, 0 offen offset:{ob if i == 1 else 0}", "xi")) for i in range(3)]
vWA, vWC, vPA, vPB, vFa, vFl, vOne = 12, 13, 5, 59, 6, 9, 15
sFl, sRem, sQ, sRdyA, sFs, sPa = sBase, sDel, sT, sCnt, 56, 28
def WR(q): return 224 + 8 * (q // 4) + q % 4
def wr_loads():
    return [([], ("vm", f"buffer_load_dwordx4 {v(WR(4*i),4)}, v{vWC if i == 2 else vWA}, {s(sWr,4)}, 0 offen offset:{512*i}", "xi")) for i in range(3)]
def NV(r, h): return 76 + 12 * h + 4 * r
def mv_loads():
    return [([f"s_movk_i32 s{sOff}, {4608 + 13824*h + 4096*r}"], ("vm", f"buffer_load_dwordx4 {v(NV(r,h),4)}, v{vPB if r == 2 else vPA}, {s(sWs,4)}, s{sOff} offen sc1", "xi")) for r in range(3) for h in range(2)]
def item_addr(A, ma, mc, oc, t=14):
    A.e(f"s_mul_i32 s3, s{sW}, {ma}\nv_lshrrev_b32 v{t}, 3, v0\nv_lshl_add_u32 v{vWA}, v{t}, 4, s3\nv_and_b32 v{t}, 1, v{t}")
    if mc != ma: A.e(f"s_mul_i32 s3, s{sW}, {mc}")
    A.e(f"v_lshl_add_u32 v{vWC}, v{t}, 4, s3")
    A.e(f"v_and_b32 v{t}, 7, v0\nv_mul_u32_u24 v{t}, 1152, v{t}\nv_add_u32 v{vXA}, v{t}, v{vWA}\nv_add_u32 v{vXC}, v{t}, v{vWC}\nv_add_u32 v{vXC}, {oc}, v{vXC}")
def ready_mask(d):
    return ["s_lshr_b32 s3, vcc_lo, 1", "s_and_b32 s3, s3, vcc_lo", "s_lshr_b32 s14, s3, 2", f"s_and_b32 s{d}, s3, s14"]

vF2, vF0, vF1, vG0, vG1 = 104, 105, 106, 110, 111
aF = 64
def fw_write(k): return ("lds", f"ds_write_b128 v{(vF1, vF0, vF2)[k//9]}, {a(FW(k),4)} offset:{((3 + k//9) % 2)*SLOT + 1024*(k%9)}", "fww")
def fa_reads():
    far = [("lds", f"ds_read_b64_tr_b16 {a(aF+4*kk+2*b,2)}, v{vG0} offset:{2048*kk + 256*b}", "fa") for kk in range(18) for b in range(2)]
    return far + [("lds", f"ds_read_b64_tr_b16 {a(aF+72+4*nt+2*b,2)}, v{vG1} offset:{32*nt + 4608*b}", "fa") for nt in range(9) for b in range(2)]

def gen_oproj(A):
    Sc = Sched()
    for G in range(36):
        for n in range(2):
            for u in range(8):
                d = oacc(G, n)
                Sc.mfma(f"{MF} {v(d,4)}, {a(WF(G,u),4)}, {v(OB(n,u),4)}, {'0' if u == 0 else v(d,4)}")
    N = len(Sc.mf); vmg = set(); leftover = []
    st = OPT.get("o_step", 2)
    for c in range(8):
        gb = 64 * c + 47
        Sc.sh[gb] += [("wait", ("L", 41 + c + 1), "fw"), "s_barrier"]
        if c + 3 <= 8:
            for k, it in enumerate(dma_wo(c + 3)):
                g = gb + 2 + st * k; place_vm(Sc, g, it); vmg.add(g)
    misc = ld_ffn()[9 + OPT.get("nup", 16):]
    gl = list(range(3, 32, 4)); assert len(gl) >= len(misc)
    for g, it in zip(gl, misc): place_vm(Sc, g, it); vmg.add(g)
    Sc.sh[440] += [f"s_sub_u32 s{sPa}, s{sPr}, 4096", f"s_subb_u32 s{sPa+1}, s{sPr+1}, 0"]; Sc.sh[441].append(f"s_mov_b32 s{sPa+2}, 147456")
    if OPT.get("fo", 0):
        Sc.sh[64 * 8 + 15].append("s_barrier")
        for m, g0 in enumerate((64 * 6 + 48, 64 * 7 + 48, 64 * 8 + 16)):
            gs_ = [g0 + 2 * k for k in range(8)] + [g0 + 32]
            for k, g in enumerate(gs_): Sc.mem[g].append(fw_write(9 * m + k)); vmg.add(g)
    swg = set()
    for p in range(17):
        for n in range(2):
            b = 16 * (2 * p + 2) + 8 * n
            cv, sw, st = oepi(p, n)
            for k, x in enumerate(cv): Sc.va[b + k].append(x)
            Sc.va[b + 5].append(sw[0]); Sc.va[b + 6].append(sw[1]); swg |= {b + 5, b + 6}
            Sc.sh[b + 4].append(st[0][0]); Sc.va[b + 7].append(st[1])
    for G in range(36):
        for h in range(4):
            g = 16 * G + 2 * h - 1
            if g >= 0: Sc.sh[g].append(("wait", None, ("W", G, h)))
        if G + 1 < 36:
            gs = [g for g in range(16 * G, 16 * G + 16) if g not in vmg and g not in swg]
            two = [g for g in gs if not Sc.va[g]]
            extra = 16 - len(gs)
            if extra > len(two): two = two + [g for g in range(16 * G + 7, 16 * G + 16, 8)] * 4
            gs = sorted(gs + two[:extra]); assert len(gs) == 16
            for g, r in zip(gs, oreads(G + 1)): Sc.mem[g].append(r)
    f = NM + 12
    Sc.mem[47].append(("lds", f"ds_read_b128 {v(f,4)}, v{NM+10}", "fr"))
    Sc.sh[55].append(("wait", None, "fr"))
    Sc.va[55] += [f"v_or3_b32 v{f}, v{f}, v{f+1}, v{f+2}", f"v_or_b32 v{f}, v{f}, v{f+3}"]
    Sc.va[63].append(f"v_readfirstlane_b32 s3, v{f}")
    Sc.sh[65].append("s_cmp_lg_u32 s3, 0"); Sc.sh[66].append("s_cbranch_scc1 L2_fallback")
    T = Asm(); item_addr(T, 128, 32, 1024)
    T.e(f"s_lshl_b32 s14, s{sW}, 10\nv_add_u32 v{vPA}, s14, v{vX}\nv_and_b32 v{vPB}, 0xf0, v{vX}\ns_lshl_b32 s14, s{sW}, 8\nv_add_u32 v{vPB}, s14, v{vPB}")
    T.e(f"v_and_b32 v{vFa}, 15, v0\nv_lshlrev_b32 v{vFa}, 8, v{vFa}\nv_min_u32 v{vOne}, 1, v0\nv_lshlrev_b32 v{vOne}, 30, v{vOne}")
    T.e(f"s_lshl_b32 s15, s{sTb}, 14\ns_add_u32 s15, s15, {WS_F1}\ns_and_b32 s14, s{sG}, 12\ns_lshl_b32 s14, s14, 10\ns_add_u32 s{sFl}, s15, s14")
    T.e(f"s_lshl4_add_u32 s3, s{sW}, s{sG}\ns_lshl_b32 s3, s3, 8\ns_add_u32 s{sFs}, s3, s15")
    T.e(f"s_add_u32 s14, s{sW9}, {RING}\nv_add_u32 v{vF2}, s14, v{vX}\nv_and_b32 v14, 32, v0\nv_xor_b32 v{vF0}, v14, v{vF2}\nv_add_u32 v{vF1}, {2*SLOT}, v{vF0}")
    T.e(f"v_lshrrev_b32 v{vG0}, 4, v0\nv_bfe_u32 v14, v0, 2, 2\nv_lshl_add_u32 v{vG0}, v{vG0}, 3, v14\nv_and_b32 v14, 3, v0\nv_mul_u32_u24 v{vG1}, 1152, v{vG0}\nv_lshlrev_b32 v{vG0}, 6, v{vG0}")
    T.e(f"v_lshl_add_u32 v{vG0}, v14, 3, v{vG0}\nv_lshl_add_u32 v{vG1}, v14, 3, v{vG1}\ns_lshr_b32 s3, s{sW}, 1\ns_xor_b32 s3, s3, 1\ns_mul_i32 s3, s3, {3*SLOT}\ns_and_b32 s14, s{sW}, 1\ns_lshl_b32 s14, s14, 5")
    T.e(f"s_add_u32 s3, s3, s14\ns_add_u32 s3, s3, {RING}\nv_add_u32 v{vG0}, s3, v{vG0}\nv_and_b32 v14, 16, v0\nv_lshlrev_b32 v14, 1, v14\nv_xor_b32 v{vG0}, v14, v{vG0}\ns_mul_i32 s3, s{sW}, 288\ns_add_u32 s3, s3, {RING + SLOT}\nv_add_u32 v{vG1}, s3, v{vG1}")
    rest = Sc.fill([(0, x) for x in T.L], 80, 400); assert not rest
    return Sc, leftover

def xsum8(A, regs, tmp):
    A.e("s_nop 1")
    for x in regs: A.e(f"v_add_f32_dpp v{x}, v{x}, v{x} row_ror:8 row_mask:0xf bank_mask:0xf")
    xsumG(A, regs, tmp)
def xsumG(A, regs, tmp):
    for op in ("v_permlane16_swap_b32", "v_permlane32_swap_b32"):
        for k, x in enumerate(regs): A.e(f"v_mov_b32 v{tmp+k}, v{x}")
        if len(regs) < 3: A.e(f"s_nop {2 - len(regs)}")
        for k, x in enumerate(regs): A.e(f"{op} v{tmp+k}, v{x}")
        for k, x in enumerate(regs): A.e(f"v_add_f32 v{x}, v{x}, v{tmp+k}")
def merge2(A, m1, m2, t1, t2):
    A.e(f"v_max_u32 v{m2}, v{m2}, v{t2}\nv_med3_u32 v{m2}, v{m1}, v{t1}, v{m2}\nv_max_u32 v{m1}, v{m1}, v{t1}")
def top2_lanes(A, m1, m2, t1, t2, rors, swaps):
    for sh in rors:
        A.e(f"s_nop 1\nv_mov_b32_dpp v{t1}, v{m1} row_ror:{sh} row_mask:0xf bank_mask:0xf\nv_mov_b32_dpp v{t2}, v{m2} row_ror:{sh} row_mask:0xf bank_mask:0xf")
        merge2(A, m1, m2, t1, t2)
    for op in swaps:
        A.e(f"v_mov_b32 v{t1}, v{m1}\nv_mov_b32 v{t2}, v{m2}\ns_nop 0\n{op} v{t1}, v{m1}\n{op} v{t2}, v{m2}")
        merge2(A, m1, m2, t1, t2)
def dot24(A, d, t, x, y):
    for acc, lo, hi in ((d, 0, 16), (t, 16, 24)):
        for i in range(lo, hi):
            if y is None:
                if i == lo: continue
                A.e(f"v_add_f32 v{acc}, v{x+lo if i == lo+1 else acc}, v{x+i}")
            else: A.e(f"{'v_mul_f32' if i == lo else 'v_fmac_f32'} v{acc}, v{x+i}, v{y+i}")
    A.e(f"v_fmac_f32 v{d}, 0x3e800000, v{t}")
def dot24p(A, d, t, x, y):
    for acc, lo, hi in ((t, 0, 16), (t + 2, 16, 24)):
        for i in range(lo, hi, 2):
            if y is None:
                if i > lo: A.e(f"v_pk_add_f32 {v(acc,2)}, {v(x+lo if i == lo+2 else acc,2)}, {v(x+i,2)}")
            elif i == lo: A.e(f"v_pk_mul_f32 {v(acc,2)}, {v(x+i,2)}, {v(y+i,2)}")
            else: A.e(f"v_pk_fma_f32 {v(acc,2)}, {v(x+i,2)}, {v(y+i,2)}, {v(acc,2)}")
    A.e(f"v_add_f32 v{d}, v{t}, v{t+1}\nv_add_f32 v{t+2}, v{t+2}, v{t+3}\nv_fmac_f32 v{d}, 0x3e800000, v{t+2}")
def poll(A, name, loads, test, sleep=1, shrink=0):
    A.e(f"s_mov_b32 s{sCap}, 0x20000")
    A.label(name)
    A.e(loads); A.wait_all(lg=False); A.e(test)
    A.e(f"s_sub_u32 s{sCap}, s{sCap}, 1\ns_cselect_b64 vcc, 0, vcc\ns_cmp_eq_u64 vcc, 0\ns_cbranch_scc1 {name}_ok")
    if shrink: A.e("s_mov_b64 exec, vcc")
    if sleep: A.e(f"s_sleep {sleep}")
    A.e(f"s_branch {name}")
    A.label(name + "_ok")
    if shrink: A.e("s_mov_b64 exec, -1")

def gen_tail(A, B, opt):
    ACC, GA, U, TM, PL = 16, 40, 76, 100, 112
    vMA, vMC, vPC = 3, 4, 7
    TB = RING + 2 * SLOT
    ST = SCR + 256
    def acc(dst, src, first):
        for q in range(4):
            if first: A.e(f"v_lshlrev_b32 v{dst+2*q}, 16, v{src+q}\nv_and_b32 v{dst+2*q+1}, 0xffff0000, v{src+q}")
            else:
                t = TM + 2 * (q % 2)
                A.e(f"v_lshlrev_b32 v{t}, 16, v{src+q}\nv_and_b32 v{t+1}, 0xffff0000, v{src+q}\nv_pk_add_f32 {v(dst+2*q,2)}, {v(dst+2*q,2)}, {v(t,2)}")
    fl = f"buffer_load_dword v{vFl}, v{vFa}, {s(sWs,4)}, s{sFl} offen sc1"
    A.vmem(fl, ("fl", 0))
    misc = mv_loads() + wr_loads() + xi_loads(512); nm = opt.get("nm", 12)
    for pre, ld in misc[:nm]: A.items(pre + [ld])
    far = fa_reads()
    if opt.get("fo", 0) == 1: A.wait(lg="fww"); A.e("s_barrier"); A.items(far[:opt.get("nf0", 54)]); far = far[opt.get("nf0", 54):]
    A.wait(vm="st")
    A.vmem(f"buffer_store_dword v{vT}, v{vOne}, {s(sWs,4)}, s{sFs} offen sc1")
    A.e(f"s_movk_i32 s{sRem}, 0x1111\nv_lshrrev_b32 v15, 4, v0\nv_mul_u32_u24 v15, 9216, v15\nv_add_u32 v15, 4096, v15\nv_add_u32 v{vPC}, v{vPB}, v15")
    A.stamp()
    ready = f"v_cmp_ne_u32 vcc, 0, v{vFl}\ns_nop 0\n" + "\n".join(ready_mask(3)) + f"\ns_and_b32 s3, s3, s{sRem}"
    n0 = opt.get("n0", 10)
    def choose(i):
        if A.stamping == 5 and i: A.stamp()
        A.wait(vm=("fl", i))
        A.e(ready + f"\ns_cbranch_scc0 L2_g{i}s"); A.label(f"L2_g{i}r")
        A.e(f"s_ff1_i32_b32 s3, s3\ns_bitset0_b32 s{sRem}, s3\ns_mul_i32 s{sQ}, s3, 9216")
        B.label(f"L2_g{i}s")
        poll(B, f"L2_g{i}", fl, ready + f"\ns_cselect_b64 vcc, 0, -1", opt.get("sl1", 1))
        B.e(f"s_cmp_eq_u32 s3, 0\ns_cselect_b32 s3, s{sRem}, s3\ns_branch L2_g{i}r")
        if i == 0 or A.stamping == 5: A.stamp()
        if n0 // 5 - 1 <= i < 3: A.vmem(fl, ("fl", i + 1))
    pend = []
    for i in range(4):
        R0 = PL + 36 * i
        pend.append([lambda i=i: choose(i), ("vm", f"buffer_load_dwordx4 {v(R0,4)}, v{vPC}, {s(sPr,4)}, s{sQ} offen{OPT.get('pl', ' sc1')}", ("c", i))])
        for g in range(4):
            pend.append([f"s_add_u32 s{sQ}, s{sQ}, 9216"] * (g > 0) + [("vm", f"buffer_load_dwordx4 {v(R0+4+8*g+4*h,4)}, v{vPA}, {s(sPa if h else sPr,4)}, s{sQ} offen{OPT.get('pl', ' sc1')}", ("p", i, g, h)) for h in range(2)])
    win = opt.get("win", 99)
    def pace(free=False, step=None):
        if step is not None and opt.get("burst", 0):
            while pend and (20 - len(pend)) // 5 * 5 <= step + opt.get("off", 3): A.items(pend.pop(0))
        elif pend and (free or (20 - len(pend) < opt.get("n1", 10) if step is None else 20 - len(pend) <= step + opt.get("off", 3))):
            if len(A.vm) > win and not free:
                A.e(f"s_waitcnt vmcnt({win})"); del A.vm[:len(A.vm) - win]
            A.items(pend.pop(0))
        for _ in range(opt.get("nfw", 2)):
            if fww: A.item(fww.pop(0))
    fww = []
    for k in range(n0):
        pace(True)
        if k == opt.get("mpos", 0):
            for pre, ld in misc[nm:]: A.items(pre + [ld])
    A.wait(vm="xi")
    nv = [NV(r, h) + k for r in range(3) for h in range(2) for k in range(4)]
    A.e(f"v_mov_b32 v14, v{vWC}")
    tree2 = f"v_max_u32 v13, v{nv[0]}, v{nv[1]}\n" + "\n".join(f"v_max3_u32 v13, v13, v{nv[2*k]}, v{nv[2*k+1]}" for k in range(1, 12)) + "\nv_cmp_eq_u32 vcc, -1, v13"
    A.e(tree2 + "\ns_nop 0\ns_cmp_lg_u64 vcc, 0\ns_cbranch_scc1 L2_pns"); A.label("L2_pnr")
    B.label("L2_pns"); poll(B, "L2_pn", "\n".join(pre[0] + "\n" + ld[1] for pre, ld in mv_loads()), tree2); B.e("s_branch L2_pnr")
    for r in range(3):
        for k in (0, 2): A.e(f"v_pk_add_f32 {v(U+4*r+k,2)}, {v(NV(r,0)+k,2)}, {v(NV(r,1)+k,2)}")
        A.lds(f"ds_write_b128 v{vPB if r == 2 else vPA}, {v(U+4*r,4)} offset:{4096*r}", "mv")
    A.wait(lg="mv")
    A.e("s_barrier")
    if not opt.get("fo", 0): fww += [fw_write(k) for k in range(27)]
    A.e(f"v_lshlrev_b32 v{vMA}, 1, v{vWA}\nv_lshlrev_b32 v{vMC}, 1, v14")
    def vec(m, d, tag):
        for i in range(3):
            for h in range(2): A.lds(f"ds_read_b128 {v(d+8*i+4*h,4)}, v{vMC if i == 2 else vMA} offset:{m*2304 + 1024*i + 16*h}", tag)
    vec(2, U, "cb"); vec(1, GA, "sb")
    pace()
    A.wait(lg="sb")
    for q in range(12):
        t = 12 + 2 * (q % 2)
        A.e(f"v_lshlrev_b32 v{t}, 16, v{WR(q)}\nv_and_b32 v{t+1}, 0xffff0000, v{WR(q)}\nv_pk_mul_f32 {v(U+2*q,2)}, {v(U+2*q,2)}, {v(t,2)}\nv_pk_mul_f32 {v(GA+2*q,2)}, {v(GA+2*q,2)}, {v(t,2)}")
        if q == 5: pace()
    pace()
    dot24p(A, TM, 12, U, None); dot24p(A, TM + 1, 12, GA, None)
    vec(0, GA, "ga")
    pace()
    xsum8(A, [TM, TM + 1], TM + 2)
    A.e(f"v_and_b32 v14, 7, v0\nv_lshlrev_b32 v11, 4, v14\nv_add_u32 v11, {ST}, v11\ns_lshl_b32 s3, s{sW}, 2\nv_add_u32 v10, s3, v11")
    A.lds(f"ds_write_b32 v10, v{TM} offset:384", "ut"); A.lds(f"ds_write_b32 v10, v{TM+1} offset:512", "ut")
    vR0, vR1, vR2 = TM + 7, TM + 8, TM + 9
    A.e(f"v_lshl_add_u32 v{vXA}, v14, 4, v{vXA}\nv_lshl_add_u32 v{vXC}, v14, 4, v{vXC}\nv_add_u32 v{vXA}, {TB}, v{vXA}\nv_add_u32 v{vXC}, {TB}, v{vXC}")
    A.e(f"s_and_b32 s14, s{sW}, 1\ns_mul_i32 s14, s14, 9344\ns_add_u32 s14, s14, {TB}\nv_add_u32 v{vR0}, s14, v{vX}\nv_lshrrev_b32 v15, 3, v0\nv_mul_u32_u24 v12, {1152-128}, v15\nv_add_u32 v{vR2}, v12, v{vX}")
    A.e(f"v_lshl_add_u32 v12, v15, 4, v12\nv_add_u32 v{vR1}, v12, v{vR0}")
    A.e(f"s_mul_i32 s3, s{sT8}, 9216\ns_cmp_eq_u32 s{sW}, 3\ns_cselect_b32 s3, 0, s3\ns_cselect_b64 {s(sSt,2)}, {s(sH2,2)}, {s(sOut,2)}")
    A.srd(sSt, sSt, 9216, "s3")
    pace()
    A.wait(lg="ut")
    CB, SB, GB, D = PL, PL + 24, PL + 48, PL + 72
    KV, KA = XR, XR + 4
    for i in range(4):
        R0 = PL + 36 * i
        A.wait(vm=("c", i)); pace(step=5 * i); acc(ACC + 16, R0, i == 0)
        if i == 2:
            vec(2, CB, "m"); vec(1, SB, "m"); vec(3, GB, "m")
        if i == 3:
            A.e(f"s_lshl_b32 s3, s{sT8}, 3\ns_sub_u32 s3, 0xfff, s3\nv_and_b32 v{vFa}, 7, v0\nv_sub_u32 v{vFa}, s3, v{vFa}\ns_mov_b32 s57, 0xfffff000")
            A.e(f"s_mul_i32 s58, s{sT8}, {KS}\ns_add_u32 s58, s58, {WS_KEY}\ns_xor_b32 s3, s{sW}, 2\nv_or_b32 v{vFl}, s3, v0\nv_min_u32 v{vFl}, 1, v{vFl}\nv_lshlrev_b32 v{vFl}, 30, v{vFl}")
            xsumG(A, list(range(ACC + 16, ACC + 24)), D + 24)
            for q in range(12): A.e(f"v_lshlrev_b32 v{D+2*q}, 16, v{XR+q}\nv_and_b32 v{D+2*q+1}, 0xffff0000, v{XR+q}")
            A.e(f"s_cmp_lt_u32 s2, 180\ns_cselect_b32 s3, 2, 0\ns_cmp_lt_u32 s{sW}, s3\ns_cselect_b32 s3, 0, 0x40000000\nv_mul_u32_u24 v{KA}, {KS}, v0\nv_or_b32 v{KA}, s3, v{KA}")
            A.e(f"s_mul_i32 s15, s{sW}, {128*KS}\ns_add_u32 s15, s15, {WS_KEY}\ns_add_u32 s59, s15, {64*KS}\ns_lshl_b32 s3, s{sW}, 7\ns_sub_u32 s3, s{sT8}, s3\nv_cmp_eq_u32 s[60:61], s3, v0\ns_sub_u32 s3, s3, 64\nv_cmp_eq_u32 s[62:63], s3, v0")
        for g in range(4):
            A.wait(vm=("p", i, g, 0)); pace(step=5 * i + 1 + g); acc(ACC + 8, R0 + 4 + 8 * g, i == 0 and g == 0)
            A.wait(vm=("p", i, g, 1)); acc(ACC, R0 + 8 + 8 * g, i == 0 and g == 0)
    assert not pend and not fww
    A.stamp()
    A.wait(lg="ga")
    for q in range(12): A.e(f"v_pk_fma_f32 {v(ACC+2*q,2)}, {v(ACC+2*q,2)}, {v(GA+2*q,2)}, {v(D+2*q,2)}")
    MU, M2, DD = TM, TM + 1, TM + 2
    dot24p(A, MU, 12, ACC, None); xsum8(A, [MU], TM + 3)
    A.e(f"v_mul_f32 v{MU}, {hex(f2u(1/144))}, v{MU}")
    for i in range(0, 24, 2): A.e(f"v_pk_add_f32 {v(D+i,2)}, {v(ACC+i,2)}, {v(MU,2)} op_sel_hi:[1,0] neg_lo:[0,1] neg_hi:[0,1]")
    dot24p(A, M2, 12, D, D); dot24p(A, DD, 12, D, U); xsum8(A, [M2, DD], TM + 3)
    for k in range(3): A.lds(f"ds_write_b32 v10, v{TM+k} offset:{128*k}", "sw")
    A.wait(lg="sw"); A.e("s_barrier")
    R = GA
    for k in range(5): A.lds(f"ds_read_b128 {v(R+4*k,4)}, v11 offset:{128*k}", ("sr", k))
    A.wait(lg=("sr", 0))
    A.e(f"v_add_f32 v12, v{R}, v{R+1}\nv_add_f32 v13, v{R+2}, v{R+3}\nv_add_f32 v12, v12, v13\nv_mul_f32 v12, 0x3e800000, v12")
    for k in range(4): A.e(f"v_sub_f32 v{R+k}, v{R+k}, v12")
    A.e(f"v_sub_f32 v{MU}, v{MU}, v12\nv_mul_f32 v13, v{R}, v{R}")
    for k in range(1, 4): A.e(f"v_fmac_f32 v13, v{R+k}, v{R+k}")
    A.wait(lg=("sr", 1))
    A.e(f"v_add_f32 v14, v{R+4}, v{R+5}\nv_add_f32 v15, v{R+6}, v{R+7}\nv_add_f32 v14, v14, v15\nv_fmac_f32 v14, {hex(f2u(144.0))}, v13")
    A.e(f"v_mov_b32 v13, {hex(f2u(1e-5))}\nv_fmac_f32 v13, {hex(f2u(1/576))}, v14\nv_rsq_f32 v13, v13")
    A.wait(lg=("sr", 4))
    K1, K2 = R + 4, R + 5
    for k in (0, 2): A.e(f"v_pk_fma_f32 {v(R+8+k,2)}, {v(R+k,2)}, {v(R+12+k,2)}, {v(R+8+k,2)}")
    A.e(f"v_pk_add_f32 {v(R+8,2)}, {v(R+8,2)}, {v(R+10,2)}\nv_pk_add_f32 {v(R+16,2)}, {v(R+16,2)}, {v(R+18,2)}\nv_add_f32 v14, v{R+8}, v{R+9}\nv_add_f32 v15, v{R+16}, v{R+17}\nv_fmac_f32 v15, v14, v13")
    A.e(f"v_ashrrev_i32 v12, 31, v15\nv_or_b32 v12, 0x80000000, v12\nv_xor_b32 v12, v12, v15\nv_and_or_b32 v{K1}, v12, s57, v{vFa}\nv_mov_b32 v{K2}, 0")
    top2_lanes(A, K1, K2, 14, 15, (1, 2, 4), ())
    A.e(f"buffer_store_dwordx2 {v(K1,2)}, v{vFl}, {s(sWs,4)}, s58 offen offset:8 sc1")
    kld = [f"buffer_load_dwordx2 {v(KV+2*h,2)}, v{KA}, {s(sWs,4)}, {'s59' if h else 's15'} offen offset:8 sc1" for h in range(2)]
    if opt.get("kearly", 0): A.e("\n".join(kld))
    A.stamp()
    A.e(f"v_mul_f32 v{MU}, v{MU}, v13")
    for i in range(0, 24, 2): A.e(f"v_pk_fma_f32 {v(D+i,2)}, {v(D+i,2)}, v[12:13], {v(MU,2)} op_sel:[0,1,0] op_sel_hi:[1,1,0]")
    for i in range(0, 24, 2): A.e(f"v_pk_fma_f32 {v(D+i,2)}, {v(D+i,2)}, {v(CB+i,2)}, {v(SB+i,2)}")
    for m, src in ((1, D), (0, ACC)):
        if m == 0:
            for i in range(0, 24, 2): A.e(f"v_pk_fma_f32 {v(ACC+i,2)}, {v(D+i,2)}, {v(GB+i,2)}, {v(ACC+i,2)}")
        for i in range(3):
            d = CB + 12 * m + 4 * i
            for q in range(4): A.e(f"v_cvt_pk_bf16_f32 v{d+q}, v{src+8*i+2*q}, v{src+8*i+2*q+1}")
            if m == 1:
                for q in range(4): A.e(f"v_min_u32 v{d+q}, -2, v{d+q}")
            A.lds(f"ds_write_b128 v{vXC if i == 2 else vXA}, {v(d,4)} offset:{9344*m + (512 if i == 1 else 0)}", "tw")
    A.e(f"v_lshrrev_b32 v7, 4, v0\nv_and_b32 v6, 1, v0\nv_bfe_u32 v5, v0, 2, 2\nv_lshlrev_b32 v5, 6, v5\nv_lshl_add_u32 v5, v7, 4, v5\nv_mov_b32 v14, {SCR + 1792}\ns_movk_i32 s57, 1168")
    if A.stamping == 5: A.stamp()
    A.wait(lg="tw"); A.e(f"s_barrier\ns_cmp_lt_u32 s{sW}, 2\ns_cbranch_scc1 L2_keys")
    if opt.get("cand", 1):
        A.e(f"s_cmp_eq_u32 s{sW}, 2\ns_cbranch_scc1 L2_rows\nv_not_b32 v12, v{K1}\nv_not_b32 v13, v{K2}\nv_and_b32 v12, 7, v12\nv_and_b32 v13, 7, v13")
        A.e(f"v_cmp_gt_u32 vcc, 8, v0\nv_mul_u32_u24 v{SB+12}, 1168, v12\nv_mul_u32_u24 v{SB+13}, 1168, v13\nv_cndmask_b32 v15, v13, v12, vcc")
        A.e(f"v_add_u32 v{SB+12}, v{SB+12}, v{vR0}\nv_add_u32 v{SB+13}, v{SB+13}, v{vR0}\nds_read_b128 {v(SB,4)}, v{SB+12}\nds_read_b128 {v(SB+4,4)}, v{SB+13}")
        A.e(f"v_lshrrev_b32 v{SB+14}, 3, v0\nv_sub_u32 v15, v15, v{SB+14}\nv_mad_i32_i24 v{SB+14}, v15, s57, v{vR1}\nds_read_b128 {v(SB+8,4)}, v{SB+14} offset:1024")
        A.e(f"s_movk_i32 s3, 1152\nv_mad_u32_u24 v12, v12, s3, v{vX}\nv_mad_u32_u24 v13, v13, s3, v{vX}\nv_mad_i32_i24 v15, v15, s3, v{vR2}")
        A.e(f"s_waitcnt lgkmcnt(2)\nbuffer_store_dwordx4 {v(SB,4)}, v12, {s(sSt,4)}, 0 offen sc1\ns_waitcnt lgkmcnt(1)\nbuffer_store_dwordx4 {v(SB+4,4)}, v13, {s(sSt,4)}, 0 offen sc1")
        A.e(f"s_mov_b64 exec, 0xffff\ns_waitcnt lgkmcnt(0)\nbuffer_store_dwordx4 {v(SB+8,4)}, v15, {s(sSt,4)}, 0 offen offset:1024 sc1\ns_mov_b64 exec, -1\ns_branch L2_rowsdone")
        A.label("L2_rows")
    for r in range(9): A.lds(f"ds_read_b128 {v(SB+4*r,4)}, v{vR1 if r == 8 else vR0} offset:{1024 if r == 8 else 1168*r}", ("tr", r))
    for r in range(9):
        if r in (0, 4): A.e(f"s_movk_i32 s3, {1152*r}")
        A.wait(lg=("tr", r))
        A.e(f"buffer_store_dwordx4 {v(SB+4*r,4)}, v{vR2 if r == 8 else vX}, {s(sSt,4)}, {0 if r == 8 else 's3'} offen offset:{1024 if r == 8 else 1152*(r%4)} sc1")
    A.label("L2_rowsdone")
    if not opt.get("fh", 0): A.items(far)
    rdy = f"buffer_store_dword v14, v{vFl}, {s(sWs,4)}, s{sFs} offen offset:128 sc1"
    A.e(f"s_cmp_lt_u32 s2, 144\ns_cbranch_scc1 L2_join\ns_waitcnt vmcnt(0)\n{rdy}\ns_cmp_lt_u32 s2, 180\ns_cbranch_scc1 L2_join\ns_branch L2_fin")
    A.label("L2_keys")
    A.e("s_cmp_ge_u32 s2, 180\ns_cbranch_scc1 L2_fin")
    if not opt.get("kearly", 0): A.e("\n".join(kld))
    if not opt.get("fh", 0): A.items(far)
    ktest = "\n".join(f"v_cndmask_b32 v{KV+2*h+k}, v{KV+2*h+k}, v{K1+k}, {s(60+2*h,2)}" for h in range(2) for k in range(2))
    ktest += f"\nv_min_u32 v12, v{KV}, v{KV+1}\nv_min_u32 v13, v{KV+2}, v{KV+3}\nv_cmp_eq_u32 s[4:5], 0, v12\nv_cmp_eq_u32 s[6:7], 0, v13\ns_nop 0\ns_or_b64 vcc, s[4:5], s[6:7]"
    A.e(f"s_waitcnt vmcnt(0)\n{ktest}\ns_cbranch_scc0 L2_p2_ok")
    poll(A, "L2_p2", f"s_or_b64 exec, s[4:5], 1\n{kld[0]}\ns_or_b64 exec, s[6:7], 1\n{kld[1]}\ns_mov_b64 exec, -1", ktest, opt.get("sl2", 1))
    merge2(A, KV, KV + 1, KV + 2, KV + 3)
    top2_lanes(A, KV, KV + 1, 12, 13, (1, 2, 4, 8), ("v_permlane16_swap_b32", "v_permlane32_swap_b32"))
    A.e(f"s_lshl3_add_u32 s3, s{sW}, {SCR + 1792}\nv_mov_b32 v12, s3\nds_write_b64 v12, {v(KV,2)}\ns_waitcnt lgkmcnt(0)")
    A.label("L2_join")
    A.stamp()
    A.vm = []; A.lg = []
    A.e("s_barrier\nds_read_b128 v[16:19], v14\nv_cmp_eq_u32 vcc, 0, v6\ns_waitcnt lgkmcnt(0)")
    merge2(A, 16, 17, 18, 19)
    A.e("v_cndmask_b32 v16, v17, v16, vcc\nv_and_b32 v3, 0x7ff, v16\nv_sub_u32 v3, 2047, v3\nv_mul_u32_u24 v4, 1152, v3")
    A.stamp()
    A.e("s_cmp_ge_u32 s2, 144\ns_cbranch_scc1 L2_red")
    A.e(f"v_add_u32 v5, v5, v4\ns_mov_b32 s59, {WS_H2}")
    H = 128
    A.e("v_and_b32 v12, 8, v0\nv_lshlrev_b32 v12, 4, v12\nv_sub_u32 v3, v5, v12")
    hld = [f"buffer_load_dwordx4 {v(H+4*i,4)}, v{3 if i == 4 else 5}, {s(sWs,4)}, s59 offen offset:{256*i} sc1" for i in range(5)]
    for x in hld: A.vmem(x, "h")
    if opt.get("fh", 0): A.items([(x[0], x[1], "fa" if k < 36 else "fb") for k, x in enumerate(far)])
    LX = SCR + 1024
    A.e(f"v_lshlrev_b32 v11, 7, v6\nv_lshl_add_u32 v13, v7, 5, v11\nv_add_u32 v13, {LX}, v13\nv_lshl_add_u32 v11, v7, 4, v11")
    A.e(f"s_lshr_b32 s3, s{sW}, 1\ns_lshl_b32 s3, s3, 8\ns_and_b32 s14, s{sW}, 1\ns_lshl_b32 s14, s14, 6\ns_add_u32 s3, s3, s14\ns_add_u32 s3, s3, {LX}\nv_add_u32 v11, s3, v11")
    A.e(f"s_mul_i32 s14, s{sW}, 1152\ns_mul_i32 s15, s2, 4608\ns_add_u32 s15, s15, s14\ns_add_u32 s15, s15, {WS_YP}\nv_lshlrev_b32 v10, 3, v0")
    A.wait(vm="h", lg="fa"); A.e(rdy)
    if A.stamping == 5: A.stamp()
    htree = [f"v_max_u32 v12, v{H}, v{H+1}"] + [f"v_max3_u32 v12, v12, v{H+2*k}, v{H+2*k+1}" for k in range(1, 10)] + ["v_cmp_eq_u32 vcc, -1, v12"]
    A.label("L2_hr")
    for n_, kk in enumerate((0, 1, 2, 3, 4, 5, 6, 7, 8, 9, 10, 11, 14, 15, 12, 13, 17, 16)):
        d = v(88 + 4 * (kk % 4), 4)
        A.e(f"{MF} {d}, {a(aF+4*kk,4)}, {v(H+4*(kk//4),4)}, {'0' if kk < 4 else d}")
        if n_ < len(htree): A.e(htree[n_])
    A.e("s_cmp_lg_u64 vcc, 0\ns_cbranch_scc1 L2_hs\ns_nop 1")
    B.label("L2_hs")
    poll(B, "L2_h", "\n".join(hld), "\n".join(htree))
    for k in range(20): B.e(f"v_min_u32 v{H+k}, -2, v{H+k}")
    B.e("s_nop 1\ns_branch L2_hr")
    for i in range(4): A.e(f"v_add_f32_dpp v{96+i}, v{100+i}, v{96+i} row_shl:4 row_mask:0xf bank_mask:0xf bound_ctrl:1")
    for i in range(4): A.e(f"v_add_f32_dpp v{88+i}, v{92+i}, v{88+i} row_shl:4 row_mask:0xf bank_mask:0xf bound_ctrl:1")
    for i in range(4): A.e(f"v_add_f32_dpp v{88+i}, v{96+i}, v{88+i} row_shl:8 row_mask:0xf bank_mask:0xf bound_ctrl:1")
    A.e("s_mov_b32 exec_lo, 0x30003\ns_mov_b32 exec_hi, 0x30003")
    A.lds("ds_write_b128 v11, v[88:91]", "x"); A.e("s_mov_b64 exec, -1"); A.wait(lg="x"); A.e("s_barrier")
    for i in range(4): A.lds(f"ds_read_b128 {v(16+4*i,4)}, v13 offset:{(i//2)*256 + (i%2)*16}", ("y", i // 2))
    A.e(f"v_mov_b32 v12, {hex(f2u(-LOG2E))}")
    A.wait(lg=("y", 0))
    for i in range(0, 8, 2): A.e(f"v_pk_mul_f32 {v(32+i,2)}, {v(16+i,2)}, v[12:13] op_sel_hi:[1,0]")
    for i in range(8): A.e(f"v_exp_f32 v{32+i}, v{32+i}")
    for i in range(0, 8, 2): A.e(f"v_pk_add_f32 {v(32+i,2)}, {v(32+i,2)}, 1.0 op_sel_hi:[1,0]")
    for i in range(8): A.e(f"v_rcp_f32 v{32+i}, v{32+i}")
    A.wait(lg=("y", 1))
    for i in range(0, 8, 2): A.e(f"v_pk_mul_f32 {v(16+i,2)}, {v(16+i,2)}, {v(32+i,2)}")
    for i in range(0, 8, 2): A.e(f"v_pk_mul_f32 {v(16+i,2)}, {v(16+i,2)}, {v(24+i,2)}")
    for q in range(4): A.e(f"v_cvt_pk_bf16_f32 v{40+q}, v{16+2*q}, v{17+2*q}")
    A.e("s_nop 1")
    for nt in range(9): A.e(f"{MF} {v(48+4*nt,4)}, v[40:43], {a(aF+72+4*nt,4)}, 0")
    A.e("s_nop 0")
    for half in range(2):
        for G_ in range(4):
            for t in range(2):
                if half == 0 and G_ == 0: continue
                A.e(f"v_mov_b32_dpp v{48+2*half+t}, v{48+4*(4*half+G_)+t} quad_perm:[0,1,2,3] row_mask:{hex(1 << G_)} bank_mask:0xf")
            if G_ < 3 and not (half == 0 and G_ == 0): A.e("s_nop 0")
    for r_ in (48, 49, 50, 51, 80, 81): A.e(f"v_min_u32 v{r_}, -2, v{r_}")
    A.e(f"buffer_store_dwordx4 v[48:51], v{vX}, {s(sWs,4)}, s15 offen sc1\ns_mov_b64 exec, 0xffff\nbuffer_store_dwordx2 v[80:81], v10, {s(sWs,4)}, s15 offen offset:1024 sc1")
    A.e("s_branch L2_fin")
    A.label("L2_red")
    A.vm = []; A.lg = []
    A.e(f"s_mov_b32 s3, {WS_YP}"); A.srd(sYp, sWs, YP_BYTES, "s3")
    A.e("s_sub_u32 s3, s2, 144\ns_mul_i32 s14, s3, 7282\ns_lshr_b32 s14, s14, 16\ns_mul_i32 s15, s14, 9\ns_sub_u32 s15, s3, s15\ns_mul_i32 s14, s14, 144")
    A.e("s_cmp_eq_u32 s15, 8\ns_cselect_b32 s56, 1, 64\ns_cselect_b32 s57, 2, 1\ns_cselect_b32 s15, 16, s15\ns_lshl3_add_u32 s14, s15, s14")
    A.e("v_bfe_u32 v7, v0, 2, 3\nv_mul_u32_u24 v7, s57, v7\nv_bfe_u32 v9, v0, 1, 1\nv_mul_u32_u24 v9, s56, v9\nv_add3_u32 v7, v7, v9, s14\nv_lshl_add_u32 v9, v7, 1, v4\nv_lshlrev_b32 v7, 2, v7")
    A.e(f"v_lshrrev_b32 v12, 7, v3\nv_bfe_u32 v13, v3, 3, 4\nv_lshl_add_u32 v13, v12, 6, v13\nv_lshlrev_b32 v13, 8, v13\ns_mov_b32 s59, {WS_F1 + 2*16*256}")
    poll(A, "L2_r", f"buffer_load_dword v12, v13, {s(sWs,4)}, s59 offen offset:128 sc1", "v_cmp_eq_u32 vcc, 0, v12")
    A.e(f"buffer_load_ushort v18, v9, {s(sOut,4)}, 0 offen sc1\nds_read_b32 v20, v7 offset:{3*2304}")
    A.e(f"v_and_b32 v6, 7, v0\nv_lshrrev_b32 v10, 3, v0\ns_lshl_b32 s14, s{sW}, 3\nv_add_u32 v10, s14, v10\nv_mul_u32_u24 v10, 4608, v10\nv_lshl_add_u32 v10, v6, 4, v10\ns_lshl_b32 s3, s3, 7\nv_add_u32 v24, s3, v10")
    for r in range(1, 5): A.e(f"v_add_u32 v{24+r}, {147456*r}, v24")
    A.e("v_and_b32 v16, 0xfffff800, v16\nv_not_b32 v12, v16\nv_ashrrev_i32 v12, 31, v12\nv_or_b32 v12, 0x80000000, v12\nv_xor_b32 v16, v16, v12")
    A.e(f"v_mul_f32 v16, {hex(f2u(-LOG2E))}, v16\nv_exp_f32 v16, v16\ns_nop 0\nv_add_f32 v16, 1.0, v16\nv_rcp_f32 v16, v16\ns_waitcnt lgkmcnt(0)\nv_mul_f32 v20, v20, v16")
    A.e(f"s_lshl_b32 s14, s{sW}, 7\ns_add_u32 s14, s14, {SCR + 2048}\nv_lshl_add_u32 v10, v6, 4, s14\nv_and_b32 v11, 31, v0\nv_lshlrev_b32 v11, 2, v11")
    if opt.get("pre3", 0):
        A.e("s_mov_b64 exec, 1")
        poll(A, "L2_p3a", f"buffer_load_dword v32, v24, {s(sYp,4)}, 0 offen sc1", "v_cmp_eq_u32 vcc, -1, v32", opt.get("sl3", 1))
        A.e("s_mov_b64 exec, -1")
    tree = "v_max3_u32 v12, v32, v33, v34\n" + "\n".join(f"v_max3_u32 v12, v12, v{35+2*i}, v{36+2*i}" for i in range(8)) + "\nv_max_u32 v12, v12, v51\nv_cmp_eq_u32 vcc, -1, v12"
    poll(A, "L2_p3", "\n".join(f"buffer_load_dwordx4 {v(32+4*r,4)}, v{24+r}, {s(sYp,4)}, 0 offen sc1" for r in range(5)), tree, 0)
    for i in range(0, 4, 2):
        A.e(f"v_pk_add_f32 {v(32+i,2)}, {v(32+i,2)}, {v(36+i,2)}\nv_pk_add_f32 {v(40+i,2)}, {v(40+i,2)}, {v(44+i,2)}\nv_pk_add_f32 {v(32+i,2)}, {v(32+i,2)}, {v(48+i,2)}\nv_pk_add_f32 {v(32+i,2)}, {v(32+i,2)}, {v(40+i,2)}")
    xsum8(A, [32, 33, 34, 35], 12)
    A.e("ds_write_b128 v10, v[32:35]\ns_waitcnt lgkmcnt(0)\ns_barrier")
    A.e(f"s_cmp_lg_u32 s{sW}, 0\ns_cbranch_scc1 L2_fin")
    for k in range(4): A.e(f"ds_read_b32 v{32+k}, v11 offset:{SCR + 2048 + 128*k}")
    A.e("v_lshlrev_b32 v12, 16, v18\ns_mov_b32 exec_hi, 0\ns_waitcnt lgkmcnt(0)")
    A.e("v_pk_add_f32 v[32:33], v[32:33], v[34:35]\nv_add_f32 v32, v32, v33\nv_fmac_f32 v12, v32, v20\nv_cvt_pk_bf16_f32 v12, v12, v12")
    A.e(f"buffer_store_short v12, v9, {s(sOut,4)}, 0 offen{opt.get('finf', ' sc1')}")
    A.label("L2_fin")
    if A.stamping: A.e("s_mov_b64 exec, -1")
    A.stamp()
    if opt.get("enc"):
        ea, eb, clk = opt["enc"]; o = 0 if clk else 1
        A.e("s_cmp_lg_u32 s2, 150\ns_cbranch_scc1 L2_noenc")
        if ea < 0:
            A.e(f"s_load_dwordx2 s[60:61], s[0:1], 112\ns_waitcnt lgkmcnt(0)\ns_mov_b32 s62, 0x10000000\ns_mov_b32 s63, 0x20000\nv_mov_b32 v2, {WS_STAMP + 150*1024 + 4}\nbuffer_load_dword v1, v2, s[60:63], 0 offen\ns_waitcnt vmcnt(0)")
        A.e(f"v_accvgpr_read_b32 v1, a61\ns_nop 0\nv_readlane_b32 s56, v1, {2*eb+o}\nv_readlane_b32 s57, v1, {2*ea+o}\ns_nop 0\ns_sub_u32 s56, s56, s57")
        A.e("s_lshr_b32 s56, s56, 3" if clk else "s_lshl_b32 s56, s56, 2")
        A.e("s_min_u32 s56, s56, 100000\ns_mov_b32 s57, s93")
        A.label("L2_enc")
        A.e("s_memrealtime s[94:95]\ns_waitcnt lgkmcnt(0)\ns_sub_u32 s58, s94, s57\ns_cmp_lt_u32 s58, s56\ns_cbranch_scc1 L2_enc")
        A.label("L2_noenc")
    else: A.stamp_flush(1, WS_STAMP, sW)

OPT = {}
def gen_k2(opt={}):
    OPT.clear(); OPT.update(opt)
    A = Asm(); A.stamp_agpr = 60
    A.label("L2_begin")
    A.e("s_getpc_b64 s[98:99]")
    A.e("s_cmp_ge_u32 s2, 256\ns_cbranch_scc1 L2_end")
    A.stamp()
    for d, off in ((sXi, 0), (sC, 80), (sWm, 88), (12, 112), (sDb, 104)): A.e(f"s_load_dwordx2 {s(d,2)}, s[0:1], {off}")
    vTid = 155
    tch = opt.get("touch", "cq")
    A.e(f"s_and_b32 s3, s2, 7\ns_lshr_b32 s14, s2, 3\nv_mov_b32 v{vTid}, v0\nv_lshrrev_b32 v10, 6, v0\nv_and_b32 v0, 63, v0")
    if "c" in tch:
        A.e(f"s_lshl_b32 s15, s14, 9\nv_lshl_add_u32 v13, v10, 7, s15\nv_lshl_add_u32 v13, v0, 14, v13\nv_min_u32 v13, L2_codeend-L2_begin-8, v13\ns_mov_b64 exec, 31")
        A.vmem(f"global_load_dword a{aDum}, v13, s[98:99]"); A.e("s_mov_b64 exec, -1")
    A.e(f"v_readfirstlane_b32 s{sW}, v10")
    A.e(f"s_and_b32 s{sG}, s3, 3\ns_and_b32 s15, s14, 3\ns_lshl2_add_u32 s{sG}, s{sG}, s15")
    A.e(f"s_lshr_b32 s{sTb}, s3, 2\ns_lshr_b32 s15, s14, 2\ns_lshl3_add_u32 s{sTb}, s{sTb}, s15\ns_lshl4_add_u32 s{sT8}, s{sTb}, s{sG}")
    sP, sSl, sHf = sCnt, sPass, sW9
    A.e(f"s_mul_i32 s{sP}, s3, 27\ns_max_u32 s14, s14, 5\ns_add_u32 s{sP}, s{sP}, s14\ns_sub_u32 s{sP}, s{sP}, 5\ns_lshr_b32 s{sHf}, s3, 2\ns_mul_i32 s15, s{sHf}, 108\ns_sub_u32 s{sSl}, s{sP}, s15")
    item_addr(A, 288, 288, 256)
    vW4, vW1 = 153, 154
    A.e(f"v_and_b32 v4, 0xfc, v{vTid}\nv_and_b32 v7, 3, v0\nv_mul_u32_u24 v3, 6912, v4\nv_lshl_add_u32 v{vW4}, v7, 4, v3")
    A.e(f"s_mul_i32 s3, s{sT8}, 9216\ns_movk_i32 s{sXi+2}, 9216\ns_mov_b32 s{sXi+3}, 0x20000\ns_mov_b32 s{sWm+3}, s{sXi+3}")
    A.e(f"v_lshlrev_b32 v{vX}, 4, v0\ns_mov_b32 s{sWs+2}, {WS_SIZE}\ns_mov_b32 s{sWs+3}, s{sXi+3}\ns_movk_i32 s{sDb+2}, 256\ns_mov_b32 s{sDb+3}, s{sXi+3}")
    A.e(f"s_lshl_b32 s14, s{sSl}, 6\ns_sub_u32 s{sWm+2}, {288*6912}, s14\ns_cmp_ge_u32 s2, 40\ns_cselect_b32 s{sWm+2}, s{sWm+2}, 0\ns_mul_i32 s15, s{sHf}, {288*6912}\ns_add_u32 s14, s14, s15")
    A.e("s_waitcnt lgkmcnt(0)")
    A.fstamp()
    A.e(f"s_add_u32 s{sXi}, s{sXi}, s3\ns_addc_u32 s{sXi+1}, s{sXi+1}, 0")
    for pre, ld in xi_loads(128): A.item(ld)
    A.e(f"s_add_u32 s{sWm}, s{sWm}, s14\ns_addc_u32 s{sWm+1}, s{sWm+1}, 0")
    ncl = opt.get("ncl", 8); nst = 16 // ncl
    A.e(f"s_mov_b64 {s(sWs,2)}, s[12:13]\ns_cmp_ge_u32 s2, {ncl}\ns_cbranch_scc1 L2_noclr")
    assert ncl == 8
    for i in range(4): A.e(f"v_mov_b32 v{52+i}, -1\nv_mov_b32 v{56+i}, 0")
    A.e(f"s_lshl2_add_u32 s15, s2, s{sW}\ns_lshl_b32 s3, s15, 10\nbuffer_store_dwordx4 v[52:55], v{vX}, {s(sWs,4)}, s3 offen sc1")
    A.e(f"v_lshrrev_b32 v13, 3, v0\nv_mul_u32_u24 v13, {max(KS, 128) - 128}, v13\nv_add_u32 v13, v13, v{vX}\ns_mul_i32 s3, s15, {8*max(KS, 128)}\ns_add_u32 s3, s3, {WS_KEY}\nbuffer_store_dwordx4 v[56:59], v13, {s(sWs,4)}, s3 offen sc1")
    A.label("L2_noclr")
    nclr = len(A.vm)
    WM, CC = 128, 148
    nw0 = opt.get("nw0", 4)
    def wload(i):
        if 0 < i < 4: A.e(f"s_movk_i32 s3, {6912*i}")
        A.vmem(f"buffer_load_dwordx4 {v(WM+4*i,4)}, v{vW4 if i < 4 else vW1}, {s(sWm,4)}, {'s3' if 0 < i < 4 else 0} offen", ("w", i))
    for i in range(min(nw0, 4)): wload(i)
    A.fstamp()
    A.e(f"v_lshrrev_b32 v3, 2, v3\nv_lshl_add_u32 v3, v7, 4, v3\nv_add_u32 v{vW1}, {256*6912}, v3\nv_lshrrev_b32 v3, 1, v4\nv_lshlrev_b32 v4, 1, v4")
    A.e(f"s_mul_i32 s3, s{sHf}, 576"); A.srd(sC, sC, 576, "s3")
    for i in range(4): A.e(f"v_mov_b32 v{WM+16+i}, 0")
    A.e(f"v_mov_b32 v{CC+2}, 0\ns_cmp_ge_u32 s{sW}, 2\ns_cbranch_scc1 L2_w23")
    A.e(f"buffer_load_dwordx4 {v(WM+16,4)}, v{vW1}, {s(sWm,4)}, 0 offen\nbuffer_load_ushort v{CC+2}, v3, {s(sC,4)}, 0 offen offset:512")
    A.label("L2_w23")
    A.vmem(f"buffer_load_dwordx2 {v(CC,2)}, v4, {s(sC,4)}, 0 offen", "c")
    A.e("s_load_dwordx8 s[4:11], s[0:1], 8")
    for d, off in ((sWg, 56), (sWu, 64), (sWd, 72), (sOut, 96), (sWr, 48)): A.e(f"s_load_dwordx2 {s(d,2)}, s[0:1], {off}")
    B = Asm()
    A.fstamp()
    F = 156
    vL7, vSt, vSw, vXs, vYc, vMw, vL4, vXf, vMs = F, F + 1, F + 2, F + 3, F + 4, F + 5, F + 6, F + 7, F + 8
    SA, SD, SV = F + 10, F + 11, F + 12
    A.e(f"s_cmp_eq_u32 s{sW}, 0\ns_cselect_b32 s3, 0, 0x40000000\nv_mul_u32_u24 v{vL7}, {256//ncl}, v0\nv_or_b32 v{vL7}, s3, v{vL7}\ns_mul_i32 s{sW4}, s{sW}, {4*PIECE}\ns_add_u32 s{sW4}, s{sW4}, {RING}\nv_lshl_add_u32 v{vKV}, v10, 12, v{vX}")
    A.e(f"v_lshrrev_b32 v13, 5, v0\nv_lshl_add_u32 v13, v10, 1, v13\nv_lshlrev_b32 v13, 15, v13\nv_and_b32 v14, 31, v0\nv_lshl_add_u32 v{vWq}, v14, 4, v13")
    for i in range(4): A.e(f"v_mov_b32 v{56+i}, 0\nv_mov_b32 v{60+i}, -1")
    A.e(f"s_and_b32 s14, s{sTb}, 7\ns_lshl2_add_u32 s14, s14, s{sW}\nv_lshrrev_b32 v13, 2, v0\nv_lshl_add_u32 v13, v13, 5, s14\nv_lshlrev_b32 v13, 13, v13\nv_lshl_add_u32 v{F+9}, v7, 7, v13")
    A.e("s_waitcnt lgkmcnt(0)")
    A.e(f"s_lshl_b32 s3, s{sG}, 9"); A.srd(sWq, 8, 0, "s3"); A.e(f"s_sub_u32 s{sWq+2}, {576*8192}, s3")
    A.e(f"s_mov_b32 s{sWr+2}, 1152\ns_mov_b32 s{sWr+3}, 0x20000")
    A.stamp()
    ST = SCR + 256; MP = RING
    sF1, sYc, sXs, sXf, sMl, sKy, sMul, sAdd = 56, 57, 58, 59, 100, 101, sBase, sDel
    A.e(f"v_and_b32 v14, 7, v0\nv_lshlrev_b32 v{vSt}, 4, v14\nv_add_u32 v{vSt}, {ST}, v{vSt}\nv_lshl_add_u32 v{vSw}, v10, 2, v{vSt}")
    A.e(f"s_mul_i32 s3, s{sW}, {18*256}\nv_lshl_add_u32 v14, v14, 4, s3\nv_lshrrev_b32 v15, 3, v0\nv_lshl_add_u32 v{vXs}, v15, 8, v14")
    A.e(f"s_lshr_b32 s3, s{sT8}, 1\ns_mul_i32 s3, s3, 18432\ns_and_b32 s14, s{sT8}, 1\ns_lshl_b32 s14, s14, 7\ns_add_u32 s3, s3, s14\ns_add_u32 s{sXs}, s3, {WS_XN}")
    A.e(f"s_lshl_b32 s3, s{sTb}, 2\ns_add_u32 s3, s3, s{sW}\ns_lshl_b32 s14, s3, 4\ns_add_u32 s14, s14, s{sG}\ns_lshl_b32 s14, s14, 8\ns_add_u32 s{sF1}, s14, {WS_F1}")
    A.e(f"s_mul_i32 s14, s3, {4*KS}\ns_add_u32 s{sXf}, s14, {WS_KEY}\nv_and_b32 v14, 3, v0\nv_mul_u32_u24 v{vXf}, {KS}, v14")
    A.e(f"s_mul_i32 s14, s3, 36864\ns_add_u32 s14, s14, {WS_XN}"); A.srd(sXn, 12, 36864, "s14")
    if opt.get("tidx", 1): A.e(f"s_or_b32 s{sXn+1}, s{sXn+1}, 0x100000\ns_mov_b32 s{sXn+3}, 0x800000")
    A.e(f"s_mul_i32 s15, s2, 4608\ns_mul_i32 s14, s{sW}, 1152\ns_add_u32 s15, s15, s14\ns_add_u32 s{sYc}, s15, {WS_YP}")
    A.e(f"s_cmp_ge_u32 s2, 144\ns_cselect_b32 s14, 0x40000000, 0\nv_or_b32 v{vYc}, s14, v{vX}")
    A.e(f"v_lshrrev_b32 v12, 4, v{vTid}\nv_lshlrev_b32 v12, 7, v12\nv_lshl_add_u32 v{vMw}, v7, 5, v12\nv_lshlrev_b32 v{vL4}, 2, v0")
    A.e(f"s_mul_i32 s3, s{sSl}, 3641\ns_lshr_b32 s3, s3, 16\ns_mov_b32 s{sMul}, 1.0\ns_mov_b32 s{sAdd}, 0\ns_cmp_lt_u32 s3, 2\ns_cselect_b32 s{sMul}, {hex(f2u(C0))}, s{sMul}")
    A.e(f"s_cmp_eq_u32 s3, 1\ns_cselect_b32 s{sAdd}, {hex(f2u(C0))}, s{sAdd}\ns_cmp_eq_u32 s3, 4\ns_cselect_b32 s{sAdd}, 1.0, s{sAdd}\ns_cmp_eq_u32 s{sHf}, 0\ns_cselect_b32 s{sAdd}, s{sAdd}, 0")
    A.e(f"s_lshl_b32 s{sMl}, s{sP}, 7\ns_mul_i32 s14, s{sT8}, {KS}\ns_add_u32 s{sKy}, s14, {WS_KEY}")
    A.e(f"s_mul_i32 s3, s{sW}, 1152\nv_add_u32 v{SA}, s3, v{vX}")
    A.e(f"s_and_b32 s3, s{sW}, 1\ns_mul_i32 s3, s3, {36*64}\ns_cmp_lt_u32 s{sW}, 2\ns_cselect_b32 s14, 32, 0\ns_add_u32 s3, s3, s14\ns_add_u32 s3, s3, {ASB}")
    A.e(f"v_lshrrev_b32 v14, 1, v0\nv_lshl_add_u32 v14, v14, 6, s3\nv_and_b32 v15, 1, v0\nv_lshl_add_u32 v{SD}, v15, 4, v14")
    A.e(f"s_cmp_eq_u32 s{sW}, 1\ns_cselect_b32 s3, 40, 256\ns_cmp_ge_u32 s2, s3\ns_cselect_b32 s3, 0, 0x40000000\nv_or_b32 v{vMs}, s3, v{vL4}")
    for i in range(4): A.e(f"v_mov_b32 v{SV+4+i}, 0\nv_mov_b32 v{SV+12+i}, 0")
    def wq_touch():
        nq = opt.get("nq", 16)
        A.e(f"s_mov_b64 exec, {hex((1 << nq) - 1)}" if nq <= 31 else f"s_mov_b32 exec_hi, {hex((1 << (nq - 32)) - 1)}")
        A.vmem(f"buffer_load_dword a{aDum}, v{F+9}, {s(sWq,4)}, 0 offen", "tq"); A.e("s_mov_b64 exec, -1")
    def init_kv_addr():
        A.e(f"v_lshrrev_b32 v14, 2, v0\nv_mul_u32_u24 v14, {PIECE}, v14\nv_and_b32 v15, 3, v0\nv_lshl_add_u32 v14, v15, 3, v14\nv_add_u32 v{vV}, {RING + 2*SLOT + HALF}, v14")
        A.e(f"v_and_b32 v14, 15, v0\nv_mul_u32_u24 v14, {PIECE}, v14\nv_lshrrev_b32 v15, 4, v0\nv_lshl_add_u32 v14, v15, 4, v14\nv_add_u32 v{vK}, {RING + 2*SLOT}, v14")
    def late_setup():
        A.e(f"s_lshl_b32 s3, s{sTb}, 2\ns_add_u32 s3, s3, s{sW}\nv_mov_b32 v12, v10")
        A.e(f"s_mul_i32 s14, s3, {4*147456}\ns_mul_i32 s15, s{sG}, 9216\ns_add_u32 s14, s14, s15\ns_add_u32 s14, s14, {WS_PART}"); A.srd(sPt, 12, 0, "s14"); A.e(f"s_sub_u32 s{sPt+2}, {4*147456}, s15")
        if opt.get("x_nostore"): A.e(f"s_mov_b32 s{sPt+2}, 0")
        A.e(f"s_lshl_b32 s3, s{sG}, 19"); A.srd(sK, 4, 524288, "s3"); A.srd(sV, 6, 524288, "s3")
        if opt.get("tid", 1):
            A.e(f"s_lshl_b32 s3, s{sW}, 12")
            for d in (sK, sV): A.e(f"s_add_u32 s{d}, s{d}, s3\ns_addc_u32 s{d+1}, s{d+1}, 0x100000\ns_mov_b32 s{d+2}, 32768\ns_mov_b32 s{d+3}, 0x800000")
        A.e(f"s_mul_i32 s3, s{sG}, 294912"); A.srd(sWo, 10, 294912, "s3")
        A.e(f"s_mov_b64 s[4:5], {s(sWg,2)}\ns_mov_b64 s[6:7], {s(sWu,2)}\ns_mov_b64 s[8:9], {s(sWd,2)}")
        A.e(f"s_mov_b32 s{sPass}, 0\ns_mul_i32 s{sW9}, s{sW}, 9216")
        A.e("s_min_u32 s15, s2, 143\ns_and_b32 s3, s15, 7\ns_mul_i32 s3, s3, 18\ns_lshr_b32 s15, s15, 3\ns_add_u32 s15, s15, s3\ns_lshl_b32 s3, s15, 6")
        A.srd(sWg, sWg, 0, "s3"); A.srd(sWu, sWu, 0, "s3")
        A.e(f"s_sub_u32 s14, {576*9216}, s3\ns_mul_i32 s3, s15, 36864"); A.srd(sWd, sWd, 0, "s3")
        A.e(f"s_cmp_lt_u32 s2, 144\ns_cselect_b32 s{sWg+2}, s14, 0\ns_cselect_b32 s{sWu+2}, s14, 0\ns_cselect_b32 s{sWd+2}, 36864, 0")
        if opt.get("x_odd"): A.e(f"s_bitcmp1_b32 s2, 0\ns_cselect_b32 s{sWg+2}, 0, s{sWg+2}\ns_cselect_b32 s{sWu+2}, 0, s{sWu+2}\ns_cselect_b32 s{sWd+2}, 0, s{sWd+2}")
        A.e(f"s_mov_b32 s{sOut+2}, 2359296\ns_mov_b32 s{sOut+3}, 0x20000")

        A.e(f"v_lshrrev_b32 v13, 4, v0\nv_lshlrev_b32 v{vAS}, 6, v13")
        A.e(f"v_lshrrev_b32 v14, 2, v0\nv_mul_u32_u24 v14, {PIECE}, v14\nv_add_u32 v14, {RING}, v14")
        A.e(f"v_and_b32 v15, 1, v0\nv_lshlrev_b32 v15, 4, v15\nv_add_u32 v{vT}, v14, v15\nv_and_b32 v15, 2, v0\nv_lshl_add_u32 v{vT}, v15, 2, v{vT}\nv_add_u32 v{vT2}, {2*SLOT}, v{vT}")
        A.e(f"v_lshrrev_b32 v14, 3, v0\nv_lshlrev_b32 v14, 2, v14\nv_add_u32 v14, v14, v12\nv_mul_u32_u24 v14, {4*1152}, v14\nv_and_b32 v15, 7, v0\nv_lshl_add_u32 v{vWo}, v15, 4, v14")
        A.e(f"v_lshlrev_b32 v{vPt}, 4, v15\nv_lshl_add_u32 v{vPt}, v13, 7, v{vPt}\nv_bfe_u32 v14, v0, 3, 1\nv_mul_u32_u24 v14, 147456, v14\nv_add_u32 v{vPt}, v{vPt}, v14")
        init_kv_addr()
        A.e(f"v_and_b32 v14, 1, v0\nv_cmp_eq_u32 vcc, 0, v14\nv_mov_b32 v{vIdx}, 0xeeeeeeee\nv_mov_b32 v15, 0x44444444\nv_cndmask_b32 v{vIdx}, v{vIdx}, v15, vcc")
        A.e(f"v_and_b32 v14, {14 if opt.get('ones2', 0) else 2}, v0\nv_cmp_eq_u32 vcc, 0, v14\nv_mov_b32 v15, 0x3f803f80\ns_nop 0\nv_cndmask_b32 v15, 0, v15, vcc")
        for i in range(4): A.e(f"v_accvgpr_write_b32 a{aOne+i}, v15\nv_accvgpr_write_b32 a{56+i}, -1")
        for i in range(16): A.e(f"v_accvgpr_write_b32 a{aL+i}, 0")
    ls = opt.get("ls", 0); tqp = opt.get("tqp", 1)
    if not ls: late_setup()
    if tqp == 0: wq_touch()
    A.e(f"s_cmp_ge_u32 s2, {ncl}\ns_cbranch_scc1 L2_noclr2")
    A.e(f"s_mul_i32 s14, s2, {256//ncl}\ns_mov_b64 exec, 1\ns_waitcnt vmcnt({len(A.vm) - nclr})\ns_barrier\nbuffer_store_dword v60, v{vL7}, {s(sDb,4)}, s14 offen sc1\ns_mov_b64 exec, -1")
    A.label("L2_noclr2")
    if tqp == 1: wq_touch()
    A.stamp()
    XF, MA, TF = 24, 16, 48
    A.wait(vm="xi"); A.fstamp()
    if tqp == 2: wq_touch()
    for i in range(nw0, 4): wload(i)
    for q in range(12): A.e(f"v_lshlrev_b32 v{XF+2*q}, 16, v{XR+q}\nv_and_b32 v{XF+2*q+1}, 0xffff0000, v{XR+q}")
    dot24p(A, TF, 12, XF, None); xsum8(A, [TF], TF + 2)
    A.e(f"v_mul_f32 v{TF}, {hex(f2u(1/144))}, v{TF}")
    for i in range(0, 24, 2): A.e(f"v_pk_add_f32 {v(XF+i,2)}, {v(XF+i,2)}, {v(TF,2)} op_sel_hi:[1,0] neg_lo:[0,1] neg_hi:[0,1]")
    dot24p(A, TF + 1, 12, XF, XF); xsum8(A, [TF + 1], TF + 2)
    A.lds(f"ds_write_b32 v{vSw}, v{TF}", "f"); A.lds(f"ds_write_b32 v{vSw}, v{TF+1} offset:128", "f")
    A.wait(lg="f"); A.e("s_barrier")
    A.lds(f"ds_read_b128 {v(MA,4)}, v{vSt}", "g0"); A.lds(f"ds_read_b128 {v(MA+4,4)}, v{vSt} offset:128", "g1")
    A.e(f"s_add_u32 s14, s{sXs}, 4096")
    A.wait(lg="g0")
    A.e(f"v_add_f32 v12, v{MA}, v{MA+1}\nv_add_f32 v13, v{MA+2}, v{MA+3}\nv_add_f32 v12, v12, v13\nv_mul_f32 v12, 0x3e800000, v12")
    for k in range(4): A.e(f"v_sub_f32 v{MA+k}, v{MA+k}, v12")
    A.e(f"v_sub_f32 v{TF}, v{TF}, v12\nv_mul_f32 v13, v{MA}, v{MA}")
    for k in range(1, 4): A.e(f"v_fmac_f32 v13, v{MA+k}, v{MA+k}")
    A.wait(lg="g1")
    A.e(f"v_add_f32 v14, v{MA+4}, v{MA+5}\nv_add_f32 v15, v{MA+6}, v{MA+7}\nv_add_f32 v14, v14, v15\nv_fmac_f32 v14, {hex(f2u(144.0))}, v13")
    A.e(f"v_mov_b32 v12, {hex(f2u(1e-5))}\nv_fmac_f32 v12, {hex(f2u(1/576))}, v14\nv_rsq_f32 v12, v12\ns_nop 0\nv_mul_f32 v{TF}, v{TF}, v12")
    for i in range(3):
        for q in range(0, 8, 2): A.e(f"v_pk_fma_f32 {v(XF+8*i+q,2)}, {v(XF+8*i+q,2)}, v[12:13], {v(TF,2)} op_sel_hi:[1,0,0]")
        for q in range(4): A.e(f"v_cvt_pk_f16_f32 v{XR+4*i+q}, v{XF+8*i+2*q}, v{XF+8*i+2*q+1}")
        if i == 2: A.e("s_mov_b64 exec, 0xffff")
        A.vmem(f"buffer_store_dwordx4 {v(XR+4*i,4)}, v{vXs}, {s(sWs,4)}, {'s14' if i == 2 else s(sXs)} offen offset:{2048*(i%2)} sc1")
    A.fstamp()
    A.vmem(f"buffer_store_dwordx4 v[56:59], v{vX}, {s(sWs,4)}, s{sF1} offen sc1")
    A.e("s_mov_b64 exec, 0xff")
    A.vmem(f"buffer_store_dwordx4 v[60:63], v{vYc}, {s(sWs,4)}, s{sYc} offen offset:1024 sc1"); A.e("s_mov_b64 exec, -1")
    A.vmem(f"buffer_store_dwordx4 v[60:63], v{vYc}, {s(sWs,4)}, s{sYc} offen sc1"); A.e(f"s_mov_b64 exec, {(1 << ncl) - 1}")
    p0 = f"buffer_load_dword v{TF+3}, v{vL7}, {s(sDb,4)}, 0 offen sc1"
    A.vmem(p0, "p0"); A.e("s_mov_b64 exec, -1")
    if tqp == 3: wq_touch()
    A.stamp()
    A.e(f"s_mul_i32 s3, s{sT8}, 147456\ns_add_u32 s3, s3, {WS_PART + 4096}"); A.srd(sPr, 12, 147456 - 4096, "s3")
    A.wait(vm="c")
    CF = 40
    A.e(f"v_lshlrev_b32 v{CF}, 16, v{CC}\nv_and_b32 v{CF+1}, 0xffff0000, v{CC}\nv_lshlrev_b32 v{CF+2}, 16, v{CC+1}\nv_and_b32 v{CF+3}, 0xffff0000, v{CC+1}\nv_lshlrev_b32 v{CF+4}, 16, v{CC+2}")
    for i in range(5): A.e(f"v_mul_f32 v{MA+i}, {hex(f2u(-LOG2E))}, v{CF+i}")
    for i in range(5): A.e(f"v_exp_f32 v{MA+i}, v{MA+i}")
    for i in range(5): A.e(f"v_add_f32 v{MA+i}, 1.0, v{MA+i}")
    for i in range(5): A.e(f"v_rcp_f32 v{MA+i}, v{MA+i}")
    for i in range(5): A.e(f"v_mul_f32 v{XF+2*i}, v{CF+i}, v{MA+i}")
    for i in range(5):
        A.wait(vm=("w", i))
        for q in range(4):
            t = 12 + 2 * (q % 2)
            A.e(f"v_lshlrev_b32 v{t}, 16, v{WM+4*i+q}\nv_and_b32 v{t+1}, 0xffff0000, v{WM+4*i+q}")
            if i == 0: A.e(f"v_pk_mul_f32 {v(MA+2*q,2)}, {v(t,2)}, {v(XF,2)} op_sel_hi:[1,0]")
            else: A.e(f"v_pk_fma_f32 {v(MA+2*q,2)}, {v(t,2)}, {v(XF+2*i,2)}, {v(MA+2*q,2)} op_sel_hi:[1,0,1]")
    for sh in (4, 8):
        for q in range(8): A.e(f"v_add_f32_dpp v{MA+q}, v{MA+q}, v{MA+q} row_ror:{sh} row_mask:0xf bank_mask:0xf")
    A.e("s_mov_b32 exec_lo, 0xf000f\ns_mov_b32 exec_hi, 0xf000f")
    A.lds(f"ds_write_b128 v{vMw}, {v(MA,4)} offset:{MP}", "f"); A.lds(f"ds_write_b128 v{vMw}, {v(MA+4,4)} offset:{MP+16}", "f")
    A.e(f"s_mov_b64 exec, {(1 << ncl) - 1}")
    A.fstamp(); A.wait(vm="p0"); A.fstamp()
    A.e(f"v_cmp_eq_u32 vcc, s{sW}, v{TF+3}\ns_nop 0\ns_cmp_lg_u64 vcc, 0\ns_cbranch_scc1 L2_p0s"); A.label("L2_p0r")
    B.label("L2_p0s"); poll(B, "L2_p0", p0, f"v_cmp_eq_u32 vcc, 0, v{TF+3}"); B.e("s_branch L2_p0r")
    A.e("s_mov_b64 exec, 1"); A.wait(lg="f"); A.e("s_barrier")
    A.vmem(f"buffer_store_dword v60, v{vL7}, {s(sWs,4)}, s{sKy} offen sc1"); A.e("s_mov_b64 exec, -1")
    for i in range(8): A.lds(f"ds_read_b32 v{XF+i}, v{vL4} offset:{MP + 256*i}", "g2")
    A.wait(lg="g2")
    A.e(f"v_pk_add_f32 {v(XF,2)}, {v(XF,2)}, {v(XF+2,2)}\nv_pk_add_f32 {v(XF+4,2)}, {v(XF+4,2)}, {v(XF+6,2)}\nv_pk_add_f32 {v(XF,2)}, {v(XF,2)}, {v(XF+4,2)}\nv_add_f32 v52, v{XF}, v{XF+1}")
    A.e(f"v_mov_b32 v53, v52\nv_mov_b32 v54, s{sAdd}\ns_nop 0\nv_permlane32_swap_b32 v53, v52\nv_add_f32 v52, v52, v53")
    A.e(f"v_fma_f32 v52, v52, s{sMul}, v54\nv_min_u32 v52, -2, v52\ns_mov_b32 exec_hi, 0")
    A.vmem(f"buffer_store_dword v52, v{vMs}, {s(sWs,4)}, s{sMl} offen sc1"); A.e("s_mov_b64 exec, -1")
    A.fstamp()
    if ls: late_setup()
    fo2 = opt.get("fo2", 1); nl0 = opt.get("nl0", 2)
    for c in range(nl0): emit_dma(A, dmaL(c))
    A.stamp()
    if opt.get("walk", 1):
        A.e(f"s_mov_b64 exec, 0\ns_cmp_eq_u32 s{sW}, 0\ns_cbranch_scc1 L2_pad0\ns_cmp_eq_u32 s{sW}, 1\ns_cbranch_scc1 L2_pad1\ns_cmp_eq_u32 s{sW}, 2\ns_cbranch_scc1 L2_pad2\ns_branch L2_pad3")
        A.e(".p2align 12"); A.label("L2_walkret")
    px = f"buffer_load_dword v12, v{vXf}, {s(sWs,4)}, s{sXf} offen sc1"
    A.e("s_mov_b64 exec, 15")
    if fo2: A.vmem(px, "px")
    else: poll(A, "L2_px", px, "v_cmp_eq_u32 vcc, 0, v12"); A.stamp()
    A.e("s_mov_b64 exec, -1")
    A.e("s_movk_i32 s14, 13824")
    sweep = [f"buffer_load_dwordx4 {v(SV+8*h,4)}, v{SA}, {s(sWs,4)}, {'s14' if h else 0} offen sc1" for h in range(2)]
    sweep += [("s_mov_b64 exec, 0xff\n" if h == 0 else "") + f"buffer_load_dwordx4 {v(SV+8*h+4,4)}, v{SA}, {s(sWs,4)}, {'s14' if h else 0} offen offset:1024 sc1" + ("\ns_mov_b64 exec, -1" if h else "") for h in range(2)]
    tree = f"v_max_u32 v13, v{SV}, v{SV+1}\n" + "\n".join(f"v_max3_u32 v13, v13, v{SV+2*k}, v{SV+2*k+1}" for k in range(1, 8)) + "\nv_cmp_eq_u32 vcc, -1, v13"
    for x in sweep: A.vmem(x, "sw")
    if fo2:
        if nl0 < 1: emit_dma(A, dmaL(0))
        A.e("s_mov_b64 exec, 15"); A.wait(vm="px")
        A.e("v_cmp_eq_u32 vcc, 0, v12\ns_nop 0\ns_cmp_eq_u64 vcc, 0\ns_cbranch_scc1 L2_px_ok")
        keep = list(A.vm); poll(A, "L2_px", px, "v_cmp_eq_u32 vcc, 0, v12", 0); A.vm = keep
        A.e("s_mov_b64 exec, -1"); A.stamp()
    for c in range(2):
        for pre, ld in xload(c): A.items(pre + [ld])
    A.fstamp(); A.wait(vm="sw"); A.fstamp()
    A.e(tree + "\ns_nop 0\ns_cmp_lg_u64 vcc, 0\ns_cbranch_scc1 L2_pms"); A.label("L2_pmr")
    B.label("L2_pms"); poll(B, "L2_pm", "\n".join(sweep), tree); B.e("s_branch L2_pmr")
    A.fstamp()
    for k in range(0, 8, 2): A.e(f"v_pk_add_f32 {v(SV+k,2)}, {v(SV+k,2)}, {v(SV+8+k,2)}")
    A.lds(f"ds_write_b128 v{SD}, {v(SV,4)}", "mw"); A.e("s_mov_b64 exec, 0xff"); A.lds(f"ds_write_b128 v{SD}, {v(SV+4,4)} offset:2048", "mw"); A.e("s_mov_b64 exec, -1")
    A.wait(vm=("L", 0), lg="mw"); A.e("s_barrier")
    A.items(as_reads(0, 0) + as_reads(0, 1))
    if nl0 < 2: emit_dma(A, dmaL(1))
    for pre, ld in xload(2): A.items(pre + [ld])
    A.wait(vm=("X", 0))
    for q in range(4):
        A.wait(lg=("AS", 0, q)); A.items(modulate(0, q))
        if q < 3: A.items(as_reads(0, q + 2) if q < 2 else as_reads(1, 0))
        if q == 2:
            for G in range(QD): A.items(qreads(G))
    A.stamp()
    A.wait(lg=("A", 0))
    Sc, leftover, vmg = gen_qproj(A)
    N = len(Sc.mf)
    T = Asm(); pf_addr(T)
    rest = Sc.fill([(0, x) for x in T.L], 512, N); assert not rest
    rest = Sc.fill([(0, x) for x in kreads(0, ("K", 0))], N - 4 * QD, N); assert not rest
    pend = []
    for t2 in range(8):
        cs = [qconvert(2 * (t2 // 4) + n, t2 % 4) for n in range(2)]
        pend += [(512 + 8 * t2 + 7 + 5, x) for x in cs[0][0] + cs[1][0]]
    pend = Sc.fill(pend, 512, N)
    late = len(pend) > 32
    for c in range(9):
        Sc.emit(A, 64 * c, 64 * c + 64)
        if A.stamping == 4 or c in (3, 8): A.stamp()
    A.e(f"s_mul_i32 s3, s{sT8}, 9216\ns_add_u32 s3, s3, {WS_H2}"); A.srd(sH2, sWs, 9216, "s3")
    emit_dma(A, leftover)
    if late: A.items([x for _, x in pend[:-32]]); pend = pend[-32:]
    for t in range(4):
        for j in range(2): A.items(qconvert(j, t)[1])
    A.items([x for _, x in pend]); A.e("s_nop 0")
    for t in range(4):
        for j in range(2, 4): A.items(qconvert(j, t)[1])
    A.wait(lg=(("K", 0), 0))
    for j in range(4):
        for t in range(4):
            d = S0 + 4 * j
            A.e(f"{MF} {v(d,4)}, {a(KF(0,t),4)}, {v(Q(j,t),4)}, {'0' if t == 0 else v(d,4)}")
    A.e("s_nop 1")
    for j in range(4):
        d = S0 + 4 * j
        A.e(f"v_max3_f32 v{d}, v{d}, v{d+1}, v{d+2}\nv_max_f32 v{d}, v{d}, v{d+3}")
    xmax_to_negm(A, [S0 + 4 * j for j in range(4)], BIAS)
    NIT = opt.get("nit", 11)
    A.label("L2_entry")
    A.e(f"s_mov_b32 s{sBase}, s{sW4}\ns_mov_b32 s{sDel}, {-2*SLOT}\ns_mov_b32 s{sCnt}, {NIT}\ns_mov_b32 s{sT}, {2*16384}\ns_mov_b32 s100, 0x07060302")
    A.wait(vm=("L", 10)); A.e("s_barrier")
    A.stamp()
    pair = opt.get("pair", 1)
    Sf = gen_stage(0, "first", dma_kv_dyn(3, 1), opt, bar=0 if pair else 2)
    rest = Sf.fill([(0, f"v_mov_b32 v{O(3,0)+i}, 0") for i in range(32)], 33, 132)
    for _, x in rest: Sf.va[17].append(x)
    Sf.emit(A)
    tcode = []
    def body(i):
        if pair == 1:
            Sa = gen_stage(i, "A", dma_kv_dyn(i + 3, 0) + dma_kv_dyn(i + 4, 1), opt, bar=0, dgap=1)
            Sa.emit(A)
            Sb = gen_stage(i + 1, "B", [], opt, bar=0)
        elif pair == 2:
            gen_stage(i, "A", dma_kv_dyn(i + 3, 0), opt, bar=0, dgap=1).emit(A)
            Sb = gen_stage(i + 1, "B", dma_kv_dyn(i + 4, 1), opt, bar=0)
        else:
            gen_stage(i, "A", dma_kv_dyn(i + 3, 0), opt).emit(A)
            Sb = gen_stage(i + 1, "B", dma_kv_dyn(i + 4, 1), opt)
        Sb.sh[128].append(f"s_sub_u32 s{sCnt}, s{sCnt}, 1"); Sb.sh[129].append(f"s_cmp_lg_u32 s{sCnt}, 0")
        Sb.emit(A)
    if opt.get("align_loop", 1): A.e(".p2align 5")
    A.label("L2_loop")
    n0 = len(A.L); body(1); n1 = len(A.L); body(3)
    assert A.L[n0:n1] == A.L[n1:], "loop body not in steady state"
    assert lint(A.L[n0:], "loop2x") == 0
    del A.L[n1:]
    def shift(t, d):
        if isinstance(t, tuple) and t[0] in ("L", "V"): return (t[0], t[1] + d)
        if isinstance(t, tuple) and isinstance(t[0], tuple): return ((t[0][0], t[0][1] + d), t[1])
        return t
    A.vm = [shift(t, 2 * NIT - 4) for t in A.vm]; A.lg = [shift(t, 2 * NIT - 4) for t in A.lg]
    A.e("s_cbranch_scc1 L2_loop")
    def gt(ch):
        if ch == "r": return ([], ("vm", f"buffer_load_dword a{aDum}, v{vAS}, {s(sWr,4)}, 0 offen", None))
        vr, sp = dict(g=(12, 4), u=(12, 6), d=(13, 8), a=(14, 10), b=(15, 10))[ch]
        return ([], ("vm", f"global_load_dword a{aDum}, v{vr}, {s(sp,2)}", None))
    fw = ld_ffn()
    plan = opt.get("plan", {24: "ga", 26: "bu", 28: "dr01234", 30: "5678ABCD"} if pair == 1 else {23: "g", 24: "a", 25: "b", 26: "u012", 27: "d345", 28: "r678", 29: "AB", 30: "CD"})
    def tile(n, odd): return dma_kv_dyn(n, odd) if n < 32 else dma_wo(n - 32)
    for i in range(2 * NIT + 1, 31):
        ex = [fw[int(ch)] if ch.isdigit() else gt(ch) if ch.islower() else
              ([], ("vm", f"buffer_store_dwordx4 a[56:59], v{vKV}, {s(sH2,4)}, 0 offen offset:{1024*(ord(ch) - 65)} sc1", None)) for ch in plan.get(i, "")]
        if pair == 1: gen_stage(i, "A" if i % 2 else "B", tile(i + 3, 0) + tile(i + 4, 1) if i % 2 else [], opt, ex, bar=0, dgap=i % 2).emit(A)
        else: gen_stage(i, "A" if i % 2 else "B", tile(i + 3, 1 - i % 2), opt, ex, bar=0 if pair else 2, dgap=pair and i % 2).emit(A)
    nup = opt.get("nup", 16)
    upd = [x for k in range(9) for x in ([fw[9 + k]] + ([fw[18 + k]] if 18 + k < 9 + nup else []))]
    Sl = gen_stage(31, "last", dma_wo(2), opt, upd, opt.get("xs31", 1), dgap=pair)
    def norm(j, pk):
        r = vTmp + 2 * (j % 2)
        out = [f"v_accvgpr_read_b32 v{r}, a{aL+4*j}", f"v_accvgpr_read_b32 v{r+1}, a{aL+4*j+1}", f"v_add_f32 v{r}, v{r}, v{r+1}"]
        if opt.get("ones2", 0):
            for op in ("v_permlane16_swap_b32", "v_permlane32_swap_b32"):
                out += [f"v_mov_b32 v{r+1}, v{r}", "s_nop 1" if pk else "s_nop 0", f"{op} v{r+1}, v{r}", f"v_add_f32 v{r}, v{r}, v{r+1}"]
        out += [f"v_subrev_u32 v{r+1}, {hex(f2u(2.0**(-BIAS-3)))}, v{r}", f"v_cmp_gt_u32 {s(56+2*j,2)}, v{r+1}, s15", f"v_rcp_f32 v{r}, v{r}"]
        body = []
        for x in range(4):
            o = O(j, 2 * x)
            if pk: body += [f"v_pk_mul_f32 {v(o+i,2)}, {v(o+i,2)}, {v(r,2)} op_sel_hi:[1,0]" for i in range(0, 8, 2)]
            else: body += [f"v_mul_f32 v{o+i}, v{o+i}, v{r}" for i in range(8)]
            body += [f"v_cvt_pk_bf16_f32 v{o+i}, v{o+2*i}, v{o+2*i+1}" for i in range(4)]
        return out, body
    Sl.sh[40].append(f"s_mov_b32 s15, {hex(f2u(2.0**60) - f2u(2.0**(-BIAS-3)))}")
    rest = Sl.fill([(149, x) for x in oreads(0)], 149, 165); assert not rest
    rest = Sl.fill([(70 + 33 * j, x) for j in range(2) for x in sum(norm(j, False), [])], 70, 165)
    Sl.emit(A)
    A.stamp()
    h2_, b2 = norm(2, True); h3, b3 = norm(3, True)
    rest = ["s_nop 1" if x == "s_nop 0" else x for _, x in rest]
    if len(rest) >= 48:
        A.items(rest[:-48] + h2_ + norm(1, True)[1] + h3[:-1])
    else: A.items(h2_ + rest + h3[:-1])
    A.e("s_or_b64 s[56:57], s[56:57], s[58:59]\n" + h3[-1] + "\ns_or_b64 s[60:61], s[60:61], s[62:63]\ns_or_b64 s[56:57], s[56:57], s[60:61]")
    A.e(f"s_lshl2_add_u32 s14, s{sW}, {FLAG}\nv_mov_b32 v{NM+9}, s14\nv_mov_b32 v{NM+10}, {FLAG}")
    A.items(b2 + b3)
    A.wait(lg=("W", 0, 0))
    A.stamp()
    So, leftover = gen_oproj(A)
    So.sh[2].append("s_cmp_lg_u64 s[56:57], 0\ns_cselect_b32 s3, 1, 0"); So.sh[4].append(("s_mov_b32 s3, 1\n" if opt.get("force_fallback") else "") + f"s_andn2_b32 s3, s3, s{sPass}")
    So.va[9].append(f"v_mov_b32 v{NM+8}, s3"); So.mem[15].append(("lds", f"ds_write_b32 v{NM+9}, v{NM+8}", "fw"))
    for c in range(9):
        So.emit(A, 64 * c, 64 * c + 64)
        if A.stamping == 3: A.stamp()
    A.e("s_nop 7")
    for n in range(2):
        cv, sw, st = oepi(17, n)
        A.items(cv + ["s_nop 1"] + sw + st[0] + [st[1]])
    A.stamp()
    gen_tail(A, B, opt)
    A.label("L2_end")
    A.e("s_endpgm")
    A.L += B.L
    A.label("L2_fallback")
    A.wait_all(); A.e(f"s_nop 7\ns_barrier\ns_lshl_b32 s3, s{sW}, 12\nv_add_u32 v{vKV}, s3, v{vX}")
    init_kv_addr()
    for j in range(4): A.e(f"v_mov_b32 v{P0+j}, 0xff800000")
    A.e(f"s_mov_b32 s{sPass}, 1\ns_mov_b32 s{sT}, 0")
    A.label("L2_fb_loop")
    emit_dma(A, dma_kv_static(None, (0,), 2))
    A.wait_all(); A.e("s_barrier")
    A.items(kreads(0, "fk")); A.wait_all(); A.e("s_barrier")
    for j in range(4):
        for kt in range(4):
            for t in range(4):
                d = S0 + 4 * kt
                A.e(f"{MF} {v(d,4)}, {a(KF(kt,t),4)}, {v(Q(j,t),4)}, {'0' if t == 0 else v(d,4)}")
        A.e("s_nop 7")
        for i in range(8): A.e(f"v_max3_f32 v{P0+j}, v{P0+j}, v{S0+2*i}, v{S0+2*i+1}")
    A.e(f"s_add_u32 s{sT}, s{sT}, 16384\ns_cmp_lt_u32 s{sT}, {32*16384}\ns_cbranch_scc1 L2_fb_loop")
    xmax_to_negm(A, [P0 + j for j in range(4)], 0.0)
    for i in range(3): emit_dma(A, dma_kv_static(i))
    A.wait_all(); A.e("s_barrier")
    A.items(kreads(0, "fk")); pf_addr(A)
    for i in range(16): A.e(f"v_accvgpr_write_b32 a{aL+i}, 0")
    A.wait_all()
    A.e("s_branch L2_entry")
    A.label("L2_codeend")
    if opt.get("walk", 1): A.L = insert_pads(A.L, "L2_walkret", "L2_end")
    return A, dict(name=KNAME, grid=256, block=256, lds=LDS_BYTES, vgpr=512, acc=256)
```
